```python
import torch

def _softmax(x, axis=-1):
    return torch.softmax(x, dim=axis)
def _gelu(x):
    return torch.nn.functional.gelu(x, approximate="tanh")
def _silu(x):
    return torch.nn.functional.silu(x)
def _sigmoid(x):
    return torch.sigmoid(x)
def _layernorm(x, axis=-1, eps=1e-5):
    m = x.mean(dim=axis, keepdim=True)
    v = x.var(dim=axis, keepdim=True, unbiased=False)
    return (x - m) / torch.sqrt(v + eps)
def _scatter_add(tgt, idx, src, axis=0):
    return tgt.clone().index_add_(axis, idx, src)
def _segment_sum(src, seg, n):
    out = torch.zeros((n,) + src.shape[1:], dtype=src.dtype)
    return out.index_add_(0, seg, src)
def _pad(x, pw):
    flat = tuple(v for pair in reversed(pw) for v in pair)
    return torch.nn.functional.pad(x, flat)

kernel_name = 'gated_mix__mha_block__compressed_kv_cla__prompt'

def setup_inputs():

    _w = (lambda a: (lambda t: t.to(torch.bfloat16) if t.is_floating_point() else t)(torch.as_tensor(a)))
    def _A_setup():
        B, S, D, H = 1, 2048, 448, 16
        return {
            "x": _w((lambda *s: torch.randn(*s, dtype=torch.bfloat16) * 0.05)(B, S, D)),
            "wqkv": _w((lambda *s: torch.randn(*s, dtype=torch.bfloat16) * 1.6)(D, 3 * D)),
            "wo": _w((lambda *s: torch.randn(*s, dtype=torch.bfloat16) * 0.05)(D, D)),
        }
    _A_in = _A_setup()

    def _B_setup():
        B, H, Sq, Sk, D, M = 1, 16, 2048, 2048, 256, 448
        Dc = 4 * D
        return {
            "x": _w((lambda *s: torch.randn(*s, dtype=torch.bfloat16) * 0.05)(B, Sq, M)),
            "c_kv": _w((lambda *s: torch.randn(*s, dtype=torch.bfloat16) * 1.6)(B, Sk, Dc)),
            "w_q": _w((lambda *s: torch.randn(*s, dtype=torch.bfloat16) * 6.4)(M, H, D) * (M ** -0.5)),
            "w_uk": _w((lambda *s: torch.randn(*s, dtype=torch.bfloat16) * 6.4)(Dc, H, D) * (Dc ** -0.5)),
            "w_uv": _w((lambda *s: torch.randn(*s, dtype=torch.bfloat16) * 1.6)(Dc, H, D) * (Dc ** -0.5)),
            "w_o": _w((lambda *s: torch.randn(*s, dtype=torch.bfloat16) * 1.6)(H, D, M) * ((H * D) ** -0.5)),
        }
    _B_in = _B_setup()

    return {
        "A_x": _A_in["x"],
        "A_wqkv": _A_in["wqkv"],
        "A_wo": _A_in["wo"],
        "B_x": _B_in["x"],
        "B_c_kv": _B_in["c_kv"],
        "B_w_q": _B_in["w_q"],
        "B_w_uk": _B_in["w_uk"],
        "B_w_uv": _B_in["w_uv"],
        "B_w_o": _B_in["w_o"],
        "gate_w": _w((lambda *s: torch.randn(*s, dtype=torch.bfloat16) * 0.05)(448) * 16.0),
    }

def reference(A_x, A_wqkv, A_wo, B_x, B_c_kv, B_w_q, B_w_uk, B_w_uv, B_w_o, gate_w):
    def _A_ref(x, wqkv, wo):
        B, S, D = x.shape
        H = 16
        Dh = D // H
        qkv = (lambda x, *d: x.permute(*d))((x @ wqkv).reshape(B, S, 3, H, Dh), 2, 0, 3, 1, 4)
        q, k, v = qkv[0], qkv[1], qkv[2]
        scores = torch.einsum("bhqd,bhkd->bhqk", q, k) * (Dh ** -0.5)
        p = _softmax(scores, axis=-1)
        o = torch.einsum("bhqk,bhkd->bhqd", p, v)
        return (lambda x, *d: x.permute(*d))(o, 0, 2, 1, 3).reshape(B, S, D) @ wo

    def _B_ref(x, c_kv, w_q, w_uk, w_uv, w_o):
        B, Sq, M = x.shape[0], x.shape[1], x.shape[2]
        Sk = c_kv.shape[1]
        H, D = w_q.shape[1], w_q.shape[2]
        q = torch.einsum("bqm,mhd->bhqd", x, w_q)
        k = torch.einsum("bkc,chd->bhkd", c_kv, w_uk)
        v = torch.einsum("bkc,chd->bhkd", c_kv, w_uv)
        scores = torch.einsum("bhqd,bhkd->bhqk", q, k) * (D ** -0.5)
        off = Sk - Sq
        qi = torch.arange(Sq)[:, None]
        kj = torch.arange(Sk)[None, :]
        cmask = kj <= (qi + off)
        scores = torch.where(cmask[None, None], scores, -1e9)
        p = _softmax(scores, axis=-1)
        ctx = torch.einsum("bhqk,bhkd->bhqd", p, v)
        return torch.einsum("bhqd,hdm->bqm", ctx, w_o)

    x = A_x
    g = _sigmoid((x * gate_w).sum(-1, keepdims=True))
    a = _A_ref(x, A_wqkv, A_wo)
    b = _B_ref(x, B_c_kv, B_w_q, B_w_uk, B_w_uv, B_w_o)
    return g * a + (1 - g) * b
```

```python
class Asm:
    def __init__(self):
        self.lines = []
        self._lbl = 0

    def __call__(self, s):
        for l in s.split("\n"):
            l = l.strip()
            if l:
                self.lines.append("    " + l if not l.endswith(":") else l)

    def raw(self, s):
        self.lines.append(s)

    def label(self, name):
        self.lines.append(name + ":")

    def newlabel(self, prefix="L"):
        self._lbl += 1
        return f"{prefix}_{self._lbl}"

    def emit_list(self, lst):
        for l in lst:
            self(l)

    def text(self):
        return "\n".join(self.lines) + "\n"


def vr(base, n=1, kind="v"):
    if n == 1:
        return f"{kind}{base}"
    return f"{kind}[{base}:{base+n-1}]"


def ar(base, n=1):
    return vr(base, n, "a")


def sr(base, n=1):
    return vr(base, n, "s")


def interleave(main, sides):
    bypos = {}
    for pos, ins in sides:
        bypos.setdefault(pos, []).extend(ins if isinstance(ins, list) else [ins])
    out = []
    out.extend(bypos.get(-1, []))
    for i, m in enumerate(main):
        out.append(m)
        out.extend(bypos.get(i, []))
    for p in bypos:
        assert -1 <= p < len(main), p
    return out


def kernel_header(name):
    return f""".text
.globl {name}
.p2align 8
.type {name},@function
{name}:
"""


def kernel_desc(name, vgpr, sgpr, accum):
    return f""".section .rodata,"a"
.p2align 6
.amdhsa_kernel {name}
  .amdhsa_next_free_vgpr {vgpr}
  .amdhsa_next_free_sgpr {sgpr}
  .amdhsa_accum_offset {accum}
  .amdhsa_group_segment_fixed_size 0
  .amdhsa_kernarg_size 104
  .amdhsa_user_sgpr_count 2
  .amdhsa_user_sgpr_kernarg_segment_ptr 1
  .amdhsa_system_sgpr_workgroup_id_x 1
.end_amdhsa_kernel
"""


import struct


def f32bits(x):
    return struct.unpack("<I", struct.pack("<f", x))[0]
```

```python
import math
from asmlib import *

WS_K = 0
WS_V = 16 << 20
WS_Q = 32 << 20
WS_QA = 48 << 20
WS_KA = 50 << 20
WS_VA = 52 << 20
WS_SIZE = 256 << 20

LOG2E = math.log2(math.e)
SCALE_B = LOG2E / 16.0
SCALE_A = LOG2E / math.sqrt(28.0)

LDS_W0 = 0
LDS_X0 = 65536
LDS_TOTAL = 163840

S_X, S_WQKV, S_CKV, S_WQ, S_WUK, S_WUV, S_WS = 4, 6, 8, 10, 12, 14, 16
SRD_X, SRD_W, SRD_O = 20, 24, 28
S_X2B, S_X2N = 32, 34
S_W2B, S_W2N = 36, 38
S_XOFF, S_WOFF, S_XSTEP, S_XWRAP, S_W4, S_W12 = 40, 41, 42, 43, 44, 45
S_XOFF2, S_WOFF2, S_XSTEP2, S_XWRAP2, S_W4_2, S_W12_2 = 46, 47, 48, 49, 50, 51
S_T = 52
S_LEFT = 53
S_XRD = 54
S_XWR = 55
S_WWR = 56
S_WAVE = 57
S_TYPE = 58
S_TYPE2 = 59
S_OBASE = 60
S_OBASE2 = 61
S_SCALE = 62
S_SCALE2 = 63
S_TMP = 64
S_XWAVE = 72
S_OOFF = 73

V_TID = 0
V_XL0, V_XL1 = 1, 2
V_XR0, V_XR1 = 3, 4
V_WR = 5
V_DX, V_DW, V_DX2, V_DW2 = 13, 14, 15, 16
V_LANE16 = 17
V_OA = 18
V_OAV = 19
V_SCHI = 20
V_MULHI, V_ADDHI = 21, 22
V_T = 24
FX = [64, 128]
FW = [96, 160]
V_EP = 128


def acc(nb, tb):
    return (nb * 8 + tb) * 4


def mfma_list(typ, s, first):
    out = []
    for nb in range(8):
        for tb in range(8):
            a = acc(nb, tb)
            w = vr(FW[s] + 4 * nb, 4)
            x = vr(FX[s] + 4 * tb, 4)
            c = "0" if first else ar(a, 4)
            if typ == "KQ":
                out.append(f"v_mfma_f32_16x16x32_bf16 {ar(a,4)}, {w}, {x}, {c}")
            else:
                out.append(f"v_mfma_f32_16x16x32_bf16 {ar(a,4)}, {x}, {w}, {c}")
    return out


def frag_reads(s, hh):
    out = []
    vx = V_XR0 if hh == 0 else V_XR1
    for i in range(8):
        out.append(f"ds_read_b64_tr_b16 {vr(FW[s]+4*i,2)}, v{V_WR+i} offset:{hh*16384}")
        out.append(f"ds_read_b64_tr_b16 {vr(FW[s]+4*i+2,2)}, v{V_WR+i} offset:{hh*16384+2048}")
        out.append(f"ds_read_b128 {vr(FX[s]+4*i,4)}, v{vx} offset:{i*2048}")
    return out


def dma_x():
    groups = []
    for i in range(8):
        g = []
        if i == 0:
            g.append(f"s_mov_b32 m0, s{S_XWR}")
            g.append("s_nop 0")
        g.append(f"buffer_load_dwordx4 v{V_DX}, {sr(SRD_X,4)}, s{S_XOFF} offen lds")
        if i < 7:
            g.append(f"s_add_u32 m0, m0, 2048")
            g.append(f"s_add_u32 s{S_XOFF}, s{S_XOFF}, s{S_XSTEP}")
        else:
            g.append(f"s_add_u32 s{S_XOFF}, s{S_XOFF}, s{S_XWRAP}")
            g.append(f"s_add_u32 s{S_XWR}, s{S_XWR}, 32768")
            g.append(f"s_cmp_ge_u32 s{S_XWR}, {LDS_TOTAL}")
            g.append(f"s_cselect_b32 s{S_XWR}, s{S_XWAVE}, s{S_XWR}")
        groups.append(g)
    return groups


def dma_w():
    groups = []
    for i in range(8):
        g = []
        if i == 0:
            g.append(f"s_mov_b32 m0, s{S_WWR}")
            g.append("s_nop 0")
        g.append(f"buffer_load_dwordx4 v{V_DW}, {sr(SRD_W,4)}, s{S_WOFF} offen lds")
        if i % 2 == 0:
            g.append(f"s_add_u32 m0, m0, 2048")
            g.append(f"s_add_u32 s{S_WOFF}, s{S_WOFF}, s{S_W4}")
        else:
            if i < 7:
                g.append(f"s_add_u32 m0, m0, 6144")
            g.append(f"s_add_u32 s{S_WOFF}, s{S_WOFF}, s{S_W12}")
        if i == 7:
            g.append(f"s_xor_b32 s{S_WWR}, s{S_WWR}, 32768")
        groups.append(g)
    return groups


def switch_x(A):
    l1 = A.newlabel("LSX")
    l2 = A.newlabel("LSX")
    return [
        f"s_cmp_lg_u32 s{S_T}, 14",
        f"s_cbranch_scc1 {l1}",
        f"s_mov_b32 s{SRD_X}, s{S_X2B}",
        f"s_mov_b32 s{SRD_X+1}, s{S_X2B+1}",
        f"s_mov_b32 s{SRD_X+2}, s{S_X2N}",
        f"s_mov_b32 s{S_XOFF}, s{S_XOFF2}",
        f"s_mov_b32 s{S_XSTEP}, s{S_XSTEP2}",
        f"s_mov_b32 s{S_XWRAP}, s{S_XWRAP2}",
        f"v_mov_b32 v{V_DX}, v{V_DX2}",
        f"{l1}:",
        f"s_cmp_ge_u32 s{S_T}, 21",
        f"s_cselect_b32 s{SRD_X+2}, 0, s{SRD_X+2}",
    ]


def switch_w(A):
    l1 = A.newlabel("LSW")
    return [
        f"s_cmp_lg_u32 s{S_T}, 14",
        f"s_cbranch_scc1 {l1}",
        f"s_mov_b32 s{SRD_W}, s{S_W2B}",
        f"s_mov_b32 s{SRD_W+1}, s{S_W2B+1}",
        f"s_mov_b32 s{SRD_W+2}, s{S_W2N}",
        f"s_mov_b32 s{S_WOFF}, s{S_WOFF2}",
        f"s_mov_b32 s{S_W4}, s{S_W4_2}",
        f"s_mov_b32 s{S_W12}, s{S_W12_2}",
        f"v_mov_b32 v{V_DW}, v{V_DW2}",
        f"{l1}:",
        f"s_cmp_ge_u32 s{S_T}, 21",
        f"s_cselect_b32 s{SRD_W+2}, 0, s{SRD_W+2}",
    ]


def addr_update():
    out = []
    out.append(f"v_add_u32 v{V_XR0}, s{S_XRD}, v{V_XL0}")
    out.append(f"v_add_u32 v{V_XR1}, s{S_XRD}, v{V_XL1}")
    for i in range(8):
        out.append(f"v_xor_b32 v{V_WR+i}, 0x8000, v{V_WR+i}")
    out.append(f"s_add_u32 s{S_XRD}, s{S_XRD}, 32768")
    out.append(f"s_cmp_ge_u32 s{S_XRD}, {LDS_TOTAL}")
    out.append(f"s_cselect_b32 s{S_XRD}, {LDS_X0}, s{S_XRD}")
    return out


def ablate(lst, cfg):
    out = []
    for l in lst:
        if cfg.get("no_dma") and l.startswith("buffer_load"):
            continue
        if cfg.get("no_lds") and l.startswith("ds_read"):
            continue
        if cfg.get("no_tr") and l.startswith("ds_read_b64_tr"):
            continue
        if cfg.get("no_b128") and l.startswith("ds_read_b128"):
            continue
        out.append(l)
    return out


def step_body(A, typ, first, cfg):
    rd_every = cfg.get("rd_every", 2)
    dma_start = cfg.get("dma_start", 3)
    dma_every = cfg.get("dma_every", 8)
    m = mfma_list(typ, 0, first)
    sides = []
    sides.append((0, switch_x(A)))
    rds = frag_reads(1, 1)
    for i, r in enumerate(rds):
        sides.append((1 + i * rd_every, [r]))
    for i, g in enumerate(dma_x()):
        sides.append((dma_start + i * dma_every, g))
    au = addr_update()
    p0 = 1 + len(rds) * rd_every
    for i, u in enumerate(au):
        sides.append((min(63, p0 + i), [u]))
    A.emit_list(ablate(interleave(m, sides), cfg))
    if cfg.get("diag2"):
        A(f"s_memtime s[92:93]")
    if cfg.get("diag2"):
        A(f"s_waitcnt lgkmcnt(0)")
        A(f"s_waitcnt vmcnt(8)")
        A(f"s_memtime s[94:95]")
        A(f"s_mov_b32 m0, s{S_T}")
        A("s_nop 3")
        A(f"v_writelane_b32 v40, s92, m0")
    A(f"s_waitcnt vmcnt(8) lgkmcnt(0)")
    if not cfg.get("no_bar"):
        A("s_barrier")
    if cfg.get("diag2"):
        A(f"s_memtime s[96:97]")
        A(f"v_writelane_b32 v41, s94, m0")
    m = mfma_list(typ, 1, False)
    sides = []
    sides.append((0, switch_w(A)))
    rds = frag_reads(0, 0)
    for i, r in enumerate(rds):
        sides.append((1 + i * rd_every, [r]))
    dw_every = cfg.get("dmaw_every", dma_every)
    for i, g in enumerate(dma_w()):
        sides.append((dma_start + i * dw_every, g))
    sides.append((60, [f"s_add_u32 s{S_T}, s{S_T}, 1", f"s_sub_u32 s{S_LEFT}, s{S_LEFT}, 1"]))
    A.emit_list(ablate(interleave(m, sides), cfg))
    A(f"s_waitcnt lgkmcnt(0)")
    if cfg.get("diag2"):
        A(f"s_sub_u32 m0, s{S_T}, 1")
        A("s_nop 3")
        A(f"v_writelane_b32 v42, s96, m0")


def epilogue(A, kind):
    A("s_nop 7")
    A("s_nop 7")
    ntmp = 8
    gi = 0
    for o in range(8):
        for p in range(4):
            t = V_EP + (gi % ntmp) * 12
            gi += 1
            if kind in ("K", "Q", "AKQ"):
                regs = [acc(2 * p, o) + r for r in range(4)] + [acc(2 * p + 1, o) + r for r in range(4)]
            else:
                regs = [acc(o, 2 * p) + r for r in range(4)] + [acc(o, 2 * p + 1) + r for r in range(4)]
            for i, r in enumerate(regs):
                A(f"v_accvgpr_read_b32 v{t+i}, a{r}")
            if kind == "Q":
                for i in range(8):
                    A(f"v_mul_f32 v{t+i}, s{S_SCALE}, v{t+i}")
            elif kind == "AKQ":
                for i in range(4):
                    A(f"v_mul_f32 v{t+i}, s{S_SCALE}, v{t+i}")
                for i in range(4, 8):
                    A(f"v_mul_f32 v{t+i}, v{V_SCHI}, v{t+i}")
            elif kind == "AV" and (o & 1):
                for i in range(8):
                    A(f"v_fma_f32 v{t+i}, v{t+i}, v{V_MULHI}, v{V_ADDHI}")
            for i in range(4):
                A(f"v_cvt_pk_bf16_f32 v{t+8+i}, v{t+2*i}, v{t+2*i+1}")
            if kind in ("K", "Q"):
                so, imm, va = o * 8192, p * 1024, V_LANE16
            elif kind == "V":
                so, imm, va = p * 16384 + (o >> 2) * 4096, (o & 3) * 1024, V_LANE16
            elif kind == "AKQ":
                so, imm, va = p * 131072 + (o >> 2) * 4096, (o & 1) * 128 + ((o >> 1) & 1) * 2048, V_OA
            elif kind == "AV":
                so, imm, va = (o >> 1) * 131072 + (p >> 1) * 4096, (o & 1) * 256 + (p & 1) * 2048, V_OAV
            A(f"s_add_u32 s{S_OOFF}, s{S_OBASE}, {so}")
            A(f"buffer_store_dwordx4 {vr(t+8,4)}, v{va}, {sr(SRD_O,4)}, s{S_OOFF} offen offset:{imm}")


S_STAMP = 80
def stamp(A, cfg, i):
    if cfg.get("diag"):
        A(f"s_memrealtime {sr(S_STAMP+2*i,2)}")
        if not cfg.get("diag2") and i in (1, 2, 3):
            A(f"s_memtime {sr(S_STAMP+10+2*i,2)}")


def stamp_out(A, cfg, n, wsoff, ntot):
    if cfg.get("diag"):
        A("s_waitcnt vmcnt(0) lgkmcnt(0)")
        A(f"s_memrealtime {sr(S_STAMP+2*(n-1),2)}")
        A("s_waitcnt lgkmcnt(0)")
        A(f"s_lshl_b32 s{S_OOFF}, s2, 8")
        A(f"s_lshl_b32 s{S_TMP}, s{S_WAVE}, 6")
        A(f"s_add_u32 s{S_OOFF}, s{S_OOFF}, s{S_TMP}")
        A(f"s_add_u32 s{S_OOFF}, s{S_OOFF}, {wsoff}")
        A(f"v_mov_b32 v{V_T+1}, 0")
        for i in range(ntot):
            A(f"v_mov_b32 v{V_T}, s{S_STAMP+2*i}")
            A(f"buffer_store_dword v{V_T}, v{V_T+1}, {sr(SRD_O,4)}, s{S_OOFF} offen offset:{4*i}")
            A("s_nop 1")
    if cfg.get("diag2"):
        A(f"s_lshl_b32 s{S_OOFF}, s2, 12")
        A(f"s_lshl_b32 s{S_TMP}, s{S_WAVE}, 10")
        A(f"s_add_u32 s{S_OOFF}, s{S_OOFF}, s{S_TMP}")
        A(f"s_add_u32 s{S_OOFF}, s{S_OOFF}, {wsoff + (4 << 20)}")
        A(f"v_lshrrev_b32 v{V_T+1}, 2, v{V_LANE16}")
        for i in range(3):
            A(f"buffer_store_dword v{40+i}, v{V_T+1}, {sr(SRD_O,4)}, s{S_OOFF} offen offset:{256*i}")


def gen_l1(A, name="proj_kernel", cfg=None):
    cfg = cfg or {}
    A.raw(kernel_header(name))
    if cfg.get("diag"):
        for i in range(20):
            A(f"s_mov_b32 s{S_STAMP+i}, 0")
    stamp(A, cfg, 0)
    A(f"s_cmp_ge_u32 s2, 256")
    A(f"s_cbranch_scc1 L1_END")
    A(f"s_load_dwordx4 {sr(S_X,4)}, s[0:1], 0")
    A(f"s_load_dwordx4 {sr(S_CKV,4)}, s[0:1], 32")
    A(f"s_load_dwordx4 {sr(S_WUK,4)}, s[0:1], 48")
    A(f"s_load_dwordx2 {sr(S_WS,2)}, s[0:1], 96")
    T = S_TMP
    A(f"v_lshrrev_b32 v{V_T}, 6, v0")
    A(f"v_and_b32 v0, 63, v0")
    A(f"v_readfirstlane_b32 s{S_WAVE}, v{V_T}")
    A(f"v_lshlrev_b32 v{V_LANE16}, 4, v0")
    A(f"s_and_b32 s{T}, s2, 7")
    A(f"s_lshr_b32 s{T+1}, s2, 6")
    A(f"s_lshl_b32 s{T+1}, s{T+1}, 3")
    A(f"s_add_u32 s{T}, s{T}, s{T+1}")
    A(f"s_lshr_b32 s{T+1}, s2, 3")
    A(f"s_and_b32 s{T+1}, s{T+1}, 7")
    A(f"s_lshr_b32 s{T+2}, s{S_WAVE}, 1")
    A(f"s_and_b32 s{T+3}, s{S_WAVE}, 1")
    A(f"s_and_b32 s{T+4}, s{T}, 15")
    A(f"s_lshr_b32 s{S_TYPE}, s{T}, 4")
    A("s_waitcnt lgkmcnt(0)")
    A(f"s_mov_b32 s{SRD_X}, s{S_CKV}")
    A(f"s_mov_b32 s{SRD_X+1}, s{S_CKV+1}")
    A(f"s_mov_b32 s{SRD_X+2}, {2048*1024*2}")
    A(f"s_mov_b32 s{SRD_X+3}, 0x20000")
    A(f"s_cmp_eq_u32 s{S_TYPE}, 0")
    A(f"s_cselect_b32 s{SRD_W}, s{S_WUK}, s{S_WUV}")
    A(f"s_cselect_b32 s{SRD_W+1}, s{S_WUK+1}, s{S_WUV+1}")
    A(f"s_mov_b32 s{SRD_W+2}, {1024*4096*2}")
    A(f"s_mov_b32 s{SRD_W+3}, 0x20000")
    A(f"s_mov_b32 s{SRD_O}, s{S_WS}")
    A(f"s_mov_b32 s{SRD_O+1}, s{S_WS+1}")
    A(f"s_mov_b32 s{SRD_O+2}, {WS_SIZE}")
    A(f"s_mov_b32 s{SRD_O+3}, 0x20000")
    A(f"s_lshl_b32 s{T+5}, s{T+2}, 4")
    A(f"s_add_u32 s{T+5}, s{T+5}, s{T+3}")
    A(f"s_lshl_b32 s{S_XWAVE}, s{T+5}, 10")
    A(f"s_add_u32 s{S_XWAVE}, s{S_XWAVE}, {LDS_X0}")
    A(f"s_mov_b32 s{S_XWR}, s{S_XWAVE}")
    A(f"s_lshl_b32 s{T+5}, s{T+5}, 3")
    A(f"s_lshl_b32 s{T+6}, s{T+1}, 8")
    A(f"s_add_u32 s{T+6}, s{T+6}, s{T+5}")
    A(f"s_lshl_b32 s{S_XOFF}, s{T+6}, 11")
    A(f"s_mov_b32 s{S_XSTEP}, {16*2048}")
    A(f"s_mov_b32 s{S_XWRAP}, {(128-112*2048) & 0xffffffff}")
    A(f"s_lshl_b32 s{T+7}, s{T+2}, 2")
    A(f"s_add_u32 s{T+7}, s{T+7}, s{T+3}")
    A(f"s_lshl_b32 s{S_WWR}, s{T+7}, 10")
    A(f"s_lshl_b32 s{S_WOFF}, s{T+7}, 14")
    A(f"s_lshl_b32 s{S_OOFF}, s{T+4}, 9")
    A(f"s_add_u32 s{S_WOFF}, s{S_WOFF}, s{S_OOFF}")
    A(f"s_mov_b32 s{S_W4}, {4*8192}")
    A(f"s_mov_b32 s{S_W12}, {12*8192}")
    A(f"s_lshl_b32 s{S_OBASE}, s{T+4}, 20")
    A(f"s_lshl_b32 s{S_OOFF}, s{T+1}, 17")
    A(f"s_add_u32 s{S_OBASE}, s{S_OBASE}, s{S_OOFF}")
    A(f"s_lshl_b32 s{S_OOFF}, s{T+2}, 16")
    A(f"s_add_u32 s{S_OBASE}, s{S_OBASE}, s{S_OOFF}")
    A(f"s_add_u32 s{S_OOFF}, s{S_TYPE}, 12")
    A(f"s_lshl_b32 s{S_OOFF}, s{T+3}, s{S_OOFF}")
    A(f"s_add_u32 s{S_OBASE}, s{S_OBASE}, s{S_OOFF}")
    A(f"s_lshl_b32 s{S_OOFF}, s{S_TYPE}, 24")
    A(f"s_add_u32 s{S_OBASE}, s{S_OBASE}, s{S_OOFF}")
    A(f"s_mov_b32 s{S_SCALE}, 1.0")
    A(f"v_lshrrev_b32 v{V_T}, 4, v0")
    A(f"s_lshl_b32 s{S_OOFF}, s{T+3}, 2")
    A(f"v_add_u32 v{V_T}, s{S_OOFF}, v{V_T}")
    A(f"v_and_b32 v{V_T+1}, 7, v0")
    A(f"v_xor_b32 v{V_T}, v{V_T}, v{V_T+1}")
    A(f"v_lshlrev_b32 v{V_T}, 4, v{V_T}")
    A(f"v_lshrrev_b32 v{V_T+1}, 3, v0")
    A(f"v_lshl_add_u32 v{V_DX}, v{V_T+1}, 11, v{V_T}")
    A(f"v_mul_u32_u24 v{V_T+2}, 896, v{V_T+1}")
    A(f"v_add_u32 v{V_DX2}, v{V_T+2}, v{V_T}")
    A(f"v_lshrrev_b32 v{V_T}, 5, v0")
    A(f"s_lshl_b32 s{S_OOFF}, s{T+3}, 1")
    A(f"s_lshl_b32 s{T+5}, s{T+2}, 2")
    A(f"s_add_u32 s{S_OOFF}, s{S_OOFF}, s{T+5}")
    A(f"v_add_u32 v{V_T+1}, s{S_OOFF}, v{V_T}")
    A(f"v_bfe_u32 v{V_T+2}, v0, 1, 4")
    A(f"v_xor_b32 v{V_T+2}, v{V_T+2}, v{V_T+1}")
    A(f"v_and_b32 v{V_T+3}, 1, v0")
    A(f"v_lshl_add_u32 v{V_T+2}, v{V_T+2}, 1, v{V_T+3}")
    A(f"v_lshlrev_b32 v{V_T+3}, 4, v{V_T+2}")
    A(f"v_lshl_add_u32 v{V_DW}, v{V_T}, 13, v{V_T+3}")
    A(f"v_lshrrev_b32 v{V_T+4}, 2, v{V_T+2}")
    A(f"v_mul_u32_u24 v{V_T+4}, 56, v{V_T+4}")
    A(f"v_and_b32 v{V_T+5}, 3, v{V_T+2}")
    A(f"v_lshl_add_u32 v{V_T+4}, v{V_T+5}, 4, v{V_T+4}")
    A(f"v_mul_u32_u24 v{V_T+5}, 2688, v{V_T}")
    A(f"v_add_u32 v{V_T+4}, v{V_T+4}, v{V_T+5}")
    for g in dma_x():
        A.emit_list(g)
    for g in dma_w():
        A.emit_list(g)
    for g in dma_x():
        A.emit_list(g)
    for g in dma_w():
        A.emit_list(g)
    lq, la, ln, lj = "L1_J2Q", "L1_J2A", "L1_J2N", "L1_J2D"
    A(f"s_mov_b32 s{S_X2B}, s{S_X}")
    A(f"s_mov_b32 s{S_X2B+1}, s{S_X+1}")
    A(f"s_mov_b32 s{S_X2N}, {2048*448*2}")
    A(f"s_mov_b32 s{S_XSTEP2}, {16*896}")
    A(f"s_mov_b32 s{S_XWRAP2}, {(128-112*896) & 0xffffffff}")
    A(f"s_lshl_b32 s{T+5}, s{T+2}, 4")
    A(f"s_add_u32 s{T+5}, s{T+5}, s{T+3}")
    A(f"s_lshl_b32 s{T+5}, s{T+5}, 3")
    A(f"s_cmp_ge_u32 s2, 128")
    A(f"s_cbranch_scc1 {la}")
    A(f"s_mov_b32 s{S_TYPE2}, 2")
    A(f"s_mov_b32 s{S_W2B}, s{S_WQ}")
    A(f"s_mov_b32 s{S_W2B+1}, s{S_WQ+1}")
    A(f"s_mov_b32 s{S_W2N}, {448*4096*2}")
    A(f"s_lshl_b32 s{T+6}, s{T+1}, 8")
    A(f"s_add_u32 s{T+6}, s{T+6}, s{T+5}")
    A(f"s_mul_i32 s{S_XOFF2}, s{T+6}, 896")
    A(f"s_lshl_b32 s{S_WOFF2}, s{T+7}, 14")
    A(f"s_lshl_b32 s{S_OOFF}, s{T+4}, 9")
    A(f"s_add_u32 s{S_WOFF2}, s{S_WOFF2}, s{S_OOFF}")
    A(f"s_mov_b32 s{S_W4_2}, {4*8192}")
    A(f"s_mov_b32 s{S_W12_2}, {12*8192}")
    A(f"v_mov_b32 v{V_DW2}, v{V_DW}")
    A(f"s_add_u32 s{S_OBASE2}, s{S_OBASE}, {WS_Q - WS_K}")
    A(f"s_mov_b32 s{S_SCALE2}, {f32bits(SCALE_B):#x}")
    A(f"s_branch {lj}")
    A.label(la)
    A(f"s_mov_b32 s{S_W2B}, s{S_WQKV}")
    A(f"s_mov_b32 s{S_W2B+1}, s{S_WQKV+1}")
    A(f"s_mov_b32 s{S_W2N}, {448*1344*2}")
    A(f"s_and_b32 s{T+6}, s2, 7")
    A(f"s_sub_u32 s{T}, s2, 128")
    A(f"s_lshr_b32 s{T}, s{T}, 3")
    A(f"s_lshl_b32 s{S_OOFF}, s{T+6}, 8")
    A(f"s_add_u32 s{S_OOFF}, s{S_OOFF}, s{T+5}")
    A(f"s_mul_i32 s{S_XOFF2}, s{S_OOFF}, 896")
    A(f"s_mul_i32 s{S_WOFF2}, s{T+7}, {2*2688}")
    A(f"s_mul_i32 s{S_OOFF}, s{T}, {8*56}")
    A(f"s_add_u32 s{S_WOFF2}, s{S_WOFF2}, s{S_OOFF}")
    A(f"s_mov_b32 s{S_W4_2}, {4*2688}")
    A(f"s_mov_b32 s{S_W12_2}, {12*2688}")
    A(f"v_mov_b32 v{V_DW2}, v{V_T+4}")
    A(f"s_lshl_b32 s{S_OBASE2}, s{T}, 20")
    A(f"s_add_u32 s{S_OBASE2}, s{S_OBASE2}, {WS_QA}")
    A(f"s_lshl_b32 s{S_OOFF}, s{T+3}, 19")
    A(f"s_add_u32 s{S_OBASE2}, s{S_OBASE2}, s{S_OOFF}")
    A(f"s_lshl_b32 s{S_OOFF}, s{T+6}, 14")
    A(f"s_add_u32 s{S_OBASE2}, s{S_OBASE2}, s{S_OOFF}")
    A(f"s_lshl_b32 s{S_OOFF}, s{T+2}, 13")
    A(f"s_add_u32 s{S_OBASE2}, s{S_OBASE2}, s{S_OOFF}")
    A(f"s_cmp_lt_u32 s{T}, 2")
    A(f"s_cselect_b32 s{S_SCALE2}, {f32bits(SCALE_A):#x}, 1.0")
    A(f"s_cmp_lt_u32 s{T}, 4")
    A(f"s_cselect_b32 s{S_TYPE2}, 3, 4")
    A(f"s_cmp_lt_u32 s2, 176")
    A(f"s_cbranch_scc1 {lj}")
    A(f"s_mov_b32 s{S_TYPE2}, 5")
    A(f"s_mov_b32 s{S_X2N}, 0")
    A(f"s_mov_b32 s{S_W2N}, 0")
    A.label(lj)
    A(f"v_and_b32 v{V_T}, 15, v0")
    A(f"v_lshrrev_b32 v{V_T+1}, 4, v0")
    A(f"v_lshrrev_b32 v{V_T+2}, 1, v{V_T}")
    A(f"v_xor_b32 v{V_T+2}, v{V_T+2}, v{V_T+1}")
    A(f"v_lshlrev_b32 v{V_T+2}, 4, v{V_T+2}")
    A(f"v_lshl_add_u32 v{V_XL0}, v{V_T}, 7, v{V_T+2}")
    A(f"s_lshl_b32 s{S_OOFF}, s{T+2}, 14")
    A(f"v_add_u32 v{V_XL0}, s{S_OOFF}, v{V_XL0}")
    A(f"v_xor_b32 v{V_XL1}, 64, v{V_XL0}")
    A(f"v_add_u32 v{V_XR0}, {LDS_X0}, v{V_XL0}")
    A(f"v_add_u32 v{V_XR1}, {LDS_X0}, v{V_XL1}")
    A(f"s_mov_b32 s{S_XRD}, {LDS_X0+32768}")
    A(f"v_bfe_u32 v{V_T+2}, v0, 2, 2")
    A(f"v_lshl_add_u32 v{V_T+3}, v{V_T+1}, 3, v{V_T+2}")
    A(f"v_lshlrev_b32 v{V_T+3}, 9, v{V_T+3}")
    A(f"v_and_b32 v{V_T+4}, 1, v{V_T+1}")
    A(f"v_lshl_add_u32 v{V_T+4}, v{V_T+4}, 2, v{V_T+2}")
    A(f"v_lshl_add_u32 v{V_T+3}, v{V_T+4}, 5, v{V_T+3}")
    A(f"v_and_b32 v{V_T+4}, 3, v0")
    A(f"v_lshl_add_u32 v{V_T+3}, v{V_T+4}, 3, v{V_T+3}")
    A(f"s_lshl_b32 s{S_OOFF}, s{T+3}, 8")
    A(f"v_add_u32 v{V_WR}, s{S_OOFF}, v{V_T+3}")
    for b in range(1, 8):
        A(f"v_xor_b32 v{V_WR+b}, {b*32}, v{V_WR}")
    A(f"v_lshlrev_b32 v{V_T+2}, 9, v{V_T+1}")
    A(f"v_bfe_u32 v{V_T+3}, v0, 3, 1")
    A(f"v_lshl_add_u32 v{V_T+4}, v{V_T+3}, 8, v{V_T+2}")
    A(f"v_and_b32 v{V_T+3}, 7, v0")
    A(f"v_lshl_add_u32 v{V_OA}, v{V_T+3}, 4, v{V_T+4}")
    A(f"v_lshl_add_u32 v{V_OAV}, v{V_T}, 4, v{V_T+2}")
    A(f"v_mov_b32 v{V_SCHI}, s{S_SCALE2}")
    A(f"v_cmp_gt_u32 vcc, 3, v{V_T+1}")
    A("s_nop 1")
    A(f"v_cndmask_b32 v{V_SCHI}, 0, v{V_SCHI}, vcc")
    A(f"v_cmp_gt_u32 vcc, 12, v{V_T}")
    A("s_nop 1")
    A(f"v_cndmask_b32 v{V_MULHI}, 0, 1.0, vcc")
    A(f"v_cmp_eq_u32 vcc, 12, v{V_T}")
    A("s_nop 1")
    A(f"v_cndmask_b32 v{V_ADDHI}, 0, 1.0, vcc")
    A(f"s_mov_b32 s{S_T}, 0")
    A(f"s_mov_b32 s{S_LEFT}, 16")
    A("s_waitcnt vmcnt(16)")
    A("s_barrier")
    stamp(A, cfg, 1)
    A.emit_list(frag_reads(0, 0))
    A("s_waitcnt lgkmcnt(0)")
    A.label("L1_JOB")
    A(f"s_cmp_eq_u32 s{S_TYPE}, 1")
    A(f"s_cbranch_scc1 L1_VT")
    A(f"s_cmp_eq_u32 s{S_TYPE}, 4")
    A(f"s_cbranch_scc1 L1_VT")
    for typ in ("KQ", "V"):
        if typ == "V":
            A.label("L1_VT")
        step_body(A, typ, True, cfg)
        A.label(f"L1_LOOP_{typ}")
        step_body(A, typ, False, cfg)
        A(f"s_cmp_lg_u32 s{S_LEFT}, 0")
        A(f"s_cbranch_scc1 L1_LOOP_{typ}")
        if typ == "KQ":
            A(f"s_cmp_eq_u32 s{S_TYPE}, 2")
            A(f"s_cbranch_scc1 L1_EPI_Q")
            A(f"s_cmp_eq_u32 s{S_TYPE}, 3")
            A(f"s_cbranch_scc1 L1_EPI_AKQ")
            stamp(A, cfg, 2)
            epilogue(A, "K")
            A("s_branch L1_NEXT")
            A.label("L1_EPI_Q")
            stamp(A, cfg, 4)
            epilogue(A, "Q")
            A("s_branch L1_FIN")
            A.label("L1_EPI_AKQ")
            stamp(A, cfg, 4)
            epilogue(A, "AKQ")
            A("s_branch L1_FIN")
        else:
            A(f"s_cmp_eq_u32 s{S_TYPE}, 4")
            A(f"s_cbranch_scc1 L1_EPI_AV")
            stamp(A, cfg, 2)
            epilogue(A, "V")
            A("s_branch L1_NEXT")
            A.label("L1_EPI_AV")
            stamp(A, cfg, 4)
            epilogue(A, "AV")
            A("s_branch L1_FIN")
    A.label("L1_NEXT")
    stamp(A, cfg, 3)
    A(f"s_cmp_eq_u32 s{S_TYPE2}, 5")
    A(f"s_cbranch_scc1 L1_FIN")
    A(f"s_mov_b32 s{S_TYPE}, s{S_TYPE2}")
    A(f"s_mov_b32 s{S_OBASE}, s{S_OBASE2}")
    A(f"s_mov_b32 s{S_SCALE}, s{S_SCALE2}")
    A(f"s_mov_b32 s{S_LEFT}, 7")
    A("s_branch L1_JOB")
    A.label("L1_FIN")
    stamp_out(A, cfg, 6, 200 << 20, 9)
    A.label("L1_END")
    A("s_endpgm")
    return kernel_desc(name, 512, 100, 256)
```

```python
import math
from asmlib import *
from gen_l1 import WS_K, WS_V, WS_Q, WS_QA, WS_KA, WS_VA, WS_SIZE

WS_P = 64 << 20
P_SLOT = 128 * 14 * 1024
NB_ITEMS = 256
NA_ITEMS = 128
LDS_TOTAL = 163840
BIAS = 32.0
NEG_INF = 0xff800000
HUGE = WS_SIZE

S_WS, S_WOB, S_WOA = 4, 6, 8
SRD_WS, SRD_WO = 12, 16
S_WAVE = 20
S_HEAD = 21
S_QB = 22
S_N = 23
S_T2 = 24
S_TW = 25
S_KOFF, S_VOFF, S_KLIM, S_VLIM = 26, 27, 28, 29
S_B0 = 30
S_TMP = 32
S_LEFT = 40
S_RET = 42
S_FLOOR = 44
S_FIRST = 45
S_WOOFF = 46
S_POFF = 47
S_ONES = 48
S_MASK = 49
S_HUGE = 50
S_STAMP = 80

V_LANE16 = 1
V_DKV = 2
V_RB1, V_RB0 = 3, 4
V_CB = 6
V_L = 8
V_DM = 10
V_OR = 14
V_T = 16
V_WOD = 32
V_WOR = 40
VP = [48, 56]
VS = [64, 80]
VC = 96
VE = 112
VO = 128
AQ, AK, AV = 0, 64, 128


def launch_line(cfg=None):
    cfg = cfg or {}
    n = NB_ITEMS + (0 if cfg.get("no_a") else NA_ITEMS)
    return f"; @launch kernel=attn_kernel grid=({n},1,1) block=(256,1,1) lds={LDS_TOTAL}"


def s_reg(buf, kb, qb):
    return VS[buf] + (kb * 2 + qb) * 4


def c_reg(kb, qb):
    return VC + (kb * 2 + qb) * 4


def o_reg(db, qb):
    return VO + (db * 2 + qb) * 4


def qk_mfmas(buf):
    out = []
    for dg in range(8):
        for kb in range(2):
            for qb in range(2):
                d = vr(s_reg(buf, kb, qb), 4)
                c = vr(c_reg(kb, qb), 4) if dg == 0 else d
                out.append(f"v_mfma_f32_16x16x32_bf16 {d}, {ar(AK+(kb*8+dg)*4,4)}, {ar(AQ+(qb*8+dg)*4,4)}, {c}")
    return out


def pv_mfmas(pbuf, first=False):
    out = []
    for db in range(16):
        for qb in range(2):
            d = vr(o_reg(db, qb), 4)
            out.append(f"v_mfma_f32_16x16x32_bf16 {d}, {ar(AV+db*4,4)}, {vr(VP[pbuf]+qb*4,4)}, {d}")
    return out


def k_reads(vbase, off):
    return [f"ds_read_b128 {ar(AK+(kb*8+dg)*4,4)}, v{vbase} offset:{off+(kb*8+dg)*1024}"
            for dg in range(8) for kb in range(2)]


def v_reads(vbase, off):
    return [f"ds_read_b128 {ar(AV+db*4,4)}, v{vbase} offset:{off+db*1024}" for db in range(16)]


def softmax_ops(buf, pbuf):
    ops = []
    for qb in range(2):
        for kb in range(2):
            s = s_reg(buf, kb, qb)
            e = VE + (kb * 2 + qb) * 4
            for r in range(4):
                ops.append(f"v_exp_f32 v{e+r}, v{s+r}")
            ops.append(("cvt", f"v_cvt_pk_bf16_f32 v{VP[pbuf]+qb*4+kb*2}, v{e}, v{e+1}"))
            ops.append(("cvt", f"v_cvt_pk_bf16_f32 v{VP[pbuf]+qb*4+kb*2+1}, v{e+2}, v{e+3}"))
    out = []
    pend = []
    for o in ops:
        if isinstance(o, tuple):
            pend.append(o[1])
        else:
            out.append(o)
            if pend:
                out.append(pend.pop(0))
    tail = pend
    p = VP[pbuf]
    out.append(f"v_or3_b32 v{V_OR}, v{p}, v{p+1}, v{p+2}")
    out.extend(tail)
    out.append(f"v_or3_b32 v{V_OR}, v{V_OR}, v{p+3}, v{p+4}")
    out.append(f"v_or3_b32 v{V_OR+1}, v{p+5}, v{p+6}, v{p+7}")
    out.append(f"v_or_b32 v{V_OR}, v{V_OR}, v{V_OR+1}")
    out.append(f"v_and_b32 v{V_OR}, s{S_MASK}, v{V_OR}")
    out.append(f"v_cmp_ne_u32 vcc, 0, v{V_OR}")
    return out


def lsum_ops(pbuf):
    out = []
    for i in range(4):
        for qb in range(2):
            out.append(f"v_dot2_f32_bf16 v{V_L+qb}, v{VP[pbuf]+qb*4+i}, s{S_ONES}, v{V_L+qb}")
    return out


def dma_kv(kdst, vdst):
    g = []
    g.append([f"s_cmp_lt_u32 s{S_KOFF}, s{S_KLIM}", f"s_cselect_b32 s{S_TMP}, s{S_KOFF}, s{S_HUGE}"])
    g.append([kdst, f"s_add_u32 s{S_KOFF}, s{S_KOFF}, 16384"])
    for i in range(4):
        g.append([f"buffer_load_dwordx4 v{V_DKV}, {sr(SRD_WS,4)}, s{S_TMP} offen offset:{i*1024} lds"])
    g.append([f"s_cmp_lt_u32 s{S_VOFF}, s{S_VLIM}", f"s_cselect_b32 s{S_TMP+1}, s{S_VOFF}, s{S_HUGE}"])
    g.append([vdst, f"s_add_u32 s{S_VOFF}, s{S_VOFF}, 16384"])
    for i in range(4):
        g.append([f"buffer_load_dwordx4 v{V_DKV}, {sr(SRD_WS,4)}, s{S_TMP+1} offen offset:{i*1024} lds"])
    return g


def c_update(A, tile_sgpr):
    lskip, lfull = A.newlabel("LC"), A.newlabel("LC")
    o = []
    o.append(f"s_cmp_lt_u32 s{tile_sgpr}, s{S_TW}")
    o.append(f"s_cbranch_scc1 {lskip}")
    o.append(f"s_cmp_eq_u32 s{tile_sgpr}, s{S_TW}")
    o.append(f"s_cbranch_scc0 {lfull}")
    for r in range(4):
        o.append(f"v_add_f32 v{c_reg(0,0)+r}, v{V_CB}, v{V_DM+r}")
        o.append(f"v_add_f32 v{c_reg(1,1)+r}, v{V_CB+1}, v{V_DM+r}")
        o.append(f"v_mov_b32 v{c_reg(1,0)+r}, {NEG_INF:#x}")
    o.append(f"s_branch {lskip}")
    o.append(f"{lfull}:")
    for r in range(16):
        o.append(f"v_mov_b32 v{VC+r}, {NEG_INF:#x}")
    o.append(f"{lskip}:")
    return o


def spread(n_items, start, end):
    if n_items == 1:
        return [start]
    return [start + (i * (end - start)) // (n_items - 1) for i in range(n_items)]


def b_iter(A, par, cfg, do_sm=True, do_qk=True, do_dma=True, last=False):
    pb_cur, pb_nxt = par, 1 - par
    sb_sm, sb_qk = 1 - par, par
    A(f"s_waitcnt vmcnt(16) lgkmcnt(0)" if do_dma or do_qk else "s_waitcnt lgkmcnt(0)")
    A("s_barrier")
    sm = softmax_ops(sb_sm, pb_nxt) if do_sm else []
    ls = lsum_ops(pb_cur)
    m = pv_mfmas(pb_cur)
    sides = []
    if do_qk:
        rd = k_reads(V_RB1, 0 if par == 0 else 32768)
        for p, r in zip(spread(16, 0, 24), rd):
            sides.append((p, [r]))
        sides.append((26, c_update(A, S_T2)))
    if do_dma:
        if par == 0:
            g = dma_kv(f"s_add_u32 m0, s{S_B0}, 32768", f"s_add_u32 m0, s{S_B0}, 16384")
        else:
            g = dma_kv(f"s_xor_b32 m0, s{S_B0}, 65536", f"s_add_u32 m0, s{S_B0}, 49152")
        g1, g2 = g[:6], g[6:]
        for p, x in zip(spread(6, 1, 27), g1):
            sides.append((p, x))
    if last:
        for p, x in zip(spread(len(last), 0, 31), last):
            sides.append((p, x))
    nsm1 = (len(sm) * cfg.get("sm_split", 45)) // 100 if do_qk else len(sm)
    v1 = ls[:4] + sm[:nsm1] + ls[4:]
    if v1:
        for p, x in zip(spread(len(v1), 1, 31), v1):
            sides.append((p, [x]))
    A.emit_list(interleave(m, sides))
    if not do_qk:
        if do_sm:
            A.emit_list(v_reads(V_RB0 if par == 0 else V_RB1, 49152 if par == 0 else 16384))
            lskip = A.newlabel("LR")
            A(f"s_cbranch_vccz {lskip}")
            A(f"s_call_b64 {sr(S_RET,2)}, L2_RARE{sb_sm}")
            A.label(lskip)
        return
    A("s_waitcnt lgkmcnt(0)")
    m = qk_mfmas(sb_qk)
    sides = []
    rd = v_reads(V_RB0 if par == 0 else V_RB1, 49152 if par == 0 else 16384)
    for p, r in zip(spread(16, 0, 24), rd):
        sides.append((p, [r]))
    if do_dma:
        for p, x in zip(spread(6, 1, 27), g2):
            sides.append((p, x))
    v2 = sm[nsm1:]
    for p, x in zip(spread(len(v2), 0, 27), v2):
        sides.append((p, [x]))
    sides.append((29, [f"s_add_u32 s{S_T2}, s{S_T2}, 1"]))
    if par == 1:
        sides.append((30, [f"v_xor_b32 v{V_RB0}, 0x10000, v{V_RB0}", f"v_xor_b32 v{V_RB1}, 0x10000, v{V_RB1}",
                           f"s_xor_b32 s{S_B0}, s{S_B0}, 65536", f"s_sub_u32 s{S_LEFT}, s{S_LEFT}, 1"]))
    A.emit_list(interleave(m, sides))
    lskip = A.newlabel("LR")
    A(f"s_cbranch_vccz {lskip}")
    A(f"s_call_b64 {sr(S_RET,2)}, L2_RARE{sb_sm}")
    A.label(lskip)


def xquad(A, op, v, t):
    A(f"v_mov_b32 v{t}, v{v}")
    A("s_nop 1")
    A(f"v_permlane32_swap_b32 v{t}, v{v}")
    A("s_nop 1")
    A(f"{op} v{v}, v{v}, v{t}")
    A(f"v_mov_b32 v{t}, v{v}")
    A("s_nop 1")
    A(f"v_permlane16_swap_b32 v{t}, v{v}")
    A("s_nop 1")
    A(f"{op} v{v}, v{v}, v{t}")


def b_rare(A, sb):
    A.label(f"L2_RARE{sb}")
    A("s_nop 7")
    A("s_nop 7")
    so = 1 - sb
    for qb in range(2):
        d = V_T + qb
        a, b = s_reg(sb, 0, qb), s_reg(sb, 1, qb)
        A(f"v_max3_f32 v{d}, v{a}, v{a+1}, v{a+2}")
        A(f"v_max3_f32 v{d}, v{d}, v{a+3}, v{b}")
        A(f"v_max3_f32 v{d}, v{d}, v{b+1}, v{b+2}")
        A(f"v_max_f32 v{d}, v{d}, v{b+3}")
        xquad(A, "v_max_f32", d, V_T + 4)
        A(f"v_add_f32 v{d}, {f32bits(BIAS):#x}, v{d}")
        A(f"v_max_f32 v{d}, s{S_FLOOR}, v{d}")
        A(f"v_max_f32 v{V_T+2+qb}, 0, v{d}")
        A(f"v_exp_f32 v{V_T+2+qb}, -v{V_T+2+qb}")
        for kb in range(2):
            for r in range(4):
                A(f"v_sub_f32 v{s_reg(sb,kb,qb)+r}, v{s_reg(sb,kb,qb)+r}, v{d}")
                A(f"v_sub_f32 v{s_reg(so,kb,qb)+r}, v{s_reg(so,kb,qb)+r}, v{d}")
                A(f"v_sub_f32 v{c_reg(kb,qb)+r}, v{c_reg(kb,qb)+r}, v{d}")
        A(f"v_sub_f32 v{V_CB+qb}, v{V_CB+qb}, v{d}")
        A(f"v_mul_f32 v{V_L+qb}, v{V_L+qb}, v{V_T+2+qb}")
    lskip = A.newlabel("LRS")
    A(f"s_cmp_eq_u32 s{S_FIRST}, 1")
    A(f"s_cbranch_scc1 {lskip}")
    for db in range(16):
        for qb in range(2):
            for r in range(4):
                A(f"v_mul_f32 v{o_reg(db,qb)+r}, v{o_reg(db,qb)+r}, v{V_T+2+qb}")
    A.label(lskip)
    A(f"s_mov_b32 s{S_FIRST}, 0")
    A(f"s_mov_b32 s{S_FLOOR}, 0")
    for o in softmax_ops(sb, sb):
        A(o)
    A("s_nop 1")
    A(f"s_setpc_b64 {sr(S_RET,2)}")


def wo_dma(chunk, slot):
    g = []
    g.append([f"s_add_u32 s{S_TMP+2}, s{S_WOOFF}, {chunk*32*896}", f"s_add_u32 m0, s{S_TMP+3}, {slot*32768}"])
    for i in range(7):
        x = []
        if i == 4:
            x.append(f"s_add_u32 m0, m0, 4096")
            x.append("s_nop 0")
        x.append(f"buffer_load_dwordx4 v{V_WOD+i}, {sr(SRD_WO,4)}, s{S_TMP+2} offen offset:{(i%4)*1024} lds")
        g.append(x)
    return g


WO_SLOT = [4, 0, 1, 2, 3, 4, 0, 1]
VF = 128
VCTX = 64


def wo_reads(half, fset):
    out = []
    for i in range(14):
        b = 14 * half + i
        f = VF + (fset * 14 + i) * 4
        for e in range(2):
            out.append(f"ds_read_b64_tr_b16 {vr(f+2*e,2)}, v{V_WOR+(b&3)} offset:{(b>>2)*128+e*16*896}")
    return out


def wo_mfmas(half, fset, dg):
    out = []
    for i in range(14):
        b = 14 * half + i
        f = VF + (fset * 14 + i) * 4
        for qb in range(2):
            a = (b * 2 + qb) * 4
            c = "0" if dg == 0 else ar(a, 4)
            out.append(f"v_mfma_f32_16x16x32_bf16 {ar(a,4)}, {vr(f,4)}, {vr(VCTX+(dg*2+qb)*4,4)}, {c}")
    return out


def b_epilogue(A, cfg):
    A("s_nop 7")
    for qb in range(2):
        xquad(A, "v_add_f32", V_L + qb, V_T + 4)
        A(f"v_rcp_f32 v{V_T+2*qb}, v{V_L+qb}")
        A("s_nop 0")
        A(f"v_mov_b32 v{V_T+2*qb+1}, v{V_T+2*qb}")
    for dg in range(8):
        for qb in range(2):
            for a in range(2):
                o = o_reg(2 * dg + a, qb)
                A(f"v_pk_mul_f32 {vr(o,2)}, {vr(o,2)}, {vr(V_T+2*qb,2)}")
                A(f"v_pk_mul_f32 {vr(o+2,2)}, {vr(o+2,2)}, {vr(V_T+2*qb,2)}")
            for a in range(2):
                o = o_reg(2 * dg + a, qb)
                c = VCTX + (dg * 2 + qb) * 4 + 2 * a
                A(f"v_cvt_pk_bf16_f32 v{c}, v{o}, v{o+1}")
                A(f"v_cvt_pk_bf16_f32 v{c+1}, v{o+2}, v{o+3}")
    A("s_waitcnt vmcnt(28)")
    A("s_barrier")
    A.emit_list(wo_reads(0, 0))
    A("s_waitcnt lgkmcnt(0)")
    for dg in range(8):
        m = wo_mfmas(0, 0, dg)
        sides = [(p, [r]) for p, r in zip(spread(28, 0, 22), wo_reads(1, 1))]
        if dg < 7:
            delta = (WO_SLOT[dg + 1] - WO_SLOT[dg]) * 32768
            for i in range(4):
                sides.append((23 + i, [f"v_add_u32 v{V_WOR+i}, {delta & 0xffffffff:#x}, v{V_WOR+i}"]))
        A.emit_list(interleave(m, sides))
        if dg < 7:
            young = max(0, min(dg + 4, 7) - (dg + 1))
            A(f"s_waitcnt vmcnt({7*young}) lgkmcnt(0)")
            A("s_barrier")
        else:
            A("s_waitcnt lgkmcnt(0)")
        m = wo_mfmas(1, 1, dg)
        sides = []
        if dg < 7:
            sides += [(p, [r]) for p, r in zip(spread(28, 0, 22), wo_reads(0, 0))]
        if dg + 5 <= 7:
            for p, x in zip(spread(8, 1, 26), wo_dma(dg + 5, WO_SLOT[dg + 5])):
                sides.append((p, x))
        A.emit_list(interleave(m, sides))
        if dg < 7:
            A("s_waitcnt lgkmcnt(0)")
    store_partials(A, 2)


def store_partials(A, nqb):
    A("s_nop 7")
    gi = 0
    for qb in range(nqb):
        for p in range(14):
            t = 128 + (gi % 8) * 12
            gi += 1
            regs = [((2 * p) * nqb + qb) * 4 + r for r in range(4)] + [((2 * p + 1) * nqb + qb) * 4 + r for r in range(4)]
            for i, r in enumerate(regs):
                A(f"v_accvgpr_read_b32 v{t+i}, a{r}")
            for i in range(4):
                A(f"v_cvt_pk_bf16_f32 v{t+8+i}, v{t+2*i}, v{t+2*i+1}")
            off = (qb * 14 + p) * 1024
            if off % 4096 == 0:
                A(f"s_add_u32 s{S_TMP}, s{S_POFF}, {off}")
            A(f"buffer_store_dwordx4 {vr(t+8,4)}, v{V_LANE16}, {sr(SRD_WS,4)}, s{S_TMP} offen offset:{off%4096}")


def wo_lane_setup(A):
    T = V_T
    for i in range(7):
        A(f"v_add_u32 v{T}, {64*i}, v0")
        A(f"v_mul_u32_u24 v{T+1}, 1171, v{T}")
        A(f"v_lshrrev_b32 v{T+1}, 16, v{T+1}")
        A(f"v_mul_u32_u24 v{T+2}, 56, v{T+1}")
        A(f"v_sub_u32 v{T+2}, v{T}, v{T+2}")
        A(f"v_bfe_u32 v{T+3}, v{T+1}, 1, 2")
        A(f"v_lshlrev_b32 v{T+3}, 1, v{T+3}")
        A(f"v_xor_b32 v{T+2}, v{T+2}, v{T+3}")
        A(f"v_mul_u32_u24 v{T+1}, 896, v{T+1}")
        A(f"v_lshl_add_u32 v{T+1}, v{T+2}, 4, v{T+1}")
        A(f"v_subrev_u32 v{V_WOD+i}, {(i%4)*1024}, v{T+1}")


def stamp(A, cfg, i):
    if cfg.get("diag"):
        A(f"s_memrealtime {sr(S_STAMP+2*i,2)}")


def stamp_out(A, cfg, n, wsoff):
    if cfg.get("diag"):
        A("s_waitcnt vmcnt(0) lgkmcnt(0)")
        A(f"s_memrealtime {sr(S_STAMP+2*(n-1),2)}")
        A("s_waitcnt lgkmcnt(0)")
        A(f"s_lshl_b32 s{S_TMP}, s2, 8")
        A(f"s_lshl_b32 s{S_TMP+1}, s{S_WAVE}, 6")
        A(f"s_add_u32 s{S_TMP}, s{S_TMP}, s{S_TMP+1}")
        A(f"s_add_u32 s{S_TMP}, s{S_TMP}, {wsoff}")
        A(f"v_mov_b32 v{V_T+1}, 0")
        for i in range(n):
            A(f"v_mov_b32 v{V_T}, s{S_STAMP+2*i}")
            A(f"buffer_store_dword v{V_T}, v{V_T+1}, {sr(SRD_WS,4)}, s{S_TMP} offen offset:{4*i}")
            A("s_nop 1")


def gen_b_item(A, cfg):
    T = S_TMP
    A(f"s_and_b32 s{S_HEAD}, s2, 7")
    A(f"s_and_b32 s{T}, s2, 8")
    A(f"s_add_u32 s{S_HEAD}, s{S_HEAD}, s{T}")
    A(f"s_lshr_b32 s{T}, s2, 4")
    A(f"s_sub_u32 s{S_QB}, 15, s{T}")
    A(f"s_lshl_b32 s{S_N}, s{S_QB}, 2")
    A(f"s_add_u32 s{S_TW}, s{S_N}, s{S_WAVE}")
    A(f"s_add_u32 s{S_N}, s{S_N}, 4")
    A(f"s_lshl_b32 s{S_KOFF}, s{S_HEAD}, 20")
    A(f"s_add_u32 s{S_VOFF}, s{S_KOFF}, {WS_V}")
    A(f"s_lshl_b32 s{T}, s{S_N}, 14")
    A(f"s_add_u32 s{S_KLIM}, s{S_KOFF}, s{T}")
    A(f"s_add_u32 s{S_VLIM}, s{S_VOFF}, s{T}")
    A(f"s_lshl_b32 s{S_B0}, s{S_WAVE}, 12")
    A(f"v_add_u32 v{V_DKV}, s{S_B0}, v{V_LANE16}")
    A("s_waitcnt lgkmcnt(0)")
    A(f"s_mov_b32 s{SRD_WS}, s{S_WS}")
    A(f"s_mov_b32 s{SRD_WS+1}, s{S_WS+1}")
    A(f"s_mov_b32 s{SRD_WS+2}, {WS_SIZE}")
    A(f"s_mov_b32 s{SRD_WS+3}, 0x20000")
    A(f"s_mov_b32 s{SRD_WO}, s{S_WOB}")
    A(f"s_mov_b32 s{SRD_WO+1}, s{S_WOB+1}")
    A(f"s_mov_b32 s{SRD_WO+2}, {4096*448*2}")
    A(f"s_mov_b32 s{SRD_WO+3}, 0x20000")

    def dma_tile(which, stage):
        off = S_KOFF if which == "K" else S_VOFF
        A(f"s_add_u32 m0, s{S_B0}, {stage*32768 + (0 if which == 'K' else 16384)}")
        A("s_nop 0")
        for i in range(4):
            A(f"buffer_load_dwordx4 v{V_DKV}, {sr(SRD_WS,4)}, s{off} offen offset:{i*1024} lds")
        A(f"s_add_u32 s{off}, s{off}, 16384")

    dma_tile("K", 0)
    dma_tile("K", 1)
    A(f"s_lshl_b32 s{T}, s{S_HEAD}, 20")
    A(f"s_lshl_b32 s{T+1}, s{S_QB}, 16")
    A(f"s_add_u32 s{T}, s{T}, s{T+1}")
    A(f"s_lshl_b32 s{T+1}, s{S_WAVE}, 14")
    A(f"s_add_u32 s{T}, s{T}, s{T+1}")
    A(f"s_add_u32 s{T}, s{T}, {WS_Q}")
    for i in range(16):
        if i and i % 4 == 0:
            A(f"s_add_u32 s{T}, s{T}, 4096")
        A(f"buffer_load_dwordx4 {ar(AQ+i*4,4)}, v{V_LANE16}, {sr(SRD_WS,4)}, s{T} offen offset:{(i%4)*1024}")
    dma_tile("V", 0)
    dma_tile("K", 2)
    dma_tile("V", 1)
    dma_tile("K", 3)
    dma_tile("V", 2)
    dma_tile("V", 3)
    wo_lane_setup(A)
    A(f"s_mul_i32 s{S_WOOFF}, s{S_HEAD}, {256*896}")
    A(f"s_mul_i32 s{T+3}, s{S_WAVE}, {8*896}")
    A(f"s_add_u32 s{S_WOOFF}, s{S_WOOFF}, s{T+3}")
    for g in wo_dma(0, WO_SLOT[0]):
        A.emit_list(g)
        if len(g) == 2 and g[1].startswith("s_add_u32 m0"):
            A("s_nop 0")
    A(f"s_add_u32 s{S_POFF}, s{S_HEAD}, 4")
    A(f"s_mul_i32 s{S_POFF}, s{S_POFF}, {P_SLOT}")
    A(f"s_lshl_b32 s{T}, s{S_QB}, 2")
    A(f"s_add_u32 s{T}, s{T}, s{S_WAVE}")
    A(f"s_mul_i32 s{T}, s{T}, {2*14*1024}")
    A(f"s_add_u32 s{S_POFF}, s{S_POFF}, s{T}")
    A(f"s_add_u32 s{S_POFF}, s{S_POFF}, {WS_P}")
    A(f"s_mov_b32 s{S_ONES}, 0x3f803f80")
    A(f"s_mov_b32 s{S_MASK}, 0x40004000")
    A(f"s_mov_b32 s{S_HUGE}, {HUGE}")
    A(f"s_mov_b32 s{S_FLOOR}, {NEG_INF:#x}")
    A(f"s_mov_b32 s{S_FIRST}, 1")
    A(f"v_and_b32 v{V_T}, 15, v0")
    A(f"v_lshrrev_b32 v{V_T+1}, 4, v0")
    A(f"v_lshlrev_b32 v{V_T+2}, 2, v{V_T+1}")
    A(f"v_mov_b32 v{V_T+4}, {NEG_INF:#x}")
    for r in range(4):
        A(f"v_add_u32 v{V_T+3}, {r}, v{V_T+2}")
        A(f"v_cmp_gt_u32 vcc, v{V_T+3}, v{V_T}")
        A("s_nop 1")
        A(f"v_cndmask_b32 v{V_DM+r}, 0, v{V_T+4}, vcc")
    A(f"v_bfe_u32 v{V_T+3}, v0, 2, 2")
    A(f"v_add_u32 v{V_T+3}, v{V_T+3}, v{V_T+2}")
    A(f"v_bfe_u32 v{V_T+5}, v{V_T+3}, 1, 2")
    A(f"v_mul_u32_u24 v{V_T+3}, 896, v{V_T+3}")
    A(f"v_and_b32 v{V_T+6}, 3, v0")
    A(f"v_lshl_add_u32 v{V_T+3}, v{V_T+6}, 3, v{V_T+3}")
    A(f"v_add_u32 v{V_T+3}, {WO_SLOT[0]*32768}, v{V_T+3}")
    for b in range(4):
        A(f"v_xor_b32 v{V_T+6}, {b}, v{V_T+5}")
        A(f"v_lshl_add_u32 v{V_WOR+b}, v{V_T+6}, 5, v{V_T+3}")
    for r in range(128):
        A(f"v_mov_b32 v{VO+r}, 0")
    for r in range(16):
        A(f"v_mov_b32 v{VC+r}, 0")
    for r in (V_CB, V_CB + 1, V_L, V_L + 1):
        A(f"v_mov_b32 v{r}, 0")
    A(f"v_mov_b32 v{V_RB0}, v{V_LANE16}")
    A(f"v_add_u32 v{V_RB1}, 0x10000, v{V_LANE16}")
    A(f"s_mov_b32 s{S_T2}, 0")
    A.emit_list(c_update(A, S_T2))
    A("s_waitcnt vmcnt(27)")
    A("s_barrier")
    stamp(A, cfg, 1)
    A.emit_list(k_reads(V_RB0, 0))
    A("s_waitcnt lgkmcnt(0)")
    m = qk_mfmas(0)
    A.emit_list(m)
    A.emit_list(k_reads(V_RB0, 32768))
    A(f"s_mov_b32 s{S_T2}, 1")
    A.emit_list(c_update(A, S_T2))
    A("s_waitcnt lgkmcnt(0)")
    A.emit_list(v_reads(V_RB0, 16384))
    A("s_nop 1")
    A.emit_list(qk_mfmas(1))
    A(f"s_call_b64 {sr(S_RET,2)}, L2_RARE0")
    A(f"s_mov_b32 s{S_T2}, 2")
    A("s_waitcnt lgkmcnt(0)")
    A("s_barrier")
    A(f"s_cmp_lt_u32 s{S_KOFF}, s{S_KLIM}")
    A(f"s_cselect_b32 s{T}, s{S_KOFF}, s{S_HUGE}")
    A(f"s_mov_b32 m0, s{S_B0}")
    A(f"s_add_u32 s{S_KOFF}, s{S_KOFF}, 16384")
    for i in range(4):
        A(f"buffer_load_dwordx4 v{V_DKV}, {sr(SRD_WS,4)}, s{T} offen offset:{i*1024} lds")
    A(f"s_lshr_b32 s{S_LEFT}, s{S_N}, 1")
    A(f"s_sub_u32 s{S_LEFT}, s{S_LEFT}, 1")
    stamp(A, cfg, 2)
    A.label("L2_BLOOP")
    b_iter(A, 0, cfg)
    b_iter(A, 1, cfg)
    A(f"s_cmp_lg_u32 s{S_LEFT}, 0")
    A("s_cbranch_scc1 L2_BLOOP")
    A("s_waitcnt vmcnt(0)")
    b_iter(A, 0, cfg, do_qk=False, do_dma=False)
    last = []
    for c in range(1, 5):
        last += wo_dma(c, WO_SLOT[c])
    b_iter(A, 1, cfg, do_sm=False, do_qk=False, do_dma=False, last=last)
    stamp(A, cfg, 3)
    b_epilogue(A, cfg)


def gen_l2(A, name="attn_kernel", cfg=None):
    cfg = cfg or {}
    A.raw(kernel_header(name))
    if cfg.get("diag"):
        for i in range(12):
            A(f"s_mov_b32 s{S_STAMP+i}, 0")
    stamp(A, cfg, 0)
    ntot = NB_ITEMS + (0 if cfg.get("no_a") else NA_ITEMS)
    A(f"s_cmp_ge_u32 s2, {ntot}")
    A("s_cbranch_scc1 L2_END")
    A(f"s_load_dwordx2 {sr(S_WS,2)}, s[0:1], 96")
    A(f"s_load_dwordx2 {sr(S_WOB,2)}, s[0:1], 64")
    A(f"s_load_dwordx2 {sr(S_WOA,2)}, s[0:1], 16")
    A(f"v_lshrrev_b32 v{V_T}, 6, v0")
    A(f"v_and_b32 v0, 63, v0")
    A(f"v_readfirstlane_b32 s{S_WAVE}, v{V_T}")
    A(f"v_lshlrev_b32 v{V_LANE16}, 4, v0")
    if not cfg.get("no_a"):
        A(f"s_cmp_ge_u32 s2, {NB_ITEMS}")
        A("s_cbranch_scc1 L2_AITEM")
    gen_b_item(A, cfg)
    A("s_branch L2_FIN")
    b_rare(A, 0)
    b_rare(A, 1)
    if not cfg.get("no_a"):
        import gen_l2a
        A.label("L2_AITEM")
        gen_l2a.gen_a_item(A, cfg)
    A.label("L2_FIN")
    stamp_out(A, cfg, 5, 210 << 20)
    A.label("L2_END")
    A("s_endpgm")
    return kernel_desc(name, 512, 100, 256)
```

```python
from asmlib import *
from gen_l1 import WS_QA, WS_KA, WS_VA, WS_SIZE
import gen_l2 as G
from gen_l2 import (S_WS, S_WOA, SRD_WS, SRD_WO, S_WAVE, S_TMP, S_RET, S_FLOOR, S_FIRST, S_POFF, S_MASK,
                    S_KOFF, S_VOFF, S_LEFT, S_WOOFF, V_LANE16, V_T, V_WOD, V_WOR, V_OR, BIAS, NEG_INF, WS_P, P_SLOT, spread)

AS = [64, 96]
AC = 128
AO = 160
AP = [192, 208]
AE = 224
QA_, KA_, VA_ = 0, 16, 48
XB = 114688
V_XW = 2


def qk(buf, slot):
    out = []
    for qb in range(2):
        d = vr(AS[buf] + qb * 16, 16)
        out.append(f"v_mfma_f32_32x32x16_bf16 {d}, {ar(KA_+slot*8,4)}, {ar(QA_+qb*8,4)}, {vr(AC+qb*16,16)}")
    for qb in range(2):
        d = vr(AS[buf] + qb * 16, 16)
        out.append(f"v_mfma_f32_32x32x16_bf16 {d}, {ar(KA_+slot*8+4,4)}, {ar(QA_+qb*8+4,4)}, {d}")
    return out


def pv(pbuf, slot):
    out = []
    for g in range(2):
        for qb in range(2):
            d = vr(AO + qb * 16, 16)
            out.append(f"v_mfma_f32_32x32x16_bf16 {d}, {ar(VA_+slot*8+g*4,4)}, {vr(AP[pbuf]+qb*8+g*4,4)}, {d}")
    return out


def softmax(buf):
    s, p = AS[buf], AP[buf]
    out = []
    pend = []
    for i in range(32):
        out.append(f"v_exp_f32 v{AE+(i%16)}, v{s+i}")
        if pend:
            out.append(pend.pop(0))
        if i % 2 == 1:
            k = i // 2
            pend.append(f"v_cvt_pk_bf16_f32 v{p+k}, v{AE+((i-1)%16)}, v{AE+(i%16)}")
            if k >= 3 and k % 2 == 1:
                if k == 3:
                    pend.append(f"v_or_b32 v{V_OR}, v{p}, v{p+1}")
                else:
                    pend.append(f"v_or3_b32 v{V_OR}, v{V_OR}, v{p+k-3}, v{p+k-2}")
    out.append("s_nop 0")
    out.extend(pend)
    out.append(f"v_or3_b32 v{V_OR}, v{V_OR}, v{p+14}, v{p+15}")
    out.append(f"v_and_b32 v{V_OR}, s{S_MASK}, v{V_OR}")
    out.append(f"v_cmp_ne_u32 vcc, 0, v{V_OR}")
    return out


def loads(kslot, vslot):
    k = [f"buffer_load_dwordx4 {ar(KA_+kslot*8+4*s,4)}, v{V_LANE16}, {sr(SRD_WS,4)}, s{S_KOFF} offen offset:{s*1024}" for s in range(2)]
    k.append(f"s_add_u32 s{S_KOFF}, s{S_KOFF}, 2048")
    v = [f"buffer_load_dwordx4 {ar(VA_+vslot*8+4*s,4)}, v{V_LANE16}, {sr(SRD_WS,4)}, s{S_VOFF} offen offset:{s*1024}" for s in range(2)]
    v.append(f"s_add_u32 s{S_VOFF}, s{S_VOFF}, 2048")
    return k, v


def a_iter(A, u, cfg):
    par = u % 2
    A("s_waitcnt vmcnt(12)")
    sm = softmax(par)
    mq = qk(1 - par, (u + 1) % 4)
    mp = pv(1 - par, (u - 1) % 4)
    lk, lv = loads((u + 1) % 4, (u - 1) % 4)
    n = len(sm)
    sides = []
    ms = mq + mp
    pos = spread(8, -1, n - 12)
    for p, m in zip(pos, ms):
        sides.append((p, [m]))
    for i, x in enumerate(lk):
        sides.append((pos[3] + 1 + i, [x]))
    for i, x in enumerate(lv):
        sides.append((pos[7] + 1 + i, [x]))
    A.emit_list(interleave(sm, sides))
    lskip = A.newlabel("LAR")
    A(f"s_cbranch_vccz {lskip}")
    A(f"s_call_b64 {sr(S_RET,2)}, L2A_RARE{par}")
    A.label(lskip)


def a_rare(A, sb):
    A.label(f"L2A_RARE{sb}")
    A("s_nop 7")
    A("s_nop 7")
    so = 1 - sb
    for qb in range(2):
        d, f, t = V_T + qb, V_T + 2 + qb, V_T + 4
        s = AS[sb] + qb * 16
        A(f"v_max3_f32 v{d}, v{s}, v{s+1}, v{s+2}")
        for i in range(3, 15, 2):
            A(f"v_max3_f32 v{d}, v{d}, v{s+i}, v{s+i+1}")
        A(f"v_max_f32 v{d}, v{d}, v{s+15}")
        A(f"v_mov_b32 v{t}, v{d}")
        A("s_nop 1")
        A(f"v_permlane32_swap_b32 v{t}, v{d}")
        A("s_nop 1")
        A(f"v_max_f32 v{d}, v{d}, v{t}")
        A(f"v_add_f32 v{d}, {f32bits(BIAS):#x}, v{d}")
        A(f"v_max_f32 v{d}, s{S_FLOOR}, v{d}")
        A(f"v_max_f32 v{f}, 0, v{d}")
        A(f"v_exp_f32 v{f}, -v{f}")
        for r in range(16):
            A(f"v_sub_f32 v{s+r}, v{s+r}, v{d}")
            A(f"v_sub_f32 v{AS[so]+qb*16+r}, v{AS[so]+qb*16+r}, v{d}")
            A(f"v_sub_f32 v{AC+qb*16+r}, v{AC+qb*16+r}, v{d}")
            A(f"v_mul_f32 v{AO+qb*16+r}, v{AO+qb*16+r}, v{f}")
    A(f"s_mov_b32 s{S_FLOOR}, 0")
    lskip = A.newlabel("LAS")
    A(f"s_cmp_eq_u32 s{S_FIRST}, 1")
    A(f"s_mov_b32 s{S_FIRST}, 0")
    A(f"s_cbranch_scc1 {lskip}")
    for o in softmax(sb):
        A(o)
    A.label(lskip)
    A("s_nop 1")
    A(f"s_setpc_b64 {sr(S_RET,2)}")


def gen_a_item(A, cfg):
    T = S_TMP
    A(f"s_sub_u32 s{T}, s2, {G.NB_ITEMS}")
    A(f"s_and_b32 s{T+1}, s{T}, 3")
    A(f"s_lshr_b32 s{T+2}, s{T}, 3")
    A(f"s_bfe_u32 s{T+3}, s{T}, 0x10002")
    A(f"s_lshl_b32 s{T+3}, s{T+3}, 4")
    A(f"s_add_u32 s{T+2}, s{T+2}, s{T+3}")
    A(f"s_lshl_b32 s{T+3}, s{T+1}, 2")
    A(f"s_add_u32 s{T+3}, s{T+3}, s{S_WAVE}")
    A(f"s_lshl_b32 s{T+3}, s{T+3}, 17")
    A(f"s_add_u32 s{S_KOFF}, s{T+3}, {WS_KA}")
    A(f"s_add_u32 s{S_VOFF}, s{T+3}, {WS_VA}")
    A(f"s_lshl_b32 s{T+4}, s{T+2}, 12")
    A(f"s_add_u32 s{T+4}, s{T+4}, s{T+3}")
    A(f"s_add_u32 s{T+4}, s{T+4}, {WS_QA}")
    A("s_waitcnt lgkmcnt(0)")
    A(f"s_mov_b32 s{SRD_WS}, s{S_WS}")
    A(f"s_mov_b32 s{SRD_WS+1}, s{S_WS+1}")
    A(f"s_mov_b32 s{SRD_WS+2}, {WS_SIZE}")
    A(f"s_mov_b32 s{SRD_WS+3}, 0x20000")
    A(f"s_mov_b32 s{SRD_WO}, s{S_WOA}")
    A(f"s_mov_b32 s{SRD_WO+1}, s{S_WOA+1}")
    A(f"s_mov_b32 s{SRD_WO+2}, {448*448*2}")
    A(f"s_mov_b32 s{SRD_WO+3}, 0x20000")
    for i in range(4):
        A(f"buffer_load_dwordx4 {ar(QA_+4*i,4)}, v{V_LANE16}, {sr(SRD_WS,4)}, s{T+4} offen offset:{i*1024}")
    lk, _ = loads(0, 0)
    A.emit_list(lk)
    G.wo_lane_setup(A)
    A(f"s_mul_i32 s{S_WOOFF}, s{T+1}, {112*896}")
    A(f"s_mul_i32 s{T+3}, s{S_WAVE}, {32*896}")
    A(f"s_add_u32 s{S_WOOFF}, s{S_WOOFF}, s{T+3}")
    for g in range(4):
        A(f"s_add_u32 s{T+5}, s{S_WOOFF}, {g*8*896}")
        A(f"s_add_u32 m0, s{T+3}, {g*8*896}")
        A("s_nop 0")
        for i in range(7):
            if i == 4:
                A("s_add_u32 m0, m0, 4096")
                A("s_nop 0")
            A(f"buffer_load_dwordx4 v{V_WOD+i}, {sr(SRD_WO,4)}, s{T+5} offen offset:{(i%4)*1024} lds")
    for t in (-4, -3, -2):
        lk, lv = loads((t + 5) % 4, (t + 3) % 4)
        A.emit_list(lk)
        if t + 3 >= 0:
            A.emit_list(lv)
    A(f"s_mul_i32 s{S_POFF}, s{T+1}, {P_SLOT}")
    A(f"s_lshl_b32 s{T+5}, s{T+2}, 2")
    A(f"s_add_u32 s{T+5}, s{T+5}, s{S_WAVE}")
    A(f"s_mul_i32 s{T+5}, s{T+5}, {14*1024}")
    A(f"s_add_u32 s{S_POFF}, s{S_POFF}, s{T+5}")
    A(f"s_add_u32 s{S_POFF}, s{S_POFF}, {WS_P}")
    A(f"s_mov_b32 s{S_MASK}, 0x40004000")
    A(f"s_mov_b32 s{S_FLOOR}, {NEG_INF:#x}")
    A(f"s_mov_b32 s{S_FIRST}, 1")
    for r in range(32):
        A(f"v_mov_b32 v{AC+r}, 0")
        A(f"v_mov_b32 v{AO+r}, 0")
        A(f"v_mov_b32 v{AS[1]+r}, 0")
    for r in range(16):
        A(f"v_mov_b32 v{AP[1]+r}, 0")
    for r in range(8):
        A(f"v_accvgpr_write_b32 a{VA_+3*8+r}, 0")
    A(f"v_bfe_u32 v{V_T}, v0, 3, 1")
    A(f"v_lshlrev_b32 v{V_T}, 10, v{V_T}")
    A(f"v_lshrrev_b32 v{V_T+1}, 5, v0")
    A(f"v_lshl_add_u32 v{V_T}, v{V_T+1}, 8, v{V_T}")
    A(f"v_bfe_u32 v{V_T+1}, v0, 4, 1")
    A(f"v_lshl_add_u32 v{V_T}, v{V_T+1}, 7, v{V_T}")
    A(f"v_and_b32 v{V_T+1}, 7, v0")
    A(f"v_lshl_add_u32 v{V_T}, v{V_T+1}, 4, v{V_T}")
    A(f"s_lshl_b32 s{T+5}, s{S_WAVE}, 12")
    A(f"s_add_u32 s{T+5}, s{T+5}, {XB}")
    A(f"v_add_u32 v{V_XW}, s{T+5}, v{V_T}")
    A(f"v_bfe_u32 v{V_T}, v0, 2, 3")
    A(f"v_bfe_u32 v{V_T+2}, v{V_T}, 1, 2")
    A(f"v_lshrrev_b32 v{V_T+1}, 5, v0")
    A(f"v_lshl_add_u32 v{V_T}, v{V_T+1}, 4, v{V_T}")
    A(f"v_mul_u32_u24 v{V_T}, 896, v{V_T}")
    A(f"v_and_b32 v{V_T+1}, 3, v0")
    A(f"v_lshl_add_u32 v{V_T}, v{V_T+1}, 3, v{V_T}")
    for b in range(4):
        A(f"v_xor_b32 v{V_T+1}, {b}, v{V_T+2}")
        A(f"v_lshl_add_u32 v{V_WOR+b}, v{V_T+1}, 5, v{V_T}")
    A("s_waitcnt vmcnt(38)")
    G.stamp(A, cfg, 1)
    A.emit_list(qk(0, 0))
    lk, lv = loads(0, 2)
    A.emit_list(lk)
    A.emit_list(lv)
    A(f"s_call_b64 {sr(S_RET,2)}, L2A_RARE0")
    A(f"s_mov_b32 s{S_LEFT}, 16")
    G.stamp(A, cfg, 2)
    A.label("L2_ALOOP")
    for u in range(4):
        a_iter(A, u, cfg)
    A(f"s_sub_u32 s{S_LEFT}, s{S_LEFT}, 1")
    A(f"s_cmp_lg_u32 s{S_LEFT}, 0")
    A("s_cbranch_scc1 L2_ALOOP")
    A("s_waitcnt vmcnt(12)")
    A.emit_list(pv(1, 3))
    G.stamp(A, cfg, 3)
    A(f"v_cmp_gt_u32 vcc, 32, v0")
    A("s_nop 7")
    A("s_nop 7")
    for qb in range(2):
        o = AO + qb * 16
        a, b, inv, invh = V_T, V_T + 1, V_T + 2, V_T + 3
        A(f"v_mov_b32 v{a}, v{o+12}")
        A(f"v_mov_b32 v{b}, v{o+12}")
        A("s_nop 1")
        A(f"v_permlane32_swap_b32 v{a}, v{b}")
        A("s_nop 1")
        A(f"v_rcp_f32 v{inv}, v{b}")
        A("s_nop 0")
        A(f"v_cndmask_b32 v{invh}, 0, v{inv}, vcc")
        for r in range(16):
            A(f"v_mul_f32 v{o+r}, v{o+r}, v{inv if r < 12 else invh}")
        for g in range(2):
            c = AS[0] + (qb * 2 + g) * 4
            for i in range(4):
                A(f"v_cvt_pk_bf16_f32 v{c+i}, v{o+8*g+2*i}, v{o+8*g+2*i+1}")
            A(f"ds_write_b128 v{V_XW}, {vr(c,4)} offset:{qb*2048+g*512}")
    A("s_waitcnt vmcnt(0) lgkmcnt(0)")
    A("s_barrier")
    A(f"s_lshl_b32 s{T+5}, s{S_WAVE}, 10")
    A(f"s_add_u32 s{T+5}, s{T+5}, {XB}")
    A(f"v_add_u32 v{V_T}, s{T+5}, v{V_LANE16}")
    VB = 96
    for w in range(4):
        A(f"ds_read_b128 {vr(VB+4*w,4)}, v{V_T} offset:{w*4096}")
    VF = 128

    def reads(w, half, fset):
        out = []
        for i in range(14):
            b = 14 * half + i
            f = VF + (fset * 14 + i) * 4
            for e in range(2):
                out.append(f"ds_read_b64_tr_b16 {vr(f+2*e,2)}, v{V_WOR+((b&3)^(2*(w&1)))} offset:{(b>>2)*128+e*8*896+(w&1)*28*896}")
        return out

    def mf(w, half, fset):
        out = []
        for i in range(14):
            b = 14 * half + i
            f = VF + (fset * 14 + i) * 4
            c = "0" if w == 0 else ar(b * 4, 4)
            out.append(f"v_mfma_f32_16x16x32_bf16 {ar(b*4,4)}, {vr(f,4)}, {vr(VB+4*w,4)}, {c}")
        return out

    seq = [(w, h) for w in range(4) for h in range(2)]
    A.emit_list(reads(0, 0, 0))
    for k, (w, h) in enumerate(seq):
        if k + 1 < len(seq):
            w2, h2 = seq[k + 1]
            if (w2, h2) == (2, 0):
                for b in range(4):
                    A(f"v_add_u32 v{V_WOR+b}, {2*28*896}, v{V_WOR+b}")
            rd = reads(w2, h2, (k + 1) % 2)
            A.emit_list(rd[:14])
            A("s_waitcnt lgkmcnt(14)")
            m = mf(w, h, k % 2)
            A.emit_list(interleave(m, [(i, [r]) for i, r in enumerate(rd[14:])]))
        else:
            A("s_waitcnt lgkmcnt(0)")
            A.emit_list(mf(w, h, k % 2))
    G.store_partials(A, 1)
    A("s_branch L2_FIN")
    a_rare(A, 0)
    a_rare(A, 1)
```

```python
import math
from asmlib import *
from gen_l1 import WS_SIZE
from gen_l2 import WS_P, P_SLOT

def launch_line(cfg=None):
    return "; @launch kernel=final_kernel grid=(256,1,1) block=(448,1,1) lds=512"

def gen_l3(A, name="final_kernel", cfg=None):
    cfg = cfg or {}
    A.raw(kernel_header(name))
    A("s_cmp_ge_u32 s2, 256")
    A("s_cbranch_scc1 L3_END")
    A("s_load_dwordx2 s[4:5], s[0:1], 0")
    A("s_load_dwordx4 s[8:11], s[0:1], 72")
    A("s_load_dwordx2 s[6:7], s[0:1], 96")
    A("v_lshrrev_b32 v1, 6, v0")
    A("v_and_b32 v0, 63, v0")
    A("v_readfirstlane_b32 s3, v1")
    A("v_lshlrev_b32 v1, 4, v0")
    A("v_and_b32 v2, 15, v0")
    A("v_lshrrev_b32 v3, 4, v0")
    A("s_lshr_b32 s28, s2, 1")
    A("s_and_b32 s29, s2, 1")
    A("s_mul_i32 s29, s29, 7")
    A("s_add_u32 s29, s29, s3")
    A("s_mul_i32 s30, s28, 14")
    A("s_add_u32 s30, s30, s29")
    A("s_lshl_b32 s30, s30, 10")
    A(f"s_add_u32 s30, s30, {WS_P}")
    A("s_waitcnt lgkmcnt(0)")
    A(f"s_mov_b32 s12, s6\ns_mov_b32 s13, s7\ns_mov_b32 s14, {WS_SIZE}\ns_mov_b32 s15, 0x20000")
    A(f"s_mov_b32 s16, s4\ns_mov_b32 s17, s5\ns_mov_b32 s18, {2048*448*2}\ns_mov_b32 s19, 0x20000")
    A(f"s_mov_b32 s20, s8\ns_mov_b32 s21, s9\ns_mov_b32 s22, {448*2}\ns_mov_b32 s23, 0x20000")
    A(f"s_mov_b32 s24, s10\ns_mov_b32 s25, s11\ns_mov_b32 s26, {2048*448*2}\ns_mov_b32 s27, 0x20000")
    A("v_mul_u32_u24 v4, 896, v2")
    A("v_lshl_add_u32 v4, v3, 4, v4")
    A("v_lshlrev_b32 v5, 4, v3")
    A(f"s_mul_i32 s31, s28, {16*896}")
    A("s_lshl_b32 s32, s3, 6")
    A("s_add_u32 s33, s31, s32")
    A("buffer_load_dwordx4 v[8:11], v4, s[16:19], s33 offen")
    A("buffer_load_dwordx4 v[12:15], v4, s[16:19], s33 offen offset:448")
    A("buffer_load_dwordx4 v[16:19], v5, s[20:23], s32 offen")
    A("buffer_load_dwordx4 v[20:23], v5, s[20:23], s32 offen offset:448")
    PB = 48
    for s in range(20):
        A(f"buffer_load_dwordx4 {vr(PB+4*s,4)}, v1, s[12:15], s30 offen")
        if s < 19:
            A(f"s_add_u32 s30, s30, {P_SLOT}")
    A("s_mov_b32 s34, 0x00003f80")
    A("s_mov_b32 s35, 0x3f800000")
    A("s_mov_b32 s36, 0x3f803f80")
    A("s_waitcnt vmcnt(20)")
    A("v_mov_b32 v6, 0")
    for i in range(8):
        x, g = 8 + i, 16 + i
        A(f"v_lshlrev_b32 v24, 16, v{x}")
        A(f"v_and_b32 v25, 0xffff0000, v{x}")
        A(f"v_lshlrev_b32 v26, 16, v{g}")
        A(f"v_and_b32 v27, 0xffff0000, v{g}")
        A("v_mul_f32 v24, v24, v26")
        A("v_mul_f32 v25, v25, v27")
        A("v_cvt_pk_bf16_f32 v24, v24, v25")
        A("v_dot2_f32_bf16 v6, v24, s36, v6")
    A("s_nop 3")
    A("v_mov_b32 v7, v6")
    A("s_nop 1")
    A("v_permlane32_swap_b32 v7, v6")
    A("s_nop 1")
    A("v_add_f32 v6, v6, v7")
    A("v_mov_b32 v7, v6")
    A("s_nop 1")
    A("v_permlane16_swap_b32 v7, v6")
    A("s_nop 1")
    A("v_add_f32 v6, v6, v7")
    A("v_lshlrev_b32 v7, 2, v2")
    A("v_add_u32 v24, s32, v7")
    A("ds_write_b32 v24, v6")
    A("s_waitcnt lgkmcnt(0)")
    A("s_barrier")
    for w in range(7):
        A(f"ds_read_b32 v{24+w}, v7 offset:{w*64}")
    AA, AB = 32, 40
    for s in range(20):
        A(f"s_waitcnt vmcnt({19-s})")
        acc = AA if s < 4 else AB
        first = s in (0, 4)
        for i in range(4):
            r = PB + 4 * s + i
            A(f"v_dot2_f32_bf16 v{acc+2*i}, v{r}, s34, {'0' if first else 'v%d' % (acc+2*i)}")
            A(f"v_dot2_f32_bf16 v{acc+2*i+1}, v{r}, s35, {'0' if first else 'v%d' % (acc+2*i+1)}")
    A("s_waitcnt lgkmcnt(0)")
    for w in range(1, 7):
        A(f"v_add_f32 v24, v24, v{24+w}")
    A("v_cvt_pk_bf16_f32 v24, v24, v24")
    A("v_lshlrev_b32 v24, 16, v24")
    A(f"v_mul_f32 v24, {f32bits(-math.log2(math.e)):#x}, v24")
    A("v_exp_f32 v24, v24")
    A("s_nop 0")
    A("v_add_f32 v24, 1.0, v24")
    A("v_rcp_f32 v24, v24")
    A("s_nop 0")
    A("v_cvt_pk_bf16_f32 v24, v24, v24")
    A("v_lshlrev_b32 v24, 16, v24")
    A("v_sub_f32 v25, 1.0, v24")
    A("v_cvt_pk_bf16_f32 v25, v25, v25")
    A("v_lshlrev_b32 v25, 16, v25")
    for i in range(4):
        for acc, gg in ((AA, 24), (AB, 25)):
            a = acc + 2 * i
            A(f"v_cvt_pk_bf16_f32 v26, v{a}, v{a+1}")
            A(f"v_lshlrev_b32 v{a}, 16, v26")
            A(f"v_and_b32 v{a+1}, 0xffff0000, v26")
            A(f"v_mul_f32 v{a}, v{gg}, v{a}")
            A(f"v_mul_f32 v{a+1}, v{gg}, v{a+1}")
            A(f"v_cvt_pk_bf16_f32 v26, v{a}, v{a+1}")
            A(f"v_lshlrev_b32 v{a}, 16, v26")
            A(f"v_and_b32 v{a+1}, 0xffff0000, v26")
        A(f"v_add_f32 v{AA+2*i}, v{AA+2*i}, v{AB+2*i}")
        A(f"v_add_f32 v{AA+2*i+1}, v{AA+2*i+1}, v{AB+2*i+1}")
        A(f"v_cvt_pk_bf16_f32 v{28+i}, v{AA+2*i}, v{AA+2*i+1}")
    A("v_mul_u32_u24 v4, 896, v2")
    A("v_lshl_add_u32 v4, v3, 3, v4")
    A("s_lshl_b32 s32, s29, 6")
    A("s_add_u32 s33, s31, s32")
    A("buffer_store_dwordx2 v[28:29], v4, s[24:27], s33 offen")
    A("buffer_store_dwordx2 v[30:31], v4, s[24:27], s33 offen offset:32")
    A("L3_END:")
    A("s_endpgm")
    return kernel_desc(name, 128, 40, 128)
```

```python
import sys, json
from asmlib import *
import gen_l1

HEADER = open("gated_mix__mha_block__compressed_kv_cla__prompt.s.ref").read().split("; Override launch")[0]

def build(path, parts, cfg=None):
    cfg = cfg or {}
    A = Asm()
    launches = []
    descs = []
    if "l1" in parts:
        launches.append(f"; @launch kernel=proj_kernel grid=(256,1,1) block=(256,1,1) lds={gen_l1.LDS_TOTAL}")
        descs.append(gen_l1.gen_l1(A, "proj_kernel", cfg.get("l1")))
    if "l2" in parts:
        import gen_l2
        launches.append(gen_l2.launch_line(cfg.get("l2")))
        descs.append(gen_l2.gen_l2(A, "attn_kernel", cfg.get("l2")))
    if "l3" in parts:
        import gen_l3
        launches.append(gen_l3.launch_line(cfg.get("l3")))
        descs.append(gen_l3.gen_l3(A, "final_kernel", cfg.get("l3")))
    txt = HEADER + "\n".join(launches) + "\n" + '.amdgcn_target "amdgcn-amd-amdhsa--gfx950"\n' + A.text() + "".join(descs)
    open(path, "w").write(txt)

if __name__ == "__main__":
    path = sys.argv[1]
    parts = sys.argv[2].split(",")
    cfg = json.loads(sys.argv[3]) if len(sys.argv) > 3 else {}
    build(path, parts, cfg)
```

```python
class Asm:
    def __init__(self):
        self.lines = []
        self._lbl = 0

    def __call__(self, s):
        for l in s.split("\n"):
            l = l.strip()
            if l:
                self.lines.append("    " + l if not l.endswith(":") else l)

    def raw(self, s):
        self.lines.append(s)

    def label(self, name):
        self.lines.append(name + ":")

    def newlabel(self, prefix="L"):
        self._lbl += 1
        return f"{prefix}_{self._lbl}"

    def emit_list(self, lst):
        for l in lst:
            self(l)

    def text(self):
        return "\n".join(self.lines) + "\n"


def vr(base, n=1, kind="v"):
    if n == 1:
        return f"{kind}{base}"
    return f"{kind}[{base}:{base+n-1}]"


def ar(base, n=1):
    return vr(base, n, "a")


def sr(base, n=1):
    return vr(base, n, "s")


def interleave(main, sides):
    bypos = {}
    for pos, ins in sides:
        bypos.setdefault(pos, []).extend(ins if isinstance(ins, list) else [ins])
    out = []
    out.extend(bypos.get(-1, []))
    for i, m in enumerate(main):
        out.append(m)
        out.extend(bypos.get(i, []))
    for p in bypos:
        assert -1 <= p < len(main), p
    return out


def kernel_header(name):
    return f""".text
.globl {name}
.p2align 8
.type {name},@function
{name}:
"""


def kernel_desc(name, vgpr, sgpr, accum):
    return f""".section .rodata,"a"
.p2align 6
.amdhsa_kernel {name}
  .amdhsa_next_free_vgpr {vgpr}
  .amdhsa_next_free_sgpr {sgpr}
  .amdhsa_accum_offset {accum}
  .amdhsa_group_segment_fixed_size 0
  .amdhsa_kernarg_size 104
  .amdhsa_user_sgpr_count 2
  .amdhsa_user_sgpr_kernarg_segment_ptr 1
  .amdhsa_system_sgpr_workgroup_id_x 1
.end_amdhsa_kernel
"""


import struct


def f32bits(x):
    return struct.unpack("<I", struct.pack("<f", x))[0]


class Op:
    def __init__(self, text, kind, deps=(), min_gap=0, name=None):
        self.text, self.kind, self.deps, self.min_gap = text, kind, list(deps), min_gap
        self.gap = None


def schedule(mfmas, template, ds=(), chain=(), valu=(), fixed=None, strict=True, ds_min=0, salu_first=False):
    n = len(mfmas)
    assert len(template) == n, (len(template), n)
    ds = list(ds)
    chain = list(chain)
    valu = list(valu)
    fixed = fixed or {}
    out = []
    ci = 0
    last_chain_gap = -1
    last_chain_kind = None

    def ready(op, g):
        return op.gap is None and op.min_gap <= g and all(d.gap is not None and d.gap < g for d in op.deps)

    def take_valu(kind, g):
        for op in valu:
            if op.kind == kind and ready(op, g):
                op.gap = g
                return op
        return None

    def take_salu(g):
        nonlocal ci, last_chain_gap, last_chain_kind
        if ci < len(chain) and chain[ci].kind == "S" and chain[ci].min_gap <= g:
            op = chain[ci]
            ci += 1
            op.gap = g
            last_chain_gap, last_chain_kind = g, "S"
            return op
        return None

    for g in range(n):
        out.append(mfmas[g])
        t = template[g]
        if t == "M":
            if ci < len(chain) and chain[ci].kind == "M" and last_chain_gap < g and chain[ci].min_gap <= g:
                chain[ci].gap = g
                out.append(chain[ci].text)
                ci += 1
                last_chain_gap, last_chain_kind = g, "M"
                t = "X"
            else:
                t = "E"
        if t == "D" and not ds:
            t = "E"
        if t == "D":
            out.append(ds.pop(0))
            op = (take_salu(g) or take_valu("V", g)) if salu_first else (take_valu("V", g) or take_salu(g))
            if op:
                out.append(op.text)
        elif t in "EF":
            s = take_salu(g)
            if s:
                out.append(s.text)
            e = take_valu("E", g) if t == "E" else None
            if e:
                out.append(e.text)
            else:
                for _ in range(2):
                    op = (take_salu(g) or take_valu("V", g)) if salu_first else (take_valu("V", g) or take_salu(g))
                    if op:
                        out.append(op.text)
        out.extend(fixed.get(g, []))
    left = [d for d in ds] + [c.text for c in chain[ci:]] + [v.text for v in valu if v.gap is None]
    if strict:
        assert not left, left
    return out, left
```

```python
import math
from asmlib import *

WS_K = 0
WS_V = 16 << 20
WS_Q = 32 << 20
WS_QA = 48 << 20
WS_KA = 50 << 20
WS_VA = 52 << 20
WS_SIZE = 256 << 20

LOG2E = math.log2(math.e)
SCALE_B = LOG2E / 16.0
SCALE_A = LOG2E / math.sqrt(28.0)

LDS_W0 = 0
LDS_X0 = 65536
LDS_TOTAL = 163840

S_X, S_WQKV, S_CKV, S_WQ, S_WUK, S_WUV, S_WS = 4, 6, 8, 10, 12, 14, 16
SRD_X, SRD_W, SRD_O = 20, 24, 28
S_XOFF, S_WOFF, S_XSTEP, S_XWRAP, S_W4, S_W12 = 40, 41, 42, 43, 44, 45
S_XOFF2, S_WOFF2 = 46, 47
S_PHASE = 52
S_LEFT = 53
S_XRD = 54
S_XWR = 55
S_WWR = 56
S_WAVE = 57
S_TYPE = 58
S_OBASE = 60
S_OBASE2 = 61
S_SCALE = 62
S_TMP = 64
S_XWAVE = 72
S_OOFF = 73
S_STAMP = 80

V_XL0, V_XL1 = 1, 2
V_XR0, V_XR1 = 3, 4
V_WR = 5
V_DX, V_DW, V_DX2, V_DW2 = 13, 14, 15, 16
V_LANE16 = 17
V_OA = 18
V_OAV = 19
V_SCHI = 20
V_ONEHI = 21
V_MULHI, V_ADDHI = 22, 23
V_T = 24
V_X2 = 32
V_W2 = 34
V_X2R = 40
V_W2R = 42
FX = [64, 128]
FW = [96, 160]
V_EP = 128


def acc(nb, tb):
    return (nb * 8 + tb) * 4


def mfma_list(typ, s, first):
    out = []
    for nb in range(8):
        for tb in range(8):
            a = acc(nb, tb)
            w = vr(FW[s] + 4 * nb, 4)
            x = vr(FX[s] + 4 * tb, 4)
            c = "0" if first else ar(a, 4)
            if typ == "KQ":
                out.append(f"v_mfma_f32_16x16x32_bf16 {ar(a,4)}, {w}, {x}, {c}")
            else:
                out.append(f"v_mfma_f32_16x16x32_bf16 {ar(a,4)}, {x}, {w}, {c}")
    return out


def frag_reads(s, hh):
    out = []
    vx = V_XR0 if hh == 0 else V_XR1
    for i in range(8):
        out.append(f"ds_read_b128 {vr(FX[s]+4*i,4)}, v{vx} offset:{i*2048}")
    for i in range(8):
        out.append(f"ds_read_b64_tr_b16 {vr(FW[s]+4*i,2)}, v{V_WR+i} offset:{hh*16384}")
        out.append(f"ds_read_b64_tr_b16 {vr(FW[s]+4*i+2,2)}, v{V_WR+i} offset:{hh*16384+2048}")
    return out


def dma_x():
    c = [Op(f"s_mov_b32 m0, s{S_XWR}", "S")]
    for i in range(8):
        c.append(Op(f"buffer_load_dwordx4 v{V_DX}, {sr(SRD_X,4)}, s{S_XOFF} offen lds", "M"))
        if i < 7:
            c.append(Op(f"s_add_u32 m0, m0, 2048", "S"))
            c.append(Op(f"s_add_u32 s{S_XOFF}, s{S_XOFF}, s{S_XSTEP}", "S"))
        else:
            c.append(Op(f"s_add_u32 s{S_XOFF}, s{S_XOFF}, s{S_XWRAP}", "S"))
            c.append(Op(f"s_add_u32 s{S_XWR}, s{S_XWR}, 32768", "S"))
            c.append(Op(f"s_cmp_ge_u32 s{S_XWR}, {LDS_TOTAL}", "S"))
            c.append(Op(f"s_cselect_b32 s{S_XWR}, s{S_XWAVE}, s{S_XWR}", "S"))
    return c


def dma_w():
    c = [Op(f"s_mov_b32 m0, s{S_WWR}", "S")]
    for i in range(8):
        c.append(Op(f"buffer_load_dwordx4 v{V_DW}, {sr(SRD_W,4)}, s{S_WOFF} offen lds", "M"))
        if i % 2 == 0:
            c.append(Op(f"s_add_u32 m0, m0, 2048", "S"))
            c.append(Op(f"s_add_u32 s{S_WOFF}, s{S_WOFF}, s{S_W4}", "S"))
        else:
            if i < 7:
                c.append(Op(f"s_add_u32 m0, m0, 6144", "S"))
            c.append(Op(f"s_add_u32 s{S_WOFF}, s{S_WOFF}, s{S_W12}", "S"))
        if i == 7:
            c.append(Op(f"s_xor_b32 s{S_WWR}, s{S_WWR}, 32768", "S"))
    return c


def emit_chain(A, c):
    prev = ""
    for o in c:
        if o.kind == "M" and prev.split(",")[0].endswith(" m0"):
            A("s_nop 0")
        A(o.text)
        prev = o.text


HT = "DFDMDFDF" * 6 + "FMFFFFFM" + "FFFFFFFX"


def step_body(A, typ, first, cfg, last=False):
    ht = cfg.get("ht", HT)
    lastD = max(i for i, c in enumerate(ht) if c == "D")
    m = mfma_list(typ, 0, first)
    va = [Op(f"v_add_u32 v{V_XR0}, s{S_XRD}, v{V_XL0}", "V", min_gap=lastD + 1),
          Op(f"v_add_u32 v{V_XR1}, s{S_XRD}, v{V_XL1}", "V", min_gap=lastD + 1)]
    va += [Op(f"v_xor_b32 v{V_WR+i}, 0x8000, v{V_WR+i}", "V", min_gap=lastD + 1) for i in range(8)]
    out, _ = schedule(m, ht, frag_reads(1, 1), dma_x(), va, {63: ["s_waitcnt vmcnt(8) lgkmcnt(0)", "s_barrier"]})
    A.emit_list(ablate(out, cfg))
    m = mfma_list(typ, 1, False)
    ch = [Op(f"s_add_u32 s{S_XRD}, s{S_XRD}, 32768", "S"), Op(f"s_cmp_ge_u32 s{S_XRD}, {LDS_TOTAL}", "S"),
          Op(f"s_cselect_b32 s{S_XRD}, {LDS_X0}, s{S_XRD}", "S")]
    ch = ch + dma_w() + [Op(f"s_sub_u32 s{S_LEFT}, s{S_LEFT}, 1", "S"), Op(f"s_cmp_lg_u32 s{S_LEFT}, 0", "S")]
    out, _ = schedule(m, ht, frag_reads(0, 0), ch, [], {63: ["s_waitcnt lgkmcnt(0)"]})
    A.emit_list(ablate(out, cfg))


def ablate(lst, cfg):
    out = []
    for l in lst:
        if cfg.get("no_dma") and l.startswith("buffer_load"):
            continue
        if cfg.get("no_lds") and l.startswith("ds_read"):
            continue
        out.append(l)
    return out


def epilogue(A, kind, cfg):
    fl = cfg.get("st_flags", "")
    A("s_nop 7")
    gi = 0
    for o in range(8):
        for p in range(4):
            t = 64 + (gi % 16) * 12
            gi += 1
            if kind == "K":
                regs = [acc(2 * p, o) + r for r in range(4)] + [acc(2 * p + 1, o) + r for r in range(4)]
                so, imm = o * 8192, p * 1024
            else:
                regs = [acc(o, 2 * p) + r for r in range(4)] + [acc(o, 2 * p + 1) + r for r in range(4)]
                so, imm = p * 16384 + (o >> 2) * 4096, (o & 3) * 1024
            for i, r in enumerate(regs):
                A(f"v_accvgpr_read_b32 v{t+i}, a{r}")
            for i in range(4):
                A(f"v_cvt_pk_bf16_f32 v{t+8+i}, v{t+2*i}, v{t+2*i+1}")
            A(f"s_add_u32 s{S_OOFF}, s{S_OBASE}, {so}")
            A(f"buffer_store_dwordx4 {vr(t+8,4)}, v{V_LANE16}, {sr(SRD_O,4)}, s{S_OOFF} offen offset:{imm} {fl}")


J_ACC = 192
J_FX = [64, 96]


def j_reads(s, kap):
    out = []
    for tb in range(2):
        out.append(f"ds_read_b128 {vr(J_FX[s]+4*tb,4)}, v{V_X2R+(kap&1)} offset:{(kap>>1)*16384+tb*2048}")
    for u in range(6):
        f = J_FX[s] + 8 + 4 * u
        for e in range(2):
            out.append(f"ds_read_b64_tr_b16 {vr(f+2*e,2)}, v{V_W2R+u} offset:{kap*32*256+e*8*256}")
    return out


def j_mfmas(s, first):
    out = []
    for u in range(6):
        for tb in range(2):
            a = vr(J_ACC + (u * 2 + tb) * 4, 4)
            w = vr(J_FX[s] + 8 + 4 * u, 4)
            x = vr(J_FX[s] + 4 * tb, 4)
            c = "0" if first else a
            if u < 4:
                out.append(f"v_mfma_f32_16x16x32_bf16 {a}, {w}, {x}, {c}")
            else:
                out.append(f"v_mfma_f32_16x16x32_bf16 {a}, {x}, {w}, {c}")
    return out


def job2(A, cfg):
    xs = [1, 2, 0, 1]

    def set_addr(sg):
        for h in range(2):
            A(f"v_add_u32 v{V_X2R+h}, {LDS_X0+xs[sg]*32768}, v{V_X2+h}")
        for u in range(6):
            A(f"v_add_u32 v{V_W2R+u}, {(sg%2)*32768}, v{V_W2+u}")

    set_addr(0)
    A("s_waitcnt vmcnt(32)")
    A("s_barrier")
    seq = [(sg, k) for sg in range(4) for k in range(4 if sg < 3 else 2)]
    A.emit_list(j_reads(0, 0))
    for i, (sg, k) in enumerate(seq):
        s = i % 2
        nxt = seq[i + 1] if i + 1 < len(seq) else None
        A("s_waitcnt lgkmcnt(0)")
        if nxt and nxt[0] != sg:
            if sg == 0:
                A("s_barrier")
                emit_chain(A, dma_w())
                emit_chain(A, dma_x())
            elif sg == 1:
                A("s_waitcnt vmcnt(8)")
                A("s_barrier")
                emit_chain(A, dma_w())
            elif sg == 2:
                A("s_waitcnt vmcnt(0)")
                A("s_barrier")
            set_addr(nxt[0])
        m = j_mfmas(s, i == 0)
        if nxt:
            rd = j_reads(1 - s, nxt[1])
            A.emit_list(rd[:2])
            out, left = schedule(m, "D" * 12, rd[2:], [], [], {})
            A.emit_list(out)
        else:
            A.emit_list(m)
    A("s_nop 7")
    for part in range(3):
        if part < 2:
            for tb in range(2):
                lo = J_ACC + ((2 * part) * 2 + tb) * 4
                hi = J_ACC + ((2 * part + 1) * 2 + tb) * 4
                t = 64 + (part * 2 + tb) * 4
                for r in range(4):
                    if part == 0:
                        A(f"v_mul_f32 v{lo+r}, s{S_SCALE}, v{lo+r}")
                    A(f"v_mul_f32 v{hi+r}, v{V_SCHI if part == 0 else V_ONEHI}, v{hi+r}")
                A(f"v_cvt_pk_bf16_f32 v{t}, v{lo}, v{lo+1}")
                A(f"v_cvt_pk_bf16_f32 v{t+1}, v{lo+2}, v{lo+3}")
                A(f"v_cvt_pk_bf16_f32 v{t+2}, v{hi}, v{hi+1}")
                A(f"v_cvt_pk_bf16_f32 v{t+3}, v{hi+2}, v{hi+3}")
                A(f"s_add_u32 s{S_OOFF}, s{S_OBASE2}, {part*(2<<20)}")
                A(f"buffer_store_dwordx4 {vr(t,4)}, v{V_OA}, {sr(SRD_O,4)}, s{S_OOFF} offen offset:{tb*128}")
        else:
            for dh in range(2):
                lo = J_ACC + ((4 + dh) * 2 + 0) * 4
                hi = J_ACC + ((4 + dh) * 2 + 1) * 4
                t = 64 + (4 + dh) * 4
                if dh:
                    for r in range(4):
                        A(f"v_fma_f32 v{lo+r}, v{lo+r}, v{V_MULHI}, v{V_ADDHI}")
                        A(f"v_fma_f32 v{hi+r}, v{hi+r}, v{V_MULHI}, v{V_ADDHI}")
                A(f"v_cvt_pk_bf16_f32 v{t}, v{lo}, v{lo+1}")
                A(f"v_cvt_pk_bf16_f32 v{t+1}, v{lo+2}, v{lo+3}")
                A(f"v_cvt_pk_bf16_f32 v{t+2}, v{hi}, v{hi+1}")
                A(f"v_cvt_pk_bf16_f32 v{t+3}, v{hi+2}, v{hi+3}")
                A(f"s_add_u32 s{S_OOFF}, s{S_OBASE2}, {2*(2<<20)}")
                A(f"buffer_store_dwordx4 {vr(t,4)}, v{V_OAV}, {sr(SRD_O,4)}, s{S_OOFF} offen offset:{dh*256}")


def stamp(A, cfg, i):
    if cfg.get("diag"):
        A(f"s_memrealtime {sr(S_STAMP+2*i,2)}")
        if i in (1, 2, 3):
            A(f"s_memtime {sr(S_STAMP+10+2*i,2)}")


def stamp_out(A, cfg, n, wsoff, ntot):
    if cfg.get("diag"):
        A("s_waitcnt vmcnt(0) lgkmcnt(0)")
        A(f"s_memrealtime {sr(S_STAMP+2*(n-1),2)}")
        A("s_waitcnt lgkmcnt(0)")
        A(f"s_lshl_b32 s{S_OOFF}, s2, 8")
        A(f"s_lshl_b32 s{S_TMP}, s{S_WAVE}, 6")
        A(f"s_add_u32 s{S_OOFF}, s{S_OOFF}, s{S_TMP}")
        A(f"s_add_u32 s{S_OOFF}, s{S_OOFF}, {wsoff}")
        A(f"v_mov_b32 v{V_T+1}, 0")
        for i in range(ntot):
            A(f"v_mov_b32 v{V_T}, s{S_STAMP+2*i}")
            A(f"buffer_store_dword v{V_T}, v{V_T+1}, {sr(SRD_O,4)}, s{S_OOFF} offen offset:{4*i}")
            A("s_nop 1")


def gen_l1(A, name="proj_kernel", cfg=None):
    cfg = cfg or {}
    A.raw(kernel_header(name))
    A(f"s_load_dwordx2 {sr(S_CKV,2)}, s[0:1], 32")
    A(f"s_load_dwordx4 {sr(S_WUK,4)}, s[0:1], 48")
    A(f"s_load_dwordx4 {sr(S_X,4)}, s[0:1], 0")
    A(f"s_load_dwordx2 {sr(S_WS,2)}, s[0:1], 96")
    if cfg.get("diag"):
        for i in range(20):
            A(f"s_mov_b32 s{S_STAMP+i}, 0")
    stamp(A, cfg, 0)
    A(f"s_cmp_ge_u32 s2, 256")
    A(f"s_cbranch_scc1 L1_END")
    T = S_TMP
    A(f"v_lshrrev_b32 v{V_T}, 6, v0")
    A(f"v_and_b32 v0, 63, v0")
    A(f"v_readfirstlane_b32 s{S_WAVE}, v{V_T}")
    A(f"v_lshlrev_b32 v{V_LANE16}, 4, v0")
    A(f"s_and_b32 s{T}, s2, 7")
    A(f"s_lshr_b32 s{T+1}, s2, 6")
    A(f"s_lshl_b32 s{T+1}, s{T+1}, 3")
    A(f"s_add_u32 s{T}, s{T}, s{T+1}")
    A(f"s_bfe_u32 s{T+1}, s2, 0x30003")
    A(f"s_lshr_b32 s{T+2}, s{S_WAVE}, 1")
    A(f"s_and_b32 s{T+3}, s{S_WAVE}, 1")
    A(f"s_and_b32 s{T+4}, s{T}, 15")
    A(f"s_lshr_b32 s{S_TYPE}, s{T}, 4")
    A(f"s_lshl_b32 s{T+5}, s{T+2}, 4")
    A(f"s_add_u32 s{T+5}, s{T+5}, s{T+3}")
    A(f"s_lshl_b32 s{S_XWAVE}, s{T+5}, 10")
    A(f"s_add_u32 s{S_XWAVE}, s{S_XWAVE}, {LDS_X0}")
    A(f"s_mov_b32 s{S_XWR}, s{S_XWAVE}")
    A(f"s_lshl_b32 s{T+5}, s{T+5}, 3")
    A(f"s_lshl_b32 s{T+6}, s{T+1}, 8")
    A(f"s_add_u32 s{T+6}, s{T+6}, s{T+5}")
    A(f"s_lshl_b32 s{S_XOFF}, s{T+6}, 11")
    A(f"s_mov_b32 s{S_XSTEP}, {16*2048}")
    A(f"s_mov_b32 s{S_XWRAP}, {(128-112*2048) & 0xffffffff}")
    A(f"s_lshl_b32 s{T+7}, s{T+2}, 2")
    A(f"s_add_u32 s{T+7}, s{T+7}, s{T+3}")
    A(f"s_lshl_b32 s{S_WWR}, s{T+7}, 10")
    A(f"s_lshl_b32 s{S_WOFF}, s{T+7}, 14")
    A(f"s_lshl_b32 s{S_OOFF}, s{T+4}, 9")
    A(f"s_add_u32 s{S_WOFF}, s{S_WOFF}, s{S_OOFF}")
    A(f"s_mov_b32 s{S_W4}, {4*8192}")
    A(f"s_mov_b32 s{S_W12}, {12*8192}")
    A(f"v_lshrrev_b32 v{V_T}, 4, v0")
    A(f"s_lshl_b32 s{S_OOFF}, s{T+3}, 2")
    A(f"v_add_u32 v{V_T+6}, s{S_OOFF}, v{V_T}")
    A(f"v_and_b32 v{V_T+1}, 7, v0")
    A(f"v_xor_b32 v{V_T}, v{V_T+6}, v{V_T+1}")
    A(f"v_lshlrev_b32 v{V_T}, 4, v{V_T}")
    A(f"v_lshrrev_b32 v{V_T+1}, 3, v0")
    A(f"v_lshl_add_u32 v{V_DX}, v{V_T+1}, 11, v{V_T}")
    A(f"v_mul_u32_u24 v{V_T+2}, 896, v{V_T+1}")
    A(f"v_add_u32 v{V_DX2}, v{V_T+2}, v{V_T}")
    A(f"v_lshrrev_b32 v{V_T}, 5, v0")
    A(f"s_lshl_b32 s{S_OOFF}, s{T+3}, 1")
    A(f"s_lshl_b32 s{T+5}, s{T+2}, 2")
    A(f"s_add_u32 s{S_OOFF}, s{S_OOFF}, s{T+5}")
    A(f"v_add_u32 v{V_T+1}, s{S_OOFF}, v{V_T}")
    A(f"v_bfe_u32 v{V_T+2}, v0, 1, 4")
    A(f"v_xor_b32 v{V_T+2}, v{V_T+2}, v{V_T+1}")
    A(f"v_and_b32 v{V_T+3}, 1, v0")
    A(f"v_lshl_add_u32 v{V_T+2}, v{V_T+2}, 1, v{V_T+3}")
    A(f"v_lshlrev_b32 v{V_T+3}, 4, v{V_T+2}")
    A(f"v_lshl_add_u32 v{V_DW}, v{V_T}, 13, v{V_T+3}")
    A("s_waitcnt lgkmcnt(0)")
    A(f"s_mov_b32 s{SRD_X}, s{S_CKV}")
    A(f"s_mov_b32 s{SRD_X+1}, s{S_CKV+1}")
    A(f"s_mov_b32 s{SRD_X+2}, {2048*1024*2}")
    A(f"s_mov_b32 s{SRD_X+3}, 0x20000")
    A(f"s_cmp_eq_u32 s{S_TYPE}, 0")
    A(f"s_cselect_b32 s{SRD_W}, s{S_WUK}, s{S_WUV}")
    A(f"s_cselect_b32 s{SRD_W+1}, s{S_WUK+1}, s{S_WUV+1}")
    A(f"s_mov_b32 s{SRD_W+2}, {1024*4096*2}")
    A(f"s_mov_b32 s{SRD_W+3}, 0x20000")
    emit_chain(A, dma_x())
    emit_chain(A, dma_w())
    emit_chain(A, dma_x())
    emit_chain(A, dma_w())
    A(f"s_mov_b32 s{SRD_O}, s{S_WS}")
    A(f"s_mov_b32 s{SRD_O+1}, s{S_WS+1}")
    A(f"s_mov_b32 s{SRD_O+2}, {WS_SIZE}")
    A(f"s_mov_b32 s{SRD_O+3}, 0x20000")
    A(f"s_lshl_b32 s{S_OBASE}, s{T+4}, 20")
    A(f"s_lshl_b32 s{S_OOFF}, s{T+1}, 17")
    A(f"s_add_u32 s{S_OBASE}, s{S_OBASE}, s{S_OOFF}")
    A(f"s_lshl_b32 s{S_OOFF}, s{T+2}, 16")
    A(f"s_add_u32 s{S_OBASE}, s{S_OBASE}, s{S_OOFF}")
    A(f"s_add_u32 s{S_OOFF}, s{S_TYPE}, 12")
    A(f"s_lshl_b32 s{S_OOFF}, s{T+3}, s{S_OOFF}")
    A(f"s_add_u32 s{S_OBASE}, s{S_OBASE}, s{S_OOFF}")
    A(f"s_lshl_b32 s{S_OOFF}, s{S_TYPE}, 24")
    A(f"s_add_u32 s{S_OBASE}, s{S_OBASE}, s{S_OOFF}")
    A(f"s_and_b32 s{T}, s2, 15")
    A(f"s_lshr_b32 s{T+4}, s2, 4")
    A(f"s_lshl_b32 s{T+5}, s{T}, 7")
    A(f"s_lshl_b32 s{T+6}, s{T+3}, 3")
    A(f"s_add_u32 s{T+5}, s{T+5}, s{T+6}")
    A(f"s_mul_i32 s{S_XOFF2}, s{T+5}, 896")
    A(f"s_lshl_b32 s{T+6}, s{T+2}, 7")
    A(f"s_add_u32 s{S_XOFF2}, s{S_XOFF2}, s{T+6}")
    A(f"s_mul_i32 s{S_WOFF2}, s{S_WAVE}, {8*2688}")
    A(f"s_mul_i32 s{T+6}, s{T+4}, 56")
    A(f"s_add_u32 s{S_WOFF2}, s{S_WOFF2}, s{T+6}")
    A(f"v_bfe_u32 v{V_T}, v0, 1, 3")
    A(f"v_xor_b32 v{V_T}, v{V_T}, v{V_T+6}")
    A(f"v_and_b32 v{V_T+1}, 1, v0")
    A(f"v_lshl_add_u32 v{V_T}, v{V_T}, 1, v{V_T+1}")
    A(f"v_lshrrev_b32 v{V_T+1}, 2, v{V_T}")
    A(f"v_and_b32 v{V_T}, 3, v{V_T}")
    A(f"v_lshlrev_b32 v{V_T}, 4, v{V_T}")
    A(f"v_mul_u32_u24 v{V_T+2}, 896, v{V_T+1}")
    A(f"v_add_u32 v{V_T}, v{V_T}, v{V_T+2}")
    A(f"v_lshrrev_b32 v{V_T+2}, 4, v0")
    A(f"v_mul_u32_u24 v{V_T+2}, 2688, v{V_T+2}")
    A(f"v_add_u32 v{V_T}, v{V_T}, v{V_T+2}")
    A(f"v_mov_b32 v{V_T+2}, 0x40000000")
    A(f"v_cmp_gt_u32 vcc, 3, v{V_T+1}")
    A("s_nop 1")
    A(f"v_cndmask_b32 v{V_DW2}, v{V_T+2}, v{V_T}, vcc")
    A(f"s_lshl_b32 s{S_OBASE2}, s{T+4}, 17")
    A(f"s_lshl_b32 s{T+5}, s{T}, 2")
    A(f"s_add_u32 s{T+5}, s{T+5}, s{S_WAVE}")
    A(f"s_lshl_b32 s{T+5}, s{T+5}, 11")
    A(f"s_add_u32 s{S_OBASE2}, s{S_OBASE2}, s{T+5}")
    A(f"s_add_u32 s{S_OBASE2}, s{S_OBASE2}, {WS_QA}")
    A(f"s_mov_b32 s{S_SCALE}, {f32bits(SCALE_A):#x}")
    A(f"v_and_b32 v{V_T}, 15, v0")
    A(f"v_lshrrev_b32 v{V_T+1}, 4, v0")
    A(f"v_lshrrev_b32 v{V_T+2}, 1, v{V_T}")
    A(f"v_xor_b32 v{V_T+2}, v{V_T+2}, v{V_T+1}")
    A(f"v_lshlrev_b32 v{V_T+2}, 4, v{V_T+2}")
    A(f"v_lshl_add_u32 v{V_T+2}, v{V_T}, 7, v{V_T+2}")
    A(f"s_lshl_b32 s{S_OOFF}, s{T+2}, 14")
    A(f"v_add_u32 v{V_XL0}, s{S_OOFF}, v{V_T+2}")
    A(f"v_xor_b32 v{V_XL1}, 64, v{V_XL0}")
    A(f"s_lshl_b32 s{S_OOFF}, s{S_WAVE}, 12")
    A(f"v_add_u32 v{V_X2}, s{S_OOFF}, v{V_T+2}")
    A(f"v_xor_b32 v{V_X2+1}, 64, v{V_X2}")
    A(f"v_add_u32 v{V_XR0}, {LDS_X0}, v{V_XL0}")
    A(f"v_add_u32 v{V_XR1}, {LDS_X0}, v{V_XL1}")
    A(f"s_mov_b32 s{S_XRD}, {LDS_X0+32768}")
    A(f"v_bfe_u32 v{V_T+2}, v0, 2, 2")
    A(f"v_lshl_add_u32 v{V_T+3}, v{V_T+1}, 3, v{V_T+2}")
    A(f"v_lshlrev_b32 v{V_T+3}, 9, v{V_T+3}")
    A(f"v_bfe_u32 v{V_T+4}, v0, 2, 3")
    A(f"v_lshl_add_u32 v{V_T+3}, v{V_T+4}, 5, v{V_T+3}")
    A(f"v_and_b32 v{V_T+5}, 3, v0")
    A(f"v_lshl_add_u32 v{V_T+3}, v{V_T+5}, 3, v{V_T+3}")
    A(f"s_lshl_b32 s{S_OOFF}, s{T+3}, 8")
    A(f"v_add_u32 v{V_WR}, s{S_OOFF}, v{V_T+3}")
    for b in range(1, 8):
        A(f"v_xor_b32 v{V_WR+b}, {b*32}, v{V_WR}")
    A(f"v_lshrrev_b32 v{V_T+3}, 5, v0")
    A(f"v_lshl_add_u32 v{V_T+3}, v{V_T+3}, 4, v{V_T+4}")
    A(f"v_lshlrev_b32 v{V_T+3}, 8, v{V_T+3}")
    A(f"v_lshl_add_u32 v{V_T+3}, v{V_T+4}, 5, v{V_T+3}")
    A(f"v_lshl_add_u32 v{V_W2}, v{V_T+5}, 3, v{V_T+3}")
    for u in range(1, 6):
        A(f"v_xor_b32 v{V_W2+u}, {u*32}, v{V_W2}")
    A(f"v_lshlrev_b32 v{V_T+2}, 9, v{V_T+1}")
    A(f"v_bfe_u32 v{V_T+3}, v0, 3, 1")
    A(f"v_lshl_add_u32 v{V_T+4}, v{V_T+3}, 8, v{V_T+2}")
    A(f"v_and_b32 v{V_T+3}, 7, v0")
    A(f"v_lshl_add_u32 v{V_OA}, v{V_T+3}, 4, v{V_T+4}")
    A(f"v_lshl_add_u32 v{V_OAV}, v{V_T}, 4, v{V_T+2}")
    A(f"v_mov_b32 v{V_SCHI}, s{S_SCALE}")
    A(f"v_cmp_gt_u32 vcc, 3, v{V_T+1}")
    A("s_nop 1")
    A(f"v_cndmask_b32 v{V_SCHI}, 0, v{V_SCHI}, vcc")
    A(f"v_cndmask_b32 v{V_ONEHI}, 0, 1.0, vcc")
    A(f"v_cmp_gt_u32 vcc, 12, v{V_T}")
    A("s_nop 1")
    A(f"v_cndmask_b32 v{V_MULHI}, 0, 1.0, vcc")
    A(f"v_cmp_eq_u32 vcc, 12, v{V_T}")
    A("s_nop 1")
    A(f"v_cndmask_b32 v{V_ADDHI}, 0, 1.0, vcc")
    A(f"s_mov_b32 s{S_PHASE}, 0")
    A(f"s_mov_b32 s{S_LEFT}, 14")
    A("s_waitcnt vmcnt(16)")
    A("s_barrier")
    stamp(A, cfg, 1)
    A.emit_list(frag_reads(0, 0))
    A("s_waitcnt lgkmcnt(0)")
    A(f"s_cmp_eq_u32 s{S_TYPE}, 1")
    A(f"s_cbranch_scc1 L1_VT")
    for typ in ("KQ", "V"):
        if typ == "V":
            A.label("L1_VT")
        step_body(A, typ, True, cfg)
        A.label(f"L1_LOOP_{typ}")
        step_body(A, typ, False, cfg)
        A(f"s_cbranch_scc1 L1_LOOP_{typ}")
        A(f"s_cmp_eq_u32 s{S_PHASE}, 1")
        A(f"s_cbranch_scc1 L1_EPI_{typ}")
        A(f"s_mov_b32 s{S_PHASE}, 1")
        A(f"s_mov_b32 s{S_LEFT}, 2")
        A(f"s_mov_b32 s{SRD_X}, s{S_X}")
        A(f"s_mov_b32 s{SRD_X+1}, s{S_X+1}")
        A(f"s_mov_b32 s{SRD_X+2}, {2048*448*2}")
        A(f"s_mov_b32 s{S_XOFF}, s{S_XOFF2}")
        A(f"s_mov_b32 s{S_XSTEP}, {16*896}")
        A(f"s_mov_b32 s{S_XWRAP}, {(256-112*896) & 0xffffffff}")
        A(f"v_mov_b32 v{V_DX}, v{V_DX2}")
        A(f"s_mov_b32 s{SRD_W}, s{S_WQKV}")
        A(f"s_mov_b32 s{SRD_W+1}, s{S_WQKV+1}")
        A(f"s_mov_b32 s{SRD_W+2}, {448*1344*2}")
        A(f"s_mov_b32 s{S_WOFF}, s{S_WOFF2}")
        A(f"s_mov_b32 s{S_W4}, {4*2688}")
        A(f"s_mov_b32 s{S_W12}, {28*2688}")
        A(f"v_mov_b32 v{V_DW}, v{V_DW2}")
        A(f"s_branch L1_LOOP_{typ}")
        A.label(f"L1_EPI_{typ}")
        stamp(A, cfg, 2)
        emit_chain(A, dma_x())
        epilogue(A, "K" if typ == "KQ" else "V", cfg)
        if typ == "KQ":
            A("s_branch L1_JOB2")
    A.label("L1_JOB2")
    stamp(A, cfg, 3)
    job2(A, cfg)
    stamp(A, cfg, 4)
    stamp_out(A, cfg, 6, 200 << 20, 9)
    A.label("L1_END")
    A("s_endpgm")
    return kernel_desc(name, 512, 100, 256)
```

```python
import math
from asmlib import *
from gen_l1 import WS_K, WS_V, WS_Q, WS_QA, WS_KA, WS_VA, WS_SIZE, SCALE_B, emit_chain

WS_P = 64 << 20
P_SLOT = 128 * 14 * 1024
NB_ITEMS = 256
NA_ITEMS = 128
LDS_TOTAL = 163840
BIAS = 32.0
NEG_INF = 0xff800000
HUGE = WS_SIZE

S_WS, S_WOB, S_WOA = 4, 6, 8
SRD_WS, SRD_WO = 12, 16
S_WAVE = 20
S_HEAD = 21
S_QB = 22
S_N = 23
S_T2 = 24
S_TW = 25
S_KOFF, S_VOFF, S_KLIM, S_VLIM = 26, 27, 28, 29
S_B0 = 30
S_TMP = 32
S_LEFT = 40
S_RET = 42
S_FLOOR = 44
S_FIRST = 45
S_WOOFF = 46
S_POFF = 47
S_ONES = 48
S_MASK = 49
S_HUGE = 50
SRD_X, SRD_WQ = 52, 56
S_XP, S_WQP = 60, 62
S_QXOFF, S_QWOFF = 64, 65
S_QXW, S_QWW = 66, 67
S_QDELTA = 68
S_QSTG = 69
S_SC = 70
S_QC = 72
S_STAMP = 80

V_LANE16 = 1
V_DKV = 2
V_RB1, V_RB0 = 3, 4
V_CB = 6
V_L = 8
V_DM = 10
V_OR = 14
V_T = 16
V_WOD = 32
V_WOR = 40
VP = [48, 56]
VS = [64, 80]
VC = 96
VE = 112
VO = 128
AQ, AK, AV = 0, 64, 128


def launch_line(cfg=None):
    cfg = cfg or {}
    n = NB_ITEMS + (0 if cfg.get("no_a") else NA_ITEMS)
    return f"; @launch kernel=attn_kernel grid=({n},1,1) block=(256,1,1) lds={LDS_TOTAL}"


def s_reg(buf, kb, qb):
    return VS[buf] + (kb * 2 + qb) * 4


def c_reg(kb, qb):
    return VC + (kb * 2 + qb) * 4


def o_reg(db, qb):
    return VO + (db * 2 + qb) * 4


def qk_mfmas(buf):
    out = []
    for dg in range(8):
        for kb in range(2):
            for qb in range(2):
                d = vr(s_reg(buf, kb, qb), 4)
                c = vr(c_reg(kb, qb), 4) if dg == 0 else d
                out.append(f"v_mfma_f32_16x16x32_bf16 {d}, {ar(AK+(kb*8+dg)*4,4)}, {ar(AQ+(qb*8+dg)*4,4)}, {c}")
    return out


def pv_mfmas(pbuf, first=False):
    out = []
    for db in range(16):
        for qb in range(2):
            d = vr(o_reg(db, qb), 4)
            out.append(f"v_mfma_f32_16x16x32_bf16 {d}, {ar(AV+db*4,4)}, {vr(VP[pbuf]+qb*4,4)}, {d}")
    return out


def k_reads(vbase, off):
    return [f"ds_read_b128 {ar(AK+(kb*8+dg)*4,4)}, v{vbase} offset:{off+(kb*8+dg)*1024}"
            for dg in range(8) for kb in range(2)]


def v_reads(vbase, off):
    return [f"ds_read_b128 {ar(AV+db*4,4)}, v{vbase} offset:{off+db*1024}" for db in range(16)]


V_LT = 14


def softmax_oplist(buf, pbuf, with_l=True):
    ops = []
    ladd = []
    if with_l:
        ladd = [Op(f"v_add_f32 v{V_L+qb}, v{V_L+qb}, v{V_LT+qb}", "V") for qb in range(2)]
        ops += ladd
    lastsum = []
    for qb in range(2):
        prev = None
        for kb in range(2):
            s = s_reg(buf, kb, qb)
            e = VE + (kb * 2 + qb) * 4
            ex = [Op(f"v_exp_f32 v{e+r}, v{s+r}", "E") for r in range(4)]
            ops += ex
            ops.append(Op(f"v_cvt_pk_bf16_f32 v{VP[pbuf]+qb*4+kb*2}, v{e}, v{e+1}", "V", [ex[0], ex[1]]))
            ops.append(Op(f"v_cvt_pk_bf16_f32 v{VP[pbuf]+qb*4+kb*2+1}, v{e+2}, v{e+3}", "V", [ex[2], ex[3]]))
            if kb == 0:
                prev = Op(f"v_add_f32 v{V_LT+qb}, v{e}, v{e+1}", "V", [ex[0], ex[1]] + ([ladd[qb]] if with_l else []))
                ops.append(prev)
                rest = [2, 3]
            else:
                rest = [0, 1, 2, 3]
            for r in rest:
                prev = Op(f"v_add_f32 v{V_LT+qb}, v{V_LT+qb}, v{e+r}", "V", [ex[r], prev])
                ops.append(prev)
        lastsum.append(prev)
    mx = Op(f"v_max_f32 v{V_T+8}, v{V_LT}, v{V_LT+1}", "V", lastsum)
    ops.append(mx)
    ops.append(Op(f"v_cmp_ngt_f32 vcc, 2.0, v{V_T+8}", "V", [mx]))
    return ops


def softmax_linear(buf, pbuf):
    ops = softmax_oplist(buf, pbuf, with_l=False)
    return [o.text for o in ops if o.kind == "E"] + ["s_nop 0"] + [o.text for o in ops if o.kind == "V"]


def dma_chain(kdst, vdst, vmin):
    c = []
    c.append(Op(f"s_cmp_lt_u32 s{S_KOFF}, s{S_KLIM}", "S"))
    c.append(Op(f"s_cselect_b32 s{S_TMP}, s{S_KOFF}, s{S_HUGE}", "S"))
    c.append(Op(kdst, "S"))
    c.append(Op(f"s_add_u32 s{S_KOFF}, s{S_KOFF}, 16384", "S"))
    for i in range(4):
        c.append(Op(f"buffer_load_dwordx4 v{V_DKV}, {sr(SRD_WS,4)}, s{S_TMP} offen offset:{i*1024} lds", "M"))
    c.append(Op(f"s_cmp_lt_u32 s{S_VOFF}, s{S_VLIM}", "S", min_gap=vmin))
    c.append(Op(f"s_cselect_b32 s{S_TMP+1}, s{S_VOFF}, s{S_HUGE}", "S"))
    c.append(Op(vdst, "S"))
    c.append(Op(f"s_add_u32 s{S_VOFF}, s{S_VOFF}, 16384", "S"))
    for i in range(4):
        c.append(Op(f"buffer_load_dwordx4 v{V_DKV}, {sr(SRD_WS,4)}, s{S_TMP+1} offen offset:{i*1024} lds", "M"))
    return c


OOL = []


def c_update_body(tile_sgpr, lfull, lback):
    o = []
    o.append(f"s_cmp_eq_u32 s{tile_sgpr}, s{S_TW}")
    o.append(f"s_cbranch_scc0 {lfull}")
    for r in range(4):
        o.append(f"v_add_f32 v{c_reg(0,0)+r}, v{V_CB}, v{V_DM+r}")
        o.append(f"v_add_f32 v{c_reg(1,1)+r}, v{V_CB+1}, v{V_DM+r}")
        o.append(f"v_mov_b32 v{c_reg(1,0)+r}, {NEG_INF:#x}")
    o.append(f"s_branch {lback}")
    o.append(f"{lfull}:")
    for r in range(16):
        o.append(f"v_mov_b32 v{VC+r}, {NEG_INF:#x}")
    o.append(f"s_branch {lback}")
    return o


def c_update(A, tile_sgpr):
    lool, lfull, lback = A.newlabel("LC"), A.newlabel("LC"), A.newlabel("LC")
    OOL.append([f"{lool}:"] + c_update_body(tile_sgpr, lfull, lback))
    return [f"s_cmp_ge_u32 s{tile_sgpr}, s{S_TW}", f"s_cbranch_scc1 {lool}\n{lback}:"]


def rare_check(A, sb, pref="L2_RARE"):
    lool, lback = A.newlabel("LR"), A.newlabel("LR")
    OOL.append([f"{lool}:", f"s_call_b64 {sr(S_RET,2)}, {pref}{sb}", f"s_branch {lback}"])
    return f"s_cbranch_vccnz {lool}\n{lback}:"


def flush_ool(A):
    for b in OOL:
        A.emit_list(b)
    OOL.clear()


def spread(n_items, start, end):
    if n_items == 1:
        return [start]
    return [start + (i * (end - start)) // (n_items - 1) for i in range(n_items)]


PH = "DDE" * 8 + "MEMEMEMX"


def b_iter(A, par, cfg, do_sm=True, do_qk=True, do_dma=True, last=None):
    pb_cur, pb_nxt = par, 1 - par
    sb_sm, sb_qk = 1 - par, par
    A(f"s_waitcnt vmcnt(16) lgkmcnt(0)" if do_dma or do_qk else "s_waitcnt lgkmcnt(0)")
    A("s_barrier")
    if do_sm:
        sm = softmax_oplist(sb_sm, pb_nxt)
        for o in sm:
            if o.kind == "E":
                o.min_gap = 2
    else:
        sm = [Op(f"v_add_f32 v{V_L+qb}, v{V_L+qb}, v{V_LT+qb}", "V") for qb in range(2)]
    vrd = v_reads(V_RB0 if par == 0 else V_RB1, 49152 if par == 0 else 16384)
    if do_qk:
        m = pv_mfmas(pb_cur) + qk_mfmas(sb_qk)
        ds = k_reads(V_RB1, 0 if par == 0 else 32768) + vrd
        cu = c_update(A, S_T2)
        chain = [Op(cu[0], "S"), Op(cu[1], "S"), Op(f"s_add_u32 s{S_T2}, s{S_T2}, 1", "S")]
        if par == 0:
            chain += dma_chain(f"s_add_u32 m0, s{S_B0}, 32768", f"s_add_u32 m0, s{S_B0}, 16384", 31)
        else:
            chain += dma_chain(f"s_xor_b32 m0, s{S_B0}, 65536", f"s_add_u32 m0, s{S_B0}, 49152", 31)
            sm += [Op(f"v_xor_b32 v{V_RB0}, 0x10000, v{V_RB0}", "V", min_gap=56),
                   Op(f"v_xor_b32 v{V_RB1}, 0x10000, v{V_RB1}", "V", min_gap=56)]
            chain[-4:-4] = [Op(f"s_xor_b32 s{S_B0}, s{S_B0}, 65536", "S"), Op(f"s_sub_u32 s{S_LEFT}, s{S_LEFT}, 1", "S")]
        tmpl = cfg.get("tmpl", PH + PH)
        fixed = {31: ["s_waitcnt lgkmcnt(0)"], 63: [rare_check(A, sb_sm)]}
        out, left = schedule(m, tmpl, ds, chain, sm, fixed)
        A.emit_list(ablate(out, cfg))
        return
    m = pv_mfmas(pb_cur)
    if do_sm:
        tmpl = "EE" + "ED" * 15
        out, left = schedule(m, tmpl, vrd, [], sm, {}, strict=False)
        A.emit_list(out)
        A("s_nop 0")
        for l in left:
            A(l)
            if l.startswith("v_exp"):
                A("s_nop 0")
        A(rare_check(A, sb_sm))
    else:
        tmpl = "E" + "M" * 31
        out, left = schedule(m, tmpl, [], last, sm, {}, strict=False)
        A.emit_list(out)
        for l in left:
            A(l)
            if l.startswith("s_add_u32 m0"):
                A("s_nop 0")


def ablate(lst, cfg):
    out = []
    for l in lst:
        if cfg.get("no_dma") and l.startswith("buffer_load"):
            continue
        if cfg.get("no_lds") and l.startswith("ds_read"):
            continue
        if cfg.get("no_valu") and (l.startswith("v_exp") or l.startswith("v_cvt") or l.startswith("v_add_f32")):
            continue
        out.append(l)
    return out


def xquad(A, op, v, t):
    A(f"v_mov_b32 v{t}, v{v}")
    A("s_nop 1")
    A(f"v_permlane32_swap_b32 v{t}, v{v}")
    A("s_nop 1")
    A(f"{op} v{v}, v{v}, v{t}")
    A(f"v_mov_b32 v{t}, v{v}")
    A("s_nop 1")
    A(f"v_permlane16_swap_b32 v{t}, v{v}")
    A("s_nop 1")
    A(f"{op} v{v}, v{v}, v{t}")


def b_rare(A, sb):
    A.label(f"L2_RARE{sb}")
    A("s_nop 7")
    A("s_nop 7")
    so = 1 - sb
    for qb in range(2):
        d = V_T + qb
        a, b = s_reg(sb, 0, qb), s_reg(sb, 1, qb)
        A(f"v_max3_f32 v{d}, v{a}, v{a+1}, v{a+2}")
        A(f"v_max3_f32 v{d}, v{d}, v{a+3}, v{b}")
        A(f"v_max3_f32 v{d}, v{d}, v{b+1}, v{b+2}")
        A(f"v_max_f32 v{d}, v{d}, v{b+3}")
        xquad(A, "v_max_f32", d, V_T + 4)
        A(f"v_add_f32 v{d}, {f32bits(BIAS):#x}, v{d}")
        A(f"v_max_f32 v{d}, s{S_FLOOR}, v{d}")
        A(f"v_max_f32 v{V_T+2+qb}, 0, v{d}")
        A(f"v_exp_f32 v{V_T+2+qb}, -v{V_T+2+qb}")
        for kb in range(2):
            for r in range(4):
                A(f"v_sub_f32 v{s_reg(sb,kb,qb)+r}, v{s_reg(sb,kb,qb)+r}, v{d}")
                A(f"v_sub_f32 v{s_reg(so,kb,qb)+r}, v{s_reg(so,kb,qb)+r}, v{d}")
                A(f"v_sub_f32 v{c_reg(kb,qb)+r}, v{c_reg(kb,qb)+r}, v{d}")
        A(f"v_sub_f32 v{V_CB+qb}, v{V_CB+qb}, v{d}")
        A(f"v_mul_f32 v{V_L+qb}, v{V_L+qb}, v{V_T+2+qb}")
    lskip = A.newlabel("LRS")
    A(f"s_cmp_eq_u32 s{S_FIRST}, 1")
    A(f"s_cbranch_scc1 {lskip}")
    for db in range(16):
        for qb in range(2):
            for r in range(4):
                A(f"v_mul_f32 v{o_reg(db,qb)+r}, v{o_reg(db,qb)+r}, v{V_T+2+qb}")
    A.label(lskip)
    A(f"s_mov_b32 s{S_FIRST}, 0")
    A(f"s_mov_b32 s{S_FLOOR}, 0")
    for o in softmax_linear(sb, sb):
        A(o)
    A("s_nop 1")
    A(f"s_setpc_b64 {sr(S_RET,2)}")


def wo_chain(chunk, slot):
    c = []
    for g in wo_dma(chunk, slot):
        for x in g:
            if x == "s_nop 0":
                continue
            c.append(Op(x, "M" if x.startswith("buffer_load") else "S"))
    return c


def wo_dma(chunk, slot):
    g = []
    g.append([f"s_add_u32 s{S_TMP+2}, s{S_WOOFF}, {chunk*32*896}", f"s_add_u32 m0, s{S_TMP+3}, {slot*32768}"])
    for i in range(7):
        x = []
        if i == 4:
            x.append(f"s_add_u32 m0, m0, 4096")
            x.append("s_nop 0")
        x.append(f"buffer_load_dwordx4 v{V_WOD+i}, {sr(SRD_WO,4)}, s{S_TMP+2} offen offset:{(i%4)*1024} lds")
        g.append(x)
    return g


WO_SLOT = [4, 0, 1, 2, 3, 4, 0, 1]
VF = 128
VCTX = 64


def wo_reads(half, fset):
    out = []
    for i in range(14):
        b = 14 * half + i
        f = VF + (fset * 14 + i) * 4
        for e in range(2):
            out.append(f"ds_read_b64_tr_b16 {vr(f+2*e,2)}, v{V_WOR+(b&3)} offset:{(b>>2)*128+e*16*896}")
    return out


def wo_mfmas(half, fset, dg):
    out = []
    for i in range(14):
        b = 14 * half + i
        f = VF + (fset * 14 + i) * 4
        for qb in range(2):
            a = (b * 2 + qb) * 4
            c = "0" if dg == 0 else ar(a, 4)
            out.append(f"v_mfma_f32_16x16x32_bf16 {ar(a,4)}, {vr(f,4)}, {vr(VCTX+(dg*2+qb)*4,4)}, {c}")
    return out


def b_epilogue(A, cfg):
    A("s_nop 7")
    for qb in range(2):
        xquad(A, "v_add_f32", V_L + qb, V_T + 4)
        A(f"v_rcp_f32 v{V_T+2*qb}, v{V_L+qb}")
        A("s_nop 0")
        A(f"v_mov_b32 v{V_T+2*qb+1}, v{V_T+2*qb}")
    for dg in range(8):
        for qb in range(2):
            for a in range(2):
                o = o_reg(2 * dg + a, qb)
                A(f"v_pk_mul_f32 {vr(o,2)}, {vr(o,2)}, {vr(V_T+2*qb,2)}")
                A(f"v_pk_mul_f32 {vr(o+2,2)}, {vr(o+2,2)}, {vr(V_T+2*qb,2)}")
            for a in range(2):
                o = o_reg(2 * dg + a, qb)
                c = VCTX + (dg * 2 + qb) * 4 + 2 * a
                A(f"v_cvt_pk_bf16_f32 v{c}, v{o}, v{o+1}")
                A(f"v_cvt_pk_bf16_f32 v{c+1}, v{o+2}, v{o+3}")
    A("s_waitcnt vmcnt(28)")
    A("s_barrier")
    A.emit_list(wo_reads(0, 0))
    A("s_waitcnt lgkmcnt(0)")
    for dg in range(8):
        m = wo_mfmas(0, 0, dg)
        sides = [(p, [r]) for p, r in zip(spread(28, 0, 22), wo_reads(1, 1))]
        if dg < 7:
            delta = (WO_SLOT[dg + 1] - WO_SLOT[dg]) * 32768
            for i in range(4):
                sides.append((23 + i, [f"v_add_u32 v{V_WOR+i}, {delta & 0xffffffff:#x}, v{V_WOR+i}"]))
        A.emit_list(interleave(m, sides))
        if dg < 7:
            young = max(0, min(dg + 4, 7) - (dg + 1))
            A(f"s_waitcnt vmcnt({7*young}) lgkmcnt(0)")
            A("s_barrier")
        else:
            A("s_waitcnt lgkmcnt(0)")
        m = wo_mfmas(1, 1, dg)
        sides = []
        if dg < 7:
            sides += [(p, [r]) for p, r in zip(spread(28, 0, 22), wo_reads(0, 0))]
        if dg + 5 <= 7:
            for p, x in zip(spread(8, 1, 26), wo_dma(dg + 5, WO_SLOT[dg + 5])):
                sides.append((p, x))
        A.emit_list(interleave(m, sides))
        if dg < 7:
            A("s_waitcnt lgkmcnt(0)")
    store_partials(A, 2)


def store_partials(A, nqb):
    A("s_nop 7")
    gi = 0
    for qb in range(nqb):
        for p in range(14):
            t = 128 + (gi % 8) * 12
            gi += 1
            regs = [((2 * p) * nqb + qb) * 4 + r for r in range(4)] + [((2 * p + 1) * nqb + qb) * 4 + r for r in range(4)]
            for i, r in enumerate(regs):
                A(f"v_accvgpr_read_b32 v{t+i}, a{r}")
            for i in range(4):
                A(f"v_cvt_pk_bf16_f32 v{t+8+i}, v{t+2*i}, v{t+2*i+1}")
            off = (qb * 14 + p) * 1024
            if off % 4096 == 0:
                A(f"s_add_u32 s{S_TMP}, s{S_POFF}, {off}")
            A(f"buffer_store_dwordx4 {vr(t+8,4)}, v{V_LANE16}, {sr(SRD_WS,4)}, s{S_TMP} offen offset:{off%4096}")


def wo_lane_setup(A):
    T = V_T
    for i in range(7):
        A(f"v_add_u32 v{T}, {64*i}, v0")
        A(f"v_mul_u32_u24 v{T+1}, 1171, v{T}")
        A(f"v_lshrrev_b32 v{T+1}, 16, v{T+1}")
        A(f"v_mul_u32_u24 v{T+2}, 56, v{T+1}")
        A(f"v_sub_u32 v{T+2}, v{T}, v{T+2}")
        A(f"v_bfe_u32 v{T+3}, v{T+1}, 1, 2")
        A(f"v_lshlrev_b32 v{T+3}, 1, v{T+3}")
        A(f"v_xor_b32 v{T+2}, v{T+2}, v{T+3}")
        A(f"v_mul_u32_u24 v{T+1}, 896, v{T+1}")
        A(f"v_lshl_add_u32 v{T+1}, v{T+2}, 4, v{T+1}")
        A(f"v_subrev_u32 v{V_WOD+i}, {(i%4)*1024}, v{T+1}")


def stamp(A, cfg, i):
    if cfg.get("diag"):
        A(f"s_memrealtime {sr(S_STAMP+2*i,2)}")
        if i in (2, 3):
            A(f"s_memtime {sr(S_STAMP+6+2*i,2)}")


def stamp_out(A, cfg, n, wsoff):
    if cfg.get("diag"):
        A("s_waitcnt vmcnt(0) lgkmcnt(0)")
        A(f"s_memrealtime {sr(S_STAMP+2*(n-1),2)}")
        A("s_waitcnt lgkmcnt(0)")
        A(f"s_lshl_b32 s{S_TMP}, s2, 8")
        A(f"s_lshl_b32 s{S_TMP+1}, s{S_WAVE}, 6")
        A(f"s_add_u32 s{S_TMP}, s{S_TMP}, s{S_TMP+1}")
        A(f"s_add_u32 s{S_TMP}, s{S_TMP}, {wsoff}")
        A(f"v_mov_b32 v{V_T+1}, 0")
        for i in range(n + 2):
            A(f"v_mov_b32 v{V_T}, s{S_STAMP+2*i}")
            A(f"buffer_store_dword v{V_T}, v{V_T+1}, {sr(SRD_WS,4)}, s{S_TMP} offen offset:{4*i}")
            A("s_nop 1")


V_QX, V_QW, V_QDX, V_QDW = 48, 50, 58, 59
QF = [64, 112]
QSTAGE = 49152
XQ = 98304


def q_acc(db, tb):
    return VO + (db * 4 + tb) * 4


def q_mfmas(s):
    return [f"v_mfma_f32_16x16x32_bf16 {vr(q_acc(db,tb),4)}, {ar(QF[s]+16+4*db,4)}, {ar(QF[s]+4*tb,4)}, {vr(q_acc(db,tb),4)}"
            for db in range(8) for tb in range(4)]


def q_reads(s, hh):
    out = [f"ds_read_b128 {ar(QF[s]+4*tb,4)}, v{V_QX+hh} offset:{tb*2048}" for tb in range(4)]
    for b in range(8):
        for e in range(2):
            out.append(f"ds_read_b64_tr_b16 {ar(QF[s]+16+4*b+2*e,2)}, v{V_QW+b} offset:{16384+hh*16384+e*2048}")
    return out


def q_rot(reg):
    return [Op(f"s_add_u32 s{reg}, s{reg}, {QSTAGE}", "S"), Op(f"s_cmp_ge_u32 s{reg}, {3*QSTAGE}", "S"),
            Op(f"s_cselect_b32 s{S_TMP+4}, {3*QSTAGE}, 0", "S"), Op(f"s_sub_u32 s{reg}, s{reg}, s{S_TMP+4}", "S")]


def q_dma_x():
    c = [Op(f"s_mov_b32 m0, s{S_QXW}", "S")]
    for i in range(4):
        c.append(Op(f"buffer_load_dwordx4 v{V_QDX}, {sr(SRD_X,4)}, s{S_QXOFF} offen lds", "M"))
        if i < 3:
            c.append(Op("s_add_u32 m0, m0, 2048", "S"))
            c.append(Op(f"s_add_u32 s{S_QXOFF}, s{S_QXOFF}, {16*896}", "S"))
        else:
            c.append(Op(f"s_sub_u32 s{S_QXOFF}, s{S_QXOFF}, {48*896-128}", "S"))
    return c + q_rot(S_QXW)


def q_dma_w():
    c = [Op(f"s_mov_b32 m0, s{S_QWW}", "S")]
    for i in range(8):
        c.append(Op(f"buffer_load_dwordx4 v{V_QDW}, {sr(SRD_WQ,4)}, s{S_QWOFF} offen lds", "M"))
        if i % 2 == 0:
            c.append(Op("s_add_u32 m0, m0, 2048", "S"))
            c.append(Op(f"s_add_u32 s{S_QWOFF}, s{S_QWOFF}, {4*8192}", "S"))
        else:
            if i < 7:
                c.append(Op("s_add_u32 m0, m0, 6144", "S"))
            c.append(Op(f"s_add_u32 s{S_QWOFF}, s{S_QWOFF}, {12*8192}", "S"))
    return c + q_rot(S_QWW)


def kv_tile_chain(which, stage):
    off = S_KOFF if which == "K" else S_VOFF
    c = [Op(f"s_add_u32 m0, s{S_B0}, {stage*32768 + (0 if which == 'K' else 16384)}", "S")]
    for i in range(4):
        c.append(Op(f"buffer_load_dwordx4 v{V_DKV}, {sr(SRD_WS,4)}, s{off} offen offset:{i*1024} lds", "M"))
    c.append(Op(f"s_add_u32 s{off}, s{off}, 16384", "S"))
    return c


QT1 = "DDFMDD" * 4 + "DDFDDFFX"
QT2 = "DDM" * 8 + "DDFDDFFX"


def emit_left(A, left):
    for l in left:
        A(l)
        if l.split(",")[0].endswith(" m0") or l.startswith("v_exp"):
            A("s_nop 0")


def q_step(A, ch1, ch2, last=False, loop=False):
    va = []
    lastD = max(i for i, c in enumerate(QT1) if c == "D")
    pre = [Op(f"s_add_u32 s{S_QSTG}, s{S_QSTG}, 1", "S"), Op(f"s_cmp_eq_u32 s{S_QSTG}, 3", "S"),
           Op(f"s_cselect_b32 s{S_QDELTA}, {(-2*QSTAGE) & 0xffffffff:#x}, s{S_QC}", "S"),
           Op(f"s_cselect_b32 s{S_QSTG}, 0, s{S_QSTG}", "S")]
    out, left = schedule(q_mfmas(0), QT1, q_reads(1, 1), pre + ch1, [], {}, strict=False)
    A.emit_list(out)
    emit_left(A, left)
    if not last:
        for r in range(V_QX, V_QX + 10):
            A(f"v_add_u32 v{r}, s{S_QDELTA}, v{r}")
    A("s_waitcnt vmcnt(12) lgkmcnt(0)")
    A("s_barrier")
    if loop:
        ch2 = ch2 + [Op(f"s_sub_u32 s{S_LEFT}, s{S_LEFT}, 1", "S"), Op(f"s_cmp_lg_u32 s{S_LEFT}, 0", "S")]
    out, left = schedule(q_mfmas(1), QT2, [] if last else q_reads(0, 0), ch2, [], {}, strict=False)
    A.emit_list(out)
    emit_left(A, left)
    A("s_waitcnt lgkmcnt(0)")


def gen_b_item(A, cfg):
    T = S_TMP
    A(f"s_load_dwordx2 {sr(S_XP,2)}, s[0:1], 0")
    A(f"s_load_dwordx2 {sr(S_WQP,2)}, s[0:1], 40")
    A(f"s_and_b32 s{S_HEAD}, s2, 15")
    A(f"s_lshr_b32 s{T}, s2, 4")
    A(f"s_sub_u32 s{S_QB}, 15, s{T}")
    A(f"s_lshr_b32 s{T+2}, s{S_WAVE}, 1")
    A(f"s_and_b32 s{T+3}, s{S_WAVE}, 1")
    A(f"s_lshl_b32 s{T+5}, s{T+2}, 3")
    A(f"s_add_u32 s{T+5}, s{T+5}, s{T+3}")
    A(f"s_lshl_b32 s{S_QXW}, s{T+5}, 10")
    A(f"s_add_u32 s{S_QXW}, s{S_QXW}, {2*QSTAGE}")
    A(f"s_lshl_b32 s{T+5}, s{T+5}, 3")
    A(f"s_lshl_b32 s{T+6}, s{S_QB}, 7")
    A(f"s_add_u32 s{T+5}, s{T+5}, s{T+6}")
    A(f"s_mul_i32 s{S_QXOFF}, s{T+5}, 896")
    A(f"s_lshl_b32 s{T+7}, s{T+2}, 2")
    A(f"s_add_u32 s{T+7}, s{T+7}, s{T+3}")
    A(f"s_lshl_b32 s{S_QWW}, s{T+7}, 10")
    A(f"s_add_u32 s{S_QWW}, s{S_QWW}, {2*QSTAGE+16384}")
    A(f"s_lshl_b32 s{S_QWOFF}, s{T+7}, 14")
    A(f"s_lshl_b32 s{T+6}, s{S_HEAD}, 9")
    A(f"s_add_u32 s{S_QWOFF}, s{S_QWOFF}, s{T+6}")
    A(f"v_lshrrev_b32 v{V_T}, 4, v0")
    A(f"s_lshl_b32 s{T+6}, s{T+3}, 2")
    A(f"v_add_u32 v{V_T}, s{T+6}, v{V_T}")
    A(f"v_and_b32 v{V_T+1}, 7, v0")
    A(f"v_xor_b32 v{V_T}, v{V_T}, v{V_T+1}")
    A(f"v_lshlrev_b32 v{V_T}, 4, v{V_T}")
    A(f"v_lshrrev_b32 v{V_T+1}, 3, v0")
    A(f"v_mul_u32_u24 v{V_T+2}, 896, v{V_T+1}")
    A(f"v_add_u32 v{V_QDX}, v{V_T+2}, v{V_T}")
    A(f"v_lshrrev_b32 v{V_T}, 5, v0")
    A(f"s_lshl_b32 s{T+6}, s{T+3}, 1")
    A(f"s_lshl_b32 s{T+5}, s{T+2}, 2")
    A(f"s_add_u32 s{T+6}, s{T+6}, s{T+5}")
    A(f"v_add_u32 v{V_T+1}, s{T+6}, v{V_T}")
    A(f"v_bfe_u32 v{V_T+2}, v0, 1, 4")
    A(f"v_xor_b32 v{V_T+2}, v{V_T+2}, v{V_T+1}")
    A(f"v_and_b32 v{V_T+3}, 1, v0")
    A(f"v_lshl_add_u32 v{V_T+2}, v{V_T+2}, 1, v{V_T+3}")
    A(f"v_lshlrev_b32 v{V_T+3}, 4, v{V_T+2}")
    A(f"v_lshl_add_u32 v{V_QDW}, v{V_T}, 13, v{V_T+3}")
    A("s_waitcnt lgkmcnt(0)")
    A(f"s_mov_b32 s{SRD_X}, s{S_XP}")
    A(f"s_mov_b32 s{SRD_X+1}, s{S_XP+1}")
    A(f"s_mov_b32 s{SRD_X+2}, {2048*448*2}")
    A(f"s_mov_b32 s{SRD_X+3}, 0x20000")
    A(f"s_mov_b32 s{SRD_WQ}, s{S_WQP}")
    A(f"s_mov_b32 s{SRD_WQ+1}, s{S_WQP+1}")
    A(f"s_mov_b32 s{SRD_WQ+2}, {448*4096*2}")
    A(f"s_mov_b32 s{SRD_WQ+3}, 0x20000")
    emit_chain(A, q_dma_w())
    emit_chain(A, q_dma_x())
    emit_chain(A, q_dma_w())
    emit_chain(A, q_dma_x())
    emit_chain(A, q_dma_w())
    A(f"s_mov_b32 s{SRD_WS}, s{S_WS}")
    A(f"s_mov_b32 s{SRD_WS+1}, s{S_WS+1}")
    A(f"s_mov_b32 s{SRD_WS+2}, {WS_SIZE}")
    A(f"s_mov_b32 s{SRD_WS+3}, 0x20000")
    A(f"s_mov_b32 s{SRD_WO}, s{S_WOB}")
    A(f"s_mov_b32 s{SRD_WO+1}, s{S_WOB+1}")
    A(f"s_mov_b32 s{SRD_WO+2}, {4096*448*2}")
    A(f"s_mov_b32 s{SRD_WO+3}, 0x20000")
    A(f"s_lshl_b32 s{S_N}, s{S_QB}, 2")
    A(f"s_add_u32 s{S_TW}, s{S_N}, s{S_WAVE}")
    A(f"s_add_u32 s{S_N}, s{S_N}, 4")
    A(f"s_lshl_b32 s{S_KOFF}, s{S_HEAD}, 20")
    A(f"s_add_u32 s{S_VOFF}, s{S_KOFF}, {WS_V}")
    A(f"s_lshl_b32 s{T}, s{S_N}, 14")
    A(f"s_add_u32 s{S_KLIM}, s{S_KOFF}, s{T}")
    A(f"s_add_u32 s{S_VLIM}, s{S_VOFF}, s{T}")
    A(f"s_lshl_b32 s{S_B0}, s{S_WAVE}, 12")
    A(f"v_add_u32 v{V_DKV}, s{S_B0}, v{V_LANE16}")
    A(f"v_and_b32 v{V_T}, 15, v0")
    A(f"v_lshrrev_b32 v{V_T+1}, 4, v0")
    A(f"v_lshrrev_b32 v{V_T+2}, 1, v{V_T}")
    A(f"v_xor_b32 v{V_T+2}, v{V_T+2}, v{V_T+1}")
    A(f"v_lshlrev_b32 v{V_T+2}, 4, v{V_T+2}")
    A(f"v_lshl_add_u32 v{V_T+2}, v{V_T}, 7, v{V_T+2}")
    A(f"s_lshl_b32 s{T+6}, s{T+2}, 13")
    A(f"s_add_u32 s{T+6}, s{T+6}, {2*QSTAGE}")
    A(f"v_add_u32 v{V_QX}, s{T+6}, v{V_T+2}")
    A(f"v_xor_b32 v{V_QX+1}, 64, v{V_QX}")
    A(f"v_bfe_u32 v{V_T+2}, v0, 2, 2")
    A(f"v_lshl_add_u32 v{V_T+3}, v{V_T+1}, 3, v{V_T+2}")
    A(f"v_lshlrev_b32 v{V_T+3}, 9, v{V_T+3}")
    A(f"v_bfe_u32 v{V_T+4}, v0, 2, 3")
    A(f"v_lshl_add_u32 v{V_T+3}, v{V_T+4}, 5, v{V_T+3}")
    A(f"v_and_b32 v{V_T+5}, 3, v0")
    A(f"v_lshl_add_u32 v{V_T+3}, v{V_T+5}, 3, v{V_T+3}")
    A(f"s_lshl_b32 s{T+6}, s{T+3}, 8")
    A(f"s_add_u32 s{T+6}, s{T+6}, {2*QSTAGE}")
    A(f"v_add_u32 v{V_QW}, s{T+6}, v{V_T+3}")
    for b in range(1, 8):
        A(f"v_xor_b32 v{V_QW+b}, {b*32}, v{V_QW}")
    A(f"s_mov_b32 s{S_QSTG}, 2")
    A(f"s_mov_b32 s{S_QC}, {QSTAGE}")
    A(f"s_lshl_b32 s{T+6}, s{T+2}, 15")
    A(f"s_lshl_b32 s{T+5}, s{T+3}, 12")
    A(f"s_add_u32 s{T+6}, s{T+6}, s{T+5}")
    A(f"s_add_u32 s{T+6}, s{T+6}, {XQ}")
    A(f"v_add_u32 v{V_RB1}, s{T+6}, v{V_LANE16}")
    A(f"s_lshl_b32 s{T+6}, s{S_WAVE}, 14")
    A(f"s_add_u32 s{T+6}, s{T+6}, {XQ}")
    A(f"v_add_u32 v{V_RB0}, s{T+6}, v{V_LANE16}")
    A(f"v_lshlrev_b32 v{V_T+2}, 2, v{V_T+1}")
    A(f"v_mov_b32 v{V_T+4}, {NEG_INF:#x}")
    for r in range(4):
        A(f"v_add_u32 v{V_T+3}, {r}, v{V_T+2}")
        A(f"v_cmp_gt_u32 vcc, v{V_T+3}, v{V_T}")
        A("s_nop 1")
        A(f"v_cndmask_b32 v{V_DM+r}, 0, v{V_T+4}, vcc")
    A(f"v_bfe_u32 v{V_T+3}, v0, 2, 2")
    A(f"v_add_u32 v{V_T+3}, v{V_T+3}, v{V_T+2}")
    A(f"v_bfe_u32 v{V_T+5}, v{V_T+3}, 1, 2")
    A(f"v_mul_u32_u24 v{V_T+3}, 896, v{V_T+3}")
    A(f"v_and_b32 v{V_T+6}, 3, v0")
    A(f"v_lshl_add_u32 v{V_T+3}, v{V_T+6}, 3, v{V_T+3}")
    A(f"v_add_u32 v{V_T+3}, {WO_SLOT[0]*32768}, v{V_T+3}")
    for b in range(4):
        A(f"v_xor_b32 v{V_T+6}, {b}, v{V_T+5}")
        A(f"v_lshl_add_u32 v{V_WOR+b}, v{V_T+6}, 5, v{V_T+3}")
    wo_lane_setup(A)
    A(f"s_mul_i32 s{S_WOOFF}, s{S_HEAD}, {256*896}")
    A(f"s_mul_i32 s{T+3}, s{S_WAVE}, {8*896}")
    A(f"s_add_u32 s{S_WOOFF}, s{S_WOOFF}, s{T+3}")
    A(f"s_add_u32 s{S_POFF}, s{S_HEAD}, 4")
    A(f"s_mul_i32 s{S_POFF}, s{S_POFF}, {P_SLOT}")
    A(f"s_lshl_b32 s{T}, s{S_QB}, 2")
    A(f"s_add_u32 s{T}, s{T}, s{S_WAVE}")
    A(f"s_mul_i32 s{T}, s{T}, {2*14*1024}")
    A(f"s_add_u32 s{S_POFF}, s{S_POFF}, s{T}")
    A(f"s_add_u32 s{S_POFF}, s{S_POFF}, {WS_P}")
    A(f"s_mov_b32 s{S_HUGE}, {HUGE}")
    A(f"s_mov_b32 s{S_FLOOR}, {NEG_INF:#x}")
    A(f"s_mov_b32 s{S_FIRST}, 1")
    A(f"s_mov_b32 s{S_SC}, {f32bits(SCALE_B):#x}")
    A(f"s_mov_b32 s{S_SC+1}, {f32bits(SCALE_B):#x}")
    for r in range(128):
        A(f"v_mov_b32 v{VO+r}, 0")
    for r in range(16):
        A(f"v_mov_b32 v{VC+r}, 0")
    for r in (V_CB, V_CB + 1, V_L, V_L + 1, V_LT, V_LT + 1):
        A(f"v_mov_b32 v{r}, 0")
    A(f"s_mov_b32 s{S_T2}, 0")
    A.emit_list(c_update(A, S_T2))
    A(f"s_mov_b32 s{S_LEFT}, 4")
    A("s_waitcnt vmcnt(20)")
    A("s_barrier")
    stamp(A, cfg, 1)
    A.emit_list(q_reads(0, 0))
    A("s_waitcnt lgkmcnt(0)")
    A.label("L2_QLOOP")
    q_step(A, q_dma_x(), q_dma_w(), loop=True)
    A("s_cbranch_scc1 L2_QLOOP")
    q_step(A, q_dma_x(), kv_tile_chain("K", 0) + kv_tile_chain("V", 0))
    q_step(A, kv_tile_chain("K", 1), kv_tile_chain("V", 1) + kv_tile_chain("K", 2))
    q_step(A, kv_tile_chain("V", 2), [], last=True)
    A("s_nop 7")
    gi = 0
    for tb in range(4):
        for p in range(4):
            lo, hi = q_acc(2 * p, tb), q_acc(2 * p + 1, tb)
            t = 64 + (gi % 8) * 4
            gi += 1
            for r in (lo, lo + 2, hi, hi + 2):
                A(f"v_pk_mul_f32 {vr(r,2)}, {vr(r,2)}, {sr(S_SC,2)}")
            A(f"v_cvt_pk_bf16_f32 v{t}, v{lo}, v{lo+1}")
            A(f"v_cvt_pk_bf16_f32 v{t+1}, v{lo+2}, v{lo+3}")
            A(f"v_cvt_pk_bf16_f32 v{t+2}, v{hi}, v{hi+1}")
            A(f"v_cvt_pk_bf16_f32 v{t+3}, v{hi+2}, v{hi+3}")
            A(f"ds_write_b128 v{V_RB1}, {vr(t,4)} offset:{tb*8192+p*1024}")
    A("s_waitcnt vmcnt(12) lgkmcnt(0)")
    A("s_barrier")
    for i in range(16):
        A(f"ds_read_b128 {ar(AQ+i*4,4)}, v{V_RB0} offset:{i*1024}")
    A(f"v_mov_b32 v{V_RB0}, v{V_LANE16}")
    A(f"v_add_u32 v{V_RB1}, 0x10000, v{V_LANE16}")
    A.emit_list(k_reads(V_RB0, 0))
    zero = [Op(f"v_mov_b32 v{VO+r}, 0", "V") for r in range(128)]
    for z in zero[:24]:
        A(z.text)
    A("s_waitcnt lgkmcnt(0)")
    out, left = schedule(qk_mfmas(0), "DF" * 16, v_reads(V_RB0, 16384), [], zero[24:72], {})
    A.emit_list(out)
    A.emit_list(k_reads(V_RB0, 32768))
    A(f"s_mov_b32 s{S_T2}, 1")
    A.emit_list(c_update(A, S_T2))
    A("s_waitcnt lgkmcnt(0)")
    A("s_barrier")
    ch = kv_tile_chain("K", 3) + kv_tile_chain("V", 3)
    ch += [Op(f"s_cmp_lt_u32 s{S_KOFF}, s{S_KLIM}", "S"), Op(f"s_cselect_b32 s{T}, s{S_KOFF}, s{S_HUGE}", "S"),
           Op(f"s_mov_b32 m0, s{S_B0}", "S"), Op(f"s_add_u32 s{S_KOFF}, s{S_KOFF}, 16384", "S")]
    ch += [Op(f"buffer_load_dwordx4 v{V_DKV}, {sr(SRD_WS,4)}, s{T} offen offset:{i*1024} lds", "M") for i in range(4)]
    out, left = schedule(qk_mfmas(1), "FM" * 16, [], ch, zero[72:], {}, strict=False)
    A.emit_list(out)
    assert not any(l.startswith("buffer") for l in left)
    A.emit_list(left)
    A(f"s_call_b64 {sr(S_RET,2)}, L2_RARE0")
    A(f"s_mov_b32 s{S_T2}, 2")
    A(f"s_lshr_b32 s{S_LEFT}, s{S_N}, 1")
    A(f"s_sub_u32 s{S_LEFT}, s{S_LEFT}, 1")
    stamp(A, cfg, 2)
    A.label("L2_BLOOP")
    b_iter(A, 0, cfg)
    b_iter(A, 1, cfg)
    A(f"s_cmp_lg_u32 s{S_LEFT}, 0")
    A("s_cbranch_scc1 L2_BLOOP")
    A("s_waitcnt vmcnt(0)")
    emit_chain(A, wo_chain(0, WO_SLOT[0]))
    b_iter(A, 0, cfg, do_qk=False, do_dma=False)
    last = []
    for c in range(1, 5):
        last += wo_chain(c, WO_SLOT[c])
    b_iter(A, 1, cfg, do_sm=False, do_qk=False, do_dma=False, last=last)
    stamp(A, cfg, 3)
    b_epilogue(A, cfg)


def gen_l2(A, name="attn_kernel", cfg=None):
    cfg = cfg or {}
    A.raw(kernel_header(name))
    if cfg.get("diag"):
        for i in range(14):
            A(f"s_mov_b32 s{S_STAMP+i}, 0")
    stamp(A, cfg, 0)
    ntot = NB_ITEMS + (0 if cfg.get("no_a") else NA_ITEMS)
    A(f"s_cmp_ge_u32 s2, {ntot}")
    A("s_cbranch_scc1 L2_END")
    A(f"s_load_dwordx2 {sr(S_WS,2)}, s[0:1], 96")
    A(f"s_load_dwordx2 {sr(S_WOB,2)}, s[0:1], 64")
    A(f"s_load_dwordx2 {sr(S_WOA,2)}, s[0:1], 16")
    A(f"v_lshrrev_b32 v{V_T}, 6, v0")
    A(f"v_and_b32 v0, 63, v0")
    A(f"v_readfirstlane_b32 s{S_WAVE}, v{V_T}")
    A(f"v_lshlrev_b32 v{V_LANE16}, 4, v0")
    if not cfg.get("no_a"):
        A(f"s_cmp_ge_u32 s2, {NB_ITEMS}")
        A("s_cbranch_scc1 L2_AITEM")
    gen_b_item(A, cfg)
    A("s_branch L2_FIN")
    flush_ool(A)
    b_rare(A, 0)
    b_rare(A, 1)
    if not cfg.get("no_a"):
        import gen_l2a
        A.label("L2_AITEM")
        gen_l2a.gen_a_item(A, cfg)
    A.label("L2_FIN")
    stamp_out(A, cfg, 5, 210 << 20)
    A.label("L2_END")
    A("s_endpgm")
    return kernel_desc(name, 512, 100, 256)
```

```python
import math
from asmlib import *
from gen_l1 import WS_SIZE
from gen_l2 import WS_P, P_SLOT

def launch_line(cfg=None):
    return "; @launch kernel=final_kernel grid=(256,1,1) block=(448,1,1) lds=512"

def gen_l3(A, name="final_kernel", cfg=None):
    cfg = cfg or {}
    A.raw(kernel_header(name))
    if cfg.get("diag"):
        A("s_memrealtime s[40:41]")
    A("s_cmp_ge_u32 s2, 256")
    A("s_cbranch_scc1 L3_END")
    A("s_load_dwordx2 s[4:5], s[0:1], 0")
    A("s_load_dwordx4 s[8:11], s[0:1], 72")
    A("s_load_dwordx2 s[6:7], s[0:1], 96")
    A("v_lshrrev_b32 v1, 6, v0")
    A("v_and_b32 v0, 63, v0")
    A("v_readfirstlane_b32 s3, v1")
    A("v_lshlrev_b32 v1, 4, v0")
    A("v_and_b32 v2, 15, v0")
    A("v_lshrrev_b32 v3, 4, v0")
    A("s_lshr_b32 s28, s2, 1")
    A("s_and_b32 s29, s2, 1")
    A("s_mul_i32 s29, s29, 7")
    A("s_add_u32 s29, s29, s3")
    A("s_mul_i32 s30, s28, 14")
    A("s_add_u32 s30, s30, s29")
    A("s_lshl_b32 s30, s30, 10")
    A(f"s_add_u32 s30, s30, {WS_P}")
    A("s_waitcnt lgkmcnt(0)")
    A(f"s_mov_b32 s12, s6\ns_mov_b32 s13, s7\ns_mov_b32 s14, {WS_SIZE}\ns_mov_b32 s15, 0x20000")
    A(f"s_mov_b32 s16, s4\ns_mov_b32 s17, s5\ns_mov_b32 s18, {2048*448*2}\ns_mov_b32 s19, 0x20000")
    A(f"s_mov_b32 s20, s8\ns_mov_b32 s21, s9\ns_mov_b32 s22, {448*2}\ns_mov_b32 s23, 0x20000")
    A(f"s_mov_b32 s24, s10\ns_mov_b32 s25, s11\ns_mov_b32 s26, {2048*448*2}\ns_mov_b32 s27, 0x20000")
    A("v_mul_u32_u24 v4, 896, v2")
    A("v_lshl_add_u32 v4, v3, 4, v4")
    A("v_lshlrev_b32 v5, 4, v3")
    A(f"s_mul_i32 s31, s28, {16*896}")
    A("s_lshl_b32 s32, s3, 6")
    A("s_add_u32 s33, s31, s32")
    A("buffer_load_dwordx4 v[8:11], v4, s[16:19], s33 offen")
    A("buffer_load_dwordx4 v[12:15], v4, s[16:19], s33 offen offset:448")
    A("buffer_load_dwordx4 v[16:19], v5, s[20:23], s32 offen")
    A("buffer_load_dwordx4 v[20:23], v5, s[20:23], s32 offen offset:448")
    PB = 48
    for s in range(20):
        A(f"buffer_load_dwordx4 {vr(PB+4*s,4)}, v1, s[12:15], s30 offen")
        if s < 19:
            A(f"s_add_u32 s30, s30, {P_SLOT}")
    A("s_mov_b32 s34, 0x00003f80")
    A("s_mov_b32 s35, 0x3f800000")
    A("s_mov_b32 s36, 0x3f803f80")
    A("s_waitcnt vmcnt(20)")
    A("v_mov_b32 v6, 0")
    for i in range(8):
        x, g = 8 + i, 16 + i
        A(f"v_lshlrev_b32 v24, 16, v{x}")
        A(f"v_and_b32 v25, 0xffff0000, v{x}")
        A(f"v_lshlrev_b32 v26, 16, v{g}")
        A(f"v_and_b32 v27, 0xffff0000, v{g}")
        A("v_mul_f32 v24, v24, v26")
        A("v_mul_f32 v25, v25, v27")
        A("v_cvt_pk_bf16_f32 v24, v24, v25")
        A("v_dot2_f32_bf16 v6, v24, s36, v6")
    A("s_nop 3")
    A("v_mov_b32 v7, v6")
    A("s_nop 1")
    A("v_permlane32_swap_b32 v7, v6")
    A("s_nop 1")
    A("v_add_f32 v6, v6, v7")
    A("v_mov_b32 v7, v6")
    A("s_nop 1")
    A("v_permlane16_swap_b32 v7, v6")
    A("s_nop 1")
    A("v_add_f32 v6, v6, v7")
    A("v_lshlrev_b32 v7, 2, v2")
    A("v_add_u32 v24, s32, v7")
    A("ds_write_b32 v24, v6")
    A("s_waitcnt lgkmcnt(0)")
    A("s_barrier")
    for w in range(7):
        A(f"ds_read_b32 v{24+w}, v7 offset:{w*64}")
    AA, AB = 32, 40
    for s in range(20):
        A(f"s_waitcnt vmcnt({19-s})")
        acc = AA if s < 4 else AB
        first = s in (0, 4)
        for i in range(4):
            r = PB + 4 * s + i
            A(f"v_dot2_f32_bf16 v{acc+2*i}, v{r}, s34, {'0' if first else 'v%d' % (acc+2*i)}")
            A(f"v_dot2_f32_bf16 v{acc+2*i+1}, v{r}, s35, {'0' if first else 'v%d' % (acc+2*i+1)}")
    A("s_waitcnt lgkmcnt(0)")
    for w in range(1, 7):
        A(f"v_add_f32 v24, v24, v{24+w}")
    A("v_cvt_pk_bf16_f32 v24, v24, v24")
    A("v_lshlrev_b32 v24, 16, v24")
    A(f"v_mul_f32 v24, {f32bits(-math.log2(math.e)):#x}, v24")
    A("v_exp_f32 v24, v24")
    A("s_nop 0")
    A("v_add_f32 v24, 1.0, v24")
    A("v_rcp_f32 v24, v24")
    A("s_nop 0")
    A("v_cvt_pk_bf16_f32 v24, v24, v24")
    A("v_lshlrev_b32 v24, 16, v24")
    A("v_sub_f32 v25, 1.0, v24")
    A("v_cvt_pk_bf16_f32 v25, v25, v25")
    A("v_lshlrev_b32 v25, 16, v25")
    for i in range(4):
        for acc, gg in ((AA, 24), (AB, 25)):
            a = acc + 2 * i
            A(f"v_cvt_pk_bf16_f32 v26, v{a}, v{a+1}")
            A(f"v_lshlrev_b32 v{a}, 16, v26")
            A(f"v_and_b32 v{a+1}, 0xffff0000, v26")
            A(f"v_mul_f32 v{a}, v{gg}, v{a}")
            A(f"v_mul_f32 v{a+1}, v{gg}, v{a+1}")
            A(f"v_cvt_pk_bf16_f32 v26, v{a}, v{a+1}")
            A(f"v_lshlrev_b32 v{a}, 16, v26")
            A(f"v_and_b32 v{a+1}, 0xffff0000, v26")
        A(f"v_add_f32 v{AA+2*i}, v{AA+2*i}, v{AB+2*i}")
        A(f"v_add_f32 v{AA+2*i+1}, v{AA+2*i+1}, v{AB+2*i+1}")
        A(f"v_cvt_pk_bf16_f32 v{28+i}, v{AA+2*i}, v{AA+2*i+1}")
    A("v_mul_u32_u24 v4, 896, v2")
    A("v_lshl_add_u32 v4, v3, 3, v4")
    A("s_lshl_b32 s32, s29, 6")
    A("s_add_u32 s33, s31, s32")
    A("buffer_store_dwordx2 v[28:29], v4, s[24:27], s33 offen")
    A("buffer_store_dwordx2 v[30:31], v4, s[24:27], s33 offen offset:32")
    if cfg.get("diag"):
        A("s_waitcnt vmcnt(0)")
        A("s_memrealtime s[42:43]")
        A("s_waitcnt lgkmcnt(0)")
        A("s_cmp_ge_u32 s3, 4")
        A("s_cbranch_scc1 L3_END")
        A("s_lshl_b32 s32, s2, 8")
        A("s_lshl_b32 s33, s3, 6")
        A("s_add_u32 s32, s32, s33")
        A(f"s_add_u32 s32, s32, {220 << 20}")
        A("v_mov_b32 v4, 0")
        A("v_mov_b32 v5, s40")
        A("v_mov_b32 v6, s42")
        A("buffer_store_dword v5, v4, s[12:15], s32 offen")
        A("buffer_store_dword v6, v4, s[12:15], s32 offen offset:4")
    A("L3_END:")
    A("s_endpgm")
    return kernel_desc(name, 128, 48, 128)
```

```python
import math
from asmlib import *

WS_K = 0
WS_V = 16 << 20
WS_QA = 48 << 20
WS_KA = 50 << 20
WS_VA = 52 << 20
WS_P = 64 << 20
WS_SIZE = 256 << 20
P_SLOT = 128 * 14 * 1024
LOG2E = math.log2(math.e)
SCALE_B = LOG2E / 16.0
SCALE_A = LOG2E / math.sqrt(28.0)
LDS_TOTAL = 163840
LDS_X0 = 65536
BIAS = 32.0
NEG_INF = 0xff800000
HUGE = WS_SIZE
SPIN_MAX = 1 << 16

C_INIT, C_QUEUE = 0, 16
WS_F = 240 << 20
F_KV, F_AQ, F_ROW = WS_F, WS_F + 8192, WS_F + 12288
WS_G = 241 << 20

P_X, P_WQKV, P_WOA, P_CKV, P_WQ, P_WUK, P_WUV = 4, 6, 30, 12, 14, 16, 18
P_WOB, P_GATE, P_OUT, P_DBG, P_WS = 20, 22, 24, 26, 28
SRD_A, SRD_B, SRD_WS, SRD_DBG = 32, 36, 40, 44
S_WAVE, S_TYPE, S_HEAD, S_QB = 48, 49, 50, 51
S_XOFF, S_WOFF, S_XSTA, S_XSTB, S_XWRAP, S_W4, S_W12 = 52, 53, 54, 55, 56, 57, 58
S_XRD, S_XWR, S_WWR, S_XWAVE, S_LEFT, S_PHASE = 59, 60, 61, 62, 63, 64
S_OB, S_OSTA, S_OSTB = 65, 66, 67
S_XOFF2, S_WOFF2, S_XSTA2, S_XSTB2, S_XWRAP2, S_X2LO, S_X2HI, S_X2N = 68, 69, 70, 71, 72, 73, 74, 75
S_OBQK, S_OBV, S_SCA, S_GHEAD = 76, 77, 78, 79
S_N, S_T2, S_TW, S_KOFF, S_VOFF, S_KLIM, S_VLIM, S_B0 = 52, 53, 54, 55, 56, 57, 58, 59
S_RET = 60
S_FLOOR, S_FIRST = 62, 64
S_WOOFF, S_POFF, S_MASK, S_HUGE, S_WOW = 65, 66, 67, 68, 69
S_SC = 70
S_ITEM = 72
S_SPIN = 73
S_EV = 74
S_PADDR = 75
S_RFLAG = 76
S_TMP = 80
S_STAMP = 88
SRD_E = 8
S_TOFF = 87
V_TCH = 40
S_GRP = 3

V_LANE16 = 1
V_XL0, V_XL1, V_XR0, V_XR1 = 2, 3, 4, 5
V_WR = 6
V_DX, V_DW, V_DX2 = 14, 15, 16
V_OA, V_OAV, V_SCHI, V_MULHI, V_ADDHI = 17, 18, 19, 20, 21
V_PXL = 22
V_PWL = 24
V_PWR = 27
V_XQW, V_XQR = 30, 31
V_G = 32
V_CV = 48
FX = [64, 128]
FW = [96, 160]
V_PK = 128
V_DKV = 2
V_RB1, V_RB0 = 3, 4
V_CB = 6
V_L = 8
V_DM = 10
V_LT = 14
V_T = 16
V_WOD = 32
V_WOR = 40
V_POLL = 44
V_SIG = 46
VP = [48, 56]
VS = [64, 80]
VC = 96
VE = 112
VO = 128
AQ, AK, AV = 0, 64, 128
XQ = 98304

OOL = []


def flush_ool(A):
    for b in OOL:
        A.emit_list(b)
    OOL.clear()


def emit_chain(A, c):
    prev = ""
    for o in c:
        if o.kind == "M" and prev.split(",")[0].endswith(" m0"):
            A("s_nop 0")
        A(o.text)
        prev = o.text


def emit_left(A, left):
    for l in left:
        A(l)
        if l.split(",")[0].endswith(" m0") or l.startswith("v_exp"):
            A("s_nop 0")


def spread(n_items, start, end):
    if n_items == 1:
        return [start]
    return [start + (i * (end - start)) // (n_items - 1) for i in range(n_items)]


def set_srd(A, srd, ptr, size):
    A(f"s_mov_b32 s{srd}, s{ptr}")
    A(f"s_mov_b32 s{srd+1}, s{ptr+1}")
    A(f"s_mov_b32 s{srd+2}, {size}")
    A(f"s_mov_b32 s{srd+3}, 0x20000")


def stamp(A, cfg, i):
    if cfg.get("diag"):
        A(f"s_memrealtime {sr(S_STAMP+2*i,2)}")


def stamp_out(A, cfg, n, wsoff, idx_sgpr):
    if cfg.get("diag"):
        A("s_waitcnt vmcnt(0) lgkmcnt(0)")
        A(f"s_memrealtime {sr(S_STAMP+2*(n-1),2)}")
        A("s_waitcnt lgkmcnt(0)")
        A(f"s_lshl_b32 s{S_TMP}, s{idx_sgpr}, 8")
        A(f"s_lshl_b32 s{S_TMP+1}, s{S_WAVE}, 6")
        A(f"s_add_u32 s{S_TMP}, s{S_TMP}, s{S_TMP+1}")
        A(f"s_add_u32 s{S_TMP}, s{S_TMP}, {wsoff}")
        A(f"v_mov_b32 v{V_T+1}, 0")
        for i in range(n):
            A(f"v_mov_b32 v{V_T}, s{S_STAMP+2*i}")
            A(f"buffer_store_dword v{V_T}, v{V_T+1}, {sr(SRD_WS,4)}, s{S_TMP} offen offset:{4*i}")
            A("s_nop 1")


def signal(A, off_sgpr, grp=None):
    l = A.newlabel("LSG")
    A(f"s_cmp_lg_u32 s{S_WAVE}, 0")
    A(f"s_cbranch_scc1 {l}")
    if grp is not None:
        A(f"s_cmp_lg_u32 s{S_GRP}, {grp}")
        A(f"s_cbranch_scc1 {l}")
    A(f"v_mov_b32 v{V_SIG}, 1")
    A(f"v_mov_b32 v{V_SIG+1}, 0")
    A("s_mov_b64 exec, 1")
    A(f"buffer_store_dword v{V_SIG}, v{V_SIG+1}, {sr(SRD_WS,4)}, s{off_sgpr} offen sc1")
    A("s_mov_b64 exec, -1")
    A.label(l)


def poll_issue(A, idx_sgpr, base, nwords):
    A(f"s_lshl_b32 s{S_PADDR}, s{idx_sgpr}, 8")
    A(f"s_add_u32 s{S_PADDR}, s{S_PADDR}, {base}")
    A(f"v_min_u32 v{V_POLL+1}, {nwords-1}, v0")
    A(f"v_lshlrev_b32 v{V_POLL+1}, 2, v{V_POLL+1}")
    A(f"buffer_load_dword v{V_POLL}, v{V_POLL+1}, {sr(SRD_WS,4)}, s{S_PADDR} offen sc1")


def poll_test(A):
    A(f"v_cmp_eq_u32 vcc, 1, v{V_POLL}")
    A("s_nop 3")
    A("s_cmp_eq_u64 vcc, -1")


def poll_wait(A, reissue_first=False):
    lok, lloop = A.newlabel("LPK"), A.newlabel("LPL")
    A(f"s_mov_b32 s{S_SPIN}, {SPIN_MAX}")
    if reissue_first:
        A(f"buffer_load_dword v{V_POLL}, v{V_POLL+1}, {sr(SRD_WS,4)}, s{S_PADDR} offen sc1")
    A.label(lloop)
    A("s_waitcnt vmcnt(0)")
    poll_test(A)
    A(f"s_cbranch_scc1 {lok}")
    A(f"s_sub_u32 s{S_SPIN}, s{S_SPIN}, 1")
    A(f"s_cmp_eq_u32 s{S_SPIN}, 0")
    A(f"s_cbranch_scc1 {lok}")
    A("s_sleep 8")
    A(f"buffer_load_dword v{V_POLL}, v{V_POLL+1}, {sr(SRD_WS,4)}, s{S_PADDR} offen sc1")
    A(f"s_branch {lloop}")
    A.label(lok)


def acc(nb, tb):
    return (nb * 8 + tb) * 4


def g_mfmas(typ, s, first):
    out = []
    for nb in range(8):
        for tb in range(8):
            a = acc(nb, tb)
            w, x = vr(FW[s] + 4 * nb, 4), vr(FX[s] + 4 * tb, 4)
            c = "0" if first else ar(a, 4)
            out.append(f"v_mfma_f32_16x16x32_bf16 {ar(a,4)}, {w}, {x}, {c}" if typ == "KQ"
                       else f"v_mfma_f32_16x16x32_bf16 {ar(a,4)}, {x}, {w}, {c}")
    return out


def g_reads(s, hh):
    vx = V_XR0 if hh == 0 else V_XR1
    out = [f"ds_read_b128 {vr(FX[s]+4*i,4)}, v{vx} offset:{i*2048}" for i in range(8)]
    for i in range(8):
        out.append(f"ds_read_b64_tr_b16 {vr(FW[s]+4*i,2)}, v{V_WR+i} offset:{hh*16384}")
        out.append(f"ds_read_b64_tr_b16 {vr(FW[s]+4*i+2,2)}, v{V_WR+i} offset:{hh*16384+2048}")
    return out


def dma_x():
    c = [Op(f"s_mov_b32 m0, s{S_XWR}", "S")]
    for i in range(8):
        c.append(Op(f"buffer_load_dwordx4 v{V_DX}, {sr(SRD_A,4)}, s{S_XOFF} offen lds", "M"))
        if i < 7:
            c.append(Op("s_add_u32 m0, m0, 2048", "S"))
            c.append(Op(f"s_add_u32 s{S_XOFF}, s{S_XOFF}, s{S_XSTA if i % 2 == 0 else S_XSTB}", "S"))
        else:
            c.append(Op(f"s_add_u32 s{S_XOFF}, s{S_XOFF}, s{S_XWRAP}", "S"))
            c.append(Op(f"s_add_u32 s{S_XWR}, s{S_XWR}, 32768", "S"))
            c.append(Op(f"s_cmp_ge_u32 s{S_XWR}, {LDS_TOTAL}", "S"))
            c.append(Op(f"s_cselect_b32 s{S_XWR}, s{S_XWAVE}, s{S_XWR}", "S"))
    return c


def dma_w():
    c = [Op(f"s_mov_b32 m0, s{S_WWR}", "S")]
    for i in range(8):
        c.append(Op(f"buffer_load_dwordx4 v{V_DW}, {sr(SRD_B,4)}, s{S_WOFF} offen lds", "M"))
        if i % 2 == 0:
            c.append(Op("s_add_u32 m0, m0, 2048", "S"))
            c.append(Op(f"s_add_u32 s{S_WOFF}, s{S_WOFF}, {4*8192}", "S"))
        else:
            if i < 7:
                c.append(Op("s_add_u32 m0, m0, 6144", "S"))
            c.append(Op(f"s_add_u32 s{S_WOFF}, s{S_WOFF}, {12*8192}", "S"))
        if i == 7:
            c.append(Op(f"s_xor_b32 s{S_WWR}, s{S_WWR}, 32768", "S"))
    return c


HT = "DFDMDFDF" * 6 + "FMFFFFFM" + "FFFFFFFX"


def g_step(A, typ, first, cfg):
    lastD = max(i for i, c in enumerate(HT) if c == "D")
    va = [Op(f"v_add_u32 v{V_XR0}, s{S_XRD}, v{V_XL0}", "V", min_gap=lastD + 1),
          Op(f"v_add_u32 v{V_XR1}, s{S_XRD}, v{V_XL1}", "V", min_gap=lastD + 1)]
    va += [Op(f"v_xor_b32 v{V_WR+i}, 0x8000, v{V_WR+i}", "V", min_gap=lastD + 1) for i in range(8)]
    tch = [Op(f"buffer_load_dword v{V_TCH+1}, v{V_TCH}, {sr(SRD_WS,4)}, s{S_TOFF} offen", "M")]
    ht1 = HT[:60] + "M" + HT[61:]
    out, _ = schedule(g_mfmas(typ, 0, first), ht1, g_reads(1, 1), dma_x() + tch, va,
                      {63: ["s_waitcnt vmcnt(9) lgkmcnt(0)", "s_barrier"]})
    A.emit_list(out)
    ch = [Op(f"s_add_u32 s{S_XRD}, s{S_XRD}, 32768", "S"), Op(f"s_cmp_ge_u32 s{S_XRD}, {LDS_TOTAL}", "S"),
          Op(f"s_cselect_b32 s{S_XRD}, {LDS_X0}, s{S_XRD}", "S")]
    ch = ch + dma_w() + [Op(f"s_sub_u32 s{S_LEFT}, s{S_LEFT}, 1", "S"), Op(f"s_cmp_lg_u32 s{S_LEFT}, 0", "S")]
    out, _ = schedule(g_mfmas(typ, 1, False), HT, g_reads(0, 0), ch, [], {63: ["s_waitcnt lgkmcnt(0)"]})
    A.emit_list(out)


KVFL = "sc1"


def kv_store(c, srd=None):
    srd = SRD_E if srd is None else srd
    ops = []
    if c and c % 4 == 0:
        ops.append(Op(f"s_add_u32 s{S_OB}, s{S_OB}, s{S_OSTA if (c // 4) % 2 == 1 else S_OSTB}", "S"))
    ops.append(Op(f"buffer_store_dwordx4 {vr(V_PK+4*c,4)}, v{V_LANE16}, {sr(srd,4)}, s{S_OB} offen offset:{(c%4)*1024} {KVFL}", "M"))
    return ops


def g_cvt(A, typ, n_early):
    for c in range(32):
        hi, lo = c // 4, c % 4
        if typ == "KQ":
            o, p = hi, lo
            regs = [acc(2 * p, o) + r for r in range(4)] + [acc(2 * p + 1, o) + r for r in range(4)]
        else:
            p, o = hi >> 1, (hi & 1) * 4 + lo
            regs = [acc(o, 2 * p) + r for r in range(4)] + [acc(o, 2 * p + 1) + r for r in range(4)]
        t = V_CV + (c % 2) * 8
        for i, r in enumerate(regs):
            A(f"v_accvgpr_read_b32 v{t+i}, a{r}")
        for i in range(4):
            A(f"v_cvt_pk_bf16_f32 v{V_PK+4*c+i}, v{t+2*i}, v{t+2*i+1}")
        if n_early == 32:
            for o_ in kv_store(c):
                A(o_.text)
        elif c % 4 == 3 and c // 4 < n_early:
            for o_ in kv_store(c // 4):
                A(o_.text)


PF = [("v", 64), ("a", 176)]


def pfr(s, off, n):
    k, b = PF[s]
    return vr(b + off, n, k)


def p_mfmas(s, first):
    out = []
    for db in range(8):
        for tb in range(4):
            a = ar((db * 4 + tb) * 4, 4)
            out.append(f"v_mfma_f32_16x16x32_bf16 {a}, {pfr(s,16+4*db,4)}, {pfr(s,4*tb,4)}, {'0' if first else a}")
    for u in range(3):
        for tb in range(4):
            a = ar(128 + (u * 4 + tb) * 4, 4)
            w, x = pfr(s, 48 + 4 * u, 4), pfr(s, 4 * tb, 4)
            out.append(f"v_mfma_f32_16x16x32_bf16 {a}, {w}, {x}, {'0' if first else a}" if u < 2
                       else f"v_mfma_f32_16x16x32_bf16 {a}, {x}, {w}, {'0' if first else a}")
    return out


def p_reads(s, hh):
    out = [f"ds_read_b128 {pfr(s,4*tb,4)}, v{V_XR0+hh} offset:{tb*2048}" for tb in range(4)]
    for b in range(8):
        for e in range(2):
            out.append(f"ds_read_b64_tr_b16 {pfr(s,16+4*b+2*e,2)}, v{V_WR+b} offset:{hh*16384+e*2048}")
    for u in range(3):
        for e in range(2):
            out.append(f"ds_read_b64_tr_b16 {pfr(s,48+4*u+2*e,2)}, v{V_PWR+u} offset:{hh*8192+e*2048}")
    return out


def p_addr(T):
    base = LDS_X0 + (T % 3) * 32768
    return ([f"v_add_u32 v{V_XR0+h}, {base}, v{V_PXL+h}" for h in range(2)] +
            [f"v_add_u32 v{V_PWR+u}, {base}, v{V_PWL+u}" for u in range(3)])


def merge_chain(dmas, stores):
    out = []
    k = 0
    stores = list(stores)
    for o in dmas:
        out.append(o)
        if o.kind == "M":
            k += 1
            if k % 3 == 2 and stores:
                out += stores.pop(0)
    for s in stores:
        out += s
    return out


PT = "DDM" * 11 + "DDFDDFFFFFX"


def p_step(A, T, st1, st2, cfg):
    lastD = max(i for i, c in enumerate(PT) if c == "D")
    last = T == 22
    ch = merge_chain(dma_x() if T + 2 <= 22 else [], [kv_store(c) for c in st1])
    n_young = sum(1 for o in ch if o.kind == "M")
    va = []
    if not last:
        va = [Op(t, "V", min_gap=lastD + 1) for t in p_addr(T + 1)]
        va += [Op(f"v_xor_b32 v{V_WR+i}, 0x8000, v{V_WR+i}", "V", min_gap=lastD + 1) for i in range(8)]
    out, left = schedule(p_mfmas(0, T == 16), PT, p_reads(1, 1), ch, va, {}, strict=False)
    A.emit_list(out)
    emit_left(A, left)
    A(f"s_waitcnt vmcnt({n_young}) lgkmcnt(0)")
    A("s_barrier")
    if T == 21:
        signal(A, S_GHEAD, grp=0)
    if last:
        poll_issue(A, S_HEAD, F_KV, 8)
    ch = merge_chain(dma_w() if T + 2 <= 22 else [], [kv_store(c) for c in st2])
    out, left = schedule(p_mfmas(1, False), PT, [] if last else p_reads(0, 0), ch, [], {}, strict=False)
    A.emit_list(out)
    emit_left(A, left)
    A("s_waitcnt lgkmcnt(0)")


def p_epilogue_a(A):
    gi = 0
    for tb in range(4):
        t = 64 + gi * 12
        gi += 1
        lo, hi = 128 + tb * 4, 128 + (4 + tb) * 4
        for r in range(4):
            A(f"v_accvgpr_read_b32 v{t+r}, a{lo+r}")
            A(f"v_accvgpr_read_b32 v{t+4+r}, a{hi+r}")
        for r in range(4):
            A(f"v_mul_f32 v{t+r}, s{S_SCA}, v{t+r}")
            A(f"v_mul_f32 v{t+4+r}, v{V_SCHI}, v{t+4+r}")
        for i in range(4):
            A(f"v_cvt_pk_bf16_f32 v{t+8+i}, v{t+2*i}, v{t+2*i+1}")
        A(f"buffer_store_dwordx4 {vr(t+8,4)}, v{V_OA}, {sr(SRD_WS,4)}, s{S_OBQK} offen offset:{(tb>>1)*2048+(tb&1)*128} sc1")
    for p in range(2):
        t = 128 + p * 12
        lo, hi = 128 + (8 + 2 * p) * 4, 128 + (8 + 2 * p + 1) * 4
        for r in range(4):
            A(f"v_accvgpr_read_b32 v{t+r}, a{lo+r}")
            A(f"v_accvgpr_read_b32 v{t+4+r}, a{hi+r}")
        for r in range(8):
            A(f"v_fma_f32 v{t+r}, v{t+r}, v{V_MULHI}, v{V_ADDHI}")
        for i in range(4):
            A(f"v_cvt_pk_bf16_f32 v{t+8+i}, v{t+2*i}, v{t+2*i+1}")
        A(f"buffer_store_dwordx4 {vr(t+8,4)}, v{V_OAV}, {sr(SRD_WS,4)}, s{S_OBV} offen offset:{p*2048} sc1")


def p_epilogue_q(A):
    gi = 0
    for tb in range(4):
        for p in range(4):
            t = 160 + (gi % 8) * 12
            gi += 1
            lo, hi = ((2 * p) * 4 + tb) * 4, ((2 * p + 1) * 4 + tb) * 4
            for r in range(4):
                A(f"v_accvgpr_read_b32 v{t+r}, a{lo+r}")
                A(f"v_accvgpr_read_b32 v{t+4+r}, a{hi+r}")
            for r in range(0, 8, 2):
                A(f"v_pk_mul_f32 {vr(t+r,2)}, {vr(t+r,2)}, {sr(S_SC,2)}")
            for i in range(4):
                A(f"v_cvt_pk_bf16_f32 v{t+8+i}, v{t+2*i}, v{t+2*i+1}")
            A(f"ds_write_b128 v{V_XQW}, {vr(t+8,4)} offset:{tb*8192+p*1024}")


def s_reg(buf, kb, qb):
    return VS[buf] + (kb * 2 + qb) * 4


def c_reg(kb, qb):
    return VC + (kb * 2 + qb) * 4


def o_reg(db, qb):
    return VO + (db * 2 + qb) * 4


def qk_mfmas(buf):
    out = []
    for dg in range(8):
        for kb in range(2):
            for qb in range(2):
                d = vr(s_reg(buf, kb, qb), 4)
                c = vr(c_reg(kb, qb), 4) if dg == 0 else d
                out.append(f"v_mfma_f32_16x16x32_bf16 {d}, {ar(AK+(kb*8+dg)*4,4)}, {ar(AQ+(qb*8+dg)*4,4)}, {c}")
    return out


def pv_mfmas(pbuf):
    out = []
    for db in range(16):
        for qb in range(2):
            d = vr(o_reg(db, qb), 4)
            out.append(f"v_mfma_f32_16x16x32_bf16 {d}, {ar(AV+db*4,4)}, {vr(VP[pbuf]+qb*4,4)}, {d}")
    return out


def k_reads(vbase, off):
    return [f"ds_read_b128 {ar(AK+(kb*8+dg)*4,4)}, v{vbase} offset:{off+(kb*8+dg)*1024}"
            for dg in range(8) for kb in range(2)]


def v_reads(vbase, off):
    return [f"ds_read_b128 {ar(AV+db*4,4)}, v{vbase} offset:{off+db*1024}" for db in range(16)]


def softmax_oplist(buf, pbuf, with_l=True):
    ops = []
    ladd = []
    if with_l:
        ladd = [Op(f"v_add_f32 v{V_L+qb}, v{V_L+qb}, v{V_LT+qb}", "V") for qb in range(2)]
        ops += ladd
    lastsum = []
    for qb in range(2):
        prev = None
        for kb in range(2):
            s = s_reg(buf, kb, qb)
            e = VE + (kb * 2 + qb) * 4
            ex = [Op(f"v_exp_f32 v{e+r}, v{s+r}", "E") for r in range(4)]
            ops += ex
            ops.append(Op(f"v_cvt_pk_bf16_f32 v{VP[pbuf]+qb*4+kb*2}, v{e}, v{e+1}", "V", [ex[0], ex[1]]))
            ops.append(Op(f"v_cvt_pk_bf16_f32 v{VP[pbuf]+qb*4+kb*2+1}, v{e+2}, v{e+3}", "V", [ex[2], ex[3]]))
            if kb == 0:
                prev = Op(f"v_add_f32 v{V_LT+qb}, v{e}, v{e+1}", "V", [ex[0], ex[1]] + ([ladd[qb]] if with_l else []))
                ops.append(prev)
                rest = [2, 3]
            else:
                rest = [0, 1, 2, 3]
            for r in rest:
                prev = Op(f"v_add_f32 v{V_LT+qb}, v{V_LT+qb}, v{e+r}", "V", [ex[r], prev])
                ops.append(prev)
        lastsum.append(prev)
    mx = Op(f"v_max_f32 v{V_T+8}, v{V_LT}, v{V_LT+1}", "V", lastsum)
    ops.append(mx)
    ops.append(Op(f"v_cmp_ngt_f32 vcc, 2.0, v{V_T+8}", "V", [mx]))
    return ops


def softmax_linear(buf, pbuf):
    ops = softmax_oplist(buf, pbuf, with_l=False)
    return [o.text for o in ops if o.kind == "E"] + ["s_nop 0"] + [o.text for o in ops if o.kind == "V"]


def kv_dma(soff, i):
    return Op(f"buffer_load_dwordx4 v{V_DKV}, {sr(SRD_WS,4)}, s{soff} offen offset:{i*1024} sc1 lds", "M")


def dma_chain(kdst, vdst, vmin):
    c = [Op(f"s_cmp_lt_u32 s{S_KOFF}, s{S_KLIM}", "S"), Op(f"s_cselect_b32 s{S_TMP}, s{S_KOFF}, s{S_HUGE}", "S"),
         Op(kdst, "S"), Op(f"s_add_u32 s{S_KOFF}, s{S_KOFF}, 16384", "S")]
    c += [kv_dma(S_TMP, i) for i in range(4)]
    c += [Op(f"s_cmp_lt_u32 s{S_VOFF}, s{S_VLIM}", "S", min_gap=vmin),
          Op(f"s_cselect_b32 s{S_TMP+1}, s{S_VOFF}, s{S_HUGE}", "S"),
          Op(vdst, "S"), Op(f"s_add_u32 s{S_VOFF}, s{S_VOFF}, 16384", "S")]
    c += [kv_dma(S_TMP + 1, i) for i in range(4)]
    return c


def kv_tile_chain(which, stage):
    off = S_KOFF if which == "K" else S_VOFF
    c = [Op(f"s_add_u32 m0, s{S_B0}, {stage*32768 + (0 if which == 'K' else 16384)}", "S")]
    c += [kv_dma(off, i) for i in range(4)]
    c.append(Op(f"s_add_u32 s{off}, s{off}, 16384", "S"))
    return c


def c_update(A, tile_sgpr):
    lool, lfull, lback = A.newlabel("LC"), A.newlabel("LC"), A.newlabel("LC")
    o = [f"{lool}:", f"s_cmp_eq_u32 s{tile_sgpr}, s{S_TW}", f"s_cbranch_scc0 {lfull}"]
    for r in range(4):
        o.append(f"v_add_f32 v{c_reg(0,0)+r}, v{V_CB}, v{V_DM+r}")
        o.append(f"v_add_f32 v{c_reg(1,1)+r}, v{V_CB+1}, v{V_DM+r}")
        o.append(f"v_mov_b32 v{c_reg(1,0)+r}, {NEG_INF:#x}")
    o.append(f"s_branch {lback}")
    o.append(f"{lfull}:")
    for r in range(16):
        o.append(f"v_mov_b32 v{VC+r}, {NEG_INF:#x}")
    o.append(f"s_branch {lback}")
    OOL.append(o)
    return [f"s_cmp_ge_u32 s{tile_sgpr}, s{S_TW}", f"s_cbranch_scc1 {lool}\n{lback}:"]


def rare_check(A, sb, pref="LB_RARE"):
    lool, lback = A.newlabel("LR"), A.newlabel("LR")
    OOL.append([f"{lool}:", f"s_call_b64 {sr(S_RET,2)}, {pref}{sb}", f"s_branch {lback}"])
    return f"s_cbranch_vccnz {lool}\n{lback}:"


PH = "DDE" * 8 + "MEMEMEMX"


def b_iter(A, par, cfg, do_sm=True, do_qk=True, last=None):
    pb_cur, pb_nxt = par, 1 - par
    sb_sm, sb_qk = 1 - par, par
    A("s_waitcnt vmcnt(16) lgkmcnt(0)" if do_qk else "s_waitcnt lgkmcnt(0)")
    A("s_barrier")
    if do_sm:
        sm = softmax_oplist(sb_sm, pb_nxt)
        for o in sm:
            if o.kind == "E":
                o.min_gap = 2
    else:
        sm = [Op(f"v_add_f32 v{V_L+qb}, v{V_L+qb}, v{V_LT+qb}", "V") for qb in range(2)]
    vrd = v_reads(V_RB0 if par == 0 else V_RB1, 49152 if par == 0 else 16384)
    if do_qk:
        m = pv_mfmas(pb_cur) + qk_mfmas(sb_qk)
        ds = k_reads(V_RB1, 0 if par == 0 else 32768) + vrd
        cu = c_update(A, S_T2)
        chain = [Op(cu[0], "S"), Op(cu[1], "S"), Op(f"s_add_u32 s{S_T2}, s{S_T2}, 1", "S")]
        if par == 0:
            chain += dma_chain(f"s_add_u32 m0, s{S_B0}, 32768", f"s_add_u32 m0, s{S_B0}, 16384", 31)
        else:
            chain += dma_chain(f"s_xor_b32 m0, s{S_B0}, 65536", f"s_add_u32 m0, s{S_B0}, 49152", 31)
            sm += [Op(f"v_xor_b32 v{V_RB0}, 0x10000, v{V_RB0}", "V", min_gap=56),
                   Op(f"v_xor_b32 v{V_RB1}, 0x10000, v{V_RB1}", "V", min_gap=56)]
            chain[-4:-4] = [Op(f"s_xor_b32 s{S_B0}, s{S_B0}, 65536", "S"), Op(f"s_sub_u32 s{S_LEFT}, s{S_LEFT}, 1", "S")]
        fixed = {31: ["s_waitcnt lgkmcnt(0)"], 63: [rare_check(A, sb_sm)]}
        out, left = schedule(m, PH + PH, ds, chain, sm, fixed)
        A.emit_list(out)
        return
    m = pv_mfmas(pb_cur)
    if do_sm:
        out, left = schedule(m, "EE" + "ED" * 15, vrd, [], sm, {}, strict=False)
        A.emit_list(out)
        A("s_nop 0")
        emit_left(A, left)
        A(rare_check(A, sb_sm))
    else:
        out, left = schedule(m, "E" + "M" * 31, [], last, sm, {}, strict=False)
        A.emit_list(out)
        emit_left(A, left)


def xquad(A, op, v, t):
    A(f"v_mov_b32 v{t}, v{v}")
    A("s_nop 1")
    A(f"v_permlane32_swap_b32 v{t}, v{v}")
    A("s_nop 1")
    A(f"{op} v{v}, v{v}, v{t}")
    A(f"v_mov_b32 v{t}, v{v}")
    A("s_nop 1")
    A(f"v_permlane16_swap_b32 v{t}, v{v}")
    A("s_nop 1")
    A(f"{op} v{v}, v{v}, v{t}")


def b_rare(A, sb):
    A.label(f"LB_RARE{sb}")
    A("s_nop 7")
    A("s_nop 7")
    so = 1 - sb
    for qb in range(2):
        d = V_T + qb
        a, b = s_reg(sb, 0, qb), s_reg(sb, 1, qb)
        A(f"v_max3_f32 v{d}, v{a}, v{a+1}, v{a+2}")
        A(f"v_max3_f32 v{d}, v{d}, v{a+3}, v{b}")
        A(f"v_max3_f32 v{d}, v{d}, v{b+1}, v{b+2}")
        A(f"v_max_f32 v{d}, v{d}, v{b+3}")
        xquad(A, "v_max_f32", d, V_T + 4)
        A(f"v_add_f32 v{d}, {f32bits(BIAS):#x}, v{d}")
        A(f"v_max_f32 v{d}, s{S_FLOOR}, v{d}")
        A(f"v_max_f32 v{V_T+2+qb}, 0, v{d}")
        A(f"v_exp_f32 v{V_T+2+qb}, -v{V_T+2+qb}")
        for kb in range(2):
            for r in range(4):
                A(f"v_sub_f32 v{s_reg(sb,kb,qb)+r}, v{s_reg(sb,kb,qb)+r}, v{d}")
                A(f"v_sub_f32 v{s_reg(so,kb,qb)+r}, v{s_reg(so,kb,qb)+r}, v{d}")
                A(f"v_sub_f32 v{c_reg(kb,qb)+r}, v{c_reg(kb,qb)+r}, v{d}")
        A(f"v_sub_f32 v{V_CB+qb}, v{V_CB+qb}, v{d}")
        A(f"v_mul_f32 v{V_L+qb}, v{V_L+qb}, v{V_T+2+qb}")
    lskip = A.newlabel("LRS")
    A(f"s_cmp_eq_u32 s{S_FIRST}, 1")
    A(f"s_cbranch_scc1 {lskip}")
    for db in range(16):
        for qb in range(2):
            for r in range(4):
                A(f"v_mul_f32 v{o_reg(db,qb)+r}, v{o_reg(db,qb)+r}, v{V_T+2+qb}")
    A.label(lskip)
    A(f"s_mov_b32 s{S_FIRST}, 0")
    A(f"s_mov_b32 s{S_FLOOR}, 0")
    for o in softmax_linear(sb, sb):
        A(o)
    A("s_nop 1")
    A(f"s_setpc_b64 {sr(S_RET,2)}")


WO_SLOT = [4, 0, 1, 2, 3, 4, 0, 1]
VF = 128
VCTX = 64


def wo_chain(chunk, slot):
    c = [Op(f"s_add_u32 s{S_TMP+2}, s{S_WOOFF}, {chunk*32*896}", "S"), Op(f"s_add_u32 m0, s{S_WOW}, {slot*32768}", "S")]
    for i in range(7):
        if i == 4:
            c.append(Op("s_add_u32 m0, m0, 4096", "S"))
        c.append(Op(f"buffer_load_dwordx4 v{V_WOD+i}, {sr(SRD_B,4)}, s{S_TMP+2} offen offset:{(i%4)*1024} lds", "M"))
    return c


def wo_reads(half, fset):
    out = []
    for i in range(14):
        b = 14 * half + i
        f = VF + (fset * 14 + i) * 4
        for e in range(2):
            out.append(f"ds_read_b64_tr_b16 {vr(f+2*e,2)}, v{V_WOR+(b&3)} offset:{(b>>2)*128+e*16*896}")
    return out


def wo_mfmas(half, fset, dg):
    out = []
    for i in range(14):
        b = 14 * half + i
        f = VF + (fset * 14 + i) * 4
        for qb in range(2):
            a = (b * 2 + qb) * 4
            c = "0" if dg == 0 else ar(a, 4)
            out.append(f"v_mfma_f32_16x16x32_bf16 {ar(a,4)}, {vr(f,4)}, {vr(VCTX+(dg*2+qb)*4,4)}, {c}")
    return out


def b_epilogue(A, cfg):
    A("s_nop 7")
    for qb in range(2):
        xquad(A, "v_add_f32", V_L + qb, V_T + 4)
        A(f"v_rcp_f32 v{V_T+2*qb}, v{V_L+qb}")
        A("s_nop 0")
        A(f"v_mov_b32 v{V_T+2*qb+1}, v{V_T+2*qb}")
    for dg in range(8):
        for qb in range(2):
            for a in range(2):
                o = o_reg(2 * dg + a, qb)
                A(f"v_pk_mul_f32 {vr(o,2)}, {vr(o,2)}, {vr(V_T+2*qb,2)}")
                A(f"v_pk_mul_f32 {vr(o+2,2)}, {vr(o+2,2)}, {vr(V_T+2*qb,2)}")
            for a in range(2):
                o = o_reg(2 * dg + a, qb)
                c = VCTX + (dg * 2 + qb) * 4 + 2 * a
                A(f"v_cvt_pk_bf16_f32 v{c}, v{o}, v{o+1}")
                A(f"v_cvt_pk_bf16_f32 v{c+1}, v{o+2}, v{o+3}")
    A("s_waitcnt vmcnt(28)")
    A("s_barrier")
    A.emit_list(wo_reads(0, 0))
    W = {6: ["s_waitcnt lgkmcnt(14)"], 13: ["s_waitcnt lgkmcnt(14)"], 20: ["s_waitcnt lgkmcnt(14)"]}
    A("s_waitcnt lgkmcnt(0)")
    for dg in range(8):
        out, _ = schedule(wo_mfmas(0, 0, dg), "D" * 28, wo_reads(1, 1), [], [], W)
        A.emit_list(out)
        if dg < 7:
            delta = (WO_SLOT[dg + 1] - WO_SLOT[dg]) * 32768
            for i in range(4):
                A(f"v_add_u32 v{V_WOR+i}, {delta & 0xffffffff:#x}, v{V_WOR+i}")
            issued = min(7, max(4, dg + 3))
            young = max(0, issued - (dg + 1))
            A(f"s_waitcnt vmcnt({7*young}) lgkmcnt(14)")
            A("s_barrier")
            ch = wo_chain(dg + 4, WO_SLOT[dg + 4]) if 5 <= dg + 4 <= 7 else []
            emit_chain(A, ch)
            out, _ = schedule(wo_mfmas(1, 1, dg), "D" * 28, wo_reads(0, 0), [], [], W)
            A.emit_list(out)
            A("s_waitcnt lgkmcnt(14)")
        else:
            A("s_waitcnt lgkmcnt(14)")
            m = wo_mfmas(1, 1, dg)
            A.emit_list(m[:12])
            A("s_waitcnt lgkmcnt(0)")
            A.emit_list(m[12:])
    store_partials(A, 2, cfg)


def store_partials(A, nqb, cfg):
    fl = "sc1"
    A("s_nop 7")
    gi = 0
    for qb in range(nqb):
        for p in range(14):
            t = 128 + (gi % 8) * 12
            gi += 1
            regs = [((2 * p) * nqb + qb) * 4 + r for r in range(4)] + [((2 * p + 1) * nqb + qb) * 4 + r for r in range(4)]
            for i, r in enumerate(regs):
                A(f"v_accvgpr_read_b32 v{t+i}, a{r}")
            for i in range(4):
                A(f"v_cvt_pk_bf16_f32 v{t+8+i}, v{t+2*i}, v{t+2*i+1}")
            off = (qb * 14 + p) * 1024
            if off % 4096 == 0:
                A(f"s_add_u32 s{S_TMP}, s{S_POFF}, {off}")
            A(f"buffer_store_dwordx4 {vr(t+8,4)}, v{V_LANE16}, {sr(SRD_WS,4)}, s{S_TMP} offen offset:{off%4096} {fl}")


def wo_lane_setup(A):
    T = V_T
    for i in range(7):
        A(f"v_add_u32 v{T}, {64*i}, v0")
        A(f"v_mul_u32_u24 v{T+1}, 1171, v{T}")
        A(f"v_lshrrev_b32 v{T+1}, 16, v{T+1}")
        A(f"v_mul_u32_u24 v{T+2}, 56, v{T+1}")
        A(f"v_sub_u32 v{T+2}, v{T}, v{T+2}")
        A(f"v_bfe_u32 v{T+3}, v{T+1}, 1, 2")
        A(f"v_lshlrev_b32 v{T+3}, 1, v{T+3}")
        A(f"v_xor_b32 v{T+2}, v{T+2}, v{T+3}")
        A(f"v_mul_u32_u24 v{T+1}, 896, v{T+1}")
        A(f"v_lshl_add_u32 v{T+1}, v{T+2}, 4, v{T+1}")
        A(f"v_subrev_u32 v{V_WOD+i}, {(i%4)*1024}, v{T+1}")


def b_setup_kv(A):
    T = S_TMP
    A(f"s_lshl_b32 s{S_N}, s{S_QB}, 2")
    A(f"s_add_u32 s{S_TW}, s{S_N}, s{S_WAVE}")
    A(f"s_add_u32 s{S_N}, s{S_N}, 4")
    A(f"s_lshl_b32 s{S_KOFF}, s{S_HEAD}, 20")
    A(f"s_add_u32 s{S_VOFF}, s{S_KOFF}, {WS_V}")
    A(f"s_lshl_b32 s{T}, s{S_N}, 14")
    A(f"s_add_u32 s{S_KLIM}, s{S_KOFF}, s{T}")
    A(f"s_add_u32 s{S_VLIM}, s{S_VOFF}, s{T}")
    A(f"s_lshl_b32 s{S_B0}, s{S_WAVE}, 12")
    A(f"v_add_u32 v{V_DKV}, s{S_B0}, v{V_LANE16}")
    A(f"s_mov_b32 s{S_SC}, {f32bits(SCALE_B):#x}")
    A(f"s_mov_b32 s{S_SC+1}, {f32bits(SCALE_B):#x}")


def b_setup_rest(A):
    T = S_TMP
    set_srd(A, SRD_B, P_WOB, 4096 * 448 * 2)
    A(f"v_and_b32 v{V_T}, 15, v0")
    A(f"v_lshrrev_b32 v{V_T+1}, 4, v0")
    A(f"v_lshlrev_b32 v{V_T+2}, 2, v{V_T+1}")
    A(f"v_mov_b32 v{V_T+4}, {NEG_INF:#x}")
    for r in range(4):
        A(f"v_add_u32 v{V_T+3}, {r}, v{V_T+2}")
        A(f"v_cmp_gt_u32 vcc, v{V_T+3}, v{V_T}")
        A("s_nop 1")
        A(f"v_cndmask_b32 v{V_DM+r}, 0, v{V_T+4}, vcc")
    A(f"v_bfe_u32 v{V_T+3}, v0, 2, 2")
    A(f"v_add_u32 v{V_T+3}, v{V_T+3}, v{V_T+2}")
    A(f"v_bfe_u32 v{V_T+5}, v{V_T+3}, 1, 2")
    A(f"v_mul_u32_u24 v{V_T+3}, 896, v{V_T+3}")
    A(f"v_and_b32 v{V_T+6}, 3, v0")
    A(f"v_lshl_add_u32 v{V_T+3}, v{V_T+6}, 3, v{V_T+3}")
    A(f"v_add_u32 v{V_T+3}, {WO_SLOT[0]*32768}, v{V_T+3}")
    for b in range(4):
        A(f"v_xor_b32 v{V_T+6}, {b}, v{V_T+5}")
        A(f"v_lshl_add_u32 v{V_WOR+b}, v{V_T+6}, 5, v{V_T+3}")
    wo_lane_setup(A)
    A(f"s_mul_i32 s{S_WOOFF}, s{S_HEAD}, {256*896}")
    A(f"s_mul_i32 s{S_WOW}, s{S_WAVE}, {8*896}")
    A(f"s_add_u32 s{S_WOOFF}, s{S_WOOFF}, s{S_WOW}")
    A(f"s_add_u32 s{S_POFF}, s{S_HEAD}, 4")
    A(f"s_mul_i32 s{S_POFF}, s{S_POFF}, {P_SLOT}")
    A(f"s_lshl_b32 s{T}, s{S_QB}, 2")
    A(f"s_add_u32 s{T}, s{T}, s{S_WAVE}")
    A(f"s_mul_i32 s{T}, s{T}, {2*14*1024}")
    A(f"s_add_u32 s{S_POFF}, s{S_POFF}, s{T}")
    A(f"s_add_u32 s{S_POFF}, s{S_POFF}, {WS_P}")
    A(f"s_lshl_b32 s{S_RFLAG}, s{S_QB}, 8")
    A(f"s_lshl_b32 s{T}, s{S_HEAD}, 2")
    A(f"s_add_u32 s{S_RFLAG}, s{S_RFLAG}, s{T}")
    A(f"s_add_u32 s{S_RFLAG}, s{S_RFLAG}, {F_ROW}")
    A(f"s_mov_b32 s{S_HUGE}, {HUGE}")
    A(f"s_mov_b32 s{S_FLOOR}, {NEG_INF:#x}")
    A(f"s_mov_b32 s{S_FIRST}, 1")
    for r in range(16):
        A(f"v_mov_b32 v{VC+r}, 0")
    for r in (V_CB, V_CB + 1, V_L, V_L + 1, V_LT, V_LT + 1):
        A(f"v_mov_b32 v{r}, 0")
    A(f"v_mov_b32 v{V_RB0}, v{V_LANE16}")
    A(f"v_add_u32 v{V_RB1}, 0x10000, v{V_LANE16}")
    A(f"s_mov_b32 s{S_T2}, 0")
    A.emit_list(c_update(A, S_T2))


def b_main(A, cfg):
    T = S_TMP
    A("s_waitcnt vmcnt(12) lgkmcnt(0)")
    A("s_barrier")
    if not cfg.get("stamp_lp"):
        stamp(A, cfg, 3)
    for i in range(16):
        A(f"ds_read_b128 {ar(AQ+i*4,4)}, v{V_XQR} offset:{i*1024}")
    A.emit_list(k_reads(V_RB0, 0))
    zero = [Op(f"v_mov_b32 v{VO+r}, 0", "V") for r in range(128)]
    for z in zero[:24]:
        A(z.text)
    A("s_waitcnt lgkmcnt(0)")
    out, left = schedule(qk_mfmas(0), "DF" * 16, v_reads(V_RB0, 16384), [], zero[24:72], {})
    A.emit_list(out)
    A.emit_list(k_reads(V_RB0, 32768))
    A(f"s_mov_b32 s{S_T2}, 1")
    A.emit_list(c_update(A, S_T2))
    A("s_waitcnt vmcnt(0) lgkmcnt(0)")
    A("s_barrier")
    A(f"s_lshl_b32 s{T+4}, s{S_HEAD}, 6")
    A(f"s_lshl_b32 s{T+5}, s{S_QB}, 2")
    A(f"s_add_u32 s{T+4}, s{T+4}, s{T+5}")
    A(f"s_add_u32 s{T+4}, s{T+4}, {F_AQ}")
    signal(A, T + 4)
    signal(A, S_GHEAD, grp=1)
    ch = kv_tile_chain("K", 3) + kv_tile_chain("V", 3)
    ch += [Op(f"s_cmp_lt_u32 s{S_KOFF}, s{S_KLIM}", "S"), Op(f"s_cselect_b32 s{T}, s{S_KOFF}, s{S_HUGE}", "S"),
           Op(f"s_mov_b32 m0, s{S_B0}", "S"), Op(f"s_add_u32 s{S_KOFF}, s{S_KOFF}, 16384", "S")]
    ch += [kv_dma(T, i) for i in range(4)]
    out, left = schedule(qk_mfmas(1), "FM" * 16, [], ch, zero[72:], {}, strict=False)
    A.emit_list(out)
    emit_left(A, left)
    A(f"s_call_b64 {sr(S_RET,2)}, LB_RARE0")
    A(f"s_mov_b32 s{S_T2}, 2")
    A(f"s_lshr_b32 s{S_ITEM}, s{S_N}, 1")
    A(f"s_sub_u32 s{S_ITEM}, s{S_ITEM}, 1")
    A(f"s_cmp_eq_u32 s{S_GRP}, 0")
    A(f"s_cselect_b32 s{S_LEFT}, 10, s{S_ITEM}")
    A(f"s_cselect_b32 s{S_EV}, 0, 2")
    stamp(A, cfg, 4)
    A.label("LB_LOOP")
    b_iter(A, 0, cfg)
    b_iter(A, 1, cfg)
    A(f"s_cmp_lg_u32 s{S_LEFT}, 0")
    A("s_cbranch_scc1 LB_LOOP")
    A(f"s_cmp_eq_u32 s{S_EV}, 2")
    A("s_cbranch_scc1 LB_DONE")
    A(f"s_cmp_eq_u32 s{S_EV}, 1")
    A("s_cbranch_scc1 LB_EV1")
    A(f"s_mov_b32 s{S_EV}, 1")
    A(f"s_mov_b32 s{S_LEFT}, 2")
    poll_issue(A, S_HEAD, F_KV + 4096, 8)
    A("s_branch LB_LOOP")
    A.label("LB_EV1")
    A(f"s_mov_b32 s{S_EV}, 2")
    A(f"s_sub_u32 s{S_LEFT}, s{S_ITEM}, 12")
    poll_test(A)
    A("s_cbranch_scc1 LB_LOOP")
    poll_wait(A, True)
    A("s_branch LB_LOOP")
    A.label("LB_DONE")
    A("s_waitcnt vmcnt(0)")
    emit_chain(A, wo_chain(0, WO_SLOT[0]))
    b_iter(A, 0, cfg, do_qk=False)
    last = []
    for c in range(1, 5):
        last += wo_chain(c, WO_SLOT[c])
    b_iter(A, 1, cfg, do_sm=False, do_qk=False, last=last)
    stamp(A, cfg, 5)
    b_epilogue(A, cfg)


AS = [64, 96]
AC = 128
AO = 160
AP = [192, 208]
AE = 224
QA_, KA_, VA_ = 0, 16, 48
XB = 114688
V_XW = 2
V_OR = 14


def a_qk(buf, slot):
    out = []
    for qb in range(2):
        d = vr(AS[buf] + qb * 16, 16)
        out.append(f"v_mfma_f32_32x32x16_bf16 {d}, {ar(KA_+slot*8,4)}, {ar(QA_+qb*8,4)}, {vr(AC+qb*16,16)}")
    for qb in range(2):
        d = vr(AS[buf] + qb * 16, 16)
        out.append(f"v_mfma_f32_32x32x16_bf16 {d}, {ar(KA_+slot*8+4,4)}, {ar(QA_+qb*8+4,4)}, {d}")
    return out


def a_pv(pbuf, slot):
    out = []
    for g in range(2):
        for qb in range(2):
            d = vr(AO + qb * 16, 16)
            out.append(f"v_mfma_f32_32x32x16_bf16 {d}, {ar(VA_+slot*8+g*4,4)}, {vr(AP[pbuf]+qb*8+g*4,4)}, {d}")
    return out


A_DELAY = 3


def a_softmax(buf):
    s, p = AS[buf], AP[buf]
    out = []
    pend = []
    for k in range(16):
        pend.append((2 * k + 1 + A_DELAY, f"v_cvt_pk_bf16_f32 v{p+k}, v{AE+((2*k)%16)}, v{AE+((2*k+1)%16)}"))
        if k == 2:
            pend.append((2 * k + 2 + A_DELAY, f"v_or_b32 v{V_OR}, v{p}, v{p+1}"))
        elif k > 2 and k % 2 == 0:
            pend.append((2 * k + 2 + A_DELAY, f"v_or3_b32 v{V_OR}, v{V_OR}, v{p+k-2}, v{p+k-1}"))
    for i in range(32):
        out.append(f"v_exp_f32 v{AE+(i%16)}, v{s+i}")
        if pend and pend[0][0] <= i:
            out.append(pend.pop(0)[1])
    out.extend(t for _, t in pend)
    out.append(f"v_or3_b32 v{V_OR}, v{V_OR}, v{p+14}, v{p+15}")
    out.append(f"v_and_b32 v{V_OR}, s{S_MASK}, v{V_OR}")
    out.append(f"v_cmp_ne_u32 vcc, 0, v{V_OR}")
    return out


def a_loads(kslot, vslot):
    k = [f"buffer_load_dwordx4 {ar(KA_+kslot*8+4*s,4)}, v{V_LANE16}, {sr(SRD_WS,4)}, s{S_KOFF} offen offset:{s*1024} sc1" for s in range(2)]
    k += [f"s_add_u32 s{S_KOFF}, s{S_KOFF}, 2048", f"s_min_u32 s{S_KOFF}, s{S_KOFF}, s{S_KLIM}"]
    v = [f"buffer_load_dwordx4 {ar(VA_+vslot*8+4*s,4)}, v{V_LANE16}, {sr(SRD_WS,4)}, s{S_VOFF} offen offset:{s*1024} sc1" for s in range(2)]
    v += [f"s_add_u32 s{S_VOFF}, s{S_VOFF}, 2048", f"s_min_u32 s{S_VOFF}, s{S_VOFF}, s{S_VLIM}"]
    return k, v


def a_iter(A, u, cfg):
    par = u % 2
    A("s_waitcnt vmcnt(12)")
    sm = a_softmax(par)
    mq, mp = a_qk(1 - par, (u + 1) % 4), a_pv(1 - par, (u - 1) % 4)
    lk, lv = a_loads((u + 1) % 4, (u - 1) % 4)
    n = len(sm)
    ms = mq + mp
    pos = spread(8, -1, n - 8)
    riders = {3: [lk[0]], 4: [lk[1]], 5: [lk[2]], 6: [lk[3]], 7: [lv[0]]}
    sides = []
    for i, (p, m) in enumerate(zip(pos, ms)):
        sides.append((p, [m] + riders.get(i, [])))
    sides.append((n - 4, [lv[1]]))
    sides.append((n - 2, [lv[2]]))
    sides.append((n - 1, [lv[3]]))
    body = interleave(sm, sides)
    if cfg.get("a_noload"):
        body = [b for b in body if not b.startswith("buffer_load")]
    if cfg.get("a_nosc1"):
        body = [b.replace(" sc1", "") for b in body]
    if cfg.get("a_nomfma"):
        body = [b for b in body if not b.startswith("v_mfma")]
    A.emit_list(body)
    A(rare_check(A, par, "LA_RARE"))


def a_rare(A, sb):
    A.label(f"LA_RARE{sb}")
    A("s_nop 7")
    A("s_nop 7")
    so = 1 - sb
    for qb in range(2):
        d, f, t = V_T + qb, V_T + 2 + qb, V_T + 4
        s = AS[sb] + qb * 16
        A(f"v_max3_f32 v{d}, v{s}, v{s+1}, v{s+2}")
        for i in range(3, 15, 2):
            A(f"v_max3_f32 v{d}, v{d}, v{s+i}, v{s+i+1}")
        A(f"v_max_f32 v{d}, v{d}, v{s+15}")
        A(f"v_mov_b32 v{t}, v{d}")
        A("s_nop 1")
        A(f"v_permlane32_swap_b32 v{t}, v{d}")
        A("s_nop 1")
        A(f"v_max_f32 v{d}, v{d}, v{t}")
        A(f"v_add_f32 v{d}, {f32bits(BIAS):#x}, v{d}")
        A(f"v_max_f32 v{d}, s{S_FLOOR}, v{d}")
        A(f"v_max_f32 v{f}, 0, v{d}")
        A(f"v_exp_f32 v{f}, -v{f}")
        for r in range(16):
            A(f"v_sub_f32 v{s+r}, v{s+r}, v{d}")
            A(f"v_sub_f32 v{AS[so]+qb*16+r}, v{AS[so]+qb*16+r}, v{d}")
            A(f"v_sub_f32 v{AC+qb*16+r}, v{AC+qb*16+r}, v{d}")
            A(f"v_mul_f32 v{AO+qb*16+r}, v{AO+qb*16+r}, v{f}")
    A(f"s_mov_b32 s{S_FLOOR}, 0")
    lskip = A.newlabel("LAS")
    A(f"s_cmp_eq_u32 s{S_FIRST}, 1")
    A(f"s_mov_b32 s{S_FIRST}, 0")
    A(f"s_cbranch_scc1 {lskip}")
    for o in a_softmax(sb):
        A(o)
    A.label(lskip)
    A("s_nop 1")
    A(f"s_setpc_b64 {sr(S_RET,2)}")


def a_item(A, cfg):
    T = S_TMP
    stamp(A, cfg, 0)
    A(f"s_and_b32 s{T+1}, s2, 3")
    poll_issue(A, T + 1, F_AQ, 64)
    A(f"s_bfe_u32 s{T+3}, s2, 0x10002")
    A(f"s_lshl_b32 s{T+3}, s{T+3}, 4")
    A(f"s_add_u32 s{T+2}, s{S_ITEM}, s{T+3}")
    A(f"s_lshl_b32 s{T+3}, s{T+1}, 2")
    A(f"s_add_u32 s{T+3}, s{T+3}, s{S_WAVE}")
    A(f"s_lshl_b32 s{T+3}, s{T+3}, 17")
    A(f"s_add_u32 s{S_KOFF}, s{T+3}, {WS_KA}")
    A(f"s_add_u32 s{S_VOFF}, s{T+3}, {WS_VA}")
    A(f"s_add_u32 s{S_KLIM}, s{S_KOFF}, {63*2048}")
    A(f"s_add_u32 s{S_VLIM}, s{S_VOFF}, {63*2048}")
    A(f"s_lshl_b32 s{T+4}, s{T+2}, 12")
    A(f"s_add_u32 s{T+4}, s{T+4}, s{T+3}")
    A(f"s_add_u32 s{T+4}, s{T+4}, {WS_QA}")
    set_srd(A, SRD_B, P_WOA, 448 * 448 * 2)
    A(f"s_lshr_b32 s{S_RFLAG}, s{T+2}, 1")
    A(f"s_lshl_b32 s{S_RFLAG}, s{S_RFLAG}, 8")
    A(f"s_and_b32 s{T+3}, s{T+2}, 1")
    A(f"s_lshl_b32 s{T+3}, s{T+3}, 2")
    A(f"s_add_u32 s{T+3}, s{T+3}, s{T+1}")
    A(f"s_lshl_b32 s{T+3}, s{T+3}, 2")
    A(f"s_add_u32 s{S_RFLAG}, s{S_RFLAG}, s{T+3}")
    A(f"s_add_u32 s{S_RFLAG}, s{S_RFLAG}, {F_ROW + 64}")
    A(f"s_mul_i32 s{S_POFF}, s{T+1}, {P_SLOT}")
    A(f"s_lshl_b32 s{T+3}, s{T+2}, 2")
    A(f"s_add_u32 s{T+3}, s{T+3}, s{S_WAVE}")
    A(f"s_mul_i32 s{T+3}, s{T+3}, {14*1024}")
    A(f"s_add_u32 s{S_POFF}, s{S_POFF}, s{T+3}")
    A(f"s_add_u32 s{S_POFF}, s{S_POFF}, {WS_P}")
    A(f"s_mul_i32 s{S_WOOFF}, s{T+1}, {112*896}")
    A(f"s_mul_i32 s{S_WOW}, s{S_WAVE}, {32*896}")
    A(f"s_add_u32 s{S_WOOFF}, s{S_WOOFF}, s{S_WOW}")
    for g in range(4):
        A(f"s_add_u32 s{T+5}, s{S_WOOFF}, {g*8*896}")
        A(f"s_add_u32 m0, s{S_WOW}, {g*8*896}")
        A("s_nop 0")
        for i in range(7):
            if i == 4:
                A("s_add_u32 m0, m0, 4096")
                A("s_nop 0")
            A(f"buffer_load_dwordx4 v{V_WOD+i}, {sr(SRD_B,4)}, s{T+5} offen offset:{(i%4)*1024} lds")
    A(f"s_mov_b32 s{S_MASK}, 0x40004000")
    A(f"s_mov_b32 s{S_FLOOR}, {NEG_INF:#x}")
    A(f"s_mov_b32 s{S_FIRST}, 1")
    for r in range(32):
        A(f"v_mov_b32 v{AC+r}, 0")
        A(f"v_mov_b32 v{AO+r}, 0")
        A(f"v_mov_b32 v{AS[1]+r}, 0")
    for r in range(16):
        A(f"v_mov_b32 v{AP[1]+r}, 0")
    for r in range(8):
        A(f"v_accvgpr_write_b32 a{VA_+3*8+r}, 0")
    poll_wait(A)
    for i in range(4):
        A(f"buffer_load_dwordx4 {ar(QA_+4*i,4)}, v{V_LANE16}, {sr(SRD_WS,4)}, s{T+4} offen offset:{i*1024} sc1")
    lk, _ = a_loads(0, 0)
    A.emit_list(lk)
    for t in (-4, -3, -2):
        lk, lv = a_loads((t + 5) % 4, (t + 3) % 4)
        A.emit_list(lk)
        if t + 3 >= 0:
            A.emit_list(lv)
    A(f"v_bfe_u32 v{V_T}, v0, 3, 1")
    A(f"v_lshlrev_b32 v{V_T}, 10, v{V_T}")
    A(f"v_lshrrev_b32 v{V_T+1}, 5, v0")
    A(f"v_lshl_add_u32 v{V_T}, v{V_T+1}, 8, v{V_T}")
    A(f"v_bfe_u32 v{V_T+1}, v0, 4, 1")
    A(f"v_lshl_add_u32 v{V_T}, v{V_T+1}, 7, v{V_T}")
    A(f"v_and_b32 v{V_T+1}, 7, v0")
    A(f"v_lshl_add_u32 v{V_T}, v{V_T+1}, 4, v{V_T}")
    A(f"s_lshl_b32 s{T+5}, s{S_WAVE}, 12")
    A(f"s_add_u32 s{T+5}, s{T+5}, {XB}")
    A(f"v_add_u32 v{V_XW}, s{T+5}, v{V_T}")
    A(f"v_bfe_u32 v{V_T}, v0, 2, 3")
    A(f"v_bfe_u32 v{V_T+2}, v{V_T}, 1, 2")
    A(f"v_lshrrev_b32 v{V_T+1}, 5, v0")
    A(f"v_lshl_add_u32 v{V_T}, v{V_T+1}, 4, v{V_T}")
    A(f"v_mul_u32_u24 v{V_T}, 896, v{V_T}")
    A(f"v_and_b32 v{V_T+1}, 3, v0")
    A(f"v_lshl_add_u32 v{V_T}, v{V_T+1}, 3, v{V_T}")
    for b in range(4):
        A(f"v_xor_b32 v{V_T+1}, {b}, v{V_T+2}")
        A(f"v_lshl_add_u32 v{V_WOR+b}, v{V_T+1}, 5, v{V_T}")
    A("s_waitcnt vmcnt(10)")
    stamp(A, cfg, 1)
    A.emit_list(a_qk(0, 0))
    lk, lv = a_loads(0, 2)
    A.emit_list(lk)
    A.emit_list(lv)
    A(f"s_call_b64 {sr(S_RET,2)}, LA_RARE0")
    A(f"s_mov_b32 s{S_LEFT}, 16")
    stamp(A, cfg, 2)
    A.label("LA_LOOP")
    for u in range(4):
        a_iter(A, u, cfg)
    A(f"s_sub_u32 s{S_LEFT}, s{S_LEFT}, 1")
    A(f"s_cmp_lg_u32 s{S_LEFT}, 0")
    A("s_cbranch_scc1 LA_LOOP")
    A("s_waitcnt vmcnt(12)")
    A.emit_list(a_pv(1, 3))
    stamp(A, cfg, 3)
    A(f"v_cmp_gt_u32 vcc, 32, v0")
    A("s_nop 7")
    A("s_nop 7")
    for qb in range(2):
        o = AO + qb * 16
        a, b, inv, invh = V_T, V_T + 1, V_T + 2, V_T + 3
        A(f"v_mov_b32 v{a}, v{o+12}")
        A(f"v_mov_b32 v{b}, v{o+12}")
        A("s_nop 1")
        A(f"v_permlane32_swap_b32 v{a}, v{b}")
        A("s_nop 1")
        A(f"v_rcp_f32 v{inv}, v{b}")
        A("s_nop 0")
        A(f"v_cndmask_b32 v{invh}, 0, v{inv}, vcc")
        for r in range(16):
            A(f"v_mul_f32 v{o+r}, v{o+r}, v{inv if r < 12 else invh}")
        for g in range(2):
            c = AS[0] + (qb * 2 + g) * 4
            for i in range(4):
                A(f"v_cvt_pk_bf16_f32 v{c+i}, v{o+8*g+2*i}, v{o+8*g+2*i+1}")
            A(f"ds_write_b128 v{V_XW}, {vr(c,4)} offset:{qb*2048+g*512}")
    A("s_waitcnt vmcnt(0) lgkmcnt(0)")
    A("s_barrier")
    A(f"s_lshl_b32 s{T+5}, s{S_WAVE}, 10")
    A(f"s_add_u32 s{T+5}, s{T+5}, {XB}")
    A(f"v_add_u32 v{V_T}, s{T+5}, v{V_LANE16}")
    VB = 96
    for w in range(4):
        A(f"ds_read_b128 {vr(VB+4*w,4)}, v{V_T} offset:{w*4096}")

    def reads(w, half, fset):
        out = []
        for i in range(14):
            b = 14 * half + i
            f = VF + (fset * 14 + i) * 4
            for e in range(2):
                out.append(f"ds_read_b64_tr_b16 {vr(f+2*e,2)}, v{V_WOR+((b&3)^(2*(w&1)))} offset:{(b>>2)*128+e*8*896+(w&1)*28*896}")
        return out

    def mf(w, half, fset):
        out = []
        for i in range(14):
            b = 14 * half + i
            f = VF + (fset * 14 + i) * 4
            c = "0" if w == 0 else ar(b * 4, 4)
            out.append(f"v_mfma_f32_16x16x32_bf16 {ar(b*4,4)}, {vr(f,4)}, {vr(VB+4*w,4)}, {c}")
        return out

    seq = [(w, h) for w in range(4) for h in range(2)]
    A.emit_list(reads(0, 0, 0))
    for k, (w, h) in enumerate(seq):
        if k + 1 < len(seq):
            w2, h2 = seq[k + 1]
            if (w2, h2) == (2, 0):
                for b in range(4):
                    A(f"v_add_u32 v{V_WOR+b}, {2*28*896}, v{V_WOR+b}")
            rd = reads(w2, h2, (k + 1) % 2)
            A.emit_list(rd[:14])
            A("s_waitcnt lgkmcnt(14)")
            A.emit_list(interleave(mf(w, h, k % 2), [(i, [r]) for i, r in enumerate(rd[14:])]))
        else:
            A("s_waitcnt lgkmcnt(0)")
            A.emit_list(mf(w, h, k % 2))
    store_partials(A, 1, cfg)


def r_item(A, cfg):
    T = S_TMP
    stamp(A, cfg, 0)
    A(f"s_sub_u32 s{T}, s{S_ITEM}, 16")
    A(f"s_lshl_b32 s{T}, s{T}, 3")
    A(f"s_and_b32 s{T+1}, s2, 7")
    A(f"s_add_u32 s{T}, s{T}, s{T+1}")
    A(f"s_mul_i32 s{T+1}, s{T}, 4682")
    A(f"s_lshr_b32 s{T+1}, s{T+1}, 16")
    A(f"s_mul_i32 s{T+2}, s{T+1}, 14")
    A(f"s_sub_u32 s{T+2}, s{T}, s{T+2}")
    A(f"s_lshr_b32 s{T+3}, s{T+1}, 1")
    A(f"s_and_b32 s{T+1}, s{T+1}, 1")
    A(f"s_lshl_b32 s{T+1}, s{T+1}, 3")
    A(f"s_add_u32 s{T+1}, s{T+1}, s{T+3}")
    poll_issue(A, T + 1, F_ROW, 24)
    A(f"s_cmp_ge_u32 s{T+2}, 7")
    A(f"s_cselect_b32 s{T+3}, 7, 0")
    A(f"s_cselect_b32 s{T+4}, 4, 0")
    A(f"s_sub_u32 s{T+2}, s{T+2}, s{T+3}")
    A(f"s_lshl_b32 s{T+1}, s{T+1}, 3")
    A(f"s_add_u32 s{T+1}, s{T+1}, s{T+4}")
    A(f"s_add_u32 s{T+1}, s{T+1}, s{S_WAVE}")
    A(f"s_mul_i32 s{S_KOFF}, s{T+1}, {14*1024}")
    A(f"s_lshl_b32 s{T+3}, s{T+2}, 11")
    A(f"s_add_u32 s{S_KOFF}, s{S_KOFF}, s{T+3}")
    A(f"s_add_u32 s{S_KOFF}, s{S_KOFF}, {WS_P}")
    A(f"s_lshl_b32 s{S_VOFF}, s{T+1}, 6")
    A(f"s_add_u32 s{S_VOFF}, s{S_VOFF}, {WS_G}")
    A(f"s_mul_i32 s{S_KLIM}, s{T+1}, {16*896}")
    A(f"s_lshl_b32 s{T+3}, s{T+2}, 7")
    A(f"s_add_u32 s{S_KLIM}, s{S_KLIM}, s{T+3}")
    set_srd(A, SRD_B, P_OUT, 2048 * 448 * 2)
    A(f"v_and_b32 v{V_T}, 15, v0")
    A(f"v_lshrrev_b32 v{V_T+1}, 4, v0")
    A(f"v_lshlrev_b32 v{V_T+2}, 2, v{V_T}")
    A(f"v_mul_u32_u24 v{V_T+3}, 896, v{V_T}")
    A(f"v_lshl_add_u32 v{V_T+3}, v{V_T+1}, 3, v{V_T+3}")
    A(f"s_mov_b32 s{S_SC}, 0x00003f80")
    A(f"s_mov_b32 s{S_SC+1}, 0x3f800000")
    poll_wait(A)
    stamp(A, cfg, 1)
    A(f"buffer_load_dword v{V_T+4}, v{V_T+2}, {sr(SRD_WS,4)}, s{S_VOFF} offen sc1")
    PB = 96
    for sl in range(20):
        for c in range(2):
            A(f"buffer_load_dwordx4 {vr(PB+(sl*2+c)*4,4)}, v{V_LANE16}, {sr(SRD_WS,4)}, s{S_KOFF} offen offset:{c*1024} sc1")
        if sl < 19:
            A(f"s_add_u32 s{S_KOFF}, s{S_KOFF}, {P_SLOT}")
    ACC = 64
    for sl in range(20):
        A(f"s_waitcnt vmcnt({2*(19-sl)})")
        first = sl in (0, 4)
        for c in range(2):
            acc_ = ACC + c * 16 + (0 if sl < 4 else 8)
            for i in range(4):
                r = PB + (sl * 2 + c) * 4 + i
                A(f"v_dot2_f32_bf16 v{acc_+2*i}, v{r}, s{S_SC}, {'0' if first else 'v%d' % (acc_+2*i)}")
                A(f"v_dot2_f32_bf16 v{acc_+2*i+1}, v{r}, s{S_SC+1}, {'0' if first else 'v%d' % (acc_+2*i+1)}")
    g, g1, t = V_T + 4, V_T + 5, V_T + 6
    A(f"v_sub_f32 v{g1}, 1.0, v{g}")
    A(f"v_cvt_pk_bf16_f32 v{g1}, v{g1}, v{g1}")
    A(f"v_lshlrev_b32 v{g1}, 16, v{g1}")
    A("s_nop 1")
    for c in range(2):
        aa, ab = ACC + c * 16, ACC + c * 16 + 8
        o = 48 + c * 4
        for i in range(4):
            for acc_, gg in ((aa, g), (ab, g1)):
                a = acc_ + 2 * i
                A(f"v_cvt_pk_bf16_f32 v{t}, v{a}, v{a+1}")
                A(f"v_lshlrev_b32 v{a}, 16, v{t}")
                A(f"v_and_b32 v{a+1}, 0xffff0000, v{t}")
                A(f"v_mul_f32 v{a}, v{gg}, v{a}")
                A(f"v_mul_f32 v{a+1}, v{gg}, v{a+1}")
                A(f"v_cvt_pk_bf16_f32 v{t}, v{a}, v{a+1}")
                A(f"v_lshlrev_b32 v{a}, 16, v{t}")
                A(f"v_and_b32 v{a+1}, 0xffff0000, v{t}")
            A(f"v_add_f32 v{aa+2*i}, v{aa+2*i}, v{ab+2*i}")
            A(f"v_add_f32 v{aa+2*i+1}, v{aa+2*i+1}, v{ab+2*i+1}")
            A(f"v_cvt_pk_bf16_f32 v{o+i}, v{aa+2*i}, v{aa+2*i+1}")
        A(f"buffer_store_dwordx2 {vr(o,2)}, v{V_T+3}, {sr(SRD_B,4)}, s{S_KLIM} offen offset:{c*64}")
        A(f"buffer_store_dwordx2 {vr(o+2,2)}, v{V_T+3}, {sr(SRD_B,4)}, s{S_KLIM} offen offset:{c*64+32}")


def launch_line(cfg=None):
    return f"; @launch kernel=mega_kernel grid=(256,1,1) block=(256,1,1) lds={LDS_TOTAL}"


def gen_mega(A, name="mega_kernel", cfg=None):
    cfg = cfg or {}
    global KVFL, A_DELAY
    A_DELAY = cfg.get("a_delay", 3)
    KVFL = cfg.get("kvfl", "sc1")
    T = S_TMP
    G = V_G
    A.raw(kernel_header(name))
    A(f"s_load_dwordx16 {sr(4,16)}, s[0:1], 0")
    A(f"s_load_dwordx8 {sr(20,8)}, s[0:1], 64")
    A(f"s_load_dwordx2 {sr(P_WS,2)}, s[0:1], 96")
    A(f"s_load_dwordx2 {sr(P_WOA,2)}, s[0:1], 16")
    if cfg.get("diag"):
        for i in range(14):
            A(f"s_mov_b32 s{S_STAMP+i}, 0")
    stamp(A, cfg, 0)
    A("s_cmp_ge_u32 s2, 256")
    A("s_cbranch_scc1 LM_END")
    A(f"v_lshrrev_b32 v{G}, 6, v0")
    A("v_and_b32 v0, 63, v0")
    A(f"v_readfirstlane_b32 s{S_WAVE}, v{G}")
    A(f"v_lshlrev_b32 v{V_LANE16}, 4, v0")
    A(f"s_and_b32 s{T}, s2, 7")
    A(f"s_bfe_u32 s{T+1}, s2, 0x20005")
    A(f"s_lshl_b32 s{T+1}, s{T+1}, 3")
    A(f"s_add_u32 s{T}, s{T}, s{T+1}")
    A(f"s_lshr_b32 s{S_GRP}, s2, 7")
    A(f"s_bfe_u32 s{T+1}, s2, 0x20003")
    A(f"s_lshl_b32 s{T+2}, s{S_GRP}, 2")
    A(f"s_add_u32 s{T+1}, s{T+1}, s{T+2}")
    A(f"s_lshr_b32 s{T+2}, s{S_WAVE}, 1")
    A(f"s_and_b32 s{T+3}, s{S_WAVE}, 1")
    A(f"s_and_b32 s{S_GHEAD}, s{T}, 15")
    A(f"s_lshr_b32 s{S_TYPE}, s{T}, 4")
    A(f"s_lshl_b32 s{T+5}, s{T+2}, 4")
    A(f"s_add_u32 s{T+5}, s{T+5}, s{T+3}")
    A(f"s_lshl_b32 s{S_XWAVE}, s{T+5}, 10")
    A(f"s_add_u32 s{S_XWAVE}, s{S_XWAVE}, {LDS_X0}")
    A(f"s_mov_b32 s{S_XWR}, s{S_XWAVE}")
    A(f"s_lshl_b32 s{T+5}, s{T+5}, 3")
    A(f"s_lshl_b32 s{T+6}, s{T+1}, 8")
    A(f"s_add_u32 s{T+6}, s{T+6}, s{T+5}")
    A(f"s_lshl_b32 s{S_XOFF}, s{T+6}, 11")
    A(f"s_mov_b32 s{S_XSTA}, {16*2048}")
    A(f"s_mov_b32 s{S_XSTB}, {16*2048}")
    A(f"s_mov_b32 s{S_XWRAP}, {(128-112*2048) & 0xffffffff}")
    A(f"s_lshl_b32 s{T+7}, s{T+2}, 2")
    A(f"s_add_u32 s{T+7}, s{T+7}, s{T+3}")
    A(f"s_lshl_b32 s{S_WWR}, s{T+7}, 10")
    A(f"s_lshl_b32 s{S_WOFF}, s{T+7}, 14")
    A(f"s_lshl_b32 s{T+6}, s{S_GHEAD}, 9")
    A(f"s_add_u32 s{S_WOFF}, s{S_WOFF}, s{T+6}")
    A(f"v_lshrrev_b32 v{G}, 4, v0")
    A(f"s_lshl_b32 s{T+6}, s{T+3}, 2")
    A(f"v_add_u32 v{G+6}, s{T+6}, v{G}")
    A(f"v_and_b32 v{G+1}, 7, v0")
    A(f"v_xor_b32 v{G}, v{G+6}, v{G+1}")
    A(f"v_lshlrev_b32 v{G}, 4, v{G}")
    A(f"v_lshrrev_b32 v{G+1}, 3, v0")
    A(f"v_lshl_add_u32 v{V_DX}, v{G+1}, 11, v{G}")
    A(f"v_mul_u32_u24 v{G+2}, 896, v{G+1}")
    A(f"v_add_u32 v{V_DX2}, v{G+2}, v{G}")
    A(f"v_lshrrev_b32 v{G}, 5, v0")
    A(f"s_lshl_b32 s{T+6}, s{T+3}, 1")
    A(f"s_lshl_b32 s{T+5}, s{T+2}, 2")
    A(f"s_add_u32 s{T+6}, s{T+6}, s{T+5}")
    A(f"v_add_u32 v{G+1}, s{T+6}, v{G}")
    A(f"v_bfe_u32 v{G+2}, v0, 1, 4")
    A(f"v_xor_b32 v{G+2}, v{G+2}, v{G+1}")
    A(f"v_and_b32 v{G+3}, 1, v0")
    A(f"v_lshl_add_u32 v{G+2}, v{G+2}, 1, v{G+3}")
    A(f"v_lshlrev_b32 v{G+3}, 4, v{G+2}")
    A(f"v_lshl_add_u32 v{V_DW}, v{G}, 13, v{G+3}")
    A("s_waitcnt lgkmcnt(0)")
    set_srd(A, SRD_A, P_CKV, 2048 * 1024 * 2)
    A(f"s_cmp_eq_u32 s{S_TYPE}, 0")
    A(f"s_cselect_b32 s{SRD_B}, s{P_WUK}, s{P_WUV}")
    A(f"s_cselect_b32 s{SRD_B+1}, s{P_WUK+1}, s{P_WUV+1}")
    A(f"s_mov_b32 s{SRD_B+2}, {1024*4096*2}")
    A(f"s_mov_b32 s{SRD_B+3}, 0x20000")
    emit_chain(A, dma_x())
    emit_chain(A, dma_w())
    A(f"s_and_b32 s{S_HEAD}, s2, 15")
    A(f"s_lshr_b32 s{T}, s2, 4")
    A(f"s_sub_u32 s{S_QB}, 15, s{T}")
    A(f"s_lshl_b32 s{T+4}, s{S_QB}, 7")
    A(f"s_lshl_b32 s{T+5}, s{S_HEAD}, 3")
    A(f"s_add_u32 s{T+4}, s{T+4}, s{T+5}")
    A(f"s_lshl_b32 s{T+5}, s{S_WAVE}, 1")
    A(f"s_add_u32 s{S_PHASE}, s{T+4}, s{T+5}")
    A(f"s_mul_i32 s{T+4}, s{S_PHASE}, 896")
    A(f"v_and_b32 v{V_CV}, 31, v0")
    A(f"v_lshlrev_b32 v{V_CV+1}, 5, v{V_CV}")
    A(f"v_mov_b32 v{V_CV+3}, 0x40000000")
    A(f"v_cmp_gt_u32 vcc, 28, v{V_CV}")
    A(f"v_lshrrev_b32 v{V_CV+2}, 5, v0")
    A("s_nop 0")
    A(f"v_cndmask_b32 v{V_CV+1}, v{V_CV+3}, v{V_CV+1}, vcc")
    A(f"v_mul_u32_u24 v{V_CV+2}, 896, v{V_CV+2}")
    A(f"v_add_u32 v{V_CV+2}, v{V_CV+2}, v{V_CV+1}")
    set_srd(A, SRD_WS, P_X, 2048 * 448 * 2)
    set_srd(A, SRD_DBG, P_GATE, 448 * 2)
    A(f"buffer_load_dwordx4 {vr(192,4)}, v{V_CV+2}, {sr(SRD_WS,4)}, s{T+4} offen")
    A(f"buffer_load_dwordx4 {vr(196,4)}, v{V_CV+2}, {sr(SRD_WS,4)}, s{T+4} offen offset:16")
    A(f"buffer_load_dwordx4 {vr(200,4)}, v{V_CV+1}, {sr(SRD_DBG,4)}, 0 offen")
    A(f"buffer_load_dwordx4 {vr(204,4)}, v{V_CV+1}, {sr(SRD_DBG,4)}, 0 offen offset:16")
    emit_chain(A, dma_x())
    emit_chain(A, dma_w())
    set_srd(A, SRD_WS, P_WS, WS_SIZE)
    set_srd(A, SRD_DBG, P_DBG, 256)
    set_srd(A, SRD_E, P_WS, WS_SIZE)
    A(f"s_cmp_eq_u32 s{S_GRP}, 0")
    A(f"s_cselect_b32 s{SRD_E+2}, s{SRD_E+2}, 0")
    li = A.newlabel("LM")
    A(f"v_lshlrev_b32 v{V_SIG+1}, 2, v0")
    A(f"v_mov_b32 v{V_SIG}, 0")
    A(f"s_cmp_lg_u32 s{S_WAVE}, 0")
    A(f"s_cbranch_scc1 {li}")
    A(f"s_lshl_b32 s{T+6}, s2, 6")
    A(f"s_add_u32 s{T+6}, s{T+6}, {WS_F}")
    A("s_mov_b64 exec, 0xffff")
    A(f"buffer_store_dword v{V_SIG}, v{V_SIG+1}, {sr(SRD_WS,4)}, s{T+6} offen sc1")
    A("s_mov_b64 exec, -1")
    A.label(li)
    A(f"s_lshl_b32 s{S_OB}, s{S_GHEAD}, 20")
    A(f"s_lshl_b32 s{T+6}, s{T+1}, 17")
    A(f"s_add_u32 s{S_OB}, s{S_OB}, s{T+6}")
    A(f"s_lshl_b32 s{T+6}, s{T+2}, 16")
    A(f"s_add_u32 s{S_OB}, s{S_OB}, s{T+6}")
    A(f"s_add_u32 s{T+6}, s{S_TYPE}, 12")
    A(f"s_lshl_b32 s{T+6}, s{T+3}, s{T+6}")
    A(f"s_add_u32 s{S_OB}, s{S_OB}, s{T+6}")
    A(f"s_lshl_b32 s{T+6}, s{S_TYPE}, 24")
    A(f"s_add_u32 s{S_OB}, s{S_OB}, s{T+6}")
    A(f"s_mov_b32 s{T+6}, 8192")
    A(f"s_cmp_eq_u32 s{S_TYPE}, 0")
    A(f"s_cselect_b32 s{S_OSTA}, s{T+6}, 4096")
    A(f"s_cselect_b32 s{S_OSTB}, s{T+6}, 12288")
    A(f"s_lshl_b32 s{S_GHEAD}, s{S_GHEAD}, 8")
    A(f"s_lshl_b32 s{T+6}, s{S_GRP}, 12")
    A(f"s_add_u32 s{S_GHEAD}, s{S_GHEAD}, s{T+6}")
    A(f"s_lshl_b32 s{T+6}, s{S_TYPE}, 4")
    A(f"s_add_u32 s{S_GHEAD}, s{S_GHEAD}, s{T+6}")
    A(f"s_and_b32 s{T+6}, s{T+1}, 3")
    A(f"s_lshl_b32 s{T+6}, s{T+6}, 2")
    A(f"s_add_u32 s{S_GHEAD}, s{S_GHEAD}, s{T+6}")
    A(f"s_add_u32 s{S_GHEAD}, s{S_GHEAD}, {F_KV}")
    A(f"s_and_b32 s{S_HEAD}, s2, 15")
    A(f"s_lshr_b32 s{T}, s2, 4")
    A(f"s_sub_u32 s{S_QB}, 15, s{T}")
    A(f"s_lshl_b32 s{S_WOFF2}, s{T+7}, 14")
    A(f"s_lshl_b32 s{T+6}, s{S_HEAD}, 9")
    A(f"s_add_u32 s{S_WOFF2}, s{S_WOFF2}, s{T+6}")
    A(f"s_lshl_b32 s{T+5}, s{S_QB}, 7")
    A(f"s_lshl_b32 s{T+6}, s{T+3}, 3")
    A(f"s_add_u32 s{T+5}, s{T+5}, s{T+6}")
    A(f"s_mul_i32 s{T+5}, s{T+5}, 896")
    A(f"s_mul_i32 s{T+6}, s{T+3}, {8*2688}")
    A(f"s_mul_i32 s{T+4}, s{S_HEAD}, 56")
    A(f"s_add_u32 s{T+6}, s{T+6}, s{T+4}")
    A(f"s_cmp_eq_u32 s{T+2}, 0")
    A(f"s_cselect_b32 s{S_XOFF2}, s{T+5}, s{T+6}")
    A(f"s_cselect_b32 s{S_X2LO}, s{P_X}, s{P_WQKV}")
    A(f"s_cselect_b32 s{S_X2HI}, s{P_X+1}, s{P_WQKV+1}")
    A(f"s_mov_b32 s{T+5}, {2048*448*2}")
    A(f"s_cselect_b32 s{S_X2N}, s{T+5}, {448*1344*2}")
    A(f"s_mov_b32 s{T+5}, {16*896}")
    A(f"s_cselect_b32 s{S_XSTA2}, s{T+5}, {4*2688}")
    A(f"s_cselect_b32 s{S_XSTB2}, s{T+5}, {12*2688}")
    A(f"s_mov_b32 s{T+5}, {(128-112*896) & 0xffffffff}")
    A(f"s_cselect_b32 s{S_XWRAP2}, s{T+5}, {12*2688}")
    lskip = A.newlabel("LM")
    A(f"s_cbranch_scc1 {lskip}")
    A(f"v_bfe_u32 v{G}, v0, 1, 3")
    A(f"v_xor_b32 v{G}, v{G}, v{G+6}")
    A(f"v_and_b32 v{G+1}, 1, v0")
    A(f"v_lshl_add_u32 v{G}, v{G}, 1, v{G+1}")
    A(f"v_lshrrev_b32 v{G+1}, 2, v{G}")
    A(f"v_and_b32 v{G}, 3, v{G}")
    A(f"v_lshlrev_b32 v{G}, 4, v{G}")
    A(f"v_mul_u32_u24 v{G+2}, 896, v{G+1}")
    A(f"v_add_u32 v{G}, v{G}, v{G+2}")
    A(f"v_lshrrev_b32 v{G+2}, 4, v0")
    A(f"v_mul_u32_u24 v{G+2}, 2688, v{G+2}")
    A(f"v_add_u32 v{G}, v{G}, v{G+2}")
    A(f"v_mov_b32 v{G+2}, 0x40000000")
    A(f"v_cmp_gt_u32 vcc, 3, v{G+1}")
    A("s_nop 1")
    A(f"v_cndmask_b32 v{V_DX2}, v{G+2}, v{G}, vcc")
    A.label(lskip)
    A(f"s_lshl_b32 s{S_OBQK}, s{S_HEAD}, 17")
    A(f"s_lshl_b32 s{T+5}, s{S_QB}, 13")
    A(f"s_add_u32 s{S_OBQK}, s{S_OBQK}, s{T+5}")
    A(f"s_lshl_b32 s{T+5}, s{T+2}, 12")
    A(f"s_add_u32 s{S_OBQK}, s{S_OBQK}, s{T+5}")
    A(f"s_lshl_b32 s{T+5}, s{T+3}, 8")
    A(f"s_add_u32 s{S_OBV}, s{S_OBQK}, s{T+5}")
    A(f"s_add_u32 s{S_OBV}, s{S_OBV}, {WS_VA}")
    A(f"s_lshl_b32 s{T+5}, s{T+3}, 21")
    A(f"s_add_u32 s{S_OBQK}, s{S_OBQK}, s{T+5}")
    A(f"s_add_u32 s{S_OBQK}, s{S_OBQK}, {WS_QA}")
    A(f"s_cmp_eq_u32 s{T+3}, 0")
    A(f"s_cselect_b32 s{S_SCA}, {f32bits(SCALE_A):#x}, 1.0")
    A(f"v_and_b32 v{G}, 15, v0")
    A(f"v_lshrrev_b32 v{G+1}, 4, v0")
    A(f"v_lshrrev_b32 v{G+2}, 1, v{G}")
    A(f"v_xor_b32 v{G+2}, v{G+2}, v{G+1}")
    A(f"v_lshlrev_b32 v{G+2}, 4, v{G+2}")
    A(f"v_lshl_add_u32 v{G+2}, v{G}, 7, v{G+2}")
    A(f"s_lshl_b32 s{T+5}, s{T+2}, 14")
    A(f"v_add_u32 v{V_XL0}, s{T+5}, v{G+2}")
    A(f"v_xor_b32 v{V_XL1}, 64, v{V_XL0}")
    A(f"s_lshl_b32 s{T+5}, s{T+2}, 13")
    A(f"v_add_u32 v{V_PXL}, s{T+5}, v{G+2}")
    A(f"v_xor_b32 v{V_PXL+1}, 64, v{V_PXL}")
    A(f"v_add_u32 v{V_XR0}, {LDS_X0}, v{V_XL0}")
    A(f"v_add_u32 v{V_XR1}, {LDS_X0}, v{V_XL1}")
    A(f"s_mov_b32 s{S_XRD}, {LDS_X0+32768}")
    A(f"v_bfe_u32 v{G+2}, v0, 2, 2")
    A(f"v_lshl_add_u32 v{G+3}, v{G+1}, 3, v{G+2}")
    A(f"v_lshlrev_b32 v{G+3}, 9, v{G+3}")
    A(f"v_bfe_u32 v{G+4}, v0, 2, 3")
    A(f"v_lshl_add_u32 v{G+3}, v{G+4}, 5, v{G+3}")
    A(f"v_and_b32 v{G+5}, 3, v0")
    A(f"v_lshl_add_u32 v{G+3}, v{G+5}, 3, v{G+3}")
    A(f"s_lshl_b32 s{T+5}, s{T+3}, 8")
    A(f"v_add_u32 v{V_WR}, s{T+5}, v{G+3}")
    for b in range(1, 8):
        A(f"v_xor_b32 v{V_WR+b}, {b*32}, v{V_WR}")
    A(f"v_lshrrev_b32 v{G+3}, 5, v0")
    A(f"v_lshl_add_u32 v{G+3}, v{G+3}, 4, v{G+4}")
    A(f"v_lshlrev_b32 v{G+3}, 8, v{G+3}")
    A(f"v_lshl_add_u32 v{G+3}, v{G+4}, 5, v{G+3}")
    A(f"v_lshl_add_u32 v{G+3}, v{G+5}, 3, v{G+3}")
    A(f"v_add_u32 v{G+3}, 16384, v{G+3}")
    A(f"s_lshl_b32 s{T+5}, s{T+3}, 6")
    A(f"v_xor_b32 v{V_PWL}, s{T+5}, v{G+3}")
    A(f"v_xor_b32 v{V_PWL+1}, 32, v{V_PWL}")
    A(f"s_lshl_b32 s{T+5}, s{T+3}, 5")
    A(f"s_add_u32 s{T+5}, s{T+5}, 128")
    A(f"v_xor_b32 v{V_PWL+2}, s{T+5}, v{G+3}")
    A(f"v_lshlrev_b32 v{G+2}, 9, v{G+1}")
    A(f"v_bfe_u32 v{G+3}, v0, 3, 1")
    A(f"v_lshl_add_u32 v{G+4}, v{G+3}, 8, v{G+2}")
    A(f"v_and_b32 v{G+3}, 7, v0")
    A(f"v_lshl_add_u32 v{V_OA}, v{G+3}, 4, v{G+4}")
    A(f"v_lshl_add_u32 v{V_OAV}, v{G}, 4, v{G+2}")
    A(f"v_mov_b32 v{V_SCHI}, s{S_SCA}")
    A(f"v_cmp_gt_u32 vcc, 3, v{G+1}")
    A("s_nop 1")
    A(f"v_cndmask_b32 v{V_SCHI}, 0, v{V_SCHI}, vcc")
    A(f"s_lshl_b32 s{T+5}, s{T+3}, 4")
    A(f"v_add_u32 v{G+2}, s{T+5}, v{G}")
    A(f"v_cmp_gt_u32 vcc, 28, v{G+2}")
    A("s_nop 1")
    A(f"v_cndmask_b32 v{V_MULHI}, 0, 1.0, vcc")
    A(f"v_cmp_eq_u32 vcc, 28, v{G+2}")
    A("s_nop 1")
    A(f"v_cndmask_b32 v{V_ADDHI}, 0, 1.0, vcc")
    A(f"s_lshl_b32 s{T+6}, s{T+2}, 15")
    A(f"s_lshl_b32 s{T+5}, s{T+3}, 12")
    A(f"s_add_u32 s{T+6}, s{T+6}, s{T+5}")
    A(f"s_add_u32 s{T+6}, s{T+6}, {XQ}")
    A(f"v_add_u32 v{V_XQW}, s{T+6}, v{V_LANE16}")
    A(f"s_lshl_b32 s{T+6}, s{S_WAVE}, 14")
    A(f"s_add_u32 s{T+6}, s{T+6}, {XQ}")
    A(f"v_add_u32 v{V_XQR}, s{T+6}, v{V_LANE16}")
    A("s_waitcnt vmcnt(16)")
    c = V_CV
    A(f"v_mov_b32 v{c+4}, 0")
    for i in range(8):
        x, g = 192 + i, 200 + i
        A(f"v_lshlrev_b32 v{c}, 16, v{x}")
        A(f"v_and_b32 v{c+1}, 0xffff0000, v{x}")
        A(f"v_lshlrev_b32 v{c+2}, 16, v{g}")
        A(f"v_and_b32 v{c+3}, 0xffff0000, v{g}")
        A(f"v_mul_f32 v{c}, v{c}, v{c+2}")
        A(f"v_mul_f32 v{c+1}, v{c+1}, v{c+3}")
        A(f"v_cvt_pk_bf16_f32 v{c}, v{c}, v{c+1}")
        A(f"v_lshlrev_b32 v{c+1}, 16, v{c}")
        A(f"v_and_b32 v{c}, 0xffff0000, v{c}")
        A(f"v_add_f32 v{c+4}, v{c+4}, v{c+1}")
        A(f"v_add_f32 v{c+4}, v{c+4}, v{c}")
    for r in (8, 4, 2, 1):
        A("s_nop 1")
        A(f"v_add_f32_dpp v{c+4}, v{c+4}, v{c+4} row_ror:{r} row_mask:0xf bank_mask:0xf")
    A(f"v_mov_b32 v{c+5}, v{c+4}")
    A("s_nop 1")
    A(f"v_permlane16_swap_b32 v{c+5}, v{c+4}")
    A("s_nop 1")
    A(f"v_add_f32 v{c+4}, v{c+4}, v{c+5}")
    A(f"v_cvt_pk_bf16_f32 v{c+4}, v{c+4}, v{c+4}")
    A(f"v_lshlrev_b32 v{c+4}, 16, v{c+4}")
    A(f"v_mul_f32 v{c+4}, {f32bits(-LOG2E):#x}, v{c+4}")
    A(f"v_exp_f32 v{c+4}, v{c+4}")
    A("s_nop 0")
    A(f"v_add_f32 v{c+4}, 1.0, v{c+4}")
    A(f"v_rcp_f32 v{c+4}, v{c+4}")
    A("s_nop 0")
    A(f"v_cvt_pk_bf16_f32 v{c+4}, v{c+4}, v{c+4}")
    A(f"v_lshlrev_b32 v{c+4}, 16, v{c+4}")
    A(f"v_lshrrev_b32 v{c+5}, 5, v0")
    A(f"v_lshlrev_b32 v{c+5}, 2, v{c+5}")
    A(f"s_lshl_b32 s{T+4}, s{S_PHASE}, 2")
    A(f"s_add_u32 s{T+4}, s{T+4}, {WS_G}")
    A("s_mov_b32 exec_lo, 1")
    A("s_mov_b32 exec_hi, 1")
    A(f"buffer_store_dword v{c+4}, v{c+5}, {sr(SRD_WS,4)}, s{T+4} offen sc1")
    A("s_mov_b64 exec, -1")
    A(f"s_mov_b32 s{S_LEFT}, {cfg.get('touch_at', 3)}")
    A(f"s_mov_b32 s{S_PHASE}, 0")
    A(f"s_mov_b32 s{SRD_WS+2}, 0")
    A(f"s_lshl_b32 s{S_TOFF}, s2, 2")
    A(f"s_add_u32 s{S_TOFF}, s{S_TOFF}, s{S_WAVE}")
    A(f"s_lshl_b32 s{S_TOFF}, s{S_TOFF}, 12")
    A(f"v_lshlrev_b32 v{V_TCH}, 6, v0")
    A("s_barrier")
    A.emit_list(g_reads(0, 0))
    A("s_waitcnt lgkmcnt(0)")
    A(f"s_cmp_eq_u32 s{S_TYPE}, 1")
    A("s_cbranch_scc1 LG_VT")
    n_early = cfg.get("n_early", 7)
    for typ in ("KQ", "V"):
        if typ == "V":
            A.label("LG_VT")
        g_step(A, typ, True, cfg)
        A.label(f"LG_LOOP_{typ}")
        g_step(A, typ, False, cfg)
        A(f"s_cbranch_scc1 LG_LOOP_{typ}")
        A(f"s_add_u32 s{S_PHASE}, s{S_PHASE}, 1")
        A(f"s_mov_b32 s{S_LEFT}, 1")
        tl = ((P_WQ, 448*4096*2), (P_X, 2048*448*2), (P_WQKV, 448*1344*2), (P_WOB, 4096*448*2), (P_WOA, 448*448*2))
        for k, (ptr, size) in enumerate(tl):
            ln = A.newlabel("LEV")
            A(f"s_cmp_lg_u32 s{S_PHASE}, {k+1}")
            A(f"s_cbranch_scc1 {ln}")
            A(f"s_mov_b32 s{SRD_WS}, s{ptr}")
            A(f"s_mov_b32 s{SRD_WS+1}, s{ptr+1}")
            A(f"s_mov_b32 s{SRD_WS+2}, {size if cfg.get('touch', 1) else 0}")
            if k == 0:
                A(f"s_cmp_lg_u32 s{S_WAVE}, 0")
                A(f"s_cbranch_scc1 LG_LOOP_{typ}")
                A(f"v_mov_b32 v{V_SIG}, 1")
                A(f"v_mov_b32 v{V_SIG+1}, 0")
                A("s_mov_b64 exec, 1")
                A(f"buffer_atomic_add v{V_SIG}, v{V_SIG+1}, {sr(SRD_DBG,4)}, 0 offen offset:{C_INIT*4}")
                A("s_mov_b64 exec, -1")
            A(f"s_branch LG_LOOP_{typ}")
            A.label(ln)
        A(f"s_cmp_eq_u32 s{S_PHASE}, 9")
        A(f"s_cbranch_scc1 LG_EPI_{typ}")
        A(f"s_cmp_eq_u32 s{S_PHASE}, 8")
        A(f"s_cbranch_scc1 LG_SW_{typ}")
        ln = A.newlabel("LEV")
        A(f"s_cmp_lg_u32 s{S_PHASE}, 6")
        A(f"s_cbranch_scc1 {ln}")
        lpc = A.newlabel("LPC")
        A(f"s_getpc_b64 {sr(SRD_WS,2)}")
        A.label(lpc)
        A(f"s_mov_b32 s{SRD_WS+2}, {'LM_END-' + lpc if cfg.get('codewarm', 1) else 0}")
        A(f"s_lshr_b32 s{S_TOFF}, s2, 3")
        A(f"s_lshl_b32 s{S_TOFF}, s{S_TOFF}, 2")
        A(f"s_add_u32 s{S_TOFF}, s{S_TOFF}, s{S_WAVE}")
        A(f"s_lshl_b32 s{S_TOFF}, s{S_TOFF}, 12")
        A(f"s_branch LG_LOOP_{typ}")
        A.label(ln)
        A(f"s_mov_b32 s{SRD_WS+2}, 0")
        A(f"s_mov_b32 s{S_LEFT}, {14 - 6 - cfg.get('touch_at', 3)}")
        A(f"s_cmp_lg_u32 s{S_WAVE}, 0")
        A(f"s_cbranch_scc1 LG_LOOP_{typ}")
        A(f"v_mov_b32 v{V_SIG+1}, 0")
        A(f"buffer_load_dword v{V_SIG}, v{V_SIG+1}, {sr(SRD_DBG,4)}, 0 offen offset:{C_INIT*4} sc1")
        A(f"s_branch LG_LOOP_{typ}")
        A.label(f"LG_SW_{typ}")
        lok, llp = A.newlabel("LM"), A.newlabel("LM")
        A(f"s_cmp_lg_u32 s{S_WAVE}, 0")
        A(f"s_cbranch_scc1 {lok}")
        A(f"s_mov_b32 s{T+4}, {SPIN_MAX}")
        A.label(llp)
        A(f"v_readfirstlane_b32 s{T+5}, v{V_SIG}")
        A("s_nop 3")
        A(f"s_cmp_ge_u32 s{T+5}, 256")
        A(f"s_cbranch_scc1 {lok}")
        A(f"s_sub_u32 s{T+4}, s{T+4}, 1")
        A(f"s_cmp_eq_u32 s{T+4}, 0")
        A(f"s_cbranch_scc1 {lok}")
        A("s_sleep 32")
        A(f"buffer_load_dword v{V_SIG}, v{V_SIG+1}, {sr(SRD_DBG,4)}, 0 offen offset:{C_INIT*4} sc1")
        A("s_waitcnt vmcnt(0)")
        A(f"s_branch {llp}")
        A.label(lok)
        A(f"s_mov_b32 s{S_LEFT}, 2")
        A(f"s_mov_b32 s{SRD_A}, s{S_X2LO}")
        A(f"s_mov_b32 s{SRD_A+1}, s{S_X2HI}")
        A(f"s_mov_b32 s{SRD_A+2}, s{S_X2N}")
        A(f"s_mov_b32 s{S_XOFF}, s{S_XOFF2}")
        A(f"s_mov_b32 s{S_XSTA}, s{S_XSTA2}")
        A(f"s_mov_b32 s{S_XSTB}, s{S_XSTB2}")
        A(f"s_mov_b32 s{S_XWRAP}, s{S_XWRAP2}")
        A(f"v_mov_b32 v{V_DX}, v{V_DX2}")
        A(f"s_mov_b32 s{SRD_B}, s{P_WQ}")
        A(f"s_mov_b32 s{SRD_B+1}, s{P_WQ+1}")
        A(f"s_mov_b32 s{SRD_B+2}, {448*4096*2}")
        A(f"s_mov_b32 s{S_WOFF}, s{S_WOFF2}")
        A(f"s_branch LG_LOOP_{typ}")
        A.label(f"LG_EPI_{typ}")
        stamp(A, cfg, 1)
        set_srd(A, SRD_WS, P_WS, WS_SIZE)
        A(f"s_mov_b32 s{S_XOFF2}, s{S_OB}")
        A.emit_list(p_addr(16))
        A.emit_list(p_reads(0, 0))
        g_cvt(A, typ, n_early)
        if typ == "KQ":
            A("s_branch LP_START")
    A.label("LP_START")
    if cfg.get("stamp_lp"):
        stamp(A, cfg, 3)
    A("s_waitcnt lgkmcnt(0)")
    rem = list(range(n_early, 32))
    per = cfg.get("st_per", [3, 2, 3, 2, 3, 2, 3, 2, 3, 2])
    k = 0
    for T_ in range(16, 23):
        st = []
        for h in range(2):
            n = per[k] if k < len(per) else 0
            k += 1
            st.append(rem[:n])
            rem = rem[n:]
        p_step(A, T_, st[0], st[1], cfg)
    assert not rem, rem
    stamp(A, cfg, 2)
    b_setup_kv(A)
    def kv_first():
        for w, s_ in (("K", 0), ("V", 0), ("K", 1), ("V", 1), ("K", 2), ("V", 2)):
            emit_chain(A, kv_tile_chain(w, s_))
    A("s_waitcnt vmcnt(0)")
    poll_test(A)
    A(f"s_cselect_b32 s{S_EV}, 1, 0")
    A("s_cbranch_scc0 LP_NOTYET")
    kv_first()
    A.label("LP_NOTYET")
    A(f"s_cmp_eq_u32 s{S_GRP}, 0")
    A("s_cbranch_scc1 LP_NOLATE")
    A(f"s_mov_b32 s{S_OB}, s{S_XOFF2}")
    for c in range(32):
        for o_ in kv_store(c, SRD_WS):
            A(o_.text)
    A("s_nop 1")
    A.label("LP_NOLATE")
    p_epilogue_a(A)
    p_epilogue_q(A)
    b_setup_rest(A)
    A(f"s_cmp_eq_u32 s{S_EV}, 1")
    A("s_cbranch_scc1 LP_HAVE")
    poll_wait(A, True)
    kv_first()
    A.label("LP_HAVE")
    b_main(A, cfg)
    stamp_out(A, cfg, 7, 200 << 20, 2)
    A.label("LQ_NEXT")
    lw = A.newlabel("LQ")
    A(f"s_cmp_lg_u32 s{S_WAVE}, 0")
    A(f"s_cbranch_scc1 {lw}")
    A(f"s_and_b32 s{T}, s2, 7")
    A(f"s_lshl_b32 s{T}, s{T}, 2")
    A(f"v_mov_b32 v{V_POLL}, 1")
    A(f"v_mov_b32 v{V_POLL+1}, 0")
    A("s_mov_b64 exec, 1")
    A(f"buffer_atomic_add v{V_POLL}, v{V_POLL+1}, {sr(SRD_DBG,4)}, s{T} offen offset:{C_QUEUE*4} sc0")
    A("s_waitcnt vmcnt(0)")
    A(f"v_mov_b32 v{V_POLL+1}, {LDS_TOTAL-16}")
    A(f"ds_write_b32 v{V_POLL+1}, v{V_POLL}")
    A("s_mov_b64 exec, -1")
    A.label(lw)
    A("s_waitcnt vmcnt(0) lgkmcnt(0)")
    A("s_barrier")
    ls = A.newlabel("LQ")
    A(f"s_cmp_eq_u32 s{S_RFLAG}, 0")
    A(f"s_cbranch_scc1 {ls}")
    signal(A, S_RFLAG)
    A.label(ls)
    A(f"v_mov_b32 v{V_POLL+1}, {LDS_TOTAL-16}")
    A(f"ds_read_b32 v{V_POLL}, v{V_POLL+1}")
    A("s_waitcnt lgkmcnt(0)")
    A(f"v_readfirstlane_b32 s{S_ITEM}, v{V_POLL}")
    A("s_barrier")
    A(f"s_cmp_ge_u32 s{S_ITEM}, 44")
    A("s_cbranch_scc1 LM_END")
    A(f"s_cmp_ge_u32 s{S_ITEM}, 16")
    A("s_cbranch_scc1 LQ_RED")
    a_item(A, cfg)
    if cfg.get("diag"):
        A(f"s_and_b32 s{T+2}, s2, 7")
        A(f"s_lshl_b32 s{T+3}, s{S_ITEM}, 3")
        A(f"s_add_u32 s{T+2}, s{T+2}, s{T+3}")
        stamp_out(A, cfg, 5, 210 << 20, T + 2)
    A("s_branch LQ_NEXT")
    A.label("LQ_RED")
    A(f"s_mov_b32 s{S_RFLAG}, 0")
    r_item(A, cfg)
    if cfg.get("diag"):
        A(f"s_and_b32 s{T+2}, s2, 7")
        A(f"s_sub_u32 s{T+3}, s{S_ITEM}, 16")
        A(f"s_lshl_b32 s{T+3}, s{T+3}, 3")
        A(f"s_add_u32 s{T+2}, s{T+2}, s{T+3}")
        stamp_out(A, cfg, 3, 220 << 20, T + 2)
    A("s_branch LQ_NEXT")
    flush_ool(A)
    b_rare(A, 0)
    b_rare(A, 1)
    a_rare(A, 0)
    a_rare(A, 1)
    A.label("LM_END")
    A("s_endpgm")
    return kernel_desc(name, 512, 102, 256)
```

```python
import sys, json
from asmlib import *
import gen_l1

HEADER = open("gated_mix__mha_block__compressed_kv_cla__prompt.s.ref").read().split("; Override launch")[0]

def build(path, parts, cfg=None):
    cfg = cfg or {}
    A = Asm()
    launches = []
    descs = []
    if "l1" in parts:
        launches.append(f"; @launch kernel=proj_kernel grid=(256,1,1) block=(256,1,1) lds={gen_l1.LDS_TOTAL}")
        descs.append(gen_l1.gen_l1(A, "proj_kernel", cfg.get("l1")))
    if "l2" in parts:
        import gen_l2
        launches.append(gen_l2.launch_line(cfg.get("l2")))
        descs.append(gen_l2.gen_l2(A, "attn_kernel", cfg.get("l2")))
    if "mega" in parts:
        import gen_mega
        launches.append(gen_mega.launch_line(cfg.get("mega")))
        descs.append(gen_mega.gen_mega(A, "mega_kernel", cfg.get("mega")))
    if "l3" in parts:
        import gen_l3
        launches.append(gen_l3.launch_line(cfg.get("l3")))
        descs.append(gen_l3.gen_l3(A, "final_kernel", cfg.get("l3")))
    if cfg.get("final"):
        assert parts == ["mega"]
        launches = [launches[0].replace("kernel=mega_kernel ", "")]
    txt = HEADER + "\n".join(launches) + "\n" + '.amdgcn_target "amdgcn-amd-amdhsa--gfx950"\n' + A.text() + "".join(descs)
    if cfg.get("final"):
        txt = txt.replace("mega_kernel", "gated_mix__mha_block__compressed_kv_cla__prompt_kernel")
    open(path, "w").write(txt)

if __name__ == "__main__":
    path = sys.argv[1]
    parts = sys.argv[2].split(",")
    cfg = json.loads(sys.argv[3]) if len(sys.argv) > 3 else {}
    build(path, parts, cfg)
```

```python
import math
from asmlib import *

WS_K = 0
WS_V = 16 << 20
WS_QA = 48 << 20
WS_KA = 50 << 20
WS_VA = 52 << 20
WS_P = 64 << 20
WS_SIZE = 256 << 20
P_SLOT = 128 * 14 * 1024
LOG2E = math.log2(math.e)
SCALE_B = LOG2E / 16.0
SCALE_A = LOG2E / math.sqrt(28.0)
LDS_TOTAL = 163840
LDS_X0 = 65536
BIAS = 32.0
NEG_INF = 0xff800000
HUGE = WS_SIZE
SPIN_MAX = 1 << 16

C_INIT, C_QUEUE = 0, 16
WS_F = 240 << 20
F_KV, F_AQ, F_ROW = WS_F, WS_F + 8192, WS_F + 12288
WS_G = 241 << 20

P_X, P_WQKV, P_WOA, P_CKV, P_WQ, P_WUK, P_WUV = 4, 6, 30, 12, 14, 16, 18
P_WOB, P_GATE, P_OUT, P_DBG, P_WS = 20, 22, 24, 26, 28
SRD_A, SRD_B, SRD_WS, SRD_DBG = 32, 36, 40, 44
S_WAVE, S_TYPE, S_HEAD, S_QB = 48, 49, 50, 51
S_XOFF, S_WOFF, S_XSTA, S_XSTB, S_XWRAP, S_W4, S_W12 = 52, 53, 54, 55, 56, 57, 58
S_XRD, S_XWR, S_WWR, S_XWAVE, S_LEFT, S_PHASE = 59, 60, 61, 62, 63, 64
S_OB, S_OSTA, S_OSTB = 65, 66, 67
S_XOFF2, S_WOFF2, S_XSTA2, S_XSTB2, S_XWRAP2, S_X2LO, S_X2HI, S_X2N = 68, 69, 70, 71, 72, 73, 74, 75
S_OBQK, S_OBV, S_SCA, S_GHEAD = 76, 77, 78, 79
S_N, S_T2, S_TW, S_KOFF, S_VOFF, S_KLIM, S_VLIM, S_B0 = 52, 53, 54, 55, 56, 57, 58, 59
S_RET = 60
S_FLOOR, S_FIRST = 62, 64
S_WOOFF, S_POFF, S_MASK, S_HUGE, S_WOW = 65, 66, 67, 68, 69
S_SC = 70
S_ITEM = 72
S_SPIN = 73
S_EV = 74
S_PADDR = 75
S_RMASK = 77
S_AQOK = 79
S_POPPED = 49
S_KAP = 78
S_RFLAG = 76
S_TMP = 80
S_STAMP = 88
SRD_E = 8
S_TOFF = 87
V_TCH = 40
S_GRP = 3

V_LANE16 = 1
V_XL0, V_XL1, V_XR0, V_XR1 = 2, 3, 4, 5
V_WR = 6
V_DX, V_DW, V_DX2 = 14, 15, 16
V_OA, V_OAV, V_SCHI, V_MULHI, V_ADDHI = 17, 18, 19, 20, 21
V_PXL = 22
V_PWL = 24
V_PWR = 27
V_XQW, V_XQR = 30, 31
V_G = 32
V_CV = 48
FX = [64, 128]
FW = [96, 160]
V_PK = 128
V_DKV = 2
V_RB1, V_RB0 = 3, 4
V_CB = 6
V_L = 8
V_DM = 10
V_LT = 14
V_T = 16
V_WOD = 32
V_WOR = 40
V_POLL = 44
V_SIG = 46
V_POP = 5
VP = [48, 56]
VS = [64, 80]
VC = 96
VE = 112
VO = 128
AQ, AK, AV = 0, 64, 128
XQ = 98304

OOL = []


def flush_ool(A):
    for b in OOL:
        A.emit_list(b)
    OOL.clear()


def emit_chain(A, c):
    prev = ""
    for o in c:
        if o.kind == "M" and prev.split(",")[0].endswith(" m0"):
            A("s_nop 0")
        A(o.text)
        prev = o.text


def emit_left(A, left):
    for l in left:
        A(l)
        if l.split(",")[0].endswith(" m0") or l.startswith("v_exp"):
            A("s_nop 0")


def spread(n_items, start, end):
    if n_items == 1:
        return [start]
    return [start + (i * (end - start)) // (n_items - 1) for i in range(n_items)]


def set_srd(A, srd, ptr, size):
    A(f"s_mov_b32 s{srd}, s{ptr}")
    A(f"s_mov_b32 s{srd+1}, s{ptr+1}")
    A(f"s_mov_b32 s{srd+2}, {size}")
    A(f"s_mov_b32 s{srd+3}, 0x20000")


def stamp(A, cfg, i):
    if cfg.get("diag"):
        A(f"s_memrealtime {sr(S_STAMP+2*i,2)}")


def stamp_out(A, cfg, n, wsoff, idx_sgpr):
    if cfg.get("diag"):
        A("s_waitcnt vmcnt(0) lgkmcnt(0)")
        A(f"s_memrealtime {sr(S_STAMP+2*(n-1),2)}")
        A("s_waitcnt lgkmcnt(0)")
        A(f"s_lshl_b32 s{S_TMP}, s{idx_sgpr}, 8")
        A(f"s_lshl_b32 s{S_TMP+1}, s{S_WAVE}, 6")
        A(f"s_add_u32 s{S_TMP}, s{S_TMP}, s{S_TMP+1}")
        A(f"s_add_u32 s{S_TMP}, s{S_TMP}, {wsoff}")
        A(f"v_mov_b32 v{V_T+1}, 0")
        for i in range(n):
            A(f"v_mov_b32 v{V_T}, s{S_STAMP+2*i}")
            A(f"buffer_store_dword v{V_T}, v{V_T+1}, {sr(SRD_WS,4)}, s{S_TMP} offen offset:{4*i}")
            A("s_nop 1")


def signal(A, off_sgpr, grp=None, mask_sgpr=None):
    l = A.newlabel("LSG")
    A(f"s_cmp_lg_u32 s{S_WAVE}, 0")
    A(f"s_cbranch_scc1 {l}")
    if grp is not None:
        A(f"s_cmp_lg_u32 s{S_GRP}, {grp}")
        A(f"s_cbranch_scc1 {l}")
    A(f"v_mov_b32 v{V_SIG}, 1")
    A(f"v_lshlrev_b32 v{V_SIG+1}, 5, v0")
    A("s_mov_b64 exec, 1")
    if mask_sgpr is not None:
        A(f"s_mov_b32 exec_lo, s{mask_sgpr}")
    A(f"buffer_store_dword v{V_SIG}, v{V_SIG+1}, {sr(SRD_WS,4)}, s{off_sgpr} offen sc1")
    A("s_mov_b64 exec, -1")
    A.label(l)


def pop_issue(A):
    l = A.newlabel("LPO")
    A(f"s_mov_b32 s{S_POPPED}, 1")
    A(f"s_cmp_lg_u32 s{S_WAVE}, 0")
    A(f"s_cbranch_scc1 {l}")
    A(f"s_and_b32 s{S_TMP+7}, s2, 7")
    A(f"s_lshl_b32 s{S_TMP+7}, s{S_TMP+7}, 2")
    A(f"v_mov_b32 v{V_POP}, 1")
    A(f"v_mov_b32 v{V_SIG+1}, 0")
    A("s_mov_b64 exec, 1")
    A(f"buffer_atomic_add v{V_POP}, v{V_SIG+1}, {sr(SRD_DBG,4)}, s{S_TMP+7} offen offset:{C_QUEUE*4} sc0")
    A("s_mov_b64 exec, -1")
    A.label(l)


def poll_issue(A, idx_sgpr, base, nwords):
    A(f"s_lshl_b32 s{S_PADDR}, s{idx_sgpr}, 8")
    A(f"s_add_u32 s{S_PADDR}, s{S_PADDR}, {base}")
    A(f"v_min_u32 v{V_POLL+1}, {nwords-1}, v0")
    A(f"v_lshlrev_b32 v{V_POLL+1}, 2, v{V_POLL+1}")
    A(f"buffer_load_dword v{V_POLL}, v{V_POLL+1}, {sr(SRD_WS,4)}, s{S_PADDR} offen sc1")


def poll_test(A):
    A(f"v_cmp_eq_u32 vcc, 1, v{V_POLL}")
    A("s_nop 3")
    A("s_cmp_eq_u64 vcc, -1")


def poll_wait(A, reissue_first=False):
    lok, lloop = A.newlabel("LPK"), A.newlabel("LPL")
    A(f"s_mov_b32 s{S_SPIN}, {SPIN_MAX}")
    if reissue_first:
        A(f"buffer_load_dword v{V_POLL}, v{V_POLL+1}, {sr(SRD_WS,4)}, s{S_PADDR} offen sc1")
    A.label(lloop)
    A("s_waitcnt vmcnt(0)")
    poll_test(A)
    A(f"s_cbranch_scc1 {lok}")
    A(f"s_sub_u32 s{S_SPIN}, s{S_SPIN}, 1")
    A(f"s_cmp_eq_u32 s{S_SPIN}, 0")
    A(f"s_cbranch_scc1 {lok}")
    A("s_sleep 8")
    A(f"buffer_load_dword v{V_POLL}, v{V_POLL+1}, {sr(SRD_WS,4)}, s{S_PADDR} offen sc1")
    A(f"s_branch {lloop}")
    A.label(lok)


def acc(nb, tb):
    return (nb * 8 + tb) * 4


def g_mfmas(typ, s, first):
    out = []
    for nb in range(8):
        for tb in range(8):
            a = acc(nb, tb)
            w, x = vr(FW[s] + 4 * nb, 4), vr(FX[s] + 4 * tb, 4)
            c = "0" if first else ar(a, 4)
            out.append(f"v_mfma_f32_16x16x32_bf16 {ar(a,4)}, {w}, {x}, {c}" if typ == "KQ"
                       else f"v_mfma_f32_16x16x32_bf16 {ar(a,4)}, {x}, {w}, {c}")
    return out


def g_reads(s, hh):
    vx = V_XR0 if hh == 0 else V_XR1
    out = [f"ds_read_b128 {vr(FX[s]+4*i,4)}, v{vx} offset:{i*2048}" for i in range(8)]
    for i in range(8):
        out.append(f"ds_read_b64_tr_b16 {vr(FW[s]+4*i,2)}, v{V_WR+i} offset:{hh*16384}")
        out.append(f"ds_read_b64_tr_b16 {vr(FW[s]+4*i+2,2)}, v{V_WR+i} offset:{hh*16384+2048}")
    return out


def dma_x():
    c = [Op(f"s_mov_b32 m0, s{S_XWR}", "S")]
    for i in range(8):
        c.append(Op(f"buffer_load_dwordx4 v{V_DX}, {sr(SRD_A,4)}, s{S_XOFF} offen lds", "M"))
        if i < 7:
            c.append(Op("s_add_u32 m0, m0, 2048", "S"))
            c.append(Op(f"s_add_u32 s{S_XOFF}, s{S_XOFF}, s{S_XSTA if i % 2 == 0 else S_XSTB}", "S"))
        else:
            c.append(Op(f"s_add_u32 s{S_XOFF}, s{S_XOFF}, s{S_XWRAP}", "S"))
            c.append(Op(f"s_add_u32 s{S_XWR}, s{S_XWR}, 32768", "S"))
            c.append(Op(f"s_cmp_ge_u32 s{S_XWR}, {LDS_TOTAL}", "S"))
            c.append(Op(f"s_cselect_b32 s{S_XWR}, s{S_XWAVE}, s{S_XWR}", "S"))
    return c


def dma_w():
    c = [Op(f"s_mov_b32 m0, s{S_WWR}", "S")]
    for i in range(8):
        c.append(Op(f"buffer_load_dwordx4 v{V_DW}, {sr(SRD_B,4)}, s{S_WOFF} offen lds", "M"))
        if i % 2 == 0:
            c.append(Op("s_add_u32 m0, m0, 2048", "S"))
            c.append(Op(f"s_add_u32 s{S_WOFF}, s{S_WOFF}, {4*8192}", "S"))
        else:
            if i < 7:
                c.append(Op("s_add_u32 m0, m0, 6144", "S"))
            c.append(Op(f"s_add_u32 s{S_WOFF}, s{S_WOFF}, {12*8192}", "S"))
        if i == 7:
            c.append(Op(f"s_xor_b32 s{S_WWR}, s{S_WWR}, 32768", "S"))
    return c


HT = "DFDMDFDF" * 6 + "FMFFFFFM" + "FFFFFFFX"


def g_step(A, typ, first, cfg):
    lastD = max(i for i, c in enumerate(HT) if c == "D")
    va = [Op(f"v_add_u32 v{V_XR0}, s{S_XRD}, v{V_XL0}", "V", min_gap=lastD + 1),
          Op(f"v_add_u32 v{V_XR1}, s{S_XRD}, v{V_XL1}", "V", min_gap=lastD + 1)]
    va += [Op(f"v_xor_b32 v{V_WR+i}, 0x8000, v{V_WR+i}", "V", min_gap=lastD + 1) for i in range(8)]
    tch = [Op(f"buffer_load_dword v{V_TCH+1}, v{V_TCH}, {sr(SRD_WS,4)}, s{S_TOFF} offen", "M")]
    ht1 = HT[:60] + "M" + HT[61:]
    out, _ = schedule(g_mfmas(typ, 0, first), ht1, g_reads(1, 1), dma_x() + tch, va,
                      {63: ["s_waitcnt vmcnt(9) lgkmcnt(0)", "s_barrier"]})
    A.emit_list(out)
    ch = [Op(f"s_add_u32 s{S_XRD}, s{S_XRD}, 32768", "S"), Op(f"s_cmp_ge_u32 s{S_XRD}, {LDS_TOTAL}", "S"),
          Op(f"s_cselect_b32 s{S_XRD}, {LDS_X0}, s{S_XRD}", "S")]
    ch = ch + dma_w() + [Op(f"s_sub_u32 s{S_LEFT}, s{S_LEFT}, 1", "S"), Op(f"s_cmp_lg_u32 s{S_LEFT}, 0", "S")]
    out, _ = schedule(g_mfmas(typ, 1, False), HT, g_reads(0, 0), ch, [], {63: ["s_waitcnt lgkmcnt(0)"]})
    A.emit_list(out)


KVFL = "sc1"


def kv_store(c, srd=None):
    srd = SRD_E if srd is None else srd
    ops = []
    if c and c % 4 == 0:
        ops.append(Op(f"s_add_u32 s{S_OB}, s{S_OB}, s{S_OSTA if (c // 4) % 2 == 1 else S_OSTB}", "S"))
    ops.append(Op(f"buffer_store_dwordx4 {vr(V_PK+4*c,4)}, v{V_LANE16}, {sr(srd,4)}, s{S_OB} offen offset:{(c%4)*1024} {KVFL}", "M"))
    return ops


def g_cvt(A, typ, n_early):
    for c in range(32):
        hi, lo = c // 4, c % 4
        if typ == "KQ":
            o, p = hi, lo
            regs = [acc(2 * p, o) + r for r in range(4)] + [acc(2 * p + 1, o) + r for r in range(4)]
        else:
            p, o = hi >> 1, (hi & 1) * 4 + lo
            regs = [acc(o, 2 * p) + r for r in range(4)] + [acc(o, 2 * p + 1) + r for r in range(4)]
        t = V_CV + (c % 2) * 8
        for i, r in enumerate(regs):
            A(f"v_accvgpr_read_b32 v{t+i}, a{r}")
        for i in range(4):
            A(f"v_cvt_pk_bf16_f32 v{V_PK+4*c+i}, v{t+2*i}, v{t+2*i+1}")
        if n_early == 32:
            for o_ in kv_store(c):
                A(o_.text)
        else:
            k0, k1 = (c * n_early) // 32, ((c + 1) * n_early) // 32
            for k in range(k0, k1):
                for o_ in kv_store(k):
                    A(o_.text)


PF = [("v", 64), ("a", 176)]


def pfr(s, off, n):
    k, b = PF[s]
    return vr(b + off, n, k)


def p_mfmas(s, first):
    out = []
    for db in range(8):
        for tb in range(4):
            a = ar((db * 4 + tb) * 4, 4)
            out.append(f"v_mfma_f32_16x16x32_bf16 {a}, {pfr(s,16+4*db,4)}, {pfr(s,4*tb,4)}, {'0' if first else a}")
    for u in range(3):
        for tb in range(4):
            a = ar(128 + (u * 4 + tb) * 4, 4)
            w, x = pfr(s, 48 + 4 * u, 4), pfr(s, 4 * tb, 4)
            out.append(f"v_mfma_f32_16x16x32_bf16 {a}, {w}, {x}, {'0' if first else a}" if u < 2
                       else f"v_mfma_f32_16x16x32_bf16 {a}, {x}, {w}, {'0' if first else a}")
    return out


def p_reads(s, hh):
    out = [f"ds_read_b128 {pfr(s,4*tb,4)}, v{V_XR0+hh} offset:{tb*2048}" for tb in range(4)]
    for b in range(8):
        for e in range(2):
            out.append(f"ds_read_b64_tr_b16 {pfr(s,16+4*b+2*e,2)}, v{V_WR+b} offset:{hh*16384+e*2048}")
    for u in range(3):
        for e in range(2):
            out.append(f"ds_read_b64_tr_b16 {pfr(s,48+4*u+2*e,2)}, v{V_PWR+u} offset:{hh*8192+e*2048}")
    return out


def p_addr(T):
    base = LDS_X0 + (T % 3) * 32768
    return ([f"v_add_u32 v{V_XR0+h}, {base}, v{V_PXL+h}" for h in range(2)] +
            [f"v_add_u32 v{V_PWR+u}, {base}, v{V_PWL+u}" for u in range(3)])


def merge_chain(dmas, stores):
    out = []
    k = 0
    stores = list(stores)
    for o in dmas:
        out.append(o)
        if o.kind == "M":
            k += 1
            if k % 2 == 0 and stores:
                out += stores.pop(0)
    for s in stores:
        out += s
    return out


PT = "DDM" * 13 + "FFFFX"


def p_step(A, T, st1, st2, cfg):
    lastD = max(i for i, c in enumerate(PT) if c == "D")
    last = T == 22
    ch = merge_chain(dma_x() if T + 2 <= 22 else [], [kv_store(c) for c in st1])
    n_young = sum(1 for o in ch if o.kind == "M")
    va = []
    if not last:
        va = [Op(t, "V", min_gap=lastD + 1) for t in p_addr(T + 1)]
        va += [Op(f"v_xor_b32 v{V_WR+i}, 0x8000, v{V_WR+i}", "V", min_gap=lastD + 1) for i in range(8)]
    out, left = schedule(p_mfmas(0, T == 16), PT, p_reads(1, 1), ch, va, {}, strict=False)
    A.emit_list(out)
    emit_left(A, left)
    A(f"s_waitcnt vmcnt({n_young}) lgkmcnt(0)")
    A("s_barrier")
    if T == cfg.get("sig_at", 18):
        assert not st1 and not st2
        signal(A, S_GHEAD, grp=0)
    if last:
        poll_issue(A, S_HEAD, F_KV, 8)
    ch = merge_chain(dma_w() if T + 2 <= 22 else [], [kv_store(c) for c in st2])
    out, left = schedule(p_mfmas(1, False), PT, [] if last else p_reads(0, 0), ch, [], {}, strict=False)
    A.emit_list(out)
    emit_left(A, left)
    A("s_waitcnt lgkmcnt(0)")


def p_epilogue_a(A):
    gi = 0
    for tb in range(4):
        t = 64 + gi * 12
        gi += 1
        lo, hi = 128 + tb * 4, 128 + (4 + tb) * 4
        for r in range(4):
            A(f"v_accvgpr_read_b32 v{t+r}, a{lo+r}")
            A(f"v_accvgpr_read_b32 v{t+4+r}, a{hi+r}")
        for r in range(4):
            A(f"v_mul_f32 v{t+r}, s{S_SCA}, v{t+r}")
            A(f"v_mul_f32 v{t+4+r}, v{V_SCHI}, v{t+4+r}")
        for i in range(4):
            A(f"v_cvt_pk_bf16_f32 v{t+8+i}, v{t+2*i}, v{t+2*i+1}")
        A(f"buffer_store_dwordx4 {vr(t+8,4)}, v{V_OA}, {sr(SRD_WS,4)}, s{S_OBQK} offen offset:{(tb>>1)*2048+(tb&1)*128} sc1")
    for p in range(2):
        t = 128 + p * 12
        lo, hi = 128 + (8 + 2 * p) * 4, 128 + (8 + 2 * p + 1) * 4
        for r in range(4):
            A(f"v_accvgpr_read_b32 v{t+r}, a{lo+r}")
            A(f"v_accvgpr_read_b32 v{t+4+r}, a{hi+r}")
        for r in range(8):
            A(f"v_fma_f32 v{t+r}, v{t+r}, v{V_MULHI}, v{V_ADDHI}")
        for i in range(4):
            A(f"v_cvt_pk_bf16_f32 v{t+8+i}, v{t+2*i}, v{t+2*i+1}")
        A(f"buffer_store_dwordx4 {vr(t+8,4)}, v{V_OAV}, {sr(SRD_WS,4)}, s{S_OBV} offen offset:{p*2048} sc1")


def p_epilogue_q(A):
    gi = 0
    for tb in range(4):
        for p in range(4):
            t = 160 + (gi % 8) * 12
            gi += 1
            lo, hi = ((2 * p) * 4 + tb) * 4, ((2 * p + 1) * 4 + tb) * 4
            for r in range(4):
                A(f"v_accvgpr_read_b32 v{t+r}, a{lo+r}")
                A(f"v_accvgpr_read_b32 v{t+4+r}, a{hi+r}")
            for r in range(0, 8, 2):
                A(f"v_pk_mul_f32 {vr(t+r,2)}, {vr(t+r,2)}, {sr(S_SC,2)}")
            for i in range(4):
                A(f"v_cvt_pk_bf16_f32 v{t+8+i}, v{t+2*i}, v{t+2*i+1}")
            A(f"ds_write_b128 v{V_XQW}, {vr(t+8,4)} offset:{tb*8192+p*1024}")


def s_reg(buf, kb, qb):
    return VS[buf] + (kb * 2 + qb) * 4


def c_reg(kb, qb):
    return VC + (kb * 2 + qb) * 4


def o_reg(db, qb):
    return VO + (db * 2 + qb) * 4


def qk_mfmas(buf):
    out = []
    for dg in range(8):
        for kb in range(2):
            for qb in range(2):
                d = vr(s_reg(buf, kb, qb), 4)
                c = vr(c_reg(kb, qb), 4) if dg == 0 else d
                out.append(f"v_mfma_f32_16x16x32_bf16 {d}, {ar(AK+(kb*8+dg)*4,4)}, {ar(AQ+(qb*8+dg)*4,4)}, {c}")
    return out


def pv_mfmas(pbuf):
    out = []
    for db in range(16):
        for qb in range(2):
            d = vr(o_reg(db, qb), 4)
            out.append(f"v_mfma_f32_16x16x32_bf16 {d}, {ar(AV+db*4,4)}, {vr(VP[pbuf]+qb*4,4)}, {d}")
    return out


def k_reads(vbase, off):
    return [f"ds_read_b128 {ar(AK+(kb*8+dg)*4,4)}, v{vbase} offset:{off+(kb*8+dg)*1024}"
            for dg in range(8) for kb in range(2)]


def v_reads(vbase, off):
    return [f"ds_read_b128 {ar(AV+db*4,4)}, v{vbase} offset:{off+db*1024}" for db in range(16)]


def softmax_oplist(buf, pbuf, with_l=True):
    ops = []
    ladd = []
    if with_l:
        ladd = [Op(f"v_add_f32 v{V_L+qb}, v{V_L+qb}, v{V_LT+qb}", "V") for qb in range(2)]
        ops += ladd
    lastsum = []
    for qb in range(2):
        prev = None
        for kb in range(2):
            s = s_reg(buf, kb, qb)
            e = VE + (kb * 2 + qb) * 4
            ex = [Op(f"v_exp_f32 v{e+r}, v{s+r}", "E") for r in range(4)]
            ops += ex
            ops.append(Op(f"v_cvt_pk_bf16_f32 v{VP[pbuf]+qb*4+kb*2}, v{e}, v{e+1}", "V", [ex[0], ex[1]]))
            ops.append(Op(f"v_cvt_pk_bf16_f32 v{VP[pbuf]+qb*4+kb*2+1}, v{e+2}, v{e+3}", "V", [ex[2], ex[3]]))
            if kb == 0:
                prev = Op(f"v_add_f32 v{V_LT+qb}, v{e}, v{e+1}", "V", [ex[0], ex[1]] + ([ladd[qb]] if with_l else []))
                ops.append(prev)
                rest = [2, 3]
            else:
                rest = [0, 1, 2, 3]
            for r in rest:
                prev = Op(f"v_add_f32 v{V_LT+qb}, v{V_LT+qb}, v{e+r}", "V", [ex[r], prev])
                ops.append(prev)
        lastsum.append(prev)
    mx = Op(f"v_max_f32 v{V_T+8}, v{V_LT}, v{V_LT+1}", "V", lastsum)
    ops.append(mx)
    ops.append(Op(f"v_cmp_ngt_f32 vcc, 2.0, v{V_T+8}", "V", [mx]))
    return ops


def softmax_linear(buf, pbuf):
    ops = softmax_oplist(buf, pbuf, with_l=False)
    return [o.text for o in ops if o.kind == "E"] + ["s_nop 0"] + [o.text for o in ops if o.kind == "V"]


def kv_dma(soff, i):
    return Op(f"buffer_load_dwordx4 v{V_DKV}, {sr(SRD_WS,4)}, s{soff} offen offset:{i*1024} sc1 lds", "M")


def dma_chain(kdst, vdst, vmin):
    c = [Op(f"s_cmp_lt_u32 s{S_KOFF}, s{S_KLIM}", "S"), Op(f"s_cselect_b32 s{S_TMP}, s{S_KOFF}, s{S_HUGE}", "S"),
         Op(kdst, "S"), Op(f"s_add_u32 s{S_KOFF}, s{S_KOFF}, 16384", "S")]
    c += [kv_dma(S_TMP, i) for i in range(4)]
    c += [Op(f"s_cmp_lt_u32 s{S_VOFF}, s{S_VLIM}", "S", min_gap=vmin),
          Op(f"s_cselect_b32 s{S_TMP+1}, s{S_VOFF}, s{S_HUGE}", "S"),
          Op(vdst, "S"), Op(f"s_add_u32 s{S_VOFF}, s{S_VOFF}, 16384", "S")]
    c += [kv_dma(S_TMP + 1, i) for i in range(4)]
    return c


def kv_tile_chain(which, stage):
    off = S_KOFF if which == "K" else S_VOFF
    c = [Op(f"s_add_u32 m0, s{S_B0}, {stage*32768 + (0 if which == 'K' else 16384)}", "S")]
    c += [kv_dma(off, i) for i in range(4)]
    c.append(Op(f"s_add_u32 s{off}, s{off}, 16384", "S"))
    return c


def c_update(A, tile_sgpr):
    lool, lfull, lback = A.newlabel("LC"), A.newlabel("LC"), A.newlabel("LC")
    o = [f"{lool}:", f"s_cmp_eq_u32 s{tile_sgpr}, s{S_TW}", f"s_cbranch_scc0 {lfull}"]
    for r in range(4):
        o.append(f"v_add_f32 v{c_reg(0,0)+r}, v{V_CB}, v{V_DM+r}")
        o.append(f"v_add_f32 v{c_reg(1,1)+r}, v{V_CB+1}, v{V_DM+r}")
        o.append(f"v_mov_b32 v{c_reg(1,0)+r}, {NEG_INF:#x}")
    o.append(f"s_branch {lback}")
    o.append(f"{lfull}:")
    for r in range(16):
        o.append(f"v_mov_b32 v{VC+r}, {NEG_INF:#x}")
    o.append(f"s_branch {lback}")
    OOL.append(o)
    return [f"s_cmp_ge_u32 s{tile_sgpr}, s{S_TW}", f"s_cbranch_scc1 {lool}\n{lback}:"]


def rare_check(A, sb, pref="LB_RARE"):
    lool, lback = A.newlabel("LR"), A.newlabel("LR")
    OOL.append([f"{lool}:", f"s_call_b64 {sr(S_RET,2)}, {pref}{sb}", f"s_branch {lback}"])
    return f"s_cbranch_vccnz {lool}\n{lback}:"


PH = "DDE" * 8 + "MEMEMEMX"


def b_iter(A, par, cfg, do_sm=True, do_qk=True, last=None):
    pb_cur, pb_nxt = par, 1 - par
    sb_sm, sb_qk = 1 - par, par
    A("s_waitcnt vmcnt(16) lgkmcnt(0)" if do_qk else "s_waitcnt lgkmcnt(0)")
    A("s_barrier")
    if do_sm:
        sm = softmax_oplist(sb_sm, pb_nxt)
        for o in sm:
            if o.kind == "E":
                o.min_gap = 2
    else:
        sm = [Op(f"v_add_f32 v{V_L+qb}, v{V_L+qb}, v{V_LT+qb}", "V") for qb in range(2)]
    vrd = v_reads(V_RB0 if par == 0 else V_RB1, 49152 if par == 0 else 16384)
    if do_qk:
        m = pv_mfmas(pb_cur) + qk_mfmas(sb_qk)
        ds = k_reads(V_RB1, 0 if par == 0 else 32768) + vrd
        cu = c_update(A, S_T2)
        chain = [Op(cu[0], "S"), Op(cu[1], "S"), Op(f"s_add_u32 s{S_T2}, s{S_T2}, 1", "S")]
        if par == 0:
            chain += dma_chain(f"s_add_u32 m0, s{S_B0}, 32768", f"s_add_u32 m0, s{S_B0}, 16384", 31)
        else:
            chain += dma_chain(f"s_xor_b32 m0, s{S_B0}, 65536", f"s_add_u32 m0, s{S_B0}, 49152", 31)
            sm += [Op(f"v_xor_b32 v{V_RB0}, 0x10000, v{V_RB0}", "V", min_gap=56),
                   Op(f"v_xor_b32 v{V_RB1}, 0x10000, v{V_RB1}", "V", min_gap=56)]
            chain[-4:-4] = [Op(f"s_xor_b32 s{S_B0}, s{S_B0}, 65536", "S"), Op(f"s_sub_u32 s{S_LEFT}, s{S_LEFT}, 1", "S")]
        fixed = {31: ["s_waitcnt lgkmcnt(0)"], 63: [rare_check(A, sb_sm)]}
        out, left = schedule(m, PH + PH, ds, chain, sm, fixed)
        A.emit_list(out)
        return
    m = pv_mfmas(pb_cur)
    if do_sm:
        out, left = schedule(m, "EE" + "ED" * 15, vrd, [], sm, {}, strict=False)
        A.emit_list(out)
        A("s_nop 0")
        emit_left(A, left)
        A(rare_check(A, sb_sm))
    else:
        out, left = schedule(m, "E" + "M" * 31, [], last, sm, {}, strict=False)
        A.emit_list(out)
        emit_left(A, left)


def xquad(A, op, v, t):
    A(f"v_mov_b32 v{t}, v{v}")
    A("s_nop 1")
    A(f"v_permlane32_swap_b32 v{t}, v{v}")
    A("s_nop 1")
    A(f"{op} v{v}, v{v}, v{t}")
    A(f"v_mov_b32 v{t}, v{v}")
    A("s_nop 1")
    A(f"v_permlane16_swap_b32 v{t}, v{v}")
    A("s_nop 1")
    A(f"{op} v{v}, v{v}, v{t}")


def b_rare(A, sb):
    A.label(f"LB_RARE{sb}")
    A("s_nop 7")
    A("s_nop 7")
    so = 1 - sb
    for qb in range(2):
        d = V_T + qb
        a, b = s_reg(sb, 0, qb), s_reg(sb, 1, qb)
        A(f"v_max3_f32 v{d}, v{a}, v{a+1}, v{a+2}")
        A(f"v_max3_f32 v{d}, v{d}, v{a+3}, v{b}")
        A(f"v_max3_f32 v{d}, v{d}, v{b+1}, v{b+2}")
        A(f"v_max_f32 v{d}, v{d}, v{b+3}")
        xquad(A, "v_max_f32", d, V_T + 4)
        A(f"v_add_f32 v{d}, {f32bits(BIAS):#x}, v{d}")
        A(f"v_max_f32 v{d}, s{S_FLOOR}, v{d}")
        A(f"v_max_f32 v{V_T+2+qb}, 0, v{d}")
        A(f"v_exp_f32 v{V_T+2+qb}, -v{V_T+2+qb}")
        for kb in range(2):
            for r in range(4):
                A(f"v_sub_f32 v{s_reg(sb,kb,qb)+r}, v{s_reg(sb,kb,qb)+r}, v{d}")
                A(f"v_sub_f32 v{s_reg(so,kb,qb)+r}, v{s_reg(so,kb,qb)+r}, v{d}")
                A(f"v_sub_f32 v{c_reg(kb,qb)+r}, v{c_reg(kb,qb)+r}, v{d}")
        A(f"v_sub_f32 v{V_CB+qb}, v{V_CB+qb}, v{d}")
        A(f"v_mul_f32 v{V_L+qb}, v{V_L+qb}, v{V_T+2+qb}")
    lskip = A.newlabel("LRS")
    A(f"s_cmp_eq_u32 s{S_FIRST}, 1")
    A(f"s_cbranch_scc1 {lskip}")
    for db in range(16):
        for qb in range(2):
            for r in range(4):
                A(f"v_mul_f32 v{o_reg(db,qb)+r}, v{o_reg(db,qb)+r}, v{V_T+2+qb}")
    A.label(lskip)
    A(f"s_mov_b32 s{S_FIRST}, 0")
    A(f"s_mov_b32 s{S_FLOOR}, 0")
    for o in softmax_linear(sb, sb):
        A(o)
    A("s_nop 1")
    A(f"s_setpc_b64 {sr(S_RET,2)}")


WO_SLOT = [4, 0, 1, 2, 3, 4, 0, 1]
VF = 128
VCTX = 64


def wo_chain(chunk, slot):
    c = [Op(f"s_add_u32 s{S_TMP+2}, s{S_WOOFF}, {chunk*32*896}", "S"), Op(f"s_add_u32 m0, s{S_WOW}, {slot*32768}", "S")]
    for i in range(7):
        if i == 4:
            c.append(Op("s_add_u32 m0, m0, 4096", "S"))
        c.append(Op(f"buffer_load_dwordx4 v{V_WOD+i}, {sr(SRD_B,4)}, s{S_TMP+2} offen offset:{(i%4)*1024} lds", "M"))
    return c


def wo_reads(half, fset):
    out = []
    for i in range(14):
        b = 14 * half + i
        f = VF + (fset * 14 + i) * 4
        for e in range(2):
            out.append(f"ds_read_b64_tr_b16 {vr(f+2*e,2)}, v{V_WOR+(b&3)} offset:{(b>>2)*128+e*16*896}")
    return out


def wo_mfmas(half, fset, dg):
    out = []
    for i in range(14):
        b = 14 * half + i
        f = VF + (fset * 14 + i) * 4
        for qb in range(2):
            a = (b * 2 + qb) * 4
            c = "0" if dg == 0 else ar(a, 4)
            out.append(f"v_mfma_f32_16x16x32_bf16 {ar(a,4)}, {vr(f,4)}, {vr(VCTX+(dg*2+qb)*4,4)}, {c}")
    return out


def b_epilogue(A, cfg):
    A("s_nop 7")
    for qb in range(2):
        xquad(A, "v_add_f32", V_L + qb, V_T + 4)
        A(f"v_rcp_f32 v{V_T+2*qb}, v{V_L+qb}")
        A("s_nop 0")
        A(f"v_mov_b32 v{V_T+2*qb+1}, v{V_T+2*qb}")
    for dg in range(8):
        for qb in range(2):
            for a in range(2):
                o = o_reg(2 * dg + a, qb)
                A(f"v_pk_mul_f32 {vr(o,2)}, {vr(o,2)}, {vr(V_T+2*qb,2)}")
                A(f"v_pk_mul_f32 {vr(o+2,2)}, {vr(o+2,2)}, {vr(V_T+2*qb,2)}")
            for a in range(2):
                o = o_reg(2 * dg + a, qb)
                c = VCTX + (dg * 2 + qb) * 4 + 2 * a
                A(f"v_cvt_pk_bf16_f32 v{c}, v{o}, v{o+1}")
                A(f"v_cvt_pk_bf16_f32 v{c+1}, v{o+2}, v{o+3}")
    A("s_waitcnt vmcnt(28)")
    A("s_barrier")
    A.emit_list(wo_reads(0, 0))
    poll_test(A)
    A(f"s_cselect_b32 s{S_AQOK}, 1, 0")
    W = {6: ["s_waitcnt lgkmcnt(14)"], 13: ["s_waitcnt lgkmcnt(14)"], 20: ["s_waitcnt lgkmcnt(14)"]}
    A("s_waitcnt lgkmcnt(0)")
    for dg in range(8):
        out, _ = schedule(wo_mfmas(0, 0, dg), "D" * 28, wo_reads(1, 1), [], [], W)
        A.emit_list(out)
        if dg < 7:
            delta = (WO_SLOT[dg + 1] - WO_SLOT[dg]) * 32768
            for i in range(4):
                A(f"v_add_u32 v{V_WOR+i}, {delta & 0xffffffff:#x}, v{V_WOR+i}")
            issued = min(7, max(4, dg + 3))
            young = max(0, issued - (dg + 1))
            A(f"s_waitcnt vmcnt({7*young}) lgkmcnt(14)")
            A("s_barrier")
            ch = wo_chain(dg + 4, WO_SLOT[dg + 4]) if 5 <= dg + 4 <= 7 else []
            emit_chain(A, ch)
            out, _ = schedule(wo_mfmas(1, 1, dg), "D" * 28, wo_reads(0, 0), [], [], W)
            A.emit_list(out)
            A("s_waitcnt lgkmcnt(14)")
        else:
            A("s_waitcnt lgkmcnt(14)")
            m = wo_mfmas(1, 1, dg)
            A.emit_list(m[:12])
            A("s_waitcnt lgkmcnt(0)")
            A.emit_list(m[12:])
    store_partials(A, 2, cfg)


def store_partials(A, nqb, cfg):
    fl = "sc1"
    pop_issue(A)
    A("s_nop 7")
    gi = 0
    for qb in range(nqb):
        for p in range(14):
            t = 128 + (gi % 8) * 12
            gi += 1
            regs = [((2 * p) * nqb + qb) * 4 + r for r in range(4)] + [((2 * p + 1) * nqb + qb) * 4 + r for r in range(4)]
            for i, r in enumerate(regs):
                A(f"v_accvgpr_read_b32 v{t+i}, a{r}")
            for i in range(4):
                A(f"v_cvt_pk_bf16_f32 v{t+8+i}, v{t+2*i}, v{t+2*i+1}")
            off = (qb * 14 + p) * 1024
            if off % 4096 == 0:
                A(f"s_add_u32 s{S_TMP}, s{S_POFF}, {off}")
            A(f"buffer_store_dwordx4 {vr(t+8,4)}, v{V_LANE16}, {sr(SRD_WS,4)}, s{S_TMP} offen offset:{off%4096} {fl}")


def wo_lane_setup(A):
    T = V_T
    for i in range(7):
        A(f"v_add_u32 v{T}, {64*i}, v0")
        A(f"v_mul_u32_u24 v{T+1}, 1171, v{T}")
        A(f"v_lshrrev_b32 v{T+1}, 16, v{T+1}")
        A(f"v_mul_u32_u24 v{T+2}, 56, v{T+1}")
        A(f"v_sub_u32 v{T+2}, v{T}, v{T+2}")
        A(f"v_bfe_u32 v{T+3}, v{T+1}, 1, 2")
        A(f"v_lshlrev_b32 v{T+3}, 1, v{T+3}")
        A(f"v_xor_b32 v{T+2}, v{T+2}, v{T+3}")
        A(f"v_mul_u32_u24 v{T+1}, 896, v{T+1}")
        A(f"v_lshl_add_u32 v{T+1}, v{T+2}, 4, v{T+1}")
        A(f"v_subrev_u32 v{V_WOD+i}, {(i%4)*1024}, v{T+1}")


def b_setup_kv(A):
    T = S_TMP
    A(f"s_lshl_b32 s{S_N}, s{S_QB}, 2")
    A(f"s_add_u32 s{S_TW}, s{S_N}, s{S_WAVE}")
    A(f"s_add_u32 s{S_N}, s{S_N}, 4")
    A(f"s_lshl_b32 s{S_KOFF}, s{S_HEAD}, 20")
    A(f"s_add_u32 s{S_VOFF}, s{S_KOFF}, {WS_V}")
    A(f"s_lshl_b32 s{T}, s{S_N}, 14")
    A(f"s_add_u32 s{S_KLIM}, s{S_KOFF}, s{T}")
    A(f"s_add_u32 s{S_VLIM}, s{S_VOFF}, s{T}")
    A(f"s_lshl_b32 s{S_B0}, s{S_WAVE}, 12")
    A(f"v_add_u32 v{V_DKV}, s{S_B0}, v{V_LANE16}")
    A(f"s_mov_b32 s{S_SC}, {f32bits(SCALE_B):#x}")
    A(f"s_mov_b32 s{S_SC+1}, {f32bits(SCALE_B):#x}")


def b_setup_rest(A):
    T = S_TMP
    set_srd(A, SRD_B, P_WOB, 4096 * 448 * 2)
    A(f"v_and_b32 v{V_T}, 15, v0")
    A(f"v_lshrrev_b32 v{V_T+1}, 4, v0")
    A(f"v_lshlrev_b32 v{V_T+2}, 2, v{V_T+1}")
    A(f"v_mov_b32 v{V_T+4}, {NEG_INF:#x}")
    for r in range(4):
        A(f"v_add_u32 v{V_T+3}, {r}, v{V_T+2}")
        A(f"v_cmp_gt_u32 vcc, v{V_T+3}, v{V_T}")
        A("s_nop 1")
        A(f"v_cndmask_b32 v{V_DM+r}, 0, v{V_T+4}, vcc")
    A(f"v_bfe_u32 v{V_T+3}, v0, 2, 2")
    A(f"v_add_u32 v{V_T+3}, v{V_T+3}, v{V_T+2}")
    A(f"v_bfe_u32 v{V_T+5}, v{V_T+3}, 1, 2")
    A(f"v_mul_u32_u24 v{V_T+3}, 896, v{V_T+3}")
    A(f"v_and_b32 v{V_T+6}, 3, v0")
    A(f"v_lshl_add_u32 v{V_T+3}, v{V_T+6}, 3, v{V_T+3}")
    A(f"v_add_u32 v{V_T+3}, {WO_SLOT[0]*32768}, v{V_T+3}")
    for b in range(4):
        A(f"v_xor_b32 v{V_T+6}, {b}, v{V_T+5}")
        A(f"v_lshl_add_u32 v{V_WOR+b}, v{V_T+6}, 5, v{V_T+3}")
    wo_lane_setup(A)
    A(f"s_mul_i32 s{S_WOOFF}, s{S_HEAD}, {256*896}")
    A(f"s_mul_i32 s{S_WOW}, s{S_WAVE}, {8*896}")
    A(f"s_add_u32 s{S_WOOFF}, s{S_WOOFF}, s{S_WOW}")
    A(f"s_add_u32 s{S_POFF}, s{S_HEAD}, 4")
    A(f"s_mul_i32 s{S_POFF}, s{S_POFF}, {P_SLOT}")
    A(f"s_lshl_b32 s{T}, s{S_QB}, 2")
    A(f"s_add_u32 s{T}, s{T}, s{S_WAVE}")
    A(f"s_mul_i32 s{T}, s{T}, {2*14*1024}")
    A(f"s_add_u32 s{S_POFF}, s{S_POFF}, s{T}")
    A(f"s_add_u32 s{S_POFF}, s{S_POFF}, {WS_P}")
    A(f"s_lshl_b32 s{S_RFLAG}, s{S_QB}, 8")
    A(f"s_lshl_b32 s{T}, s{S_HEAD}, 2")
    A(f"s_add_u32 s{S_RFLAG}, s{S_RFLAG}, s{T}")
    A(f"s_add_u32 s{S_RFLAG}, s{S_RFLAG}, {F_ROW}")
    A(f"s_mov_b32 s{S_RMASK}, 1")
    A(f"s_mov_b32 s{S_HUGE}, {HUGE}")
    A(f"s_mov_b32 s{S_FLOOR}, {NEG_INF:#x}")
    A(f"s_mov_b32 s{S_FIRST}, 1")
    for r in range(16):
        A(f"v_mov_b32 v{VC+r}, 0")
    for r in (V_CB, V_CB + 1, V_L, V_L + 1, V_LT, V_LT + 1):
        A(f"v_mov_b32 v{r}, 0")
    A(f"v_mov_b32 v{V_RB0}, v{V_LANE16}")
    A(f"v_add_u32 v{V_RB1}, 0x10000, v{V_LANE16}")
    A(f"s_mov_b32 s{S_T2}, 0")
    A.emit_list(c_update(A, S_T2))


def b_main(A, cfg):
    T = S_TMP
    A("s_waitcnt vmcnt(12) lgkmcnt(0)")
    A("s_barrier")
    if not cfg.get("stamp_lp"):
        stamp(A, cfg, 3)
    for i in range(16):
        A(f"ds_read_b128 {ar(AQ+i*4,4)}, v{V_XQR} offset:{i*1024}")
    A.emit_list(k_reads(V_RB0, 0))
    zero = [Op(f"v_mov_b32 v{VO+r}, 0", "V") for r in range(128)]
    for z in zero[:24]:
        A(z.text)
    A("s_waitcnt lgkmcnt(0)")
    out, left = schedule(qk_mfmas(0), "DF" * 16, v_reads(V_RB0, 16384), [], zero[24:72], {})
    A.emit_list(out)
    A.emit_list(k_reads(V_RB0, 32768))
    A(f"s_mov_b32 s{S_T2}, 1")
    A.emit_list(c_update(A, S_T2))
    A("s_waitcnt vmcnt(0) lgkmcnt(0)")
    A("s_barrier")
    A(f"s_lshl_b32 s{T+4}, s{S_HEAD}, 6")
    A(f"s_lshl_b32 s{T+5}, s{S_QB}, 2")
    A(f"s_add_u32 s{T+4}, s{T+4}, s{T+5}")
    A(f"s_add_u32 s{T+4}, s{T+4}, {F_AQ}")
    signal(A, T + 4)
    signal(A, S_GHEAD, grp=1)
    ch = kv_tile_chain("K", 3) + kv_tile_chain("V", 3)
    ch += [Op(f"s_cmp_lt_u32 s{S_KOFF}, s{S_KLIM}", "S"), Op(f"s_cselect_b32 s{T}, s{S_KOFF}, s{S_HUGE}", "S"),
           Op(f"s_mov_b32 m0, s{S_B0}", "S"), Op(f"s_add_u32 s{S_KOFF}, s{S_KOFF}, 16384", "S")]
    ch += [kv_dma(T, i) for i in range(4)]
    out, left = schedule(qk_mfmas(1), "FM" * 16, [], ch, zero[72:], {}, strict=False)
    A.emit_list(out)
    emit_left(A, left)
    A(f"s_call_b64 {sr(S_RET,2)}, LB_RARE0")
    A(f"s_mov_b32 s{S_T2}, 2")
    A(f"s_lshr_b32 s{S_ITEM}, s{S_N}, 1")
    A(f"s_sub_u32 s{S_ITEM}, s{S_ITEM}, 1")
    A(f"s_cmp_ge_u32 s{S_QB}, 8")
    A(f"s_cselect_b32 s{S_LEFT}, 10, s{S_ITEM}")
    A(f"s_cselect_b32 s{S_EV}, 0, 2")
    stamp(A, cfg, 4)
    A.label("LB_LOOP")
    b_iter(A, 0, cfg)
    b_iter(A, 1, cfg)
    A(f"s_cmp_lg_u32 s{S_LEFT}, 0")
    A("s_cbranch_scc1 LB_LOOP")
    A(f"s_cmp_eq_u32 s{S_EV}, 2")
    A("s_cbranch_scc1 LB_DONE")
    A(f"s_cmp_eq_u32 s{S_EV}, 1")
    A("s_cbranch_scc1 LB_EV1")
    A(f"s_mov_b32 s{S_EV}, 1")
    A(f"s_mov_b32 s{S_LEFT}, 2")
    poll_issue(A, S_HEAD, F_KV + 4096, 8)
    A("s_branch LB_LOOP")
    A.label("LB_EV1")
    A(f"s_mov_b32 s{S_EV}, 2")
    A(f"s_sub_u32 s{S_LEFT}, s{S_ITEM}, 12")
    poll_test(A)
    A("s_cbranch_scc1 LB_LOOP")
    poll_wait(A, True)
    A("s_branch LB_LOOP")
    A.label("LB_DONE")
    A("s_waitcnt vmcnt(0)")
    A(f"s_and_b32 s{T+1}, s2, 3")
    poll_issue(A, T + 1, F_AQ, 64)
    emit_chain(A, wo_chain(0, WO_SLOT[0]))
    b_iter(A, 0, cfg, do_qk=False)
    last = []
    for c in range(1, 5):
        last += wo_chain(c, WO_SLOT[c])
    b_iter(A, 1, cfg, do_sm=False, do_qk=False, last=last)
    stamp(A, cfg, 5)
    b_epilogue(A, cfg)


AS = [64, 96]
AC = 128
AO = 160
AP = [192, 208]
AE = 224
QA_, KA_, VA_ = 0, 16, 48
XB = 114688
V_XW = 2
V_OR = 14


def a_qk(buf, slot):
    out = []
    for qb in range(2):
        d = vr(AS[buf] + qb * 16, 16)
        out.append(f"v_mfma_f32_32x32x16_bf16 {d}, {ar(KA_+slot*8,4)}, {ar(QA_+qb*8,4)}, {vr(AC+qb*16,16)}")
    for qb in range(2):
        d = vr(AS[buf] + qb * 16, 16)
        out.append(f"v_mfma_f32_32x32x16_bf16 {d}, {ar(KA_+slot*8+4,4)}, {ar(QA_+qb*8+4,4)}, {d}")
    return out


def a_pv(pbuf, slot):
    out = []
    for g in range(2):
        for qb in range(2):
            d = vr(AO + qb * 16, 16)
            out.append(f"v_mfma_f32_32x32x16_bf16 {d}, {ar(VA_+slot*8+g*4,4)}, {vr(AP[pbuf]+qb*8+g*4,4)}, {d}")
    return out


A_DELAY = 3


def a_softmax(buf):
    s, p = AS[buf], AP[buf]
    out = []
    pend = []
    for k in range(16):
        pend.append((2 * k + 1 + A_DELAY, f"v_cvt_pk_bf16_f32 v{p+k}, v{AE+((2*k)%16)}, v{AE+((2*k+1)%16)}"))
        if k == 2:
            pend.append((2 * k + 2 + A_DELAY, f"v_or_b32 v{V_OR}, v{p}, v{p+1}"))
        elif k > 2 and k % 2 == 0:
            pend.append((2 * k + 2 + A_DELAY, f"v_or3_b32 v{V_OR}, v{V_OR}, v{p+k-2}, v{p+k-1}"))
    for i in range(32):
        out.append(f"v_exp_f32 v{AE+(i%16)}, v{s+i}")
        if pend and pend[0][0] <= i:
            out.append(pend.pop(0)[1])
    out.extend(t for _, t in pend)
    out.append(f"v_or3_b32 v{V_OR}, v{V_OR}, v{p+14}, v{p+15}")
    out.append(f"v_and_b32 v{V_OR}, s{S_MASK}, v{V_OR}")
    out.append(f"v_cmp_ne_u32 vcc, 0, v{V_OR}")
    return out


def a_loads(kslot, vslot):
    k = [f"buffer_load_dwordx4 {ar(KA_+kslot*8+4*s,4)}, v{V_LANE16}, {sr(SRD_WS,4)}, s{S_KOFF} offen offset:{s*1024} sc1" for s in range(2)]
    k += [f"s_add_u32 s{S_KOFF}, s{S_KOFF}, 2048", f"s_min_u32 s{S_KOFF}, s{S_KOFF}, s{S_KLIM}"]
    v = [f"buffer_load_dwordx4 {ar(VA_+vslot*8+4*s,4)}, v{V_LANE16}, {sr(SRD_WS,4)}, s{S_VOFF} offen offset:{s*1024} sc1" for s in range(2)]
    v += [f"s_add_u32 s{S_VOFF}, s{S_VOFF}, 2048", f"s_min_u32 s{S_VOFF}, s{S_VOFF}, s{S_VLIM}"]
    return k, v


def a_iter(A, u, cfg):
    par = u % 2
    A("s_waitcnt vmcnt(12)")
    sm = a_softmax(par)
    mq, mp = a_qk(1 - par, (u + 1) % 4), a_pv(1 - par, (u - 1) % 4)
    lk, lv = a_loads((u + 1) % 4, (u - 1) % 4)
    n = len(sm)
    ms = mq + mp
    pos = spread(8, -1, n - 8)
    riders = {3: [lk[0]], 4: [lk[1]], 5: [lk[2]], 6: [lk[3]], 7: [lv[0]]}
    sides = []
    for i, (p, m) in enumerate(zip(pos, ms)):
        sides.append((p, [m] + riders.get(i, [])))
    sides.append((n - 4, [lv[1]]))
    sides.append((n - 2, [lv[2]]))
    sides.append((n - 1, [lv[3]]))
    body = interleave(sm, sides)
    if cfg.get("a_noload"):
        body = [b for b in body if not b.startswith("buffer_load")]
    if cfg.get("a_nosc1"):
        body = [b.replace(" sc1", "") for b in body]
    if cfg.get("a_nomfma"):
        body = [b for b in body if not b.startswith("v_mfma")]
    A.emit_list(body)
    A(rare_check(A, par, "LA_RARE"))


def a_rare(A, sb):
    A.label(f"LA_RARE{sb}")
    A("s_nop 7")
    A("s_nop 7")
    so = 1 - sb
    for qb in range(2):
        d, f, t = V_T + qb, V_T + 2 + qb, V_T + 4
        s = AS[sb] + qb * 16
        A(f"v_max3_f32 v{d}, v{s}, v{s+1}, v{s+2}")
        for i in range(3, 15, 2):
            A(f"v_max3_f32 v{d}, v{d}, v{s+i}, v{s+i+1}")
        A(f"v_max_f32 v{d}, v{d}, v{s+15}")
        A(f"v_mov_b32 v{t}, v{d}")
        A("s_nop 1")
        A(f"v_permlane32_swap_b32 v{t}, v{d}")
        A("s_nop 1")
        A(f"v_max_f32 v{d}, v{d}, v{t}")
        A(f"v_add_f32 v{d}, {f32bits(BIAS):#x}, v{d}")
        A(f"v_max_f32 v{d}, s{S_FLOOR}, v{d}")
        A(f"v_max_f32 v{f}, 0, v{d}")
        A(f"v_exp_f32 v{f}, -v{f}")
        for r in range(16):
            A(f"v_sub_f32 v{s+r}, v{s+r}, v{d}")
            A(f"v_sub_f32 v{AS[so]+qb*16+r}, v{AS[so]+qb*16+r}, v{d}")
            A(f"v_sub_f32 v{AC+qb*16+r}, v{AC+qb*16+r}, v{d}")
            A(f"v_mul_f32 v{AO+qb*16+r}, v{AO+qb*16+r}, v{f}")
    A(f"s_mov_b32 s{S_FLOOR}, 0")
    lskip = A.newlabel("LAS")
    A(f"s_cmp_eq_u32 s{S_FIRST}, 1")
    A(f"s_mov_b32 s{S_FIRST}, 0")
    A(f"s_cbranch_scc1 {lskip}")
    for o in a_softmax(sb):
        A(o)
    A.label(lskip)
    A("s_nop 1")
    A(f"s_setpc_b64 {sr(S_RET,2)}")


def a_counts(cfg):
    nf, nh = cfg.get("nf", 12), cfg.get("nh", 2)
    nq = 16 - nf - nh
    return nf, nh, nq, nf + 2 * nh + 4 * nq


def a_item(A, cfg):
    T = S_TMP
    stamp(A, cfg, 0)
    A(f"s_and_b32 s{T+1}, s2, 3")
    lq = A.newlabel("LAQ")
    A(f"s_cmp_eq_u32 s{S_AQOK}, 1")
    A(f"s_cbranch_scc1 {lq}")
    poll_issue(A, T + 1, F_AQ, 64)
    poll_wait(A)
    A(f"s_mov_b32 s{S_AQOK}, 1")
    A.label(lq)
    NF, NH, NQ, NA = a_counts(cfg)
    SP = S_N
    A(f"s_cmp_ge_u32 s{S_ITEM}, {NF}")
    A(f"s_cselect_b32 s{SP}, 1, 0")
    A(f"s_cselect_b32 s{T+2}, {NF}, 0")
    A(f"s_cselect_b32 s{T+3}, {NF}, 0")
    A(f"s_cmp_ge_u32 s{S_ITEM}, {NF + 2*NH}")
    A(f"s_cselect_b32 s{SP}, 2, s{SP}")
    A(f"s_cselect_b32 s{T+2}, {NF + 2*NH}, s{T+2}")
    A(f"s_cselect_b32 s{T+3}, {NF + NH}, s{T+3}")
    A(f"s_sub_u32 s{T+2}, s{S_ITEM}, s{T+2}")
    A(f"s_lshl_b32 s{T+5}, 1, s{SP}")
    A(f"s_sub_u32 s{T+5}, s{T+5}, 1")
    A(f"s_and_b32 s{T+6}, s{T+2}, s{T+5}")
    A(f"s_lshr_b32 s{T+2}, s{T+2}, s{SP}")
    A(f"s_add_u32 s{T+2}, s{T+2}, s{T+3}")
    A(f"s_sub_u32 s{T+4}, 2, s{SP}")
    A(f"s_lshl_b32 s{T+3}, s{T+6}, s{T+4}")
    A(f"s_lshr_b32 s{T+4}, s{S_WAVE}, s{SP}")
    A(f"s_add_u32 s{T+3}, s{T+3}, s{T+4}")
    A(f"s_and_b32 s{T+4}, s{S_WAVE}, s{T+5}")
    A(f"s_sub_u32 s{T+5}, 17, s{SP}")
    A(f"s_lshl_b32 s{T+4}, s{T+4}, s{T+5}")
    A(f"s_lshr_b32 s{S_LEFT}, 16, s{SP}")
    A(f"s_lshr_b32 s{T+5}, {64*2048}, s{SP}")
    A(f"s_sub_u32 s{T+5}, s{T+5}, 2048")
    A(f"s_cmp_ge_u32 s{SP}, 1")
    A(f"s_cselect_b32 s{S_KAP}, 1.0, 0")
    A(f"s_cselect_b32 s{S_EV}, 1024, 0")
    A(f"s_cselect_b32 s{S_RMASK}, 5, 15")
    A(f"s_cmp_ge_u32 s{SP}, 2")
    A(f"s_cselect_b32 s{S_T2}, 1.0, 0")
    A(f"s_cselect_b32 s{S_TW}, 2048, 0")
    A(f"s_cselect_b32 s{S_RMASK}, 1, s{S_RMASK}")
    A(f"s_bfe_u32 s{T}, s2, 0x10002")
    A(f"s_lshl_b32 s{T}, s{T}, 4")
    A(f"s_add_u32 s{T+2}, s{T+2}, s{T}")
    A(f"s_lshl_b32 s{T}, s{T+1}, 2")
    A(f"s_add_u32 s{T+3}, s{T+3}, s{T}")
    A(f"s_mul_i32 s{S_WOOFF}, s{T+3}, {28*896}")
    A(f"s_lshl_b32 s{T+3}, s{T+3}, 17")
    A(f"s_add_u32 s{S_KOFF}, s{T+3}, s{T+4}")
    A(f"s_add_u32 s{S_VOFF}, s{S_KOFF}, {WS_VA}")
    A(f"s_add_u32 s{S_KOFF}, s{S_KOFF}, {WS_KA}")
    A(f"s_add_u32 s{S_KLIM}, s{S_KOFF}, s{T+5}")
    A(f"s_add_u32 s{S_VLIM}, s{S_VOFF}, s{T+5}")
    A(f"s_lshl_b32 s{T+4}, s{T+2}, 12")
    A(f"s_add_u32 s{T+4}, s{T+4}, s{T+3}")
    A(f"s_add_u32 s{T+4}, s{T+4}, {WS_QA}")
    for i in range(4):
        A(f"buffer_load_dwordx4 {ar(QA_+4*i,4)}, v{V_LANE16}, {sr(SRD_WS,4)}, s{T+4} offen offset:{i*1024} sc1")
    lk, _ = a_loads(0, 0)
    A.emit_list(lk)
    for t in (-4, -3, -2):
        lk, lv = a_loads((t + 5) % 4, (t + 3) % 4)
        A.emit_list(lk)
        if t + 3 >= 0:
            A.emit_list(lv)
    set_srd(A, SRD_B, P_WOA, 448 * 448 * 2)
    A(f"s_lshr_b32 s{S_RFLAG}, s{T+2}, 1")
    A(f"s_lshl_b32 s{S_RFLAG}, s{S_RFLAG}, 8")
    A(f"s_and_b32 s{T+3}, s{T+2}, 1")
    A(f"s_lshl_b32 s{T+3}, s{T+3}, 2")
    A(f"s_add_u32 s{T+3}, s{T+3}, s{T+1}")
    A(f"s_lshl_b32 s{T}, s{T+6}, 3")
    A(f"s_add_u32 s{T+3}, s{T+3}, s{T}")
    A(f"s_lshl_b32 s{T+3}, s{T+3}, 2")
    A(f"s_add_u32 s{S_RFLAG}, s{S_RFLAG}, s{T+3}")
    A(f"s_add_u32 s{S_RFLAG}, s{S_RFLAG}, {F_ROW + 64}")
    A(f"s_lshl_b32 s{T}, s{T+6}, 2")
    A(f"s_add_u32 s{T}, s{T}, 16")
    A(f"s_cmp_eq_u32 s{T+6}, 0")
    A(f"s_cselect_b32 s{T}, 0, s{T}")
    A(f"s_add_u32 s{T}, s{T}, s{T+1}")
    A(f"s_mul_i32 s{S_POFF}, s{T}, {P_SLOT}")
    A(f"s_lshl_b32 s{T+3}, s{T+2}, 2")
    A(f"s_add_u32 s{T+3}, s{T+3}, s{S_WAVE}")
    A(f"s_mul_i32 s{T+3}, s{T+3}, {14*1024}")
    A(f"s_add_u32 s{S_POFF}, s{S_POFF}, s{T+3}")
    A(f"s_add_u32 s{S_POFF}, s{S_POFF}, {WS_P}")
    A(f"s_mul_i32 s{S_WOW}, s{S_WAVE}, {32*896}")
    A(f"s_mov_b32 s{S_MASK}, 0x40004000")
    A(f"s_mov_b32 s{S_FLOOR}, {NEG_INF:#x}")
    A(f"s_mov_b32 s{S_FIRST}, 1")
    for r in range(32):
        A(f"v_mov_b32 v{AC+r}, 0")
        A(f"v_mov_b32 v{AO+r}, 0")
        A(f"v_mov_b32 v{AS[1]+r}, 0")
    for r in range(16):
        A(f"v_mov_b32 v{AP[1]+r}, 0")
    for r in range(8):
        A(f"v_accvgpr_write_b32 a{VA_+3*8+r}, 0")
    A(f"v_bfe_u32 v{V_T}, v0, 3, 1")
    A(f"v_lshlrev_b32 v{V_T}, 10, v{V_T}")
    A(f"v_lshrrev_b32 v{V_T+1}, 5, v0")
    A(f"v_lshl_add_u32 v{V_T}, v{V_T+1}, 8, v{V_T}")
    A(f"v_bfe_u32 v{V_T+1}, v0, 4, 1")
    A(f"v_lshl_add_u32 v{V_T}, v{V_T+1}, 7, v{V_T}")
    A(f"v_and_b32 v{V_T+1}, 7, v0")
    A(f"v_lshl_add_u32 v{V_T}, v{V_T+1}, 4, v{V_T}")
    A(f"s_lshl_b32 s{T+5}, s{S_WAVE}, 12")
    A(f"s_add_u32 s{T+5}, s{T+5}, {XB}")
    A(f"v_add_u32 v{V_XW}, s{T+5}, v{V_T}")
    A(f"v_bfe_u32 v{V_T}, v0, 2, 3")
    A(f"v_bfe_u32 v{V_T+2}, v{V_T}, 1, 2")
    A(f"v_lshrrev_b32 v{V_T+1}, 5, v0")
    A(f"v_lshl_add_u32 v{V_T}, v{V_T+1}, 4, v{V_T}")
    A(f"v_mul_u32_u24 v{V_T}, 896, v{V_T}")
    A(f"v_and_b32 v{V_T+1}, 3, v0")
    A(f"v_lshl_add_u32 v{V_T}, v{V_T+1}, 3, v{V_T}")
    for b in range(4):
        A(f"v_xor_b32 v{V_T+1}, {b}, v{V_T+2}")
        A(f"v_lshl_add_u32 v{V_WOR+b}, v{V_T+1}, 5, v{V_T}")
    A("s_waitcnt vmcnt(10)")
    stamp(A, cfg, 1)
    A.emit_list(a_qk(0, 0))
    lk, lv = a_loads(0, 2)
    A.emit_list(lk)
    A.emit_list(lv)
    A(f"s_mov_b32 m0, s{S_WOW}")
    A(f"s_add_u32 s{S_WOW}, s{S_WOW}, {8*896}")
    for i in range(7):
        if i == 4:
            A("s_add_u32 m0, m0, 4096")
            A("s_nop 0")
        A(f"buffer_load_dwordx4 v{V_WOD+i}, {sr(SRD_B,4)}, s{S_WOOFF} offen offset:{(i%4)*1024} lds")
    A(f"s_add_u32 s{S_WOOFF}, s{S_WOOFF}, {8*896}")
    A(f"s_call_b64 {sr(S_RET,2)}, LA_RARE0")
    stamp(A, cfg, 2)
    A.label("LA_LOOP")
    for u in range(4):
        a_iter(A, u, cfg)
    A(f"s_sub_u32 s{S_LEFT}, s{S_LEFT}, 1")
    A(f"s_cmp_gt_u32 s{S_LEFT}, 3")
    A("s_cbranch_scc1 LA_LOOP")
    A(f"s_cmp_eq_u32 s{S_LEFT}, 0")
    A("s_cbranch_scc1 LA_FIN")
    A(f"s_mov_b32 m0, s{S_WOW}")
    A(f"s_add_u32 s{S_WOW}, s{S_WOW}, {8*896}")
    for i in range(7):
        if i == 4:
            A("s_add_u32 m0, m0, 4096")
            A("s_nop 0")
        A(f"buffer_load_dwordx4 v{V_WOD+i}, {sr(SRD_B,4)}, s{S_WOOFF} offen offset:{(i%4)*1024} lds")
    A(f"s_add_u32 s{S_WOOFF}, s{S_WOOFF}, {8*896}")
    A("s_branch LA_LOOP")
    A.label("LA_FIN")
    A("s_waitcnt vmcnt(12)")
    A.emit_list(a_pv(1, 3))
    stamp(A, cfg, 3)
    A(f"v_cmp_gt_u32 vcc, 32, v0")
    A("s_nop 7")
    A("s_nop 7")
    X = 24
    for qb in range(2):
        o = AO + qb * 16
        A(f"v_mov_b32 v{V_T}, v{o+12}")
        A(f"v_mov_b32 v{X+2*qb+1}, v{o+12}")
        A(f"v_mov_b32 v{X+2*qb}, v{AC+qb*16}")
        A("s_nop 0")
        A(f"v_permlane32_swap_b32 v{V_T}, v{X+2*qb+1}")
    A(f"s_lshl_b32 s{T+5}, s{S_WAVE}, 10")
    A(f"s_add_u32 s{T+5}, s{T+5}, {XB+16384}")
    A(f"v_add_u32 v{V_T}, s{T+5}, v{V_LANE16}")
    A(f"ds_write_b128 v{V_T}, {vr(X,4)}")
    A(f"v_xor_b32 v{V_T+1}, s{S_EV}, v{V_T}")
    A(f"v_xor_b32 v{V_T+2}, s{S_TW}, v{V_T}")
    A(f"v_xor_b32 v{V_T+3}, s{S_TW}, v{V_T+1}")
    A("s_waitcnt lgkmcnt(0)")
    A("s_barrier")
    PR = [100, 104, 108]
    for i in range(3):
        A(f"ds_read_b128 {vr(PR[i],4)}, v{V_T+1+i}")
    A("s_waitcnt lgkmcnt(0)")
    for qb in range(2):
        o = AO + qb * 16
        c1, l1 = X + 2 * qb, X + 2 * qb + 1
        a, b, inv, invh = V_T, V_T + 1, V_T + 2, V_T + 3
        A(f"v_min_f32 v{a}, v{c1}, v{PR[0]+2*qb}")
        A(f"v_min3_f32 v{a}, v{a}, v{PR[1]+2*qb}, v{PR[2]+2*qb}")
        for i in range(3):
            A(f"v_sub_f32 v{PR[i]+2*qb}, v{a}, v{PR[i]+2*qb}")
            A(f"v_exp_f32 v{PR[i]+2*qb}, v{PR[i]+2*qb}")
            A(f"v_mul_f32 v{PR[i]+2*qb+1}, s{S_KAP if i == 0 else S_T2}, v{PR[i]+2*qb+1}")
        A(f"v_sub_f32 v{a}, v{a}, v{c1}")
        A(f"v_exp_f32 v{a}, v{a}")
        A("s_nop 0")
        A(f"v_mul_f32 v{l1}, v{l1}, v{a}")
        for i in range(3):
            A(f"v_fma_f32 v{l1}, v{PR[i]+2*qb}, v{PR[i]+2*qb+1}, v{l1}")
        A(f"v_rcp_f32 v{inv}, v{l1}")
        A("s_nop 0")
        A(f"v_mul_f32 v{inv}, v{inv}, v{a}")
        A(f"v_cndmask_b32 v{invh}, 0, v{inv}, vcc")
        for r in range(16):
            A(f"v_mul_f32 v{o+r}, v{o+r}, v{inv if r < 12 else invh}")
        for g in range(2):
            c = AS[0] + (qb * 2 + g) * 4
            for i in range(4):
                A(f"v_cvt_pk_bf16_f32 v{c+i}, v{o+8*g+2*i}, v{o+8*g+2*i+1}")
            A(f"ds_write_b128 v{V_XW}, {vr(c,4)} offset:{qb*2048+g*512}")
    A("s_waitcnt vmcnt(0) lgkmcnt(0)")
    A("s_barrier")
    A(f"s_lshl_b32 s{T+5}, s{S_WAVE}, 10")
    A(f"s_add_u32 s{T+5}, s{T+5}, {XB}")
    A(f"v_add_u32 v{V_T}, s{T+5}, v{V_LANE16}")
    VB = 96
    for w in range(4):
        A(f"ds_read_b128 {vr(VB+4*w,4)}, v{V_T} offset:{w*4096}")

    def reads(w, half, fset):
        out = []
        for i in range(14):
            b = 14 * half + i
            f = VF + (fset * 14 + i) * 4
            for e in range(2):
                out.append(f"ds_read_b64_tr_b16 {vr(f+2*e,2)}, v{V_WOR+(b&3)} offset:{(b>>2)*128+e*8*896+(w&1)*32*896}")
        return out

    def mf(w, half, fset):
        out = []
        for i in range(14):
            b = 14 * half + i
            f = VF + (fset * 14 + i) * 4
            c = "0" if w == 0 else ar(b * 4, 4)
            out.append(f"v_mfma_f32_16x16x32_bf16 {ar(b*4,4)}, {vr(f,4)}, {vr(VB+4*w,4)}, {c}")
        return out

    seq = [(w, h) for w in range(4) for h in range(2)]
    A.emit_list(reads(0, 0, 0))
    for k, (w, h) in enumerate(seq):
        if k + 1 < len(seq):
            w2, h2 = seq[k + 1]
            if (w2, h2) == (2, 0):
                for b in range(4):
                    A(f"v_add_u32 v{V_WOR+b}, {2*32*896}, v{V_WOR+b}")
            rd = reads(w2, h2, (k + 1) % 2)
            A.emit_list(rd[:14])
            A("s_waitcnt lgkmcnt(14)")
            A.emit_list(interleave(mf(w, h, k % 2), [(i, [r]) for i, r in enumerate(rd[14:])]))
        else:
            A("s_waitcnt lgkmcnt(0)")
            A.emit_list(mf(w, h, k % 2))
    store_partials(A, 1, cfg)


def r_item(A, cfg):
    T = S_TMP
    NF, NH, NQ, NA = a_counts(cfg)
    stamp(A, cfg, 0)
    A(f"s_sub_u32 s{T}, s{S_ITEM}, {NA}")
    A(f"s_lshl_b32 s{T}, s{T}, 3")
    A(f"s_and_b32 s{T+1}, s2, 7")
    A(f"s_add_u32 s{T}, s{T}, s{T+1}")
    A(f"s_mul_i32 s{T+1}, s{T}, 2341")
    A(f"s_lshr_b32 s{T+1}, s{T+1}, 16")
    A(f"s_mul_i32 s{T+2}, s{T+1}, 28")
    A(f"s_sub_u32 s{T+2}, s{T}, s{T+2}")
    A(f"s_lshr_b32 s{T+3}, s{T+1}, 1")
    A(f"s_and_b32 s{T+1}, s{T+1}, 1")
    A(f"s_lshl_b32 s{T+1}, s{T+1}, 3")
    A(f"s_add_u32 s{T+1}, s{T+1}, s{T+3}")
    poll_issue(A, T + 1, F_ROW, 48)
    A(f"s_mul_i32 s{T+3}, s{T+2}, 37")
    A(f"s_lshr_b32 s{T+3}, s{T+3}, 8")
    A(f"s_mul_i32 s{T+4}, s{T+3}, 7")
    A(f"s_sub_u32 s{T+2}, s{T+2}, s{T+4}")
    A(f"s_lshl_b32 s{T+2}, s{T+2}, 1")
    A(f"s_and_b32 s{T+4}, s{S_WAVE}, 1")
    A(f"s_add_u32 s{T+2}, s{T+2}, s{T+4}")
    A(f"s_lshl_b32 s{T+1}, s{T+1}, 3")
    A(f"s_lshl_b32 s{T+3}, s{T+3}, 1")
    A(f"s_add_u32 s{T+1}, s{T+1}, s{T+3}")
    A(f"s_lshr_b32 s{T+3}, s{S_WAVE}, 1")
    A(f"s_add_u32 s{T+1}, s{T+1}, s{T+3}")
    A(f"s_mul_i32 s{S_KOFF}, s{T+1}, {14*1024}")
    A(f"s_lshl_b32 s{T+3}, s{T+2}, 10")
    A(f"s_add_u32 s{S_KOFF}, s{S_KOFF}, s{T+3}")
    A(f"s_add_u32 s{S_KOFF}, s{S_KOFF}, {WS_P}")
    A(f"s_lshl_b32 s{S_VOFF}, s{T+1}, 6")
    A(f"s_add_u32 s{S_VOFF}, s{S_VOFF}, {WS_G}")
    A(f"s_mul_i32 s{S_KLIM}, s{T+1}, {16*896}")
    A(f"s_lshl_b32 s{T+3}, s{T+2}, 6")
    A(f"s_add_u32 s{S_KLIM}, s{S_KLIM}, s{T+3}")
    A(f"s_bfe_u32 s{T+3}, s{T+1}, 0x40002")
    set_srd(A, SRD_B, P_OUT, 2048 * 448 * 2)
    A(f"v_and_b32 v{V_T}, 15, v0")
    A(f"v_lshrrev_b32 v{V_T+1}, 4, v0")
    A(f"v_lshlrev_b32 v{V_T+2}, 2, v{V_T}")
    A(f"v_mul_u32_u24 v{V_T+3}, 896, v{V_T}")
    A(f"v_lshl_add_u32 v{V_T+3}, v{V_T+1}, 3, v{V_T+3}")
    A(f"s_mov_b32 s{S_SC}, 0x00003f80")
    A(f"s_mov_b32 s{S_SC+1}, 0x3f800000")
    poll_wait(A)
    stamp(A, cfg, 1)
    A(f"buffer_load_dword v{V_T+4}, v{V_T+2}, {sr(SRD_WS,4)}, s{S_VOFF} offen sc1")
    PB = 96
    NS = 32 if NQ else (24 if NH else 20)
    for sl in range(NS):
        if sl in (20, 24):
            A(f"s_cmp_ge_u32 s{T+3}, {NF if sl == 20 else NF + NH}")
            A(f"s_cselect_b32 s{S_KOFF}, s{S_KOFF}, {HUGE}")
        A(f"buffer_load_dwordx4 {vr(PB+sl*4,4)}, v{V_LANE16}, {sr(SRD_WS,4)}, s{S_KOFF} offen sc1")
        if sl < NS - 1:
            A(f"s_add_u32 s{S_KOFF}, s{S_KOFF}, {P_SLOT}")
    aa, ab = 64, 72
    for sl in range(NS):
        A(f"s_waitcnt vmcnt({NS-1-sl})")
        first = sl in (0, 4)
        acc_ = ab if 4 <= sl < 20 else aa
        for i in range(4):
            r = PB + sl * 4 + i
            A(f"v_dot2_f32_bf16 v{acc_+2*i}, v{r}, s{S_SC}, {'0' if first else 'v%d' % (acc_+2*i)}")
            A(f"v_dot2_f32_bf16 v{acc_+2*i+1}, v{r}, s{S_SC+1}, {'0' if first else 'v%d' % (acc_+2*i+1)}")
    g, g1, t = V_T + 4, V_T + 5, V_T + 6
    A(f"v_sub_f32 v{g1}, 1.0, v{g}")
    A(f"v_cvt_pk_bf16_f32 v{g1}, v{g1}, v{g1}")
    A(f"v_lshlrev_b32 v{g1}, 16, v{g1}")
    A("s_nop 1")
    o = 48
    for i in range(4):
        for acc_, gg in ((aa, g), (ab, g1)):
            a = acc_ + 2 * i
            A(f"v_cvt_pk_bf16_f32 v{t}, v{a}, v{a+1}")
            A(f"v_lshlrev_b32 v{a}, 16, v{t}")
            A(f"v_and_b32 v{a+1}, 0xffff0000, v{t}")
            A(f"v_mul_f32 v{a}, v{gg}, v{a}")
            A(f"v_mul_f32 v{a+1}, v{gg}, v{a+1}")
            A(f"v_cvt_pk_bf16_f32 v{t}, v{a}, v{a+1}")
            A(f"v_lshlrev_b32 v{a}, 16, v{t}")
            A(f"v_and_b32 v{a+1}, 0xffff0000, v{t}")
        A(f"v_add_f32 v{aa+2*i}, v{aa+2*i}, v{ab+2*i}")
        A(f"v_add_f32 v{aa+2*i+1}, v{aa+2*i+1}, v{ab+2*i+1}")
        A(f"v_cvt_pk_bf16_f32 v{o+i}, v{aa+2*i}, v{aa+2*i+1}")
    A(f"buffer_store_dwordx2 {vr(o,2)}, v{V_T+3}, {sr(SRD_B,4)}, s{S_KLIM} offen")
    A(f"buffer_store_dwordx2 {vr(o+2,2)}, v{V_T+3}, {sr(SRD_B,4)}, s{S_KLIM} offen offset:32")


def launch_line(cfg=None):
    return f"; @launch kernel=mega_kernel grid=(256,1,1) block=(256,1,1) lds={LDS_TOTAL}"


def gen_mega(A, name="mega_kernel", cfg=None):
    cfg = cfg or {}
    global KVFL, A_DELAY
    A_DELAY = cfg.get("a_delay", 3)
    KVFL = cfg.get("kvfl", "sc1")
    T = S_TMP
    G = V_G
    A.raw(kernel_header(name))
    A(f"s_load_dwordx16 {sr(4,16)}, s[0:1], 0")
    A(f"s_load_dwordx8 {sr(20,8)}, s[0:1], 64")
    A(f"s_load_dwordx2 {sr(P_WS,2)}, s[0:1], 96")
    A(f"s_load_dwordx2 {sr(P_WOA,2)}, s[0:1], 16")
    if cfg.get("diag"):
        for i in range(14):
            A(f"s_mov_b32 s{S_STAMP+i}, 0")
    stamp(A, cfg, 0)
    A("s_cmp_ge_u32 s2, 256")
    A("s_cbranch_scc1 LM_END")
    if cfg.get("warm0", 1):
        lw0 = A.newlabel("LW0")
        A(f"s_cmp_ge_u32 s2, {8*cfg.get('warm0', 1)}")
        A(f"s_cbranch_scc1 {lw0}")
        A(f"s_getpc_b64 {sr(SRD_WS,2)}")
        A(f"s_mov_b32 s{SRD_WS+2}, LP_START-{name}")
        A(f"s_mov_b32 s{SRD_WS+3}, 0x20000")
        A(f"v_lshlrev_b32 v{G+8}, {cfg.get('warm_sh', 7)}, v0")
        A(f"s_lshr_b32 s{T}, s2, 3")
        A(f"s_lshl_b32 s{T}, s{T}, {8 + cfg.get('warm_sh', 7)}")
        A(f"buffer_load_dword v{G+9}, v{G+8}, {sr(SRD_WS,4)}, s{T} offen")
        A.label(lw0)
    A(f"v_lshrrev_b32 v{G}, 6, v0")
    A("v_and_b32 v0, 63, v0")
    A(f"v_readfirstlane_b32 s{S_WAVE}, v{G}")
    A(f"v_lshlrev_b32 v{V_LANE16}, 4, v0")
    A(f"s_and_b32 s{T}, s2, 7")
    A(f"s_bfe_u32 s{T+1}, s2, 0x10005")
    A(f"s_lshl_b32 s{T+1}, s{T+1}, 3")
    A(f"s_add_u32 s{T}, s{T}, s{T+1}")
    A(f"s_lshr_b32 s{T+1}, s2, 7")
    A(f"s_lshl_b32 s{T+1}, s{T+1}, 4")
    A(f"s_add_u32 s{T}, s{T}, s{T+1}")
    A(f"s_bfe_u32 s{S_GRP}, s2, 0x10006")
    A(f"s_bfe_u32 s{T+1}, s2, 0x20003")
    A(f"s_lshl_b32 s{T+2}, s{S_GRP}, 2")
    A(f"s_add_u32 s{T+1}, s{T+1}, s{T+2}")
    A(f"s_lshr_b32 s{T+2}, s{S_WAVE}, 1")
    A(f"s_and_b32 s{T+3}, s{S_WAVE}, 1")
    A(f"s_and_b32 s{S_GHEAD}, s{T}, 15")
    A(f"s_lshr_b32 s{S_TYPE}, s{T}, 4")
    A(f"s_lshl_b32 s{T+5}, s{T+2}, 4")
    A(f"s_add_u32 s{T+5}, s{T+5}, s{T+3}")
    A(f"s_lshl_b32 s{S_XWAVE}, s{T+5}, 10")
    A(f"s_add_u32 s{S_XWAVE}, s{S_XWAVE}, {LDS_X0}")
    A(f"s_mov_b32 s{S_XWR}, s{S_XWAVE}")
    A(f"s_lshl_b32 s{T+5}, s{T+5}, 3")
    A(f"s_lshl_b32 s{T+6}, s{T+1}, 8")
    A(f"s_add_u32 s{T+6}, s{T+6}, s{T+5}")
    A(f"s_lshl_b32 s{S_XOFF}, s{T+6}, 11")
    A(f"s_mov_b32 s{S_XSTA}, {16*2048}")
    A(f"s_mov_b32 s{S_XSTB}, {16*2048}")
    A(f"s_mov_b32 s{S_XWRAP}, {(128-112*2048) & 0xffffffff}")
    A(f"s_lshl_b32 s{T+7}, s{T+2}, 2")
    A(f"s_add_u32 s{T+7}, s{T+7}, s{T+3}")
    A(f"s_lshl_b32 s{S_WWR}, s{T+7}, 10")
    A(f"s_lshl_b32 s{S_WOFF}, s{T+7}, 14")
    A(f"s_lshl_b32 s{T+6}, s{S_GHEAD}, 9")
    A(f"s_add_u32 s{S_WOFF}, s{S_WOFF}, s{T+6}")
    A(f"v_lshrrev_b32 v{G}, 4, v0")
    A(f"s_lshl_b32 s{T+6}, s{T+3}, 2")
    A(f"v_add_u32 v{G+6}, s{T+6}, v{G}")
    A(f"v_and_b32 v{G+1}, 7, v0")
    A(f"v_xor_b32 v{G}, v{G+6}, v{G+1}")
    A(f"v_lshlrev_b32 v{G}, 4, v{G}")
    A(f"v_lshrrev_b32 v{G+1}, 3, v0")
    A(f"v_lshl_add_u32 v{V_DX}, v{G+1}, 11, v{G}")
    A(f"v_mul_u32_u24 v{G+2}, 896, v{G+1}")
    A(f"v_add_u32 v{V_DX2}, v{G+2}, v{G}")
    A(f"v_lshrrev_b32 v{G}, 5, v0")
    A(f"s_lshl_b32 s{T+6}, s{T+3}, 1")
    A(f"s_lshl_b32 s{T+5}, s{T+2}, 2")
    A(f"s_add_u32 s{T+6}, s{T+6}, s{T+5}")
    A(f"v_add_u32 v{G+1}, s{T+6}, v{G}")
    A(f"v_bfe_u32 v{G+2}, v0, 1, 4")
    A(f"v_xor_b32 v{G+2}, v{G+2}, v{G+1}")
    A(f"v_and_b32 v{G+3}, 1, v0")
    A(f"v_lshl_add_u32 v{G+2}, v{G+2}, 1, v{G+3}")
    A(f"v_lshlrev_b32 v{G+3}, 4, v{G+2}")
    A(f"v_lshl_add_u32 v{V_DW}, v{G}, 13, v{G+3}")
    A("s_waitcnt lgkmcnt(0)")
    set_srd(A, SRD_A, P_CKV, 2048 * 1024 * 2)
    A(f"s_cmp_eq_u32 s{S_TYPE}, 0")
    A(f"s_cselect_b32 s{SRD_B}, s{P_WUK}, s{P_WUV}")
    A(f"s_cselect_b32 s{SRD_B+1}, s{P_WUK+1}, s{P_WUV+1}")
    A(f"s_mov_b32 s{SRD_B+2}, {1024*4096*2}")
    A(f"s_mov_b32 s{SRD_B+3}, 0x20000")
    emit_chain(A, dma_x())
    emit_chain(A, dma_w())
    A(f"s_and_b32 s{S_HEAD}, s2, 15")
    A(f"s_lshr_b32 s{T}, s2, 4")
    A(f"s_sub_u32 s{S_QB}, 15, s{T}")
    A(f"s_lshl_b32 s{T+4}, s{S_QB}, 7")
    A(f"s_lshl_b32 s{T+5}, s{S_HEAD}, 3")
    A(f"s_add_u32 s{T+4}, s{T+4}, s{T+5}")
    A(f"s_lshl_b32 s{T+5}, s{S_WAVE}, 1")
    A(f"s_add_u32 s{S_PHASE}, s{T+4}, s{T+5}")
    A(f"s_mul_i32 s{T+4}, s{S_PHASE}, 896")
    A(f"v_and_b32 v{V_CV}, 31, v0")
    A(f"v_lshlrev_b32 v{V_CV+1}, 5, v{V_CV}")
    A(f"v_mov_b32 v{V_CV+3}, 0x40000000")
    A(f"v_cmp_gt_u32 vcc, 28, v{V_CV}")
    A(f"v_lshrrev_b32 v{V_CV+2}, 5, v0")
    A("s_nop 0")
    A(f"v_cndmask_b32 v{V_CV+1}, v{V_CV+3}, v{V_CV+1}, vcc")
    A(f"v_mul_u32_u24 v{V_CV+2}, 896, v{V_CV+2}")
    A(f"v_add_u32 v{V_CV+2}, v{V_CV+2}, v{V_CV+1}")
    set_srd(A, SRD_WS, P_X, 2048 * 448 * 2)
    set_srd(A, SRD_DBG, P_GATE, 448 * 2)
    A(f"buffer_load_dwordx4 {vr(192,4)}, v{V_CV+2}, {sr(SRD_WS,4)}, s{T+4} offen")
    A(f"buffer_load_dwordx4 {vr(196,4)}, v{V_CV+2}, {sr(SRD_WS,4)}, s{T+4} offen offset:16")
    A(f"buffer_load_dwordx4 {vr(200,4)}, v{V_CV+1}, {sr(SRD_DBG,4)}, 0 offen")
    A(f"buffer_load_dwordx4 {vr(204,4)}, v{V_CV+1}, {sr(SRD_DBG,4)}, 0 offen offset:16")
    emit_chain(A, dma_x())
    emit_chain(A, dma_w())
    set_srd(A, SRD_WS, P_WS, WS_SIZE)
    set_srd(A, SRD_DBG, P_DBG, 256)
    set_srd(A, SRD_E, P_WS, WS_SIZE)
    A(f"s_cmp_eq_u32 s{S_GRP}, 0")
    A(f"s_cselect_b32 s{SRD_E+2}, s{SRD_E+2}, 0")
    li = A.newlabel("LM")
    A(f"v_lshlrev_b32 v{V_SIG+1}, 2, v0")
    A(f"v_mov_b32 v{V_SIG}, 0")
    A(f"s_cmp_lg_u32 s{S_WAVE}, 0")
    A(f"s_cbranch_scc1 {li}")
    A(f"s_lshl_b32 s{T+6}, s2, 6")
    A(f"s_add_u32 s{T+6}, s{T+6}, {WS_F}")
    A("s_mov_b64 exec, 0xffff")
    A(f"buffer_store_dword v{V_SIG}, v{V_SIG+1}, {sr(SRD_WS,4)}, s{T+6} offen sc1")
    A("s_mov_b64 exec, -1")
    A.label(li)
    A(f"s_lshl_b32 s{S_OB}, s{S_GHEAD}, 20")
    A(f"s_lshl_b32 s{T+6}, s{T+1}, 17")
    A(f"s_add_u32 s{S_OB}, s{S_OB}, s{T+6}")
    A(f"s_lshl_b32 s{T+6}, s{T+2}, 16")
    A(f"s_add_u32 s{S_OB}, s{S_OB}, s{T+6}")
    A(f"s_add_u32 s{T+6}, s{S_TYPE}, 12")
    A(f"s_lshl_b32 s{T+6}, s{T+3}, s{T+6}")
    A(f"s_add_u32 s{S_OB}, s{S_OB}, s{T+6}")
    A(f"s_lshl_b32 s{T+6}, s{S_TYPE}, 24")
    A(f"s_add_u32 s{S_OB}, s{S_OB}, s{T+6}")
    A(f"s_mov_b32 s{T+6}, 8192")
    A(f"s_cmp_eq_u32 s{S_TYPE}, 0")
    A(f"s_cselect_b32 s{S_OSTA}, s{T+6}, 4096")
    A(f"s_cselect_b32 s{S_OSTB}, s{T+6}, 12288")
    A(f"s_lshl_b32 s{S_GHEAD}, s{S_GHEAD}, 8")
    A(f"s_lshl_b32 s{T+6}, s{S_GRP}, 12")
    A(f"s_add_u32 s{S_GHEAD}, s{S_GHEAD}, s{T+6}")
    A(f"s_lshl_b32 s{T+6}, s{S_TYPE}, 4")
    A(f"s_add_u32 s{S_GHEAD}, s{S_GHEAD}, s{T+6}")
    A(f"s_and_b32 s{T+6}, s{T+1}, 3")
    A(f"s_lshl_b32 s{T+6}, s{T+6}, 2")
    A(f"s_add_u32 s{S_GHEAD}, s{S_GHEAD}, s{T+6}")
    A(f"s_add_u32 s{S_GHEAD}, s{S_GHEAD}, {F_KV}")
    A(f"s_and_b32 s{S_HEAD}, s2, 15")
    A(f"s_lshr_b32 s{T}, s2, 4")
    A(f"s_sub_u32 s{S_QB}, 15, s{T}")
    A(f"s_lshl_b32 s{S_WOFF2}, s{T+7}, 14")
    A(f"s_lshl_b32 s{T+6}, s{S_HEAD}, 9")
    A(f"s_add_u32 s{S_WOFF2}, s{S_WOFF2}, s{T+6}")
    A(f"s_lshl_b32 s{T+5}, s{S_QB}, 7")
    A(f"s_lshl_b32 s{T+6}, s{T+3}, 3")
    A(f"s_add_u32 s{T+5}, s{T+5}, s{T+6}")
    A(f"s_mul_i32 s{T+5}, s{T+5}, 896")
    A(f"s_mul_i32 s{T+6}, s{T+3}, {8*2688}")
    A(f"s_mul_i32 s{T+4}, s{S_HEAD}, 56")
    A(f"s_add_u32 s{T+6}, s{T+6}, s{T+4}")
    A(f"s_cmp_eq_u32 s{T+2}, 0")
    A(f"s_cselect_b32 s{S_XOFF2}, s{T+5}, s{T+6}")
    A(f"s_cselect_b32 s{S_X2LO}, s{P_X}, s{P_WQKV}")
    A(f"s_cselect_b32 s{S_X2HI}, s{P_X+1}, s{P_WQKV+1}")
    A(f"s_mov_b32 s{T+5}, {2048*448*2}")
    A(f"s_cselect_b32 s{S_X2N}, s{T+5}, {448*1344*2}")
    A(f"s_mov_b32 s{T+5}, {16*896}")
    A(f"s_cselect_b32 s{S_XSTA2}, s{T+5}, {4*2688}")
    A(f"s_cselect_b32 s{S_XSTB2}, s{T+5}, {12*2688}")
    A(f"s_mov_b32 s{T+5}, {(128-112*896) & 0xffffffff}")
    A(f"s_cselect_b32 s{S_XWRAP2}, s{T+5}, {12*2688}")
    lskip = A.newlabel("LM")
    A(f"s_cbranch_scc1 {lskip}")
    A(f"v_bfe_u32 v{G}, v0, 1, 3")
    A(f"v_xor_b32 v{G}, v{G}, v{G+6}")
    A(f"v_and_b32 v{G+1}, 1, v0")
    A(f"v_lshl_add_u32 v{G}, v{G}, 1, v{G+1}")
    A(f"v_lshrrev_b32 v{G+1}, 2, v{G}")
    A(f"v_and_b32 v{G}, 3, v{G}")
    A(f"v_lshlrev_b32 v{G}, 4, v{G}")
    A(f"v_mul_u32_u24 v{G+2}, 896, v{G+1}")
    A(f"v_add_u32 v{G}, v{G}, v{G+2}")
    A(f"v_lshrrev_b32 v{G+2}, 4, v0")
    A(f"v_mul_u32_u24 v{G+2}, 2688, v{G+2}")
    A(f"v_add_u32 v{G}, v{G}, v{G+2}")
    A(f"v_mov_b32 v{G+2}, 0x40000000")
    A(f"v_cmp_gt_u32 vcc, 3, v{G+1}")
    A("s_nop 1")
    A(f"v_cndmask_b32 v{V_DX2}, v{G+2}, v{G}, vcc")
    A.label(lskip)
    A(f"s_lshl_b32 s{S_OBQK}, s{S_HEAD}, 17")
    A(f"s_lshl_b32 s{T+5}, s{S_QB}, 13")
    A(f"s_add_u32 s{S_OBQK}, s{S_OBQK}, s{T+5}")
    A(f"s_lshl_b32 s{T+5}, s{T+2}, 12")
    A(f"s_add_u32 s{S_OBQK}, s{S_OBQK}, s{T+5}")
    A(f"s_lshl_b32 s{T+5}, s{T+3}, 8")
    A(f"s_add_u32 s{S_OBV}, s{S_OBQK}, s{T+5}")
    A(f"s_add_u32 s{S_OBV}, s{S_OBV}, {WS_VA}")
    A(f"s_lshl_b32 s{T+5}, s{T+3}, 21")
    A(f"s_add_u32 s{S_OBQK}, s{S_OBQK}, s{T+5}")
    A(f"s_add_u32 s{S_OBQK}, s{S_OBQK}, {WS_QA}")
    A(f"s_cmp_eq_u32 s{T+3}, 0")
    A(f"s_cselect_b32 s{S_SCA}, {f32bits(SCALE_A):#x}, 1.0")
    A(f"v_and_b32 v{G}, 15, v0")
    A(f"v_lshrrev_b32 v{G+1}, 4, v0")
    A(f"v_lshrrev_b32 v{G+2}, 1, v{G}")
    A(f"v_xor_b32 v{G+2}, v{G+2}, v{G+1}")
    A(f"v_lshlrev_b32 v{G+2}, 4, v{G+2}")
    A(f"v_lshl_add_u32 v{G+2}, v{G}, 7, v{G+2}")
    A(f"s_lshl_b32 s{T+5}, s{T+2}, 14")
    A(f"v_add_u32 v{V_XL0}, s{T+5}, v{G+2}")
    A(f"v_xor_b32 v{V_XL1}, 64, v{V_XL0}")
    A(f"s_lshl_b32 s{T+5}, s{T+2}, 13")
    A(f"v_add_u32 v{V_PXL}, s{T+5}, v{G+2}")
    A(f"v_xor_b32 v{V_PXL+1}, 64, v{V_PXL}")
    A(f"v_add_u32 v{V_XR0}, {LDS_X0}, v{V_XL0}")
    A(f"v_add_u32 v{V_XR1}, {LDS_X0}, v{V_XL1}")
    A(f"s_mov_b32 s{S_XRD}, {LDS_X0+32768}")
    A(f"v_bfe_u32 v{G+2}, v0, 2, 2")
    A(f"v_lshl_add_u32 v{G+3}, v{G+1}, 3, v{G+2}")
    A(f"v_lshlrev_b32 v{G+3}, 9, v{G+3}")
    A(f"v_bfe_u32 v{G+4}, v0, 2, 3")
    A(f"v_lshl_add_u32 v{G+3}, v{G+4}, 5, v{G+3}")
    A(f"v_and_b32 v{G+5}, 3, v0")
    A(f"v_lshl_add_u32 v{G+3}, v{G+5}, 3, v{G+3}")
    A(f"s_lshl_b32 s{T+5}, s{T+3}, 8")
    A(f"v_add_u32 v{V_WR}, s{T+5}, v{G+3}")
    for b in range(1, 8):
        A(f"v_xor_b32 v{V_WR+b}, {b*32}, v{V_WR}")
    A(f"v_lshrrev_b32 v{G+3}, 5, v0")
    A(f"v_lshl_add_u32 v{G+3}, v{G+3}, 4, v{G+4}")
    A(f"v_lshlrev_b32 v{G+3}, 8, v{G+3}")
    A(f"v_lshl_add_u32 v{G+3}, v{G+4}, 5, v{G+3}")
    A(f"v_lshl_add_u32 v{G+3}, v{G+5}, 3, v{G+3}")
    A(f"v_add_u32 v{G+3}, 16384, v{G+3}")
    A(f"s_lshl_b32 s{T+5}, s{T+3}, 6")
    A(f"v_xor_b32 v{V_PWL}, s{T+5}, v{G+3}")
    A(f"v_xor_b32 v{V_PWL+1}, 32, v{V_PWL}")
    A(f"s_lshl_b32 s{T+5}, s{T+3}, 5")
    A(f"s_add_u32 s{T+5}, s{T+5}, 128")
    A(f"v_xor_b32 v{V_PWL+2}, s{T+5}, v{G+3}")
    A(f"v_lshlrev_b32 v{G+2}, 9, v{G+1}")
    A(f"v_bfe_u32 v{G+3}, v0, 3, 1")
    A(f"v_lshl_add_u32 v{G+4}, v{G+3}, 8, v{G+2}")
    A(f"v_and_b32 v{G+3}, 7, v0")
    A(f"v_lshl_add_u32 v{V_OA}, v{G+3}, 4, v{G+4}")
    A(f"v_lshl_add_u32 v{V_OAV}, v{G}, 4, v{G+2}")
    A(f"v_mov_b32 v{V_SCHI}, s{S_SCA}")
    A(f"v_cmp_gt_u32 vcc, 3, v{G+1}")
    A("s_nop 1")
    A(f"v_cndmask_b32 v{V_SCHI}, 0, v{V_SCHI}, vcc")
    A(f"s_lshl_b32 s{T+5}, s{T+3}, 4")
    A(f"v_add_u32 v{G+2}, s{T+5}, v{G}")
    A(f"v_cmp_gt_u32 vcc, 28, v{G+2}")
    A("s_nop 1")
    A(f"v_cndmask_b32 v{V_MULHI}, 0, 1.0, vcc")
    A(f"v_cmp_eq_u32 vcc, 28, v{G+2}")
    A("s_nop 1")
    A(f"v_cndmask_b32 v{V_ADDHI}, 0, 1.0, vcc")
    A(f"s_lshl_b32 s{T+6}, s{T+2}, 15")
    A(f"s_lshl_b32 s{T+5}, s{T+3}, 12")
    A(f"s_add_u32 s{T+6}, s{T+6}, s{T+5}")
    A(f"s_add_u32 s{T+6}, s{T+6}, {XQ}")
    A(f"v_add_u32 v{V_XQW}, s{T+6}, v{V_LANE16}")
    A(f"s_lshl_b32 s{T+6}, s{S_WAVE}, 14")
    A(f"s_add_u32 s{T+6}, s{T+6}, {XQ}")
    A(f"v_add_u32 v{V_XQR}, s{T+6}, v{V_LANE16}")
    A("s_waitcnt vmcnt(16)")
    c = V_CV
    A(f"v_mov_b32 v{c+4}, 0")
    for i in range(8):
        x, g = 192 + i, 200 + i
        A(f"v_lshlrev_b32 v{c}, 16, v{x}")
        A(f"v_and_b32 v{c+1}, 0xffff0000, v{x}")
        A(f"v_lshlrev_b32 v{c+2}, 16, v{g}")
        A(f"v_and_b32 v{c+3}, 0xffff0000, v{g}")
        A(f"v_mul_f32 v{c}, v{c}, v{c+2}")
        A(f"v_mul_f32 v{c+1}, v{c+1}, v{c+3}")
        A(f"v_cvt_pk_bf16_f32 v{c}, v{c}, v{c+1}")
        A(f"v_lshlrev_b32 v{c+1}, 16, v{c}")
        A(f"v_and_b32 v{c}, 0xffff0000, v{c}")
        A(f"v_add_f32 v{c+4}, v{c+4}, v{c+1}")
        A(f"v_add_f32 v{c+4}, v{c+4}, v{c}")
    for r in (8, 4, 2, 1):
        A("s_nop 1")
        A(f"v_add_f32_dpp v{c+4}, v{c+4}, v{c+4} row_ror:{r} row_mask:0xf bank_mask:0xf")
    A(f"v_mov_b32 v{c+5}, v{c+4}")
    A("s_nop 1")
    A(f"v_permlane16_swap_b32 v{c+5}, v{c+4}")
    A("s_nop 1")
    A(f"v_add_f32 v{c+4}, v{c+4}, v{c+5}")
    A(f"v_cvt_pk_bf16_f32 v{c+4}, v{c+4}, v{c+4}")
    A(f"v_lshlrev_b32 v{c+4}, 16, v{c+4}")
    A(f"v_mul_f32 v{c+4}, {f32bits(-LOG2E):#x}, v{c+4}")
    A(f"v_exp_f32 v{c+4}, v{c+4}")
    A("s_nop 0")
    A(f"v_add_f32 v{c+4}, 1.0, v{c+4}")
    A(f"v_rcp_f32 v{c+4}, v{c+4}")
    A("s_nop 0")
    A(f"v_cvt_pk_bf16_f32 v{c+4}, v{c+4}, v{c+4}")
    A(f"v_lshlrev_b32 v{c+4}, 16, v{c+4}")
    A(f"v_lshrrev_b32 v{c+5}, 5, v0")
    A(f"v_lshlrev_b32 v{c+5}, 2, v{c+5}")
    A(f"s_lshl_b32 s{T+4}, s{S_PHASE}, 2")
    A(f"s_add_u32 s{T+4}, s{T+4}, {WS_G}")
    A("s_mov_b32 exec_lo, 1")
    A("s_mov_b32 exec_hi, 1")
    A(f"buffer_store_dword v{c+4}, v{c+5}, {sr(SRD_WS,4)}, s{T+4} offen sc1")
    A("s_mov_b64 exec, -1")
    A(f"s_mov_b32 s{S_LEFT}, {cfg.get('touch_at', 3)}")
    A(f"s_mov_b32 s{S_PHASE}, 0")
    A(f"s_mov_b32 s{SRD_WS+2}, 0")
    A(f"s_lshl_b32 s{S_TOFF}, s2, 2")
    A(f"s_add_u32 s{S_TOFF}, s{S_TOFF}, s{S_WAVE}")
    A(f"s_lshl_b32 s{S_TOFF}, s{S_TOFF}, 12")
    A(f"v_lshlrev_b32 v{V_TCH}, 6, v0")
    A("s_barrier")
    A.emit_list(g_reads(0, 0))
    A("s_waitcnt lgkmcnt(0)")
    A(f"s_cmp_eq_u32 s{S_TYPE}, 1")
    A("s_cbranch_scc1 LG_VT")
    n_early = cfg.get("n_early", 16)
    for typ in ("KQ", "V"):
        if typ == "V":
            A.label("LG_VT")
        g_step(A, typ, True, cfg)
        A.label(f"LG_LOOP_{typ}")
        g_step(A, typ, False, cfg)
        A(f"s_cbranch_scc1 LG_LOOP_{typ}")
        A(f"s_add_u32 s{S_PHASE}, s{S_PHASE}, 1")
        A(f"s_mov_b32 s{S_LEFT}, 1")
        tl = ((P_WQ, 448*4096*2), (P_X, 2048*448*2), (P_WQKV, 448*1344*2), (P_WOB, 4096*448*2), (P_WOA, 448*448*2))
        for k, (ptr, size) in enumerate(tl):
            ln = A.newlabel("LEV")
            A(f"s_cmp_lg_u32 s{S_PHASE}, {k+1}")
            A(f"s_cbranch_scc1 {ln}")
            A(f"s_mov_b32 s{SRD_WS}, s{ptr}")
            A(f"s_mov_b32 s{SRD_WS+1}, s{ptr+1}")
            A(f"s_mov_b32 s{SRD_WS+2}, {size if cfg.get('touch', 1) else 0}")
            if k == 0:
                A(f"s_cmp_lg_u32 s{S_WAVE}, 0")
                A(f"s_cbranch_scc1 LG_LOOP_{typ}")
                A(f"v_mov_b32 v{V_SIG}, 1")
                A(f"v_mov_b32 v{V_SIG+1}, 0")
                A("s_mov_b64 exec, 1")
                A(f"buffer_atomic_add v{V_SIG}, v{V_SIG+1}, {sr(SRD_DBG,4)}, 0 offen offset:{C_INIT*4}")
                A("s_mov_b64 exec, -1")
            A(f"s_branch LG_LOOP_{typ}")
            A.label(ln)
        A(f"s_cmp_eq_u32 s{S_PHASE}, 9")
        A(f"s_cbranch_scc1 LG_EPI_{typ}")
        A(f"s_cmp_eq_u32 s{S_PHASE}, 8")
        A(f"s_cbranch_scc1 LG_SW_{typ}")
        ln = A.newlabel("LEV")
        A(f"s_cmp_lg_u32 s{S_PHASE}, 6")
        A(f"s_cbranch_scc1 {ln}")
        lpc = A.newlabel("LPC")
        A(f"s_getpc_b64 {sr(SRD_WS,2)}")
        A.label(lpc)
        A(f"s_mov_b32 s{SRD_WS+2}, {'LM_END-' + lpc if cfg.get('codewarm', 1) else 0}")
        A(f"s_lshr_b32 s{S_TOFF}, s2, 3")
        A(f"s_lshl_b32 s{S_TOFF}, s{S_TOFF}, 2")
        A(f"s_add_u32 s{S_TOFF}, s{S_TOFF}, s{S_WAVE}")
        A(f"s_lshl_b32 s{S_TOFF}, s{S_TOFF}, 12")
        A(f"s_branch LG_LOOP_{typ}")
        A.label(ln)
        A(f"s_mov_b32 s{SRD_WS+2}, 0")
        A(f"s_mov_b32 s{S_LEFT}, {14 - 6 - cfg.get('touch_at', 3)}")
        A(f"s_cmp_lg_u32 s{S_WAVE}, 0")
        A(f"s_cbranch_scc1 LG_LOOP_{typ}")
        A(f"v_mov_b32 v{V_SIG+1}, 0")
        A(f"buffer_load_dword v{V_SIG}, v{V_SIG+1}, {sr(SRD_DBG,4)}, 0 offen offset:{C_INIT*4} sc1")
        A(f"s_branch LG_LOOP_{typ}")
        A.label(f"LG_SW_{typ}")
        lok, llp = A.newlabel("LM"), A.newlabel("LM")
        A(f"s_cmp_lg_u32 s{S_WAVE}, 0")
        A(f"s_cbranch_scc1 {lok}")
        A(f"s_mov_b32 s{T+4}, {SPIN_MAX}")
        A.label(llp)
        A(f"v_readfirstlane_b32 s{T+5}, v{V_SIG}")
        A("s_nop 3")
        A(f"s_cmp_ge_u32 s{T+5}, 256")
        A(f"s_cbranch_scc1 {lok}")
        A(f"s_sub_u32 s{T+4}, s{T+4}, 1")
        A(f"s_cmp_eq_u32 s{T+4}, 0")
        A(f"s_cbranch_scc1 {lok}")
        A("s_sleep 32")
        A(f"buffer_load_dword v{V_SIG}, v{V_SIG+1}, {sr(SRD_DBG,4)}, 0 offen offset:{C_INIT*4} sc1")
        A("s_waitcnt vmcnt(0)")
        A(f"s_branch {llp}")
        A.label(lok)
        A(f"s_mov_b32 s{S_LEFT}, 2")
        A(f"s_mov_b32 s{SRD_A}, s{S_X2LO}")
        A(f"s_mov_b32 s{SRD_A+1}, s{S_X2HI}")
        A(f"s_mov_b32 s{SRD_A+2}, s{S_X2N}")
        A(f"s_mov_b32 s{S_XOFF}, s{S_XOFF2}")
        A(f"s_mov_b32 s{S_XSTA}, s{S_XSTA2}")
        A(f"s_mov_b32 s{S_XSTB}, s{S_XSTB2}")
        A(f"s_mov_b32 s{S_XWRAP}, s{S_XWRAP2}")
        A(f"v_mov_b32 v{V_DX}, v{V_DX2}")
        A(f"s_mov_b32 s{SRD_B}, s{P_WQ}")
        A(f"s_mov_b32 s{SRD_B+1}, s{P_WQ+1}")
        A(f"s_mov_b32 s{SRD_B+2}, {448*4096*2}")
        A(f"s_mov_b32 s{S_WOFF}, s{S_WOFF2}")
        A(f"s_branch LG_LOOP_{typ}")
        A.label(f"LG_EPI_{typ}")
        stamp(A, cfg, 1)
        set_srd(A, SRD_WS, P_WS, WS_SIZE)
        A(f"s_mov_b32 s{S_XOFF2}, s{S_OB}")
        A.emit_list(p_addr(16))
        A.emit_list(p_reads(0, 0))
        g_cvt(A, typ, n_early)
        if typ == "KQ":
            A("s_branch LP_START")
    A.label("LP_START")
    if cfg.get("stamp_lp"):
        stamp(A, cfg, 3)
    A("s_waitcnt lgkmcnt(0)")
    rem = list(range(n_early, 32))
    per = cfg.get("st_per", [4, 4, 4, 4])
    k = 0
    for T_ in range(16, 23):
        st = []
        for h in range(2):
            n = per[k] if k < len(per) else 0
            k += 1
            st.append(rem[:n])
            rem = rem[n:]
        p_step(A, T_, st[0], st[1], cfg)
    assert not rem, rem
    stamp(A, cfg, 2)
    b_setup_kv(A)
    def kv_first():
        for w, s_ in (("K", 0), ("V", 0), ("K", 1), ("V", 1), ("K", 2), ("V", 2)):
            emit_chain(A, kv_tile_chain(w, s_))
    A("s_waitcnt vmcnt(0)")
    poll_test(A)
    A(f"s_cselect_b32 s{S_EV}, 1, 0")
    A("s_cbranch_scc0 LP_NOTYET")
    kv_first()
    A.label("LP_NOTYET")
    A(f"s_cmp_eq_u32 s{S_GRP}, 0")
    A("s_cbranch_scc1 LP_NOLATE")
    A(f"s_mov_b32 s{S_OB}, s{S_XOFF2}")
    for c in range(32):
        for o_ in kv_store(c, SRD_WS):
            A(o_.text)
    A("s_nop 1")
    A.label("LP_NOLATE")
    p_epilogue_a(A)
    p_epilogue_q(A)
    b_setup_rest(A)
    A(f"s_cmp_eq_u32 s{S_EV}, 1")
    A("s_cbranch_scc1 LP_HAVE")
    poll_wait(A, True)
    kv_first()
    A.label("LP_HAVE")
    b_main(A, cfg)
    stamp_out(A, cfg, 7, 200 << 20, 2)
    A.label("LQ_NEXT")
    lp = A.newlabel("LQ")
    A(f"s_cmp_eq_u32 s{S_POPPED}, 1")
    A(f"s_cbranch_scc1 {lp}")
    pop_issue(A)
    A.label(lp)
    A(f"s_mov_b32 s{S_POPPED}, 0")
    lw = A.newlabel("LQ")
    A(f"s_cmp_lg_u32 s{S_WAVE}, 0")
    A(f"s_cbranch_scc1 {lw}")
    A("s_waitcnt vmcnt(0)")
    A(f"v_mov_b32 v{V_POLL+1}, {LDS_TOTAL-16}")
    A("s_mov_b64 exec, 1")
    A(f"ds_write_b32 v{V_POLL+1}, v{V_POP}")
    A("s_mov_b64 exec, -1")
    A.label(lw)
    A("s_waitcnt vmcnt(0) lgkmcnt(0)")
    A("s_barrier")
    ls = A.newlabel("LQ")
    A(f"s_cmp_eq_u32 s{S_RFLAG}, 0")
    A(f"s_cbranch_scc1 {ls}")
    signal(A, S_RFLAG, mask_sgpr=S_RMASK)
    A.label(ls)
    A(f"v_mov_b32 v{V_POLL+1}, {LDS_TOTAL-16}")
    A(f"ds_read_b32 v{V_POLL}, v{V_POLL+1}")
    A("s_waitcnt lgkmcnt(0)")
    A(f"v_readfirstlane_b32 s{S_ITEM}, v{V_POLL}")
    A("s_barrier")
    NA = a_counts(cfg)[3]
    A(f"s_cmp_ge_u32 s{S_ITEM}, {NA + 56}")
    A("s_cbranch_scc1 LM_END")
    A(f"s_cmp_ge_u32 s{S_ITEM}, {NA}")
    A("s_cbranch_scc1 LQ_RED")
    a_item(A, cfg)
    if cfg.get("diag"):
        A(f"s_and_b32 s{T+2}, s2, 7")
        A(f"s_lshl_b32 s{T+3}, s{S_ITEM}, 3")
        A(f"s_add_u32 s{T+2}, s{T+2}, s{T+3}")
        stamp_out(A, cfg, 5, 210 << 20, T + 2)
    A("s_branch LQ_NEXT")
    A.label("LQ_RED")
    A(f"s_mov_b32 s{S_RFLAG}, 0")
    r_item(A, cfg)
    if cfg.get("diag"):
        A(f"s_and_b32 s{T+2}, s2, 7")
        A(f"s_sub_u32 s{T+3}, s{S_ITEM}, {NA}")
        A(f"s_lshl_b32 s{T+3}, s{T+3}, 3")
        A(f"s_add_u32 s{T+2}, s{T+2}, s{T+3}")
        stamp_out(A, cfg, 3, 220 << 20, T + 2)
    A("s_branch LQ_NEXT")
    flush_ool(A)
    b_rare(A, 0)
    b_rare(A, 1)
    a_rare(A, 0)
    a_rare(A, 1)
    A.label("LM_END")
    A("s_endpgm")
    return kernel_desc(name, 512, 102, 256)
```

```python
import math
from asmlib import *

WS_K = 0
WS_V = 16 << 20
WS_QA = 48 << 20
WS_KA = 50 << 20
WS_VA = 52 << 20
WS_P = 64 << 20
WS_SIZE = 256 << 20
P_SLOT = 128 * 14 * 1024
LOG2E = math.log2(math.e)
SCALE_B = LOG2E / 16.0
SCALE_A = LOG2E / math.sqrt(28.0)
LDS_TOTAL = 163840
LDS_X0 = 65536
BIAS = 32.0
NEG_INF = 0xff800000
HUGE = WS_SIZE
SPIN_MAX = 1 << 16

C_QUEUE = 1
WS_F = 240 << 20
F_KV, F_AQ, F_ROW = WS_F, WS_F + 8192, WS_F + 12288
WS_G = 241 << 20

P_X, P_WQKV, P_WOA, P_CKV, P_WQ, P_WUK, P_WUV = 4, 6, 30, 12, 14, 16, 18
P_WOB, P_GATE, P_OUT, P_DBG, P_WS = 20, 22, 24, 26, 28
SRD_A, SRD_B, SRD_WS, SRD_DBG = 32, 36, 40, 44
S_WAVE, S_TYPE, S_HEAD, S_QB = 48, 49, 50, 51
S_XOFF, S_WOFF, S_XSTA, S_XSTB, S_XWRAP, S_W4, S_W12 = 52, 53, 54, 55, 56, 57, 58
S_XRD, S_XWR, S_WWR, S_XWAVE, S_LEFT, S_PHASE = 59, 60, 61, 62, 63, 64
S_OB, S_OSTA, S_OSTB = 65, 66, 67
S_XOFF2, S_WOFF2, S_XSTA2, S_XSTB2, S_XWRAP2, S_X2LO, S_X2HI, S_X2N = 68, 69, 70, 71, 72, 73, 74, 75
S_OBQK, S_OBV, S_SCA, S_GHEAD = 76, 77, 78, 79
S_N, S_T2, S_TW, S_KOFF, S_VOFF, S_KLIM, S_VLIM, S_B0 = 52, 53, 54, 55, 56, 57, 58, 59
S_RET = 60
S_FLOOR, S_FIRST = 62, 64
S_WOOFF, S_POFF, S_MASK, S_HUGE, S_WOW = 65, 66, 67, 68, 69
S_SC = 70
S_BL1 = 67
S_POFF1 = 71
S_ITEM = 72
S_SPIN = 73
S_EV = 74
S_PADDR = 75
S_RMASK = 77
S_AQOK = 79
S_POPPED = 49
S_KAP = 78
S_RFLAG = 76
S_TMP = 80
S_STAMP = 88
SRD_E = 8
S_TOFF = 87
S_PC = 84
S_TOFF2 = 86
S_TA, S_TASZ, S_TAOFF, S_TAT, S_TBOFF, S_TBT = 12, 16, 17, 18, 19, 22
S_CSTEP = 83
V_CRT = 42
V_TCH = 40
S_GRP = 3

V_LANE16 = 1
V_XL0, V_XL1, V_XR0, V_XR1 = 2, 3, 4, 5
V_WR = 6
V_DX, V_DW, V_DX2 = 14, 15, 16
V_OA, V_OAV, V_SCHI, V_MULHI, V_ADDHI = 17, 18, 19, 20, 21
V_PXL = 22
V_PWL = 24
V_PWR = 27
V_XQW, V_XQR = 30, 31
V_G = 32
V_CV = 48
FX = [64, 128]
FW = [96, 160]
V_PK = 128
V_DKV = 2
V_RB1, V_RB0 = 3, 4
V_CB = 6
V_L = 8
V_DM = 10
V_LT = 14
V_T = 16
V_WOD = 32
V_WOR = 40
V_POLL = 44
V_SIG = 46
V_POP = 5
VP = [48, 56]
VS = [64, 80]
VC = 96
VE = 112
VO = 128
AQ, AK, AV = 0, 64, 128
XQ = 98304

OOL = []


def flush_ool(A):
    for b in OOL:
        A.emit_list(b)
    OOL.clear()


def emit_chain(A, c):
    prev = ""
    for o in c:
        if o.kind == "M" and prev.split(",")[0].endswith(" m0"):
            A("s_nop 0")
        A(o.text)
        prev = o.text


def emit_left(A, left):
    for l in left:
        A(l)
        if l.split(",")[0].endswith(" m0") or l.startswith("v_exp"):
            A("s_nop 0")


def spread(n_items, start, end):
    if n_items == 1:
        return [start]
    return [start + (i * (end - start)) // (n_items - 1) for i in range(n_items)]


def set_srd(A, srd, ptr, size):
    A(f"s_mov_b32 s{srd}, s{ptr}")
    A(f"s_mov_b32 s{srd+1}, s{ptr+1}")
    A(f"s_mov_b32 s{srd+2}, {size}")
    A(f"s_mov_b32 s{srd+3}, 0x20000")


def stamp(A, cfg, i):
    if cfg.get("diag"):
        A(f"s_memrealtime {sr(S_STAMP+2*i,2)}")


def stamp_out(A, cfg, n, wsoff, idx_sgpr):
    if cfg.get("diag"):
        A("s_waitcnt vmcnt(0) lgkmcnt(0)")
        A(f"s_memrealtime {sr(S_STAMP+2*(n-1),2)}")
        A("s_waitcnt lgkmcnt(0)")
        A(f"s_lshl_b32 s{S_TMP}, s{idx_sgpr}, 8")
        A(f"s_lshl_b32 s{S_TMP+1}, s{S_WAVE}, 6")
        A(f"s_add_u32 s{S_TMP}, s{S_TMP}, s{S_TMP+1}")
        A(f"s_add_u32 s{S_TMP}, s{S_TMP}, {wsoff}")
        A(f"v_mov_b32 v{V_T+1}, 0")
        for i in range(n):
            A(f"v_mov_b32 v{V_T}, s{S_STAMP+2*i}")
            A(f"buffer_store_dword v{V_T}, v{V_T+1}, {sr(SRD_WS,4)}, s{S_TMP} offen offset:{4*i}")
            A("s_nop 1")


def signal(A, off_sgpr, grp=None, mask_sgpr=None):
    l = A.newlabel("LSG")
    A(f"s_cmp_lg_u32 s{S_WAVE}, 0")
    A(f"s_cbranch_scc1 {l}")
    if grp is not None:
        A(f"s_cmp_lg_u32 s{S_GRP}, {grp}")
        A(f"s_cbranch_scc1 {l}")
    A(f"v_mov_b32 v{V_SIG}, 1")
    A(f"v_lshlrev_b32 v{V_SIG+1}, 5, v0")
    A("s_mov_b64 exec, 1")
    if mask_sgpr is not None:
        A(f"s_mov_b32 exec_lo, s{mask_sgpr}")
    A(f"buffer_store_dword v{V_SIG}, v{V_SIG+1}, {sr(SRD_WS,4)}, s{off_sgpr} offen sc1")
    A("s_mov_b64 exec, -1")
    A.label(l)


def pop_issue(A):
    l = A.newlabel("LPO")
    A(f"s_mov_b32 s{S_POPPED}, 1")
    A(f"s_cmp_lg_u32 s{S_WAVE}, 0")
    A(f"s_cbranch_scc1 {l}")
    A(f"s_and_b32 s{S_TMP+7}, s2, 7")
    A(f"s_lshl_b32 s{S_TMP+7}, s{S_TMP+7}, 5")
    A(f"v_mov_b32 v{V_POP}, 1")
    A(f"v_mov_b32 v{V_SIG+1}, 0")
    A("s_mov_b64 exec, 1")
    A(f"buffer_atomic_add v{V_POP}, v{V_SIG+1}, {sr(SRD_DBG,4)}, s{S_TMP+7} offen offset:{C_QUEUE*4} sc0")
    A("s_mov_b64 exec, -1")
    A.label(l)


def poll_issue(A, idx_sgpr, base, nwords):
    A(f"s_lshl_b32 s{S_PADDR}, s{idx_sgpr}, 8")
    A(f"s_add_u32 s{S_PADDR}, s{S_PADDR}, {base}")
    A(f"v_min_u32 v{V_POLL+1}, {nwords-1}, v0")
    A(f"v_lshlrev_b32 v{V_POLL+1}, 2, v{V_POLL+1}")
    A(f"buffer_load_dword v{V_POLL}, v{V_POLL+1}, {sr(SRD_WS,4)}, s{S_PADDR} offen sc1")


def poll_test(A):
    A(f"v_cmp_eq_u32 vcc, 1, v{V_POLL}")
    A("s_nop 3")
    A("s_cmp_eq_u64 vcc, -1")


def poll_wait(A, reissue_first=False):
    lok, lloop = A.newlabel("LPK"), A.newlabel("LPL")
    A(f"s_mov_b32 s{S_SPIN}, {SPIN_MAX}")
    if reissue_first:
        A(f"buffer_load_dword v{V_POLL}, v{V_POLL+1}, {sr(SRD_WS,4)}, s{S_PADDR} offen sc1")
    A.label(lloop)
    A("s_waitcnt vmcnt(0)")
    poll_test(A)
    A(f"s_cbranch_scc1 {lok}")
    A(f"s_sub_u32 s{S_SPIN}, s{S_SPIN}, 1")
    A(f"s_cmp_eq_u32 s{S_SPIN}, 0")
    A(f"s_cbranch_scc1 {lok}")
    A("s_sleep 8")
    A(f"buffer_load_dword v{V_POLL}, v{V_POLL+1}, {sr(SRD_WS,4)}, s{S_PADDR} offen sc1")
    A(f"s_branch {lloop}")
    A.label(lok)


def acc(nb, tb):
    return (nb * 8 + tb) * 4


def g_mfmas(typ, s, first):
    out = []
    for nb in range(8):
        for tb in range(8):
            a = acc(nb, tb)
            w, x = vr(FW[s] + 4 * nb, 4), vr(FX[s] + 4 * tb, 4)
            c = "0" if first else ar(a, 4)
            out.append(f"v_mfma_f32_16x16x32_bf16 {ar(a,4)}, {w}, {x}, {c}" if typ == "KQ"
                       else f"v_mfma_f32_16x16x32_bf16 {ar(a,4)}, {x}, {w}, {c}")
    return out


def g_reads(s, hh):
    vx = V_XR0 if hh == 0 else V_XR1
    out = [f"ds_read_b128 {vr(FX[s]+4*i,4)}, v{vx} offset:{i*2048}" for i in range(8)]
    for i in range(8):
        out.append(f"ds_read_b64_tr_b16 {vr(FW[s]+4*i,2)}, v{V_WR+i} offset:{hh*16384}")
        out.append(f"ds_read_b64_tr_b16 {vr(FW[s]+4*i+2,2)}, v{V_WR+i} offset:{hh*16384+2048}")
    return out


def dma_x():
    c = [Op(f"s_mov_b32 m0, s{S_XWR}", "S")]
    for i in range(8):
        c.append(Op(f"buffer_load_dwordx4 v{V_DX}, {sr(SRD_A,4)}, s{S_XOFF} offen lds", "M"))
        if i < 7:
            c.append(Op("s_add_u32 m0, m0, 2048", "S"))
            c.append(Op(f"s_add_u32 s{S_XOFF}, s{S_XOFF}, s{S_XSTA if i % 2 == 0 else S_XSTB}", "S"))
        else:
            c.append(Op(f"s_add_u32 s{S_XOFF}, s{S_XOFF}, s{S_XWRAP}", "S"))
            c.append(Op(f"s_add_u32 s{S_XWR}, s{S_XWR}, 32768", "S"))
            c.append(Op(f"s_cmp_ge_u32 s{S_XWR}, {LDS_TOTAL}", "S"))
            c.append(Op(f"s_cselect_b32 s{S_XWR}, s{S_XWAVE}, s{S_XWR}", "S"))
    return c


def dma_w():
    c = [Op(f"s_mov_b32 m0, s{S_WWR}", "S")]
    for i in range(8):
        c.append(Op(f"buffer_load_dwordx4 v{V_DW}, {sr(SRD_B,4)}, s{S_WOFF} offen lds", "M"))
        if i % 2 == 0:
            c.append(Op("s_add_u32 m0, m0, 2048", "S"))
            c.append(Op(f"s_add_u32 s{S_WOFF}, s{S_WOFF}, {4*8192}", "S"))
        else:
            if i < 7:
                c.append(Op("s_add_u32 m0, m0, 6144", "S"))
            c.append(Op(f"s_add_u32 s{S_WOFF}, s{S_WOFF}, {12*8192}", "S"))
        if i == 7:
            c.append(Op(f"s_xor_b32 s{S_WWR}, s{S_WWR}, 32768", "S"))
    return c


HT = "DFDMDFDF" * 6 + "FMFFFFFM" + "FFFFFFFX"


def gate_ops():
    c = V_CV
    par, prevs = [], []
    acc_prev = Op(f"v_mov_b32 v{c+8}, 0", "V")
    par.append(acc_prev)
    for i in range(8):
        x, g = 192 + i, 200 + i
        t = 208 + 4 * i
        a = Op(f"v_lshlrev_b32 v{t}, 16, v{x}", "V")
        b = Op(f"v_and_b32 v{t+1}, 0xffff0000, v{x}", "V")
        d = Op(f"v_lshlrev_b32 v{t+2}, 16, v{g}", "V")
        e = Op(f"v_and_b32 v{t+3}, 0xffff0000, v{g}", "V")
        m0 = Op(f"v_mul_f32 v{t}, v{t}, v{t+2}", "V", [a, d])
        m1 = Op(f"v_mul_f32 v{t+1}, v{t+1}, v{t+3}", "V", [b, e])
        cv = Op(f"v_cvt_pk_bf16_f32 v{t}, v{t}, v{t+1}", "V", [m0, m1])
        lo = Op(f"v_lshlrev_b32 v{t+1}, 16, v{t}", "V", [cv])
        hi = Op(f"v_and_b32 v{t+2}, 0xffff0000, v{t}", "V", [cv])
        s0 = Op(f"v_add_f32 v{c+8}, v{c+8}, v{t+1}", "V", [lo, acc_prev])
        s1 = Op(f"v_add_f32 v{c+8}, v{c+8}, v{t+2}", "V", [hi, s0])
        acc_prev = s1
        par += [a, b, d, e, m0, m1, cv, lo, hi, s0, s1]
    v, w = c + 8, c + 9
    tail = []
    for r in (8, 4, 2, 1):
        tail += ["s_nop 0", f"v_add_f32_dpp v{v}, v{v}, v{v} row_ror:{r} row_mask:0xf bank_mask:0xf"]
    tail += [f"v_mov_b32 v{w}, v{v}", "s_nop 0", f"v_permlane16_swap_b32 v{w}, v{v}", "s_nop 0", f"v_add_f32 v{v}, v{v}, v{w}",
             f"v_cvt_pk_bf16_f32 v{v}, v{v}, v{v}", f"v_lshlrev_b32 v{v}, 16, v{v}", f"v_mul_f32 v{v}, {f32bits(-LOG2E):#x}, v{v}",
             f"v_exp_f32 v{v}, v{v}", f"v_add_f32 v{v}, 1.0, v{v}", f"v_rcp_f32 v{v}, v{v}", f"v_cvt_pk_bf16_f32 v{v}, v{v}, v{v}",
             f"v_lshlrev_b32 v{v}, 16, v{v}", f"v_lshrrev_b32 v{w}, 5, v0", f"v_lshlrev_b32 v{w}, 2, v{w}"]
    tl, prev = [], None
    for t in tail:
        o = Op(t, "V", [prev] if prev else [])
        tl.append(o)
        prev = o
    return par, tl


def g_step(A, typ, first, cfg):
    lastD = max(i for i, c in enumerate(HT) if c == "D")
    va = [Op(f"v_add_u32 v{V_XR0}, s{S_XRD}, v{V_XL0}", "V", min_gap=lastD + 1),
          Op(f"v_add_u32 v{V_XR1}, s{S_XRD}, v{V_XL1}", "V", min_gap=lastD + 1)]
    va += [Op(f"v_xor_b32 v{V_WR+i}, 0x8000, v{V_WR+i}", "V", min_gap=lastD + 1) for i in range(8)]
    gp, gt = gate_ops() if first else ([], [])
    va = va + gp[:58]
    tch = [Op(f"buffer_load_dword v{V_TCH+1}, v{V_TCH}, {sr(SRD_WS,4)}, s{S_TOFF} offen {cfg.get('tfl','')}", "M"),
           Op(f"buffer_atomic_add v{V_CRT}, v{V_CRT+1}, {sr(SRD_DBG,4)}, 0 offen", "M")]
    ht1 = HT[:59] + "MFM" + HT[62:]
    out, _ = schedule(g_mfmas(typ, 0, first), ht1, g_reads(1, 1), dma_x() + tch, va,
                      {63: ["s_waitcnt vmcnt(10) lgkmcnt(0)", "s_barrier"]}, salu_first=True)
    A.emit_list(out)
    ch = [Op(f"s_add_u32 s{S_XRD}, s{S_XRD}, 32768", "S"), Op(f"s_cmp_ge_u32 s{S_XRD}, {LDS_TOTAL}", "S"),
          Op(f"s_cselect_b32 s{S_XRD}, {LDS_X0}, s{S_XRD}", "S")]
    groups = [[Op(f"s_add_u32 s{S_PHASE}, s{S_PHASE}, 1", "S"), Op(f"s_mov_b32 s{SRD_WS+2}, 0", "S")]]
    for when, base, size, off in ((f"s{S_TAT}", S_TA, f"s{S_TASZ}", S_TAOFF),
                                  (cfg.get("warm_at", 13), S_PC, "LM_END-LM_PC", S_TOFF2)):
        groups.append([Op(f"s_cmp_eq_u32 s{S_PHASE}, {when}", "S"),
                       Op(f"s_cselect_b64 {sr(SRD_WS,2)}, {sr(base,2)}, {sr(SRD_WS,2)}", "S"),
                       Op(f"s_cselect_b32 s{SRD_WS+2}, {size}, s{SRD_WS+2}", "S"),
                       Op(f"s_cselect_b32 s{S_TOFF}, s{off}, s{S_TOFF}", "S")])
    groups.append([Op(f"s_cmp_eq_u32 s{S_PHASE}, s{S_CSTEP}", "S"), Op(f"s_cselect_b32 s{SRD_DBG+2}, 256, 0", "S")])
    if first:
        groups = groups[:1]
    merged = []
    for o in dma_w():
        merged.append(o)
        if o.kind == "M" and groups:
            merged += groups.pop(0)
    assert not groups
    ch = ch + merged + [Op(f"s_sub_u32 s{S_LEFT}, s{S_LEFT}, 1", "S"), Op(f"s_cmp_lg_u32 s{S_LEFT}, 0", "S")]
    for o in gp[:58]:
        o.gap = -1
    if gt:
        gt[0].deps = [gp[-1]]
    out, _ = schedule(g_mfmas(typ, 1, False), HT, g_reads(0, 0), ch, gp[58:] + gt, {63: ["s_waitcnt lgkmcnt(0)"]}, salu_first=True)
    A.emit_list(out)
    if cfg.get("gdiag"):
        A("s_memtime s[100:101]")
        A("s_memrealtime s[98:99]")
        A(f"s_mov_b32 m0, s{S_W12}")
        A("s_waitcnt lgkmcnt(0)")
        A("v_writelane_b32 v240, s100, m0")
        A("v_writelane_b32 v241, s98, m0")
        A(f"s_addk_i32 s{S_W12}, 1")
        A(f"s_cmp_lg_u32 s{S_LEFT}, 0")
    if first:
        A(f"s_mov_b32 s{SRD_WS+2}, {WS_SIZE}")
        A("s_mov_b32 exec_lo, 1")
        A("s_mov_b32 exec_hi, 1")
        A(f"buffer_store_dword v{V_CV+8}, v{V_CV+9}, {sr(SRD_WS,4)}, s{S_W4} offen sc1")
        A("s_mov_b64 exec, -1")
        A(f"s_mov_b32 s{SRD_WS+2}, 0")


KVFL = "sc1"


def kv_store(c, srd=None):
    srd = SRD_E if srd is None else srd
    ops = []
    if c and c % 4 == 0:
        ops.append(Op(f"s_add_u32 s{S_OB}, s{S_OB}, s{S_OSTA if (c // 4) % 2 == 1 else S_OSTB}", "S"))
    ops.append(Op(f"buffer_store_dwordx4 {vr(V_PK+4*c,4)}, v{V_LANE16}, {sr(srd,4)}, s{S_OB} offen offset:{(c%4)*1024} {KVFL}", "M"))
    return ops


def g_cvt(A, typ, n_early):
    for c in range(32):
        hi, lo = c // 4, c % 4
        if typ == "KQ":
            o, p = hi, lo
            regs = [acc(2 * p, o) + r for r in range(4)] + [acc(2 * p + 1, o) + r for r in range(4)]
        else:
            p, o = hi >> 1, (hi & 1) * 4 + lo
            regs = [acc(o, 2 * p) + r for r in range(4)] + [acc(o, 2 * p + 1) + r for r in range(4)]
        t = V_CV + (c % 2) * 8
        for i, r in enumerate(regs):
            A(f"v_accvgpr_read_b32 v{t+i}, a{r}")
        for i in range(4):
            A(f"v_cvt_pk_bf16_f32 v{V_PK+4*c+i}, v{t+2*i}, v{t+2*i+1}")
        if n_early == 32:
            for o_ in kv_store(c):
                A(o_.text)
        else:
            k0, k1 = (c * n_early) // 32, ((c + 1) * n_early) // 32
            for k in range(k0, k1):
                for o_ in kv_store(k):
                    A(o_.text)


PF = [("v", 64), ("a", 176)]


def pfr(s, off, n):
    k, b = PF[s]
    return vr(b + off, n, k)


def p_mfmas(s, first):
    out = []
    for db in range(8):
        for tb in range(4):
            a = ar((db * 4 + tb) * 4, 4)
            out.append(f"v_mfma_f32_16x16x32_bf16 {a}, {pfr(s,16+4*db,4)}, {pfr(s,4*tb,4)}, {'0' if first else a}")
    for u in range(3):
        for tb in range(4):
            a = ar(128 + (u * 4 + tb) * 4, 4)
            w, x = pfr(s, 48 + 4 * u, 4), pfr(s, 4 * tb, 4)
            out.append(f"v_mfma_f32_16x16x32_bf16 {a}, {w}, {x}, {'0' if first else a}" if u < 2
                       else f"v_mfma_f32_16x16x32_bf16 {a}, {x}, {w}, {'0' if first else a}")
    return out


def p_reads(s, hh):
    out = [f"ds_read_b128 {pfr(s,4*tb,4)}, v{V_XR0+hh} offset:{tb*2048}" for tb in range(4)]
    for b in range(8):
        for e in range(2):
            out.append(f"ds_read_b64_tr_b16 {pfr(s,16+4*b+2*e,2)}, v{V_WR+b} offset:{hh*16384+e*2048}")
    for u in range(3):
        for e in range(2):
            out.append(f"ds_read_b64_tr_b16 {pfr(s,48+4*u+2*e,2)}, v{V_PWR+u} offset:{hh*8192+e*2048}")
    return out


def p_addr(T):
    base = LDS_X0 + (T % 3) * 32768
    return ([f"v_add_u32 v{V_XR0+h}, {base}, v{V_PXL+h}" for h in range(2)] +
            [f"v_add_u32 v{V_PWR+u}, {base}, v{V_PWL+u}" for u in range(3)])


def merge_chain(dmas, stores):
    out = []
    k = 0
    stores = list(stores)
    for o in dmas:
        out.append(o)
        if o.kind == "M":
            k += 1
            if k % 2 == 0 and stores:
                out += stores.pop(0)
    for s in stores:
        out += s
    return out


PT = "DDM" * 13 + "FFFFX"


def p_step(A, T, st1, st2, cfg):
    lastD = max(i for i, c in enumerate(PT) if c == "D")
    last = T == 22
    ch = merge_chain(dma_x() if T + 2 <= 22 else [], [kv_store(c) for c in st1])
    n_young = sum(1 for o in ch if o.kind == "M")
    va = []
    if not last:
        va = [Op(t, "V", min_gap=lastD + 1) for t in p_addr(T + 1)]
        va += [Op(f"v_xor_b32 v{V_WR+i}, 0x8000, v{V_WR+i}", "V", min_gap=lastD + 1) for i in range(8)]
    out, left = schedule(p_mfmas(0, T == 16), PT, p_reads(1, 1), ch, va, {}, strict=False)
    A.emit_list(out)
    emit_left(A, left)
    A(f"s_waitcnt vmcnt({n_young}) lgkmcnt(0)")
    A("s_barrier")
    if T == cfg.get("sig_at", 18):
        assert not st1 and not st2
        signal(A, S_GHEAD, grp=0)
    if last:
        poll_issue(A, S_HEAD, F_KV, 8)
    ch = merge_chain(dma_w() if T + 2 <= 22 else [], [kv_store(c) for c in st2])
    out, left = schedule(p_mfmas(1, False), PT, [] if last else p_reads(0, 0), ch, [], {}, strict=False)
    A.emit_list(out)
    emit_left(A, left)
    A("s_waitcnt lgkmcnt(0)")


def p_epilogue_a(A):
    gi = 0
    for tb in range(4):
        t = 64 + gi * 12
        gi += 1
        lo, hi = 128 + tb * 4, 128 + (4 + tb) * 4
        for r in range(4):
            A(f"v_accvgpr_read_b32 v{t+r}, a{lo+r}")
            A(f"v_accvgpr_read_b32 v{t+4+r}, a{hi+r}")
        for r in range(4):
            A(f"v_mul_f32 v{t+r}, s{S_SCA}, v{t+r}")
            A(f"v_mul_f32 v{t+4+r}, v{V_SCHI}, v{t+4+r}")
        for i in range(4):
            A(f"v_cvt_pk_bf16_f32 v{t+8+i}, v{t+2*i}, v{t+2*i+1}")
        A(f"buffer_store_dwordx4 {vr(t+8,4)}, v{V_OA}, {sr(SRD_WS,4)}, s{S_OBQK} offen offset:{(tb>>1)*2048+(tb&1)*128} sc1")
    for p in range(2):
        t = 128 + p * 12
        lo, hi = 128 + (8 + 2 * p) * 4, 128 + (8 + 2 * p + 1) * 4
        for r in range(4):
            A(f"v_accvgpr_read_b32 v{t+r}, a{lo+r}")
            A(f"v_accvgpr_read_b32 v{t+4+r}, a{hi+r}")
        for r in range(8):
            A(f"v_fma_f32 v{t+r}, v{t+r}, v{V_MULHI}, v{V_ADDHI}")
        for i in range(4):
            A(f"v_cvt_pk_bf16_f32 v{t+8+i}, v{t+2*i}, v{t+2*i+1}")
        A(f"buffer_store_dwordx4 {vr(t+8,4)}, v{V_OAV}, {sr(SRD_WS,4)}, s{S_OBV} offen offset:{p*2048} sc1")


def p_epilogue_q(A):
    gi = 0
    for tb in range(4):
        for p in range(4):
            t = 160 + (gi % 8) * 12
            gi += 1
            lo, hi = ((2 * p) * 4 + tb) * 4, ((2 * p + 1) * 4 + tb) * 4
            for r in range(4):
                A(f"v_accvgpr_read_b32 v{t+r}, a{lo+r}")
                A(f"v_accvgpr_read_b32 v{t+4+r}, a{hi+r}")
            for r in range(0, 8, 2):
                A(f"v_pk_mul_f32 {vr(t+r,2)}, {vr(t+r,2)}, {sr(S_SC,2)}")
            for i in range(4):
                A(f"v_cvt_pk_bf16_f32 v{t+8+i}, v{t+2*i}, v{t+2*i+1}")
            A(f"ds_write_b128 v{V_XQW}, {vr(t+8,4)} offset:{tb*8192+p*1024}")


def s_reg(buf, kb, qb):
    return VS[buf] + (kb * 2 + qb) * 4


def c_reg(kb, qb):
    return VC + (kb * 2 + qb) * 4


def o_reg(db, qb):
    return VO + (db * 2 + qb) * 4


def qk_mfmas(buf, qs=(0, 1)):
    out = []
    for dg in range(8):
        for kb in range(2):
            for qb in qs:
                d = vr(s_reg(buf, kb, qb), 4)
                c = vr(c_reg(kb, qb), 4) if dg == 0 else d
                out.append(f"v_mfma_f32_16x16x32_bf16 {d}, {ar(AK+(kb*8+dg)*4,4)}, {ar(AQ+(qb*8+dg)*4,4)}, {c}")
    return out


def pv_mfmas(pbuf, qs=(0, 1)):
    out = []
    for db in range(16):
        for qb in qs:
            d = vr(o_reg(db, qb), 4)
            out.append(f"v_mfma_f32_16x16x32_bf16 {d}, {ar(AV+db*4,4)}, {vr(VP[pbuf]+qb*4,4)}, {d}")
    return out


def k_reads(vbase, off):
    return [f"ds_read_b128 {ar(AK+(kb*8+dg)*4,4)}, v{vbase} offset:{off+(kb*8+dg)*1024}"
            for dg in range(8) for kb in range(2)]


def v_reads(vbase, off):
    return [f"ds_read_b128 {ar(AV+db*4,4)}, v{vbase} offset:{off+db*1024}" for db in range(16)]


def softmax_oplist(buf, pbuf, with_l=(0, 1), qs=(0, 1)):
    ops = []
    ladd = {qb: Op(f"v_add_f32 v{V_L+qb}, v{V_L+qb}, v{V_LT+qb}", "V") for qb in with_l}
    ops += list(ladd.values())
    lastsum = []
    for qb in qs:
        prev = None
        for kb in range(2):
            s = s_reg(buf, kb, qb)
            e = VE + (kb * 2 + qb) * 4
            ex = [Op(f"v_exp_f32 v{e+r}, v{s+r}", "E") for r in range(4)]
            ops += ex
            ops.append(Op(f"v_cvt_pk_bf16_f32 v{VP[pbuf]+qb*4+kb*2}, v{e}, v{e+1}", "V", [ex[0], ex[1]]))
            ops.append(Op(f"v_cvt_pk_bf16_f32 v{VP[pbuf]+qb*4+kb*2+1}, v{e+2}, v{e+3}", "V", [ex[2], ex[3]]))
            if kb == 0:
                prev = Op(f"v_add_f32 v{V_LT+qb}, v{e}, v{e+1}", "V", [ex[0], ex[1]] + ([ladd[qb]] if qb in ladd else []))
                ops.append(prev)
                rest = [2, 3]
            else:
                rest = [0, 1, 2, 3]
            for r in rest:
                prev = Op(f"v_add_f32 v{V_LT+qb}, v{V_LT+qb}, v{e+r}", "V", [ex[r], prev])
                ops.append(prev)
        lastsum.append(prev)
    if len(qs) == 2:
        mx = Op(f"v_max_f32 v{V_T+8}, v{V_LT}, v{V_LT+1}", "V", lastsum)
        ops.append(mx)
        ops.append(Op(f"v_cmp_ngt_f32 vcc, 2.0, v{V_T+8}", "V", [mx]))
    else:
        ops.append(Op(f"v_cmp_ngt_f32 vcc, 2.0, v{V_LT+qs[0]}", "V", lastsum))
    return ops


def softmax_linear(buf, pbuf):
    ops = softmax_oplist(buf, pbuf, with_l=())
    return [o.text for o in ops if o.kind == "E"] + ["s_nop 0"] + [o.text for o in ops if o.kind == "V"]


def kv_dma(soff, i):
    return Op(f"buffer_load_dwordx4 v{V_DKV}, {sr(SRD_WS,4)}, s{soff} offen offset:{i*1024} sc1 lds", "M")


def dma_chain(kdst, vdst, vmin):
    c = [Op(f"s_cmp_lt_u32 s{S_KOFF}, s{S_KLIM}", "S"), Op(f"s_cselect_b32 s{S_TMP}, s{S_KOFF}, s{S_HUGE}", "S"),
         Op(kdst, "S"), Op(f"s_add_u32 s{S_KOFF}, s{S_KOFF}, 16384", "S")]
    c += [kv_dma(S_TMP, i) for i in range(4)]
    c += [Op(f"s_cmp_lt_u32 s{S_VOFF}, s{S_VLIM}", "S", min_gap=vmin),
          Op(f"s_cselect_b32 s{S_TMP+1}, s{S_VOFF}, s{S_HUGE}", "S"),
          Op(vdst, "S"), Op(f"s_add_u32 s{S_VOFF}, s{S_VOFF}, 16384", "S")]
    c += [kv_dma(S_TMP + 1, i) for i in range(4)]
    return c


def kv_tile_chain(which, stage):
    off = S_KOFF if which == "K" else S_VOFF
    c = [Op(f"s_add_u32 m0, s{S_B0}, {stage*32768 + (0 if which == 'K' else 16384)}", "S")]
    c += [kv_dma(off, i) for i in range(4)]
    c.append(Op(f"s_add_u32 s{off}, s{off}, 16384", "S"))
    return c


def c_update(A, tile_sgpr):
    lool, lback = A.newlabel("LC"), A.newlabel("LC")
    T = S_TMP + 3
    o = [f"{lool}:", f"s_sub_u32 s{T}, s{tile_sgpr}, s{S_TW}", f"s_lshl_b32 s{T}, s{T}, 1"]
    for kb in range(2):
        if kb:
            o.append(f"s_add_u32 s{T}, s{T}, 1")
        for qb in range(2):
            ld, ln = A.newlabel("LC"), A.newlabel("LC")
            b = S_WAVE if qb == 0 else S_BL1
            o += [f"s_cmp_lt_u32 s{T}, s{b}", f"s_cbranch_scc1 {ln}", f"s_cmp_eq_u32 s{T}, s{b}", f"s_cbranch_scc1 {ld}"]
            o += [f"v_mov_b32 v{c_reg(kb,qb)+r}, {NEG_INF:#x}" for r in range(4)]
            o += [f"s_branch {ln}", f"{ld}:"]
            o += [f"v_add_f32 v{c_reg(kb,qb)+r}, v{V_CB+qb}, v{V_DM+r}" for r in range(4)]
            o.append(f"{ln}:")
    o.append(f"s_branch {lback}")
    OOL.append(o)
    return [f"s_cmp_ge_u32 s{tile_sgpr}, s{S_TW}", f"s_cbranch_scc1 {lool}\n{lback}:"]


def rare_check(A, sb, pref="LB_RARE", half=False):
    lool, lback = A.newlabel("LR"), A.newlabel("LR")
    pre = []
    if half:
        pre = [f"v_mov_b32 v{s_reg(sb,kb,0)+r}, {NEG_INF:#x}" for kb in range(2) for r in range(4)]
    OOL.append([f"{lool}:"] + pre + [f"s_call_b64 {sr(S_RET,2)}, {pref}{sb}", f"s_branch {lback}"])
    return f"s_cbranch_vccnz {lool}\n{lback}:"


PH = "DDE" * 8 + "MEMEMEMX"


def b_iter(A, par, cfg, mode="full", last=None):
    pb_cur, pb_nxt = par, 1 - par
    sb_sm, sb_qk = 1 - par, par
    both, one = (0, 1), (1,)
    pv_q = both if mode in ("full", "t4", "t3") else one
    sm_q = {"full": both, "t4": both, "t3": one, "t2": one, "t1": ()}[mode]
    l_q = pv_q
    qk_q = {"full": both, "t4": one, "t3": one}.get(mode, ())
    A({"full": "s_waitcnt vmcnt(16) lgkmcnt(0)", "t4": "s_waitcnt vmcnt(16) lgkmcnt(0)", "t3": "s_waitcnt vmcnt(8) lgkmcnt(0)",
       "t2": "s_waitcnt vmcnt(8) lgkmcnt(0)", "t1": "s_waitcnt lgkmcnt(0)"}[mode])
    A("s_barrier")
    if sm_q:
        sm = softmax_oplist(sb_sm, pb_nxt, l_q, sm_q)
        for o in sm:
            if o.kind == "E":
                o.min_gap = 2
    else:
        sm = [Op(f"v_add_f32 v{V_L+qb}, v{V_L+qb}, v{V_LT+qb}", "V") for qb in l_q]
    vrd = v_reads(V_RB0 if par == 0 else V_RB1, 49152 if par == 0 else 16384)
    flip = [Op(f"v_xor_b32 v{V_RB0}, 0x10000, v{V_RB0}", "V"), Op(f"v_xor_b32 v{V_RB1}, 0x10000, v{V_RB1}", "V")]
    if qk_q:
        m = pv_mfmas(pb_cur) + qk_mfmas(sb_qk, qk_q)
        ds = k_reads(V_RB1, 0 if par == 0 else 32768) + vrd
        cu = c_update(A, S_T2)
        chain = [Op(cu[0], "S"), Op(cu[1], "S"), Op(f"s_add_u32 s{S_T2}, s{S_T2}, 1", "S")]
        if mode == "full":
            if par == 0:
                chain += dma_chain(f"s_add_u32 m0, s{S_B0}, 32768", f"s_add_u32 m0, s{S_B0}, 16384", 31)
            else:
                chain += dma_chain(f"s_xor_b32 m0, s{S_B0}, 65536", f"s_add_u32 m0, s{S_B0}, 49152", 31)
                for f in flip:
                    f.min_gap = 56
                sm += flip
                chain[-4:-4] = [Op(f"s_xor_b32 s{S_B0}, s{S_B0}, 65536", "S"), Op(f"s_sub_u32 s{S_LEFT}, s{S_LEFT}, 1", "S")]
            fixed = {31: ["s_waitcnt lgkmcnt(0)"], 63: [rare_check(A, sb_sm)]}
            out, left = schedule(m, PH + PH, ds, chain, sm, fixed)
            A.emit_list(out)
            return
        tmpl = "DDE" * 8 + "EEEEEEEX" + "D" * 16
        if mode == "t3" and last:
            tmpl = "DDE" * 8 + "MMMMMMMX" + "D" * 16
            chain += last
        out, left = schedule(m, tmpl, ds, chain, sm, {31: ["s_waitcnt lgkmcnt(0)"]}, strict=False)
        A.emit_list(out)
        A("s_nop 0")
        emit_left(A, left)
        if par == 1:
            A.emit_list([f.text for f in flip])
        A(rare_check(A, sb_sm, half=(len(sm_q) == 1)))
        return
    m = pv_mfmas(pb_cur, one)
    if mode == "t2":
        out, left = schedule(m, "EEEEEEEE" + "EEDDDDDD", vrd, [], sm, {}, strict=False)
        A.emit_list(out)
        A("s_nop 0")
        emit_left(A, left)
        A(rare_check(A, sb_sm, half=True))
    else:
        out, left = schedule(m, "E" + "M" * 15, [], last, sm, {}, strict=False)
        A.emit_list(out)
        emit_left(A, left)


def xquad(A, op, v, t):
    A(f"v_mov_b32 v{t}, v{v}")
    A("s_nop 1")
    A(f"v_permlane32_swap_b32 v{t}, v{v}")
    A("s_nop 1")
    A(f"{op} v{v}, v{v}, v{t}")
    A(f"v_mov_b32 v{t}, v{v}")
    A("s_nop 1")
    A(f"v_permlane16_swap_b32 v{t}, v{v}")
    A("s_nop 1")
    A(f"{op} v{v}, v{v}, v{t}")


def b_rare(A, sb):
    A.label(f"LB_RARE{sb}")
    A("s_nop 7")
    A("s_nop 7")
    so = 1 - sb
    for qb in range(2):
        d = V_T + qb
        a, b = s_reg(sb, 0, qb), s_reg(sb, 1, qb)
        A(f"v_max3_f32 v{d}, v{a}, v{a+1}, v{a+2}")
        A(f"v_max3_f32 v{d}, v{d}, v{a+3}, v{b}")
        A(f"v_max3_f32 v{d}, v{d}, v{b+1}, v{b+2}")
        A(f"v_max_f32 v{d}, v{d}, v{b+3}")
        xquad(A, "v_max_f32", d, V_T + 4)
        A(f"v_add_f32 v{d}, {f32bits(BIAS):#x}, v{d}")
        A(f"v_max_f32 v{d}, s{S_FLOOR}, v{d}")
        A(f"v_max_f32 v{V_T+2+qb}, 0, v{d}")
        A(f"v_exp_f32 v{V_T+2+qb}, -v{V_T+2+qb}")
        for kb in range(2):
            for r in range(4):
                A(f"v_sub_f32 v{s_reg(sb,kb,qb)+r}, v{s_reg(sb,kb,qb)+r}, v{d}")
                A(f"v_sub_f32 v{s_reg(so,kb,qb)+r}, v{s_reg(so,kb,qb)+r}, v{d}")
                A(f"v_sub_f32 v{c_reg(kb,qb)+r}, v{c_reg(kb,qb)+r}, v{d}")
        A(f"v_sub_f32 v{V_CB+qb}, v{V_CB+qb}, v{d}")
        A(f"v_mul_f32 v{V_L+qb}, v{V_L+qb}, v{V_T+2+qb}")
    lskip = A.newlabel("LRS")
    A(f"s_cmp_eq_u32 s{S_FIRST}, 1")
    A(f"s_cbranch_scc1 {lskip}")
    for db in range(16):
        for qb in range(2):
            for r in range(4):
                A(f"v_mul_f32 v{o_reg(db,qb)+r}, v{o_reg(db,qb)+r}, v{V_T+2+qb}")
    A.label(lskip)
    A(f"s_mov_b32 s{S_FIRST}, 0")
    A(f"s_mov_b32 s{S_FLOOR}, 0")
    for o in softmax_linear(sb, sb):
        A(o)
    A("s_nop 1")
    A(f"s_setpc_b64 {sr(S_RET,2)}")


WO_SLOT = [4, 0, 1, 2, 3, 4, 0, 1]
VF = 128
VCTX = 64


def wo_chain(chunk, slot):
    c = [Op(f"s_add_u32 s{S_TMP+2}, s{S_WOOFF}, {chunk*32*896}", "S"), Op(f"s_add_u32 m0, s{S_WOW}, {slot*32768}", "S")]
    for i in range(7):
        if i == 4:
            c.append(Op("s_add_u32 m0, m0, 4096", "S"))
        c.append(Op(f"buffer_load_dwordx4 v{V_WOD+i}, {sr(SRD_B,4)}, s{S_TMP+2} offen offset:{(i%4)*1024} lds", "M"))
    return c


def wo_reads(half, fset):
    out = []
    for i in range(14):
        b = 14 * half + i
        f = VF + (fset * 14 + i) * 4
        for e in range(2):
            out.append(f"ds_read_b64_tr_b16 {vr(f+2*e,2)}, v{V_WOR+(b&3)} offset:{(b>>2)*128+e*16*896}")
    return out


def wo_mfmas(half, fset, dg):
    out = []
    for i in range(14):
        b = 14 * half + i
        f = VF + (fset * 14 + i) * 4
        for qb in range(2):
            a = (b * 2 + qb) * 4
            c = "0" if dg == 0 else ar(a, 4)
            out.append(f"v_mfma_f32_16x16x32_bf16 {ar(a,4)}, {vr(f,4)}, {vr(VCTX+(dg*2+qb)*4,4)}, {c}")
    return out


def b_epilogue(A, cfg):
    A("s_nop 7")
    for qb in range(2):
        xquad(A, "v_add_f32", V_L + qb, V_T + 4)
        A(f"v_rcp_f32 v{V_T+2*qb}, v{V_L+qb}")
        A("s_nop 0")
        A(f"v_mov_b32 v{V_T+2*qb+1}, v{V_T+2*qb}")
    for dg in range(8):
        for qb in range(2):
            for a in range(2):
                o = o_reg(2 * dg + a, qb)
                A(f"v_pk_mul_f32 {vr(o,2)}, {vr(o,2)}, {vr(V_T+2*qb,2)}")
                A(f"v_pk_mul_f32 {vr(o+2,2)}, {vr(o+2,2)}, {vr(V_T+2*qb,2)}")
            for a in range(2):
                o = o_reg(2 * dg + a, qb)
                c = VCTX + (dg * 2 + qb) * 4 + 2 * a
                A(f"v_cvt_pk_bf16_f32 v{c}, v{o}, v{o+1}")
                A(f"v_cvt_pk_bf16_f32 v{c+1}, v{o+2}, v{o+3}")
    A("s_waitcnt vmcnt(28)")
    A("s_barrier")
    A.emit_list(wo_reads(0, 0))
    poll_test(A)
    A(f"s_cselect_b32 s{S_AQOK}, 1, 0")
    W = {6: ["s_waitcnt lgkmcnt(14)"], 13: ["s_waitcnt lgkmcnt(14)"], 20: ["s_waitcnt lgkmcnt(14)"]}
    A("s_waitcnt lgkmcnt(0)")
    for dg in range(8):
        out, _ = schedule(wo_mfmas(0, 0, dg), "D" * 28, wo_reads(1, 1), [], [], W)
        A.emit_list(out)
        if dg < 7:
            delta = (WO_SLOT[dg + 1] - WO_SLOT[dg]) * 32768
            for i in range(4):
                A(f"v_add_u32 v{V_WOR+i}, {delta & 0xffffffff:#x}, v{V_WOR+i}")
            issued = min(7, max(4, dg + 3))
            young = max(0, issued - (dg + 1))
            A(f"s_waitcnt vmcnt({7*young}) lgkmcnt(14)")
            A("s_barrier")
            ch = wo_chain(dg + 4, WO_SLOT[dg + 4]) if 5 <= dg + 4 <= 7 else []
            emit_chain(A, ch)
            out, _ = schedule(wo_mfmas(1, 1, dg), "D" * 28, wo_reads(0, 0), [], [], W)
            A.emit_list(out)
            A("s_waitcnt lgkmcnt(14)")
        else:
            A("s_waitcnt lgkmcnt(14)")
            m = wo_mfmas(1, 1, dg)
            A.emit_list(m[:12])
            A("s_waitcnt lgkmcnt(0)")
            A.emit_list(m[12:])
    store_partials(A, 2, cfg)


def store_partials(A, nqb, cfg):
    fl = "sc1"
    pop_issue(A)
    A("s_nop 7")
    gi = 0
    for qb in range(nqb):
        for p in range(14):
            t = 128 + (gi % 8) * 12
            gi += 1
            regs = [((2 * p) * nqb + qb) * 4 + r for r in range(4)] + [((2 * p + 1) * nqb + qb) * 4 + r for r in range(4)]
            for i, r in enumerate(regs):
                A(f"v_accvgpr_read_b32 v{t+i}, a{r}")
            for i in range(4):
                A(f"v_cvt_pk_bf16_f32 v{t+8+i}, v{t+2*i}, v{t+2*i+1}")
            off = p * 1024
            if off % 4096 == 0:
                A(f"s_add_u32 s{S_TMP}, s{S_POFF if qb == 0 else S_POFF1}, {off}")
            A(f"buffer_store_dwordx4 {vr(t+8,4)}, v{V_LANE16}, {sr(SRD_WS,4)}, s{S_TMP} offen offset:{off%4096} {fl}")


def wo_lane_setup(A):
    T = V_T
    for i in range(7):
        A(f"v_add_u32 v{T}, {64*i}, v0")
        A(f"v_mul_u32_u24 v{T+1}, 1171, v{T}")
        A(f"v_lshrrev_b32 v{T+1}, 16, v{T+1}")
        A(f"v_mul_u32_u24 v{T+2}, 56, v{T+1}")
        A(f"v_sub_u32 v{T+2}, v{T}, v{T+2}")
        A(f"v_bfe_u32 v{T+3}, v{T+1}, 1, 2")
        A(f"v_lshlrev_b32 v{T+3}, 1, v{T+3}")
        A(f"v_xor_b32 v{T+2}, v{T+2}, v{T+3}")
        A(f"v_mul_u32_u24 v{T+1}, 896, v{T+1}")
        A(f"v_lshl_add_u32 v{T+1}, v{T+2}, 4, v{T+1}")
        A(f"v_subrev_u32 v{V_WOD+i}, {(i%4)*1024}, v{T+1}")


def b_setup_kv(A):
    T = S_TMP
    A(f"s_lshl_b32 s{S_TW}, s{S_QB}, 2")
    A(f"s_add_u32 s{S_N}, s{S_TW}, 4")
    A(f"s_lshl_b32 s{S_KOFF}, s{S_HEAD}, 20")
    A(f"s_add_u32 s{S_VOFF}, s{S_KOFF}, {WS_V}")
    A(f"s_lshl_b32 s{T}, s{S_N}, 14")
    A(f"s_add_u32 s{S_KLIM}, s{S_KOFF}, s{T}")
    A(f"s_add_u32 s{S_VLIM}, s{S_VOFF}, s{T}")
    A(f"s_lshl_b32 s{S_B0}, s{S_WAVE}, 12")
    A(f"v_add_u32 v{V_DKV}, s{S_B0}, v{V_LANE16}")
    A(f"s_mov_b32 s{S_SC}, {f32bits(SCALE_B):#x}")
    A(f"s_mov_b32 s{S_SC+1}, {f32bits(SCALE_B):#x}")


def b_setup_rest(A):
    T = S_TMP
    set_srd(A, SRD_B, P_WOB, 4096 * 448 * 2)
    A(f"v_and_b32 v{V_T}, 15, v0")
    A(f"v_lshrrev_b32 v{V_T+1}, 4, v0")
    A(f"v_lshlrev_b32 v{V_T+2}, 2, v{V_T+1}")
    A(f"v_mov_b32 v{V_T+4}, {NEG_INF:#x}")
    for r in range(4):
        A(f"v_add_u32 v{V_T+3}, {r}, v{V_T+2}")
        A(f"v_cmp_gt_u32 vcc, v{V_T+3}, v{V_T}")
        A("s_nop 1")
        A(f"v_cndmask_b32 v{V_DM+r}, 0, v{V_T+4}, vcc")
    A(f"v_bfe_u32 v{V_T+3}, v0, 2, 2")
    A(f"v_add_u32 v{V_T+3}, v{V_T+3}, v{V_T+2}")
    A(f"v_bfe_u32 v{V_T+5}, v{V_T+3}, 1, 2")
    A(f"v_mul_u32_u24 v{V_T+3}, 896, v{V_T+3}")
    A(f"v_and_b32 v{V_T+6}, 3, v0")
    A(f"v_lshl_add_u32 v{V_T+3}, v{V_T+6}, 3, v{V_T+3}")
    A(f"v_add_u32 v{V_T+3}, {WO_SLOT[0]*32768}, v{V_T+3}")
    for b in range(4):
        A(f"v_xor_b32 v{V_T+6}, {b}, v{V_T+5}")
        A(f"v_lshl_add_u32 v{V_WOR+b}, v{V_T+6}, 5, v{V_T+3}")
    wo_lane_setup(A)
    A(f"s_mul_i32 s{S_WOOFF}, s{S_HEAD}, {256*896}")
    A(f"s_mul_i32 s{S_WOW}, s{S_WAVE}, {8*896}")
    A(f"s_add_u32 s{S_WOOFF}, s{S_WOOFF}, s{S_WOW}")
    A(f"s_add_u32 s{S_POFF}, s{S_HEAD}, 4")
    A(f"s_mul_i32 s{S_POFF}, s{S_POFF}, {P_SLOT}")
    A(f"s_mul_i32 s{T}, s{S_QB}, {8*14*1024}")
    A(f"s_add_u32 s{S_POFF}, s{S_POFF}, s{T}")
    A(f"s_add_u32 s{S_POFF}, s{S_POFF}, {WS_P}")
    A(f"s_sub_u32 s{S_BL1}, 7, s{S_WAVE}")
    A(f"s_mul_i32 s{T}, s{S_BL1}, {14*1024}")
    A(f"s_add_u32 s{S_POFF1}, s{S_POFF}, s{T}")
    A(f"s_mul_i32 s{T}, s{S_WAVE}, {14*1024}")
    A(f"s_add_u32 s{S_POFF}, s{S_POFF}, s{T}")
    A(f"s_lshl_b32 s{T}, s{S_BL1}, 13")
    A(f"s_add_u32 s{T}, s{T}, {XQ}")
    A(f"v_add_u32 v{V_XQW}, s{T}, v{V_LANE16}")
    A(f"s_lshl_b32 s{S_RFLAG}, s{S_QB}, 8")
    A(f"s_lshl_b32 s{T}, s{S_HEAD}, 2")
    A(f"s_add_u32 s{S_RFLAG}, s{S_RFLAG}, s{T}")
    A(f"s_add_u32 s{S_RFLAG}, s{S_RFLAG}, {F_ROW}")
    A(f"s_mov_b32 s{S_RMASK}, 1")
    A(f"s_mov_b32 s{S_HUGE}, {HUGE}")
    A(f"s_mov_b32 s{S_FLOOR}, {NEG_INF:#x}")
    A(f"s_mov_b32 s{S_FIRST}, 1")
    for r in range(16):
        A(f"v_mov_b32 v{VC+r}, 0")
    for r in (V_CB, V_CB + 1, V_L, V_L + 1, V_LT, V_LT + 1):
        A(f"v_mov_b32 v{r}, 0")
    A(f"v_mov_b32 v{V_RB0}, v{V_LANE16}")
    A(f"v_add_u32 v{V_RB1}, 0x10000, v{V_LANE16}")
    A(f"s_mov_b32 s{S_T2}, 0")
    A.emit_list(c_update(A, S_T2))


def b_main(A, cfg):
    T = S_TMP
    A("s_waitcnt vmcnt(12) lgkmcnt(0)")
    A("s_barrier")
    if not cfg.get("stamp_lp"):
        stamp(A, cfg, 3)
    for i in range(16):
        A(f"ds_read_b128 {ar(AQ+i*4,4)}, v{V_XQR if i < 8 else V_XQW} offset:{(i%8)*1024}")
    A.emit_list(k_reads(V_RB0, 0))
    zero = [Op(f"v_mov_b32 v{VO+r}, 0", "V") for r in range(128)]
    for z in zero[:24]:
        A(z.text)
    A("s_waitcnt lgkmcnt(0)")
    out, left = schedule(qk_mfmas(0), "DF" * 16, v_reads(V_RB0, 16384), [], zero[24:72], {})
    A.emit_list(out)
    A.emit_list(k_reads(V_RB0, 32768))
    A(f"s_mov_b32 s{S_T2}, 1")
    A.emit_list(c_update(A, S_T2))
    A("s_waitcnt vmcnt(0) lgkmcnt(0)")
    A("s_barrier")
    A(f"s_lshl_b32 s{T+4}, s{S_HEAD}, 6")
    A(f"s_lshl_b32 s{T+5}, s{S_QB}, 2")
    A(f"s_add_u32 s{T+4}, s{T+4}, s{T+5}")
    A(f"s_add_u32 s{T+4}, s{T+4}, {F_AQ}")
    signal(A, T + 4)
    signal(A, S_GHEAD, grp=1)
    ch = kv_tile_chain("K", 3) + kv_tile_chain("V", 3)
    ch += [Op(f"s_cmp_lt_u32 s{S_KOFF}, s{S_KLIM}", "S"), Op(f"s_cselect_b32 s{T}, s{S_KOFF}, s{S_HUGE}", "S"),
           Op(f"s_mov_b32 m0, s{S_B0}", "S"), Op(f"s_add_u32 s{S_KOFF}, s{S_KOFF}, 16384", "S")]
    ch += [kv_dma(T, i) for i in range(4)]
    out, left = schedule(qk_mfmas(1), "FM" * 16, [], ch, zero[72:], {}, strict=False)
    A.emit_list(out)
    emit_left(A, left)
    A(f"v_lshlrev_b32 v{V_SIG+1}, 7, v0")
    A(f"buffer_load_dword v{V_SIG}, v{V_SIG+1}, {sr(SRD_B,4)}, s{S_TBOFF} offen")
    A(f"s_call_b64 {sr(S_RET,2)}, LB_RARE0")
    A(f"s_mov_b32 s{S_T2}, 2")
    A(f"s_lshr_b32 s{S_ITEM}, s{S_N}, 1")
    A(f"s_sub_u32 s{S_ITEM}, s{S_ITEM}, 2")
    A(f"s_cmp_ge_u32 s{S_QB}, 8")
    A(f"s_cselect_b32 s{S_LEFT}, 10, s{S_ITEM}")
    A(f"s_cselect_b32 s{S_EV}, 0, 2")
    stamp(A, cfg, 4)
    A(f"s_cmp_eq_u32 s{S_LEFT}, 0")
    A("s_cbranch_scc1 LB_DONE")
    A.label("LB_LOOP")
    b_iter(A, 0, cfg)
    b_iter(A, 1, cfg)
    A(f"s_cmp_lg_u32 s{S_LEFT}, 0")
    A("s_cbranch_scc1 LB_LOOP")
    A(f"s_cmp_eq_u32 s{S_EV}, 2")
    A("s_cbranch_scc1 LB_DONE")
    A(f"s_cmp_eq_u32 s{S_EV}, 1")
    A("s_cbranch_scc1 LB_EV1")
    A(f"s_mov_b32 s{S_EV}, 1")
    A(f"s_mov_b32 s{S_LEFT}, 2")
    poll_issue(A, S_HEAD, F_KV + 4096, 8)
    A("s_branch LB_LOOP")
    A.label("LB_EV1")
    A(f"s_mov_b32 s{S_EV}, 2")
    A(f"s_sub_u32 s{S_LEFT}, s{S_ITEM}, 12")
    poll_test(A)
    A("s_cbranch_scc1 LB_LOOP")
    poll_wait(A, True)
    A("s_branch LB_LOOP")
    A.label("LB_DONE")
    b_iter(A, 0, cfg, "t4")
    A(f"s_and_b32 s{T+1}, s2, 3")
    pi = Asm()
    poll_issue(pi, T + 1, F_AQ, 64)
    pil = [l.strip() for l in pi.lines]
    for l in pil[:-1]:
        A(l)
    b_iter(A, 1, cfg, "t3", last=[Op(pil[-1], "M")] + wo_chain(0, WO_SLOT[0]))
    b_iter(A, 0, cfg, "t2")
    last = []
    for c in range(1, 5):
        last += wo_chain(c, WO_SLOT[c])
    b_iter(A, 1, cfg, "t1", last=last)
    stamp(A, cfg, 5)
    b_epilogue(A, cfg)


AS = [64, 96]
AC = 128
AO = 160
AP = [192, 208]
AE = 224
QA_, KA_, VA_ = 0, 16, 48
XB = 114688
V_XW = 2
V_OR = 14


def a_qk(buf, slot):
    out = []
    for qb in range(2):
        d = vr(AS[buf] + qb * 16, 16)
        out.append(f"v_mfma_f32_32x32x16_bf16 {d}, {ar(KA_+slot*8,4)}, {ar(QA_+qb*8,4)}, {vr(AC+qb*16,16)}")
    for qb in range(2):
        d = vr(AS[buf] + qb * 16, 16)
        out.append(f"v_mfma_f32_32x32x16_bf16 {d}, {ar(KA_+slot*8+4,4)}, {ar(QA_+qb*8+4,4)}, {d}")
    return out


def a_pv(pbuf, slot):
    out = []
    for g in range(2):
        for qb in range(2):
            d = vr(AO + qb * 16, 16)
            out.append(f"v_mfma_f32_32x32x16_bf16 {d}, {ar(VA_+slot*8+g*4,4)}, {vr(AP[pbuf]+qb*8+g*4,4)}, {d}")
    return out


A_DELAY = 3


def a_softmax(buf):
    s, p = AS[buf], AP[buf]
    out = []
    pend = []
    for k in range(16):
        pend.append((2 * k + 1 + A_DELAY, f"v_cvt_pk_bf16_f32 v{p+k}, v{AE+((2*k)%16)}, v{AE+((2*k+1)%16)}"))
        if k == 2:
            pend.append((2 * k + 2 + A_DELAY, f"v_or_b32 v{V_OR}, v{p}, v{p+1}"))
        elif k > 2 and k % 2 == 0:
            pend.append((2 * k + 2 + A_DELAY, f"v_or3_b32 v{V_OR}, v{V_OR}, v{p+k-2}, v{p+k-1}"))
    for i in range(32):
        out.append(f"v_exp_f32 v{AE+(i%16)}, v{s+i}")
        if pend and pend[0][0] <= i:
            out.append(pend.pop(0)[1])
    out.extend(t for _, t in pend)
    out.append(f"v_or3_b32 v{V_OR}, v{V_OR}, v{p+14}, v{p+15}")
    out.append(f"v_and_b32 v{V_OR}, s{S_MASK}, v{V_OR}")
    out.append(f"v_cmp_ne_u32 vcc, 0, v{V_OR}")
    return out


def a_loads(kslot, vslot):
    k = [f"buffer_load_dwordx4 {ar(KA_+kslot*8+4*s,4)}, v{V_LANE16}, {sr(SRD_WS,4)}, s{S_KOFF} offen offset:{s*1024} sc1" for s in range(2)]
    k += [f"s_add_u32 s{S_KOFF}, s{S_KOFF}, 2048", f"s_min_u32 s{S_KOFF}, s{S_KOFF}, s{S_KLIM}"]
    v = [f"buffer_load_dwordx4 {ar(VA_+vslot*8+4*s,4)}, v{V_LANE16}, {sr(SRD_WS,4)}, s{S_VOFF} offen offset:{s*1024} sc1" for s in range(2)]
    v += [f"s_add_u32 s{S_VOFF}, s{S_VOFF}, 2048", f"s_min_u32 s{S_VOFF}, s{S_VOFF}, s{S_VLIM}"]
    return k, v


def a_iter(A, u, cfg):
    par = u % 2
    A("s_waitcnt vmcnt(12)")
    sm = a_softmax(par)
    mq, mp = a_qk(1 - par, (u + 1) % 4), a_pv(1 - par, (u - 1) % 4)
    lk, lv = a_loads((u + 1) % 4, (u - 1) % 4)
    n = len(sm)
    ms = mq + mp
    pos = spread(8, -1, n - 8)
    riders = {3: [lk[0]], 4: [lk[1]], 5: [lk[2]], 6: [lk[3]], 7: [lv[0]]}
    sides = []
    for i, (p, m) in enumerate(zip(pos, ms)):
        sides.append((p, [m] + riders.get(i, [])))
    sides.append((n - 4, [lv[1]]))
    sides.append((n - 2, [lv[2]]))
    sides.append((n - 1, [lv[3]]))
    body = interleave(sm, sides)
    if cfg.get("a_noload"):
        body = [b for b in body if not b.startswith("buffer_load")]
    if cfg.get("a_nosc1"):
        body = [b.replace(" sc1", "") for b in body]
    if cfg.get("a_nomfma"):
        body = [b for b in body if not b.startswith("v_mfma")]
    A.emit_list(body)
    A(rare_check(A, par, "LA_RARE"))


def a_rare(A, sb):
    A.label(f"LA_RARE{sb}")
    A("s_nop 7")
    A("s_nop 7")
    so = 1 - sb
    for qb in range(2):
        d, f, t = V_T + qb, V_T + 2 + qb, V_T + 4
        s = AS[sb] + qb * 16
        A(f"v_max3_f32 v{d}, v{s}, v{s+1}, v{s+2}")
        for i in range(3, 15, 2):
            A(f"v_max3_f32 v{d}, v{d}, v{s+i}, v{s+i+1}")
        A(f"v_max_f32 v{d}, v{d}, v{s+15}")
        A(f"v_mov_b32 v{t}, v{d}")
        A("s_nop 1")
        A(f"v_permlane32_swap_b32 v{t}, v{d}")
        A("s_nop 1")
        A(f"v_max_f32 v{d}, v{d}, v{t}")
        A(f"v_add_f32 v{d}, {f32bits(BIAS):#x}, v{d}")
        A(f"v_max_f32 v{d}, s{S_FLOOR}, v{d}")
        A(f"v_max_f32 v{f}, 0, v{d}")
        A(f"v_exp_f32 v{f}, -v{f}")
        for r in range(16):
            A(f"v_sub_f32 v{s+r}, v{s+r}, v{d}")
            A(f"v_sub_f32 v{AS[so]+qb*16+r}, v{AS[so]+qb*16+r}, v{d}")
            A(f"v_sub_f32 v{AC+qb*16+r}, v{AC+qb*16+r}, v{d}")
            A(f"v_mul_f32 v{AO+qb*16+r}, v{AO+qb*16+r}, v{f}")
    A(f"s_mov_b32 s{S_FLOOR}, 0")
    lskip = A.newlabel("LAS")
    A(f"s_cmp_eq_u32 s{S_FIRST}, 1")
    A(f"s_mov_b32 s{S_FIRST}, 0")
    A(f"s_cbranch_scc1 {lskip}")
    for o in a_softmax(sb):
        A(o)
    A.label(lskip)
    A("s_nop 1")
    A(f"s_setpc_b64 {sr(S_RET,2)}")


def a_counts(cfg):
    nf, nh = cfg.get("nf", 12), cfg.get("nh", 2)
    nq = 16 - nf - nh
    return nf, nh, nq, nf + 2 * nh + 4 * nq


def a_item(A, cfg):
    T = S_TMP
    stamp(A, cfg, 0)
    A(f"s_and_b32 s{T+1}, s2, 3")
    lq = A.newlabel("LAQ")
    A(f"s_cmp_eq_u32 s{S_AQOK}, 1")
    A(f"s_cbranch_scc1 {lq}")
    poll_issue(A, T + 1, F_AQ, 64)
    poll_wait(A)
    A(f"s_mov_b32 s{S_AQOK}, 1")
    A.label(lq)
    NF, NH, NQ, NA = a_counts(cfg)
    SP = S_N
    A(f"s_cmp_ge_u32 s{S_ITEM}, {NF}")
    A(f"s_cselect_b32 s{SP}, 1, 0")
    A(f"s_cselect_b32 s{T+2}, {NF}, 0")
    A(f"s_cselect_b32 s{T+3}, {NF}, 0")
    A(f"s_cmp_ge_u32 s{S_ITEM}, {NF + 2*NH}")
    A(f"s_cselect_b32 s{SP}, 2, s{SP}")
    A(f"s_cselect_b32 s{T+2}, {NF + 2*NH}, s{T+2}")
    A(f"s_cselect_b32 s{T+3}, {NF + NH}, s{T+3}")
    A(f"s_sub_u32 s{T+2}, s{S_ITEM}, s{T+2}")
    A(f"s_lshl_b32 s{T+5}, 1, s{SP}")
    A(f"s_sub_u32 s{T+5}, s{T+5}, 1")
    A(f"s_and_b32 s{T+6}, s{T+2}, s{T+5}")
    A(f"s_lshr_b32 s{T+2}, s{T+2}, s{SP}")
    A(f"s_add_u32 s{T+2}, s{T+2}, s{T+3}")
    A(f"s_sub_u32 s{T+4}, 2, s{SP}")
    A(f"s_lshl_b32 s{T+3}, s{T+6}, s{T+4}")
    A(f"s_lshr_b32 s{T+4}, s{S_WAVE}, s{SP}")
    A(f"s_add_u32 s{T+3}, s{T+3}, s{T+4}")
    A(f"s_and_b32 s{T+4}, s{S_WAVE}, s{T+5}")
    A(f"s_sub_u32 s{T+5}, 17, s{SP}")
    A(f"s_lshl_b32 s{T+4}, s{T+4}, s{T+5}")
    A(f"s_lshr_b32 s{S_LEFT}, 16, s{SP}")
    A(f"s_lshr_b32 s{T+5}, {64*2048}, s{SP}")
    A(f"s_sub_u32 s{T+5}, s{T+5}, 2048")
    A(f"s_cmp_ge_u32 s{SP}, 1")
    A(f"s_cselect_b32 s{S_KAP}, 1.0, 0")
    A(f"s_cselect_b32 s{S_EV}, 1024, 0")
    A(f"s_cselect_b32 s{S_RMASK}, 5, 15")
    A(f"s_cmp_ge_u32 s{SP}, 2")
    A(f"s_cselect_b32 s{S_T2}, 1.0, 0")
    A(f"s_cselect_b32 s{S_TW}, 2048, 0")
    A(f"s_cselect_b32 s{S_RMASK}, 1, s{S_RMASK}")
    A(f"s_bfe_u32 s{T}, s2, 0x10002")
    A(f"s_lshl_b32 s{T}, s{T}, 4")
    A(f"s_add_u32 s{T+2}, s{T+2}, s{T}")
    A(f"s_lshl_b32 s{T}, s{T+1}, 2")
    A(f"s_add_u32 s{T+3}, s{T+3}, s{T}")
    A(f"s_mul_i32 s{S_WOOFF}, s{T+3}, {28*896}")
    A(f"s_lshl_b32 s{T+3}, s{T+3}, 17")
    A(f"s_add_u32 s{S_KOFF}, s{T+3}, s{T+4}")
    A(f"s_add_u32 s{S_VOFF}, s{S_KOFF}, {WS_VA}")
    A(f"s_add_u32 s{S_KOFF}, s{S_KOFF}, {WS_KA}")
    A(f"s_add_u32 s{S_KLIM}, s{S_KOFF}, s{T+5}")
    A(f"s_add_u32 s{S_VLIM}, s{S_VOFF}, s{T+5}")
    A(f"s_lshl_b32 s{T+4}, s{T+2}, 12")
    A(f"s_add_u32 s{T+4}, s{T+4}, s{T+3}")
    A(f"s_add_u32 s{T+4}, s{T+4}, {WS_QA}")
    for i in range(4):
        A(f"buffer_load_dwordx4 {ar(QA_+4*i,4)}, v{V_LANE16}, {sr(SRD_WS,4)}, s{T+4} offen offset:{i*1024} sc1")
    lk, _ = a_loads(0, 0)
    A.emit_list(lk)
    for t in (-4, -3, -2):
        lk, lv = a_loads((t + 5) % 4, (t + 3) % 4)
        A.emit_list(lk)
        if t + 3 >= 0:
            A.emit_list(lv)
    set_srd(A, SRD_B, P_WOA, 448 * 448 * 2)
    A(f"s_lshr_b32 s{S_RFLAG}, s{T+2}, 1")
    A(f"s_lshl_b32 s{S_RFLAG}, s{S_RFLAG}, 8")
    A(f"s_and_b32 s{T+3}, s{T+2}, 1")
    A(f"s_lshl_b32 s{T+3}, s{T+3}, 2")
    A(f"s_add_u32 s{T+3}, s{T+3}, s{T+1}")
    A(f"s_lshl_b32 s{T}, s{T+6}, 3")
    A(f"s_add_u32 s{T+3}, s{T+3}, s{T}")
    A(f"s_lshl_b32 s{T+3}, s{T+3}, 2")
    A(f"s_add_u32 s{S_RFLAG}, s{S_RFLAG}, s{T+3}")
    A(f"s_add_u32 s{S_RFLAG}, s{S_RFLAG}, {F_ROW + 64}")
    A(f"s_lshl_b32 s{T}, s{T+6}, 2")
    A(f"s_add_u32 s{T}, s{T}, 16")
    A(f"s_cmp_eq_u32 s{T+6}, 0")
    A(f"s_cselect_b32 s{T}, 0, s{T}")
    A(f"s_add_u32 s{T}, s{T}, s{T+1}")
    A(f"s_mul_i32 s{S_POFF}, s{T}, {P_SLOT}")
    A(f"s_lshl_b32 s{T+3}, s{T+2}, 2")
    A(f"s_add_u32 s{T+3}, s{T+3}, s{S_WAVE}")
    A(f"s_mul_i32 s{T+3}, s{T+3}, {14*1024}")
    A(f"s_add_u32 s{S_POFF}, s{S_POFF}, s{T+3}")
    A(f"s_add_u32 s{S_POFF}, s{S_POFF}, {WS_P}")
    A(f"s_mul_i32 s{S_WOW}, s{S_WAVE}, {32*896}")
    A(f"s_mov_b32 s{S_MASK}, 0x40004000")
    A(f"s_mov_b32 s{S_FLOOR}, {NEG_INF:#x}")
    A(f"s_mov_b32 s{S_FIRST}, 1")
    for r in range(32):
        A(f"v_mov_b32 v{AC+r}, 0")
        A(f"v_mov_b32 v{AO+r}, 0")
        A(f"v_mov_b32 v{AS[1]+r}, 0")
    for r in range(16):
        A(f"v_mov_b32 v{AP[1]+r}, 0")
    for r in range(8):
        A(f"v_accvgpr_write_b32 a{VA_+3*8+r}, 0")
    A(f"v_bfe_u32 v{V_T}, v0, 3, 1")
    A(f"v_lshlrev_b32 v{V_T}, 10, v{V_T}")
    A(f"v_lshrrev_b32 v{V_T+1}, 5, v0")
    A(f"v_lshl_add_u32 v{V_T}, v{V_T+1}, 8, v{V_T}")
    A(f"v_bfe_u32 v{V_T+1}, v0, 4, 1")
    A(f"v_lshl_add_u32 v{V_T}, v{V_T+1}, 7, v{V_T}")
    A(f"v_and_b32 v{V_T+1}, 7, v0")
    A(f"v_lshl_add_u32 v{V_T}, v{V_T+1}, 4, v{V_T}")
    A(f"s_lshl_b32 s{T+5}, s{S_WAVE}, 12")
    A(f"s_add_u32 s{T+5}, s{T+5}, {XB}")
    A(f"v_add_u32 v{V_XW}, s{T+5}, v{V_T}")
    A(f"v_bfe_u32 v{V_T}, v0, 2, 3")
    A(f"v_bfe_u32 v{V_T+2}, v{V_T}, 1, 2")
    A(f"v_lshrrev_b32 v{V_T+1}, 5, v0")
    A(f"v_lshl_add_u32 v{V_T}, v{V_T+1}, 4, v{V_T}")
    A(f"v_mul_u32_u24 v{V_T}, 896, v{V_T}")
    A(f"v_and_b32 v{V_T+1}, 3, v0")
    A(f"v_lshl_add_u32 v{V_T}, v{V_T+1}, 3, v{V_T}")
    for b in range(4):
        A(f"v_xor_b32 v{V_T+1}, {b}, v{V_T+2}")
        A(f"v_lshl_add_u32 v{V_WOR+b}, v{V_T+1}, 5, v{V_T}")
    A("s_waitcnt vmcnt(10)")
    stamp(A, cfg, 1)
    A.emit_list(a_qk(0, 0))
    lk, lv = a_loads(0, 2)
    A.emit_list(lk)
    A.emit_list(lv)
    A(f"s_mov_b32 m0, s{S_WOW}")
    A(f"s_add_u32 s{S_WOW}, s{S_WOW}, {8*896}")
    for i in range(7):
        if i == 4:
            A("s_add_u32 m0, m0, 4096")
            A("s_nop 0")
        A(f"buffer_load_dwordx4 v{V_WOD+i}, {sr(SRD_B,4)}, s{S_WOOFF} offen offset:{(i%4)*1024} lds")
    A(f"s_add_u32 s{S_WOOFF}, s{S_WOOFF}, {8*896}")
    A(f"s_call_b64 {sr(S_RET,2)}, LA_RARE0")
    stamp(A, cfg, 2)
    A.label("LA_LOOP")
    for u in range(4):
        a_iter(A, u, cfg)
    A(f"s_sub_u32 s{S_LEFT}, s{S_LEFT}, 1")
    A(f"s_cmp_gt_u32 s{S_LEFT}, 3")
    A("s_cbranch_scc1 LA_LOOP")
    A(f"s_cmp_eq_u32 s{S_LEFT}, 0")
    A("s_cbranch_scc1 LA_FIN")
    A(f"s_mov_b32 m0, s{S_WOW}")
    A(f"s_add_u32 s{S_WOW}, s{S_WOW}, {8*896}")
    for i in range(7):
        if i == 4:
            A("s_add_u32 m0, m0, 4096")
            A("s_nop 0")
        A(f"buffer_load_dwordx4 v{V_WOD+i}, {sr(SRD_B,4)}, s{S_WOOFF} offen offset:{(i%4)*1024} lds")
    A(f"s_add_u32 s{S_WOOFF}, s{S_WOOFF}, {8*896}")
    A("s_branch LA_LOOP")
    A.label("LA_FIN")
    A("s_waitcnt vmcnt(12)")
    A.emit_list(a_pv(1, 3))
    stamp(A, cfg, 3)
    A(f"v_cmp_gt_u32 vcc, 32, v0")
    A("s_nop 7")
    A("s_nop 7")
    X = 24
    for qb in range(2):
        o = AO + qb * 16
        A(f"v_mov_b32 v{V_T}, v{o+12}")
        A(f"v_mov_b32 v{X+2*qb+1}, v{o+12}")
        A(f"v_mov_b32 v{X+2*qb}, v{AC+qb*16}")
        A("s_nop 0")
        A(f"v_permlane32_swap_b32 v{V_T}, v{X+2*qb+1}")
    A(f"s_lshl_b32 s{T+5}, s{S_WAVE}, 10")
    A(f"s_add_u32 s{T+5}, s{T+5}, {XB+16384}")
    A(f"v_add_u32 v{V_T}, s{T+5}, v{V_LANE16}")
    A(f"ds_write_b128 v{V_T}, {vr(X,4)}")
    A(f"v_xor_b32 v{V_T+1}, s{S_EV}, v{V_T}")
    A(f"v_xor_b32 v{V_T+2}, s{S_TW}, v{V_T}")
    A(f"v_xor_b32 v{V_T+3}, s{S_TW}, v{V_T+1}")
    A("s_waitcnt lgkmcnt(0)")
    A("s_barrier")
    PR = [100, 104, 108]
    for i in range(3):
        A(f"ds_read_b128 {vr(PR[i],4)}, v{V_T+1+i}")
    A("s_waitcnt lgkmcnt(0)")
    for qb in range(2):
        o = AO + qb * 16
        c1, l1 = X + 2 * qb, X + 2 * qb + 1
        a, b, inv, invh = V_T, V_T + 1, V_T + 2, V_T + 3
        A(f"v_min_f32 v{a}, v{c1}, v{PR[0]+2*qb}")
        A(f"v_min3_f32 v{a}, v{a}, v{PR[1]+2*qb}, v{PR[2]+2*qb}")
        for i in range(3):
            A(f"v_sub_f32 v{PR[i]+2*qb}, v{a}, v{PR[i]+2*qb}")
            A(f"v_exp_f32 v{PR[i]+2*qb}, v{PR[i]+2*qb}")
            A(f"v_mul_f32 v{PR[i]+2*qb+1}, s{S_KAP if i == 0 else S_T2}, v{PR[i]+2*qb+1}")
        A(f"v_sub_f32 v{a}, v{a}, v{c1}")
        A(f"v_exp_f32 v{a}, v{a}")
        A("s_nop 0")
        A(f"v_mul_f32 v{l1}, v{l1}, v{a}")
        for i in range(3):
            A(f"v_fma_f32 v{l1}, v{PR[i]+2*qb}, v{PR[i]+2*qb+1}, v{l1}")
        A(f"v_rcp_f32 v{inv}, v{l1}")
        A("s_nop 0")
        A(f"v_mul_f32 v{inv}, v{inv}, v{a}")
        A(f"v_cndmask_b32 v{invh}, 0, v{inv}, vcc")
        for r in range(16):
            A(f"v_mul_f32 v{o+r}, v{o+r}, v{inv if r < 12 else invh}")
        for g in range(2):
            c = AS[0] + (qb * 2 + g) * 4
            for i in range(4):
                A(f"v_cvt_pk_bf16_f32 v{c+i}, v{o+8*g+2*i}, v{o+8*g+2*i+1}")
            A(f"ds_write_b128 v{V_XW}, {vr(c,4)} offset:{qb*2048+g*512}")
    A("s_waitcnt vmcnt(0) lgkmcnt(0)")
    A("s_barrier")
    A(f"s_lshl_b32 s{T+5}, s{S_WAVE}, 10")
    A(f"s_add_u32 s{T+5}, s{T+5}, {XB}")
    A(f"v_add_u32 v{V_T}, s{T+5}, v{V_LANE16}")
    VB = 96
    for w in range(4):
        A(f"ds_read_b128 {vr(VB+4*w,4)}, v{V_T} offset:{w*4096}")

    def reads(w, half, fset):
        out = []
        for i in range(14):
            b = 14 * half + i
            f = VF + (fset * 14 + i) * 4
            for e in range(2):
                out.append(f"ds_read_b64_tr_b16 {vr(f+2*e,2)}, v{V_WOR+(b&3)} offset:{(b>>2)*128+e*8*896+(w&1)*32*896}")
        return out

    def mf(w, half, fset):
        out = []
        for i in range(14):
            b = 14 * half + i
            f = VF + (fset * 14 + i) * 4
            c = "0" if w == 0 else ar(b * 4, 4)
            out.append(f"v_mfma_f32_16x16x32_bf16 {ar(b*4,4)}, {vr(f,4)}, {vr(VB+4*w,4)}, {c}")
        return out

    seq = [(w, h) for w in range(4) for h in range(2)]
    A.emit_list(reads(0, 0, 0))
    for k, (w, h) in enumerate(seq):
        if k + 1 < len(seq):
            w2, h2 = seq[k + 1]
            if (w2, h2) == (2, 0):
                for b in range(4):
                    A(f"v_add_u32 v{V_WOR+b}, {2*32*896}, v{V_WOR+b}")
            rd = reads(w2, h2, (k + 1) % 2)
            A.emit_list(rd[:14])
            A("s_waitcnt lgkmcnt(14)")
            A.emit_list(interleave(mf(w, h, k % 2), [(i, [r]) for i, r in enumerate(rd[14:])]))
        else:
            A("s_waitcnt lgkmcnt(0)")
            A.emit_list(mf(w, h, k % 2))
    store_partials(A, 1, cfg)


def r_item(A, cfg):
    T = S_TMP
    NF, NH, NQ, NA = a_counts(cfg)
    stamp(A, cfg, 0)
    A(f"s_sub_u32 s{T}, s{S_ITEM}, {NA}")
    A(f"s_lshl_b32 s{T}, s{T}, 3")
    A(f"s_and_b32 s{T+1}, s2, 7")
    A(f"s_add_u32 s{T}, s{T}, s{T+1}")
    A(f"s_mul_i32 s{T+1}, s{T}, 2341")
    A(f"s_lshr_b32 s{T+1}, s{T+1}, 16")
    A(f"s_mul_i32 s{T+2}, s{T+1}, 28")
    A(f"s_sub_u32 s{T+2}, s{T}, s{T+2}")
    A(f"s_lshr_b32 s{T+3}, s{T+1}, 1")
    A(f"s_and_b32 s{T+1}, s{T+1}, 1")
    A(f"s_lshl_b32 s{T+1}, s{T+1}, 3")
    A(f"s_add_u32 s{T+1}, s{T+1}, s{T+3}")
    poll_issue(A, T + 1, F_ROW, 48)
    A(f"s_mul_i32 s{T+3}, s{T+2}, 37")
    A(f"s_lshr_b32 s{T+3}, s{T+3}, 8")
    A(f"s_mul_i32 s{T+4}, s{T+3}, 7")
    A(f"s_sub_u32 s{T+2}, s{T+2}, s{T+4}")
    A(f"s_lshl_b32 s{T+2}, s{T+2}, 1")
    A(f"s_and_b32 s{T+4}, s{S_WAVE}, 1")
    A(f"s_add_u32 s{T+2}, s{T+2}, s{T+4}")
    A(f"s_lshl_b32 s{T+1}, s{T+1}, 3")
    A(f"s_lshl_b32 s{T+3}, s{T+3}, 1")
    A(f"s_add_u32 s{T+1}, s{T+1}, s{T+3}")
    A(f"s_lshr_b32 s{T+3}, s{S_WAVE}, 1")
    A(f"s_add_u32 s{T+1}, s{T+1}, s{T+3}")
    A(f"s_mul_i32 s{S_KOFF}, s{T+1}, {14*1024}")
    A(f"s_lshl_b32 s{T+3}, s{T+2}, 10")
    A(f"s_add_u32 s{S_KOFF}, s{S_KOFF}, s{T+3}")
    A(f"s_add_u32 s{S_KOFF}, s{S_KOFF}, {WS_P}")
    A(f"s_lshl_b32 s{S_VOFF}, s{T+1}, 6")
    A(f"s_add_u32 s{S_VOFF}, s{S_VOFF}, {WS_G}")
    A(f"s_mul_i32 s{S_KLIM}, s{T+1}, {16*896}")
    A(f"s_lshl_b32 s{T+3}, s{T+2}, 6")
    A(f"s_add_u32 s{S_KLIM}, s{S_KLIM}, s{T+3}")
    A(f"s_bfe_u32 s{T+3}, s{T+1}, 0x40002")
    set_srd(A, SRD_B, P_OUT, 2048 * 448 * 2)
    A(f"v_and_b32 v{V_T}, 15, v0")
    A(f"v_lshrrev_b32 v{V_T+1}, 4, v0")
    A(f"v_lshlrev_b32 v{V_T+2}, 2, v{V_T}")
    A(f"v_mul_u32_u24 v{V_T+3}, 896, v{V_T}")
    A(f"v_lshl_add_u32 v{V_T+3}, v{V_T+1}, 3, v{V_T+3}")
    A(f"s_mov_b32 s{S_SC}, 0x00003f80")
    A(f"s_mov_b32 s{S_SC+1}, 0x3f800000")
    PB = 96
    NS = 32 if NQ else (24 if NH else 20)
    DONE, NEW, MSK = S_N, S_B0 - 1, S_RET
    A(f"s_bfe_u32 s{T+4}, s{T+1}, 0x10002")
    A(f"s_lshl_b32 s{T+4}, s{T+4}, 2")
    A(f"s_mov_b64 {sr(DONE,2)}, 0")
    A(f"s_mov_b32 s{T+5}, 0x0f0f0f00")
    A(f"s_cmp_ge_u32 s{T+3}, {NF}")
    A(f"s_cselect_b32 s{T+5}, 0x0f0f0000, s{T+5}")
    A(f"s_cmp_ge_u32 s{T+3}, {NF + NH}")
    A(f"s_cselect_b32 s{DONE+1}, 0, s{T+5}")
    A(f"s_mov_b32 s{S_SPIN}, {SPIN_MAX}")
    lloop, lfin = A.newlabel("LRL"), A.newlabel("LRF")
    A.label(lloop)
    A("s_waitcnt vmcnt(0)")
    A(f"v_cmp_eq_u32 vcc, 1, v{V_POLL}")
    A("s_nop 3")
    A(f"s_and_b32 s{MSK}, vcc_lo, 0xffff")
    A(f"s_lshr_b64 {sr(NEW,2)}, vcc, 16")
    A(f"s_lshr_b32 s{NEW}, s{NEW}, s{T+4}")
    A(f"s_and_b32 s{MSK+1}, s{NEW}, 0x0f0f0f0f")
    lskipld, ldo = A.newlabel("LRK"), A.newlabel("LRD")
    A(f"s_or_b64 {sr(NEW,2)}, {sr(DONE,2)}, {sr(MSK,2)}")
    A(f"s_cmp_eq_u32 s{NEW}, 0xffff")
    A(f"s_cselect_b32 s{T+5}, s{NEW+1}, 0")
    A(f"s_cmp_eq_u32 s{T+5}, 0x0f0f0f0f")
    A(f"s_cbranch_scc1 {ldo}")
    A(f"s_and_b32 s{T+5}, s{S_SPIN}, {cfg.get('r_every', 65535)}")
    A(f"s_cbranch_scc1 {lskipld}")
    A.label(ldo)
    A(f"s_andn2_b64 {sr(NEW,2)}, {sr(MSK,2)}, {sr(DONE,2)}")
    A(f"s_or_b64 {sr(DONE,2)}, {sr(DONE,2)}, {sr(MSK,2)}")
    for sl in range(NS):
        if 4 <= sl < 20:
            reg, bit = NEW, sl - 4
        else:
            hp = 0 if sl < 4 else (sl - 16) // 4
            reg, bit = NEW + 1, hp * 8 + (sl % 4)
        ln = A.newlabel("LRS")
        A(f"s_bitcmp1_b32 s{reg}, {bit}")
        A(f"s_cbranch_scc0 {ln}")
        A(f"s_add_u32 s{T+5}, s{S_KOFF}, {sl*P_SLOT}")
        A(f"buffer_load_dwordx4 {vr(PB+sl*4,4)}, v{V_LANE16}, {sr(SRD_WS,4)}, s{T+5} offen sc1")
        A.label(ln)
    A(f"s_cmp_eq_u32 s{DONE}, 0xffff")
    A(f"s_cselect_b32 s{T+5}, s{DONE+1}, 0")
    A(f"s_cmp_eq_u32 s{T+5}, 0x0f0f0f0f")
    A(f"s_cbranch_scc1 {lfin}")
    A.label(lskipld)
    A(f"s_sub_u32 s{S_SPIN}, s{S_SPIN}, 1")
    A(f"s_cmp_eq_u32 s{S_SPIN}, 0")
    A(f"s_cbranch_scc1 {lfin}")
    A(f"s_sleep {cfg.get('r_sleep', 4)}")
    A(f"buffer_load_dword v{V_POLL}, v{V_POLL+1}, {sr(SRD_WS,4)}, s{S_PADDR} offen sc1")
    A(f"s_branch {lloop}")
    A.label(lfin)
    stamp(A, cfg, 1)
    A(f"buffer_load_dword v{V_T+4}, v{V_T+2}, {sr(SRD_WS,4)}, s{S_VOFF} offen sc1")
    A("s_waitcnt vmcnt(0)")
    aa, ab = 64, 72
    lsum = A.newlabel("LRU")
    for sl in range(NS):
        first = sl in (0, 4)
        if sl in (20, 24):
            A(f"s_cmp_lt_u32 s{T+3}, {NF if sl == 20 else NF + NH}")
            A(f"s_cbranch_scc1 {lsum}")
        acc_ = ab if 4 <= sl < 20 else aa
        for i in range(4):
            r = PB + sl * 4 + i
            A(f"v_dot2_f32_bf16 v{acc_+2*i}, v{r}, s{S_SC}, {'0' if first else 'v%d' % (acc_+2*i)}")
            A(f"v_dot2_f32_bf16 v{acc_+2*i+1}, v{r}, s{S_SC+1}, {'0' if first else 'v%d' % (acc_+2*i+1)}")
    A.label(lsum)
    g, g1, t = V_T + 4, V_T + 5, V_T + 6
    A(f"v_sub_f32 v{g1}, 1.0, v{g}")
    A(f"v_cvt_pk_bf16_f32 v{g1}, v{g1}, v{g1}")
    A(f"v_lshlrev_b32 v{g1}, 16, v{g1}")
    A("s_nop 1")
    o = 48
    for i in range(4):
        for acc_, gg in ((aa, g), (ab, g1)):
            a = acc_ + 2 * i
            A(f"v_cvt_pk_bf16_f32 v{t}, v{a}, v{a+1}")
            A(f"v_lshlrev_b32 v{a}, 16, v{t}")
            A(f"v_and_b32 v{a+1}, 0xffff0000, v{t}")
            A(f"v_mul_f32 v{a}, v{gg}, v{a}")
            A(f"v_mul_f32 v{a+1}, v{gg}, v{a+1}")
            A(f"v_cvt_pk_bf16_f32 v{t}, v{a}, v{a+1}")
            A(f"v_lshlrev_b32 v{a}, 16, v{t}")
            A(f"v_and_b32 v{a+1}, 0xffff0000, v{t}")
        A(f"v_add_f32 v{aa+2*i}, v{aa+2*i}, v{ab+2*i}")
        A(f"v_add_f32 v{aa+2*i+1}, v{aa+2*i+1}, v{ab+2*i+1}")
        A(f"v_cvt_pk_bf16_f32 v{o+i}, v{aa+2*i}, v{aa+2*i+1}")
    A(f"buffer_store_dwordx2 {vr(o,2)}, v{V_T+3}, {sr(SRD_B,4)}, s{S_KLIM} offen")
    A(f"buffer_store_dwordx2 {vr(o+2,2)}, v{V_T+3}, {sr(SRD_B,4)}, s{S_KLIM} offen offset:32")


def launch_line(cfg=None):
    return f"; @launch kernel=mega_kernel grid=(256,1,1) block=(256,1,1) lds={LDS_TOTAL}"


def gen_mega(A, name="mega_kernel", cfg=None):
    cfg = cfg or {}
    global KVFL, A_DELAY
    A_DELAY = cfg.get("a_delay", 3)
    KVFL = cfg.get("kvfl", "sc1")
    T = S_TMP
    G = V_G
    A.raw(kernel_header(name))
    A(f"s_load_dwordx16 {sr(4,16)}, s[0:1], 0")
    A(f"s_load_dwordx8 {sr(20,8)}, s[0:1], 64")
    A(f"s_load_dwordx2 {sr(P_WS,2)}, s[0:1], 96")
    A(f"s_load_dwordx2 {sr(P_WOA,2)}, s[0:1], 16")
    if cfg.get("diag"):
        for i in range(14):
            A(f"s_mov_b32 s{S_STAMP+i}, 0")
    stamp(A, cfg, 0)
    A("s_cmp_ge_u32 s2, 256")
    A("s_cbranch_scc1 LM_END")
    if cfg.get("warm0", 1):
        lw0 = A.newlabel("LW0")
        A(f"s_cmp_ge_u32 s2, {8*cfg.get('warm0', 1)}")
        A(f"s_cbranch_scc1 {lw0}")
        A(f"s_getpc_b64 {sr(SRD_WS,2)}")
        A(f"s_mov_b32 s{SRD_WS+2}, LP_START-{name}")
        A(f"s_mov_b32 s{SRD_WS+3}, 0x20000")
        A(f"v_lshlrev_b32 v{G+8}, {cfg.get('warm_sh', 7)}, v0")
        A(f"s_lshr_b32 s{T}, s2, 3")
        A(f"s_lshl_b32 s{T}, s{T}, {8 + cfg.get('warm_sh', 7)}")
        A(f"buffer_load_dword v{G+9}, v{G+8}, {sr(SRD_WS,4)}, s{T} offen")
        A.label(lw0)
    A(f"v_lshrrev_b32 v{G}, 6, v0")
    A("v_and_b32 v0, 63, v0")
    A(f"v_readfirstlane_b32 s{S_WAVE}, v{G}")
    A(f"v_lshlrev_b32 v{V_LANE16}, 4, v0")
    A(f"s_and_b32 s{T}, s2, 7")
    A(f"s_bfe_u32 s{T+1}, s2, 0x10005")
    A(f"s_lshl_b32 s{T+1}, s{T+1}, 3")
    A(f"s_add_u32 s{T}, s{T}, s{T+1}")
    A(f"s_lshr_b32 s{T+1}, s2, 7")
    A(f"s_lshl_b32 s{T+1}, s{T+1}, 4")
    A(f"s_add_u32 s{T}, s{T}, s{T+1}")
    A(f"s_bfe_u32 s{S_GRP}, s2, 0x10006")
    A(f"s_bfe_u32 s{T+1}, s2, 0x20003")
    A(f"s_lshl_b32 s{T+2}, s{S_GRP}, 2")
    A(f"s_add_u32 s{T+1}, s{T+1}, s{T+2}")
    A(f"s_lshr_b32 s{T+2}, s{S_WAVE}, 1")
    A(f"s_and_b32 s{T+3}, s{S_WAVE}, 1")
    A(f"s_and_b32 s{S_GHEAD}, s{T}, 15")
    A(f"s_lshr_b32 s{S_TYPE}, s{T}, 4")
    A(f"s_lshl_b32 s{T+5}, s{T+2}, 4")
    A(f"s_add_u32 s{T+5}, s{T+5}, s{T+3}")
    A(f"s_lshl_b32 s{S_XWAVE}, s{T+5}, 10")
    A(f"s_add_u32 s{S_XWAVE}, s{S_XWAVE}, {LDS_X0}")
    A(f"s_mov_b32 s{S_XWR}, s{S_XWAVE}")
    A(f"s_lshl_b32 s{T+5}, s{T+5}, 3")
    A(f"s_lshl_b32 s{T+6}, s{T+1}, 8")
    A(f"s_add_u32 s{T+6}, s{T+6}, s{T+5}")
    A(f"s_lshl_b32 s{S_XOFF}, s{T+6}, 11")
    A(f"s_mov_b32 s{S_XSTA}, {16*2048}")
    A(f"s_mov_b32 s{S_XSTB}, {16*2048}")
    A(f"s_mov_b32 s{S_XWRAP}, {(128-112*2048) & 0xffffffff}")
    A(f"s_lshl_b32 s{T+7}, s{T+2}, 2")
    A(f"s_add_u32 s{T+7}, s{T+7}, s{T+3}")
    A(f"s_lshl_b32 s{S_WWR}, s{T+7}, 10")
    A(f"s_lshl_b32 s{S_WOFF}, s{T+7}, 14")
    A(f"s_lshl_b32 s{T+6}, s{S_GHEAD}, 9")
    A(f"s_add_u32 s{S_WOFF}, s{S_WOFF}, s{T+6}")
    A(f"v_lshrrev_b32 v{G}, 4, v0")
    A(f"s_lshl_b32 s{T+6}, s{T+3}, 2")
    A(f"v_add_u32 v{G+6}, s{T+6}, v{G}")
    A(f"v_and_b32 v{G+1}, 7, v0")
    A(f"v_xor_b32 v{G}, v{G+6}, v{G+1}")
    A(f"v_lshlrev_b32 v{G}, 4, v{G}")
    A(f"v_lshrrev_b32 v{G+1}, 3, v0")
    A(f"v_lshl_add_u32 v{V_DX}, v{G+1}, 11, v{G}")
    A(f"v_mul_u32_u24 v{G+2}, 896, v{G+1}")
    A(f"v_add_u32 v{V_DX2}, v{G+2}, v{G}")
    A(f"v_lshrrev_b32 v{G}, 5, v0")
    A(f"s_lshl_b32 s{T+6}, s{T+3}, 1")
    A(f"s_lshl_b32 s{T+5}, s{T+2}, 2")
    A(f"s_add_u32 s{T+6}, s{T+6}, s{T+5}")
    A(f"v_add_u32 v{G+1}, s{T+6}, v{G}")
    A(f"v_bfe_u32 v{G+2}, v0, 1, 4")
    A(f"v_xor_b32 v{G+2}, v{G+2}, v{G+1}")
    A(f"v_and_b32 v{G+3}, 1, v0")
    A(f"v_lshl_add_u32 v{G+2}, v{G+2}, 1, v{G+3}")
    A(f"v_lshlrev_b32 v{G+3}, 4, v{G+2}")
    A(f"v_lshl_add_u32 v{V_DW}, v{G}, 13, v{G+3}")
    A("s_waitcnt lgkmcnt(0)")
    set_srd(A, SRD_A, P_CKV, 2048 * 1024 * 2)
    A(f"s_cmp_eq_u32 s{S_TYPE}, 0")
    A(f"s_cselect_b32 s{SRD_B}, s{P_WUK}, s{P_WUV}")
    A(f"s_cselect_b32 s{SRD_B+1}, s{P_WUK+1}, s{P_WUV+1}")
    A(f"s_mov_b32 s{SRD_B+2}, {1024*4096*2}")
    A(f"s_mov_b32 s{SRD_B+3}, 0x20000")
    emit_chain(A, dma_x())
    emit_chain(A, dma_w())
    A(f"s_and_b32 s{S_HEAD}, s2, 15")
    A(f"s_lshr_b32 s{T}, s2, 4")
    A(f"s_sub_u32 s{S_QB}, 15, s{T}")
    A(f"s_lshl_b32 s{T+4}, s{S_QB}, 7")
    A(f"s_lshl_b32 s{T+5}, s{S_HEAD}, 3")
    A(f"s_add_u32 s{T+4}, s{T+4}, s{T+5}")
    A(f"s_lshl_b32 s{T+5}, s{S_WAVE}, 1")
    A(f"s_add_u32 s{S_PHASE}, s{T+4}, s{T+5}")
    A(f"s_mul_i32 s{T+4}, s{S_PHASE}, 896")
    A(f"v_and_b32 v{V_CV}, 31, v0")
    A(f"v_lshlrev_b32 v{V_CV+1}, 5, v{V_CV}")
    A(f"v_mov_b32 v{V_CV+3}, 0x40000000")
    A(f"v_cmp_gt_u32 vcc, 28, v{V_CV}")
    A(f"v_lshrrev_b32 v{V_CV+2}, 5, v0")
    A("s_nop 0")
    A(f"v_cndmask_b32 v{V_CV+1}, v{V_CV+3}, v{V_CV+1}, vcc")
    A(f"v_mul_u32_u24 v{V_CV+2}, 896, v{V_CV+2}")
    A(f"v_add_u32 v{V_CV+2}, v{V_CV+2}, v{V_CV+1}")
    set_srd(A, SRD_WS, P_X, 2048 * 448 * 2)
    set_srd(A, SRD_DBG, P_GATE, 448 * 2)
    A(f"buffer_load_dwordx4 {vr(192,4)}, v{V_CV+2}, {sr(SRD_WS,4)}, s{T+4} offen")
    A(f"buffer_load_dwordx4 {vr(196,4)}, v{V_CV+2}, {sr(SRD_WS,4)}, s{T+4} offen offset:16")
    A(f"buffer_load_dwordx4 {vr(200,4)}, v{V_CV+1}, {sr(SRD_DBG,4)}, 0 offen")
    A(f"buffer_load_dwordx4 {vr(204,4)}, v{V_CV+1}, {sr(SRD_DBG,4)}, 0 offen offset:16")
    emit_chain(A, dma_x())
    emit_chain(A, dma_w())
    set_srd(A, SRD_WS, P_WS, WS_SIZE)
    set_srd(A, SRD_DBG, P_DBG, 256)
    set_srd(A, SRD_E, P_WS, WS_SIZE)
    A(f"s_cmp_eq_u32 s{S_GRP}, 0")
    A(f"s_cselect_b32 s{SRD_E+2}, s{SRD_E+2}, 0")
    li = A.newlabel("LM")
    A(f"v_lshlrev_b32 v{V_SIG+1}, 2, v0")
    A(f"v_mov_b32 v{V_SIG}, 0")
    A(f"s_cmp_lg_u32 s{S_WAVE}, 0")
    A(f"s_cbranch_scc1 {li}")
    A(f"s_lshl_b32 s{T+6}, s2, 6")
    A(f"s_add_u32 s{T+6}, s{T+6}, {WS_F}")
    A("s_mov_b64 exec, 0xffff")
    A(f"buffer_store_dword v{V_SIG}, v{V_SIG+1}, {sr(SRD_WS,4)}, s{T+6} offen sc1")
    A("s_mov_b64 exec, -1")
    A.label(li)
    A(f"s_lshl_b32 s{S_OB}, s{S_GHEAD}, 20")
    A(f"s_lshl_b32 s{T+6}, s{T+1}, 17")
    A(f"s_add_u32 s{S_OB}, s{S_OB}, s{T+6}")
    A(f"s_lshl_b32 s{T+6}, s{T+2}, 16")
    A(f"s_add_u32 s{S_OB}, s{S_OB}, s{T+6}")
    A(f"s_add_u32 s{T+6}, s{S_TYPE}, 12")
    A(f"s_lshl_b32 s{T+6}, s{T+3}, s{T+6}")
    A(f"s_add_u32 s{S_OB}, s{S_OB}, s{T+6}")
    A(f"s_lshl_b32 s{T+6}, s{S_TYPE}, 24")
    A(f"s_add_u32 s{S_OB}, s{S_OB}, s{T+6}")
    A(f"s_mov_b32 s{T+6}, 8192")
    A(f"s_cmp_eq_u32 s{S_TYPE}, 0")
    A(f"s_cselect_b32 s{S_OSTA}, s{T+6}, 4096")
    A(f"s_cselect_b32 s{S_OSTB}, s{T+6}, 12288")
    A(f"s_lshl_b32 s{S_GHEAD}, s{S_GHEAD}, 8")
    A(f"s_lshl_b32 s{T+6}, s{S_GRP}, 12")
    A(f"s_add_u32 s{S_GHEAD}, s{S_GHEAD}, s{T+6}")
    A(f"s_lshl_b32 s{T+6}, s{S_TYPE}, 4")
    A(f"s_add_u32 s{S_GHEAD}, s{S_GHEAD}, s{T+6}")
    A(f"s_and_b32 s{T+6}, s{T+1}, 3")
    A(f"s_lshl_b32 s{T+6}, s{T+6}, 2")
    A(f"s_add_u32 s{S_GHEAD}, s{S_GHEAD}, s{T+6}")
    A(f"s_add_u32 s{S_GHEAD}, s{S_GHEAD}, {F_KV}")
    A(f"s_and_b32 s{S_HEAD}, s2, 15")
    A(f"s_lshr_b32 s{T}, s2, 4")
    A(f"s_sub_u32 s{S_QB}, 15, s{T}")
    A(f"s_lshl_b32 s{S_WOFF2}, s{T+7}, 14")
    A(f"s_lshl_b32 s{T+6}, s{S_HEAD}, 9")
    A(f"s_add_u32 s{S_WOFF2}, s{S_WOFF2}, s{T+6}")
    A(f"s_lshl_b32 s{T+5}, s{S_QB}, 7")
    A(f"s_lshl_b32 s{T+6}, s{T+3}, 3")
    A(f"s_add_u32 s{T+5}, s{T+5}, s{T+6}")
    A(f"s_mul_i32 s{T+5}, s{T+5}, 896")
    A(f"s_mul_i32 s{T+6}, s{T+3}, {8*2688}")
    A(f"s_mul_i32 s{T+4}, s{S_HEAD}, 56")
    A(f"s_add_u32 s{T+6}, s{T+6}, s{T+4}")
    A(f"s_cmp_eq_u32 s{T+2}, 0")
    A(f"s_cselect_b32 s{S_XOFF2}, s{T+5}, s{T+6}")
    A(f"s_cselect_b32 s{S_X2LO}, s{P_X}, s{P_WQKV}")
    A(f"s_cselect_b32 s{S_X2HI}, s{P_X+1}, s{P_WQKV+1}")
    A(f"s_mov_b32 s{T+5}, {2048*448*2}")
    A(f"s_cselect_b32 s{S_X2N}, s{T+5}, {448*1344*2}")
    A(f"s_mov_b32 s{T+5}, {16*896}")
    A(f"s_cselect_b32 s{S_XSTA2}, s{T+5}, {4*2688}")
    A(f"s_cselect_b32 s{S_XSTB2}, s{T+5}, {12*2688}")
    A(f"s_mov_b32 s{T+5}, {(128-112*896) & 0xffffffff}")
    A(f"s_cselect_b32 s{S_XWRAP2}, s{T+5}, {12*2688}")
    lskip = A.newlabel("LM")
    A(f"s_cbranch_scc1 {lskip}")
    A(f"v_bfe_u32 v{G}, v0, 1, 3")
    A(f"v_xor_b32 v{G}, v{G}, v{G+6}")
    A(f"v_and_b32 v{G+1}, 1, v0")
    A(f"v_lshl_add_u32 v{G}, v{G}, 1, v{G+1}")
    A(f"v_lshrrev_b32 v{G+1}, 2, v{G}")
    A(f"v_and_b32 v{G}, 3, v{G}")
    A(f"v_lshlrev_b32 v{G}, 4, v{G}")
    A(f"v_mul_u32_u24 v{G+2}, 896, v{G+1}")
    A(f"v_add_u32 v{G}, v{G}, v{G+2}")
    A(f"v_lshrrev_b32 v{G+2}, 4, v0")
    A(f"v_mul_u32_u24 v{G+2}, 2688, v{G+2}")
    A(f"v_add_u32 v{G}, v{G}, v{G+2}")
    A(f"v_mov_b32 v{G+2}, 0x40000000")
    A(f"v_cmp_gt_u32 vcc, 3, v{G+1}")
    A("s_nop 1")
    A(f"v_cndmask_b32 v{V_DX2}, v{G+2}, v{G}, vcc")
    A.label(lskip)
    A(f"s_lshl_b32 s{S_OBQK}, s{S_HEAD}, 17")
    A(f"s_lshl_b32 s{T+5}, s{S_QB}, 13")
    A(f"s_add_u32 s{S_OBQK}, s{S_OBQK}, s{T+5}")
    A(f"s_lshl_b32 s{T+5}, s{T+2}, 12")
    A(f"s_add_u32 s{S_OBQK}, s{S_OBQK}, s{T+5}")
    A(f"s_lshl_b32 s{T+5}, s{T+3}, 8")
    A(f"s_add_u32 s{S_OBV}, s{S_OBQK}, s{T+5}")
    A(f"s_add_u32 s{S_OBV}, s{S_OBV}, {WS_VA}")
    A(f"s_lshl_b32 s{T+5}, s{T+3}, 21")
    A(f"s_add_u32 s{S_OBQK}, s{S_OBQK}, s{T+5}")
    A(f"s_add_u32 s{S_OBQK}, s{S_OBQK}, {WS_QA}")
    A(f"s_cmp_eq_u32 s{T+3}, 0")
    A(f"s_cselect_b32 s{S_SCA}, {f32bits(SCALE_A):#x}, 1.0")
    A(f"v_and_b32 v{G}, 15, v0")
    A(f"v_lshrrev_b32 v{G+1}, 4, v0")
    A(f"v_lshrrev_b32 v{G+2}, 1, v{G}")
    A(f"v_xor_b32 v{G+2}, v{G+2}, v{G+1}")
    A(f"v_lshlrev_b32 v{G+2}, 4, v{G+2}")
    A(f"v_lshl_add_u32 v{G+2}, v{G}, 7, v{G+2}")
    A(f"s_lshl_b32 s{T+5}, s{T+2}, 14")
    A(f"v_add_u32 v{V_XL0}, s{T+5}, v{G+2}")
    A(f"v_xor_b32 v{V_XL1}, 64, v{V_XL0}")
    A(f"s_lshl_b32 s{T+5}, s{T+2}, 13")
    A(f"v_add_u32 v{V_PXL}, s{T+5}, v{G+2}")
    A(f"v_xor_b32 v{V_PXL+1}, 64, v{V_PXL}")
    A(f"v_add_u32 v{V_XR0}, {LDS_X0}, v{V_XL0}")
    A(f"v_add_u32 v{V_XR1}, {LDS_X0}, v{V_XL1}")
    A(f"s_mov_b32 s{S_XRD}, {LDS_X0+32768}")
    A(f"v_bfe_u32 v{G+2}, v0, 2, 2")
    A(f"v_lshl_add_u32 v{G+3}, v{G+1}, 3, v{G+2}")
    A(f"v_lshlrev_b32 v{G+3}, 9, v{G+3}")
    A(f"v_bfe_u32 v{G+4}, v0, 2, 3")
    A(f"v_lshl_add_u32 v{G+3}, v{G+4}, 5, v{G+3}")
    A(f"v_and_b32 v{G+5}, 3, v0")
    A(f"v_lshl_add_u32 v{G+3}, v{G+5}, 3, v{G+3}")
    A(f"s_lshl_b32 s{T+5}, s{T+3}, 8")
    A(f"v_add_u32 v{V_WR}, s{T+5}, v{G+3}")
    for b in range(1, 8):
        A(f"v_xor_b32 v{V_WR+b}, {b*32}, v{V_WR}")
    A(f"v_lshrrev_b32 v{G+3}, 5, v0")
    A(f"v_lshl_add_u32 v{G+3}, v{G+3}, 4, v{G+4}")
    A(f"v_lshlrev_b32 v{G+3}, 8, v{G+3}")
    A(f"v_lshl_add_u32 v{G+3}, v{G+4}, 5, v{G+3}")
    A(f"v_lshl_add_u32 v{G+3}, v{G+5}, 3, v{G+3}")
    A(f"v_add_u32 v{G+3}, 16384, v{G+3}")
    A(f"s_lshl_b32 s{T+5}, s{T+3}, 6")
    A(f"v_xor_b32 v{V_PWL}, s{T+5}, v{G+3}")
    A(f"v_xor_b32 v{V_PWL+1}, 32, v{V_PWL}")
    A(f"s_lshl_b32 s{T+5}, s{T+3}, 5")
    A(f"s_add_u32 s{T+5}, s{T+5}, 128")
    A(f"v_xor_b32 v{V_PWL+2}, s{T+5}, v{G+3}")
    A(f"v_lshlrev_b32 v{G+2}, 9, v{G+1}")
    A(f"v_bfe_u32 v{G+3}, v0, 3, 1")
    A(f"v_lshl_add_u32 v{G+4}, v{G+3}, 8, v{G+2}")
    A(f"v_and_b32 v{G+3}, 7, v0")
    A(f"v_lshl_add_u32 v{V_OA}, v{G+3}, 4, v{G+4}")
    A(f"v_lshl_add_u32 v{V_OAV}, v{G}, 4, v{G+2}")
    A(f"v_mov_b32 v{V_SCHI}, s{S_SCA}")
    A(f"v_cmp_gt_u32 vcc, 3, v{G+1}")
    A("s_nop 1")
    A(f"v_cndmask_b32 v{V_SCHI}, 0, v{V_SCHI}, vcc")
    A(f"s_lshl_b32 s{T+5}, s{T+3}, 4")
    A(f"v_add_u32 v{G+2}, s{T+5}, v{G}")
    A(f"v_cmp_gt_u32 vcc, 28, v{G+2}")
    A("s_nop 1")
    A(f"v_cndmask_b32 v{V_MULHI}, 0, 1.0, vcc")
    A(f"v_cmp_eq_u32 vcc, 28, v{G+2}")
    A("s_nop 1")
    A(f"v_cndmask_b32 v{V_ADDHI}, 0, 1.0, vcc")
    A(f"s_lshl_b32 s{T+6}, s{T+2}, 15")
    A(f"s_lshl_b32 s{T+5}, s{T+3}, 12")
    A(f"s_add_u32 s{T+6}, s{T+6}, s{T+5}")
    A(f"s_add_u32 s{T+6}, s{T+6}, {XQ}")
    A(f"v_add_u32 v{V_XQW}, s{T+6}, v{V_LANE16}")
    A(f"s_lshl_b32 s{T+6}, s{S_WAVE}, 13")
    A(f"s_add_u32 s{T+6}, s{T+6}, {XQ}")
    A(f"v_add_u32 v{V_XQR}, s{T+6}, v{V_LANE16}")
    A("s_waitcnt vmcnt(16)")
    A(f"s_mov_b32 s{S_W12}, 0")
    A(f"s_lshl_b32 s{S_W4}, s{S_PHASE}, 2")
    A(f"s_add_u32 s{S_W4}, s{S_W4}, {WS_G}")
    A(f"s_mov_b32 s{S_LEFT}, 14")
    A(f"s_mov_b32 s{S_PHASE}, 0")
    A(f"s_mov_b32 s{SRD_WS+2}, 0")
    A(f"s_mov_b32 s{SRD_DBG+2}, 0")
    A(f"s_lshl_b32 s{S_TOFF}, s2, 2")
    A(f"s_add_u32 s{S_TOFF}, s{S_TOFF}, s{S_WAVE}")
    A(f"s_lshl_b32 s{S_TBOFF}, s{S_TOFF}, 13")
    A(f"s_mov_b64 {sr(S_TA,2)}, {sr(P_WQ,2)}")
    A(f"s_mov_b32 s{S_TASZ}, {448*4096*2}")
    A(f"s_mov_b32 s{S_TAOFF}, s{S_TBOFF}")
    for first_u, ptr, size in ((448, P_X, 2048*448*2), (672, P_WQKV, 448*1344*2), (819, P_WOA, 448*448*2)):
        A(f"s_sub_u32 s{T}, s{S_TBOFF}, {first_u*8192}")
        A(f"s_cmp_ge_u32 s{S_TOFF}, {first_u}")
        A(f"s_cselect_b64 {sr(S_TA,2)}, {sr(ptr,2)}, {sr(S_TA,2)}")
        A(f"s_cselect_b32 s{S_TASZ}, {size}, s{S_TASZ}")
        A(f"s_cselect_b32 s{S_TAOFF}, s{T}, s{S_TAOFF}")
    na = cfg.get("tna", 10)
    for n, dst, t0 in ((na, S_TAT, 2),):
        A(f"s_mul_i32 s{T}, s{S_TOFF}, {(65536 + n - 1)//n}")
        A(f"s_lshr_b32 s{T}, s{T}, 16")
        A(f"s_mul_i32 s{T}, s{T}, {n}")
        A(f"s_sub_u32 s{dst}, s{S_TOFF}, s{T}")
        A(f"s_add_u32 s{dst}, s{dst}, {t0}")
    A(f"s_lshr_b32 s{S_TOFF2}, s2, 3")
    A(f"s_lshl_b32 s{S_TOFF2}, s{S_TOFF2}, 2")
    A(f"s_add_u32 s{S_TOFF2}, s{S_TOFF2}, s{S_WAVE}")
    A(f"s_lshl_b32 s{S_TOFF2}, s{S_TOFF2}, {6 + cfg.get('tsh', 7)}")
    A(f"s_getpc_b64 {sr(S_PC,2)}")
    A.label("LM_PC")
    A(f"s_bfe_u32 s{S_CSTEP}, s2, 0x30004")
    A(f"s_add_u32 s{S_CSTEP}, s{S_CSTEP}, 2")
    A(f"s_cmp_eq_u32 s{S_WAVE}, 0")
    A(f"s_cselect_b32 s{S_CSTEP}, s{S_CSTEP}, 99")
    A(f"s_and_b32 s{T}, s2, 15")
    A(f"s_lshl_b32 s{T}, s{T}, 4")
    A(f"v_lshlrev_b32 v{V_CRT+1}, 12, v0")
    A(f"v_add_u32 v{V_CRT+1}, s{T}, v{V_CRT+1}")
    A(f"v_mov_b32 v{V_CRT}, 1")
    A(f"v_and_b32 v{V_SIG+1}, 15, v0")
    A(f"v_lshlrev_b32 v{V_SIG+1}, 4, v{V_SIG+1}")
    A(f"v_lshlrev_b32 v{V_TCH}, {cfg.get('tsh', 7)}, v0")
    if cfg.get("thalf"):
        A(f"v_lshlrev_b32 v{V_TCH}, 7, v0")
        A(f"v_mov_b32 v{V_TCH+1}, 0x40000000")
        A(f"v_cmp_gt_u32 vcc, 32, v0")
        A("s_nop 1")
        A(f"v_cndmask_b32 v{V_TCH}, v{V_TCH+1}, v{V_TCH}, vcc")
    A("s_barrier")
    A.emit_list(g_reads(0, 0))
    A("s_waitcnt lgkmcnt(0)")
    A(f"s_cmp_eq_u32 s{S_TYPE}, 1")
    A("s_cbranch_scc1 LG_VT")
    n_early = cfg.get("n_early", 16)
    for typ in ("KQ", "V"):
        if typ == "V":
            A.label("LG_VT")
        g_step(A, typ, True, cfg)
        A.label(f"LG_LOOP_{typ}")
        g_step(A, typ, False, cfg)
        A(f"s_cbranch_scc1 LG_LOOP_{typ}")
        A(f"s_cmp_eq_u32 s{S_PHASE}, 16")
        A(f"s_cbranch_scc1 LG_EPI_{typ}")
        A(f"s_mov_b32 s{S_LEFT}, 2")
        A(f"s_cmp_eq_u32 s{S_WAVE}, 0")
        A(f"s_cselect_b32 s{SRD_DBG+2}, 256, 0")
        A(f"buffer_load_dword v{V_SIG}, v{V_SIG+1}, {sr(SRD_DBG,4)}, 0 offen sc1")
        A(f"s_mov_b32 s{SRD_DBG+2}, 0")
        A(f"s_mov_b32 s{SRD_A}, s{S_X2LO}")
        A(f"s_mov_b32 s{SRD_A+1}, s{S_X2HI}")
        A(f"s_mov_b32 s{SRD_A+2}, s{S_X2N}")
        A(f"s_mov_b32 s{S_XOFF}, s{S_XOFF2}")
        A(f"s_mov_b32 s{S_XSTA}, s{S_XSTA2}")
        A(f"s_mov_b32 s{S_XSTB}, s{S_XSTB2}")
        A(f"s_mov_b32 s{S_XWRAP}, s{S_XWRAP2}")
        A(f"v_mov_b32 v{V_DX}, v{V_DX2}")
        A(f"s_mov_b32 s{SRD_B}, s{P_WQ}")
        A(f"s_mov_b32 s{SRD_B+1}, s{P_WQ+1}")
        A(f"s_mov_b32 s{SRD_B+2}, {448*4096*2}")
        A(f"s_mov_b32 s{S_WOFF}, s{S_WOFF2}")
        A(f"s_branch LG_LOOP_{typ}")
        A.label(f"LG_EPI_{typ}")
        stamp(A, cfg, 1)
        set_srd(A, SRD_WS, P_WS, WS_SIZE)
        A(f"s_mov_b32 s{SRD_DBG+2}, 256")
        lok, llp = A.newlabel("LM"), A.newlabel("LM")
        A(f"v_cmp_le_u32 vcc, 16, v{V_SIG}")
        A(f"s_cmp_lg_u32 s{S_WAVE}, 0")
        A(f"s_cbranch_scc1 {lok}")
        A(f"s_mov_b32 s{T+1}, {SPIN_MAX}")
        A.label(llp)
        A("s_nop 3")
        A("s_cmp_eq_u64 vcc, -1")
        A(f"s_cbranch_scc1 {lok}")
        A(f"s_sub_u32 s{T+1}, s{T+1}, 1")
        A(f"s_cmp_eq_u32 s{T+1}, 0")
        A(f"s_cbranch_scc1 {lok}")
        A("s_sleep 32")
        A(f"buffer_load_dword v{V_SIG}, v{V_SIG+1}, {sr(SRD_DBG,4)}, 0 offen sc1")
        A("s_waitcnt vmcnt(0)")
        A(f"v_cmp_le_u32 vcc, 16, v{V_SIG}")
        A(f"s_branch {llp}")
        A.label(lok)
        if cfg.get("gdiag"):
            A(f"s_lshl_b32 s{T}, s2, 2")
            A(f"s_add_u32 s{T}, s{T}, s{S_WAVE}")
            A(f"s_lshl_b32 s{T}, s{T}, 9")
            A(f"s_add_u32 s{T}, s{T}, {232 << 20}")
            A(f"v_lshrrev_b32 v242, 2, v{V_LANE16}")
            A(f"buffer_store_dword v240, v242, {sr(SRD_WS,4)}, s{T} offen")
            A(f"buffer_store_dword v241, v242, {sr(SRD_WS,4)}, s{T} offen offset:256")
        A(f"s_mov_b32 s{S_XOFF2}, s{S_OB}")
        A.emit_list(p_addr(16))
        A.emit_list(p_reads(0, 0))
        g_cvt(A, typ, n_early)
        if typ == "KQ":
            A("s_branch LP_START")
    A.label("LP_START")
    if cfg.get("stamp_lp"):
        stamp(A, cfg, 3)
    A("s_waitcnt lgkmcnt(0)")
    rem = list(range(n_early, 32))
    per = cfg.get("st_per", [4, 4, 4, 4])
    k = 0
    for T_ in range(16, 23):
        st = []
        for h in range(2):
            n = per[k] if k < len(per) else 0
            k += 1
            st.append(rem[:n])
            rem = rem[n:]
        p_step(A, T_, st[0], st[1], cfg)
    assert not rem, rem
    stamp(A, cfg, 2)
    b_setup_kv(A)
    def kv_first():
        for w, s_ in (("K", 0), ("V", 0), ("K", 1), ("V", 1), ("K", 2), ("V", 2)):
            emit_chain(A, kv_tile_chain(w, s_))
    A("s_waitcnt vmcnt(0)")
    poll_test(A)
    A(f"s_cselect_b32 s{S_EV}, 1, 0")
    A("s_cbranch_scc0 LP_NOTYET")
    kv_first()
    A.label("LP_NOTYET")
    A(f"s_cmp_eq_u32 s{S_GRP}, 0")
    A("s_cbranch_scc1 LP_NOLATE")
    A(f"s_mov_b32 s{S_OB}, s{S_XOFF2}")
    for c in range(32):
        for o_ in kv_store(c, SRD_WS):
            A(o_.text)
    A("s_nop 1")
    A.label("LP_NOLATE")
    p_epilogue_a(A)
    p_epilogue_q(A)
    b_setup_rest(A)
    A(f"s_cmp_eq_u32 s{S_EV}, 1")
    A("s_cbranch_scc1 LP_HAVE")
    poll_wait(A, True)
    kv_first()
    A.label("LP_HAVE")
    b_main(A, cfg)
    stamp_out(A, cfg, 7, 200 << 20, 2)
    A.label("LQ_NEXT")
    lp = A.newlabel("LQ")
    A(f"s_cmp_eq_u32 s{S_POPPED}, 1")
    A(f"s_cbranch_scc1 {lp}")
    pop_issue(A)
    A.label(lp)
    A(f"s_mov_b32 s{S_POPPED}, 0")
    lw = A.newlabel("LQ")
    A(f"s_cmp_lg_u32 s{S_WAVE}, 0")
    A(f"s_cbranch_scc1 {lw}")
    A("s_waitcnt vmcnt(0)")
    A(f"v_mov_b32 v{V_POLL+1}, {LDS_TOTAL-16}")
    A("s_mov_b64 exec, 1")
    A(f"ds_write_b32 v{V_POLL+1}, v{V_POP}")
    A("s_mov_b64 exec, -1")
    A.label(lw)
    A("s_waitcnt vmcnt(0) lgkmcnt(0)")
    A("s_barrier")
    ls = A.newlabel("LQ")
    A(f"s_cmp_eq_u32 s{S_RFLAG}, 0")
    A(f"s_cbranch_scc1 {ls}")
    signal(A, S_RFLAG, mask_sgpr=S_RMASK)
    A.label(ls)
    A(f"v_mov_b32 v{V_POLL+1}, {LDS_TOTAL-16}")
    A(f"ds_read_b32 v{V_POLL}, v{V_POLL+1}")
    A("s_waitcnt lgkmcnt(0)")
    A(f"v_readfirstlane_b32 s{S_ITEM}, v{V_POLL}")
    A("s_barrier")
    NA = a_counts(cfg)[3]
    A(f"s_cmp_ge_u32 s{S_ITEM}, {NA + 56}")
    A("s_cbranch_scc1 LM_FIN")
    A(f"s_cmp_ge_u32 s{S_ITEM}, {NA}")
    A("s_cbranch_scc1 LQ_RED")
    a_item(A, cfg)
    if cfg.get("diag"):
        A(f"s_and_b32 s{T+2}, s2, 7")
        A(f"s_lshl_b32 s{T+3}, s{S_ITEM}, 3")
        A(f"s_add_u32 s{T+2}, s{T+2}, s{T+3}")
        stamp_out(A, cfg, 5, 210 << 20, T + 2)
    A("s_branch LQ_NEXT")
    A.label("LQ_RED")
    A(f"s_mov_b32 s{S_RFLAG}, 0")
    r_item(A, cfg)
    if cfg.get("diag"):
        A(f"s_and_b32 s{T+2}, s2, 7")
        A(f"s_sub_u32 s{T+3}, s{S_ITEM}, {NA}")
        A(f"s_lshl_b32 s{T+3}, s{T+3}, 3")
        A(f"s_add_u32 s{T+2}, s{T+2}, s{T+3}")
        stamp_out(A, cfg, 3, 220 << 20, T + 2)
    A("s_branch LQ_NEXT")
    flush_ool(A)
    b_rare(A, 0)
    b_rare(A, 1)
    a_rare(A, 0)
    a_rare(A, 1)
    A.label("LM_FIN")
    stamp_out(A, cfg, 1, 230 << 20, 2)
    A.label("LM_END")
    A("s_endpgm")
    return kernel_desc(name, 512, 102, 256)
```

```python
import math
from asmlib import *

WS_K = 0
WS_V = 16 << 20
WS_QA = 48 << 20
WS_KA = 50 << 20
WS_VA = 52 << 20
WS_P = 64 << 20
WS_SIZE = 256 << 20
P_SLOT = 128 * 14 * 1024
LOG2E = math.log2(math.e)
SCALE_B = LOG2E / 16.0
SCALE_A = LOG2E / math.sqrt(28.0)
LDS_TOTAL = 163840
LDS_X0 = 65536
BIAS = 32.0
NEG_INF = 0xff800000
HUGE = WS_SIZE
SPIN_MAX = 1 << 16

C_QUEUE = 1
WS_F = 240 << 20
F_KV, F_AQ, F_ROW = WS_F, WS_F + 8192, WS_F + 12288
WS_G = 241 << 20

P_X, P_WQKV, P_WOA, P_CKV, P_WQ, P_WUK, P_WUV = 4, 6, 30, 12, 14, 16, 18
P_WOB, P_GATE, P_OUT, P_DBG, P_WS = 20, 22, 24, 26, 28
SRD_A, SRD_B, SRD_WS, SRD_DBG = 32, 36, 40, 44
S_WAVE, S_TYPE, S_HEAD, S_QB = 48, 49, 50, 51
S_XOFF, S_WOFF, S_XSTA, S_XSTB, S_XWRAP, S_W4, S_W12 = 52, 53, 54, 55, 56, 57, 58
S_XRD, S_XWR, S_WWR, S_XWAVE, S_LEFT, S_PHASE = 59, 60, 61, 62, 63, 64
S_OB, S_OSTA, S_OSTB = 65, 66, 67
S_XOFF2, S_WOFF2, S_XSTA2, S_XSTB2, S_XWRAP2, S_X2LO, S_X2HI, S_X2N = 68, 69, 70, 71, 72, 73, 74, 75
S_OBQK, S_OBV, S_SCA, S_GHEAD = 76, 77, 78, 79
S_N, S_T2, S_TW, S_KOFF, S_VOFF, S_KLIM, S_VLIM, S_B0 = 52, 53, 54, 55, 56, 57, 58, 59
S_RET = 60
S_FLOOR, S_FIRST = 62, 64
S_WOOFF, S_POFF, S_MASK, S_HUGE, S_WOW = 65, 66, 67, 68, 69
S_SC = 70
S_BL1 = 67
S_POFF1 = 71
S_ITEM = 72
S_SPIN = 73
S_EV = 74
S_PADDR = 75
S_RMASK = 77
S_AQOK = 79
S_POPPED = 49
S_KAP = 78
S_RFLAG = 76
S_TMP = 80
S_STAMP = 88
SRD_E = 8
S_TOFF = 87
S_PC = 84
S_TOFF2 = 86
S_TA, S_TASZ, S_TAOFF, S_TAT, S_TBOFF, S_TBT = 12, 16, 17, 18, 19, 22
S_CSTEP = 83
V_CRT = 42
V_TCH = 40
S_GRP = 3

V_LANE16 = 1
V_XL0, V_XL1, V_XR0, V_XR1 = 2, 3, 4, 5
V_WR = 6
V_DX, V_DW, V_DX2 = 14, 15, 16
V_OA, V_OAV, V_SCHI, V_MULHI, V_ADDHI = 17, 18, 19, 20, 21
V_PXL = 22
V_PWL = 24
V_PWR = 27
V_XQW, V_XQR = 30, 31
V_G = 32
V_CV = 48
FX = [64, 128]
FW = [96, 160]
V_PK = 128
V_DKV = 2
V_RB1, V_RB0 = 3, 4
V_CB = 6
V_L = 8
V_DM = 10
V_LT = 14
V_T = 16
V_WOD = 32
V_WOR = 40
V_POLL = 44
V_SIG = 46
V_POP = 5
VP = [48, 56]
VS = [64, 80]
VC = 96
VE = 112
VO = 128
AQ, AK, AV = 0, 64, 128
XQ = 98304

OOL = []


def flush_ool(A):
    for b in OOL:
        A.emit_list(b)
    OOL.clear()


def emit_chain(A, c):
    prev = ""
    for o in c:
        if o.kind == "M" and prev.split(",")[0].endswith(" m0"):
            A("s_nop 0")
        A(o.text)
        prev = o.text


def emit_left(A, left):
    for l in left:
        A(l)
        if l.split(",")[0].endswith(" m0") or l.startswith("v_exp"):
            A("s_nop 0")


def spread(n_items, start, end):
    if n_items == 1:
        return [start]
    return [start + (i * (end - start)) // (n_items - 1) for i in range(n_items)]


def set_srd(A, srd, ptr, size):
    A(f"s_mov_b32 s{srd}, s{ptr}")
    A(f"s_mov_b32 s{srd+1}, s{ptr+1}")
    A(f"s_mov_b32 s{srd+2}, {size}")
    A(f"s_mov_b32 s{srd+3}, 0x20000")


def stamp(A, cfg, i):
    if cfg.get("diag"):
        A(f"s_memrealtime {sr(S_STAMP+2*i,2)}")


def stamp_out(A, cfg, n, wsoff, idx_sgpr):
    if cfg.get("diag"):
        A("s_waitcnt vmcnt(0) lgkmcnt(0)")
        A(f"s_memrealtime {sr(S_STAMP+2*(n-1),2)}")
        A("s_waitcnt lgkmcnt(0)")
        A(f"s_lshl_b32 s{S_TMP}, s{idx_sgpr}, 8")
        A(f"s_lshl_b32 s{S_TMP+1}, s{S_WAVE}, 6")
        A(f"s_add_u32 s{S_TMP}, s{S_TMP}, s{S_TMP+1}")
        A(f"s_add_u32 s{S_TMP}, s{S_TMP}, {wsoff}")
        A(f"v_mov_b32 v{V_T+1}, 0")
        for i in range(n):
            A(f"v_mov_b32 v{V_T}, s{S_STAMP+2*i}")
            A(f"buffer_store_dword v{V_T}, v{V_T+1}, {sr(SRD_WS,4)}, s{S_TMP} offen offset:{4*i}")
            A("s_nop 1")


def signal(A, off_sgpr, grp=None, mask_sgpr=None):
    l = A.newlabel("LSG")
    A(f"s_cmp_lg_u32 s{S_WAVE}, 0")
    A(f"s_cbranch_scc1 {l}")
    if grp is not None:
        A(f"s_cmp_lg_u32 s{S_GRP}, {grp}")
        A(f"s_cbranch_scc1 {l}")
    A(f"v_mov_b32 v{V_SIG}, 1")
    A(f"v_lshlrev_b32 v{V_SIG+1}, 5, v0")
    A("s_mov_b64 exec, 1")
    if mask_sgpr is not None:
        A(f"s_mov_b32 exec_lo, s{mask_sgpr}")
    A(f"buffer_store_dword v{V_SIG}, v{V_SIG+1}, {sr(SRD_WS,4)}, s{off_sgpr} offen sc1")
    A("s_mov_b64 exec, -1")
    A.label(l)


def pop_issue(A):
    l = A.newlabel("LPO")
    A(f"s_mov_b32 s{S_POPPED}, 1")
    A(f"s_cmp_lg_u32 s{S_WAVE}, 0")
    A(f"s_cbranch_scc1 {l}")
    A(f"s_and_b32 s{S_TMP+7}, s2, 7")
    A(f"s_lshl_b32 s{S_TMP+7}, s{S_TMP+7}, 5")
    A(f"v_mov_b32 v{V_POP}, 1")
    A(f"v_mov_b32 v{V_SIG+1}, 0")
    A("s_mov_b64 exec, 1")
    A(f"buffer_atomic_add v{V_POP}, v{V_SIG+1}, {sr(SRD_DBG,4)}, s{S_TMP+7} offen offset:{C_QUEUE*4} sc0")
    A("s_mov_b64 exec, -1")
    A.label(l)


def poll_issue(A, idx_sgpr, base, nwords):
    A(f"s_lshl_b32 s{S_PADDR}, s{idx_sgpr}, 8")
    A(f"s_add_u32 s{S_PADDR}, s{S_PADDR}, {base}")
    A(f"v_min_u32 v{V_POLL+1}, {nwords-1}, v0")
    A(f"v_lshlrev_b32 v{V_POLL+1}, 2, v{V_POLL+1}")
    A(f"buffer_load_dword v{V_POLL}, v{V_POLL+1}, {sr(SRD_WS,4)}, s{S_PADDR} offen sc1")


def poll_test(A):
    A(f"v_cmp_eq_u32 vcc, 1, v{V_POLL}")
    A("s_nop 3")
    A("s_cmp_eq_u64 vcc, -1")


def poll_wait(A, reissue_first=False):
    lok, lloop = A.newlabel("LPK"), A.newlabel("LPL")
    A(f"s_mov_b32 s{S_SPIN}, {SPIN_MAX}")
    if reissue_first:
        A(f"buffer_load_dword v{V_POLL}, v{V_POLL+1}, {sr(SRD_WS,4)}, s{S_PADDR} offen sc1")
    A.label(lloop)
    A("s_waitcnt vmcnt(0)")
    poll_test(A)
    A(f"s_cbranch_scc1 {lok}")
    A(f"s_sub_u32 s{S_SPIN}, s{S_SPIN}, 1")
    A(f"s_cmp_eq_u32 s{S_SPIN}, 0")
    A(f"s_cbranch_scc1 {lok}")
    A("s_sleep 8")
    A(f"buffer_load_dword v{V_POLL}, v{V_POLL+1}, {sr(SRD_WS,4)}, s{S_PADDR} offen sc1")
    A(f"s_branch {lloop}")
    A.label(lok)


def acc(nb, tb):
    return (nb * 8 + tb) * 4


def g_mfmas(typ, s, first):
    out = []
    for nb in range(8):
        for tb in range(8):
            a = acc(nb, tb)
            w, x = vr(FW[s] + 4 * nb, 4), vr(FX[s] + 4 * tb, 4)
            c = "0" if first else ar(a, 4)
            out.append(f"v_mfma_f32_16x16x32_bf16 {ar(a,4)}, {w}, {x}, {c}" if typ == "KQ"
                       else f"v_mfma_f32_16x16x32_bf16 {ar(a,4)}, {x}, {w}, {c}")
    return out


def g_reads(s, hh):
    vx = V_XR0 if hh == 0 else V_XR1
    out = [f"ds_read_b128 {vr(FX[s]+4*i,4)}, v{vx} offset:{i*2048}" for i in range(8)]
    for i in range(8):
        out.append(f"ds_read_b64_tr_b16 {vr(FW[s]+4*i,2)}, v{V_WR+i} offset:{hh*16384}")
        out.append(f"ds_read_b64_tr_b16 {vr(FW[s]+4*i+2,2)}, v{V_WR+i} offset:{hh*16384+2048}")
    return out


def dma_x():
    c = [Op(f"s_mov_b32 m0, s{S_XWR}", "S")]
    for i in range(8):
        c.append(Op(f"buffer_load_dwordx4 v{V_DX}, {sr(SRD_A,4)}, s{S_XOFF} offen lds", "M"))
        if i < 7:
            c.append(Op("s_add_u32 m0, m0, 2048", "S"))
            c.append(Op(f"s_add_u32 s{S_XOFF}, s{S_XOFF}, s{S_XSTA if i % 2 == 0 else S_XSTB}", "S"))
        else:
            c.append(Op(f"s_add_u32 s{S_XOFF}, s{S_XOFF}, s{S_XWRAP}", "S"))
            c.append(Op(f"s_add_u32 s{S_XWR}, s{S_XWR}, 32768", "S"))
            c.append(Op(f"s_cmp_ge_u32 s{S_XWR}, {LDS_TOTAL}", "S"))
            c.append(Op(f"s_cselect_b32 s{S_XWR}, s{S_XWAVE}, s{S_XWR}", "S"))
    return c


def dma_w():
    c = [Op(f"s_mov_b32 m0, s{S_WWR}", "S")]
    for i in range(8):
        c.append(Op(f"buffer_load_dwordx4 v{V_DW}, {sr(SRD_B,4)}, s{S_WOFF} offen lds", "M"))
        if i % 2 == 0:
            c.append(Op("s_add_u32 m0, m0, 2048", "S"))
            c.append(Op(f"s_add_u32 s{S_WOFF}, s{S_WOFF}, {4*8192}", "S"))
        else:
            if i < 7:
                c.append(Op("s_add_u32 m0, m0, 6144", "S"))
            c.append(Op(f"s_add_u32 s{S_WOFF}, s{S_WOFF}, {12*8192}", "S"))
        if i == 7:
            c.append(Op(f"s_xor_b32 s{S_WWR}, s{S_WWR}, 32768", "S"))
    return c


HT = "DFDMDFDF" * 6 + "FMFFFFFM" + "FFFFFFFX"


def gate_ops():
    c = V_CV
    par, prevs = [], []
    acc_prev = Op(f"v_mov_b32 v{c+8}, 0", "V")
    par.append(acc_prev)
    for i in range(8):
        x, g = 192 + i, 200 + i
        t = 208 + 4 * i
        a = Op(f"v_lshlrev_b32 v{t}, 16, v{x}", "V")
        b = Op(f"v_and_b32 v{t+1}, 0xffff0000, v{x}", "V")
        d = Op(f"v_lshlrev_b32 v{t+2}, 16, v{g}", "V")
        e = Op(f"v_and_b32 v{t+3}, 0xffff0000, v{g}", "V")
        m0 = Op(f"v_mul_f32 v{t}, v{t}, v{t+2}", "V", [a, d])
        m1 = Op(f"v_mul_f32 v{t+1}, v{t+1}, v{t+3}", "V", [b, e])
        cv = Op(f"v_cvt_pk_bf16_f32 v{t}, v{t}, v{t+1}", "V", [m0, m1])
        lo = Op(f"v_lshlrev_b32 v{t+1}, 16, v{t}", "V", [cv])
        hi = Op(f"v_and_b32 v{t+2}, 0xffff0000, v{t}", "V", [cv])
        s0 = Op(f"v_add_f32 v{c+8}, v{c+8}, v{t+1}", "V", [lo, acc_prev])
        s1 = Op(f"v_add_f32 v{c+8}, v{c+8}, v{t+2}", "V", [hi, s0])
        acc_prev = s1
        par += [a, b, d, e, m0, m1, cv, lo, hi, s0, s1]
    v, w = c + 8, c + 9
    tail = []
    for r in (8, 4, 2, 1):
        tail += ["s_nop 0", f"v_add_f32_dpp v{v}, v{v}, v{v} row_ror:{r} row_mask:0xf bank_mask:0xf"]
    tail += [f"v_mov_b32 v{w}, v{v}", "s_nop 0", f"v_permlane16_swap_b32 v{w}, v{v}", "s_nop 0", f"v_add_f32 v{v}, v{v}, v{w}",
             f"v_cvt_pk_bf16_f32 v{v}, v{v}, v{v}", f"v_lshlrev_b32 v{v}, 16, v{v}", f"v_mul_f32 v{v}, {f32bits(-LOG2E):#x}, v{v}",
             f"v_exp_f32 v{v}, v{v}", f"v_add_f32 v{v}, 1.0, v{v}", f"v_rcp_f32 v{v}, v{v}", f"v_cvt_pk_bf16_f32 v{v}, v{v}, v{v}",
             f"v_lshlrev_b32 v{v}, 16, v{v}", f"v_lshrrev_b32 v{w}, 5, v0", f"v_lshlrev_b32 v{w}, 2, v{w}"]
    tl, prev = [], None
    for t in tail:
        o = Op(t, "V", [prev] if prev else [])
        tl.append(o)
        prev = o
    return par, tl


def g_step(A, typ, first, cfg):
    lastD = max(i for i, c in enumerate(HT) if c == "D")
    va = [Op(f"v_add_u32 v{V_XR0}, s{S_XRD}, v{V_XL0}", "V", min_gap=lastD + 1),
          Op(f"v_add_u32 v{V_XR1}, s{S_XRD}, v{V_XL1}", "V", min_gap=lastD + 1)]
    va += [Op(f"v_xor_b32 v{V_WR+i}, 0x8000, v{V_WR+i}", "V", min_gap=lastD + 1) for i in range(8)]
    gp, gt = gate_ops() if first else ([], [])
    va = va + gp[:58]
    tch = [Op(f"buffer_load_dword v{V_TCH+1}, v{V_TCH}, {sr(SRD_WS,4)}, s{S_TOFF} offen {cfg.get('tfl','')}", "M"),
           Op(f"buffer_atomic_add v{V_CRT}, v{V_CRT+1}, {sr(SRD_DBG,4)}, 0 offen", "M")]
    ht1 = HT[:59] + "MFM" + HT[62:]
    out, _ = schedule(g_mfmas(typ, 0, first), ht1, g_reads(1, 1), dma_x() + tch, va,
                      {63: ["s_waitcnt vmcnt(10) lgkmcnt(0)", "s_barrier"]}, salu_first=True)
    A.emit_list(out)
    ch = [Op(f"s_add_u32 s{S_XRD}, s{S_XRD}, 32768", "S"), Op(f"s_cmp_ge_u32 s{S_XRD}, {LDS_TOTAL}", "S"),
          Op(f"s_cselect_b32 s{S_XRD}, {LDS_X0}, s{S_XRD}", "S")]
    groups = [[Op(f"s_add_u32 s{S_PHASE}, s{S_PHASE}, 1", "S"), Op(f"s_mov_b32 s{SRD_WS+2}, 0", "S")]]
    for when, base, size, off in ((f"s{S_TAT}", S_TA, f"s{S_TASZ}", S_TAOFF),
                                  (cfg.get("warm_at", 13), S_PC, "LM_END-LM_PC", S_TOFF2)):
        groups.append([Op(f"s_cmp_eq_u32 s{S_PHASE}, {when}", "S"),
                       Op(f"s_cselect_b64 {sr(SRD_WS,2)}, {sr(base,2)}, {sr(SRD_WS,2)}", "S"),
                       Op(f"s_cselect_b32 s{SRD_WS+2}, {size}, s{SRD_WS+2}", "S"),
                       Op(f"s_cselect_b32 s{S_TOFF}, s{off}, s{S_TOFF}", "S")])
    groups.append([Op(f"s_cmp_eq_u32 s{S_PHASE}, s{S_CSTEP}", "S"), Op(f"s_cselect_b32 s{SRD_DBG+2}, 256, 0", "S")])
    if first:
        groups = groups[:1]
    merged = []
    for o in dma_w():
        merged.append(o)
        if o.kind == "M" and groups:
            merged += groups.pop(0)
    assert not groups
    ch = ch + merged + [Op(f"s_sub_u32 s{S_LEFT}, s{S_LEFT}, 1", "S"), Op(f"s_cmp_lg_u32 s{S_LEFT}, 0", "S")]
    for o in gp[:58]:
        o.gap = -1
    if gt:
        gt[0].deps = [gp[-1]]
    out, _ = schedule(g_mfmas(typ, 1, False), HT, g_reads(0, 0), ch, gp[58:] + gt, {63: ["s_waitcnt lgkmcnt(0)"]}, salu_first=True)
    A.emit_list(out)
    if cfg.get("gdiag"):
        A("s_memtime s[100:101]")
        A("s_memrealtime s[98:99]")
        A(f"s_mov_b32 m0, s{S_W12}")
        A("s_waitcnt lgkmcnt(0)")
        A("v_writelane_b32 v240, s100, m0")
        A("v_writelane_b32 v241, s98, m0")
        A(f"s_addk_i32 s{S_W12}, 1")
        A(f"s_cmp_lg_u32 s{S_LEFT}, 0")
    if first:
        A(f"s_mov_b32 s{SRD_WS+2}, {WS_SIZE}")
        A("s_mov_b32 exec_lo, 1")
        A("s_mov_b32 exec_hi, 1")
        A(f"buffer_store_dword v{V_CV+8}, v{V_CV+9}, {sr(SRD_WS,4)}, s{S_W4} offen sc1")
        A("s_mov_b64 exec, -1")
        A(f"s_mov_b32 s{SRD_WS+2}, 0")


KVFL = "sc1"


def kv_store(c, srd=None):
    srd = SRD_E if srd is None else srd
    ops = []
    if c and c % 4 == 0:
        ops.append(Op(f"s_add_u32 s{S_OB}, s{S_OB}, s{S_OSTA if (c // 4) % 2 == 1 else S_OSTB}", "S"))
    ops.append(Op(f"buffer_store_dwordx4 {vr(V_PK+4*c,4)}, v{V_LANE16}, {sr(srd,4)}, s{S_OB} offen offset:{(c%4)*1024} {KVFL}", "M"))
    return ops


def g_cvt(A, typ, n_early):
    for c in range(32):
        hi, lo = c // 4, c % 4
        if typ == "KQ":
            o, p = hi, lo
            regs = [acc(2 * p, o) + r for r in range(4)] + [acc(2 * p + 1, o) + r for r in range(4)]
        else:
            p, o = hi >> 1, (hi & 1) * 4 + lo
            regs = [acc(o, 2 * p) + r for r in range(4)] + [acc(o, 2 * p + 1) + r for r in range(4)]
        t = V_CV + (c % 2) * 8
        for i, r in enumerate(regs):
            A(f"v_accvgpr_read_b32 v{t+i}, a{r}")
        for i in range(4):
            A(f"v_cvt_pk_bf16_f32 v{V_PK+4*c+i}, v{t+2*i}, v{t+2*i+1}")
        if n_early == 32:
            for o_ in kv_store(c):
                A(o_.text)
        else:
            k0, k1 = (c * n_early) // 32, ((c + 1) * n_early) // 32
            for k in range(k0, k1):
                for o_ in kv_store(k):
                    A(o_.text)


PF = [("v", 64), ("a", 176)]


def pfr(s, off, n):
    k, b = PF[s]
    return vr(b + off, n, k)


def p_mfmas(s, first):
    out = []
    for db in range(8):
        for tb in range(4):
            a = ar((db * 4 + tb) * 4, 4)
            out.append(f"v_mfma_f32_16x16x32_bf16 {a}, {pfr(s,16+4*db,4)}, {pfr(s,4*tb,4)}, {'0' if first else a}")
    for u in range(3):
        for tb in range(4):
            a = ar(128 + (u * 4 + tb) * 4, 4)
            w, x = pfr(s, 48 + 4 * u, 4), pfr(s, 4 * tb, 4)
            out.append(f"v_mfma_f32_16x16x32_bf16 {a}, {w}, {x}, {'0' if first else a}" if u < 2
                       else f"v_mfma_f32_16x16x32_bf16 {a}, {x}, {w}, {'0' if first else a}")
    return out


def p_reads(s, hh):
    out = [f"ds_read_b128 {pfr(s,4*tb,4)}, v{V_XR0+hh} offset:{tb*2048}" for tb in range(4)]
    for b in range(8):
        for e in range(2):
            out.append(f"ds_read_b64_tr_b16 {pfr(s,16+4*b+2*e,2)}, v{V_WR+b} offset:{hh*16384+e*2048}")
    for u in range(3):
        for e in range(2):
            out.append(f"ds_read_b64_tr_b16 {pfr(s,48+4*u+2*e,2)}, v{V_PWR+u} offset:{hh*8192+e*2048}")
    return out


def p_addr(T):
    base = LDS_X0 + (T % 3) * 32768
    return ([f"v_add_u32 v{V_XR0+h}, {base}, v{V_PXL+h}" for h in range(2)] +
            [f"v_add_u32 v{V_PWR+u}, {base}, v{V_PWL+u}" for u in range(3)])


def merge_chain(dmas, stores):
    out = []
    k = 0
    stores = list(stores)
    for o in dmas:
        out.append(o)
        if o.kind == "M":
            k += 1
            if k % 2 == 0 and stores:
                out += stores.pop(0)
    for s in stores:
        out += s
    return out


PT = "DDM" * 13 + "FFFFX"


def p_step(A, T, st1, st2, cfg):
    lastD = max(i for i, c in enumerate(PT) if c == "D")
    last = T == 22
    ch = merge_chain(dma_x() if T + 2 <= 22 else [], [kv_store(c) for c in st1])
    n_young = sum(1 for o in ch if o.kind == "M")
    va = []
    if not last:
        va = [Op(t, "V", min_gap=lastD + 1) for t in p_addr(T + 1)]
        va += [Op(f"v_xor_b32 v{V_WR+i}, 0x8000, v{V_WR+i}", "V", min_gap=lastD + 1) for i in range(8)]
    out, left = schedule(p_mfmas(0, T == 16), PT, p_reads(1, 1), ch, va, {}, strict=False)
    A.emit_list(out)
    emit_left(A, left)
    A(f"s_waitcnt vmcnt({n_young}) lgkmcnt(0)")
    A("s_barrier")
    if T == cfg.get("sig_at", 18):
        assert not st1 and not st2
        signal(A, S_GHEAD, grp=0)
    if last:
        poll_issue(A, S_HEAD, F_KV, 8)
    ch = merge_chain(dma_w() if T + 2 <= 22 else [], [kv_store(c) for c in st2])
    out, left = schedule(p_mfmas(1, False), PT, [] if last else p_reads(0, 0), ch, [], {}, strict=False)
    A.emit_list(out)
    emit_left(A, left)
    A("s_waitcnt lgkmcnt(0)")


def p_epilogue_a(A):
    gi = 0
    for tb in range(4):
        t = 64 + gi * 12
        gi += 1
        lo, hi = 128 + tb * 4, 128 + (4 + tb) * 4
        for r in range(4):
            A(f"v_accvgpr_read_b32 v{t+r}, a{lo+r}")
            A(f"v_accvgpr_read_b32 v{t+4+r}, a{hi+r}")
        for r in range(4):
            A(f"v_mul_f32 v{t+r}, s{S_SCA}, v{t+r}")
            A(f"v_mul_f32 v{t+4+r}, v{V_SCHI}, v{t+4+r}")
        for i in range(4):
            A(f"v_cvt_pk_bf16_f32 v{t+8+i}, v{t+2*i}, v{t+2*i+1}")
        A(f"buffer_store_dwordx4 {vr(t+8,4)}, v{V_OA}, {sr(SRD_WS,4)}, s{S_OBQK} offen offset:{(tb>>1)*2048+(tb&1)*128} sc1")
    for p in range(2):
        t = 128 + p * 12
        lo, hi = 128 + (8 + 2 * p) * 4, 128 + (8 + 2 * p + 1) * 4
        for r in range(4):
            A(f"v_accvgpr_read_b32 v{t+r}, a{lo+r}")
            A(f"v_accvgpr_read_b32 v{t+4+r}, a{hi+r}")
        for r in range(8):
            A(f"v_fma_f32 v{t+r}, v{t+r}, v{V_MULHI}, v{V_ADDHI}")
        for i in range(4):
            A(f"v_cvt_pk_bf16_f32 v{t+8+i}, v{t+2*i}, v{t+2*i+1}")
        A(f"buffer_store_dwordx4 {vr(t+8,4)}, v{V_OAV}, {sr(SRD_WS,4)}, s{S_OBV} offen offset:{p*2048} sc1")


def p_epilogue_q(A):
    gi = 0
    for tb in range(4):
        for p in range(4):
            t = 160 + (gi % 8) * 12
            gi += 1
            lo, hi = ((2 * p) * 4 + tb) * 4, ((2 * p + 1) * 4 + tb) * 4
            for r in range(4):
                A(f"v_accvgpr_read_b32 v{t+r}, a{lo+r}")
                A(f"v_accvgpr_read_b32 v{t+4+r}, a{hi+r}")
            for r in range(0, 8, 2):
                A(f"v_pk_mul_f32 {vr(t+r,2)}, {vr(t+r,2)}, {sr(S_SC,2)}")
            for i in range(4):
                A(f"v_cvt_pk_bf16_f32 v{t+8+i}, v{t+2*i}, v{t+2*i+1}")
            A(f"ds_write_b128 v{V_XQW}, {vr(t+8,4)} offset:{tb*8192+p*1024}")


def s_reg(buf, kb, qb):
    return VS[buf] + (kb * 2 + qb) * 4


def c_reg(kb, qb):
    return VC + (kb * 2 + qb) * 4


def o_reg(db, qb):
    return VO + (db * 2 + qb) * 4


def qk_mfmas(buf, qs=(0, 1)):
    out = []
    for dg in range(8):
        for kb in range(2):
            for qb in qs:
                d = vr(s_reg(buf, kb, qb), 4)
                c = vr(c_reg(kb, qb), 4) if dg == 0 else d
                out.append(f"v_mfma_f32_16x16x32_bf16 {d}, {ar(AK+(kb*8+dg)*4,4)}, {ar(AQ+(qb*8+dg)*4,4)}, {c}")
    return out


def pv_mfmas(pbuf, qs=(0, 1)):
    out = []
    for db in range(16):
        for qb in qs:
            d = vr(o_reg(db, qb), 4)
            out.append(f"v_mfma_f32_16x16x32_bf16 {d}, {ar(AV+db*4,4)}, {vr(VP[pbuf]+qb*4,4)}, {d}")
    return out


def k_reads(vbase, off):
    return [f"ds_read_b128 {ar(AK+(kb*8+dg)*4,4)}, v{vbase} offset:{off+(kb*8+dg)*1024}"
            for dg in range(8) for kb in range(2)]


def v_reads(vbase, off):
    return [f"ds_read_b128 {ar(AV+db*4,4)}, v{vbase} offset:{off+db*1024}" for db in range(16)]


def softmax_oplist(buf, pbuf, with_l=(0, 1), qs=(0, 1)):
    ops = []
    ladd = {qb: Op(f"v_add_f32 v{V_L+qb}, v{V_L+qb}, v{V_LT+qb}", "V") for qb in with_l}
    ops += list(ladd.values())
    lastsum = []
    for qb in qs:
        prev = None
        for kb in range(2):
            s = s_reg(buf, kb, qb)
            e = VE + (kb * 2 + qb) * 4
            ex = [Op(f"v_exp_f32 v{e+r}, v{s+r}", "E") for r in range(4)]
            ops += ex
            ops.append(Op(f"v_cvt_pk_bf16_f32 v{VP[pbuf]+qb*4+kb*2}, v{e}, v{e+1}", "V", [ex[0], ex[1]]))
            ops.append(Op(f"v_cvt_pk_bf16_f32 v{VP[pbuf]+qb*4+kb*2+1}, v{e+2}, v{e+3}", "V", [ex[2], ex[3]]))
            if kb == 0:
                prev = Op(f"v_add_f32 v{V_LT+qb}, v{e}, v{e+1}", "V", [ex[0], ex[1]] + ([ladd[qb]] if qb in ladd else []))
                ops.append(prev)
                rest = [2, 3]
            else:
                rest = [0, 1, 2, 3]
            for r in rest:
                prev = Op(f"v_add_f32 v{V_LT+qb}, v{V_LT+qb}, v{e+r}", "V", [ex[r], prev])
                ops.append(prev)
        lastsum.append(prev)
    if len(qs) == 2:
        mx = Op(f"v_max_f32 v{V_T+8}, v{V_LT}, v{V_LT+1}", "V", lastsum)
        ops.append(mx)
        ops.append(Op(f"v_cmp_ngt_f32 vcc, 2.0, v{V_T+8}", "V", [mx]))
    else:
        ops.append(Op(f"v_cmp_ngt_f32 vcc, 2.0, v{V_LT+qs[0]}", "V", lastsum))
    return ops


def softmax_linear(buf, pbuf):
    ops = softmax_oplist(buf, pbuf, with_l=())
    return [o.text for o in ops if o.kind == "E"] + ["s_nop 0"] + [o.text for o in ops if o.kind == "V"]


def kv_dma(soff, i):
    return Op(f"buffer_load_dwordx4 v{V_DKV}, {sr(SRD_WS,4)}, s{soff} offen offset:{i*1024} sc1 lds", "M")


def dma_chain(kdst, vdst, vmin):
    c = [Op(f"s_cmp_lt_u32 s{S_KOFF}, s{S_KLIM}", "S"), Op(f"s_cselect_b32 s{S_TMP}, s{S_KOFF}, s{S_HUGE}", "S"),
         Op(kdst, "S"), Op(f"s_add_u32 s{S_KOFF}, s{S_KOFF}, 16384", "S")]
    c += [kv_dma(S_TMP, i) for i in range(4)]
    c += [Op(f"s_cmp_lt_u32 s{S_VOFF}, s{S_VLIM}", "S", min_gap=vmin),
          Op(f"s_cselect_b32 s{S_TMP+1}, s{S_VOFF}, s{S_HUGE}", "S"),
          Op(vdst, "S"), Op(f"s_add_u32 s{S_VOFF}, s{S_VOFF}, 16384", "S")]
    c += [kv_dma(S_TMP + 1, i) for i in range(4)]
    return c


def kv_tile_chain(which, stage):
    off = S_KOFF if which == "K" else S_VOFF
    c = [Op(f"s_add_u32 m0, s{S_B0}, {stage*32768 + (0 if which == 'K' else 16384)}", "S")]
    c += [kv_dma(off, i) for i in range(4)]
    c.append(Op(f"s_add_u32 s{off}, s{off}, 16384", "S"))
    return c


def c_mask_ops(slot, kexpr):
    b = S_WAVE if slot == 0 else S_BL1
    sal, val = [], []
    for kb in range(2):
        sa, sm_ = S_TMP + 4 + 2 * kb, S_TMP + 5 + 2 * kb
        sal += [f"s_cmp_gt_u32 {kexpr(kb)}, s{b}", f"s_cselect_b32 s{sa}, {NEG_INF:#x}, 0",
                f"s_cmp_eq_u32 {kexpr(kb)}, s{b}", f"s_cselect_b32 s{sm_}, -1, 0"]
        t = V_T + 9 + kb
        val.append(f"v_add_f32 v{t}, s{sa}, v{V_CB+slot}")
        for r in range(4):
            val.append(f"v_and_b32 v{c_reg(kb,slot)+r}, s{sm_}, v{V_DM+r}")
        for r in range(4):
            val.append(f"v_add_f32 v{c_reg(kb,slot)+r}, v{c_reg(kb,slot)+r}, v{t}")
    return sal, val


def c_update(A, tile_sgpr):
    lool, lback = A.newlabel("LC"), A.newlabel("LC")
    T = S_TMP + 2
    o = [f"{lool}:", f"s_sub_u32 s{T}, s{tile_sgpr}, s{S_TW}", f"s_lshl_b32 s{T}, s{T}, 1", f"s_add_u32 s{T+1}, s{T}, 1"]
    sal, val = c_mask_ops(0, lambda kb: f"s{T+kb}")
    o += sal + val + [f"s_branch {lback}"]
    OOL.append(o)
    return [f"s_cmp_ge_u32 s{tile_sgpr}, s{S_TW}", f"s_cbranch_scc1 {lool}\n{lback}:"]


def rare_check(A, sb, pref="LB_RARE", half=False):
    lool, lback = A.newlabel("LR"), A.newlabel("LR")
    pre = []
    if half:
        pre = [f"v_mov_b32 v{s_reg(sb,kb,0)+r}, {NEG_INF:#x}" for kb in range(2) for r in range(4)]
    OOL.append([f"{lool}:"] + pre + [f"s_call_b64 {sr(S_RET,2)}, {pref}{sb}", f"s_branch {lback}"])
    return f"s_cbranch_vccnz {lool}\n{lback}:"


PH = "DDE" * 8 + "MEMEMEMX"


def b_iter(A, par, cfg, mode="full", last=None):
    pb_cur, pb_nxt = par, 1 - par
    sb_sm, sb_qk = 1 - par, par
    both, one = (0, 1), (1,)
    pv_q = both if mode in ("full", "t4", "t3") else one
    sm_q = {"full": both, "t4": both, "t3": one, "t2": one, "t1": ()}[mode]
    l_q = pv_q
    qk_q = {"full": both, "t4": one, "t3": one}.get(mode, ())
    if mode in ("t4", "t3"):
        A.emit_list(c_mask_ops(1, lambda kb: str((4 if mode == "t4" else 6) + kb))[0])
    A({"full": "s_waitcnt vmcnt(16) lgkmcnt(0)", "t4": "s_waitcnt vmcnt(16) lgkmcnt(0)", "t3": "s_waitcnt vmcnt(8) lgkmcnt(0)",
       "t2": "s_waitcnt vmcnt(8) lgkmcnt(0)", "t1": "s_waitcnt lgkmcnt(0)"}[mode])
    A("s_barrier")
    if sm_q:
        sm = softmax_oplist(sb_sm, pb_nxt, l_q, sm_q)
        for o in sm:
            if o.kind == "E":
                o.min_gap = 2
    else:
        sm = [Op(f"v_add_f32 v{V_L+qb}, v{V_L+qb}, v{V_LT+qb}", "V") for qb in l_q]
    vrd = v_reads(V_RB0 if par == 0 else V_RB1, 49152 if par == 0 else 16384)
    flip = [Op(f"v_xor_b32 v{V_RB0}, 0x10000, v{V_RB0}", "V"), Op(f"v_xor_b32 v{V_RB1}, 0x10000, v{V_RB1}", "V")]
    if qk_q:
        m = pv_mfmas(pb_cur) + qk_mfmas(sb_qk, qk_q)
        ds = k_reads(V_RB1, 0 if par == 0 else 32768) + vrd
        if mode == "full":
            cu = c_update(A, S_T2)
            chain = [Op(cu[0], "S"), Op(cu[1], "S"), Op(f"s_add_u32 s{S_T2}, s{S_T2}, 1", "S")]
        else:
            k0 = 4 if mode == "t4" else 6
            sal, val = c_mask_ops(1, lambda kb: str(k0 + kb))
            chain = []
            cops = []
            for kb in range(2):
                v = val[9 * kb:9 * kb + 9]
                t = Op(v[0], "V", min_gap=1)
                ands = [Op(x, "V", min_gap=1) for x in v[1:5]]
                adds = [Op(x, "V", [t, a]) for x, a in zip(v[5:9], ands)]
                cops += [t] + ands + adds
            sm = cops + sm
        if mode == "full":
            if par == 0:
                chain += dma_chain(f"s_add_u32 m0, s{S_B0}, 32768", f"s_add_u32 m0, s{S_B0}, 16384", 31)
            else:
                chain += dma_chain(f"s_xor_b32 m0, s{S_B0}, 65536", f"s_add_u32 m0, s{S_B0}, 49152", 31)
                for f in flip:
                    f.min_gap = 56
                sm += flip
                chain[-4:-4] = [Op(f"s_xor_b32 s{S_B0}, s{S_B0}, 65536", "S"), Op(f"s_sub_u32 s{S_LEFT}, s{S_LEFT}, 1", "S")]
            fixed = {31: ["s_waitcnt lgkmcnt(0)"], 63: [rare_check(A, sb_sm)]}
            out, left = schedule(m, PH + PH, ds, chain, sm, fixed)
            A.emit_list(out)
            return
        tmpl = "DDF" * 2 + "DDE" * 6 + "EEEEEEEX" + "D" * 16
        if mode == "t3" and last:
            tmpl = "DDF" * 2 + "DDE" * 6 + "EEMMMMMX" + "D" * 16
            chain += last
        out, left = schedule(m, tmpl, ds, chain, sm, {31: ["s_waitcnt lgkmcnt(0)"]}, strict=False)
        assert all(o.gap is not None and o.gap < 30 for o in cops), [o.gap for o in cops]
        A.emit_list(out)
        A("s_nop 0")
        emit_left(A, left)
        if par == 1:
            A.emit_list([f.text for f in flip])
        A(rare_check(A, sb_sm, half=(len(sm_q) == 1)))
        return
    m = pv_mfmas(pb_cur, one)
    if mode == "t2":
        out, left = schedule(m, "EEEEEEEE" + "EEDDDDDD", vrd, [], sm, {}, strict=False)
        A.emit_list(out)
        A("s_nop 0")
        emit_left(A, left)
        A(rare_check(A, sb_sm, half=True))
    else:
        out, left = schedule(m, "E" + "M" * 15, [], last, sm, {}, strict=False)
        A.emit_list(out)
        emit_left(A, left)


def xquad(A, op, v, t):
    A(f"v_mov_b32 v{t}, v{v}")
    A("s_nop 1")
    A(f"v_permlane32_swap_b32 v{t}, v{v}")
    A("s_nop 1")
    A(f"{op} v{v}, v{v}, v{t}")
    A(f"v_mov_b32 v{t}, v{v}")
    A("s_nop 1")
    A(f"v_permlane16_swap_b32 v{t}, v{v}")
    A("s_nop 1")
    A(f"{op} v{v}, v{v}, v{t}")


def b_rare(A, sb):
    A.label(f"LB_RARE{sb}")
    A("s_nop 7")
    A("s_nop 7")
    so = 1 - sb
    for qb in range(2):
        d = V_T + qb
        a, b = s_reg(sb, 0, qb), s_reg(sb, 1, qb)
        A(f"v_max3_f32 v{d}, v{a}, v{a+1}, v{a+2}")
        A(f"v_max3_f32 v{d}, v{d}, v{a+3}, v{b}")
        A(f"v_max3_f32 v{d}, v{d}, v{b+1}, v{b+2}")
        A(f"v_max_f32 v{d}, v{d}, v{b+3}")
        xquad(A, "v_max_f32", d, V_T + 4)
        A(f"v_add_f32 v{d}, {f32bits(BIAS):#x}, v{d}")
        A(f"v_max_f32 v{d}, s{S_FLOOR}, v{d}")
        A(f"v_max_f32 v{V_T+2+qb}, 0, v{d}")
        A(f"v_exp_f32 v{V_T+2+qb}, -v{V_T+2+qb}")
        for kb in range(2):
            for r in range(4):
                A(f"v_sub_f32 v{s_reg(sb,kb,qb)+r}, v{s_reg(sb,kb,qb)+r}, v{d}")
                A(f"v_sub_f32 v{s_reg(so,kb,qb)+r}, v{s_reg(so,kb,qb)+r}, v{d}")
                A(f"v_sub_f32 v{c_reg(kb,qb)+r}, v{c_reg(kb,qb)+r}, v{d}")
        A(f"v_sub_f32 v{V_CB+qb}, v{V_CB+qb}, v{d}")
        A(f"v_mul_f32 v{V_L+qb}, v{V_L+qb}, v{V_T+2+qb}")
    lskip = A.newlabel("LRS")
    A(f"s_cmp_eq_u32 s{S_FIRST}, 1")
    A(f"s_cbranch_scc1 {lskip}")
    for db in range(16):
        for qb in range(2):
            for r in range(4):
                A(f"v_mul_f32 v{o_reg(db,qb)+r}, v{o_reg(db,qb)+r}, v{V_T+2+qb}")
    A.label(lskip)
    A(f"s_mov_b32 s{S_FIRST}, 0")
    A(f"s_mov_b32 s{S_FLOOR}, 0")
    for o in softmax_linear(sb, sb):
        A(o)
    A("s_nop 1")
    A(f"s_setpc_b64 {sr(S_RET,2)}")


WO_SLOT = [4, 0, 1, 2, 3, 4, 0, 1]
VF = 128
VCTX = 64


def wo_chain(chunk, slot):
    c = [Op(f"s_add_u32 s{S_TMP+2}, s{S_WOOFF}, {chunk*32*896}", "S"), Op(f"s_add_u32 m0, s{S_WOW}, {slot*32768}", "S")]
    for i in range(7):
        if i == 4:
            c.append(Op("s_add_u32 m0, m0, 4096", "S"))
        c.append(Op(f"buffer_load_dwordx4 v{V_WOD+i}, {sr(SRD_B,4)}, s{S_TMP+2} offen offset:{(i%4)*1024} lds", "M"))
    return c


def wo_reads(half, fset):
    out = []
    for i in range(14):
        b = 14 * half + i
        f = VF + (fset * 14 + i) * 4
        for e in range(2):
            out.append(f"ds_read_b64_tr_b16 {vr(f+2*e,2)}, v{V_WOR+(b&3)} offset:{(b>>2)*128+e*16*896}")
    return out


def wo_mfmas(half, fset, dg):
    out = []
    for i in range(14):
        b = 14 * half + i
        f = VF + (fset * 14 + i) * 4
        for qb in range(2):
            a = (b * 2 + qb) * 4
            c = "0" if dg == 0 else ar(a, 4)
            out.append(f"v_mfma_f32_16x16x32_bf16 {ar(a,4)}, {vr(f,4)}, {vr(VCTX+(dg*2+qb)*4,4)}, {c}")
    return out


def b_epilogue(A, cfg):
    A("s_nop 7")
    for qb in range(2):
        xquad(A, "v_add_f32", V_L + qb, V_T + 4)
        A(f"v_rcp_f32 v{V_T+2*qb}, v{V_L+qb}")
        A("s_nop 0")
        A(f"v_mov_b32 v{V_T+2*qb+1}, v{V_T+2*qb}")
    for dg in range(8):
        for qb in range(2):
            for a in range(2):
                o = o_reg(2 * dg + a, qb)
                A(f"v_pk_mul_f32 {vr(o,2)}, {vr(o,2)}, {vr(V_T+2*qb,2)}")
                A(f"v_pk_mul_f32 {vr(o+2,2)}, {vr(o+2,2)}, {vr(V_T+2*qb,2)}")
            for a in range(2):
                o = o_reg(2 * dg + a, qb)
                c = VCTX + (dg * 2 + qb) * 4 + 2 * a
                A(f"v_cvt_pk_bf16_f32 v{c}, v{o}, v{o+1}")
                A(f"v_cvt_pk_bf16_f32 v{c+1}, v{o+2}, v{o+3}")
    A("s_waitcnt vmcnt(28)")
    A("s_barrier")
    A.emit_list(wo_reads(0, 0))
    poll_test(A)
    A(f"s_cselect_b32 s{S_AQOK}, 1, 0")
    W = {6: ["s_waitcnt lgkmcnt(14)"], 13: ["s_waitcnt lgkmcnt(14)"], 20: ["s_waitcnt lgkmcnt(14)"]}
    A("s_waitcnt lgkmcnt(0)")
    for dg in range(8):
        out, _ = schedule(wo_mfmas(0, 0, dg), "D" * 28, wo_reads(1, 1), [], [], W)
        A.emit_list(out)
        if dg < 7:
            delta = (WO_SLOT[dg + 1] - WO_SLOT[dg]) * 32768
            for i in range(4):
                A(f"v_add_u32 v{V_WOR+i}, {delta & 0xffffffff:#x}, v{V_WOR+i}")
            issued = min(7, max(4, dg + 3))
            young = max(0, issued - (dg + 1))
            A(f"s_waitcnt vmcnt({7*young}) lgkmcnt(14)")
            A("s_barrier")
            ch = wo_chain(dg + 4, WO_SLOT[dg + 4]) if 5 <= dg + 4 <= 7 else []
            emit_chain(A, ch)
            out, _ = schedule(wo_mfmas(1, 1, dg), "D" * 28, wo_reads(0, 0), [], [], W)
            A.emit_list(out)
            A("s_waitcnt lgkmcnt(14)")
        else:
            A("s_waitcnt lgkmcnt(14)")
            m = wo_mfmas(1, 1, dg)
            A.emit_list(m[:12])
            A("s_waitcnt lgkmcnt(0)")
            A.emit_list(m[12:])
    store_partials(A, 2, cfg)


def store_partials(A, nqb, cfg):
    fl = "sc1"
    pop_issue(A)
    A("s_nop 7")
    gi = 0
    for qb in range(nqb):
        for p in range(14):
            t = 128 + (gi % 8) * 12
            gi += 1
            regs = [((2 * p) * nqb + qb) * 4 + r for r in range(4)] + [((2 * p + 1) * nqb + qb) * 4 + r for r in range(4)]
            for i, r in enumerate(regs):
                A(f"v_accvgpr_read_b32 v{t+i}, a{r}")
            for i in range(4):
                A(f"v_cvt_pk_bf16_f32 v{t+8+i}, v{t+2*i}, v{t+2*i+1}")
            off = p * 1024
            if off % 4096 == 0:
                A(f"s_add_u32 s{S_TMP}, s{S_POFF if qb == 0 else S_POFF1}, {off}")
            A(f"buffer_store_dwordx4 {vr(t+8,4)}, v{V_LANE16}, {sr(SRD_WS,4)}, s{S_TMP} offen offset:{off%4096} {fl}")


def wo_lane_setup(A):
    T = V_T
    for i in range(7):
        A(f"v_add_u32 v{T}, {64*i}, v0")
        A(f"v_mul_u32_u24 v{T+1}, 1171, v{T}")
        A(f"v_lshrrev_b32 v{T+1}, 16, v{T+1}")
        A(f"v_mul_u32_u24 v{T+2}, 56, v{T+1}")
        A(f"v_sub_u32 v{T+2}, v{T}, v{T+2}")
        A(f"v_bfe_u32 v{T+3}, v{T+1}, 1, 2")
        A(f"v_lshlrev_b32 v{T+3}, 1, v{T+3}")
        A(f"v_xor_b32 v{T+2}, v{T+2}, v{T+3}")
        A(f"v_mul_u32_u24 v{T+1}, 896, v{T+1}")
        A(f"v_lshl_add_u32 v{T+1}, v{T+2}, 4, v{T+1}")
        A(f"v_subrev_u32 v{V_WOD+i}, {(i%4)*1024}, v{T+1}")


def b_setup_kv(A):
    T = S_TMP
    A(f"s_lshl_b32 s{S_TW}, s{S_QB}, 2")
    A(f"s_add_u32 s{S_N}, s{S_TW}, 4")
    A(f"s_lshl_b32 s{S_KOFF}, s{S_HEAD}, 20")
    A(f"s_add_u32 s{S_VOFF}, s{S_KOFF}, {WS_V}")
    A(f"s_lshl_b32 s{T}, s{S_N}, 14")
    A(f"s_add_u32 s{S_KLIM}, s{S_KOFF}, s{T}")
    A(f"s_add_u32 s{S_VLIM}, s{S_VOFF}, s{T}")
    A(f"s_lshl_b32 s{S_B0}, s{S_WAVE}, 12")
    A(f"v_add_u32 v{V_DKV}, s{S_B0}, v{V_LANE16}")
    A(f"s_mov_b32 s{S_SC}, {f32bits(SCALE_B):#x}")
    A(f"s_mov_b32 s{S_SC+1}, {f32bits(SCALE_B):#x}")


def b_setup_rest(A):
    T = S_TMP
    set_srd(A, SRD_B, P_WOB, 4096 * 448 * 2)
    A(f"v_and_b32 v{V_T}, 15, v0")
    A(f"v_lshrrev_b32 v{V_T+1}, 4, v0")
    A(f"v_lshlrev_b32 v{V_T+2}, 2, v{V_T+1}")
    A(f"v_mov_b32 v{V_T+4}, {NEG_INF:#x}")
    for r in range(4):
        A(f"v_add_u32 v{V_T+3}, {r}, v{V_T+2}")
        A(f"v_cmp_gt_u32 vcc, v{V_T+3}, v{V_T}")
        A("s_nop 1")
        A(f"v_cndmask_b32 v{V_DM+r}, 0, v{V_T+4}, vcc")
    A(f"v_bfe_u32 v{V_T+3}, v0, 2, 2")
    A(f"v_add_u32 v{V_T+3}, v{V_T+3}, v{V_T+2}")
    A(f"v_bfe_u32 v{V_T+5}, v{V_T+3}, 1, 2")
    A(f"v_mul_u32_u24 v{V_T+3}, 896, v{V_T+3}")
    A(f"v_and_b32 v{V_T+6}, 3, v0")
    A(f"v_lshl_add_u32 v{V_T+3}, v{V_T+6}, 3, v{V_T+3}")
    A(f"v_add_u32 v{V_T+3}, {WO_SLOT[0]*32768}, v{V_T+3}")
    for b in range(4):
        A(f"v_xor_b32 v{V_T+6}, {b}, v{V_T+5}")
        A(f"v_lshl_add_u32 v{V_WOR+b}, v{V_T+6}, 5, v{V_T+3}")
    wo_lane_setup(A)
    A(f"s_mul_i32 s{S_WOOFF}, s{S_HEAD}, {256*896}")
    A(f"s_mul_i32 s{S_WOW}, s{S_WAVE}, {8*896}")
    A(f"s_add_u32 s{S_WOOFF}, s{S_WOOFF}, s{S_WOW}")
    A(f"s_add_u32 s{S_POFF}, s{S_HEAD}, 4")
    A(f"s_mul_i32 s{S_POFF}, s{S_POFF}, {P_SLOT}")
    A(f"s_mul_i32 s{T}, s{S_QB}, {8*14*1024}")
    A(f"s_add_u32 s{S_POFF}, s{S_POFF}, s{T}")
    A(f"s_add_u32 s{S_POFF}, s{S_POFF}, {WS_P}")
    A(f"s_sub_u32 s{S_BL1}, 7, s{S_WAVE}")
    A(f"s_mul_i32 s{T}, s{S_BL1}, {14*1024}")
    A(f"s_add_u32 s{S_POFF1}, s{S_POFF}, s{T}")
    A(f"s_mul_i32 s{T}, s{S_WAVE}, {14*1024}")
    A(f"s_add_u32 s{S_POFF}, s{S_POFF}, s{T}")
    A(f"s_lshl_b32 s{T}, s{S_BL1}, 13")
    A(f"s_add_u32 s{T}, s{T}, {XQ}")
    A(f"v_add_u32 v{V_XQW}, s{T}, v{V_LANE16}")
    A(f"s_lshl_b32 s{S_RFLAG}, s{S_QB}, 8")
    A(f"s_lshl_b32 s{T}, s{S_HEAD}, 2")
    A(f"s_add_u32 s{S_RFLAG}, s{S_RFLAG}, s{T}")
    A(f"s_add_u32 s{S_RFLAG}, s{S_RFLAG}, {F_ROW}")
    A(f"s_mov_b32 s{S_RMASK}, 1")
    A(f"s_mov_b32 s{S_HUGE}, {HUGE}")
    A(f"s_mov_b32 s{S_FLOOR}, {NEG_INF:#x}")
    A(f"s_mov_b32 s{S_FIRST}, 1")
    for r in range(16):
        A(f"v_mov_b32 v{VC+r}, 0")
    for r in (V_CB, V_CB + 1, V_L, V_L + 1, V_LT, V_LT + 1):
        A(f"v_mov_b32 v{r}, 0")
    A(f"v_mov_b32 v{V_RB0}, v{V_LANE16}")
    A(f"v_add_u32 v{V_RB1}, 0x10000, v{V_LANE16}")
    A(f"s_mov_b32 s{S_T2}, 0")
    A.emit_list(c_update(A, S_T2))


def b_main(A, cfg):
    T = S_TMP
    A("s_waitcnt vmcnt(12) lgkmcnt(0)")
    A("s_barrier")
    if not cfg.get("stamp_lp"):
        stamp(A, cfg, 3)
    for i in range(16):
        A(f"ds_read_b128 {ar(AQ+i*4,4)}, v{V_XQR if i < 8 else V_XQW} offset:{(i%8)*1024}")
    A.emit_list(k_reads(V_RB0, 0))
    zero = [Op(f"v_mov_b32 v{VO+r}, 0", "V") for r in range(128)]
    for z in zero[:24]:
        A(z.text)
    A("s_waitcnt lgkmcnt(0)")
    out, left = schedule(qk_mfmas(0), "DF" * 16, v_reads(V_RB0, 16384), [], zero[24:72], {})
    A.emit_list(out)
    A.emit_list(k_reads(V_RB0, 32768))
    A(f"s_mov_b32 s{S_T2}, 1")
    A.emit_list(c_update(A, S_T2))
    A("s_waitcnt vmcnt(0) lgkmcnt(0)")
    A("s_barrier")
    A(f"s_lshl_b32 s{T+4}, s{S_HEAD}, 6")
    A(f"s_lshl_b32 s{T+5}, s{S_QB}, 2")
    A(f"s_add_u32 s{T+4}, s{T+4}, s{T+5}")
    A(f"s_add_u32 s{T+4}, s{T+4}, {F_AQ}")
    signal(A, T + 4)
    signal(A, S_GHEAD, grp=1)
    ch = kv_tile_chain("K", 3) + kv_tile_chain("V", 3)
    ch += [Op(f"s_cmp_lt_u32 s{S_KOFF}, s{S_KLIM}", "S"), Op(f"s_cselect_b32 s{T}, s{S_KOFF}, s{S_HUGE}", "S"),
           Op(f"s_mov_b32 m0, s{S_B0}", "S"), Op(f"s_add_u32 s{S_KOFF}, s{S_KOFF}, 16384", "S")]
    ch += [kv_dma(T, i) for i in range(4)]
    out, left = schedule(qk_mfmas(1), "FM" * 16, [], ch, zero[72:], {}, strict=False)
    A.emit_list(out)
    emit_left(A, left)
    A(f"v_lshlrev_b32 v{V_SIG+1}, 7, v0")
    A(f"buffer_load_dword v{V_SIG}, v{V_SIG+1}, {sr(SRD_B,4)}, s{S_TBOFF} offen")
    A(f"s_call_b64 {sr(S_RET,2)}, LB_RARE0")
    A(f"s_mov_b32 s{S_T2}, 2")
    A(f"s_lshr_b32 s{S_ITEM}, s{S_N}, 1")
    A(f"s_sub_u32 s{S_ITEM}, s{S_ITEM}, 2")
    A(f"s_cmp_ge_u32 s{S_QB}, 8")
    A(f"s_cselect_b32 s{S_LEFT}, 10, s{S_ITEM}")
    A(f"s_cselect_b32 s{S_EV}, 0, 2")
    stamp(A, cfg, 4)
    A(f"s_cmp_eq_u32 s{S_LEFT}, 0")
    A("s_cbranch_scc1 LB_DONE")
    A.label("LB_LOOP")
    b_iter(A, 0, cfg)
    b_iter(A, 1, cfg)
    if cfg.get("bdiag"):
        A("s_memtime s[100:101]")
        A("s_memrealtime s[98:99]")
        A(f"s_lshr_b32 m0, s{S_T2}, 1")
        A("s_waitcnt lgkmcnt(0)")
        A("v_writelane_b32 v28, s100, m0")
        A("v_writelane_b32 v29, s98, m0")
    A(f"s_cmp_lg_u32 s{S_LEFT}, 0")
    A("s_cbranch_scc1 LB_LOOP")
    A(f"s_cmp_eq_u32 s{S_EV}, 2")
    A("s_cbranch_scc1 LB_DONE")
    A(f"s_cmp_eq_u32 s{S_EV}, 1")
    A("s_cbranch_scc1 LB_EV1")
    A(f"s_mov_b32 s{S_EV}, 1")
    A(f"s_mov_b32 s{S_LEFT}, 2")
    poll_issue(A, S_HEAD, F_KV + 4096, 8)
    A("s_branch LB_LOOP")
    A.label("LB_EV1")
    A(f"s_mov_b32 s{S_EV}, 2")
    A(f"s_sub_u32 s{S_LEFT}, s{S_ITEM}, 12")
    poll_test(A)
    A("s_cbranch_scc1 LB_LOOP")
    poll_wait(A, True)
    A("s_branch LB_LOOP")
    A.label("LB_DONE")
    b_iter(A, 0, cfg, "t4")
    A(f"s_and_b32 s{T+1}, s2, 3")
    pi = Asm()
    poll_issue(pi, T + 1, F_AQ, 64)
    pil = [l.strip() for l in pi.lines]
    for l in pil[:-1]:
        A(l)
    b_iter(A, 1, cfg, "t3", last=[Op(pil[-1], "M")] + wo_chain(0, WO_SLOT[0]))
    b_iter(A, 0, cfg, "t2")
    last = []
    for c in range(1, 5):
        last += wo_chain(c, WO_SLOT[c])
    b_iter(A, 1, cfg, "t1", last=last)
    if cfg.get("bdiag"):
        A(f"s_lshl_b32 s{T}, s2, 2")
        A(f"s_add_u32 s{T}, s{T}, s{S_WAVE}")
        A(f"s_lshl_b32 s{T}, s{T}, 9")
        A(f"s_add_u32 s{T}, s{T}, {232 << 20}")
        A(f"v_lshrrev_b32 v27, 2, v{V_LANE16}")
        A(f"buffer_store_dword v28, v27, {sr(SRD_WS,4)}, s{T} offen")
        A(f"buffer_store_dword v29, v27, {sr(SRD_WS,4)}, s{T} offen offset:256")
    stamp(A, cfg, 5)
    b_epilogue(A, cfg)


AS = [64, 96]
AC = 128
AO = 160
AP = [192, 208]
AE = 224
QA_, KA_, VA_ = 0, 16, 48
XB = 114688
V_XW = 2
V_OR = 14


def a_qk(buf, slot):
    out = []
    for qb in range(2):
        d = vr(AS[buf] + qb * 16, 16)
        out.append(f"v_mfma_f32_32x32x16_bf16 {d}, {ar(KA_+slot*8,4)}, {ar(QA_+qb*8,4)}, {vr(AC+qb*16,16)}")
    for qb in range(2):
        d = vr(AS[buf] + qb * 16, 16)
        out.append(f"v_mfma_f32_32x32x16_bf16 {d}, {ar(KA_+slot*8+4,4)}, {ar(QA_+qb*8+4,4)}, {d}")
    return out


def a_pv(pbuf, slot):
    out = []
    for g in range(2):
        for qb in range(2):
            d = vr(AO + qb * 16, 16)
            out.append(f"v_mfma_f32_32x32x16_bf16 {d}, {ar(VA_+slot*8+g*4,4)}, {vr(AP[pbuf]+qb*8+g*4,4)}, {d}")
    return out


A_DELAY = 3


def a_softmax(buf):
    s, p = AS[buf], AP[buf]
    out = []
    pend = []
    for k in range(16):
        pend.append((2 * k + 1 + A_DELAY, f"v_cvt_pk_bf16_f32 v{p+k}, v{AE+((2*k)%16)}, v{AE+((2*k+1)%16)}"))
        if k == 2:
            pend.append((2 * k + 2 + A_DELAY, f"v_or_b32 v{V_OR}, v{p}, v{p+1}"))
        elif k > 2 and k % 2 == 0:
            pend.append((2 * k + 2 + A_DELAY, f"v_or3_b32 v{V_OR}, v{V_OR}, v{p+k-2}, v{p+k-1}"))
    for i in range(32):
        out.append(f"v_exp_f32 v{AE+(i%16)}, v{s+i}")
        if pend and pend[0][0] <= i:
            out.append(pend.pop(0)[1])
    out.extend(t for _, t in pend)
    out.append(f"v_or3_b32 v{V_OR}, v{V_OR}, v{p+14}, v{p+15}")
    out.append(f"v_and_b32 v{V_OR}, s{S_MASK}, v{V_OR}")
    out.append(f"v_cmp_ne_u32 vcc, 0, v{V_OR}")
    return out


def a_loads(kslot, vslot):
    k = [f"buffer_load_dwordx4 {ar(KA_+kslot*8+4*s,4)}, v{V_LANE16}, {sr(SRD_WS,4)}, s{S_KOFF} offen offset:{s*1024} sc1" for s in range(2)]
    k += [f"s_add_u32 s{S_KOFF}, s{S_KOFF}, 2048", f"s_min_u32 s{S_KOFF}, s{S_KOFF}, s{S_KLIM}"]
    v = [f"buffer_load_dwordx4 {ar(VA_+vslot*8+4*s,4)}, v{V_LANE16}, {sr(SRD_WS,4)}, s{S_VOFF} offen offset:{s*1024} sc1" for s in range(2)]
    v += [f"s_add_u32 s{S_VOFF}, s{S_VOFF}, 2048", f"s_min_u32 s{S_VOFF}, s{S_VOFF}, s{S_VLIM}"]
    return k, v


def a_iter(A, u, cfg):
    par = u % 2
    A("s_waitcnt vmcnt(12)")
    sm = a_softmax(par)
    mq, mp = a_qk(1 - par, (u + 1) % 4), a_pv(1 - par, (u - 1) % 4)
    lk, lv = a_loads((u + 1) % 4, (u - 1) % 4)
    n = len(sm)
    ms = mq + mp
    pos = spread(8, -1, n - 8)
    riders = {3: [lk[0]], 4: [lk[1]], 5: [lk[2]], 6: [lk[3]], 7: [lv[0]]}
    sides = []
    for i, (p, m) in enumerate(zip(pos, ms)):
        sides.append((p, [m] + riders.get(i, [])))
    sides.append((n - 4, [lv[1]]))
    sides.append((n - 2, [lv[2]]))
    sides.append((n - 1, [lv[3]]))
    body = interleave(sm, sides)
    if cfg.get("a_noload"):
        body = [b for b in body if not b.startswith("buffer_load")]
    if cfg.get("a_nosc1"):
        body = [b.replace(" sc1", "") for b in body]
    if cfg.get("a_nomfma"):
        body = [b for b in body if not b.startswith("v_mfma")]
    A.emit_list(body)
    A(rare_check(A, par, "LA_RARE"))


def a_rare(A, sb):
    A.label(f"LA_RARE{sb}")
    A("s_nop 7")
    A("s_nop 7")
    so = 1 - sb
    for qb in range(2):
        d, f, t = V_T + qb, V_T + 2 + qb, V_T + 4
        s = AS[sb] + qb * 16
        A(f"v_max3_f32 v{d}, v{s}, v{s+1}, v{s+2}")
        for i in range(3, 15, 2):
            A(f"v_max3_f32 v{d}, v{d}, v{s+i}, v{s+i+1}")
        A(f"v_max_f32 v{d}, v{d}, v{s+15}")
        A(f"v_mov_b32 v{t}, v{d}")
        A("s_nop 1")
        A(f"v_permlane32_swap_b32 v{t}, v{d}")
        A("s_nop 1")
        A(f"v_max_f32 v{d}, v{d}, v{t}")
        A(f"v_add_f32 v{d}, {f32bits(BIAS):#x}, v{d}")
        A(f"v_max_f32 v{d}, s{S_FLOOR}, v{d}")
        A(f"v_max_f32 v{f}, 0, v{d}")
        A(f"v_exp_f32 v{f}, -v{f}")
        for r in range(16):
            A(f"v_sub_f32 v{s+r}, v{s+r}, v{d}")
            A(f"v_sub_f32 v{AS[so]+qb*16+r}, v{AS[so]+qb*16+r}, v{d}")
            A(f"v_sub_f32 v{AC+qb*16+r}, v{AC+qb*16+r}, v{d}")
            A(f"v_mul_f32 v{AO+qb*16+r}, v{AO+qb*16+r}, v{f}")
    A(f"s_mov_b32 s{S_FLOOR}, 0")
    lskip = A.newlabel("LAS")
    A(f"s_cmp_eq_u32 s{S_FIRST}, 1")
    A(f"s_mov_b32 s{S_FIRST}, 0")
    A(f"s_cbranch_scc1 {lskip}")
    for o in a_softmax(sb):
        A(o)
    A.label(lskip)
    A("s_nop 1")
    A(f"s_setpc_b64 {sr(S_RET,2)}")


def a_counts(cfg):
    nf, nh = cfg.get("nf", 12), cfg.get("nh", 2)
    nq = 16 - nf - nh
    return nf, nh, nq, nf + 2 * nh + 4 * nq


def a_item(A, cfg):
    T = S_TMP
    stamp(A, cfg, 0)
    A(f"s_and_b32 s{T+1}, s2, 3")
    lq = A.newlabel("LAQ")
    A(f"s_cmp_eq_u32 s{S_AQOK}, 1")
    A(f"s_cbranch_scc1 {lq}")
    poll_issue(A, T + 1, F_AQ, 64)
    poll_wait(A)
    A(f"s_mov_b32 s{S_AQOK}, 1")
    A.label(lq)
    NF, NH, NQ, NA = a_counts(cfg)
    SP = S_N
    A(f"s_cmp_ge_u32 s{S_ITEM}, {NF}")
    A(f"s_cselect_b32 s{SP}, 1, 0")
    A(f"s_cselect_b32 s{T+2}, {NF}, 0")
    A(f"s_cselect_b32 s{T+3}, {NF}, 0")
    A(f"s_cmp_ge_u32 s{S_ITEM}, {NF + 2*NH}")
    A(f"s_cselect_b32 s{SP}, 2, s{SP}")
    A(f"s_cselect_b32 s{T+2}, {NF + 2*NH}, s{T+2}")
    A(f"s_cselect_b32 s{T+3}, {NF + NH}, s{T+3}")
    A(f"s_sub_u32 s{T+2}, s{S_ITEM}, s{T+2}")
    A(f"s_lshl_b32 s{T+5}, 1, s{SP}")
    A(f"s_sub_u32 s{T+5}, s{T+5}, 1")
    A(f"s_and_b32 s{T+6}, s{T+2}, s{T+5}")
    A(f"s_lshr_b32 s{T+2}, s{T+2}, s{SP}")
    A(f"s_add_u32 s{T+2}, s{T+2}, s{T+3}")
    A(f"s_sub_u32 s{T+4}, 2, s{SP}")
    A(f"s_lshl_b32 s{T+3}, s{T+6}, s{T+4}")
    A(f"s_lshr_b32 s{T+4}, s{S_WAVE}, s{SP}")
    A(f"s_add_u32 s{T+3}, s{T+3}, s{T+4}")
    A(f"s_and_b32 s{T+4}, s{S_WAVE}, s{T+5}")
    A(f"s_sub_u32 s{T+5}, 17, s{SP}")
    A(f"s_lshl_b32 s{T+4}, s{T+4}, s{T+5}")
    A(f"s_lshr_b32 s{S_LEFT}, 16, s{SP}")
    A(f"s_lshr_b32 s{T+5}, {64*2048}, s{SP}")
    A(f"s_sub_u32 s{T+5}, s{T+5}, 2048")
    A(f"s_cmp_ge_u32 s{SP}, 1")
    A(f"s_cselect_b32 s{S_KAP}, 1.0, 0")
    A(f"s_cselect_b32 s{S_EV}, 1024, 0")
    A(f"s_cselect_b32 s{S_RMASK}, 5, 15")
    A(f"s_cmp_ge_u32 s{SP}, 2")
    A(f"s_cselect_b32 s{S_T2}, 1.0, 0")
    A(f"s_cselect_b32 s{S_TW}, 2048, 0")
    A(f"s_cselect_b32 s{S_RMASK}, 1, s{S_RMASK}")
    A(f"s_bfe_u32 s{T}, s2, 0x10002")
    A(f"s_lshl_b32 s{T}, s{T}, 4")
    A(f"s_add_u32 s{T+2}, s{T+2}, s{T}")
    A(f"s_lshl_b32 s{T}, s{T+1}, 2")
    A(f"s_add_u32 s{T+3}, s{T+3}, s{T}")
    A(f"s_mul_i32 s{S_WOOFF}, s{T+3}, {28*896}")
    A(f"s_lshl_b32 s{T+3}, s{T+3}, 17")
    A(f"s_add_u32 s{S_KOFF}, s{T+3}, s{T+4}")
    A(f"s_add_u32 s{S_VOFF}, s{S_KOFF}, {WS_VA}")
    A(f"s_add_u32 s{S_KOFF}, s{S_KOFF}, {WS_KA}")
    A(f"s_add_u32 s{S_KLIM}, s{S_KOFF}, s{T+5}")
    A(f"s_add_u32 s{S_VLIM}, s{S_VOFF}, s{T+5}")
    A(f"s_lshl_b32 s{T+4}, s{T+2}, 12")
    A(f"s_add_u32 s{T+4}, s{T+4}, s{T+3}")
    A(f"s_add_u32 s{T+4}, s{T+4}, {WS_QA}")
    for i in range(4):
        A(f"buffer_load_dwordx4 {ar(QA_+4*i,4)}, v{V_LANE16}, {sr(SRD_WS,4)}, s{T+4} offen offset:{i*1024} sc1")
    lk, _ = a_loads(0, 0)
    A.emit_list(lk)
    for t in (-4, -3, -2):
        lk, lv = a_loads((t + 5) % 4, (t + 3) % 4)
        A.emit_list(lk)
        if t + 3 >= 0:
            A.emit_list(lv)
    set_srd(A, SRD_B, P_WOA, 448 * 448 * 2)
    A(f"s_lshr_b32 s{S_RFLAG}, s{T+2}, 1")
    A(f"s_lshl_b32 s{S_RFLAG}, s{S_RFLAG}, 8")
    A(f"s_and_b32 s{T+3}, s{T+2}, 1")
    A(f"s_lshl_b32 s{T+3}, s{T+3}, 2")
    A(f"s_add_u32 s{T+3}, s{T+3}, s{T+1}")
    A(f"s_lshl_b32 s{T}, s{T+6}, 3")
    A(f"s_add_u32 s{T+3}, s{T+3}, s{T}")
    A(f"s_lshl_b32 s{T+3}, s{T+3}, 2")
    A(f"s_add_u32 s{S_RFLAG}, s{S_RFLAG}, s{T+3}")
    A(f"s_add_u32 s{S_RFLAG}, s{S_RFLAG}, {F_ROW + 64}")
    A(f"s_lshl_b32 s{T}, s{T+6}, 2")
    A(f"s_add_u32 s{T}, s{T}, 16")
    A(f"s_cmp_eq_u32 s{T+6}, 0")
    A(f"s_cselect_b32 s{T}, 0, s{T}")
    A(f"s_add_u32 s{T}, s{T}, s{T+1}")
    A(f"s_mul_i32 s{S_POFF}, s{T}, {P_SLOT}")
    A(f"s_lshl_b32 s{T+3}, s{T+2}, 2")
    A(f"s_add_u32 s{T+3}, s{T+3}, s{S_WAVE}")
    A(f"s_mul_i32 s{T+3}, s{T+3}, {14*1024}")
    A(f"s_add_u32 s{S_POFF}, s{S_POFF}, s{T+3}")
    A(f"s_add_u32 s{S_POFF}, s{S_POFF}, {WS_P}")
    A(f"s_mul_i32 s{S_WOW}, s{S_WAVE}, {32*896}")
    A(f"s_mov_b32 s{S_MASK}, 0x40004000")
    A(f"s_mov_b32 s{S_FLOOR}, {NEG_INF:#x}")
    A(f"s_mov_b32 s{S_FIRST}, 1")
    for r in range(32):
        A(f"v_mov_b32 v{AC+r}, 0")
        A(f"v_mov_b32 v{AO+r}, 0")
        A(f"v_mov_b32 v{AS[1]+r}, 0")
    for r in range(16):
        A(f"v_mov_b32 v{AP[1]+r}, 0")
    for r in range(8):
        A(f"v_accvgpr_write_b32 a{VA_+3*8+r}, 0")
    A(f"v_bfe_u32 v{V_T}, v0, 3, 1")
    A(f"v_lshlrev_b32 v{V_T}, 10, v{V_T}")
    A(f"v_lshrrev_b32 v{V_T+1}, 5, v0")
    A(f"v_lshl_add_u32 v{V_T}, v{V_T+1}, 8, v{V_T}")
    A(f"v_bfe_u32 v{V_T+1}, v0, 4, 1")
    A(f"v_lshl_add_u32 v{V_T}, v{V_T+1}, 7, v{V_T}")
    A(f"v_and_b32 v{V_T+1}, 7, v0")
    A(f"v_lshl_add_u32 v{V_T}, v{V_T+1}, 4, v{V_T}")
    A(f"s_lshl_b32 s{T+5}, s{S_WAVE}, 12")
    A(f"s_add_u32 s{T+5}, s{T+5}, {XB}")
    A(f"v_add_u32 v{V_XW}, s{T+5}, v{V_T}")
    A(f"v_bfe_u32 v{V_T}, v0, 2, 3")
    A(f"v_bfe_u32 v{V_T+2}, v{V_T}, 1, 2")
    A(f"v_lshrrev_b32 v{V_T+1}, 5, v0")
    A(f"v_lshl_add_u32 v{V_T}, v{V_T+1}, 4, v{V_T}")
    A(f"v_mul_u32_u24 v{V_T}, 896, v{V_T}")
    A(f"v_and_b32 v{V_T+1}, 3, v0")
    A(f"v_lshl_add_u32 v{V_T}, v{V_T+1}, 3, v{V_T}")
    for b in range(4):
        A(f"v_xor_b32 v{V_T+1}, {b}, v{V_T+2}")
        A(f"v_lshl_add_u32 v{V_WOR+b}, v{V_T+1}, 5, v{V_T}")
    A("s_waitcnt vmcnt(10)")
    stamp(A, cfg, 1)
    A.emit_list(a_qk(0, 0))
    lk, lv = a_loads(0, 2)
    A.emit_list(lk)
    A.emit_list(lv)
    A(f"s_mov_b32 m0, s{S_WOW}")
    A(f"s_add_u32 s{S_WOW}, s{S_WOW}, {8*896}")
    for i in range(7):
        if i == 4:
            A("s_add_u32 m0, m0, 4096")
            A("s_nop 0")
        A(f"buffer_load_dwordx4 v{V_WOD+i}, {sr(SRD_B,4)}, s{S_WOOFF} offen offset:{(i%4)*1024} lds")
    A(f"s_add_u32 s{S_WOOFF}, s{S_WOOFF}, {8*896}")
    A(f"s_call_b64 {sr(S_RET,2)}, LA_RARE0")
    stamp(A, cfg, 2)
    A.label("LA_LOOP")
    for u in range(4):
        a_iter(A, u, cfg)
    A(f"s_sub_u32 s{S_LEFT}, s{S_LEFT}, 1")
    A(f"s_cmp_gt_u32 s{S_LEFT}, 3")
    A("s_cbranch_scc1 LA_LOOP")
    A(f"s_cmp_eq_u32 s{S_LEFT}, 0")
    A("s_cbranch_scc1 LA_FIN")
    A(f"s_mov_b32 m0, s{S_WOW}")
    A(f"s_add_u32 s{S_WOW}, s{S_WOW}, {8*896}")
    for i in range(7):
        if i == 4:
            A("s_add_u32 m0, m0, 4096")
            A("s_nop 0")
        A(f"buffer_load_dwordx4 v{V_WOD+i}, {sr(SRD_B,4)}, s{S_WOOFF} offen offset:{(i%4)*1024} lds")
    A(f"s_add_u32 s{S_WOOFF}, s{S_WOOFF}, {8*896}")
    A("s_branch LA_LOOP")
    A.label("LA_FIN")
    A("s_waitcnt vmcnt(12)")
    A.emit_list(a_pv(1, 3))
    stamp(A, cfg, 3)
    A(f"v_cmp_gt_u32 vcc, 32, v0")
    A("s_nop 7")
    A("s_nop 7")
    X = 24
    for qb in range(2):
        o = AO + qb * 16
        A(f"v_mov_b32 v{V_T}, v{o+12}")
        A(f"v_mov_b32 v{X+2*qb+1}, v{o+12}")
        A(f"v_mov_b32 v{X+2*qb}, v{AC+qb*16}")
        A("s_nop 0")
        A(f"v_permlane32_swap_b32 v{V_T}, v{X+2*qb+1}")
    A(f"s_lshl_b32 s{T+5}, s{S_WAVE}, 10")
    A(f"s_add_u32 s{T+5}, s{T+5}, {XB+16384}")
    A(f"v_add_u32 v{V_T}, s{T+5}, v{V_LANE16}")
    A(f"ds_write_b128 v{V_T}, {vr(X,4)}")
    A(f"v_xor_b32 v{V_T+1}, s{S_EV}, v{V_T}")
    A(f"v_xor_b32 v{V_T+2}, s{S_TW}, v{V_T}")
    A(f"v_xor_b32 v{V_T+3}, s{S_TW}, v{V_T+1}")
    A("s_waitcnt lgkmcnt(0)")
    A("s_barrier")
    PR = [100, 104, 108]
    for i in range(3):
        A(f"ds_read_b128 {vr(PR[i],4)}, v{V_T+1+i}")
    A("s_waitcnt lgkmcnt(0)")
    for qb in range(2):
        o = AO + qb * 16
        c1, l1 = X + 2 * qb, X + 2 * qb + 1
        a, b, inv, invh = V_T, V_T + 1, V_T + 2, V_T + 3
        A(f"v_min_f32 v{a}, v{c1}, v{PR[0]+2*qb}")
        A(f"v_min3_f32 v{a}, v{a}, v{PR[1]+2*qb}, v{PR[2]+2*qb}")
        for i in range(3):
            A(f"v_sub_f32 v{PR[i]+2*qb}, v{a}, v{PR[i]+2*qb}")
            A(f"v_exp_f32 v{PR[i]+2*qb}, v{PR[i]+2*qb}")
            A(f"v_mul_f32 v{PR[i]+2*qb+1}, s{S_KAP if i == 0 else S_T2}, v{PR[i]+2*qb+1}")
        A(f"v_sub_f32 v{a}, v{a}, v{c1}")
        A(f"v_exp_f32 v{a}, v{a}")
        A("s_nop 0")
        A(f"v_mul_f32 v{l1}, v{l1}, v{a}")
        for i in range(3):
            A(f"v_fma_f32 v{l1}, v{PR[i]+2*qb}, v{PR[i]+2*qb+1}, v{l1}")
        A(f"v_rcp_f32 v{inv}, v{l1}")
        A("s_nop 0")
        A(f"v_mul_f32 v{inv}, v{inv}, v{a}")
        A(f"v_cndmask_b32 v{invh}, 0, v{inv}, vcc")
        for r in range(16):
            A(f"v_mul_f32 v{o+r}, v{o+r}, v{inv if r < 12 else invh}")
        for g in range(2):
            c = AS[0] + (qb * 2 + g) * 4
            for i in range(4):
                A(f"v_cvt_pk_bf16_f32 v{c+i}, v{o+8*g+2*i}, v{o+8*g+2*i+1}")
            A(f"ds_write_b128 v{V_XW}, {vr(c,4)} offset:{qb*2048+g*512}")
    A("s_waitcnt vmcnt(0) lgkmcnt(0)")
    A("s_barrier")
    A(f"s_lshl_b32 s{T+5}, s{S_WAVE}, 10")
    A(f"s_add_u32 s{T+5}, s{T+5}, {XB}")
    A(f"v_add_u32 v{V_T}, s{T+5}, v{V_LANE16}")
    VB = 96
    for w in range(4):
        A(f"ds_read_b128 {vr(VB+4*w,4)}, v{V_T} offset:{w*4096}")

    def reads(w, half, fset):
        out = []
        for i in range(14):
            b = 14 * half + i
            f = VF + (fset * 14 + i) * 4
            for e in range(2):
                out.append(f"ds_read_b64_tr_b16 {vr(f+2*e,2)}, v{V_WOR+(b&3)} offset:{(b>>2)*128+e*8*896+(w&1)*32*896}")
        return out

    def mf(w, half, fset):
        out = []
        for i in range(14):
            b = 14 * half + i
            f = VF + (fset * 14 + i) * 4
            c = "0" if w == 0 else ar(b * 4, 4)
            out.append(f"v_mfma_f32_16x16x32_bf16 {ar(b*4,4)}, {vr(f,4)}, {vr(VB+4*w,4)}, {c}")
        return out

    seq = [(w, h) for w in range(4) for h in range(2)]
    A.emit_list(reads(0, 0, 0))
    for k, (w, h) in enumerate(seq):
        if k + 1 < len(seq):
            w2, h2 = seq[k + 1]
            if (w2, h2) == (2, 0):
                for b in range(4):
                    A(f"v_add_u32 v{V_WOR+b}, {2*32*896}, v{V_WOR+b}")
            rd = reads(w2, h2, (k + 1) % 2)
            A.emit_list(rd[:14])
            A("s_waitcnt lgkmcnt(14)")
            A.emit_list(interleave(mf(w, h, k % 2), [(i, [r]) for i, r in enumerate(rd[14:])]))
        else:
            A("s_waitcnt lgkmcnt(0)")
            A.emit_list(mf(w, h, k % 2))
    store_partials(A, 1, cfg)


def r_item(A, cfg):
    T = S_TMP
    NF, NH, NQ, NA = a_counts(cfg)
    stamp(A, cfg, 0)
    A(f"s_sub_u32 s{T}, s{S_ITEM}, {NA}")
    A(f"s_lshl_b32 s{T}, s{T}, 3")
    A(f"s_and_b32 s{T+1}, s2, 7")
    A(f"s_add_u32 s{T}, s{T}, s{T+1}")
    A(f"s_mul_i32 s{T+1}, s{T}, 2341")
    A(f"s_lshr_b32 s{T+1}, s{T+1}, 16")
    A(f"s_mul_i32 s{T+2}, s{T+1}, 28")
    A(f"s_sub_u32 s{T+2}, s{T}, s{T+2}")
    A(f"s_lshr_b32 s{T+3}, s{T+1}, 1")
    A(f"s_and_b32 s{T+1}, s{T+1}, 1")
    A(f"s_lshl_b32 s{T+1}, s{T+1}, 3")
    A(f"s_add_u32 s{T+1}, s{T+1}, s{T+3}")
    poll_issue(A, T + 1, F_ROW, 48)
    A(f"s_mul_i32 s{T+3}, s{T+2}, 37")
    A(f"s_lshr_b32 s{T+3}, s{T+3}, 8")
    A(f"s_mul_i32 s{T+4}, s{T+3}, 7")
    A(f"s_sub_u32 s{T+2}, s{T+2}, s{T+4}")
    A(f"s_lshl_b32 s{T+2}, s{T+2}, 1")
    A(f"s_and_b32 s{T+4}, s{S_WAVE}, 1")
    A(f"s_add_u32 s{T+2}, s{T+2}, s{T+4}")
    A(f"s_lshl_b32 s{T+1}, s{T+1}, 3")
    A(f"s_lshl_b32 s{T+3}, s{T+3}, 1")
    A(f"s_add_u32 s{T+1}, s{T+1}, s{T+3}")
    A(f"s_lshr_b32 s{T+3}, s{S_WAVE}, 1")
    A(f"s_add_u32 s{T+1}, s{T+1}, s{T+3}")
    A(f"s_mul_i32 s{S_KOFF}, s{T+1}, {14*1024}")
    A(f"s_lshl_b32 s{T+3}, s{T+2}, 10")
    A(f"s_add_u32 s{S_KOFF}, s{S_KOFF}, s{T+3}")
    A(f"s_add_u32 s{S_KOFF}, s{S_KOFF}, {WS_P}")
    A(f"s_lshl_b32 s{S_VOFF}, s{T+1}, 6")
    A(f"s_add_u32 s{S_VOFF}, s{S_VOFF}, {WS_G}")
    A(f"s_mul_i32 s{S_KLIM}, s{T+1}, {16*896}")
    A(f"s_lshl_b32 s{T+3}, s{T+2}, 6")
    A(f"s_add_u32 s{S_KLIM}, s{S_KLIM}, s{T+3}")
    A(f"s_bfe_u32 s{T+3}, s{T+1}, 0x40002")
    set_srd(A, SRD_B, P_OUT, 2048 * 448 * 2)
    A(f"v_and_b32 v{V_T}, 15, v0")
    A(f"v_lshrrev_b32 v{V_T+1}, 4, v0")
    A(f"v_lshlrev_b32 v{V_T+2}, 2, v{V_T}")
    A(f"v_mul_u32_u24 v{V_T+3}, 896, v{V_T}")
    A(f"v_lshl_add_u32 v{V_T+3}, v{V_T+1}, 3, v{V_T+3}")
    A(f"s_mov_b32 s{S_SC}, 0x00003f80")
    A(f"s_mov_b32 s{S_SC+1}, 0x3f800000")
    PB = 96
    NS = 32 if NQ else (24 if NH else 20)
    DONE, NEW, MSK = S_N, S_B0 - 1, S_RET
    A(f"s_bfe_u32 s{T+4}, s{T+1}, 0x10002")
    A(f"s_lshl_b32 s{T+4}, s{T+4}, 2")
    A(f"s_mov_b64 {sr(DONE,2)}, 0")
    A(f"s_mov_b32 s{T+5}, 0x0f0f0f00")
    A(f"s_cmp_ge_u32 s{T+3}, {NF}")
    A(f"s_cselect_b32 s{T+5}, 0x0f0f0000, s{T+5}")
    A(f"s_cmp_ge_u32 s{T+3}, {NF + NH}")
    A(f"s_cselect_b32 s{DONE+1}, 0, s{T+5}")
    A(f"s_mov_b32 s{S_SPIN}, {SPIN_MAX}")
    lloop, lfin = A.newlabel("LRL"), A.newlabel("LRF")
    A.label(lloop)
    A("s_waitcnt vmcnt(0)")
    A(f"v_cmp_eq_u32 vcc, 1, v{V_POLL}")
    A("s_nop 3")
    A(f"s_and_b32 s{MSK}, vcc_lo, 0xffff")
    A(f"s_lshr_b64 {sr(NEW,2)}, vcc, 16")
    A(f"s_lshr_b32 s{NEW}, s{NEW}, s{T+4}")
    A(f"s_and_b32 s{MSK+1}, s{NEW}, 0x0f0f0f0f")
    lskipld, ldo = A.newlabel("LRK"), A.newlabel("LRD")
    A(f"s_or_b64 {sr(NEW,2)}, {sr(DONE,2)}, {sr(MSK,2)}")
    A(f"s_cmp_eq_u32 s{NEW}, 0xffff")
    A(f"s_cselect_b32 s{T+5}, s{NEW+1}, 0")
    A(f"s_cmp_eq_u32 s{T+5}, 0x0f0f0f0f")
    A(f"s_cbranch_scc1 {ldo}")
    A(f"s_and_b32 s{T+5}, s{S_SPIN}, {cfg.get('r_every', 65535)}")
    A(f"s_cbranch_scc1 {lskipld}")
    A.label(ldo)
    A(f"s_andn2_b64 {sr(NEW,2)}, {sr(MSK,2)}, {sr(DONE,2)}")
    A(f"s_or_b64 {sr(DONE,2)}, {sr(DONE,2)}, {sr(MSK,2)}")
    for sl in range(NS):
        if 4 <= sl < 20:
            reg, bit = NEW, sl - 4
        else:
            hp = 0 if sl < 4 else (sl - 16) // 4
            reg, bit = NEW + 1, hp * 8 + (sl % 4)
        ln = A.newlabel("LRS")
        A(f"s_bitcmp1_b32 s{reg}, {bit}")
        A(f"s_cbranch_scc0 {ln}")
        A(f"s_add_u32 s{T+5}, s{S_KOFF}, {sl*P_SLOT}")
        A(f"buffer_load_dwordx4 {vr(PB+sl*4,4)}, v{V_LANE16}, {sr(SRD_WS,4)}, s{T+5} offen sc1")
        A.label(ln)
    A(f"s_cmp_eq_u32 s{DONE}, 0xffff")
    A(f"s_cselect_b32 s{T+5}, s{DONE+1}, 0")
    A(f"s_cmp_eq_u32 s{T+5}, 0x0f0f0f0f")
    A(f"s_cbranch_scc1 {lfin}")
    A.label(lskipld)
    A(f"s_sub_u32 s{S_SPIN}, s{S_SPIN}, 1")
    A(f"s_cmp_eq_u32 s{S_SPIN}, 0")
    A(f"s_cbranch_scc1 {lfin}")
    A(f"s_sleep {cfg.get('r_sleep', 4)}")
    A(f"buffer_load_dword v{V_POLL}, v{V_POLL+1}, {sr(SRD_WS,4)}, s{S_PADDR} offen sc1")
    A(f"s_branch {lloop}")
    A.label(lfin)
    stamp(A, cfg, 1)
    A(f"buffer_load_dword v{V_T+4}, v{V_T+2}, {sr(SRD_WS,4)}, s{S_VOFF} offen sc1")
    A("s_waitcnt vmcnt(0)")
    aa, ab = 64, 72
    lsum = A.newlabel("LRU")
    for sl in range(NS):
        first = sl in (0, 4)
        if sl in (20, 24):
            A(f"s_cmp_lt_u32 s{T+3}, {NF if sl == 20 else NF + NH}")
            A(f"s_cbranch_scc1 {lsum}")
        acc_ = ab if 4 <= sl < 20 else aa
        for i in range(4):
            r = PB + sl * 4 + i
            A(f"v_dot2_f32_bf16 v{acc_+2*i}, v{r}, s{S_SC}, {'0' if first else 'v%d' % (acc_+2*i)}")
            A(f"v_dot2_f32_bf16 v{acc_+2*i+1}, v{r}, s{S_SC+1}, {'0' if first else 'v%d' % (acc_+2*i+1)}")
    A.label(lsum)
    g, g1, t = V_T + 4, V_T + 5, V_T + 6
    A(f"v_sub_f32 v{g1}, 1.0, v{g}")
    A(f"v_cvt_pk_bf16_f32 v{g1}, v{g1}, v{g1}")
    A(f"v_lshlrev_b32 v{g1}, 16, v{g1}")
    A("s_nop 1")
    o = 48
    for i in range(4):
        for acc_, gg in ((aa, g), (ab, g1)):
            a = acc_ + 2 * i
            A(f"v_cvt_pk_bf16_f32 v{t}, v{a}, v{a+1}")
            A(f"v_lshlrev_b32 v{a}, 16, v{t}")
            A(f"v_and_b32 v{a+1}, 0xffff0000, v{t}")
            A(f"v_mul_f32 v{a}, v{gg}, v{a}")
            A(f"v_mul_f32 v{a+1}, v{gg}, v{a+1}")
            A(f"v_cvt_pk_bf16_f32 v{t}, v{a}, v{a+1}")
            A(f"v_lshlrev_b32 v{a}, 16, v{t}")
            A(f"v_and_b32 v{a+1}, 0xffff0000, v{t}")
        A(f"v_add_f32 v{aa+2*i}, v{aa+2*i}, v{ab+2*i}")
        A(f"v_add_f32 v{aa+2*i+1}, v{aa+2*i+1}, v{ab+2*i+1}")
        A(f"v_cvt_pk_bf16_f32 v{o+i}, v{aa+2*i}, v{aa+2*i+1}")
    A(f"buffer_store_dwordx2 {vr(o,2)}, v{V_T+3}, {sr(SRD_B,4)}, s{S_KLIM} offen")
    A(f"buffer_store_dwordx2 {vr(o+2,2)}, v{V_T+3}, {sr(SRD_B,4)}, s{S_KLIM} offen offset:32")


def launch_line(cfg=None):
    return f"; @launch kernel=mega_kernel grid=(256,1,1) block=(256,1,1) lds={LDS_TOTAL}"


def gen_mega(A, name="mega_kernel", cfg=None):
    cfg = cfg or {}
    global KVFL, A_DELAY
    A_DELAY = cfg.get("a_delay", 3)
    KVFL = cfg.get("kvfl", "sc1")
    T = S_TMP
    G = V_G
    A.raw(kernel_header(name))
    A(f"s_load_dwordx16 {sr(4,16)}, s[0:1], 0")
    A(f"s_load_dwordx8 {sr(20,8)}, s[0:1], 64")
    A(f"s_load_dwordx2 {sr(P_WS,2)}, s[0:1], 96")
    A(f"s_load_dwordx2 {sr(P_WOA,2)}, s[0:1], 16")
    if cfg.get("diag"):
        for i in range(14):
            A(f"s_mov_b32 s{S_STAMP+i}, 0")
    stamp(A, cfg, 0)
    A("s_cmp_ge_u32 s2, 256")
    A("s_cbranch_scc1 LM_END")
    if cfg.get("warm0", 1):
        lw0 = A.newlabel("LW0")
        A(f"s_cmp_ge_u32 s2, {8*cfg.get('warm0', 1)}")
        A(f"s_cbranch_scc1 {lw0}")
        A(f"s_getpc_b64 {sr(SRD_WS,2)}")
        A(f"s_mov_b32 s{SRD_WS+2}, LP_START-{name}")
        A(f"s_mov_b32 s{SRD_WS+3}, 0x20000")
        A(f"v_lshlrev_b32 v{G+8}, {cfg.get('warm_sh', 7)}, v0")
        A(f"s_lshr_b32 s{T}, s2, 3")
        A(f"s_lshl_b32 s{T}, s{T}, {8 + cfg.get('warm_sh', 7)}")
        A(f"buffer_load_dword v{G+9}, v{G+8}, {sr(SRD_WS,4)}, s{T} offen")
        A.label(lw0)
    A(f"v_lshrrev_b32 v{G}, 6, v0")
    A("v_and_b32 v0, 63, v0")
    A(f"v_readfirstlane_b32 s{S_WAVE}, v{G}")
    A(f"v_lshlrev_b32 v{V_LANE16}, 4, v0")
    A(f"s_and_b32 s{T}, s2, 7")
    A(f"s_bfe_u32 s{T+1}, s2, 0x10005")
    A(f"s_lshl_b32 s{T+1}, s{T+1}, 3")
    A(f"s_add_u32 s{T}, s{T}, s{T+1}")
    A(f"s_lshr_b32 s{T+1}, s2, 7")
    A(f"s_lshl_b32 s{T+1}, s{T+1}, 4")
    A(f"s_add_u32 s{T}, s{T}, s{T+1}")
    A(f"s_bfe_u32 s{S_GRP}, s2, 0x10006")
    A(f"s_bfe_u32 s{T+1}, s2, 0x20003")
    A(f"s_lshl_b32 s{T+2}, s{S_GRP}, 2")
    A(f"s_add_u32 s{T+1}, s{T+1}, s{T+2}")
    A(f"s_lshr_b32 s{T+2}, s{S_WAVE}, 1")
    A(f"s_and_b32 s{T+3}, s{S_WAVE}, 1")
    A(f"s_and_b32 s{S_GHEAD}, s{T}, 15")
    A(f"s_lshr_b32 s{S_TYPE}, s{T}, 4")
    A(f"s_lshl_b32 s{T+5}, s{T+2}, 4")
    A(f"s_add_u32 s{T+5}, s{T+5}, s{T+3}")
    A(f"s_lshl_b32 s{S_XWAVE}, s{T+5}, 10")
    A(f"s_add_u32 s{S_XWAVE}, s{S_XWAVE}, {LDS_X0}")
    A(f"s_mov_b32 s{S_XWR}, s{S_XWAVE}")
    A(f"s_lshl_b32 s{T+5}, s{T+5}, 3")
    A(f"s_lshl_b32 s{T+6}, s{T+1}, 8")
    A(f"s_add_u32 s{T+6}, s{T+6}, s{T+5}")
    A(f"s_lshl_b32 s{S_XOFF}, s{T+6}, 11")
    A(f"s_mov_b32 s{S_XSTA}, {16*2048}")
    A(f"s_mov_b32 s{S_XSTB}, {16*2048}")
    A(f"s_mov_b32 s{S_XWRAP}, {(128-112*2048) & 0xffffffff}")
    A(f"s_lshl_b32 s{T+7}, s{T+2}, 2")
    A(f"s_add_u32 s{T+7}, s{T+7}, s{T+3}")
    A(f"s_lshl_b32 s{S_WWR}, s{T+7}, 10")
    A(f"s_lshl_b32 s{S_WOFF}, s{T+7}, 14")
    A(f"s_lshl_b32 s{T+6}, s{S_GHEAD}, 9")
    A(f"s_add_u32 s{S_WOFF}, s{S_WOFF}, s{T+6}")
    A(f"v_lshrrev_b32 v{G}, 4, v0")
    A(f"s_lshl_b32 s{T+6}, s{T+3}, 2")
    A(f"v_add_u32 v{G+6}, s{T+6}, v{G}")
    A(f"v_and_b32 v{G+1}, 7, v0")
    A(f"v_xor_b32 v{G}, v{G+6}, v{G+1}")
    A(f"v_lshlrev_b32 v{G}, 4, v{G}")
    A(f"v_lshrrev_b32 v{G+1}, 3, v0")
    A(f"v_lshl_add_u32 v{V_DX}, v{G+1}, 11, v{G}")
    A(f"v_mul_u32_u24 v{G+2}, 896, v{G+1}")
    A(f"v_add_u32 v{V_DX2}, v{G+2}, v{G}")
    A(f"v_lshrrev_b32 v{G}, 5, v0")
    A(f"s_lshl_b32 s{T+6}, s{T+3}, 1")
    A(f"s_lshl_b32 s{T+5}, s{T+2}, 2")
    A(f"s_add_u32 s{T+6}, s{T+6}, s{T+5}")
    A(f"v_add_u32 v{G+1}, s{T+6}, v{G}")
    A(f"v_bfe_u32 v{G+2}, v0, 1, 4")
    A(f"v_xor_b32 v{G+2}, v{G+2}, v{G+1}")
    A(f"v_and_b32 v{G+3}, 1, v0")
    A(f"v_lshl_add_u32 v{G+2}, v{G+2}, 1, v{G+3}")
    A(f"v_lshlrev_b32 v{G+3}, 4, v{G+2}")
    A(f"v_lshl_add_u32 v{V_DW}, v{G}, 13, v{G+3}")
    A("s_waitcnt lgkmcnt(0)")
    set_srd(A, SRD_A, P_CKV, 2048 * 1024 * 2)
    A(f"s_cmp_eq_u32 s{S_TYPE}, 0")
    A(f"s_cselect_b32 s{SRD_B}, s{P_WUK}, s{P_WUV}")
    A(f"s_cselect_b32 s{SRD_B+1}, s{P_WUK+1}, s{P_WUV+1}")
    A(f"s_mov_b32 s{SRD_B+2}, {1024*4096*2}")
    A(f"s_mov_b32 s{SRD_B+3}, 0x20000")
    emit_chain(A, dma_x())
    emit_chain(A, dma_w())
    A(f"s_and_b32 s{S_HEAD}, s2, 15")
    A(f"s_lshr_b32 s{T}, s2, 4")
    A(f"s_sub_u32 s{S_QB}, 15, s{T}")
    A(f"s_lshl_b32 s{T+4}, s{S_QB}, 7")
    A(f"s_lshl_b32 s{T+5}, s{S_HEAD}, 3")
    A(f"s_add_u32 s{T+4}, s{T+4}, s{T+5}")
    A(f"s_lshl_b32 s{T+5}, s{S_WAVE}, 1")
    A(f"s_add_u32 s{S_PHASE}, s{T+4}, s{T+5}")
    A(f"s_mul_i32 s{T+4}, s{S_PHASE}, 896")
    A(f"v_and_b32 v{V_CV}, 31, v0")
    A(f"v_lshlrev_b32 v{V_CV+1}, 5, v{V_CV}")
    A(f"v_mov_b32 v{V_CV+3}, 0x40000000")
    A(f"v_cmp_gt_u32 vcc, 28, v{V_CV}")
    A(f"v_lshrrev_b32 v{V_CV+2}, 5, v0")
    A("s_nop 0")
    A(f"v_cndmask_b32 v{V_CV+1}, v{V_CV+3}, v{V_CV+1}, vcc")
    A(f"v_mul_u32_u24 v{V_CV+2}, 896, v{V_CV+2}")
    A(f"v_add_u32 v{V_CV+2}, v{V_CV+2}, v{V_CV+1}")
    set_srd(A, SRD_WS, P_X, 2048 * 448 * 2)
    set_srd(A, SRD_DBG, P_GATE, 448 * 2)
    A(f"buffer_load_dwordx4 {vr(192,4)}, v{V_CV+2}, {sr(SRD_WS,4)}, s{T+4} offen")
    A(f"buffer_load_dwordx4 {vr(196,4)}, v{V_CV+2}, {sr(SRD_WS,4)}, s{T+4} offen offset:16")
    A(f"buffer_load_dwordx4 {vr(200,4)}, v{V_CV+1}, {sr(SRD_DBG,4)}, 0 offen")
    A(f"buffer_load_dwordx4 {vr(204,4)}, v{V_CV+1}, {sr(SRD_DBG,4)}, 0 offen offset:16")
    emit_chain(A, dma_x())
    emit_chain(A, dma_w())
    set_srd(A, SRD_WS, P_WS, WS_SIZE)
    set_srd(A, SRD_DBG, P_DBG, 256)
    set_srd(A, SRD_E, P_WS, WS_SIZE)
    A(f"s_cmp_eq_u32 s{S_GRP}, 0")
    A(f"s_cselect_b32 s{SRD_E+2}, s{SRD_E+2}, 0")
    li = A.newlabel("LM")
    A(f"v_lshlrev_b32 v{V_SIG+1}, 2, v0")
    A(f"v_mov_b32 v{V_SIG}, 0")
    A(f"s_cmp_lg_u32 s{S_WAVE}, 0")
    A(f"s_cbranch_scc1 {li}")
    A(f"s_lshl_b32 s{T+6}, s2, 6")
    A(f"s_add_u32 s{T+6}, s{T+6}, {WS_F}")
    A("s_mov_b64 exec, 0xffff")
    A(f"buffer_store_dword v{V_SIG}, v{V_SIG+1}, {sr(SRD_WS,4)}, s{T+6} offen sc1")
    A("s_mov_b64 exec, -1")
    A.label(li)
    A(f"s_lshl_b32 s{S_OB}, s{S_GHEAD}, 20")
    A(f"s_lshl_b32 s{T+6}, s{T+1}, 17")
    A(f"s_add_u32 s{S_OB}, s{S_OB}, s{T+6}")
    A(f"s_lshl_b32 s{T+6}, s{T+2}, 16")
    A(f"s_add_u32 s{S_OB}, s{S_OB}, s{T+6}")
    A(f"s_add_u32 s{T+6}, s{S_TYPE}, 12")
    A(f"s_lshl_b32 s{T+6}, s{T+3}, s{T+6}")
    A(f"s_add_u32 s{S_OB}, s{S_OB}, s{T+6}")
    A(f"s_lshl_b32 s{T+6}, s{S_TYPE}, 24")
    A(f"s_add_u32 s{S_OB}, s{S_OB}, s{T+6}")
    A(f"s_mov_b32 s{T+6}, 8192")
    A(f"s_cmp_eq_u32 s{S_TYPE}, 0")
    A(f"s_cselect_b32 s{S_OSTA}, s{T+6}, 4096")
    A(f"s_cselect_b32 s{S_OSTB}, s{T+6}, 12288")
    A(f"s_lshl_b32 s{S_GHEAD}, s{S_GHEAD}, 8")
    A(f"s_lshl_b32 s{T+6}, s{S_GRP}, 12")
    A(f"s_add_u32 s{S_GHEAD}, s{S_GHEAD}, s{T+6}")
    A(f"s_lshl_b32 s{T+6}, s{S_TYPE}, 4")
    A(f"s_add_u32 s{S_GHEAD}, s{S_GHEAD}, s{T+6}")
    A(f"s_and_b32 s{T+6}, s{T+1}, 3")
    A(f"s_lshl_b32 s{T+6}, s{T+6}, 2")
    A(f"s_add_u32 s{S_GHEAD}, s{S_GHEAD}, s{T+6}")
    A(f"s_add_u32 s{S_GHEAD}, s{S_GHEAD}, {F_KV}")
    A(f"s_and_b32 s{S_HEAD}, s2, 15")
    A(f"s_lshr_b32 s{T}, s2, 4")
    A(f"s_sub_u32 s{S_QB}, 15, s{T}")
    A(f"s_lshl_b32 s{S_WOFF2}, s{T+7}, 14")
    A(f"s_lshl_b32 s{T+6}, s{S_HEAD}, 9")
    A(f"s_add_u32 s{S_WOFF2}, s{S_WOFF2}, s{T+6}")
    A(f"s_lshl_b32 s{T+5}, s{S_QB}, 7")
    A(f"s_lshl_b32 s{T+6}, s{T+3}, 3")
    A(f"s_add_u32 s{T+5}, s{T+5}, s{T+6}")
    A(f"s_mul_i32 s{T+5}, s{T+5}, 896")
    A(f"s_mul_i32 s{T+6}, s{T+3}, {8*2688}")
    A(f"s_mul_i32 s{T+4}, s{S_HEAD}, 56")
    A(f"s_add_u32 s{T+6}, s{T+6}, s{T+4}")
    A(f"s_cmp_eq_u32 s{T+2}, 0")
    A(f"s_cselect_b32 s{S_XOFF2}, s{T+5}, s{T+6}")
    A(f"s_cselect_b32 s{S_X2LO}, s{P_X}, s{P_WQKV}")
    A(f"s_cselect_b32 s{S_X2HI}, s{P_X+1}, s{P_WQKV+1}")
    A(f"s_mov_b32 s{T+5}, {2048*448*2}")
    A(f"s_cselect_b32 s{S_X2N}, s{T+5}, {448*1344*2}")
    A(f"s_mov_b32 s{T+5}, {16*896}")
    A(f"s_cselect_b32 s{S_XSTA2}, s{T+5}, {4*2688}")
    A(f"s_cselect_b32 s{S_XSTB2}, s{T+5}, {12*2688}")
    A(f"s_mov_b32 s{T+5}, {(128-112*896) & 0xffffffff}")
    A(f"s_cselect_b32 s{S_XWRAP2}, s{T+5}, {12*2688}")
    lskip = A.newlabel("LM")
    A(f"s_cbranch_scc1 {lskip}")
    A(f"v_bfe_u32 v{G}, v0, 1, 3")
    A(f"v_xor_b32 v{G}, v{G}, v{G+6}")
    A(f"v_and_b32 v{G+1}, 1, v0")
    A(f"v_lshl_add_u32 v{G}, v{G}, 1, v{G+1}")
    A(f"v_lshrrev_b32 v{G+1}, 2, v{G}")
    A(f"v_and_b32 v{G}, 3, v{G}")
    A(f"v_lshlrev_b32 v{G}, 4, v{G}")
    A(f"v_mul_u32_u24 v{G+2}, 896, v{G+1}")
    A(f"v_add_u32 v{G}, v{G}, v{G+2}")
    A(f"v_lshrrev_b32 v{G+2}, 4, v0")
    A(f"v_mul_u32_u24 v{G+2}, 2688, v{G+2}")
    A(f"v_add_u32 v{G}, v{G}, v{G+2}")
    A(f"v_mov_b32 v{G+2}, 0x40000000")
    A(f"v_cmp_gt_u32 vcc, 3, v{G+1}")
    A("s_nop 1")
    A(f"v_cndmask_b32 v{V_DX2}, v{G+2}, v{G}, vcc")
    A.label(lskip)
    A(f"s_lshl_b32 s{S_OBQK}, s{S_HEAD}, 17")
    A(f"s_lshl_b32 s{T+5}, s{S_QB}, 13")
    A(f"s_add_u32 s{S_OBQK}, s{S_OBQK}, s{T+5}")
    A(f"s_lshl_b32 s{T+5}, s{T+2}, 12")
    A(f"s_add_u32 s{S_OBQK}, s{S_OBQK}, s{T+5}")
    A(f"s_lshl_b32 s{T+5}, s{T+3}, 8")
    A(f"s_add_u32 s{S_OBV}, s{S_OBQK}, s{T+5}")
    A(f"s_add_u32 s{S_OBV}, s{S_OBV}, {WS_VA}")
    A(f"s_lshl_b32 s{T+5}, s{T+3}, 21")
    A(f"s_add_u32 s{S_OBQK}, s{S_OBQK}, s{T+5}")
    A(f"s_add_u32 s{S_OBQK}, s{S_OBQK}, {WS_QA}")
    A(f"s_cmp_eq_u32 s{T+3}, 0")
    A(f"s_cselect_b32 s{S_SCA}, {f32bits(SCALE_A):#x}, 1.0")
    A(f"v_and_b32 v{G}, 15, v0")
    A(f"v_lshrrev_b32 v{G+1}, 4, v0")
    A(f"v_lshrrev_b32 v{G+2}, 1, v{G}")
    A(f"v_xor_b32 v{G+2}, v{G+2}, v{G+1}")
    A(f"v_lshlrev_b32 v{G+2}, 4, v{G+2}")
    A(f"v_lshl_add_u32 v{G+2}, v{G}, 7, v{G+2}")
    A(f"s_lshl_b32 s{T+5}, s{T+2}, 14")
    A(f"v_add_u32 v{V_XL0}, s{T+5}, v{G+2}")
    A(f"v_xor_b32 v{V_XL1}, 64, v{V_XL0}")
    A(f"s_lshl_b32 s{T+5}, s{T+2}, 13")
    A(f"v_add_u32 v{V_PXL}, s{T+5}, v{G+2}")
    A(f"v_xor_b32 v{V_PXL+1}, 64, v{V_PXL}")
    A(f"v_add_u32 v{V_XR0}, {LDS_X0}, v{V_XL0}")
    A(f"v_add_u32 v{V_XR1}, {LDS_X0}, v{V_XL1}")
    A(f"s_mov_b32 s{S_XRD}, {LDS_X0+32768}")
    A(f"v_bfe_u32 v{G+2}, v0, 2, 2")
    A(f"v_lshl_add_u32 v{G+3}, v{G+1}, 3, v{G+2}")
    A(f"v_lshlrev_b32 v{G+3}, 9, v{G+3}")
    A(f"v_bfe_u32 v{G+4}, v0, 2, 3")
    A(f"v_lshl_add_u32 v{G+3}, v{G+4}, 5, v{G+3}")
    A(f"v_and_b32 v{G+5}, 3, v0")
    A(f"v_lshl_add_u32 v{G+3}, v{G+5}, 3, v{G+3}")
    A(f"s_lshl_b32 s{T+5}, s{T+3}, 8")
    A(f"v_add_u32 v{V_WR}, s{T+5}, v{G+3}")
    for b in range(1, 8):
        A(f"v_xor_b32 v{V_WR+b}, {b*32}, v{V_WR}")
    A(f"v_lshrrev_b32 v{G+3}, 5, v0")
    A(f"v_lshl_add_u32 v{G+3}, v{G+3}, 4, v{G+4}")
    A(f"v_lshlrev_b32 v{G+3}, 8, v{G+3}")
    A(f"v_lshl_add_u32 v{G+3}, v{G+4}, 5, v{G+3}")
    A(f"v_lshl_add_u32 v{G+3}, v{G+5}, 3, v{G+3}")
    A(f"v_add_u32 v{G+3}, 16384, v{G+3}")
    A(f"s_lshl_b32 s{T+5}, s{T+3}, 6")
    A(f"v_xor_b32 v{V_PWL}, s{T+5}, v{G+3}")
    A(f"v_xor_b32 v{V_PWL+1}, 32, v{V_PWL}")
    A(f"s_lshl_b32 s{T+5}, s{T+3}, 5")
    A(f"s_add_u32 s{T+5}, s{T+5}, 128")
    A(f"v_xor_b32 v{V_PWL+2}, s{T+5}, v{G+3}")
    A(f"v_lshlrev_b32 v{G+2}, 9, v{G+1}")
    A(f"v_bfe_u32 v{G+3}, v0, 3, 1")
    A(f"v_lshl_add_u32 v{G+4}, v{G+3}, 8, v{G+2}")
    A(f"v_and_b32 v{G+3}, 7, v0")
    A(f"v_lshl_add_u32 v{V_OA}, v{G+3}, 4, v{G+4}")
    A(f"v_lshl_add_u32 v{V_OAV}, v{G}, 4, v{G+2}")
    A(f"v_mov_b32 v{V_SCHI}, s{S_SCA}")
    A(f"v_cmp_gt_u32 vcc, 3, v{G+1}")
    A("s_nop 1")
    A(f"v_cndmask_b32 v{V_SCHI}, 0, v{V_SCHI}, vcc")
    A(f"s_lshl_b32 s{T+5}, s{T+3}, 4")
    A(f"v_add_u32 v{G+2}, s{T+5}, v{G}")
    A(f"v_cmp_gt_u32 vcc, 28, v{G+2}")
    A("s_nop 1")
    A(f"v_cndmask_b32 v{V_MULHI}, 0, 1.0, vcc")
    A(f"v_cmp_eq_u32 vcc, 28, v{G+2}")
    A("s_nop 1")
    A(f"v_cndmask_b32 v{V_ADDHI}, 0, 1.0, vcc")
    A(f"s_lshl_b32 s{T+6}, s{T+2}, 15")
    A(f"s_lshl_b32 s{T+5}, s{T+3}, 12")
    A(f"s_add_u32 s{T+6}, s{T+6}, s{T+5}")
    A(f"s_add_u32 s{T+6}, s{T+6}, {XQ}")
    A(f"v_add_u32 v{V_XQW}, s{T+6}, v{V_LANE16}")
    A(f"s_lshl_b32 s{T+6}, s{S_WAVE}, 13")
    A(f"s_add_u32 s{T+6}, s{T+6}, {XQ}")
    A(f"v_add_u32 v{V_XQR}, s{T+6}, v{V_LANE16}")
    A("s_waitcnt vmcnt(16)")
    A(f"s_mov_b32 s{S_W12}, 0")
    A(f"s_lshl_b32 s{S_W4}, s{S_PHASE}, 2")
    A(f"s_add_u32 s{S_W4}, s{S_W4}, {WS_G}")
    A(f"s_mov_b32 s{S_LEFT}, 14")
    A(f"s_mov_b32 s{S_PHASE}, 0")
    A(f"s_mov_b32 s{SRD_WS+2}, 0")
    A(f"s_mov_b32 s{SRD_DBG+2}, 0")
    A(f"s_lshl_b32 s{S_TOFF}, s2, 2")
    A(f"s_add_u32 s{S_TOFF}, s{S_TOFF}, s{S_WAVE}")
    A(f"s_lshl_b32 s{S_TBOFF}, s{S_TOFF}, 13")
    A(f"s_mov_b64 {sr(S_TA,2)}, {sr(P_WQ,2)}")
    A(f"s_mov_b32 s{S_TASZ}, {448*4096*2}")
    A(f"s_mov_b32 s{S_TAOFF}, s{S_TBOFF}")
    for first_u, ptr, size in ((448, P_X, 2048*448*2), (672, P_WQKV, 448*1344*2), (819, P_WOA, 448*448*2)):
        A(f"s_sub_u32 s{T}, s{S_TBOFF}, {first_u*8192}")
        A(f"s_cmp_ge_u32 s{S_TOFF}, {first_u}")
        A(f"s_cselect_b64 {sr(S_TA,2)}, {sr(ptr,2)}, {sr(S_TA,2)}")
        A(f"s_cselect_b32 s{S_TASZ}, {size}, s{S_TASZ}")
        A(f"s_cselect_b32 s{S_TAOFF}, s{T}, s{S_TAOFF}")
    na = cfg.get("tna", 10)
    for n, dst, t0 in ((na, S_TAT, 2),):
        A(f"s_mul_i32 s{T}, s{S_TOFF}, {(65536 + n - 1)//n}")
        A(f"s_lshr_b32 s{T}, s{T}, 16")
        A(f"s_mul_i32 s{T}, s{T}, {n}")
        A(f"s_sub_u32 s{dst}, s{S_TOFF}, s{T}")
        A(f"s_add_u32 s{dst}, s{dst}, {t0}")
    A(f"s_lshr_b32 s{S_TOFF2}, s2, 3")
    A(f"s_lshl_b32 s{S_TOFF2}, s{S_TOFF2}, 2")
    A(f"s_add_u32 s{S_TOFF2}, s{S_TOFF2}, s{S_WAVE}")
    A(f"s_lshl_b32 s{S_TOFF2}, s{S_TOFF2}, {6 + cfg.get('tsh', 7)}")
    A(f"s_getpc_b64 {sr(S_PC,2)}")
    A.label("LM_PC")
    A(f"s_bfe_u32 s{S_CSTEP}, s2, 0x30004")
    A(f"s_add_u32 s{S_CSTEP}, s{S_CSTEP}, 2")
    A(f"s_cmp_eq_u32 s{S_WAVE}, 0")
    A(f"s_cselect_b32 s{S_CSTEP}, s{S_CSTEP}, 99")
    A(f"s_and_b32 s{T}, s2, 15")
    A(f"s_lshl_b32 s{T}, s{T}, 4")
    A(f"v_lshlrev_b32 v{V_CRT+1}, 12, v0")
    A(f"v_add_u32 v{V_CRT+1}, s{T}, v{V_CRT+1}")
    A(f"v_mov_b32 v{V_CRT}, 1")
    A(f"v_and_b32 v{V_SIG+1}, 15, v0")
    A(f"v_lshlrev_b32 v{V_SIG+1}, 4, v{V_SIG+1}")
    A(f"v_lshlrev_b32 v{V_TCH}, {cfg.get('tsh', 7)}, v0")
    if cfg.get("thalf"):
        A(f"v_lshlrev_b32 v{V_TCH}, 7, v0")
        A(f"v_mov_b32 v{V_TCH+1}, 0x40000000")
        A(f"v_cmp_gt_u32 vcc, 32, v0")
        A("s_nop 1")
        A(f"v_cndmask_b32 v{V_TCH}, v{V_TCH+1}, v{V_TCH}, vcc")
    A("s_barrier")
    A.emit_list(g_reads(0, 0))
    A("s_waitcnt lgkmcnt(0)")
    A(f"s_cmp_eq_u32 s{S_TYPE}, 1")
    A("s_cbranch_scc1 LG_VT")
    n_early = cfg.get("n_early", 16)
    for typ in ("KQ", "V"):
        if typ == "V":
            A.label("LG_VT")
        g_step(A, typ, True, cfg)
        A.label(f"LG_LOOP_{typ}")
        g_step(A, typ, False, cfg)
        A(f"s_cbranch_scc1 LG_LOOP_{typ}")
        A(f"s_cmp_eq_u32 s{S_PHASE}, 16")
        A(f"s_cbranch_scc1 LG_EPI_{typ}")
        A(f"s_mov_b32 s{S_LEFT}, 2")
        A(f"s_cmp_eq_u32 s{S_WAVE}, 0")
        A(f"s_cselect_b32 s{SRD_DBG+2}, 256, 0")
        A(f"buffer_load_dword v{V_SIG}, v{V_SIG+1}, {sr(SRD_DBG,4)}, 0 offen sc1")
        A(f"s_mov_b32 s{SRD_DBG+2}, 0")
        A(f"s_mov_b32 s{SRD_A}, s{S_X2LO}")
        A(f"s_mov_b32 s{SRD_A+1}, s{S_X2HI}")
        A(f"s_mov_b32 s{SRD_A+2}, s{S_X2N}")
        A(f"s_mov_b32 s{S_XOFF}, s{S_XOFF2}")
        A(f"s_mov_b32 s{S_XSTA}, s{S_XSTA2}")
        A(f"s_mov_b32 s{S_XSTB}, s{S_XSTB2}")
        A(f"s_mov_b32 s{S_XWRAP}, s{S_XWRAP2}")
        A(f"v_mov_b32 v{V_DX}, v{V_DX2}")
        A(f"s_mov_b32 s{SRD_B}, s{P_WQ}")
        A(f"s_mov_b32 s{SRD_B+1}, s{P_WQ+1}")
        A(f"s_mov_b32 s{SRD_B+2}, {448*4096*2}")
        A(f"s_mov_b32 s{S_WOFF}, s{S_WOFF2}")
        A(f"s_branch LG_LOOP_{typ}")
        A.label(f"LG_EPI_{typ}")
        stamp(A, cfg, 1)
        set_srd(A, SRD_WS, P_WS, WS_SIZE)
        A(f"s_mov_b32 s{SRD_DBG+2}, 256")
        lok, llp = A.newlabel("LM"), A.newlabel("LM")
        A(f"v_cmp_le_u32 vcc, 16, v{V_SIG}")
        A(f"s_cmp_lg_u32 s{S_WAVE}, 0")
        A(f"s_cbranch_scc1 {lok}")
        A(f"s_mov_b32 s{T+1}, {SPIN_MAX}")
        A.label(llp)
        A("s_nop 3")
        A("s_cmp_eq_u64 vcc, -1")
        A(f"s_cbranch_scc1 {lok}")
        A(f"s_sub_u32 s{T+1}, s{T+1}, 1")
        A(f"s_cmp_eq_u32 s{T+1}, 0")
        A(f"s_cbranch_scc1 {lok}")
        A("s_sleep 32")
        A(f"buffer_load_dword v{V_SIG}, v{V_SIG+1}, {sr(SRD_DBG,4)}, 0 offen sc1")
        A("s_waitcnt vmcnt(0)")
        A(f"v_cmp_le_u32 vcc, 16, v{V_SIG}")
        A(f"s_branch {llp}")
        A.label(lok)
        if cfg.get("gdiag"):
            A(f"s_lshl_b32 s{T}, s2, 2")
            A(f"s_add_u32 s{T}, s{T}, s{S_WAVE}")
            A(f"s_lshl_b32 s{T}, s{T}, 9")
            A(f"s_add_u32 s{T}, s{T}, {232 << 20}")
            A(f"v_lshrrev_b32 v242, 2, v{V_LANE16}")
            A(f"buffer_store_dword v240, v242, {sr(SRD_WS,4)}, s{T} offen")
            A(f"buffer_store_dword v241, v242, {sr(SRD_WS,4)}, s{T} offen offset:256")
        A(f"s_mov_b32 s{S_XOFF2}, s{S_OB}")
        A.emit_list(p_addr(16))
        A.emit_list(p_reads(0, 0))
        g_cvt(A, typ, n_early)
        if typ == "KQ":
            A("s_branch LP_START")
    A.label("LP_START")
    if cfg.get("stamp_lp"):
        stamp(A, cfg, 3)
    A("s_waitcnt lgkmcnt(0)")
    rem = list(range(n_early, 32))
    per = cfg.get("st_per", [4, 4, 4, 4])
    k = 0
    for T_ in range(16, 23):
        st = []
        for h in range(2):
            n = per[k] if k < len(per) else 0
            k += 1
            st.append(rem[:n])
            rem = rem[n:]
        p_step(A, T_, st[0], st[1], cfg)
    assert not rem, rem
    stamp(A, cfg, 2)
    b_setup_kv(A)
    def kv_first():
        for w, s_ in (("K", 0), ("V", 0), ("K", 1), ("V", 1), ("K", 2), ("V", 2)):
            emit_chain(A, kv_tile_chain(w, s_))
    A("s_waitcnt vmcnt(0)")
    poll_test(A)
    A(f"s_cselect_b32 s{S_EV}, 1, 0")
    A("s_cbranch_scc0 LP_NOTYET")
    kv_first()
    A.label("LP_NOTYET")
    A(f"s_cmp_eq_u32 s{S_GRP}, 0")
    A("s_cbranch_scc1 LP_NOLATE")
    A(f"s_mov_b32 s{S_OB}, s{S_XOFF2}")
    for c in range(32):
        for o_ in kv_store(c, SRD_WS):
            A(o_.text)
    A("s_nop 1")
    A.label("LP_NOLATE")
    p_epilogue_a(A)
    p_epilogue_q(A)
    b_setup_rest(A)
    A(f"s_cmp_eq_u32 s{S_EV}, 1")
    A("s_cbranch_scc1 LP_HAVE")
    poll_wait(A, True)
    kv_first()
    A.label("LP_HAVE")
    b_main(A, cfg)
    stamp_out(A, cfg, 7, 200 << 20, 2)
    A.label("LQ_NEXT")
    lp = A.newlabel("LQ")
    A(f"s_cmp_eq_u32 s{S_POPPED}, 1")
    A(f"s_cbranch_scc1 {lp}")
    pop_issue(A)
    A.label(lp)
    A(f"s_mov_b32 s{S_POPPED}, 0")
    lw = A.newlabel("LQ")
    A(f"s_cmp_lg_u32 s{S_WAVE}, 0")
    A(f"s_cbranch_scc1 {lw}")
    A("s_waitcnt vmcnt(0)")
    A(f"v_mov_b32 v{V_POLL+1}, {LDS_TOTAL-16}")
    A("s_mov_b64 exec, 1")
    A(f"ds_write_b32 v{V_POLL+1}, v{V_POP}")
    A("s_mov_b64 exec, -1")
    A.label(lw)
    A("s_waitcnt vmcnt(0) lgkmcnt(0)")
    A("s_barrier")
    ls = A.newlabel("LQ")
    A(f"s_cmp_eq_u32 s{S_RFLAG}, 0")
    A(f"s_cbranch_scc1 {ls}")
    signal(A, S_RFLAG, mask_sgpr=S_RMASK)
    A.label(ls)
    A(f"v_mov_b32 v{V_POLL+1}, {LDS_TOTAL-16}")
    A(f"ds_read_b32 v{V_POLL}, v{V_POLL+1}")
    A("s_waitcnt lgkmcnt(0)")
    A(f"v_readfirstlane_b32 s{S_ITEM}, v{V_POLL}")
    A("s_barrier")
    NA = a_counts(cfg)[3]
    A(f"s_cmp_ge_u32 s{S_ITEM}, {NA + 56}")
    A("s_cbranch_scc1 LM_FIN")
    A(f"s_cmp_ge_u32 s{S_ITEM}, {NA}")
    A("s_cbranch_scc1 LQ_RED")
    a_item(A, cfg)
    if cfg.get("diag"):
        A(f"s_and_b32 s{T+2}, s2, 7")
        A(f"s_lshl_b32 s{T+3}, s{S_ITEM}, 3")
        A(f"s_add_u32 s{T+2}, s{T+2}, s{T+3}")
        stamp_out(A, cfg, 5, 210 << 20, T + 2)
    A("s_branch LQ_NEXT")
    A.label("LQ_RED")
    A(f"s_mov_b32 s{S_RFLAG}, 0")
    r_item(A, cfg)
    if cfg.get("diag"):
        A(f"s_and_b32 s{T+2}, s2, 7")
        A(f"s_sub_u32 s{T+3}, s{S_ITEM}, {NA}")
        A(f"s_lshl_b32 s{T+3}, s{T+3}, 3")
        A(f"s_add_u32 s{T+2}, s{T+2}, s{T+3}")
        stamp_out(A, cfg, 3, 220 << 20, T + 2)
    A("s_branch LQ_NEXT")
    flush_ool(A)
    b_rare(A, 0)
    b_rare(A, 1)
    a_rare(A, 0)
    a_rare(A, 1)
    A.label("LM_FIN")
    stamp_out(A, cfg, 1, 230 << 20, 2)
    A.label("LM_END")
    A("s_endpgm")
    return kernel_desc(name, 512, 102, 256)
```

```python
import math
from asmlib import *

WS_K = 0
WS_V = 16 << 20
WS_QA = 48 << 20
WS_KA = 50 << 20
WS_VA = 52 << 20
WS_P = 64 << 20
WS_SIZE = 256 << 20
P_SLOT = 128 * 14 * 1024
LOG2E = math.log2(math.e)
SCALE_B = LOG2E / 16.0
SCALE_A = LOG2E / math.sqrt(28.0)
LDS_TOTAL = 163840
LDS_X0 = 65536
BIAS = 32.0
NEG_INF = 0xff800000
HUGE = WS_SIZE
SPIN_MAX = 1 << 16

C_QUEUE = 1
WS_F = 240 << 20
F_KV, F_AQ, F_ROW = WS_F, WS_F + 8192, WS_F + 12288
F_H, F_Q = WS_F + 9216, WS_F + 10240
WS_QS = 32 << 20
WS_H = 128 << 20
WS_G = 241 << 20

P_X, P_WQKV, P_WOA, P_CKV, P_WQ, P_WUK, P_WUV = 4, 6, 30, 12, 14, 16, 18
P_WOB, P_GATE, P_OUT, P_DBG, P_WS = 20, 22, 24, 26, 28
SRD_A, SRD_B, SRD_WS, SRD_DBG = 32, 36, 40, 44
S_WAVE, S_TYPE, S_HEAD, S_QB = 48, 49, 50, 51
S_XOFF, S_WOFF, S_XSTA, S_XSTB, S_XWRAP, S_W4, S_W12 = 52, 53, 54, 55, 56, 57, 58
S_XRD, S_XWR, S_WWR, S_XWAVE, S_LEFT, S_PHASE = 59, 60, 61, 62, 63, 64
S_OB, S_OSTA, S_OSTB = 65, 66, 67
S_XOFF2, S_WOFF2, S_XSTA2, S_XSTB2, S_XWRAP2, S_X2LO, S_X2HI, S_X2N = 68, 69, 70, 71, 72, 73, 74, 75
S_OBQK, S_OBV, S_SCA, S_GHEAD = 76, 77, 78, 79
S_N, S_T2, S_TW, S_KOFF, S_VOFF, S_KLIM, S_VLIM, S_B0 = 52, 53, 54, 55, 56, 57, 58, 59
S_RET = 60
S_FLOOR, S_FIRST = 62, 64
S_WOOFF, S_POFF, S_MASK, S_HUGE, S_WOW = 65, 66, 67, 68, 69
S_SC = 70
S_BL1 = 67
S_POFF1 = 71
S_ITEM = 72
S_SPIN = 73
S_EV = 74
S_PADDR = 75
S_RMASK = 77
S_AQOK = 79
S_ROLE, S_SEG1, S_HOFF, S_HIDX = 12, 13, 16, 17
S_POPPED = 49
S_KAP = 78
S_RFLAG = 76
S_TMP = 80
S_STAMP = 88
SRD_E = 8
S_TOFF = 87
S_PC = 84
S_TOFF2 = 86
S_TA, S_TASZ, S_TAOFF, S_TAT, S_TBOFF, S_TBT = 12, 16, 17, 18, 19, 22
S_CSTEP = 83
V_CRT = 42
V_TCH = 40
S_GRP = 3

V_LANE16 = 1
V_XL0, V_XL1, V_XR0, V_XR1 = 2, 3, 4, 5
V_WR = 6
V_DX, V_DW, V_DX2 = 14, 15, 16
V_OA, V_OAV, V_SCHI, V_MULHI, V_ADDHI = 17, 18, 19, 20, 21
V_PXL = 22
V_PWL = 24
V_PWR = 27
V_XQW, V_XQR = 30, 31
V_G = 32
V_CV = 48
FX = [64, 128]
FW = [96, 160]
V_PK = 128
V_DKV = 2
V_RB1, V_RB0 = 3, 4
V_CB = 6
V_L = 8
V_DM = 10
V_LT = 14
V_T = 16
V_WOD = 32
V_WOR = 40
V_POLL = 44
V_SIG = 46
V_POP = 5
VP = [48, 56]
VS = [64, 80]
VC = 96
VE = 112
VO = 128
AQ, AK, AV = 0, 64, 128
XQ = 98304

OOL = []


def flush_ool(A):
    for b in OOL:
        A.emit_list(b)
    OOL.clear()


def emit_chain(A, c):
    prev = ""
    for o in c:
        if o.kind == "M" and prev.split(",")[0].endswith(" m0"):
            A("s_nop 0")
        A(o.text)
        prev = o.text


def emit_left(A, left):
    for l in left:
        A(l)
        if l.split(",")[0].endswith(" m0") or l.startswith("v_exp"):
            A("s_nop 0")


def spread(n_items, start, end):
    if n_items == 1:
        return [start]
    return [start + (i * (end - start)) // (n_items - 1) for i in range(n_items)]


def set_srd(A, srd, ptr, size):
    A(f"s_mov_b32 s{srd}, s{ptr}")
    A(f"s_mov_b32 s{srd+1}, s{ptr+1}")
    A(f"s_mov_b32 s{srd+2}, {size}")
    A(f"s_mov_b32 s{srd+3}, 0x20000")


def stamp(A, cfg, i):
    if cfg.get("diag"):
        A(f"s_memrealtime {sr(S_STAMP+2*i,2)}")


def stamp_out(A, cfg, n, wsoff, idx_sgpr):
    if cfg.get("diag"):
        A("s_waitcnt vmcnt(0) lgkmcnt(0)")
        A(f"s_memrealtime {sr(S_STAMP+2*(n-1),2)}")
        A("s_waitcnt lgkmcnt(0)")
        A(f"s_lshl_b32 s{S_TMP}, s{idx_sgpr}, 8")
        A(f"s_lshl_b32 s{S_TMP+1}, s{S_WAVE}, 6")
        A(f"s_add_u32 s{S_TMP}, s{S_TMP}, s{S_TMP+1}")
        A(f"s_add_u32 s{S_TMP}, s{S_TMP}, {wsoff}")
        A(f"v_mov_b32 v{V_T+1}, 0")
        for i in range(n):
            A(f"v_mov_b32 v{V_T}, s{S_STAMP+2*i}")
            A(f"buffer_store_dword v{V_T}, v{V_T+1}, {sr(SRD_WS,4)}, s{S_TMP} offen offset:{4*i}")
            A("s_nop 1")


def signal(A, off_sgpr, grp=None, mask_sgpr=None):
    l = A.newlabel("LSG")
    A(f"s_cmp_lg_u32 s{S_WAVE}, 0")
    A(f"s_cbranch_scc1 {l}")
    if grp is not None:
        A(f"s_cmp_lg_u32 s{S_GRP}, {grp}")
        A(f"s_cbranch_scc1 {l}")
    A(f"v_mov_b32 v{V_SIG}, 1")
    A(f"v_lshlrev_b32 v{V_SIG+1}, 5, v0")
    A("s_mov_b64 exec, 1")
    if mask_sgpr is not None:
        A(f"s_mov_b32 exec_lo, s{mask_sgpr}")
    A(f"buffer_store_dword v{V_SIG}, v{V_SIG+1}, {sr(SRD_WS,4)}, s{off_sgpr} offen sc1")
    A("s_mov_b64 exec, -1")
    A.label(l)


def pop_issue(A):
    l = A.newlabel("LPO")
    A(f"s_mov_b32 s{S_POPPED}, 1")
    A(f"s_cmp_lg_u32 s{S_WAVE}, 0")
    A(f"s_cbranch_scc1 {l}")
    A(f"s_and_b32 s{S_TMP+7}, s2, 7")
    A(f"s_lshl_b32 s{S_TMP+7}, s{S_TMP+7}, 5")
    A(f"v_mov_b32 v{V_POP}, 1")
    A(f"v_mov_b32 v{V_SIG+1}, 0")
    A("s_mov_b64 exec, 1")
    A(f"buffer_atomic_add v{V_POP}, v{V_SIG+1}, {sr(SRD_DBG,4)}, s{S_TMP+7} offen offset:{C_QUEUE*4} sc0")
    A("s_mov_b64 exec, -1")
    A.label(l)


def poll_issue(A, idx_sgpr, base, nwords):
    A(f"s_lshl_b32 s{S_PADDR}, s{idx_sgpr}, 8")
    A(f"s_add_u32 s{S_PADDR}, s{S_PADDR}, {base}")
    A(f"v_min_u32 v{V_POLL+1}, {nwords-1}, v0")
    A(f"v_lshlrev_b32 v{V_POLL+1}, 2, v{V_POLL+1}")
    A(f"buffer_load_dword v{V_POLL}, v{V_POLL+1}, {sr(SRD_WS,4)}, s{S_PADDR} offen sc1")


def poll_test(A):
    A(f"v_cmp_eq_u32 vcc, 1, v{V_POLL}")
    A("s_nop 3")
    A("s_cmp_eq_u64 vcc, -1")


def poll_wait(A, reissue_first=False):
    lok, lloop = A.newlabel("LPK"), A.newlabel("LPL")
    A(f"s_mov_b32 s{S_SPIN}, {SPIN_MAX}")
    if reissue_first:
        A(f"buffer_load_dword v{V_POLL}, v{V_POLL+1}, {sr(SRD_WS,4)}, s{S_PADDR} offen sc1")
    A.label(lloop)
    A("s_waitcnt vmcnt(0)")
    poll_test(A)
    A(f"s_cbranch_scc1 {lok}")
    A(f"s_sub_u32 s{S_SPIN}, s{S_SPIN}, 1")
    A(f"s_cmp_eq_u32 s{S_SPIN}, 0")
    A(f"s_cbranch_scc1 {lok}")
    A("s_sleep 8")
    A(f"buffer_load_dword v{V_POLL}, v{V_POLL+1}, {sr(SRD_WS,4)}, s{S_PADDR} offen sc1")
    A(f"s_branch {lloop}")
    A.label(lok)


def acc(nb, tb):
    return (nb * 8 + tb) * 4


def g_mfmas(typ, s, first):
    out = []
    for nb in range(8):
        for tb in range(8):
            a = acc(nb, tb)
            w, x = vr(FW[s] + 4 * nb, 4), vr(FX[s] + 4 * tb, 4)
            c = "0" if first else ar(a, 4)
            out.append(f"v_mfma_f32_16x16x32_bf16 {ar(a,4)}, {w}, {x}, {c}" if typ == "KQ"
                       else f"v_mfma_f32_16x16x32_bf16 {ar(a,4)}, {x}, {w}, {c}")
    return out


def g_reads(s, hh):
    vx = V_XR0 if hh == 0 else V_XR1
    out = [f"ds_read_b128 {vr(FX[s]+4*i,4)}, v{vx} offset:{i*2048}" for i in range(8)]
    for i in range(8):
        out.append(f"ds_read_b64_tr_b16 {vr(FW[s]+4*i,2)}, v{V_WR+i} offset:{hh*16384}")
        out.append(f"ds_read_b64_tr_b16 {vr(FW[s]+4*i+2,2)}, v{V_WR+i} offset:{hh*16384+2048}")
    return out


def dma_x():
    c = [Op(f"s_mov_b32 m0, s{S_XWR}", "S")]
    for i in range(8):
        c.append(Op(f"buffer_load_dwordx4 v{V_DX}, {sr(SRD_A,4)}, s{S_XOFF} offen lds", "M"))
        if i < 7:
            c.append(Op("s_add_u32 m0, m0, 2048", "S"))
            c.append(Op(f"s_add_u32 s{S_XOFF}, s{S_XOFF}, s{S_XSTA if i % 2 == 0 else S_XSTB}", "S"))
        else:
            c.append(Op(f"s_add_u32 s{S_XOFF}, s{S_XOFF}, s{S_XWRAP}", "S"))
            c.append(Op(f"s_add_u32 s{S_XWR}, s{S_XWR}, 32768", "S"))
            c.append(Op(f"s_cmp_ge_u32 s{S_XWR}, {LDS_TOTAL}", "S"))
            c.append(Op(f"s_cselect_b32 s{S_XWR}, s{S_XWAVE}, s{S_XWR}", "S"))
    return c


def dma_w():
    c = [Op(f"s_mov_b32 m0, s{S_WWR}", "S")]
    for i in range(8):
        c.append(Op(f"buffer_load_dwordx4 v{V_DW}, {sr(SRD_B,4)}, s{S_WOFF} offen lds", "M"))
        if i % 2 == 0:
            c.append(Op("s_add_u32 m0, m0, 2048", "S"))
            c.append(Op(f"s_add_u32 s{S_WOFF}, s{S_WOFF}, {4*8192}", "S"))
        else:
            if i < 7:
                c.append(Op("s_add_u32 m0, m0, 6144", "S"))
            c.append(Op(f"s_add_u32 s{S_WOFF}, s{S_WOFF}, {12*8192}", "S"))
        if i == 7:
            c.append(Op(f"s_xor_b32 s{S_WWR}, s{S_WWR}, 32768", "S"))
    return c


HT = "DFDMDFDF" * 6 + "FMFFFFFM" + "FFFFFFFX"


def gate_ops():
    c = V_CV
    par, prevs = [], []
    acc_prev = Op(f"v_mov_b32 v{c+8}, 0", "V")
    par.append(acc_prev)
    for i in range(8):
        x, g = 192 + i, 200 + i
        t = 208 + 4 * i
        a = Op(f"v_lshlrev_b32 v{t}, 16, v{x}", "V")
        b = Op(f"v_and_b32 v{t+1}, 0xffff0000, v{x}", "V")
        d = Op(f"v_lshlrev_b32 v{t+2}, 16, v{g}", "V")
        e = Op(f"v_and_b32 v{t+3}, 0xffff0000, v{g}", "V")
        m0 = Op(f"v_mul_f32 v{t}, v{t}, v{t+2}", "V", [a, d])
        m1 = Op(f"v_mul_f32 v{t+1}, v{t+1}, v{t+3}", "V", [b, e])
        cv = Op(f"v_cvt_pk_bf16_f32 v{t}, v{t}, v{t+1}", "V", [m0, m1])
        lo = Op(f"v_lshlrev_b32 v{t+1}, 16, v{t}", "V", [cv])
        hi = Op(f"v_and_b32 v{t+2}, 0xffff0000, v{t}", "V", [cv])
        s0 = Op(f"v_add_f32 v{c+8}, v{c+8}, v{t+1}", "V", [lo, acc_prev])
        s1 = Op(f"v_add_f32 v{c+8}, v{c+8}, v{t+2}", "V", [hi, s0])
        acc_prev = s1
        par += [a, b, d, e, m0, m1, cv, lo, hi, s0, s1]
    v, w = c + 8, c + 9
    tail = []
    for r in (8, 4, 2, 1):
        tail += ["s_nop 0", f"v_add_f32_dpp v{v}, v{v}, v{v} row_ror:{r} row_mask:0xf bank_mask:0xf"]
    tail += [f"v_mov_b32 v{w}, v{v}", "s_nop 0", f"v_permlane16_swap_b32 v{w}, v{v}", "s_nop 0", f"v_add_f32 v{v}, v{v}, v{w}",
             f"v_cvt_pk_bf16_f32 v{v}, v{v}, v{v}", f"v_lshlrev_b32 v{v}, 16, v{v}", f"v_mul_f32 v{v}, {f32bits(-LOG2E):#x}, v{v}",
             f"v_exp_f32 v{v}, v{v}", f"v_add_f32 v{v}, 1.0, v{v}", f"v_rcp_f32 v{v}, v{v}", f"v_cvt_pk_bf16_f32 v{v}, v{v}, v{v}",
             f"v_lshlrev_b32 v{v}, 16, v{v}", f"v_lshrrev_b32 v{w}, 5, v0", f"v_lshlrev_b32 v{w}, 2, v{w}"]
    tl, prev = [], None
    for t in tail:
        o = Op(t, "V", [prev] if prev else [])
        tl.append(o)
        prev = o
    return par, tl


def g_step(A, typ, first, cfg):
    lastD = max(i for i, c in enumerate(HT) if c == "D")
    va = [Op(f"v_add_u32 v{V_XR0}, s{S_XRD}, v{V_XL0}", "V", min_gap=lastD + 1),
          Op(f"v_add_u32 v{V_XR1}, s{S_XRD}, v{V_XL1}", "V", min_gap=lastD + 1)]
    va += [Op(f"v_xor_b32 v{V_WR+i}, 0x8000, v{V_WR+i}", "V", min_gap=lastD + 1) for i in range(8)]
    gp, gt = gate_ops() if first else ([], [])
    va = va + gp[:58]
    tch = [Op(f"buffer_load_dword v{V_TCH+1}, v{V_TCH}, {sr(SRD_WS,4)}, s{S_TOFF} offen {cfg.get('tfl','')}", "M"),
           Op(f"buffer_atomic_add v{V_CRT}, v{V_CRT+1}, {sr(SRD_DBG,4)}, 0 offen", "M")]
    ht1 = HT[:59] + "MFM" + HT[62:]
    out, _ = schedule(g_mfmas(typ, 0, first), ht1, g_reads(1, 1), dma_x() + tch, va,
                      {63: ["s_waitcnt vmcnt(10) lgkmcnt(0)", "s_barrier"]}, salu_first=True)
    A.emit_list(out)
    ch = [Op(f"s_add_u32 s{S_XRD}, s{S_XRD}, 32768", "S"), Op(f"s_cmp_ge_u32 s{S_XRD}, {LDS_TOTAL}", "S"),
          Op(f"s_cselect_b32 s{S_XRD}, {LDS_X0}, s{S_XRD}", "S")]
    groups = [[Op(f"s_add_u32 s{S_PHASE}, s{S_PHASE}, 1", "S"), Op(f"s_mov_b32 s{SRD_WS+2}, 0", "S")]]
    for when, base, size, off in ((f"s{S_TAT}", S_TA, f"s{S_TASZ}", S_TAOFF),
                                  (cfg.get("warm_at", 13), S_PC, "LM_END-LM_PC", S_TOFF2)):
        groups.append([Op(f"s_cmp_eq_u32 s{S_PHASE}, {when}", "S"),
                       Op(f"s_cselect_b64 {sr(SRD_WS,2)}, {sr(base,2)}, {sr(SRD_WS,2)}", "S"),
                       Op(f"s_cselect_b32 s{SRD_WS+2}, {size}, s{SRD_WS+2}", "S"),
                       Op(f"s_cselect_b32 s{S_TOFF}, s{off}, s{S_TOFF}", "S")])
    groups.append([Op(f"s_cmp_eq_u32 s{S_PHASE}, s{S_CSTEP}", "S"), Op(f"s_cselect_b32 s{SRD_DBG+2}, 256, 0", "S")])
    if first:
        groups = groups[:1]
    merged = []
    for o in dma_w():
        merged.append(o)
        if o.kind == "M" and groups:
            merged += groups.pop(0)
    assert not groups
    ch = ch + merged + [Op(f"s_sub_u32 s{S_LEFT}, s{S_LEFT}, 1", "S"), Op(f"s_cmp_lg_u32 s{S_LEFT}, 0", "S")]
    for o in gp[:58]:
        o.gap = -1
    if gt:
        gt[0].deps = [gp[-1]]
    out, _ = schedule(g_mfmas(typ, 1, False), HT, g_reads(0, 0), ch, gp[58:] + gt, {63: ["s_waitcnt lgkmcnt(0)"]}, salu_first=True)
    A.emit_list(out)
    if cfg.get("gdiag"):
        A("s_memtime s[100:101]")
        A("s_memrealtime s[98:99]")
        A(f"s_mov_b32 m0, s{S_W12}")
        A("s_waitcnt lgkmcnt(0)")
        A("v_writelane_b32 v240, s100, m0")
        A("v_writelane_b32 v241, s98, m0")
        A(f"s_addk_i32 s{S_W12}, 1")
        A(f"s_cmp_lg_u32 s{S_LEFT}, 0")
    if first:
        A(f"s_mov_b32 s{SRD_WS+2}, {WS_SIZE}")
        A("s_mov_b32 exec_lo, 1")
        A("s_mov_b32 exec_hi, 1")
        A(f"buffer_store_dword v{V_CV+8}, v{V_CV+9}, {sr(SRD_WS,4)}, s{S_W4} offen sc1")
        A("s_mov_b64 exec, -1")
        A(f"s_mov_b32 s{SRD_WS+2}, 0")


KVFL = "sc1"


def kv_store(c, srd=None):
    srd = SRD_E if srd is None else srd
    ops = []
    if c and c % 4 == 0:
        ops.append(Op(f"s_add_u32 s{S_OB}, s{S_OB}, s{S_OSTA if (c // 4) % 2 == 1 else S_OSTB}", "S"))
    ops.append(Op(f"buffer_store_dwordx4 {vr(V_PK+4*c,4)}, v{V_LANE16}, {sr(srd,4)}, s{S_OB} offen offset:{(c%4)*1024} {KVFL}", "M"))
    return ops


def g_cvt(A, typ, n_early):
    for c in range(32):
        hi, lo = c // 4, c % 4
        if typ == "KQ":
            o, p = hi, lo
            regs = [acc(2 * p, o) + r for r in range(4)] + [acc(2 * p + 1, o) + r for r in range(4)]
        else:
            p, o = hi >> 1, (hi & 1) * 4 + lo
            regs = [acc(o, 2 * p) + r for r in range(4)] + [acc(o, 2 * p + 1) + r for r in range(4)]
        t = V_CV + (c % 2) * 8
        for i, r in enumerate(regs):
            A(f"v_accvgpr_read_b32 v{t+i}, a{r}")
        for i in range(4):
            A(f"v_cvt_pk_bf16_f32 v{V_PK+4*c+i}, v{t+2*i}, v{t+2*i+1}")
        if n_early == 32:
            for o_ in kv_store(c):
                A(o_.text)
        else:
            k0, k1 = (c * n_early) // 32, ((c + 1) * n_early) // 32
            for k in range(k0, k1):
                for o_ in kv_store(k):
                    A(o_.text)


PF = [("v", 64), ("a", 176)]


def pfr(s, off, n):
    k, b = PF[s]
    return vr(b + off, n, k)


def p_mfmas(s, first):
    out = []
    for db in range(8):
        for tb in range(4):
            a = ar((db * 4 + tb) * 4, 4)
            out.append(f"v_mfma_f32_16x16x32_bf16 {a}, {pfr(s,16+4*db,4)}, {pfr(s,4*tb,4)}, {'0' if first else a}")
    for u in range(3):
        for tb in range(4):
            a = ar(128 + (u * 4 + tb) * 4, 4)
            w, x = pfr(s, 48 + 4 * u, 4), pfr(s, 4 * tb, 4)
            out.append(f"v_mfma_f32_16x16x32_bf16 {a}, {w}, {x}, {'0' if first else a}" if u < 2
                       else f"v_mfma_f32_16x16x32_bf16 {a}, {x}, {w}, {'0' if first else a}")
    return out


def p_reads(s, hh):
    out = [f"ds_read_b128 {pfr(s,4*tb,4)}, v{V_XR0+hh} offset:{tb*2048}" for tb in range(4)]
    for b in range(8):
        for e in range(2):
            out.append(f"ds_read_b64_tr_b16 {pfr(s,16+4*b+2*e,2)}, v{V_WR+b} offset:{hh*16384+e*2048}")
    for u in range(3):
        for e in range(2):
            out.append(f"ds_read_b64_tr_b16 {pfr(s,48+4*u+2*e,2)}, v{V_PWR+u} offset:{hh*8192+e*2048}")
    return out


def p_addr(T):
    base = LDS_X0 + (T % 3) * 32768
    return ([f"v_add_u32 v{V_XR0+h}, {base}, v{V_PXL+h}" for h in range(2)] +
            [f"v_add_u32 v{V_PWR+u}, {base}, v{V_PWL+u}" for u in range(3)])


def merge_chain(dmas, stores):
    out = []
    k = 0
    stores = list(stores)
    for o in dmas:
        out.append(o)
        if o.kind == "M":
            k += 1
            if k % 2 == 0 and stores:
                out += stores.pop(0)
    for s in stores:
        out += s
    return out


PT = "DDM" * 13 + "FFFFX"


def p_step(A, T, st1, st2, cfg):
    lastD = max(i for i, c in enumerate(PT) if c == "D")
    last = T == 22
    ch = merge_chain(dma_x() if T + 2 <= 22 else [], [kv_store(c) for c in st1])
    n_young = sum(1 for o in ch if o.kind == "M")
    va = []
    if not last:
        va = [Op(t, "V", min_gap=lastD + 1) for t in p_addr(T + 1)]
        va += [Op(f"v_xor_b32 v{V_WR+i}, 0x8000, v{V_WR+i}", "V", min_gap=lastD + 1) for i in range(8)]
    out, left = schedule(p_mfmas(0, T == 16), PT, p_reads(1, 1), ch, va, {}, strict=False)
    A.emit_list(out)
    emit_left(A, left)
    A(f"s_waitcnt vmcnt({n_young}) lgkmcnt(0)")
    A("s_barrier")
    if T == cfg.get("sig_at", 18):
        assert not st1 and not st2
        signal(A, S_GHEAD, grp=0)
    if last:
        poll_issue(A, S_HEAD, F_KV, 8)
    ch = merge_chain(dma_w() if T + 2 <= 22 else [], [kv_store(c) for c in st2])
    out, left = schedule(p_mfmas(1, False), PT, [] if last else p_reads(0, 0), ch, [], {}, strict=False)
    A.emit_list(out)
    emit_left(A, left)
    A("s_waitcnt lgkmcnt(0)")


def p_epilogue_a(A):
    gi = 0
    for tb in range(4):
        t = 64 + gi * 12
        gi += 1
        lo, hi = 128 + tb * 4, 128 + (4 + tb) * 4
        for r in range(4):
            A(f"v_accvgpr_read_b32 v{t+r}, a{lo+r}")
            A(f"v_accvgpr_read_b32 v{t+4+r}, a{hi+r}")
        for r in range(4):
            A(f"v_mul_f32 v{t+r}, s{S_SCA}, v{t+r}")
            A(f"v_mul_f32 v{t+4+r}, v{V_SCHI}, v{t+4+r}")
        for i in range(4):
            A(f"v_cvt_pk_bf16_f32 v{t+8+i}, v{t+2*i}, v{t+2*i+1}")
        A(f"buffer_store_dwordx4 {vr(t+8,4)}, v{V_OA}, {sr(SRD_WS,4)}, s{S_OBQK} offen offset:{(tb>>1)*2048+(tb&1)*128} sc1")
    for p in range(2):
        t = 128 + p * 12
        lo, hi = 128 + (8 + 2 * p) * 4, 128 + (8 + 2 * p + 1) * 4
        for r in range(4):
            A(f"v_accvgpr_read_b32 v{t+r}, a{lo+r}")
            A(f"v_accvgpr_read_b32 v{t+4+r}, a{hi+r}")
        for r in range(8):
            A(f"v_fma_f32 v{t+r}, v{t+r}, v{V_MULHI}, v{V_ADDHI}")
        for i in range(4):
            A(f"v_cvt_pk_bf16_f32 v{t+8+i}, v{t+2*i}, v{t+2*i+1}")
        A(f"buffer_store_dwordx4 {vr(t+8,4)}, v{V_OAV}, {sr(SRD_WS,4)}, s{S_OBV} offen offset:{p*2048} sc1")


def p_epilogue_q(A):
    gi = 0
    for tb in range(4):
        for p in range(4):
            t = 160 + (gi % 8) * 12
            gi += 1
            lo, hi = ((2 * p) * 4 + tb) * 4, ((2 * p + 1) * 4 + tb) * 4
            for r in range(4):
                A(f"v_accvgpr_read_b32 v{t+r}, a{lo+r}")
                A(f"v_accvgpr_read_b32 v{t+4+r}, a{hi+r}")
            for r in range(0, 8, 2):
                A(f"v_pk_mul_f32 {vr(t+r,2)}, {vr(t+r,2)}, {sr(S_SC,2)}")
            for i in range(4):
                A(f"v_cvt_pk_bf16_f32 v{t+8+i}, v{t+2*i}, v{t+2*i+1}")
            A(f"ds_write_b128 v{V_XQW}, {vr(t+8,4)} offset:{tb*8192+p*1024}")


def s_reg(buf, kb, qb):
    return VS[buf] + (kb * 2 + qb) * 4


def c_reg(kb, qb):
    return VC + (kb * 2 + qb) * 4


def o_reg(db, qb):
    return VO + (db * 2 + qb) * 4


def qk_mfmas(buf, qs=(0, 1)):
    out = []
    for dg in range(8):
        for kb in range(2):
            for qb in qs:
                d = vr(s_reg(buf, kb, qb), 4)
                c = vr(c_reg(kb, qb), 4) if dg == 0 else d
                out.append(f"v_mfma_f32_16x16x32_bf16 {d}, {ar(AK+(kb*8+dg)*4,4)}, {ar(AQ+(qb*8+dg)*4,4)}, {c}")
    return out


def pv_mfmas(pbuf, qs=(0, 1)):
    out = []
    for db in range(16):
        for qb in qs:
            d = vr(o_reg(db, qb), 4)
            out.append(f"v_mfma_f32_16x16x32_bf16 {d}, {ar(AV+db*4,4)}, {vr(VP[pbuf]+qb*4,4)}, {d}")
    return out


def k_reads(vbase, off):
    return [f"ds_read_b128 {ar(AK+(kb*8+dg)*4,4)}, v{vbase} offset:{off+(kb*8+dg)*1024}"
            for dg in range(8) for kb in range(2)]


def v_reads(vbase, off):
    return [f"ds_read_b128 {ar(AV+db*4,4)}, v{vbase} offset:{off+db*1024}" for db in range(16)]


def softmax_oplist(buf, pbuf, with_l=(0, 1), qs=(0, 1)):
    ops = []
    ladd = {qb: Op(f"v_add_f32 v{V_L+qb}, v{V_L+qb}, v{V_LT+qb}", "V") for qb in with_l}
    ops += list(ladd.values())
    lastsum = []
    for qb in qs:
        prev = None
        for kb in range(2):
            s = s_reg(buf, kb, qb)
            e = VE + (kb * 2 + qb) * 4
            ex = [Op(f"v_exp_f32 v{e+r}, v{s+r}", "E") for r in range(4)]
            ops += ex
            ops.append(Op(f"v_cvt_pk_bf16_f32 v{VP[pbuf]+qb*4+kb*2}, v{e}, v{e+1}", "V", [ex[0], ex[1]]))
            ops.append(Op(f"v_cvt_pk_bf16_f32 v{VP[pbuf]+qb*4+kb*2+1}, v{e+2}, v{e+3}", "V", [ex[2], ex[3]]))
            if kb == 0:
                prev = Op(f"v_add_f32 v{V_LT+qb}, v{e}, v{e+1}", "V", [ex[0], ex[1]] + ([ladd[qb]] if qb in ladd else []))
                ops.append(prev)
                rest = [2, 3]
            else:
                rest = [0, 1, 2, 3]
            for r in rest:
                prev = Op(f"v_add_f32 v{V_LT+qb}, v{V_LT+qb}, v{e+r}", "V", [ex[r], prev])
                ops.append(prev)
        lastsum.append(prev)
    if len(qs) == 2:
        mx = Op(f"v_max_f32 v{V_T+8}, v{V_LT}, v{V_LT+1}", "V", lastsum)
        ops.append(mx)
        ops.append(Op(f"v_cmp_ngt_f32 vcc, 2.0, v{V_T+8}", "V", [mx]))
    else:
        ops.append(Op(f"v_cmp_ngt_f32 vcc, 2.0, v{V_LT+qs[0]}", "V", lastsum))
    return ops


def softmax_linear(buf, pbuf):
    ops = softmax_oplist(buf, pbuf, with_l=())
    return [o.text for o in ops if o.kind == "E"] + ["s_nop 0"] + [o.text for o in ops if o.kind == "V"]


def kv_dma(soff, i):
    return Op(f"buffer_load_dwordx4 v{V_DKV}, {sr(SRD_WS,4)}, s{soff} offen offset:{i*1024} sc1 lds", "M")


def dma_chain(kdst, vdst, vmin):
    c = [Op(f"s_cmp_lt_u32 s{S_KOFF}, s{S_KLIM}", "S"), Op(f"s_cselect_b32 s{S_TMP}, s{S_KOFF}, s{S_HUGE}", "S"),
         Op(kdst, "S"), Op(f"s_add_u32 s{S_KOFF}, s{S_KOFF}, 16384", "S")]
    c += [kv_dma(S_TMP, i) for i in range(4)]
    c += [Op(f"s_cmp_lt_u32 s{S_VOFF}, s{S_VLIM}", "S", min_gap=vmin),
          Op(f"s_cselect_b32 s{S_TMP+1}, s{S_VOFF}, s{S_HUGE}", "S"),
          Op(vdst, "S"), Op(f"s_add_u32 s{S_VOFF}, s{S_VOFF}, 16384", "S")]
    c += [kv_dma(S_TMP + 1, i) for i in range(4)]
    return c


def kv_tile_chain(which, stage):
    off = S_KOFF if which == "K" else S_VOFF
    c = [Op(f"s_add_u32 m0, s{S_B0}, {stage*32768 + (0 if which == 'K' else 16384)}", "S")]
    c += [kv_dma(off, i) for i in range(4)]
    c.append(Op(f"s_add_u32 s{off}, s{off}, 16384", "S"))
    return c


def c_mask_ops(slot, kexpr):
    b = S_WAVE if slot == 0 else S_BL1
    sal, val = [], []
    for kb in range(2):
        sa, sm_ = S_TMP + 4 + 2 * kb, S_TMP + 5 + 2 * kb
        sal += [f"s_cmp_gt_u32 {kexpr(kb)}, s{b}", f"s_cselect_b32 s{sa}, {NEG_INF:#x}, 0",
                f"s_cmp_eq_u32 {kexpr(kb)}, s{b}", f"s_cselect_b32 s{sm_}, -1, 0"]
        t = V_T + 9 + kb
        val.append(f"v_add_f32 v{t}, s{sa}, v{V_CB+slot}")
        for r in range(4):
            val.append(f"v_and_b32 v{c_reg(kb,slot)+r}, s{sm_}, v{V_DM+r}")
        for r in range(4):
            val.append(f"v_add_f32 v{c_reg(kb,slot)+r}, v{c_reg(kb,slot)+r}, v{t}")
    return sal, val


def c_update(A, tile_sgpr):
    lool, lback = A.newlabel("LC"), A.newlabel("LC")
    T = S_TMP + 2
    o = [f"{lool}:", f"s_sub_u32 s{T}, s{tile_sgpr}, s{S_TW}", f"s_lshl_b32 s{T}, s{T}, 1", f"s_add_u32 s{T+1}, s{T}, 1"]
    sal, val = c_mask_ops(0, lambda kb: f"s{T+kb}")
    o += sal + val + [f"s_branch {lback}"]
    OOL.append(o)
    return [f"s_cmp_ge_u32 s{tile_sgpr}, s{S_TW}", f"s_cbranch_scc1 {lool}\n{lback}:"]


def rare_check(A, sb, pref="LB_RARE", half=False):
    lool, lback = A.newlabel("LR"), A.newlabel("LR")
    pre = []
    if half:
        pre = [f"v_mov_b32 v{s_reg(sb,kb,0)+r}, {NEG_INF:#x}" for kb in range(2) for r in range(4)]
    OOL.append([f"{lool}:"] + pre + [f"s_call_b64 {sr(S_RET,2)}, {pref}{sb}", f"s_branch {lback}"])
    return f"s_cbranch_vccnz {lool}\n{lback}:"


PH = "DDE" * 8 + "MEMEMEMX"


def b_iter(A, par, cfg, mode="full", last=None):
    pb_cur, pb_nxt = par, 1 - par
    sb_sm, sb_qk = 1 - par, par
    both, one = (0, 1), (1,)
    pv_q = both if mode in ("full", "t4", "t3", "f2", "f1") else one
    sm_q = {"full": both, "t4": both, "t3": one, "t2": one, "t1": (), "f2": both, "f1": ()}[mode]
    l_q = pv_q
    qk_q = {"full": both, "t4": one, "t3": one}.get(mode, ())
    if mode in ("t4", "t3"):
        A.emit_list(c_mask_ops(1, lambda kb: str((4 if mode == "t4" else 6) + kb))[0])
    A({"full": "s_waitcnt vmcnt(16) lgkmcnt(0)", "t4": "s_waitcnt vmcnt(16) lgkmcnt(0)", "t3": "s_waitcnt vmcnt(8) lgkmcnt(0)",
       "t2": "s_waitcnt vmcnt(8) lgkmcnt(0)", "t1": "s_waitcnt lgkmcnt(0)",
       "f2": "s_waitcnt vmcnt(0) lgkmcnt(0)", "f1": "s_waitcnt lgkmcnt(0)"}[mode])
    A("s_barrier")
    if mode == "t2":
        lool, lback = A.newlabel("LO"), A.newlabel("LO")
        A(f"s_cmp_eq_u32 s{S_ROLE}, 1")
        A(f"s_cbranch_scc1 {lool}")
        A.label(lback)
        B = Asm()
        B._lbl = 900000
        B.label(lool)
        B(f"s_mov_b32 s{S_SPIN}, {SPIN_MAX}")
        B(f"s_add_u32 s{S_TMP+1}, s{S_HIDX}, {F_H}")
        B.label("LO_SPIN")
        B(f"v_readfirstlane_b32 s{S_TMP}, v{V_SIG}")
        B("s_nop 3")
        B(f"s_cmp_eq_u32 s{S_TMP}, 1")
        B("s_cbranch_scc1 LO_OK")
        B(f"s_sub_u32 s{S_SPIN}, s{S_SPIN}, 1")
        B(f"s_cmp_eq_u32 s{S_SPIN}, 0")
        B("s_cbranch_scc1 LO_OK")
        B("s_sleep 8")
        B(f"buffer_load_dword v{V_SIG}, v{V_SIG+1}, {sr(SRD_WS,4)}, s{S_TMP+1} offen sc1")
        B("s_waitcnt vmcnt(0)")
        B("s_branch LO_SPIN")
        B.label("LO_OK")
        B(f"s_add_u32 s{S_TMP}, s{S_HOFF}, 16384")
        B(f"buffer_load_dwordx4 {vr(28,4)}, v{V_LANE16}, {sr(SRD_WS,4)}, s{S_TMP} offen sc1")
        B(f"s_mov_b32 s{S_TMP}, s{S_HOFF}")
        for i in range(16):
            if i and i % 4 == 0:
                B(f"s_add_u32 s{S_TMP}, s{S_TMP}, 4096")
            B(f"buffer_load_dwordx4 {ar(192+i*4,4)}, v{V_LANE16}, {sr(SRD_WS,4)}, s{S_TMP} offen offset:{(i%4)*1024} sc1")
        B(f"s_branch {lback}")
        OOL.append([l.strip() for l in B.lines])
    if sm_q:
        sm = softmax_oplist(sb_sm, pb_nxt, l_q, sm_q)
        for o in sm:
            if o.kind == "E":
                o.min_gap = 2
    else:
        sm = [Op(f"v_add_f32 v{V_L+qb}, v{V_L+qb}, v{V_LT+qb}", "V") for qb in l_q]
    vrd = v_reads(V_RB0 if par == 0 else V_RB1, 49152 if par == 0 else 16384)
    flip = [Op(f"v_xor_b32 v{V_RB0}, 0x10000, v{V_RB0}", "V"), Op(f"v_xor_b32 v{V_RB1}, 0x10000, v{V_RB1}", "V")]
    if qk_q:
        m = pv_mfmas(pb_cur) + qk_mfmas(sb_qk, qk_q)
        ds = k_reads(V_RB1, 0 if par == 0 else 32768) + vrd
        if mode == "full":
            cu = c_update(A, S_T2)
            chain = [Op(cu[0], "S"), Op(cu[1], "S"), Op(f"s_add_u32 s{S_T2}, s{S_T2}, 1", "S")]
        else:
            k0 = 4 if mode == "t4" else 6
            sal, val = c_mask_ops(1, lambda kb: str(k0 + kb))
            chain = []
            cops = []
            for kb in range(2):
                v = val[9 * kb:9 * kb + 9]
                t = Op(v[0], "V", min_gap=1)
                ands = [Op(x, "V", min_gap=1) for x in v[1:5]]
                adds = [Op(x, "V", [t, a]) for x, a in zip(v[5:9], ands)]
                cops += [t] + ands + adds
            sm = cops + sm
        if mode == "full":
            if par == 0:
                chain += dma_chain(f"s_add_u32 m0, s{S_B0}, 32768", f"s_add_u32 m0, s{S_B0}, 16384", 31)
            else:
                chain += dma_chain(f"s_xor_b32 m0, s{S_B0}, 65536", f"s_add_u32 m0, s{S_B0}, 49152", 31)
                for f in flip:
                    f.min_gap = 56
                sm += flip
                chain[-4:-4] = [Op(f"s_xor_b32 s{S_B0}, s{S_B0}, 65536", "S"), Op(f"s_sub_u32 s{S_LEFT}, s{S_LEFT}, 1", "S")]
            fixed = {31: ["s_waitcnt lgkmcnt(0)"], 63: [rare_check(A, sb_sm)]}
            out, left = schedule(m, PH + PH, ds, chain, sm, fixed)
            A.emit_list(out)
            return
        tmpl = "DDF" * 2 + "DDE" * 6 + "EEEEEEEX" + "D" * 16
        if mode == "t3" and last:
            tmpl = "DDF" * 2 + "DDE" * 6 + "EEMMMMMX" + "D" * 16
            chain += last
        out, left = schedule(m, tmpl, ds, chain, sm, {31: ["s_waitcnt lgkmcnt(0)"]}, strict=False)
        assert all(o.gap is not None and o.gap < 30 for o in cops), [o.gap for o in cops]
        A.emit_list(out)
        A("s_nop 0")
        emit_left(A, left)
        if par == 1:
            A.emit_list([f.text for f in flip])
        A(rare_check(A, sb_sm, half=(len(sm_q) == 1)))
        return
    m = pv_mfmas(pb_cur, pv_q)
    if mode == "f2":
        out, left = schedule(m, "EE" + "ED" * 15, vrd, [], sm, {}, strict=False)
        A.emit_list(out)
        A("s_nop 0")
        emit_left(A, left)
        A(rare_check(A, sb_sm))
    elif mode == "f1":
        out, left = schedule(m, "F" * 32, [], [], sm, {})
        A.emit_list(out)
    elif mode == "t2":
        out, left = schedule(m, "EEEEEEEE" + "EEDDDDDD", vrd, [], sm, {}, strict=False)
        A.emit_list(out)
        A("s_nop 0")
        emit_left(A, left)
        A(rare_check(A, sb_sm, half=True))
    else:
        out, left = schedule(m, "E" + "M" * 15, [], last, sm, {}, strict=False)
        A.emit_list(out)
        emit_left(A, left)


def xquad(A, op, v, t):
    A(f"v_mov_b32 v{t}, v{v}")
    A("s_nop 1")
    A(f"v_permlane32_swap_b32 v{t}, v{v}")
    A("s_nop 1")
    A(f"{op} v{v}, v{v}, v{t}")
    A(f"v_mov_b32 v{t}, v{v}")
    A("s_nop 1")
    A(f"v_permlane16_swap_b32 v{t}, v{v}")
    A("s_nop 1")
    A(f"{op} v{v}, v{v}, v{t}")


def b_rare(A, sb):
    A.label(f"LB_RARE{sb}")
    A("s_nop 7")
    A("s_nop 7")
    so = 1 - sb
    for qb in range(2):
        d = V_T + qb
        a, b = s_reg(sb, 0, qb), s_reg(sb, 1, qb)
        A(f"v_max3_f32 v{d}, v{a}, v{a+1}, v{a+2}")
        A(f"v_max3_f32 v{d}, v{d}, v{a+3}, v{b}")
        A(f"v_max3_f32 v{d}, v{d}, v{b+1}, v{b+2}")
        A(f"v_max_f32 v{d}, v{d}, v{b+3}")
        xquad(A, "v_max_f32", d, V_T + 4)
        A(f"v_add_f32 v{d}, {f32bits(BIAS):#x}, v{d}")
        A(f"v_max_f32 v{d}, s{S_FLOOR}, v{d}")
        A(f"v_max_f32 v{V_T+2+qb}, 0, v{d}")
        A(f"v_exp_f32 v{V_T+2+qb}, -v{V_T+2+qb}")
        for kb in range(2):
            for r in range(4):
                A(f"v_sub_f32 v{s_reg(sb,kb,qb)+r}, v{s_reg(sb,kb,qb)+r}, v{d}")
                A(f"v_sub_f32 v{s_reg(so,kb,qb)+r}, v{s_reg(so,kb,qb)+r}, v{d}")
                A(f"v_sub_f32 v{c_reg(kb,qb)+r}, v{c_reg(kb,qb)+r}, v{d}")
        A(f"v_sub_f32 v{V_CB+qb}, v{V_CB+qb}, v{d}")
        A(f"v_mul_f32 v{V_L+qb}, v{V_L+qb}, v{V_T+2+qb}")
    lskip = A.newlabel("LRS")
    A(f"s_cmp_eq_u32 s{S_FIRST}, 1")
    A(f"s_cbranch_scc1 {lskip}")
    for db in range(16):
        for qb in range(2):
            for r in range(4):
                A(f"v_mul_f32 v{o_reg(db,qb)+r}, v{o_reg(db,qb)+r}, v{V_T+2+qb}")
    A.label(lskip)
    A(f"s_mov_b32 s{S_FIRST}, 0")
    A(f"s_mov_b32 s{S_FLOOR}, 0")
    for o in softmax_linear(sb, sb):
        A(o)
    A("s_nop 1")
    A(f"s_setpc_b64 {sr(S_RET,2)}")


WO_SLOT = [4, 0, 1, 2, 3, 4, 0, 1]
VF = 128
VCTX = 64


def wo_chain(chunk, slot):
    c = [Op(f"s_add_u32 s{S_TMP+2}, s{S_WOOFF}, {chunk*32*896}", "S"), Op(f"s_add_u32 m0, s{S_WOW}, {slot*32768}", "S")]
    for i in range(7):
        if i == 4:
            c.append(Op("s_add_u32 m0, m0, 4096", "S"))
        c.append(Op(f"buffer_load_dwordx4 v{V_WOD+i}, {sr(SRD_B,4)}, s{S_TMP+2} offen offset:{(i%4)*1024} lds", "M"))
    return c


def wo_reads(half, fset):
    out = []
    for i in range(14):
        b = 14 * half + i
        f = VF + (fset * 14 + i) * 4
        for e in range(2):
            out.append(f"ds_read_b64_tr_b16 {vr(f+2*e,2)}, v{V_WOR+(b&3)} offset:{(b>>2)*128+e*16*896}")
    return out


def wo_mfmas(half, fset, dg):
    out = []
    for i in range(14):
        b = 14 * half + i
        f = VF + (fset * 14 + i) * 4
        for qb in range(2):
            a = (b * 2 + qb) * 4
            c = "0" if dg == 0 else ar(a, 4)
            out.append(f"v_mfma_f32_16x16x32_bf16 {ar(a,4)}, {vr(f,4)}, {vr(VCTX+(dg*2+qb)*4,4)}, {c}")
    return out


def b_norm_plain(A):
    for qb in range(2):
        A(f"v_rcp_f32 v{V_T+2*qb}, v{V_L+qb}")
        A("s_nop 0")
        A(f"v_mov_b32 v{V_T+2*qb+1}, v{V_T+2*qb}")
    for dg in range(8):
        for qb in range(2):
            for a in range(2):
                o = o_reg(2 * dg + a, qb)
                A(f"v_pk_mul_f32 {vr(o,2)}, {vr(o,2)}, {vr(V_T+2*qb,2)}")
                A(f"v_pk_mul_f32 {vr(o+2,2)}, {vr(o+2,2)}, {vr(V_T+2*qb,2)}")
            for a in range(2):
                o = o_reg(2 * dg + a, qb)
                c = VCTX + (dg * 2 + qb) * 4 + 2 * a
                A(f"v_cvt_pk_bf16_f32 v{c}, v{o}, v{o+1}")
                A(f"v_cvt_pk_bf16_f32 v{c+1}, v{o+2}, v{o+3}")


def b_norm_merge(A):
    A("s_waitcnt vmcnt(28)")
    for qb in range(2):
        a, b, t = V_T + 4 * qb, V_T + 4 * qb + 2, 48
        c2, l2 = 28 + 2 * qb, 29 + 2 * qb
        A(f"v_min_f32 v{t}, v{V_CB+qb}, v{c2}")
        A(f"v_sub_f32 v{a}, v{t}, v{V_CB+qb}")
        A(f"v_sub_f32 v{b}, v{t}, v{c2}")
        A(f"v_exp_f32 v{a}, v{a}")
        A(f"v_exp_f32 v{b}, v{b}")
        A("s_nop 0")
        A(f"v_mul_f32 v{b}, v{b}, v{l2}")
        A(f"v_fma_f32 v{t}, v{V_L+qb}, v{a}, v{b}")
        A(f"v_rcp_f32 v{t}, v{t}")
        A("s_nop 0")
        A(f"v_mul_f32 v{a}, v{a}, v{t}")
        A(f"v_mul_f32 v{b}, v{b}, v{t}")
        A(f"v_mov_b32 v{a+1}, v{a}")
        A(f"v_mov_b32 v{b+1}, v{b}")
    k = 0
    for dg in range(8):
        for qb in range(2):
            a, b = V_T + 4 * qb, V_T + 4 * qb + 2
            for i in range(4):
                o = o_reg(2 * dg + (i >> 1), qb) + 2 * (i & 1)
                c = VCTX + (dg * 2 + qb) * 4 + i
                t = 48 + (k % 4) * 4
                k += 1
                A(f"v_accvgpr_read_b32 v{t+2}, a{192+(dg*2+qb)*4+i}")
                A(f"v_pk_mul_f32 {vr(o,2)}, {vr(o,2)}, {vr(a,2)}")
                A(f"v_lshlrev_b32 v{t}, 16, v{t+2}")
                A(f"v_and_b32 v{t+1}, 0xffff0000, v{t+2}")
                A(f"v_pk_fma_f32 {vr(o,2)}, {vr(t,2)}, {vr(b,2)}, {vr(o,2)}")
                A(f"v_cvt_pk_bf16_f32 v{c}, v{o}, v{o+1}")


def h_tail(A, cfg):
    A.label("LH_TAIL")
    b_iter(A, 0, cfg, "f2")
    b_iter(A, 1, cfg, "f1")
    pop_issue(A)
    A("s_nop 7")
    for qb in range(2):
        xquad(A, "v_add_f32", V_L + qb, V_T + 4)
    b_norm_plain(A)
    for qb in range(2):
        A(f"v_mov_b32 v{28+2*qb}, v{V_CB+qb}")
        A(f"v_mov_b32 v{29+2*qb}, v{V_L+qb}")
    A(f"s_mov_b32 s{S_TMP}, s{S_HOFF}")
    for i in range(16):
        if i and i % 4 == 0:
            A(f"s_add_u32 s{S_TMP}, s{S_TMP}, 4096")
        A(f"buffer_store_dwordx4 {vr(VCTX+i*4,4)}, v{V_LANE16}, {sr(SRD_WS,4)}, s{S_TMP} offen offset:{(i%4)*1024} sc1")
    A(f"s_add_u32 s{S_TMP}, s{S_TMP}, 4096")
    A(f"buffer_store_dwordx4 {vr(28,4)}, v{V_LANE16}, {sr(SRD_WS,4)}, s{S_TMP} offen sc1")
    A("s_branch LQ_NEXT")


def b_epilogue(A, cfg):
    A("s_nop 7")
    for qb in range(2):
        xquad(A, "v_add_f32", V_L + qb, V_T + 4)
    A(f"s_cmp_eq_u32 s{S_ROLE}, 1")
    A("s_cbranch_scc1 LB_MERGE")
    b_norm_plain(A)
    A.label("LB_NORMED")
    A("s_waitcnt vmcnt(28)")
    A("s_barrier")
    A.emit_list(wo_reads(0, 0))
    poll_test(A)
    A(f"s_cselect_b32 s{S_AQOK}, 1, 0")
    W = {6: ["s_waitcnt lgkmcnt(14)"], 13: ["s_waitcnt lgkmcnt(14)"], 20: ["s_waitcnt lgkmcnt(14)"]}
    A("s_waitcnt lgkmcnt(0)")
    for dg in range(8):
        out, _ = schedule(wo_mfmas(0, 0, dg), "D" * 28, wo_reads(1, 1), [], [], W)
        A.emit_list(out)
        if dg < 7:
            delta = (WO_SLOT[dg + 1] - WO_SLOT[dg]) * 32768
            for i in range(4):
                A(f"v_add_u32 v{V_WOR+i}, {delta & 0xffffffff:#x}, v{V_WOR+i}")
            issued = min(7, max(4, dg + 3))
            young = max(0, issued - (dg + 1))
            A(f"s_waitcnt vmcnt({7*young}) lgkmcnt(14)")
            A("s_barrier")
            ch = wo_chain(dg + 4, WO_SLOT[dg + 4]) if 5 <= dg + 4 <= 7 else []
            emit_chain(A, ch)
            out, _ = schedule(wo_mfmas(1, 1, dg), "D" * 28, wo_reads(0, 0), [], [], W)
            A.emit_list(out)
            A("s_waitcnt lgkmcnt(14)")
        else:
            A("s_waitcnt lgkmcnt(14)")
            m = wo_mfmas(1, 1, dg)
            A.emit_list(m[:12])
            A("s_waitcnt lgkmcnt(0)")
            A.emit_list(m[12:])
    store_partials(A, 2, cfg)


def store_partials(A, nqb, cfg):
    fl = "sc1"
    pop_issue(A)
    A("s_nop 7")
    gi = 0
    for qb in range(nqb):
        for p in range(14):
            t = 128 + (gi % 8) * 12
            gi += 1
            regs = [((2 * p) * nqb + qb) * 4 + r for r in range(4)] + [((2 * p + 1) * nqb + qb) * 4 + r for r in range(4)]
            for i, r in enumerate(regs):
                A(f"v_accvgpr_read_b32 v{t+i}, a{r}")
            for i in range(4):
                A(f"v_cvt_pk_bf16_f32 v{t+8+i}, v{t+2*i}, v{t+2*i+1}")
            off = p * 1024
            if off % 4096 == 0:
                A(f"s_add_u32 s{S_TMP}, s{S_POFF if qb == 0 else S_POFF1}, {off}")
            A(f"buffer_store_dwordx4 {vr(t+8,4)}, v{V_LANE16}, {sr(SRD_WS,4)}, s{S_TMP} offen offset:{off%4096} {fl}")


def wo_lane_setup(A):
    T = V_T
    for i in range(7):
        A(f"v_add_u32 v{T}, {64*i}, v0")
        A(f"v_mul_u32_u24 v{T+1}, 1171, v{T}")
        A(f"v_lshrrev_b32 v{T+1}, 16, v{T+1}")
        A(f"v_mul_u32_u24 v{T+2}, 56, v{T+1}")
        A(f"v_sub_u32 v{T+2}, v{T}, v{T+2}")
        A(f"v_bfe_u32 v{T+3}, v{T+1}, 1, 2")
        A(f"v_lshlrev_b32 v{T+3}, 1, v{T+3}")
        A(f"v_xor_b32 v{T+2}, v{T+2}, v{T+3}")
        A(f"v_mul_u32_u24 v{T+1}, 896, v{T+1}")
        A(f"v_lshl_add_u32 v{T+1}, v{T+2}, 4, v{T+1}")
        A(f"v_subrev_u32 v{V_WOD+i}, {(i%4)*1024}, v{T+1}")


def split_addr(A, head, qb):
    A(f"s_lshl_b32 s{S_HIDX}, s{head}, 4")
    A(f"s_add_u32 s{S_HIDX}, s{S_HIDX}, s{qb}")
    A(f"s_lshl_b32 s{S_HOFF}, s{S_HIDX}, 2")
    A(f"s_add_u32 s{S_HOFF}, s{S_HOFF}, s{S_WAVE}")
    A(f"s_lshl_b32 s{S_HOFF}, s{S_HOFF}, 15")
    A(f"s_add_u32 s{S_HOFF}, s{S_HOFF}, {WS_H}")
    A(f"s_lshl_b32 s{S_HIDX}, s{S_HIDX}, 2")


def q_copy_off(A, dst):
    A(f"s_lshl_b32 s{dst}, s{S_HIDX}, 14")
    A(f"s_lshl_b32 s{S_TMP+7}, s{S_WAVE}, 14")
    A(f"s_add_u32 s{dst}, s{dst}, s{S_TMP+7}")
    A(f"s_add_u32 s{dst}, s{dst}, {WS_QS}")


def b_setup_kv(A, cfg):
    T = S_TMP
    cap = cfg.get("cap", 52)
    A(f"s_lshl_b32 s{S_N}, s{S_QB}, 2")
    A(f"s_add_u32 s{S_N}, s{S_N}, 4")
    A(f"s_lshl_b32 s{S_KOFF}, s{S_HEAD}, 20")
    A(f"s_lshl_b32 s{T}, s{S_N}, 14")
    A(f"s_add_u32 s{S_KLIM}, s{S_KOFF}, s{T}")
    A(f"s_add_u32 s{S_VLIM}, s{S_KLIM}, {WS_V}")
    A(f"s_min_u32 s{T}, s{S_N}, {cap}")
    A(f"s_sub_u32 s{T+1}, s{S_N}, s{T}")
    A(f"s_mov_b32 s{S_N}, s{T}")
    A(f"s_sub_u32 s{S_TW}, s{S_N}, 4")
    A(f"s_cmp_lg_u32 s{T+1}, 0")
    A(f"s_cselect_b32 s{S_ROLE}, 1, 0")
    A(f"s_lshr_b32 s{T}, s{T+1}, 1")
    A(f"s_sub_u32 s{S_SEG1}, 10, s{T}")
    A(f"s_lshl_b32 s{T+1}, s{T+1}, 14")
    A(f"s_add_u32 s{S_KOFF}, s{S_KOFF}, s{T+1}")
    A(f"s_add_u32 s{S_VOFF}, s{S_KOFF}, {WS_V}")
    split_addr(A, S_HEAD, S_QB)
    A(f"s_lshl_b32 s{S_B0}, s{S_WAVE}, 12")
    A(f"v_add_u32 v{V_DKV}, s{S_B0}, v{V_LANE16}")
    A(f"s_mov_b32 s{S_SC}, {f32bits(SCALE_B):#x}")
    A(f"s_mov_b32 s{S_SC+1}, {f32bits(SCALE_B):#x}")


def b_setup_rest(A):
    T = S_TMP
    set_srd(A, SRD_B, P_WOB, 4096 * 448 * 2)
    A(f"v_and_b32 v{V_T}, 15, v0")
    A(f"v_lshrrev_b32 v{V_T+1}, 4, v0")
    A(f"v_lshlrev_b32 v{V_T+2}, 2, v{V_T+1}")
    A(f"v_mov_b32 v{V_T+4}, {NEG_INF:#x}")
    for r in range(4):
        A(f"v_add_u32 v{V_T+3}, {r}, v{V_T+2}")
        A(f"v_cmp_gt_u32 vcc, v{V_T+3}, v{V_T}")
        A("s_nop 1")
        A(f"v_cndmask_b32 v{V_DM+r}, 0, v{V_T+4}, vcc")
    A(f"v_bfe_u32 v{V_T+3}, v0, 2, 2")
    A(f"v_add_u32 v{V_T+3}, v{V_T+3}, v{V_T+2}")
    A(f"v_bfe_u32 v{V_T+5}, v{V_T+3}, 1, 2")
    A(f"v_mul_u32_u24 v{V_T+3}, 896, v{V_T+3}")
    A(f"v_and_b32 v{V_T+6}, 3, v0")
    A(f"v_lshl_add_u32 v{V_T+3}, v{V_T+6}, 3, v{V_T+3}")
    A(f"v_add_u32 v{V_T+3}, {WO_SLOT[0]*32768}, v{V_T+3}")
    for b in range(4):
        A(f"v_xor_b32 v{V_T+6}, {b}, v{V_T+5}")
        A(f"v_lshl_add_u32 v{V_WOR+b}, v{V_T+6}, 5, v{V_T+3}")
    wo_lane_setup(A)
    A(f"s_mul_i32 s{S_WOOFF}, s{S_HEAD}, {256*896}")
    A(f"s_mul_i32 s{S_WOW}, s{S_WAVE}, {8*896}")
    A(f"s_add_u32 s{S_WOOFF}, s{S_WOOFF}, s{S_WOW}")
    A(f"s_add_u32 s{S_POFF}, s{S_HEAD}, 4")
    A(f"s_mul_i32 s{S_POFF}, s{S_POFF}, {P_SLOT}")
    A(f"s_mul_i32 s{T}, s{S_QB}, {8*14*1024}")
    A(f"s_add_u32 s{S_POFF}, s{S_POFF}, s{T}")
    A(f"s_add_u32 s{S_POFF}, s{S_POFF}, {WS_P}")
    A(f"s_sub_u32 s{S_BL1}, 7, s{S_WAVE}")
    A(f"s_mul_i32 s{T}, s{S_BL1}, {14*1024}")
    A(f"s_add_u32 s{S_POFF1}, s{S_POFF}, s{T}")
    A(f"s_mul_i32 s{T}, s{S_WAVE}, {14*1024}")
    A(f"s_add_u32 s{S_POFF}, s{S_POFF}, s{T}")
    A(f"s_lshl_b32 s{T}, s{S_BL1}, 13")
    A(f"s_add_u32 s{T}, s{T}, {XQ}")
    A(f"v_add_u32 v{V_XQW}, s{T}, v{V_LANE16}")
    A(f"s_lshl_b32 s{S_RFLAG}, s{S_QB}, 8")
    A(f"s_lshl_b32 s{T}, s{S_HEAD}, 2")
    A(f"s_add_u32 s{S_RFLAG}, s{S_RFLAG}, s{T}")
    A(f"s_add_u32 s{S_RFLAG}, s{S_RFLAG}, {F_ROW}")
    b_state_init(A)
    A.emit_list(c_update(A, S_T2))


def b_state_init(A):
    A(f"s_mov_b32 s{S_RMASK}, 1")
    A(f"s_mov_b32 s{S_HUGE}, {HUGE}")
    A(f"s_mov_b32 s{S_FLOOR}, {NEG_INF:#x}")
    A(f"s_mov_b32 s{S_FIRST}, 1")
    for r in range(16):
        A(f"v_mov_b32 v{VC+r}, 0")
    for r in (V_CB, V_CB + 1, V_L, V_L + 1, V_LT, V_LT + 1):
        A(f"v_mov_b32 v{r}, 0")
    A(f"v_mov_b32 v{V_RB0}, v{V_LANE16}")
    A(f"v_add_u32 v{V_RB1}, 0x10000, v{V_LANE16}")
    A(f"s_mov_b32 s{S_T2}, 0")


def kv_first(A):
    for w, s_ in (("K", 0), ("V", 0), ("K", 1), ("V", 1), ("K", 2), ("V", 2)):
        emit_chain(A, kv_tile_chain(w, s_))


def h_item(A, cfg):
    T = S_TMP
    cap = cfg.get("cap", 52)
    A(f"s_and_b32 s{T}, s{S_ITEM}, 1")
    A(f"s_lshl_b32 s{T}, s{T}, 3")
    A(f"s_and_b32 s{T+1}, s2, 7")
    A(f"s_add_u32 s{T}, s{T}, s{T+1}")
    A(f"s_lshr_b32 s{T+1}, s{S_ITEM}, 1")
    A(f"s_sub_u32 s{T+1}, 15, s{T+1}")
    split_addr(A, T, T + 1)
    A(f"s_add_u32 s{S_PADDR}, s{S_HIDX}, {F_Q}")
    A(f"v_mov_b32 v{V_POLL+1}, 0")
    A(f"buffer_load_dword v{V_POLL}, v{V_POLL+1}, {sr(SRD_WS,4)}, s{S_PADDR} offen sc1")
    A(f"s_lshl_b32 s{S_N}, s{T+1}, 2")
    A(f"s_sub_u32 s{S_N}, s{S_N}, {cap - 4}")
    A(f"s_mov_b32 s{S_TW}, 0x7fffffff")
    A(f"s_lshl_b32 s{S_KOFF}, s{T}, 20")
    A(f"s_add_u32 s{S_VOFF}, s{S_KOFF}, {WS_V}")
    A(f"s_lshl_b32 s{T}, s{S_N}, 14")
    A(f"s_add_u32 s{S_KLIM}, s{S_KOFF}, s{T}")
    A(f"s_add_u32 s{S_VLIM}, s{S_VOFF}, s{T}")
    A(f"s_lshl_b32 s{S_B0}, s{S_WAVE}, 12")
    A(f"v_add_u32 v{V_DKV}, s{S_B0}, v{V_LANE16}")
    A(f"s_mov_b32 s{S_ROLE}, 2")
    A(f"s_add_u32 s{S_RFLAG}, s{S_HIDX}, {F_H}")
    b_state_init(A)
    q_copy_off(A, T + 2)
    poll_wait(A)
    for i in range(16):
        if i and i % 4 == 0:
            A(f"s_add_u32 s{T+2}, s{T+2}, 4096")
        A(f"buffer_load_dwordx4 {ar(AQ+i*4,4)}, v{V_LANE16}, {sr(SRD_WS,4)}, s{T+2} offen offset:{(i%4)*1024} sc1")
    kv_first(A)
    A("s_branch LB_ENTER")


def b_main(A, cfg):
    T = S_TMP
    A.label("LB_ENTER")
    A("s_waitcnt vmcnt(12) lgkmcnt(0)")
    A("s_barrier")
    if not cfg.get("stamp_lp"):
        stamp(A, cfg, 3)
    A(f"s_cmp_eq_u32 s{S_ROLE}, 2")
    A("s_cbranch_scc1 LB_HAVEQ")
    for i in range(16):
        A(f"ds_read_b128 {ar(AQ+i*4,4)}, v{V_XQR if i < 8 else V_XQW} offset:{(i%8)*1024}")
    A.label("LB_HAVEQ")
    A.emit_list(k_reads(V_RB0, 0))
    zero = [Op(f"v_mov_b32 v{VO+r}, 0", "V") for r in range(128)]
    for z in zero[:24]:
        A(z.text)
    A("s_waitcnt lgkmcnt(0)")
    out, left = schedule(qk_mfmas(0), "DF" * 16, v_reads(V_RB0, 16384), [], zero[24:72], {})
    A.emit_list(out)
    A.emit_list(k_reads(V_RB0, 32768))
    A(f"s_mov_b32 s{S_T2}, 1")
    A.emit_list(c_update(A, S_T2))
    A("s_waitcnt vmcnt(0) lgkmcnt(0)")
    A("s_barrier")
    A(f"s_cmp_eq_u32 s{S_ROLE}, 2")
    A("s_cbranch_scc1 LB_NOSIG")
    A(f"s_lshl_b32 s{T+4}, s{S_HEAD}, 6")
    A(f"s_lshl_b32 s{T+5}, s{S_QB}, 2")
    A(f"s_add_u32 s{T+4}, s{T+4}, s{T+5}")
    A(f"s_add_u32 s{T+4}, s{T+4}, {F_AQ}")
    signal(A, T + 4)
    signal(A, S_GHEAD, grp=1)
    A.label("LB_NOSIG")
    ch = kv_tile_chain("K", 3) + kv_tile_chain("V", 3)
    ch += [Op(f"s_cmp_lt_u32 s{S_KOFF}, s{S_KLIM}", "S"), Op(f"s_cselect_b32 s{T}, s{S_KOFF}, s{S_HUGE}", "S"),
           Op(f"s_mov_b32 m0, s{S_B0}", "S"), Op(f"s_add_u32 s{S_KOFF}, s{S_KOFF}, 16384", "S")]
    ch += [kv_dma(T, i) for i in range(4)]
    out, left = schedule(qk_mfmas(1), "FM" * 16, [], ch, zero[72:], {}, strict=False)
    A.emit_list(out)
    emit_left(A, left)
    A(f"v_lshlrev_b32 v{V_SIG+1}, 7, v0")
    A(f"buffer_load_dword v{V_SIG}, v{V_SIG+1}, {sr(SRD_B,4)}, s{S_TBOFF} offen")
    A(f"s_call_b64 {sr(S_RET,2)}, LB_RARE0")
    A(f"s_mov_b32 s{S_T2}, 2")
    A(f"s_lshr_b32 s{S_ITEM}, s{S_N}, 1")
    A(f"s_sub_u32 s{S_ITEM}, s{S_ITEM}, 2")
    A(f"s_cmp_ge_u32 s{S_QB}, 8")
    A(f"s_cselect_b32 s{S_LEFT}, s{S_SEG1}, s{S_ITEM}")
    A(f"s_cselect_b32 s{S_EV}, 0, 2")
    A(f"s_add_u32 s{T}, s{S_ITEM}, 1")
    A(f"s_cmp_eq_u32 s{S_ROLE}, 2")
    A(f"s_cselect_b32 s{S_LEFT}, s{T}, s{S_LEFT}")
    A(f"s_cselect_b32 s{S_EV}, 2, s{S_EV}")
    A(f"s_cmp_lg_u32 s{S_ROLE}, 1")
    A("s_cbranch_scc1 LB_NOQ")
    q_copy_off(A, T + 2)
    for i in range(16):
        if i and i % 4 == 0:
            A(f"s_add_u32 s{T+2}, s{T+2}, 4096")
        A(f"buffer_store_dwordx4 {ar(AQ+i*4,4)}, v{V_LANE16}, {sr(SRD_WS,4)}, s{T+2} offen offset:{(i%4)*1024} sc1")
    A.label("LB_NOQ")
    stamp(A, cfg, 4)
    A(f"s_cmp_eq_u32 s{S_LEFT}, 0")
    A("s_cbranch_scc1 LB_DONE")
    A.label("LB_LOOP")
    b_iter(A, 0, cfg)
    b_iter(A, 1, cfg)
    if cfg.get("bdiag"):
        A("s_memtime s[100:101]")
        A("s_memrealtime s[98:99]")
        A(f"s_lshr_b32 m0, s{S_T2}, 1")
        A("s_waitcnt lgkmcnt(0)")
        A("v_writelane_b32 v28, s100, m0")
        A("v_writelane_b32 v29, s98, m0")
    A(f"s_cmp_lg_u32 s{S_LEFT}, 0")
    A("s_cbranch_scc1 LB_LOOP")
    A(f"s_cmp_eq_u32 s{S_EV}, 2")
    A("s_cbranch_scc1 LB_DONE")
    A(f"s_cmp_eq_u32 s{S_EV}, 1")
    A("s_cbranch_scc1 LB_EV1")
    A(f"s_mov_b32 s{S_EV}, 1")
    A(f"s_mov_b32 s{S_LEFT}, 2")
    poll_issue(A, S_HEAD, F_KV + 4096, 8)
    A(f"s_cmp_lg_u32 s{S_ROLE}, 1")
    A("s_cbranch_scc1 LB_LOOP")
    A(f"s_add_u32 s{T+4}, s{S_HIDX}, {F_Q}")
    signal(A, T + 4)
    A("s_branch LB_LOOP")
    A.label("LB_EV1")
    A(f"s_mov_b32 s{S_EV}, 2")
    A(f"s_sub_u32 s{S_LEFT}, s{S_ITEM}, s{S_SEG1}")
    A(f"s_sub_u32 s{S_LEFT}, s{S_LEFT}, 2")
    poll_test(A)
    A("s_cbranch_scc1 LB_LOOP")
    poll_wait(A, True)
    A("s_branch LB_LOOP")
    A.label("LB_DONE")
    A(f"s_cmp_eq_u32 s{S_ROLE}, 2")
    A("s_cbranch_scc1 LH_TAIL")
    A(f"s_add_u32 s{T+1}, s{S_HIDX}, {F_H}")
    A(f"v_mov_b32 v{V_SIG+1}, 0")
    A(f"buffer_load_dword v{V_SIG}, v{V_SIG+1}, {sr(SRD_WS,4)}, s{T+1} offen sc1")
    b_iter(A, 0, cfg, "t4")
    A(f"s_and_b32 s{T+1}, s2, 3")
    pi = Asm()
    poll_issue(pi, T + 1, F_AQ, 64)
    pil = [l.strip() for l in pi.lines]
    for l in pil[:-1]:
        A(l)
    b_iter(A, 1, cfg, "t3", last=[Op(pil[-1], "M")] + wo_chain(0, WO_SLOT[0]))
    b_iter(A, 0, cfg, "t2")
    last = []
    for c in range(1, 5):
        last += wo_chain(c, WO_SLOT[c])
    b_iter(A, 1, cfg, "t1", last=last)
    if cfg.get("bdiag"):
        A(f"s_lshl_b32 s{T}, s2, 2")
        A(f"s_add_u32 s{T}, s{T}, s{S_WAVE}")
        A(f"s_lshl_b32 s{T}, s{T}, 9")
        A(f"s_add_u32 s{T}, s{T}, {232 << 20}")
        A(f"v_lshrrev_b32 v27, 2, v{V_LANE16}")
        A(f"buffer_store_dword v28, v27, {sr(SRD_WS,4)}, s{T} offen")
        A(f"buffer_store_dword v29, v27, {sr(SRD_WS,4)}, s{T} offen offset:256")
    stamp(A, cfg, 5)
    b_epilogue(A, cfg)


AS = [64, 96]
AC = 128
AO = 160
AP = [192, 208]
AE = 224
QA_, KA_, VA_ = 0, 16, 48
XB = 114688
V_XW = 2
V_OR = 14


def a_qk(buf, slot):
    out = []
    for qb in range(2):
        d = vr(AS[buf] + qb * 16, 16)
        out.append(f"v_mfma_f32_32x32x16_bf16 {d}, {ar(KA_+slot*8,4)}, {ar(QA_+qb*8,4)}, {vr(AC+qb*16,16)}")
    for qb in range(2):
        d = vr(AS[buf] + qb * 16, 16)
        out.append(f"v_mfma_f32_32x32x16_bf16 {d}, {ar(KA_+slot*8+4,4)}, {ar(QA_+qb*8+4,4)}, {d}")
    return out


def a_pv(pbuf, slot):
    out = []
    for g in range(2):
        for qb in range(2):
            d = vr(AO + qb * 16, 16)
            out.append(f"v_mfma_f32_32x32x16_bf16 {d}, {ar(VA_+slot*8+g*4,4)}, {vr(AP[pbuf]+qb*8+g*4,4)}, {d}")
    return out


A_DELAY = 3


def a_softmax(buf):
    s, p = AS[buf], AP[buf]
    out = []
    pend = []
    for k in range(16):
        pend.append((2 * k + 1 + A_DELAY, f"v_cvt_pk_bf16_f32 v{p+k}, v{AE+((2*k)%16)}, v{AE+((2*k+1)%16)}"))
        if k == 2:
            pend.append((2 * k + 2 + A_DELAY, f"v_or_b32 v{V_OR}, v{p}, v{p+1}"))
        elif k > 2 and k % 2 == 0:
            pend.append((2 * k + 2 + A_DELAY, f"v_or3_b32 v{V_OR}, v{V_OR}, v{p+k-2}, v{p+k-1}"))
    for i in range(32):
        out.append(f"v_exp_f32 v{AE+(i%16)}, v{s+i}")
        if pend and pend[0][0] <= i:
            out.append(pend.pop(0)[1])
    out.extend(t for _, t in pend)
    out.append(f"v_or3_b32 v{V_OR}, v{V_OR}, v{p+14}, v{p+15}")
    out.append(f"v_and_b32 v{V_OR}, s{S_MASK}, v{V_OR}")
    out.append(f"v_cmp_ne_u32 vcc, 0, v{V_OR}")
    return out


def a_loads(kslot, vslot):
    k = [f"buffer_load_dwordx4 {ar(KA_+kslot*8+4*s,4)}, v{V_LANE16}, {sr(SRD_WS,4)}, s{S_KOFF} offen offset:{s*1024} sc1" for s in range(2)]
    k += [f"s_add_u32 s{S_KOFF}, s{S_KOFF}, 2048", f"s_min_u32 s{S_KOFF}, s{S_KOFF}, s{S_KLIM}"]
    v = [f"buffer_load_dwordx4 {ar(VA_+vslot*8+4*s,4)}, v{V_LANE16}, {sr(SRD_WS,4)}, s{S_VOFF} offen offset:{s*1024} sc1" for s in range(2)]
    v += [f"s_add_u32 s{S_VOFF}, s{S_VOFF}, 2048", f"s_min_u32 s{S_VOFF}, s{S_VOFF}, s{S_VLIM}"]
    return k, v


def a_iter(A, u, cfg):
    par = u % 2
    A("s_waitcnt vmcnt(12)")
    sm = a_softmax(par)
    mq, mp = a_qk(1 - par, (u + 1) % 4), a_pv(1 - par, (u - 1) % 4)
    lk, lv = a_loads((u + 1) % 4, (u - 1) % 4)
    n = len(sm)
    ms = mq + mp
    pos = spread(8, -1, n - 8)
    riders = {3: [lk[0]], 4: [lk[1]], 5: [lk[2]], 6: [lk[3]], 7: [lv[0]]}
    sides = []
    for i, (p, m) in enumerate(zip(pos, ms)):
        sides.append((p, [m] + riders.get(i, [])))
    sides.append((n - 4, [lv[1]]))
    sides.append((n - 2, [lv[2]]))
    sides.append((n - 1, [lv[3]]))
    body = interleave(sm, sides)
    if cfg.get("a_noload"):
        body = [b for b in body if not b.startswith("buffer_load")]
    if cfg.get("a_nosc1"):
        body = [b.replace(" sc1", "") for b in body]
    if cfg.get("a_nomfma"):
        body = [b for b in body if not b.startswith("v_mfma")]
    A.emit_list(body)
    A(rare_check(A, par, "LA_RARE"))


def a_rare(A, sb):
    A.label(f"LA_RARE{sb}")
    A("s_nop 7")
    A("s_nop 7")
    so = 1 - sb
    for qb in range(2):
        d, f, t = V_T + qb, V_T + 2 + qb, V_T + 4
        s = AS[sb] + qb * 16
        A(f"v_max3_f32 v{d}, v{s}, v{s+1}, v{s+2}")
        for i in range(3, 15, 2):
            A(f"v_max3_f32 v{d}, v{d}, v{s+i}, v{s+i+1}")
        A(f"v_max_f32 v{d}, v{d}, v{s+15}")
        A(f"v_mov_b32 v{t}, v{d}")
        A("s_nop 1")
        A(f"v_permlane32_swap_b32 v{t}, v{d}")
        A("s_nop 1")
        A(f"v_max_f32 v{d}, v{d}, v{t}")
        A(f"v_add_f32 v{d}, {f32bits(BIAS):#x}, v{d}")
        A(f"v_max_f32 v{d}, s{S_FLOOR}, v{d}")
        A(f"v_max_f32 v{f}, 0, v{d}")
        A(f"v_exp_f32 v{f}, -v{f}")
        for r in range(16):
            A(f"v_sub_f32 v{s+r}, v{s+r}, v{d}")
            A(f"v_sub_f32 v{AS[so]+qb*16+r}, v{AS[so]+qb*16+r}, v{d}")
            A(f"v_sub_f32 v{AC+qb*16+r}, v{AC+qb*16+r}, v{d}")
            A(f"v_mul_f32 v{AO+qb*16+r}, v{AO+qb*16+r}, v{f}")
    A(f"s_mov_b32 s{S_FLOOR}, 0")
    lskip = A.newlabel("LAS")
    A(f"s_cmp_eq_u32 s{S_FIRST}, 1")
    A(f"s_mov_b32 s{S_FIRST}, 0")
    A(f"s_cbranch_scc1 {lskip}")
    for o in a_softmax(sb):
        A(o)
    A.label(lskip)
    A("s_nop 1")
    A(f"s_setpc_b64 {sr(S_RET,2)}")


def a_counts(cfg):
    nf, nh = cfg.get("nf", 10), cfg.get("nh", 4)
    nq = 16 - nf - nh
    return nf, nh, nq, nf + 2 * nh + 4 * nq


def n_help(cfg):
    cap = cfg.get("cap", 52)
    return 2 * (16 - cap // 4)


def a_item(A, cfg):
    T = S_TMP
    stamp(A, cfg, 0)
    A(f"s_and_b32 s{T+1}, s2, 3")
    lq = A.newlabel("LAQ")
    A(f"s_cmp_eq_u32 s{S_AQOK}, 1")
    A(f"s_cbranch_scc1 {lq}")
    poll_issue(A, T + 1, F_AQ, 64)
    poll_wait(A)
    A(f"s_mov_b32 s{S_AQOK}, 1")
    A.label(lq)
    NF, NH, NQ, NA = a_counts(cfg)
    SP = S_N
    A(f"s_cmp_ge_u32 s{S_ITEM}, {NF}")
    A(f"s_cselect_b32 s{SP}, 1, 0")
    A(f"s_cselect_b32 s{T+2}, {NF}, 0")
    A(f"s_cselect_b32 s{T+3}, {NF}, 0")
    A(f"s_cmp_ge_u32 s{S_ITEM}, {NF + 2*NH}")
    A(f"s_cselect_b32 s{SP}, 2, s{SP}")
    A(f"s_cselect_b32 s{T+2}, {NF + 2*NH}, s{T+2}")
    A(f"s_cselect_b32 s{T+3}, {NF + NH}, s{T+3}")
    A(f"s_sub_u32 s{T+2}, s{S_ITEM}, s{T+2}")
    A(f"s_lshl_b32 s{T+5}, 1, s{SP}")
    A(f"s_sub_u32 s{T+5}, s{T+5}, 1")
    A(f"s_and_b32 s{T+6}, s{T+2}, s{T+5}")
    A(f"s_lshr_b32 s{T+2}, s{T+2}, s{SP}")
    A(f"s_add_u32 s{T+2}, s{T+2}, s{T+3}")
    A(f"s_sub_u32 s{T+4}, 2, s{SP}")
    A(f"s_lshl_b32 s{T+3}, s{T+6}, s{T+4}")
    A(f"s_lshr_b32 s{T+4}, s{S_WAVE}, s{SP}")
    A(f"s_add_u32 s{T+3}, s{T+3}, s{T+4}")
    A(f"s_and_b32 s{T+4}, s{S_WAVE}, s{T+5}")
    A(f"s_sub_u32 s{T+5}, 17, s{SP}")
    A(f"s_lshl_b32 s{T+4}, s{T+4}, s{T+5}")
    A(f"s_lshr_b32 s{S_LEFT}, 16, s{SP}")
    A(f"s_lshr_b32 s{T+5}, {64*2048}, s{SP}")
    A(f"s_sub_u32 s{T+5}, s{T+5}, 2048")
    A(f"s_cmp_ge_u32 s{SP}, 1")
    A(f"s_cselect_b32 s{S_KAP}, 1.0, 0")
    A(f"s_cselect_b32 s{S_EV}, 1024, 0")
    A(f"s_cselect_b32 s{S_RMASK}, 5, 15")
    A(f"s_cmp_ge_u32 s{SP}, 2")
    A(f"s_cselect_b32 s{S_T2}, 1.0, 0")
    A(f"s_cselect_b32 s{S_TW}, 2048, 0")
    A(f"s_cselect_b32 s{S_RMASK}, 1, s{S_RMASK}")
    A(f"s_bfe_u32 s{T}, s2, 0x10002")
    A(f"s_lshl_b32 s{T}, s{T}, 4")
    A(f"s_add_u32 s{T+2}, s{T+2}, s{T}")
    A(f"s_lshl_b32 s{T}, s{T+1}, 2")
    A(f"s_add_u32 s{T+3}, s{T+3}, s{T}")
    A(f"s_mul_i32 s{S_WOOFF}, s{T+3}, {28*896}")
    A(f"s_lshl_b32 s{T+3}, s{T+3}, 17")
    A(f"s_add_u32 s{S_KOFF}, s{T+3}, s{T+4}")
    A(f"s_add_u32 s{S_VOFF}, s{S_KOFF}, {WS_VA}")
    A(f"s_add_u32 s{S_KOFF}, s{S_KOFF}, {WS_KA}")
    A(f"s_add_u32 s{S_KLIM}, s{S_KOFF}, s{T+5}")
    A(f"s_add_u32 s{S_VLIM}, s{S_VOFF}, s{T+5}")
    A(f"s_lshl_b32 s{T+4}, s{T+2}, 12")
    A(f"s_add_u32 s{T+4}, s{T+4}, s{T+3}")
    A(f"s_add_u32 s{T+4}, s{T+4}, {WS_QA}")
    for i in range(4):
        A(f"buffer_load_dwordx4 {ar(QA_+4*i,4)}, v{V_LANE16}, {sr(SRD_WS,4)}, s{T+4} offen offset:{i*1024} sc1")
    lk, _ = a_loads(0, 0)
    A.emit_list(lk)
    for t in (-4, -3, -2):
        lk, lv = a_loads((t + 5) % 4, (t + 3) % 4)
        A.emit_list(lk)
        if t + 3 >= 0:
            A.emit_list(lv)
    set_srd(A, SRD_B, P_WOA, 448 * 448 * 2)
    A(f"s_lshr_b32 s{S_RFLAG}, s{T+2}, 1")
    A(f"s_lshl_b32 s{S_RFLAG}, s{S_RFLAG}, 8")
    A(f"s_and_b32 s{T+3}, s{T+2}, 1")
    A(f"s_lshl_b32 s{T+3}, s{T+3}, 2")
    A(f"s_add_u32 s{T+3}, s{T+3}, s{T+1}")
    A(f"s_lshl_b32 s{T}, s{T+6}, 3")
    A(f"s_add_u32 s{T+3}, s{T+3}, s{T}")
    A(f"s_lshl_b32 s{T+3}, s{T+3}, 2")
    A(f"s_add_u32 s{S_RFLAG}, s{S_RFLAG}, s{T+3}")
    A(f"s_add_u32 s{S_RFLAG}, s{S_RFLAG}, {F_ROW + 64}")
    A(f"s_lshl_b32 s{T}, s{T+6}, 2")
    A(f"s_add_u32 s{T}, s{T}, 16")
    A(f"s_cmp_eq_u32 s{T+6}, 0")
    A(f"s_cselect_b32 s{T}, 0, s{T}")
    A(f"s_add_u32 s{T}, s{T}, s{T+1}")
    A(f"s_mul_i32 s{S_POFF}, s{T}, {P_SLOT}")
    A(f"s_lshl_b32 s{T+3}, s{T+2}, 2")
    A(f"s_add_u32 s{T+3}, s{T+3}, s{S_WAVE}")
    A(f"s_mul_i32 s{T+3}, s{T+3}, {14*1024}")
    A(f"s_add_u32 s{S_POFF}, s{S_POFF}, s{T+3}")
    A(f"s_add_u32 s{S_POFF}, s{S_POFF}, {WS_P}")
    A(f"s_mul_i32 s{S_WOW}, s{S_WAVE}, {32*896}")
    A(f"s_mov_b32 s{S_MASK}, 0x40004000")
    A(f"s_mov_b32 s{S_FLOOR}, {NEG_INF:#x}")
    A(f"s_mov_b32 s{S_FIRST}, 1")
    for r in range(32):
        A(f"v_mov_b32 v{AC+r}, 0")
        A(f"v_mov_b32 v{AO+r}, 0")
        A(f"v_mov_b32 v{AS[1]+r}, 0")
    for r in range(16):
        A(f"v_mov_b32 v{AP[1]+r}, 0")
    for r in range(8):
        A(f"v_accvgpr_write_b32 a{VA_+3*8+r}, 0")
    A(f"v_bfe_u32 v{V_T}, v0, 3, 1")
    A(f"v_lshlrev_b32 v{V_T}, 10, v{V_T}")
    A(f"v_lshrrev_b32 v{V_T+1}, 5, v0")
    A(f"v_lshl_add_u32 v{V_T}, v{V_T+1}, 8, v{V_T}")
    A(f"v_bfe_u32 v{V_T+1}, v0, 4, 1")
    A(f"v_lshl_add_u32 v{V_T}, v{V_T+1}, 7, v{V_T}")
    A(f"v_and_b32 v{V_T+1}, 7, v0")
    A(f"v_lshl_add_u32 v{V_T}, v{V_T+1}, 4, v{V_T}")
    A(f"s_lshl_b32 s{T+5}, s{S_WAVE}, 12")
    A(f"s_add_u32 s{T+5}, s{T+5}, {XB}")
    A(f"v_add_u32 v{V_XW}, s{T+5}, v{V_T}")
    A(f"v_bfe_u32 v{V_T}, v0, 2, 3")
    A(f"v_bfe_u32 v{V_T+2}, v{V_T}, 1, 2")
    A(f"v_lshrrev_b32 v{V_T+1}, 5, v0")
    A(f"v_lshl_add_u32 v{V_T}, v{V_T+1}, 4, v{V_T}")
    A(f"v_mul_u32_u24 v{V_T}, 896, v{V_T}")
    A(f"v_and_b32 v{V_T+1}, 3, v0")
    A(f"v_lshl_add_u32 v{V_T}, v{V_T+1}, 3, v{V_T}")
    for b in range(4):
        A(f"v_xor_b32 v{V_T+1}, {b}, v{V_T+2}")
        A(f"v_lshl_add_u32 v{V_WOR+b}, v{V_T+1}, 5, v{V_T}")
    A("s_waitcnt vmcnt(10)")
    stamp(A, cfg, 1)
    A.emit_list(a_qk(0, 0))
    lk, lv = a_loads(0, 2)
    A.emit_list(lk)
    A.emit_list(lv)
    A(f"s_mov_b32 m0, s{S_WOW}")
    A(f"s_add_u32 s{S_WOW}, s{S_WOW}, {8*896}")
    for i in range(7):
        if i == 4:
            A("s_add_u32 m0, m0, 4096")
            A("s_nop 0")
        A(f"buffer_load_dwordx4 v{V_WOD+i}, {sr(SRD_B,4)}, s{S_WOOFF} offen offset:{(i%4)*1024} lds")
    A(f"s_add_u32 s{S_WOOFF}, s{S_WOOFF}, {8*896}")
    A(f"s_call_b64 {sr(S_RET,2)}, LA_RARE0")
    stamp(A, cfg, 2)
    A.label("LA_LOOP")
    for u in range(4):
        a_iter(A, u, cfg)
    A(f"s_sub_u32 s{S_LEFT}, s{S_LEFT}, 1")
    A(f"s_cmp_gt_u32 s{S_LEFT}, 3")
    A("s_cbranch_scc1 LA_LOOP")
    A(f"s_cmp_eq_u32 s{S_LEFT}, 0")
    A("s_cbranch_scc1 LA_FIN")
    A(f"s_mov_b32 m0, s{S_WOW}")
    A(f"s_add_u32 s{S_WOW}, s{S_WOW}, {8*896}")
    for i in range(7):
        if i == 4:
            A("s_add_u32 m0, m0, 4096")
            A("s_nop 0")
        A(f"buffer_load_dwordx4 v{V_WOD+i}, {sr(SRD_B,4)}, s{S_WOOFF} offen offset:{(i%4)*1024} lds")
    A(f"s_add_u32 s{S_WOOFF}, s{S_WOOFF}, {8*896}")
    A("s_branch LA_LOOP")
    A.label("LA_FIN")
    A("s_waitcnt vmcnt(12)")
    A.emit_list(a_pv(1, 3))
    stamp(A, cfg, 3)
    A(f"v_cmp_gt_u32 vcc, 32, v0")
    A("s_nop 7")
    A("s_nop 7")
    X = 24
    for qb in range(2):
        o = AO + qb * 16
        A(f"v_mov_b32 v{V_T}, v{o+12}")
        A(f"v_mov_b32 v{X+2*qb+1}, v{o+12}")
        A(f"v_mov_b32 v{X+2*qb}, v{AC+qb*16}")
        A("s_nop 0")
        A(f"v_permlane32_swap_b32 v{V_T}, v{X+2*qb+1}")
    A(f"s_lshl_b32 s{T+5}, s{S_WAVE}, 10")
    A(f"s_add_u32 s{T+5}, s{T+5}, {XB+16384}")
    A(f"v_add_u32 v{V_T}, s{T+5}, v{V_LANE16}")
    A(f"ds_write_b128 v{V_T}, {vr(X,4)}")
    A(f"v_xor_b32 v{V_T+1}, s{S_EV}, v{V_T}")
    A(f"v_xor_b32 v{V_T+2}, s{S_TW}, v{V_T}")
    A(f"v_xor_b32 v{V_T+3}, s{S_TW}, v{V_T+1}")
    A("s_waitcnt lgkmcnt(0)")
    A("s_barrier")
    PR = [100, 104, 108]
    for i in range(3):
        A(f"ds_read_b128 {vr(PR[i],4)}, v{V_T+1+i}")
    A("s_waitcnt lgkmcnt(0)")
    for qb in range(2):
        o = AO + qb * 16
        c1, l1 = X + 2 * qb, X + 2 * qb + 1
        a, b, inv, invh = V_T, V_T + 1, V_T + 2, V_T + 3
        A(f"v_min_f32 v{a}, v{c1}, v{PR[0]+2*qb}")
        A(f"v_min3_f32 v{a}, v{a}, v{PR[1]+2*qb}, v{PR[2]+2*qb}")
        for i in range(3):
            A(f"v_sub_f32 v{PR[i]+2*qb}, v{a}, v{PR[i]+2*qb}")
            A(f"v_exp_f32 v{PR[i]+2*qb}, v{PR[i]+2*qb}")
            A(f"v_mul_f32 v{PR[i]+2*qb+1}, s{S_KAP if i == 0 else S_T2}, v{PR[i]+2*qb+1}")
        A(f"v_sub_f32 v{a}, v{a}, v{c1}")
        A(f"v_exp_f32 v{a}, v{a}")
        A("s_nop 0")
        A(f"v_mul_f32 v{l1}, v{l1}, v{a}")
        for i in range(3):
            A(f"v_fma_f32 v{l1}, v{PR[i]+2*qb}, v{PR[i]+2*qb+1}, v{l1}")
        A(f"v_rcp_f32 v{inv}, v{l1}")
        A("s_nop 0")
        A(f"v_mul_f32 v{inv}, v{inv}, v{a}")
        A(f"v_cndmask_b32 v{invh}, 0, v{inv}, vcc")
        for r in range(16):
            A(f"v_mul_f32 v{o+r}, v{o+r}, v{inv if r < 12 else invh}")
        for g in range(2):
            c = AS[0] + (qb * 2 + g) * 4
            for i in range(4):
                A(f"v_cvt_pk_bf16_f32 v{c+i}, v{o+8*g+2*i}, v{o+8*g+2*i+1}")
            A(f"ds_write_b128 v{V_XW}, {vr(c,4)} offset:{qb*2048+g*512}")
    A("s_waitcnt vmcnt(0) lgkmcnt(0)")
    A("s_barrier")
    A(f"s_lshl_b32 s{T+5}, s{S_WAVE}, 10")
    A(f"s_add_u32 s{T+5}, s{T+5}, {XB}")
    A(f"v_add_u32 v{V_T}, s{T+5}, v{V_LANE16}")
    VB = 96
    for w in range(4):
        A(f"ds_read_b128 {vr(VB+4*w,4)}, v{V_T} offset:{w*4096}")

    def reads(w, half, fset):
        out = []
        for i in range(14):
            b = 14 * half + i
            f = VF + (fset * 14 + i) * 4
            for e in range(2):
                out.append(f"ds_read_b64_tr_b16 {vr(f+2*e,2)}, v{V_WOR+(b&3)} offset:{(b>>2)*128+e*8*896+(w&1)*32*896}")
        return out

    def mf(w, half, fset):
        out = []
        for i in range(14):
            b = 14 * half + i
            f = VF + (fset * 14 + i) * 4
            c = "0" if w == 0 else ar(b * 4, 4)
            out.append(f"v_mfma_f32_16x16x32_bf16 {ar(b*4,4)}, {vr(f,4)}, {vr(VB+4*w,4)}, {c}")
        return out

    seq = [(w, h) for w in range(4) for h in range(2)]
    A.emit_list(reads(0, 0, 0))
    for k, (w, h) in enumerate(seq):
        if k + 1 < len(seq):
            w2, h2 = seq[k + 1]
            if (w2, h2) == (2, 0):
                for b in range(4):
                    A(f"v_add_u32 v{V_WOR+b}, {2*32*896}, v{V_WOR+b}")
            rd = reads(w2, h2, (k + 1) % 2)
            A.emit_list(rd[:14])
            A("s_waitcnt lgkmcnt(14)")
            A.emit_list(interleave(mf(w, h, k % 2), [(i, [r]) for i, r in enumerate(rd[14:])]))
        else:
            A("s_waitcnt lgkmcnt(0)")
            A.emit_list(mf(w, h, k % 2))
    store_partials(A, 1, cfg)


def r_item(A, cfg):
    T = S_TMP
    NF, NH, NQ, NA = a_counts(cfg)
    stamp(A, cfg, 0)
    A(f"s_sub_u32 s{T}, s{S_ITEM}, {NA}")
    A(f"s_lshl_b32 s{T}, s{T}, 3")
    A(f"s_and_b32 s{T+1}, s2, 7")
    A(f"s_add_u32 s{T}, s{T}, s{T+1}")
    A(f"s_mul_i32 s{T+1}, s{T}, 2341")
    A(f"s_lshr_b32 s{T+1}, s{T+1}, 16")
    A(f"s_mul_i32 s{T+2}, s{T+1}, 28")
    A(f"s_sub_u32 s{T+2}, s{T}, s{T+2}")
    A(f"s_lshr_b32 s{T+3}, s{T+1}, 1")
    A(f"s_and_b32 s{T+1}, s{T+1}, 1")
    A(f"s_lshl_b32 s{T+1}, s{T+1}, 3")
    A(f"s_add_u32 s{T+1}, s{T+1}, s{T+3}")
    poll_issue(A, T + 1, F_ROW, 48)
    A(f"s_mul_i32 s{T+3}, s{T+2}, 37")
    A(f"s_lshr_b32 s{T+3}, s{T+3}, 8")
    A(f"s_mul_i32 s{T+4}, s{T+3}, 7")
    A(f"s_sub_u32 s{T+2}, s{T+2}, s{T+4}")
    A(f"s_lshl_b32 s{T+2}, s{T+2}, 1")
    A(f"s_and_b32 s{T+4}, s{S_WAVE}, 1")
    A(f"s_add_u32 s{T+2}, s{T+2}, s{T+4}")
    A(f"s_lshl_b32 s{T+1}, s{T+1}, 3")
    A(f"s_lshl_b32 s{T+3}, s{T+3}, 1")
    A(f"s_add_u32 s{T+1}, s{T+1}, s{T+3}")
    A(f"s_lshr_b32 s{T+3}, s{S_WAVE}, 1")
    A(f"s_add_u32 s{T+1}, s{T+1}, s{T+3}")
    A(f"s_mul_i32 s{S_KOFF}, s{T+1}, {14*1024}")
    A(f"s_lshl_b32 s{T+3}, s{T+2}, 10")
    A(f"s_add_u32 s{S_KOFF}, s{S_KOFF}, s{T+3}")
    A(f"s_add_u32 s{S_KOFF}, s{S_KOFF}, {WS_P}")
    A(f"s_lshl_b32 s{S_VOFF}, s{T+1}, 6")
    A(f"s_add_u32 s{S_VOFF}, s{S_VOFF}, {WS_G}")
    A(f"s_mul_i32 s{S_KLIM}, s{T+1}, {16*896}")
    A(f"s_lshl_b32 s{T+3}, s{T+2}, 6")
    A(f"s_add_u32 s{S_KLIM}, s{S_KLIM}, s{T+3}")
    A(f"s_bfe_u32 s{T+3}, s{T+1}, 0x40002")
    set_srd(A, SRD_B, P_OUT, 2048 * 448 * 2)
    A(f"v_and_b32 v{V_T}, 15, v0")
    A(f"v_lshrrev_b32 v{V_T+1}, 4, v0")
    A(f"v_lshlrev_b32 v{V_T+2}, 2, v{V_T}")
    A(f"v_mul_u32_u24 v{V_T+3}, 896, v{V_T}")
    A(f"v_lshl_add_u32 v{V_T+3}, v{V_T+1}, 3, v{V_T+3}")
    A(f"s_mov_b32 s{S_SC}, 0x00003f80")
    A(f"s_mov_b32 s{S_SC+1}, 0x3f800000")
    PB = 96
    NS = 32 if NQ else (24 if NH else 20)
    DONE, NEW, MSK = S_N, S_B0 - 1, S_RET
    A(f"s_bfe_u32 s{T+4}, s{T+1}, 0x10002")
    A(f"s_lshl_b32 s{T+4}, s{T+4}, 2")
    A(f"s_mov_b64 {sr(DONE,2)}, 0")
    A(f"s_mov_b32 s{T+5}, 0x0f0f0f00")
    A(f"s_cmp_ge_u32 s{T+3}, {NF}")
    A(f"s_cselect_b32 s{T+5}, 0x0f0f0000, s{T+5}")
    A(f"s_cmp_ge_u32 s{T+3}, {NF + NH}")
    A(f"s_cselect_b32 s{DONE+1}, 0, s{T+5}")
    A(f"s_mov_b32 s{S_SPIN}, {SPIN_MAX}")
    lloop, lfin = A.newlabel("LRL"), A.newlabel("LRF")
    A.label(lloop)
    A("s_waitcnt vmcnt(0)")
    A(f"v_cmp_eq_u32 vcc, 1, v{V_POLL}")
    A("s_nop 3")
    A(f"s_and_b32 s{MSK}, vcc_lo, 0xffff")
    A(f"s_lshr_b64 {sr(NEW,2)}, vcc, 16")
    A(f"s_lshr_b32 s{NEW}, s{NEW}, s{T+4}")
    A(f"s_and_b32 s{MSK+1}, s{NEW}, 0x0f0f0f0f")
    lskipld, ldo = A.newlabel("LRK"), A.newlabel("LRD")
    A(f"s_or_b64 {sr(NEW,2)}, {sr(DONE,2)}, {sr(MSK,2)}")
    A(f"s_cmp_eq_u32 s{NEW}, 0xffff")
    A(f"s_cselect_b32 s{T+5}, s{NEW+1}, 0")
    A(f"s_cmp_eq_u32 s{T+5}, 0x0f0f0f0f")
    A(f"s_cbranch_scc1 {ldo}")
    A(f"s_and_b32 s{T+5}, s{S_SPIN}, {cfg.get('r_every', 65535)}")
    A(f"s_cbranch_scc1 {lskipld}")
    A.label(ldo)
    A(f"s_andn2_b64 {sr(NEW,2)}, {sr(MSK,2)}, {sr(DONE,2)}")
    A(f"s_or_b64 {sr(DONE,2)}, {sr(DONE,2)}, {sr(MSK,2)}")
    for sl in range(NS):
        if 4 <= sl < 20:
            reg, bit = NEW, sl - 4
        else:
            hp = 0 if sl < 4 else (sl - 16) // 4
            reg, bit = NEW + 1, hp * 8 + (sl % 4)
        ln = A.newlabel("LRS")
        A(f"s_bitcmp1_b32 s{reg}, {bit}")
        A(f"s_cbranch_scc0 {ln}")
        A(f"s_add_u32 s{T+5}, s{S_KOFF}, {sl*P_SLOT}")
        A(f"buffer_load_dwordx4 {vr(PB+sl*4,4)}, v{V_LANE16}, {sr(SRD_WS,4)}, s{T+5} offen sc1")
        A.label(ln)
    A(f"s_cmp_eq_u32 s{DONE}, 0xffff")
    A(f"s_cselect_b32 s{T+5}, s{DONE+1}, 0")
    A(f"s_cmp_eq_u32 s{T+5}, 0x0f0f0f0f")
    A(f"s_cbranch_scc1 {lfin}")
    A.label(lskipld)
    A(f"s_sub_u32 s{S_SPIN}, s{S_SPIN}, 1")
    A(f"s_cmp_eq_u32 s{S_SPIN}, 0")
    A(f"s_cbranch_scc1 {lfin}")
    A(f"s_sleep {cfg.get('r_sleep', 4)}")
    A(f"buffer_load_dword v{V_POLL}, v{V_POLL+1}, {sr(SRD_WS,4)}, s{S_PADDR} offen sc1")
    A(f"s_branch {lloop}")
    A.label(lfin)
    stamp(A, cfg, 1)
    A(f"buffer_load_dword v{V_T+4}, v{V_T+2}, {sr(SRD_WS,4)}, s{S_VOFF} offen sc1")
    A("s_waitcnt vmcnt(0)")
    aa, ab = 64, 72
    lsum = A.newlabel("LRU")
    for sl in range(NS):
        first = sl in (0, 4)
        if sl in (20, 24):
            A(f"s_cmp_lt_u32 s{T+3}, {NF if sl == 20 else NF + NH}")
            A(f"s_cbranch_scc1 {lsum}")
        acc_ = ab if 4 <= sl < 20 else aa
        for i in range(4):
            r = PB + sl * 4 + i
            A(f"v_dot2_f32_bf16 v{acc_+2*i}, v{r}, s{S_SC}, {'0' if first else 'v%d' % (acc_+2*i)}")
            A(f"v_dot2_f32_bf16 v{acc_+2*i+1}, v{r}, s{S_SC+1}, {'0' if first else 'v%d' % (acc_+2*i+1)}")
    A.label(lsum)
    g, g1, t = V_T + 4, V_T + 5, V_T + 6
    A(f"v_sub_f32 v{g1}, 1.0, v{g}")
    A(f"v_cvt_pk_bf16_f32 v{g1}, v{g1}, v{g1}")
    A(f"v_lshlrev_b32 v{g1}, 16, v{g1}")
    A("s_nop 1")
    o = 48
    for i in range(4):
        for acc_, gg in ((aa, g), (ab, g1)):
            a = acc_ + 2 * i
            A(f"v_cvt_pk_bf16_f32 v{t}, v{a}, v{a+1}")
            A(f"v_lshlrev_b32 v{a}, 16, v{t}")
            A(f"v_and_b32 v{a+1}, 0xffff0000, v{t}")
            A(f"v_mul_f32 v{a}, v{gg}, v{a}")
            A(f"v_mul_f32 v{a+1}, v{gg}, v{a+1}")
            A(f"v_cvt_pk_bf16_f32 v{t}, v{a}, v{a+1}")
            A(f"v_lshlrev_b32 v{a}, 16, v{t}")
            A(f"v_and_b32 v{a+1}, 0xffff0000, v{t}")
        A(f"v_add_f32 v{aa+2*i}, v{aa+2*i}, v{ab+2*i}")
        A(f"v_add_f32 v{aa+2*i+1}, v{aa+2*i+1}, v{ab+2*i+1}")
        A(f"v_cvt_pk_bf16_f32 v{o+i}, v{aa+2*i}, v{aa+2*i+1}")
    A(f"buffer_store_dwordx2 {vr(o,2)}, v{V_T+3}, {sr(SRD_B,4)}, s{S_KLIM} offen")
    A(f"buffer_store_dwordx2 {vr(o+2,2)}, v{V_T+3}, {sr(SRD_B,4)}, s{S_KLIM} offen offset:32")


def launch_line(cfg=None):
    return f"; @launch kernel=mega_kernel grid=(256,1,1) block=(256,1,1) lds={LDS_TOTAL}"


def gen_mega(A, name="mega_kernel", cfg=None):
    cfg = cfg or {}
    global KVFL, A_DELAY
    A_DELAY = cfg.get("a_delay", 3)
    KVFL = cfg.get("kvfl", "sc1")
    T = S_TMP
    G = V_G
    A.raw(kernel_header(name))
    A(f"s_load_dwordx16 {sr(4,16)}, s[0:1], 0")
    A(f"s_load_dwordx8 {sr(20,8)}, s[0:1], 64")
    A(f"s_load_dwordx2 {sr(P_WS,2)}, s[0:1], 96")
    A(f"s_load_dwordx2 {sr(P_WOA,2)}, s[0:1], 16")
    if cfg.get("diag"):
        for i in range(14):
            A(f"s_mov_b32 s{S_STAMP+i}, 0")
    stamp(A, cfg, 0)
    A("s_cmp_ge_u32 s2, 256")
    A("s_cbranch_scc1 LM_END")
    if cfg.get("warm0", 1):
        lw0 = A.newlabel("LW0")
        A(f"s_cmp_ge_u32 s2, {8*cfg.get('warm0', 1)}")
        A(f"s_cbranch_scc1 {lw0}")
        A(f"s_getpc_b64 {sr(SRD_WS,2)}")
        A(f"s_mov_b32 s{SRD_WS+2}, LP_START-{name}")
        A(f"s_mov_b32 s{SRD_WS+3}, 0x20000")
        A(f"v_lshlrev_b32 v{G+8}, {cfg.get('warm_sh', 7)}, v0")
        A(f"s_lshr_b32 s{T}, s2, 3")
        A(f"s_lshl_b32 s{T}, s{T}, {8 + cfg.get('warm_sh', 7)}")
        A(f"buffer_load_dword v{G+9}, v{G+8}, {sr(SRD_WS,4)}, s{T} offen")
        A.label(lw0)
    A(f"v_lshrrev_b32 v{G}, 6, v0")
    A("v_and_b32 v0, 63, v0")
    A(f"v_readfirstlane_b32 s{S_WAVE}, v{G}")
    A(f"v_lshlrev_b32 v{V_LANE16}, 4, v0")
    A(f"s_and_b32 s{T}, s2, 7")
    A(f"s_bfe_u32 s{T+1}, s2, 0x10005")
    A(f"s_lshl_b32 s{T+1}, s{T+1}, 3")
    A(f"s_add_u32 s{T}, s{T}, s{T+1}")
    A(f"s_lshr_b32 s{T+1}, s2, 7")
    A(f"s_lshl_b32 s{T+1}, s{T+1}, 4")
    A(f"s_add_u32 s{T}, s{T}, s{T+1}")
    A(f"s_bfe_u32 s{S_GRP}, s2, 0x10006")
    A(f"s_bfe_u32 s{T+1}, s2, 0x20003")
    A(f"s_lshl_b32 s{T+2}, s{S_GRP}, 2")
    A(f"s_add_u32 s{T+1}, s{T+1}, s{T+2}")
    A(f"s_lshr_b32 s{T+2}, s{S_WAVE}, 1")
    A(f"s_and_b32 s{T+3}, s{S_WAVE}, 1")
    A(f"s_and_b32 s{S_GHEAD}, s{T}, 15")
    A(f"s_lshr_b32 s{S_TYPE}, s{T}, 4")
    A(f"s_lshl_b32 s{T+5}, s{T+2}, 4")
    A(f"s_add_u32 s{T+5}, s{T+5}, s{T+3}")
    A(f"s_lshl_b32 s{S_XWAVE}, s{T+5}, 10")
    A(f"s_add_u32 s{S_XWAVE}, s{S_XWAVE}, {LDS_X0}")
    A(f"s_mov_b32 s{S_XWR}, s{S_XWAVE}")
    A(f"s_lshl_b32 s{T+5}, s{T+5}, 3")
    A(f"s_lshl_b32 s{T+6}, s{T+1}, 8")
    A(f"s_add_u32 s{T+6}, s{T+6}, s{T+5}")
    A(f"s_lshl_b32 s{S_XOFF}, s{T+6}, 11")
    A(f"s_mov_b32 s{S_XSTA}, {16*2048}")
    A(f"s_mov_b32 s{S_XSTB}, {16*2048}")
    A(f"s_mov_b32 s{S_XWRAP}, {(128-112*2048) & 0xffffffff}")
    A(f"s_lshl_b32 s{T+7}, s{T+2}, 2")
    A(f"s_add_u32 s{T+7}, s{T+7}, s{T+3}")
    A(f"s_lshl_b32 s{S_WWR}, s{T+7}, 10")
    A(f"s_lshl_b32 s{S_WOFF}, s{T+7}, 14")
    A(f"s_lshl_b32 s{T+6}, s{S_GHEAD}, 9")
    A(f"s_add_u32 s{S_WOFF}, s{S_WOFF}, s{T+6}")
    A(f"v_lshrrev_b32 v{G}, 4, v0")
    A(f"s_lshl_b32 s{T+6}, s{T+3}, 2")
    A(f"v_add_u32 v{G+6}, s{T+6}, v{G}")
    A(f"v_and_b32 v{G+1}, 7, v0")
    A(f"v_xor_b32 v{G}, v{G+6}, v{G+1}")
    A(f"v_lshlrev_b32 v{G}, 4, v{G}")
    A(f"v_lshrrev_b32 v{G+1}, 3, v0")
    A(f"v_lshl_add_u32 v{V_DX}, v{G+1}, 11, v{G}")
    A(f"v_mul_u32_u24 v{G+2}, 896, v{G+1}")
    A(f"v_add_u32 v{V_DX2}, v{G+2}, v{G}")
    A(f"v_lshrrev_b32 v{G}, 5, v0")
    A(f"s_lshl_b32 s{T+6}, s{T+3}, 1")
    A(f"s_lshl_b32 s{T+5}, s{T+2}, 2")
    A(f"s_add_u32 s{T+6}, s{T+6}, s{T+5}")
    A(f"v_add_u32 v{G+1}, s{T+6}, v{G}")
    A(f"v_bfe_u32 v{G+2}, v0, 1, 4")
    A(f"v_xor_b32 v{G+2}, v{G+2}, v{G+1}")
    A(f"v_and_b32 v{G+3}, 1, v0")
    A(f"v_lshl_add_u32 v{G+2}, v{G+2}, 1, v{G+3}")
    A(f"v_lshlrev_b32 v{G+3}, 4, v{G+2}")
    A(f"v_lshl_add_u32 v{V_DW}, v{G}, 13, v{G+3}")
    A("s_waitcnt lgkmcnt(0)")
    set_srd(A, SRD_A, P_CKV, 2048 * 1024 * 2)
    A(f"s_cmp_eq_u32 s{S_TYPE}, 0")
    A(f"s_cselect_b32 s{SRD_B}, s{P_WUK}, s{P_WUV}")
    A(f"s_cselect_b32 s{SRD_B+1}, s{P_WUK+1}, s{P_WUV+1}")
    A(f"s_mov_b32 s{SRD_B+2}, {1024*4096*2}")
    A(f"s_mov_b32 s{SRD_B+3}, 0x20000")
    emit_chain(A, dma_x())
    emit_chain(A, dma_w())
    A(f"s_and_b32 s{S_HEAD}, s2, 15")
    A(f"s_lshr_b32 s{T}, s2, 4")
    A(f"s_sub_u32 s{S_QB}, 15, s{T}")
    A(f"s_lshl_b32 s{T+4}, s{S_QB}, 7")
    A(f"s_lshl_b32 s{T+5}, s{S_HEAD}, 3")
    A(f"s_add_u32 s{T+4}, s{T+4}, s{T+5}")
    A(f"s_lshl_b32 s{T+5}, s{S_WAVE}, 1")
    A(f"s_add_u32 s{S_PHASE}, s{T+4}, s{T+5}")
    A(f"s_mul_i32 s{T+4}, s{S_PHASE}, 896")
    A(f"v_and_b32 v{V_CV}, 31, v0")
    A(f"v_lshlrev_b32 v{V_CV+1}, 5, v{V_CV}")
    A(f"v_mov_b32 v{V_CV+3}, 0x40000000")
    A(f"v_cmp_gt_u32 vcc, 28, v{V_CV}")
    A(f"v_lshrrev_b32 v{V_CV+2}, 5, v0")
    A("s_nop 0")
    A(f"v_cndmask_b32 v{V_CV+1}, v{V_CV+3}, v{V_CV+1}, vcc")
    A(f"v_mul_u32_u24 v{V_CV+2}, 896, v{V_CV+2}")
    A(f"v_add_u32 v{V_CV+2}, v{V_CV+2}, v{V_CV+1}")
    set_srd(A, SRD_WS, P_X, 2048 * 448 * 2)
    set_srd(A, SRD_DBG, P_GATE, 448 * 2)
    A(f"buffer_load_dwordx4 {vr(192,4)}, v{V_CV+2}, {sr(SRD_WS,4)}, s{T+4} offen")
    A(f"buffer_load_dwordx4 {vr(196,4)}, v{V_CV+2}, {sr(SRD_WS,4)}, s{T+4} offen offset:16")
    A(f"buffer_load_dwordx4 {vr(200,4)}, v{V_CV+1}, {sr(SRD_DBG,4)}, 0 offen")
    A(f"buffer_load_dwordx4 {vr(204,4)}, v{V_CV+1}, {sr(SRD_DBG,4)}, 0 offen offset:16")
    emit_chain(A, dma_x())
    emit_chain(A, dma_w())
    set_srd(A, SRD_WS, P_WS, WS_SIZE)
    set_srd(A, SRD_DBG, P_DBG, 256)
    set_srd(A, SRD_E, P_WS, WS_SIZE)
    A(f"s_cmp_eq_u32 s{S_GRP}, 0")
    A(f"s_cselect_b32 s{SRD_E+2}, s{SRD_E+2}, 0")
    li = A.newlabel("LM")
    A(f"v_lshlrev_b32 v{V_SIG+1}, 2, v0")
    A(f"v_mov_b32 v{V_SIG}, 0")
    A(f"s_cmp_lg_u32 s{S_WAVE}, 0")
    A(f"s_cbranch_scc1 {li}")
    A(f"s_lshl_b32 s{T+6}, s2, 6")
    A(f"s_add_u32 s{T+6}, s{T+6}, {WS_F}")
    A("s_mov_b64 exec, 0xffff")
    A(f"buffer_store_dword v{V_SIG}, v{V_SIG+1}, {sr(SRD_WS,4)}, s{T+6} offen sc1")
    A("s_mov_b64 exec, -1")
    A.label(li)
    A(f"s_lshl_b32 s{S_OB}, s{S_GHEAD}, 20")
    A(f"s_lshl_b32 s{T+6}, s{T+1}, 17")
    A(f"s_add_u32 s{S_OB}, s{S_OB}, s{T+6}")
    A(f"s_lshl_b32 s{T+6}, s{T+2}, 16")
    A(f"s_add_u32 s{S_OB}, s{S_OB}, s{T+6}")
    A(f"s_add_u32 s{T+6}, s{S_TYPE}, 12")
    A(f"s_lshl_b32 s{T+6}, s{T+3}, s{T+6}")
    A(f"s_add_u32 s{S_OB}, s{S_OB}, s{T+6}")
    A(f"s_lshl_b32 s{T+6}, s{S_TYPE}, 24")
    A(f"s_add_u32 s{S_OB}, s{S_OB}, s{T+6}")
    A(f"s_mov_b32 s{T+6}, 8192")
    A(f"s_cmp_eq_u32 s{S_TYPE}, 0")
    A(f"s_cselect_b32 s{S_OSTA}, s{T+6}, 4096")
    A(f"s_cselect_b32 s{S_OSTB}, s{T+6}, 12288")
    A(f"s_lshl_b32 s{S_GHEAD}, s{S_GHEAD}, 8")
    A(f"s_lshl_b32 s{T+6}, s{S_GRP}, 12")
    A(f"s_add_u32 s{S_GHEAD}, s{S_GHEAD}, s{T+6}")
    A(f"s_lshl_b32 s{T+6}, s{S_TYPE}, 4")
    A(f"s_add_u32 s{S_GHEAD}, s{S_GHEAD}, s{T+6}")
    A(f"s_and_b32 s{T+6}, s{T+1}, 3")
    A(f"s_lshl_b32 s{T+6}, s{T+6}, 2")
    A(f"s_add_u32 s{S_GHEAD}, s{S_GHEAD}, s{T+6}")
    A(f"s_add_u32 s{S_GHEAD}, s{S_GHEAD}, {F_KV}")
    A(f"s_and_b32 s{S_HEAD}, s2, 15")
    A(f"s_lshr_b32 s{T}, s2, 4")
    A(f"s_sub_u32 s{S_QB}, 15, s{T}")
    A(f"s_lshl_b32 s{S_WOFF2}, s{T+7}, 14")
    A(f"s_lshl_b32 s{T+6}, s{S_HEAD}, 9")
    A(f"s_add_u32 s{S_WOFF2}, s{S_WOFF2}, s{T+6}")
    A(f"s_lshl_b32 s{T+5}, s{S_QB}, 7")
    A(f"s_lshl_b32 s{T+6}, s{T+3}, 3")
    A(f"s_add_u32 s{T+5}, s{T+5}, s{T+6}")
    A(f"s_mul_i32 s{T+5}, s{T+5}, 896")
    A(f"s_mul_i32 s{T+6}, s{T+3}, {8*2688}")
    A(f"s_mul_i32 s{T+4}, s{S_HEAD}, 56")
    A(f"s_add_u32 s{T+6}, s{T+6}, s{T+4}")
    A(f"s_cmp_eq_u32 s{T+2}, 0")
    A(f"s_cselect_b32 s{S_XOFF2}, s{T+5}, s{T+6}")
    A(f"s_cselect_b32 s{S_X2LO}, s{P_X}, s{P_WQKV}")
    A(f"s_cselect_b32 s{S_X2HI}, s{P_X+1}, s{P_WQKV+1}")
    A(f"s_mov_b32 s{T+5}, {2048*448*2}")
    A(f"s_cselect_b32 s{S_X2N}, s{T+5}, {448*1344*2}")
    A(f"s_mov_b32 s{T+5}, {16*896}")
    A(f"s_cselect_b32 s{S_XSTA2}, s{T+5}, {4*2688}")
    A(f"s_cselect_b32 s{S_XSTB2}, s{T+5}, {12*2688}")
    A(f"s_mov_b32 s{T+5}, {(128-112*896) & 0xffffffff}")
    A(f"s_cselect_b32 s{S_XWRAP2}, s{T+5}, {12*2688}")
    lskip = A.newlabel("LM")
    A(f"s_cbranch_scc1 {lskip}")
    A(f"v_bfe_u32 v{G}, v0, 1, 3")
    A(f"v_xor_b32 v{G}, v{G}, v{G+6}")
    A(f"v_and_b32 v{G+1}, 1, v0")
    A(f"v_lshl_add_u32 v{G}, v{G}, 1, v{G+1}")
    A(f"v_lshrrev_b32 v{G+1}, 2, v{G}")
    A(f"v_and_b32 v{G}, 3, v{G}")
    A(f"v_lshlrev_b32 v{G}, 4, v{G}")
    A(f"v_mul_u32_u24 v{G+2}, 896, v{G+1}")
    A(f"v_add_u32 v{G}, v{G}, v{G+2}")
    A(f"v_lshrrev_b32 v{G+2}, 4, v0")
    A(f"v_mul_u32_u24 v{G+2}, 2688, v{G+2}")
    A(f"v_add_u32 v{G}, v{G}, v{G+2}")
    A(f"v_mov_b32 v{G+2}, 0x40000000")
    A(f"v_cmp_gt_u32 vcc, 3, v{G+1}")
    A("s_nop 1")
    A(f"v_cndmask_b32 v{V_DX2}, v{G+2}, v{G}, vcc")
    A.label(lskip)
    A(f"s_lshl_b32 s{S_OBQK}, s{S_HEAD}, 17")
    A(f"s_lshl_b32 s{T+5}, s{S_QB}, 13")
    A(f"s_add_u32 s{S_OBQK}, s{S_OBQK}, s{T+5}")
    A(f"s_lshl_b32 s{T+5}, s{T+2}, 12")
    A(f"s_add_u32 s{S_OBQK}, s{S_OBQK}, s{T+5}")
    A(f"s_lshl_b32 s{T+5}, s{T+3}, 8")
    A(f"s_add_u32 s{S_OBV}, s{S_OBQK}, s{T+5}")
    A(f"s_add_u32 s{S_OBV}, s{S_OBV}, {WS_VA}")
    A(f"s_lshl_b32 s{T+5}, s{T+3}, 21")
    A(f"s_add_u32 s{S_OBQK}, s{S_OBQK}, s{T+5}")
    A(f"s_add_u32 s{S_OBQK}, s{S_OBQK}, {WS_QA}")
    A(f"s_cmp_eq_u32 s{T+3}, 0")
    A(f"s_cselect_b32 s{S_SCA}, {f32bits(SCALE_A):#x}, 1.0")
    A(f"v_and_b32 v{G}, 15, v0")
    A(f"v_lshrrev_b32 v{G+1}, 4, v0")
    A(f"v_lshrrev_b32 v{G+2}, 1, v{G}")
    A(f"v_xor_b32 v{G+2}, v{G+2}, v{G+1}")
    A(f"v_lshlrev_b32 v{G+2}, 4, v{G+2}")
    A(f"v_lshl_add_u32 v{G+2}, v{G}, 7, v{G+2}")
    A(f"s_lshl_b32 s{T+5}, s{T+2}, 14")
    A(f"v_add_u32 v{V_XL0}, s{T+5}, v{G+2}")
    A(f"v_xor_b32 v{V_XL1}, 64, v{V_XL0}")
    A(f"s_lshl_b32 s{T+5}, s{T+2}, 13")
    A(f"v_add_u32 v{V_PXL}, s{T+5}, v{G+2}")
    A(f"v_xor_b32 v{V_PXL+1}, 64, v{V_PXL}")
    A(f"v_add_u32 v{V_XR0}, {LDS_X0}, v{V_XL0}")
    A(f"v_add_u32 v{V_XR1}, {LDS_X0}, v{V_XL1}")
    A(f"s_mov_b32 s{S_XRD}, {LDS_X0+32768}")
    A(f"v_bfe_u32 v{G+2}, v0, 2, 2")
    A(f"v_lshl_add_u32 v{G+3}, v{G+1}, 3, v{G+2}")
    A(f"v_lshlrev_b32 v{G+3}, 9, v{G+3}")
    A(f"v_bfe_u32 v{G+4}, v0, 2, 3")
    A(f"v_lshl_add_u32 v{G+3}, v{G+4}, 5, v{G+3}")
    A(f"v_and_b32 v{G+5}, 3, v0")
    A(f"v_lshl_add_u32 v{G+3}, v{G+5}, 3, v{G+3}")
    A(f"s_lshl_b32 s{T+5}, s{T+3}, 8")
    A(f"v_add_u32 v{V_WR}, s{T+5}, v{G+3}")
    for b in range(1, 8):
        A(f"v_xor_b32 v{V_WR+b}, {b*32}, v{V_WR}")
    A(f"v_lshrrev_b32 v{G+3}, 5, v0")
    A(f"v_lshl_add_u32 v{G+3}, v{G+3}, 4, v{G+4}")
    A(f"v_lshlrev_b32 v{G+3}, 8, v{G+3}")
    A(f"v_lshl_add_u32 v{G+3}, v{G+4}, 5, v{G+3}")
    A(f"v_lshl_add_u32 v{G+3}, v{G+5}, 3, v{G+3}")
    A(f"v_add_u32 v{G+3}, 16384, v{G+3}")
    A(f"s_lshl_b32 s{T+5}, s{T+3}, 6")
    A(f"v_xor_b32 v{V_PWL}, s{T+5}, v{G+3}")
    A(f"v_xor_b32 v{V_PWL+1}, 32, v{V_PWL}")
    A(f"s_lshl_b32 s{T+5}, s{T+3}, 5")
    A(f"s_add_u32 s{T+5}, s{T+5}, 128")
    A(f"v_xor_b32 v{V_PWL+2}, s{T+5}, v{G+3}")
    A(f"v_lshlrev_b32 v{G+2}, 9, v{G+1}")
    A(f"v_bfe_u32 v{G+3}, v0, 3, 1")
    A(f"v_lshl_add_u32 v{G+4}, v{G+3}, 8, v{G+2}")
    A(f"v_and_b32 v{G+3}, 7, v0")
    A(f"v_lshl_add_u32 v{V_OA}, v{G+3}, 4, v{G+4}")
    A(f"v_lshl_add_u32 v{V_OAV}, v{G}, 4, v{G+2}")
    A(f"v_mov_b32 v{V_SCHI}, s{S_SCA}")
    A(f"v_cmp_gt_u32 vcc, 3, v{G+1}")
    A("s_nop 1")
    A(f"v_cndmask_b32 v{V_SCHI}, 0, v{V_SCHI}, vcc")
    A(f"s_lshl_b32 s{T+5}, s{T+3}, 4")
    A(f"v_add_u32 v{G+2}, s{T+5}, v{G}")
    A(f"v_cmp_gt_u32 vcc, 28, v{G+2}")
    A("s_nop 1")
    A(f"v_cndmask_b32 v{V_MULHI}, 0, 1.0, vcc")
    A(f"v_cmp_eq_u32 vcc, 28, v{G+2}")
    A("s_nop 1")
    A(f"v_cndmask_b32 v{V_ADDHI}, 0, 1.0, vcc")
    A(f"s_lshl_b32 s{T+6}, s{T+2}, 15")
    A(f"s_lshl_b32 s{T+5}, s{T+3}, 12")
    A(f"s_add_u32 s{T+6}, s{T+6}, s{T+5}")
    A(f"s_add_u32 s{T+6}, s{T+6}, {XQ}")
    A(f"v_add_u32 v{V_XQW}, s{T+6}, v{V_LANE16}")
    A(f"s_lshl_b32 s{T+6}, s{S_WAVE}, 13")
    A(f"s_add_u32 s{T+6}, s{T+6}, {XQ}")
    A(f"v_add_u32 v{V_XQR}, s{T+6}, v{V_LANE16}")
    A("s_waitcnt vmcnt(16)")
    A(f"s_mov_b32 s{S_W12}, 0")
    A(f"s_lshl_b32 s{S_W4}, s{S_PHASE}, 2")
    A(f"s_add_u32 s{S_W4}, s{S_W4}, {WS_G}")
    A(f"s_mov_b32 s{S_LEFT}, 14")
    A(f"s_mov_b32 s{S_PHASE}, 0")
    A(f"s_mov_b32 s{SRD_WS+2}, 0")
    A(f"s_mov_b32 s{SRD_DBG+2}, 0")
    A(f"s_lshl_b32 s{S_TOFF}, s2, 2")
    A(f"s_add_u32 s{S_TOFF}, s{S_TOFF}, s{S_WAVE}")
    A(f"s_lshl_b32 s{S_TBOFF}, s{S_TOFF}, 13")
    A(f"s_mov_b64 {sr(S_TA,2)}, {sr(P_WQ,2)}")
    A(f"s_mov_b32 s{S_TASZ}, {448*4096*2}")
    A(f"s_mov_b32 s{S_TAOFF}, s{S_TBOFF}")
    for first_u, ptr, size in ((448, P_X, 2048*448*2), (672, P_WQKV, 448*1344*2), (819, P_WOA, 448*448*2)):
        A(f"s_sub_u32 s{T}, s{S_TBOFF}, {first_u*8192}")
        A(f"s_cmp_ge_u32 s{S_TOFF}, {first_u}")
        A(f"s_cselect_b64 {sr(S_TA,2)}, {sr(ptr,2)}, {sr(S_TA,2)}")
        A(f"s_cselect_b32 s{S_TASZ}, {size}, s{S_TASZ}")
        A(f"s_cselect_b32 s{S_TAOFF}, s{T}, s{S_TAOFF}")
    na = cfg.get("tna", 10)
    for n, dst, t0 in ((na, S_TAT, 2),):
        A(f"s_mul_i32 s{T}, s{S_TOFF}, {(65536 + n - 1)//n}")
        A(f"s_lshr_b32 s{T}, s{T}, 16")
        A(f"s_mul_i32 s{T}, s{T}, {n}")
        A(f"s_sub_u32 s{dst}, s{S_TOFF}, s{T}")
        A(f"s_add_u32 s{dst}, s{dst}, {t0}")
    A(f"s_lshr_b32 s{S_TOFF2}, s2, 3")
    A(f"s_lshl_b32 s{S_TOFF2}, s{S_TOFF2}, 2")
    A(f"s_add_u32 s{S_TOFF2}, s{S_TOFF2}, s{S_WAVE}")
    A(f"s_lshl_b32 s{S_TOFF2}, s{S_TOFF2}, {6 + cfg.get('tsh', 7)}")
    A(f"s_getpc_b64 {sr(S_PC,2)}")
    A.label("LM_PC")
    A(f"s_bfe_u32 s{S_CSTEP}, s2, 0x30004")
    A(f"s_add_u32 s{S_CSTEP}, s{S_CSTEP}, 2")
    A(f"s_cmp_eq_u32 s{S_WAVE}, 0")
    A(f"s_cselect_b32 s{S_CSTEP}, s{S_CSTEP}, 99")
    A(f"s_and_b32 s{T}, s2, 15")
    A(f"s_lshl_b32 s{T}, s{T}, 4")
    A(f"v_lshlrev_b32 v{V_CRT+1}, 12, v0")
    A(f"v_add_u32 v{V_CRT+1}, s{T}, v{V_CRT+1}")
    A(f"v_mov_b32 v{V_CRT}, 1")
    A(f"v_and_b32 v{V_SIG+1}, 15, v0")
    A(f"v_lshlrev_b32 v{V_SIG+1}, 4, v{V_SIG+1}")
    A(f"v_lshlrev_b32 v{V_TCH}, {cfg.get('tsh', 7)}, v0")
    if cfg.get("thalf"):
        A(f"v_lshlrev_b32 v{V_TCH}, 7, v0")
        A(f"v_mov_b32 v{V_TCH+1}, 0x40000000")
        A(f"v_cmp_gt_u32 vcc, 32, v0")
        A("s_nop 1")
        A(f"v_cndmask_b32 v{V_TCH}, v{V_TCH+1}, v{V_TCH}, vcc")
    A("s_barrier")
    A.emit_list(g_reads(0, 0))
    A("s_waitcnt lgkmcnt(0)")
    A(f"s_cmp_eq_u32 s{S_TYPE}, 1")
    A("s_cbranch_scc1 LG_VT")
    n_early = cfg.get("n_early", 16)
    for typ in ("KQ", "V"):
        if typ == "V":
            A.label("LG_VT")
        g_step(A, typ, True, cfg)
        A.label(f"LG_LOOP_{typ}")
        g_step(A, typ, False, cfg)
        A(f"s_cbranch_scc1 LG_LOOP_{typ}")
        A(f"s_cmp_eq_u32 s{S_PHASE}, 16")
        A(f"s_cbranch_scc1 LG_EPI_{typ}")
        A(f"s_mov_b32 s{S_LEFT}, 2")
        A(f"s_cmp_eq_u32 s{S_WAVE}, 0")
        A(f"s_cselect_b32 s{SRD_DBG+2}, 256, 0")
        A(f"buffer_load_dword v{V_SIG}, v{V_SIG+1}, {sr(SRD_DBG,4)}, 0 offen sc1")
        A(f"s_mov_b32 s{SRD_DBG+2}, 0")
        A(f"s_mov_b32 s{SRD_A}, s{S_X2LO}")
        A(f"s_mov_b32 s{SRD_A+1}, s{S_X2HI}")
        A(f"s_mov_b32 s{SRD_A+2}, s{S_X2N}")
        A(f"s_mov_b32 s{S_XOFF}, s{S_XOFF2}")
        A(f"s_mov_b32 s{S_XSTA}, s{S_XSTA2}")
        A(f"s_mov_b32 s{S_XSTB}, s{S_XSTB2}")
        A(f"s_mov_b32 s{S_XWRAP}, s{S_XWRAP2}")
        A(f"v_mov_b32 v{V_DX}, v{V_DX2}")
        A(f"s_mov_b32 s{SRD_B}, s{P_WQ}")
        A(f"s_mov_b32 s{SRD_B+1}, s{P_WQ+1}")
        A(f"s_mov_b32 s{SRD_B+2}, {448*4096*2}")
        A(f"s_mov_b32 s{S_WOFF}, s{S_WOFF2}")
        A(f"s_branch LG_LOOP_{typ}")
        A.label(f"LG_EPI_{typ}")
        stamp(A, cfg, 1)
        set_srd(A, SRD_WS, P_WS, WS_SIZE)
        A(f"s_mov_b32 s{SRD_DBG+2}, 256")
        lok, llp = A.newlabel("LM"), A.newlabel("LM")
        A(f"v_cmp_le_u32 vcc, 16, v{V_SIG}")
        A(f"s_cmp_lg_u32 s{S_WAVE}, 0")
        A(f"s_cbranch_scc1 {lok}")
        A(f"s_mov_b32 s{T+1}, {SPIN_MAX}")
        A.label(llp)
        A("s_nop 3")
        A("s_cmp_eq_u64 vcc, -1")
        A(f"s_cbranch_scc1 {lok}")
        A(f"s_sub_u32 s{T+1}, s{T+1}, 1")
        A(f"s_cmp_eq_u32 s{T+1}, 0")
        A(f"s_cbranch_scc1 {lok}")
        A("s_sleep 32")
        A(f"buffer_load_dword v{V_SIG}, v{V_SIG+1}, {sr(SRD_DBG,4)}, 0 offen sc1")
        A("s_waitcnt vmcnt(0)")
        A(f"v_cmp_le_u32 vcc, 16, v{V_SIG}")
        A(f"s_branch {llp}")
        A.label(lok)
        if cfg.get("gdiag"):
            A(f"s_lshl_b32 s{T}, s2, 2")
            A(f"s_add_u32 s{T}, s{T}, s{S_WAVE}")
            A(f"s_lshl_b32 s{T}, s{T}, 9")
            A(f"s_add_u32 s{T}, s{T}, {232 << 20}")
            A(f"v_lshrrev_b32 v242, 2, v{V_LANE16}")
            A(f"buffer_store_dword v240, v242, {sr(SRD_WS,4)}, s{T} offen")
            A(f"buffer_store_dword v241, v242, {sr(SRD_WS,4)}, s{T} offen offset:256")
        A(f"s_mov_b32 s{S_XOFF2}, s{S_OB}")
        A.emit_list(p_addr(16))
        A.emit_list(p_reads(0, 0))
        g_cvt(A, typ, n_early)
        if typ == "KQ":
            A("s_branch LP_START")
    A.label("LP_START")
    if cfg.get("stamp_lp"):
        stamp(A, cfg, 3)
    A("s_waitcnt lgkmcnt(0)")
    rem = list(range(n_early, 32))
    per = cfg.get("st_per", [4, 4, 4, 4])
    k = 0
    for T_ in range(16, 23):
        st = []
        for h in range(2):
            n = per[k] if k < len(per) else 0
            k += 1
            st.append(rem[:n])
            rem = rem[n:]
        p_step(A, T_, st[0], st[1], cfg)
    assert not rem, rem
    stamp(A, cfg, 2)
    b_setup_kv(A, cfg)
    A("s_waitcnt vmcnt(0)")
    poll_test(A)
    A(f"s_cselect_b32 s{S_EV}, 1, 0")
    A("s_cbranch_scc0 LP_NOTYET")
    kv_first(A)
    A.label("LP_NOTYET")
    A(f"s_cmp_eq_u32 s{S_GRP}, 0")
    A("s_cbranch_scc1 LP_NOLATE")
    A(f"s_mov_b32 s{S_OB}, s{S_XOFF2}")
    for c in range(32):
        for o_ in kv_store(c, SRD_WS):
            A(o_.text)
    A("s_nop 1")
    A.label("LP_NOLATE")
    p_epilogue_a(A)
    p_epilogue_q(A)
    b_setup_rest(A)
    A(f"s_cmp_eq_u32 s{S_EV}, 1")
    A("s_cbranch_scc1 LP_HAVE")
    poll_wait(A, True)
    kv_first(A)
    A.label("LP_HAVE")
    b_main(A, cfg)
    stamp_out(A, cfg, 7, 200 << 20, 2)
    A.label("LQ_NEXT")
    lp = A.newlabel("LQ")
    A(f"s_cmp_eq_u32 s{S_POPPED}, 1")
    A(f"s_cbranch_scc1 {lp}")
    pop_issue(A)
    A.label(lp)
    A(f"s_mov_b32 s{S_POPPED}, 0")
    lw = A.newlabel("LQ")
    A(f"s_cmp_lg_u32 s{S_WAVE}, 0")
    A(f"s_cbranch_scc1 {lw}")
    A("s_waitcnt vmcnt(0)")
    A(f"v_mov_b32 v{V_POLL+1}, {LDS_TOTAL-16}")
    A("s_mov_b64 exec, 1")
    A(f"ds_write_b32 v{V_POLL+1}, v{V_POP}")
    A("s_mov_b64 exec, -1")
    A.label(lw)
    A("s_waitcnt vmcnt(0) lgkmcnt(0)")
    A("s_barrier")
    ls = A.newlabel("LQ")
    A(f"s_cmp_eq_u32 s{S_RFLAG}, 0")
    A(f"s_cbranch_scc1 {ls}")
    signal(A, S_RFLAG, mask_sgpr=S_RMASK)
    A.label(ls)
    A(f"v_mov_b32 v{V_POLL+1}, {LDS_TOTAL-16}")
    A(f"ds_read_b32 v{V_POLL}, v{V_POLL+1}")
    A("s_waitcnt lgkmcnt(0)")
    A(f"v_readfirstlane_b32 s{S_ITEM}, v{V_POLL}")
    A("s_barrier")
    NA = a_counts(cfg)[3]
    A(f"s_cmp_lt_u32 s{S_ITEM}, {n_help(cfg)}")
    A("s_cbranch_scc1 LQ_HELP")
    A(f"s_sub_u32 s{S_ITEM}, s{S_ITEM}, {n_help(cfg)}")
    A(f"s_cmp_ge_u32 s{S_ITEM}, {NA + 56}")
    A("s_cbranch_scc1 LM_FIN")
    A(f"s_cmp_ge_u32 s{S_ITEM}, {NA}")
    A("s_cbranch_scc1 LQ_RED")
    a_item(A, cfg)
    if cfg.get("diag"):
        A(f"s_and_b32 s{T+2}, s2, 7")
        A(f"s_lshl_b32 s{T+3}, s{S_ITEM}, 3")
        A(f"s_add_u32 s{T+2}, s{T+2}, s{T+3}")
        stamp_out(A, cfg, 5, 210 << 20, T + 2)
    A("s_branch LQ_NEXT")
    A.label("LQ_RED")
    A(f"s_mov_b32 s{S_RFLAG}, 0")
    r_item(A, cfg)
    if cfg.get("diag"):
        A(f"s_and_b32 s{T+2}, s2, 7")
        A(f"s_sub_u32 s{T+3}, s{S_ITEM}, {NA}")
        A(f"s_lshl_b32 s{T+3}, s{T+3}, 3")
        A(f"s_add_u32 s{T+2}, s{T+2}, s{T+3}")
        stamp_out(A, cfg, 3, 220 << 20, T + 2)
    A("s_branch LQ_NEXT")
    A.label("LQ_HELP")
    h_item(A, cfg)
    h_tail(A, cfg)
    A.label("LB_MERGE")
    b_norm_merge(A)
    A("s_branch LB_NORMED")
    flush_ool(A)
    b_rare(A, 0)
    b_rare(A, 1)
    a_rare(A, 0)
    a_rare(A, 1)
    A.label("LM_FIN")
    stamp_out(A, cfg, 1, 230 << 20, 2)
    A.label("LM_END")
    A("s_endpgm")
    return kernel_desc(name, 512, 102, 256)
```

```python
import math
from asmlib import *

WS_K = 0
WS_V = 16 << 20
WS_QA = 48 << 20
WS_KA = 50 << 20
WS_VA = 52 << 20
WS_P = 64 << 20
WS_SIZE = 256 << 20
P_SLOT = 128 * 14 * 1024
LOG2E = math.log2(math.e)
SCALE_B = LOG2E / 16.0
SCALE_A = LOG2E / math.sqrt(28.0)
LDS_TOTAL = 163840
LDS_X0 = 65536
BIAS = 32.0
NEG_INF = 0xff800000
HUGE = WS_SIZE
SPIN_MAX = 1 << 16

C_QUEUE = 1
WS_F = 240 << 20
F_KV, F_AQ, F_ROW = WS_F, WS_F + 8192, WS_F + 12288
WS_G = 241 << 20

P_X, P_WQKV, P_WOA, P_CKV, P_WQ, P_WUK, P_WUV = 4, 6, 30, 12, 14, 16, 18
P_WOB, P_GATE, P_OUT, P_DBG, P_WS = 20, 22, 24, 26, 28
SRD_A, SRD_B, SRD_WS, SRD_DBG = 32, 36, 40, 44
S_WAVE, S_TYPE, S_HEAD, S_QB = 48, 49, 50, 51
S_XOFF, S_WOFF, S_XSTA, S_XSTB, S_XWRAP, S_W4, S_W12 = 52, 53, 54, 55, 56, 57, 58
S_XRD, S_XWR, S_WWR, S_XWAVE, S_LEFT, S_PHASE = 59, 60, 61, 62, 63, 64
S_OB, S_OSTA, S_OSTB = 65, 66, 67
S_XOFF2, S_WOFF2, S_XSTA2, S_XSTB2, S_XWRAP2, S_X2LO, S_X2HI, S_X2N = 68, 69, 70, 71, 72, 73, 74, 75
S_OBQK, S_OBV, S_SCA, S_GHEAD = 76, 77, 78, 79
S_N, S_T2, S_TW, S_KOFF, S_VOFF, S_KLIM, S_VLIM, S_B0 = 52, 53, 54, 55, 56, 57, 58, 59
S_RET = 60
S_FLOOR, S_FIRST = 62, 64
S_WOOFF, S_POFF, S_MASK, S_HUGE, S_WOW = 65, 66, 67, 68, 69
S_SC = 70
S_BL1 = 67
S_POFF1 = 71
S_ITEM = 72
S_SPIN = 73
S_EV = 74
S_PADDR = 75
S_RMASK = 77
S_AQOK = 79
S_PFLAG, S_PMASK = 12, 13
S_POPPED = 49
S_KAP = 78
S_RFLAG = 76
S_TMP = 80
S_STAMP = 88
SRD_E = 8
S_TOFF = 87
S_PC = 84
S_TOFF2 = 86
S_TA, S_TASZ, S_TAOFF, S_TAT, S_TBOFF, S_TBT = 12, 16, 17, 18, 19, 22
S_CSTEP = 83
V_CRT = 42
V_TCH = 40
S_GRP = 3

V_LANE16 = 1
V_XL0, V_XL1, V_XR0, V_XR1 = 2, 3, 4, 5
V_WR = 6
V_DX, V_DW, V_DX2 = 14, 15, 16
V_OA, V_OAV, V_SCHI, V_MULHI, V_ADDHI = 17, 18, 19, 20, 21
V_PXL = 22
V_PWL = 24
V_PWR = 27
V_XQW, V_XQR = 30, 31
V_G = 32
V_CV = 48
FX = [64, 128]
FW = [96, 160]
V_PK = 128
V_DKV = 2
V_RB1, V_RB0 = 3, 4
V_CB = 6
V_L = 8
V_DM = 10
V_LT = 14
V_T = 16
V_WOD = 32
V_WOR = 40
V_POLL = 44
V_SIG = 46
V_POP = 5
VP = [48, 56]
VS = [64, 80]
VC = 96
VE = 112
VO = 128
AQ, AK, AV = 0, 64, 128
XQ = 98304

OOL = []


def flush_ool(A):
    for b in OOL:
        A.emit_list(b)
    OOL.clear()


def emit_chain(A, c):
    prev = ""
    for o in c:
        if o.kind == "M" and prev.split(",")[0].endswith(" m0"):
            A("s_nop 0")
        A(o.text)
        prev = o.text


def emit_left(A, left):
    for l in left:
        A(l)
        if l.split(",")[0].endswith(" m0") or l.startswith("v_exp"):
            A("s_nop 0")


def spread(n_items, start, end):
    if n_items == 1:
        return [start]
    return [start + (i * (end - start)) // (n_items - 1) for i in range(n_items)]


def set_srd(A, srd, ptr, size):
    A(f"s_mov_b32 s{srd}, s{ptr}")
    A(f"s_mov_b32 s{srd+1}, s{ptr+1}")
    A(f"s_mov_b32 s{srd+2}, {size}")
    A(f"s_mov_b32 s{srd+3}, 0x20000")


def stamp(A, cfg, i):
    if cfg.get("diag"):
        A(f"s_memrealtime {sr(S_STAMP+2*i,2)}")


def stamp_out(A, cfg, n, wsoff, idx_sgpr):
    if cfg.get("diag"):
        A("s_waitcnt vmcnt(0) lgkmcnt(0)")
        A(f"s_memrealtime {sr(S_STAMP+2*(n-1),2)}")
        A("s_waitcnt lgkmcnt(0)")
        A(f"s_lshl_b32 s{S_TMP}, s{idx_sgpr}, 8")
        A(f"s_lshl_b32 s{S_TMP+1}, s{S_WAVE}, 6")
        A(f"s_add_u32 s{S_TMP}, s{S_TMP}, s{S_TMP+1}")
        A(f"s_add_u32 s{S_TMP}, s{S_TMP}, {wsoff}")
        A(f"v_mov_b32 v{V_T+1}, 0")
        for i in range(n):
            A(f"v_mov_b32 v{V_T}, s{S_STAMP+2*i}")
            A(f"buffer_store_dword v{V_T}, v{V_T+1}, {sr(SRD_WS,4)}, s{S_TMP} offen offset:{4*i}")
            A("s_nop 1")


def signal(A, off_sgpr, grp=None, mask_sgpr=None):
    l = A.newlabel("LSG")
    A(f"s_cmp_lg_u32 s{S_WAVE}, 0")
    A(f"s_cbranch_scc1 {l}")
    if grp is not None:
        A(f"s_cmp_lg_u32 s{S_GRP}, {grp}")
        A(f"s_cbranch_scc1 {l}")
    A(f"v_mov_b32 v{V_SIG}, 1")
    A(f"v_lshlrev_b32 v{V_SIG+1}, 5, v0")
    A("s_mov_b64 exec, 1")
    if mask_sgpr is not None:
        A(f"s_mov_b32 exec_lo, s{mask_sgpr}")
    A(f"buffer_store_dword v{V_SIG}, v{V_SIG+1}, {sr(SRD_WS,4)}, s{off_sgpr} offen sc1")
    A("s_mov_b64 exec, -1")
    A.label(l)


def pop_issue(A):
    l = A.newlabel("LPO")
    A(f"s_mov_b32 s{S_POPPED}, 1")
    A(f"s_cmp_lg_u32 s{S_WAVE}, 0")
    A(f"s_cbranch_scc1 {l}")
    A(f"s_and_b32 s{S_TMP+7}, s2, 7")
    A(f"s_lshl_b32 s{S_TMP+7}, s{S_TMP+7}, 5")
    A(f"v_mov_b32 v{V_POP}, 1")
    A(f"v_mov_b32 v{V_SIG+1}, 0")
    A("s_mov_b64 exec, 1")
    A(f"buffer_atomic_add v{V_POP}, v{V_SIG+1}, {sr(SRD_DBG,4)}, s{S_TMP+7} offen offset:{C_QUEUE*4} sc0")
    A("s_mov_b64 exec, -1")
    A.label(l)


def poll_issue(A, idx_sgpr, base, nwords):
    A(f"s_lshl_b32 s{S_PADDR}, s{idx_sgpr}, 8")
    A(f"s_add_u32 s{S_PADDR}, s{S_PADDR}, {base}")
    A(f"v_min_u32 v{V_POLL+1}, {nwords-1}, v0")
    A(f"v_lshlrev_b32 v{V_POLL+1}, 2, v{V_POLL+1}")
    A(f"buffer_load_dword v{V_POLL}, v{V_POLL+1}, {sr(SRD_WS,4)}, s{S_PADDR} offen sc1")


def poll_test(A):
    A(f"v_cmp_eq_u32 vcc, 1, v{V_POLL}")
    A("s_nop 3")
    A("s_cmp_eq_u64 vcc, -1")


def poll_wait(A, reissue_first=False):
    lok, lloop = A.newlabel("LPK"), A.newlabel("LPL")
    A(f"s_mov_b32 s{S_SPIN}, {SPIN_MAX}")
    if reissue_first:
        A(f"buffer_load_dword v{V_POLL}, v{V_POLL+1}, {sr(SRD_WS,4)}, s{S_PADDR} offen sc1")
    A.label(lloop)
    A("s_waitcnt vmcnt(0)")
    poll_test(A)
    A(f"s_cbranch_scc1 {lok}")
    A(f"s_sub_u32 s{S_SPIN}, s{S_SPIN}, 1")
    A(f"s_cmp_eq_u32 s{S_SPIN}, 0")
    A(f"s_cbranch_scc1 {lok}")
    A("s_sleep 8")
    A(f"buffer_load_dword v{V_POLL}, v{V_POLL+1}, {sr(SRD_WS,4)}, s{S_PADDR} offen sc1")
    A(f"s_branch {lloop}")
    A.label(lok)


def acc(nb, tb):
    return (nb * 8 + tb) * 4


def g_mfmas(typ, s, first):
    out = []
    for nb in range(8):
        for tb in range(8):
            a = acc(nb, tb)
            w, x = vr(FW[s] + 4 * nb, 4), vr(FX[s] + 4 * tb, 4)
            c = "0" if first else ar(a, 4)
            out.append(f"v_mfma_f32_16x16x32_bf16 {ar(a,4)}, {w}, {x}, {c}" if typ == "KQ"
                       else f"v_mfma_f32_16x16x32_bf16 {ar(a,4)}, {x}, {w}, {c}")
    return out


def g_reads(s, hh):
    vx = V_XR0 if hh == 0 else V_XR1
    out = [f"ds_read_b128 {vr(FX[s]+4*i,4)}, v{vx} offset:{i*2048}" for i in range(8)]
    for i in range(8):
        out.append(f"ds_read_b64_tr_b16 {vr(FW[s]+4*i,2)}, v{V_WR+i} offset:{hh*16384}")
        out.append(f"ds_read_b64_tr_b16 {vr(FW[s]+4*i+2,2)}, v{V_WR+i} offset:{hh*16384+2048}")
    return out


def dma_x():
    c = [Op(f"s_mov_b32 m0, s{S_XWR}", "S")]
    for i in range(8):
        c.append(Op(f"buffer_load_dwordx4 v{V_DX}, {sr(SRD_A,4)}, s{S_XOFF} offen lds", "M"))
        if i < 7:
            c.append(Op("s_add_u32 m0, m0, 2048", "S"))
            c.append(Op(f"s_add_u32 s{S_XOFF}, s{S_XOFF}, s{S_XSTA if i % 2 == 0 else S_XSTB}", "S"))
        else:
            c.append(Op(f"s_add_u32 s{S_XOFF}, s{S_XOFF}, s{S_XWRAP}", "S"))
            c.append(Op(f"s_add_u32 s{S_XWR}, s{S_XWR}, 32768", "S"))
            c.append(Op(f"s_cmp_ge_u32 s{S_XWR}, {LDS_TOTAL}", "S"))
            c.append(Op(f"s_cselect_b32 s{S_XWR}, s{S_XWAVE}, s{S_XWR}", "S"))
    return c


def dma_w():
    c = [Op(f"s_mov_b32 m0, s{S_WWR}", "S")]
    for i in range(8):
        c.append(Op(f"buffer_load_dwordx4 v{V_DW}, {sr(SRD_B,4)}, s{S_WOFF} offen lds", "M"))
        if i % 2 == 0:
            c.append(Op("s_add_u32 m0, m0, 2048", "S"))
            c.append(Op(f"s_add_u32 s{S_WOFF}, s{S_WOFF}, {4*8192}", "S"))
        else:
            if i < 7:
                c.append(Op("s_add_u32 m0, m0, 6144", "S"))
            c.append(Op(f"s_add_u32 s{S_WOFF}, s{S_WOFF}, {12*8192}", "S"))
        if i == 7:
            c.append(Op(f"s_xor_b32 s{S_WWR}, s{S_WWR}, 32768", "S"))
    return c


HT = "DFDMDFDF" * 6 + "FMFFFFFM" + "FFFFFFFX"


def gate_ops():
    c = V_CV
    par, prevs = [], []
    acc_prev = Op(f"v_mov_b32 v{c+8}, 0", "V")
    par.append(acc_prev)
    for i in range(8):
        x, g = 192 + i, 200 + i
        t = 208 + 4 * i
        a = Op(f"v_lshlrev_b32 v{t}, 16, v{x}", "V")
        b = Op(f"v_and_b32 v{t+1}, 0xffff0000, v{x}", "V")
        d = Op(f"v_lshlrev_b32 v{t+2}, 16, v{g}", "V")
        e = Op(f"v_and_b32 v{t+3}, 0xffff0000, v{g}", "V")
        m0 = Op(f"v_mul_f32 v{t}, v{t}, v{t+2}", "V", [a, d])
        m1 = Op(f"v_mul_f32 v{t+1}, v{t+1}, v{t+3}", "V", [b, e])
        cv = Op(f"v_cvt_pk_bf16_f32 v{t}, v{t}, v{t+1}", "V", [m0, m1])
        lo = Op(f"v_lshlrev_b32 v{t+1}, 16, v{t}", "V", [cv])
        hi = Op(f"v_and_b32 v{t+2}, 0xffff0000, v{t}", "V", [cv])
        s0 = Op(f"v_add_f32 v{c+8}, v{c+8}, v{t+1}", "V", [lo, acc_prev])
        s1 = Op(f"v_add_f32 v{c+8}, v{c+8}, v{t+2}", "V", [hi, s0])
        acc_prev = s1
        par += [a, b, d, e, m0, m1, cv, lo, hi, s0, s1]
    v, w = c + 8, c + 9
    tail = []
    for r in (8, 4, 2, 1):
        tail += ["s_nop 0", f"v_add_f32_dpp v{v}, v{v}, v{v} row_ror:{r} row_mask:0xf bank_mask:0xf"]
    tail += [f"v_mov_b32 v{w}, v{v}", "s_nop 0", f"v_permlane16_swap_b32 v{w}, v{v}", "s_nop 0", f"v_add_f32 v{v}, v{v}, v{w}",
             f"v_cvt_pk_bf16_f32 v{v}, v{v}, v{v}", f"v_lshlrev_b32 v{v}, 16, v{v}", f"v_mul_f32 v{v}, {f32bits(-LOG2E):#x}, v{v}",
             f"v_exp_f32 v{v}, v{v}", f"v_add_f32 v{v}, 1.0, v{v}", f"v_rcp_f32 v{v}, v{v}", f"v_cvt_pk_bf16_f32 v{v}, v{v}, v{v}",
             f"v_lshlrev_b32 v{v}, 16, v{v}", f"v_lshrrev_b32 v{w}, 5, v0", f"v_lshlrev_b32 v{w}, 2, v{w}"]
    tl, prev = [], None
    for t in tail:
        o = Op(t, "V", [prev] if prev else [])
        tl.append(o)
        prev = o
    return par, tl


def g_step(A, typ, first, cfg):
    lastD = max(i for i, c in enumerate(HT) if c == "D")
    va = [Op(f"v_add_u32 v{V_XR0}, s{S_XRD}, v{V_XL0}", "V", min_gap=lastD + 1),
          Op(f"v_add_u32 v{V_XR1}, s{S_XRD}, v{V_XL1}", "V", min_gap=lastD + 1)]
    va += [Op(f"v_xor_b32 v{V_WR+i}, 0x8000, v{V_WR+i}", "V", min_gap=lastD + 1) for i in range(8)]
    gp, gt = gate_ops() if first else ([], [])
    va = va + gp[:58]
    tch = [Op(f"buffer_load_dword v{V_TCH+1}, v{V_TCH}, {sr(SRD_WS,4)}, s{S_TOFF} offen {cfg.get('tfl','')}", "M"),
           Op(f"buffer_atomic_add v{V_CRT}, v{V_CRT+1}, {sr(SRD_DBG,4)}, 0 offen", "M")]
    ht1 = HT[:59] + "MFM" + HT[62:]
    out, _ = schedule(g_mfmas(typ, 0, first), ht1, g_reads(1, 1), dma_x() + tch, va,
                      {63: ["s_waitcnt vmcnt(10) lgkmcnt(0)", "s_barrier"]}, salu_first=True)
    A.emit_list(out)
    ch = [Op(f"s_add_u32 s{S_XRD}, s{S_XRD}, 32768", "S"), Op(f"s_cmp_ge_u32 s{S_XRD}, {LDS_TOTAL}", "S"),
          Op(f"s_cselect_b32 s{S_XRD}, {LDS_X0}, s{S_XRD}", "S")]
    groups = [[Op(f"s_add_u32 s{S_PHASE}, s{S_PHASE}, 1", "S"), Op(f"s_mov_b32 s{SRD_WS+2}, 0", "S")]]
    for when, base, size, off in ((f"s{S_TAT}", S_TA, f"s{S_TASZ}", S_TAOFF),
                                  (cfg.get("warm_at", 13), S_PC, "LM_END-LM_PC", S_TOFF2)):
        groups.append([Op(f"s_cmp_eq_u32 s{S_PHASE}, {when}", "S"),
                       Op(f"s_cselect_b64 {sr(SRD_WS,2)}, {sr(base,2)}, {sr(SRD_WS,2)}", "S"),
                       Op(f"s_cselect_b32 s{SRD_WS+2}, {size}, s{SRD_WS+2}", "S"),
                       Op(f"s_cselect_b32 s{S_TOFF}, s{off}, s{S_TOFF}", "S")])
    groups.append([Op(f"s_cmp_eq_u32 s{S_PHASE}, s{S_CSTEP}", "S"), Op(f"s_cselect_b32 s{SRD_DBG+2}, 256, 0", "S")])
    if first:
        groups = groups[:1]
    merged = []
    for o in dma_w():
        merged.append(o)
        if o.kind == "M" and groups:
            merged += groups.pop(0)
    assert not groups
    ch = ch + merged + [Op(f"s_sub_u32 s{S_LEFT}, s{S_LEFT}, 1", "S"), Op(f"s_cmp_lg_u32 s{S_LEFT}, 0", "S")]
    for o in gp[:58]:
        o.gap = -1
    if gt:
        gt[0].deps = [gp[-1]]
    out, _ = schedule(g_mfmas(typ, 1, False), HT, g_reads(0, 0), ch, gp[58:] + gt, {63: ["s_waitcnt lgkmcnt(0)"]}, salu_first=True)
    A.emit_list(out)
    if cfg.get("gdiag"):
        A("s_memtime s[100:101]")
        A("s_memrealtime s[98:99]")
        A(f"s_mov_b32 m0, s{S_W12}")
        A("s_waitcnt lgkmcnt(0)")
        A("v_writelane_b32 v240, s100, m0")
        A("v_writelane_b32 v241, s98, m0")
        A(f"s_addk_i32 s{S_W12}, 1")
        A(f"s_cmp_lg_u32 s{S_LEFT}, 0")
    if first:
        A(f"s_mov_b32 s{SRD_WS+2}, {WS_SIZE}")
        A("s_mov_b32 exec_lo, 1")
        A("s_mov_b32 exec_hi, 1")
        A(f"buffer_store_dword v{V_CV+8}, v{V_CV+9}, {sr(SRD_WS,4)}, s{S_W4} offen sc1")
        A("s_mov_b64 exec, -1")
        A(f"s_mov_b32 s{SRD_WS+2}, 0")


KVFL = "sc1"


def kv_store(c, srd=None):
    srd = SRD_E if srd is None else srd
    ops = []
    if c and c % 4 == 0:
        ops.append(Op(f"s_add_u32 s{S_OB}, s{S_OB}, s{S_OSTA if (c // 4) % 2 == 1 else S_OSTB}", "S"))
    ops.append(Op(f"buffer_store_dwordx4 {vr(V_PK+4*c,4)}, v{V_LANE16}, {sr(srd,4)}, s{S_OB} offen offset:{(c%4)*1024} {KVFL}", "M"))
    return ops


def g_cvt(A, typ, n_early):
    for c in range(32):
        hi, lo = c // 4, c % 4
        if typ == "KQ":
            o, p = hi, lo
            regs = [acc(2 * p, o) + r for r in range(4)] + [acc(2 * p + 1, o) + r for r in range(4)]
        else:
            p, o = hi >> 1, (hi & 1) * 4 + lo
            regs = [acc(o, 2 * p) + r for r in range(4)] + [acc(o, 2 * p + 1) + r for r in range(4)]
        t = V_CV + (c % 2) * 8
        for i, r in enumerate(regs):
            A(f"v_accvgpr_read_b32 v{t+i}, a{r}")
        for i in range(4):
            A(f"v_cvt_pk_bf16_f32 v{V_PK+4*c+i}, v{t+2*i}, v{t+2*i+1}")
        if n_early == 32:
            for o_ in kv_store(c):
                A(o_.text)
        else:
            k0, k1 = (c * n_early) // 32, ((c + 1) * n_early) // 32
            for k in range(k0, k1):
                for o_ in kv_store(k):
                    A(o_.text)


PF = [("v", 64), ("a", 176)]


def pfr(s, off, n):
    k, b = PF[s]
    return vr(b + off, n, k)


def p_mfmas(s, first):
    out = []
    for db in range(8):
        for tb in range(4):
            a = ar((db * 4 + tb) * 4, 4)
            out.append(f"v_mfma_f32_16x16x32_bf16 {a}, {pfr(s,16+4*db,4)}, {pfr(s,4*tb,4)}, {'0' if first else a}")
    for u in range(3):
        for tb in range(4):
            a = ar(128 + (u * 4 + tb) * 4, 4)
            w, x = pfr(s, 48 + 4 * u, 4), pfr(s, 4 * tb, 4)
            out.append(f"v_mfma_f32_16x16x32_bf16 {a}, {w}, {x}, {'0' if first else a}" if u < 2
                       else f"v_mfma_f32_16x16x32_bf16 {a}, {x}, {w}, {'0' if first else a}")
    return out


def p_reads(s, hh):
    out = [f"ds_read_b128 {pfr(s,4*tb,4)}, v{V_XR0+hh} offset:{tb*2048}" for tb in range(4)]
    for b in range(8):
        for e in range(2):
            out.append(f"ds_read_b64_tr_b16 {pfr(s,16+4*b+2*e,2)}, v{V_WR+b} offset:{hh*16384+e*2048}")
    for u in range(3):
        for e in range(2):
            out.append(f"ds_read_b64_tr_b16 {pfr(s,48+4*u+2*e,2)}, v{V_PWR+u} offset:{hh*8192+e*2048}")
    return out


def p_addr(T):
    base = LDS_X0 + (T % 3) * 32768
    return ([f"v_add_u32 v{V_XR0+h}, {base}, v{V_PXL+h}" for h in range(2)] +
            [f"v_add_u32 v{V_PWR+u}, {base}, v{V_PWL+u}" for u in range(3)])


def merge_chain(dmas, stores):
    out = []
    k = 0
    stores = list(stores)
    for o in dmas:
        out.append(o)
        if o.kind == "M":
            k += 1
            if k % 2 == 0 and stores:
                out += stores.pop(0)
    for s in stores:
        out += s
    return out


PT = "DDM" * 13 + "FFFFX"


def p_step(A, T, st1, st2, cfg):
    lastD = max(i for i, c in enumerate(PT) if c == "D")
    last = T == 22
    ch = merge_chain(dma_x() if T + 2 <= 22 else [], [kv_store(c) for c in st1])
    n_young = sum(1 for o in ch if o.kind == "M")
    va = []
    if not last:
        va = [Op(t, "V", min_gap=lastD + 1) for t in p_addr(T + 1)]
        va += [Op(f"v_xor_b32 v{V_WR+i}, 0x8000, v{V_WR+i}", "V", min_gap=lastD + 1) for i in range(8)]
    out, left = schedule(p_mfmas(0, T == 16), PT, p_reads(1, 1), ch, va, {}, strict=False)
    A.emit_list(out)
    emit_left(A, left)
    A(f"s_waitcnt vmcnt({n_young}) lgkmcnt(0)")
    A("s_barrier")
    if T == cfg.get("sig_at", 18):
        assert not st1 and not st2
        signal(A, S_GHEAD, grp=0)
    if last:
        poll_issue(A, S_HEAD, F_KV, 8)
    ch = merge_chain(dma_w() if T + 2 <= 22 else [], [kv_store(c) for c in st2])
    out, left = schedule(p_mfmas(1, False), PT, [] if last else p_reads(0, 0), ch, [], {}, strict=False)
    A.emit_list(out)
    emit_left(A, left)
    A("s_waitcnt lgkmcnt(0)")


def p_epilogue_a(A):
    gi = 0
    for tb in range(4):
        t = 64 + gi * 12
        gi += 1
        lo, hi = 128 + tb * 4, 128 + (4 + tb) * 4
        for r in range(4):
            A(f"v_accvgpr_read_b32 v{t+r}, a{lo+r}")
            A(f"v_accvgpr_read_b32 v{t+4+r}, a{hi+r}")
        for r in range(4):
            A(f"v_mul_f32 v{t+r}, s{S_SCA}, v{t+r}")
            A(f"v_mul_f32 v{t+4+r}, v{V_SCHI}, v{t+4+r}")
        for i in range(4):
            A(f"v_cvt_pk_bf16_f32 v{t+8+i}, v{t+2*i}, v{t+2*i+1}")
        A(f"buffer_store_dwordx4 {vr(t+8,4)}, v{V_OA}, {sr(SRD_WS,4)}, s{S_OBQK} offen offset:{(tb>>1)*2048+(tb&1)*128} sc1")
    for p in range(2):
        t = 128 + p * 12
        lo, hi = 128 + (8 + 2 * p) * 4, 128 + (8 + 2 * p + 1) * 4
        for r in range(4):
            A(f"v_accvgpr_read_b32 v{t+r}, a{lo+r}")
            A(f"v_accvgpr_read_b32 v{t+4+r}, a{hi+r}")
        for r in range(8):
            A(f"v_fma_f32 v{t+r}, v{t+r}, v{V_MULHI}, v{V_ADDHI}")
        for i in range(4):
            A(f"v_cvt_pk_bf16_f32 v{t+8+i}, v{t+2*i}, v{t+2*i+1}")
        A(f"buffer_store_dwordx4 {vr(t+8,4)}, v{V_OAV}, {sr(SRD_WS,4)}, s{S_OBV} offen offset:{p*2048} sc1")


def p_epilogue_q(A):
    gi = 0
    for tb in range(4):
        for p in range(4):
            t = 160 + (gi % 8) * 12
            gi += 1
            lo, hi = ((2 * p) * 4 + tb) * 4, ((2 * p + 1) * 4 + tb) * 4
            for r in range(4):
                A(f"v_accvgpr_read_b32 v{t+r}, a{lo+r}")
                A(f"v_accvgpr_read_b32 v{t+4+r}, a{hi+r}")
            for r in range(0, 8, 2):
                A(f"v_pk_mul_f32 {vr(t+r,2)}, {vr(t+r,2)}, {sr(S_SC,2)}")
            for i in range(4):
                A(f"v_cvt_pk_bf16_f32 v{t+8+i}, v{t+2*i}, v{t+2*i+1}")
            A(f"ds_write_b128 v{V_XQW}, {vr(t+8,4)} offset:{tb*8192+p*1024}")


def s_reg(buf, kb, qb):
    return VS[buf] + (kb * 2 + qb) * 4


def c_reg(kb, qb):
    return VC + (kb * 2 + qb) * 4


def o_reg(db, qb):
    return VO + (db * 2 + qb) * 4


def qk_mfmas(buf, qs=(0, 1)):
    out = []
    for dg in range(8):
        for kb in range(2):
            for qb in qs:
                d = vr(s_reg(buf, kb, qb), 4)
                c = vr(c_reg(kb, qb), 4) if dg == 0 else d
                out.append(f"v_mfma_f32_16x16x32_bf16 {d}, {ar(AK+(kb*8+dg)*4,4)}, {ar(AQ+(qb*8+dg)*4,4)}, {c}")
    return out


def pv_mfmas(pbuf, qs=(0, 1)):
    out = []
    for db in range(16):
        for qb in qs:
            d = vr(o_reg(db, qb), 4)
            out.append(f"v_mfma_f32_16x16x32_bf16 {d}, {ar(AV+db*4,4)}, {vr(VP[pbuf]+qb*4,4)}, {d}")
    return out


def k_reads(vbase, off):
    return [f"ds_read_b128 {ar(AK+(kb*8+dg)*4,4)}, v{vbase} offset:{off+(kb*8+dg)*1024}"
            for dg in range(8) for kb in range(2)]


def v_reads(vbase, off):
    return [f"ds_read_b128 {ar(AV+db*4,4)}, v{vbase} offset:{off+db*1024}" for db in range(16)]


def softmax_oplist(buf, pbuf, with_l=(0, 1), qs=(0, 1)):
    ops = []
    ladd = {qb: Op(f"v_add_f32 v{V_L+qb}, v{V_L+qb}, v{V_LT+qb}", "V") for qb in with_l}
    ops += list(ladd.values())
    lastsum = []
    for qb in qs:
        prev = None
        for kb in range(2):
            s = s_reg(buf, kb, qb)
            e = VE + (kb * 2 + qb) * 4
            ex = [Op(f"v_exp_f32 v{e+r}, v{s+r}", "E") for r in range(4)]
            ops += ex
            ops.append(Op(f"v_cvt_pk_bf16_f32 v{VP[pbuf]+qb*4+kb*2}, v{e}, v{e+1}", "V", [ex[0], ex[1]]))
            ops.append(Op(f"v_cvt_pk_bf16_f32 v{VP[pbuf]+qb*4+kb*2+1}, v{e+2}, v{e+3}", "V", [ex[2], ex[3]]))
            if kb == 0:
                prev = Op(f"v_add_f32 v{V_LT+qb}, v{e}, v{e+1}", "V", [ex[0], ex[1]] + ([ladd[qb]] if qb in ladd else []))
                ops.append(prev)
                rest = [2, 3]
            else:
                rest = [0, 1, 2, 3]
            for r in rest:
                prev = Op(f"v_add_f32 v{V_LT+qb}, v{V_LT+qb}, v{e+r}", "V", [ex[r], prev])
                ops.append(prev)
        lastsum.append(prev)
    if len(qs) == 2:
        mx = Op(f"v_max_f32 v{V_T+8}, v{V_LT}, v{V_LT+1}", "V", lastsum)
        ops.append(mx)
        ops.append(Op(f"v_cmp_ngt_f32 vcc, 2.0, v{V_T+8}", "V", [mx]))
    else:
        ops.append(Op(f"v_cmp_ngt_f32 vcc, 2.0, v{V_LT+qs[0]}", "V", lastsum))
    return ops


def softmax_linear(buf, pbuf):
    ops = softmax_oplist(buf, pbuf, with_l=())
    return [o.text for o in ops if o.kind == "E"] + ["s_nop 0"] + [o.text for o in ops if o.kind == "V"]


def kv_dma(soff, i):
    return Op(f"buffer_load_dwordx4 v{V_DKV}, {sr(SRD_WS,4)}, s{soff} offen offset:{i*1024} sc1 lds", "M")


def dma_chain(kdst, vdst, vmin):
    c = [Op(f"s_cmp_lt_u32 s{S_KOFF}, s{S_KLIM}", "S"), Op(f"s_cselect_b32 s{S_TMP}, s{S_KOFF}, s{S_HUGE}", "S"),
         Op(kdst, "S"), Op(f"s_add_u32 s{S_KOFF}, s{S_KOFF}, 16384", "S")]
    c += [kv_dma(S_TMP, i) for i in range(4)]
    c += [Op(f"s_cmp_lt_u32 s{S_VOFF}, s{S_VLIM}", "S", min_gap=vmin),
          Op(f"s_cselect_b32 s{S_TMP+1}, s{S_VOFF}, s{S_HUGE}", "S"),
          Op(vdst, "S"), Op(f"s_add_u32 s{S_VOFF}, s{S_VOFF}, 16384", "S")]
    c += [kv_dma(S_TMP + 1, i) for i in range(4)]
    return c


def kv_tile_chain(which, stage):
    off = S_KOFF if which == "K" else S_VOFF
    c = [Op(f"s_add_u32 m0, s{S_B0}, {stage*32768 + (0 if which == 'K' else 16384)}", "S")]
    c += [kv_dma(off, i) for i in range(4)]
    c.append(Op(f"s_add_u32 s{off}, s{off}, 16384", "S"))
    return c


def c_mask_ops(slot, kexpr):
    b = S_WAVE if slot == 0 else S_BL1
    sal, val = [], []
    for kb in range(2):
        sa, sm_ = S_TMP + 4 + 2 * kb, S_TMP + 5 + 2 * kb
        sal += [f"s_cmp_gt_u32 {kexpr(kb)}, s{b}", f"s_cselect_b32 s{sa}, {NEG_INF:#x}, 0",
                f"s_cmp_eq_u32 {kexpr(kb)}, s{b}", f"s_cselect_b32 s{sm_}, -1, 0"]
        t = V_T + 9 + kb
        val.append(f"v_add_f32 v{t}, s{sa}, v{V_CB+slot}")
        for r in range(4):
            val.append(f"v_and_b32 v{c_reg(kb,slot)+r}, s{sm_}, v{V_DM+r}")
        for r in range(4):
            val.append(f"v_add_f32 v{c_reg(kb,slot)+r}, v{c_reg(kb,slot)+r}, v{t}")
    return sal, val


def c_update(A, tile_sgpr):
    lool, lback = A.newlabel("LC"), A.newlabel("LC")
    T = S_TMP + 2
    o = [f"{lool}:", f"s_sub_u32 s{T}, s{tile_sgpr}, s{S_TW}", f"s_lshl_b32 s{T}, s{T}, 1", f"s_add_u32 s{T+1}, s{T}, 1"]
    sal, val = c_mask_ops(0, lambda kb: f"s{T+kb}")
    o += sal + val + [f"s_branch {lback}"]
    OOL.append(o)
    return [f"s_cmp_ge_u32 s{tile_sgpr}, s{S_TW}", f"s_cbranch_scc1 {lool}\n{lback}:"]


def rare_check(A, sb, pref="LB_RARE", half=False):
    lool, lback = A.newlabel("LR"), A.newlabel("LR")
    pre = []
    if half:
        pre = [f"v_mov_b32 v{s_reg(sb,kb,0)+r}, {NEG_INF:#x}" for kb in range(2) for r in range(4)]
    OOL.append([f"{lool}:"] + pre + [f"s_call_b64 {sr(S_RET,2)}, {pref}{sb}", f"s_branch {lback}"])
    return f"s_cbranch_vccnz {lool}\n{lback}:"


PH = "DDE" * 8 + "MEMEMEMX"


def b_iter(A, par, cfg, mode="full", last=None):
    pb_cur, pb_nxt = par, 1 - par
    sb_sm, sb_qk = 1 - par, par
    both, one = (0, 1), (1,)
    pv_q = both if mode in ("full", "t4", "t3") else one
    sm_q = {"full": both, "t4": both, "t3": one, "t2": one, "t1": ()}[mode]
    l_q = pv_q
    qk_q = {"full": both, "t4": one, "t3": one}.get(mode, ())
    if mode in ("t4", "t3"):
        A.emit_list(c_mask_ops(1, lambda kb: str((4 if mode == "t4" else 6) + kb))[0])
    A({"full": "s_waitcnt vmcnt(16) lgkmcnt(0)", "t4": "s_waitcnt vmcnt(16) lgkmcnt(0)", "t3": "s_waitcnt vmcnt(8) lgkmcnt(0)",
       "t2": "s_waitcnt vmcnt(8) lgkmcnt(0)", "t1": "s_waitcnt lgkmcnt(0)"}[mode])
    A("s_barrier")
    if sm_q:
        sm = softmax_oplist(sb_sm, pb_nxt, l_q, sm_q)
        for o in sm:
            if o.kind == "E":
                o.min_gap = 2
    else:
        sm = [Op(f"v_add_f32 v{V_L+qb}, v{V_L+qb}, v{V_LT+qb}", "V") for qb in l_q]
    vrd = v_reads(V_RB0 if par == 0 else V_RB1, 49152 if par == 0 else 16384)
    flip = [Op(f"v_xor_b32 v{V_RB0}, 0x10000, v{V_RB0}", "V"), Op(f"v_xor_b32 v{V_RB1}, 0x10000, v{V_RB1}", "V")]
    if qk_q:
        m = pv_mfmas(pb_cur) + qk_mfmas(sb_qk, qk_q)
        ds = k_reads(V_RB1, 0 if par == 0 else 32768) + vrd
        if mode == "full":
            cu = c_update(A, S_T2)
            chain = [Op(cu[0], "S"), Op(cu[1], "S"), Op(f"s_add_u32 s{S_T2}, s{S_T2}, 1", "S")]
        else:
            k0 = 4 if mode == "t4" else 6
            sal, val = c_mask_ops(1, lambda kb: str(k0 + kb))
            chain = []
            cops = []
            for kb in range(2):
                v = val[9 * kb:9 * kb + 9]
                t = Op(v[0], "V", min_gap=1)
                ands = [Op(x, "V", min_gap=1) for x in v[1:5]]
                adds = [Op(x, "V", [t, a]) for x, a in zip(v[5:9], ands)]
                cops += [t] + ands + adds
            sm = cops + sm
        if mode == "full":
            if par == 0:
                chain += dma_chain(f"s_add_u32 m0, s{S_B0}, 32768", f"s_add_u32 m0, s{S_B0}, 16384", 31)
            else:
                chain += dma_chain(f"s_xor_b32 m0, s{S_B0}, 65536", f"s_add_u32 m0, s{S_B0}, 49152", 31)
                for f in flip:
                    f.min_gap = 56
                sm += flip
                chain[-4:-4] = [Op(f"s_xor_b32 s{S_B0}, s{S_B0}, 65536", "S"), Op(f"s_sub_u32 s{S_LEFT}, s{S_LEFT}, 1", "S")]
            fixed = {31: ["s_waitcnt lgkmcnt(0)"], 63: [rare_check(A, sb_sm)]}
            out, left = schedule(m, PH + PH, ds, chain, sm, fixed)
            A.emit_list(out)
            return
        tmpl = "DDF" * 2 + "DDE" * 6 + "EEEEEEEX" + "D" * 16
        if mode == "t3" and last:
            tmpl = "DDF" * 2 + "DDE" * 6 + "EEMMMMMX" + "D" * 16
            chain += last
        out, left = schedule(m, tmpl, ds, chain, sm, {31: ["s_waitcnt lgkmcnt(0)"]}, strict=False)
        assert all(o.gap is not None and o.gap < 30 for o in cops), [o.gap for o in cops]
        A.emit_list(out)
        A("s_nop 0")
        emit_left(A, left)
        if par == 1:
            A.emit_list([f.text for f in flip])
        A(rare_check(A, sb_sm, half=(len(sm_q) == 1)))
        return
    m = pv_mfmas(pb_cur, one)
    if mode == "t2":
        out, left = schedule(m, "EEEEEEEE" + "EEDDDDDD", vrd, [], sm, {}, strict=False)
        A.emit_list(out)
        A("s_nop 0")
        emit_left(A, left)
        A(rare_check(A, sb_sm, half=True))
    else:
        out, left = schedule(m, "E" + "M" * 15, [], last, sm, {}, strict=False)
        A.emit_list(out)
        emit_left(A, left)


def xquad(A, op, v, t):
    A(f"v_mov_b32 v{t}, v{v}")
    A("s_nop 1")
    A(f"v_permlane32_swap_b32 v{t}, v{v}")
    A("s_nop 1")
    A(f"{op} v{v}, v{v}, v{t}")
    A(f"v_mov_b32 v{t}, v{v}")
    A("s_nop 1")
    A(f"v_permlane16_swap_b32 v{t}, v{v}")
    A("s_nop 1")
    A(f"{op} v{v}, v{v}, v{t}")


def b_rare(A, sb):
    A.label(f"LB_RARE{sb}")
    A("s_nop 7")
    A("s_nop 7")
    so = 1 - sb
    for qb in range(2):
        d = V_T + qb
        a, b = s_reg(sb, 0, qb), s_reg(sb, 1, qb)
        A(f"v_max3_f32 v{d}, v{a}, v{a+1}, v{a+2}")
        A(f"v_max3_f32 v{d}, v{d}, v{a+3}, v{b}")
        A(f"v_max3_f32 v{d}, v{d}, v{b+1}, v{b+2}")
        A(f"v_max_f32 v{d}, v{d}, v{b+3}")
        xquad(A, "v_max_f32", d, V_T + 4)
        A(f"v_add_f32 v{d}, {f32bits(BIAS):#x}, v{d}")
        A(f"v_max_f32 v{d}, s{S_FLOOR}, v{d}")
        A(f"v_max_f32 v{V_T+2+qb}, 0, v{d}")
        A(f"v_exp_f32 v{V_T+2+qb}, -v{V_T+2+qb}")
        for kb in range(2):
            for r in range(4):
                A(f"v_sub_f32 v{s_reg(sb,kb,qb)+r}, v{s_reg(sb,kb,qb)+r}, v{d}")
                A(f"v_sub_f32 v{s_reg(so,kb,qb)+r}, v{s_reg(so,kb,qb)+r}, v{d}")
                A(f"v_sub_f32 v{c_reg(kb,qb)+r}, v{c_reg(kb,qb)+r}, v{d}")
        A(f"v_sub_f32 v{V_CB+qb}, v{V_CB+qb}, v{d}")
        A(f"v_mul_f32 v{V_L+qb}, v{V_L+qb}, v{V_T+2+qb}")
    lskip = A.newlabel("LRS")
    A(f"s_cmp_eq_u32 s{S_FIRST}, 1")
    A(f"s_cbranch_scc1 {lskip}")
    for db in range(16):
        for qb in range(2):
            for r in range(4):
                A(f"v_mul_f32 v{o_reg(db,qb)+r}, v{o_reg(db,qb)+r}, v{V_T+2+qb}")
    A.label(lskip)
    A(f"s_mov_b32 s{S_FIRST}, 0")
    A(f"s_mov_b32 s{S_FLOOR}, 0")
    for o in softmax_linear(sb, sb):
        A(o)
    A("s_nop 1")
    A(f"s_setpc_b64 {sr(S_RET,2)}")


WO_SLOT = [4, 0, 1, 2, 3, 4, 0, 1]
VF = 128
VCTX = 64


def wo_chain(chunk, slot):
    c = [Op(f"s_add_u32 s{S_TMP+2}, s{S_WOOFF}, {chunk*32*896}", "S"), Op(f"s_add_u32 m0, s{S_WOW}, {slot*32768}", "S")]
    for i in range(7):
        if i == 4:
            c.append(Op("s_add_u32 m0, m0, 4096", "S"))
        c.append(Op(f"buffer_load_dwordx4 v{V_WOD+i}, {sr(SRD_B,4)}, s{S_TMP+2} offen offset:{(i%4)*1024} lds", "M"))
    return c


def wo_reads(half, fset):
    out = []
    for i in range(14):
        b = 14 * half + i
        f = VF + (fset * 14 + i) * 4
        for e in range(2):
            out.append(f"ds_read_b64_tr_b16 {vr(f+2*e,2)}, v{V_WOR+(b&3)} offset:{(b>>2)*128+e*16*896}")
    return out


def wo_mfmas(half, fset, dg):
    out = []
    for i in range(14):
        b = 14 * half + i
        f = VF + (fset * 14 + i) * 4
        for qb in range(2):
            a = (b * 2 + qb) * 4
            c = "0" if dg == 0 else ar(a, 4)
            out.append(f"v_mfma_f32_16x16x32_bf16 {ar(a,4)}, {vr(f,4)}, {vr(VCTX+(dg*2+qb)*4,4)}, {c}")
    return out


def b_epilogue(A, cfg):
    A("s_nop 7")
    for qb in range(2):
        xquad(A, "v_add_f32", V_L + qb, V_T + 4)
        A(f"v_rcp_f32 v{V_T+2*qb}, v{V_L+qb}")
        A("s_nop 0")
        A(f"v_mov_b32 v{V_T+2*qb+1}, v{V_T+2*qb}")
    for dg in range(8):
        for qb in range(2):
            for a in range(2):
                o = o_reg(2 * dg + a, qb)
                A(f"v_pk_mul_f32 {vr(o,2)}, {vr(o,2)}, {vr(V_T+2*qb,2)}")
                A(f"v_pk_mul_f32 {vr(o+2,2)}, {vr(o+2,2)}, {vr(V_T+2*qb,2)}")
            for a in range(2):
                o = o_reg(2 * dg + a, qb)
                c = VCTX + (dg * 2 + qb) * 4 + 2 * a
                A(f"v_cvt_pk_bf16_f32 v{c}, v{o}, v{o+1}")
                A(f"v_cvt_pk_bf16_f32 v{c+1}, v{o+2}, v{o+3}")
    A("s_waitcnt vmcnt(28)")
    A("s_barrier")
    A.emit_list(wo_reads(0, 0))
    poll_test(A)
    A(f"s_cselect_b32 s{S_AQOK}, 1, 0")
    W = {6: ["s_waitcnt lgkmcnt(14)"], 13: ["s_waitcnt lgkmcnt(14)"], 20: ["s_waitcnt lgkmcnt(14)"]}
    A("s_waitcnt lgkmcnt(0)")
    for dg in range(8):
        out, _ = schedule(wo_mfmas(0, 0, dg), "D" * 28, wo_reads(1, 1), [], [], W)
        A.emit_list(out)
        if dg < 7:
            delta = (WO_SLOT[dg + 1] - WO_SLOT[dg]) * 32768
            for i in range(4):
                A(f"v_add_u32 v{V_WOR+i}, {delta & 0xffffffff:#x}, v{V_WOR+i}")
            issued = min(7, max(4, dg + 3))
            young = max(0, issued - (dg + 1))
            A(f"s_waitcnt vmcnt({7*young}) lgkmcnt(14)")
            A("s_barrier")
            ch = wo_chain(dg + 4, WO_SLOT[dg + 4]) if 5 <= dg + 4 <= 7 else []
            emit_chain(A, ch)
            out, _ = schedule(wo_mfmas(1, 1, dg), "D" * 28, wo_reads(0, 0), [], [], W)
            A.emit_list(out)
            A("s_waitcnt lgkmcnt(14)")
        else:
            A("s_waitcnt lgkmcnt(14)")
            m = wo_mfmas(1, 1, dg)
            A.emit_list(m[:12])
            A("s_waitcnt lgkmcnt(0)")
            A.emit_list(m[12:])
    store_partials(A, 2, cfg)


def store_partials(A, nqb, cfg):
    fl = "sc1"
    pop_issue(A)
    A("s_nop 7")
    gi = 0
    for qb in range(nqb):
        for p in range(14):
            t = 128 + (gi % 8) * 12
            gi += 1
            regs = [((2 * p) * nqb + qb) * 4 + r for r in range(4)] + [((2 * p + 1) * nqb + qb) * 4 + r for r in range(4)]
            for i, r in enumerate(regs):
                A(f"v_accvgpr_read_b32 v{t+i}, a{r}")
            for i in range(4):
                A(f"v_cvt_pk_bf16_f32 v{t+8+i}, v{t+2*i}, v{t+2*i+1}")
            off = p * 1024
            if off % 4096 == 0:
                A(f"s_add_u32 s{S_TMP}, s{S_POFF if qb == 0 else S_POFF1}, {off}")
            A(f"buffer_store_dwordx4 {vr(t+8,4)}, v{V_LANE16}, {sr(SRD_WS,4)}, s{S_TMP} offen offset:{off%4096} {fl}")


def wo_lane_setup(A):
    T = V_T
    for i in range(7):
        A(f"v_add_u32 v{T}, {64*i}, v0")
        A(f"v_mul_u32_u24 v{T+1}, 1171, v{T}")
        A(f"v_lshrrev_b32 v{T+1}, 16, v{T+1}")
        A(f"v_mul_u32_u24 v{T+2}, 56, v{T+1}")
        A(f"v_sub_u32 v{T+2}, v{T}, v{T+2}")
        A(f"v_bfe_u32 v{T+3}, v{T+1}, 1, 2")
        A(f"v_lshlrev_b32 v{T+3}, 1, v{T+3}")
        A(f"v_xor_b32 v{T+2}, v{T+2}, v{T+3}")
        A(f"v_mul_u32_u24 v{T+1}, 896, v{T+1}")
        A(f"v_lshl_add_u32 v{T+1}, v{T+2}, 4, v{T+1}")
        A(f"v_subrev_u32 v{V_WOD+i}, {(i%4)*1024}, v{T+1}")


def b_setup_kv(A):
    T = S_TMP
    A(f"s_lshl_b32 s{S_TW}, s{S_QB}, 2")
    A(f"s_add_u32 s{S_N}, s{S_TW}, 4")
    A(f"s_lshl_b32 s{S_KOFF}, s{S_HEAD}, 20")
    A(f"s_add_u32 s{S_VOFF}, s{S_KOFF}, {WS_V}")
    A(f"s_lshl_b32 s{T}, s{S_N}, 14")
    A(f"s_add_u32 s{S_KLIM}, s{S_KOFF}, s{T}")
    A(f"s_add_u32 s{S_VLIM}, s{S_VOFF}, s{T}")
    A(f"s_lshl_b32 s{S_B0}, s{S_WAVE}, 12")
    A(f"v_add_u32 v{V_DKV}, s{S_B0}, v{V_LANE16}")
    A(f"s_mov_b32 s{S_SC}, {f32bits(SCALE_B):#x}")
    A(f"s_mov_b32 s{S_SC+1}, {f32bits(SCALE_B):#x}")


def b_setup_rest(A):
    T = S_TMP
    set_srd(A, SRD_B, P_WOB, 4096 * 448 * 2)
    A(f"v_and_b32 v{V_T}, 15, v0")
    A(f"v_lshrrev_b32 v{V_T+1}, 4, v0")
    A(f"v_lshlrev_b32 v{V_T+2}, 2, v{V_T+1}")
    A(f"v_mov_b32 v{V_T+4}, {NEG_INF:#x}")
    for r in range(4):
        A(f"v_add_u32 v{V_T+3}, {r}, v{V_T+2}")
        A(f"v_cmp_gt_u32 vcc, v{V_T+3}, v{V_T}")
        A("s_nop 1")
        A(f"v_cndmask_b32 v{V_DM+r}, 0, v{V_T+4}, vcc")
    A(f"v_bfe_u32 v{V_T+3}, v0, 2, 2")
    A(f"v_add_u32 v{V_T+3}, v{V_T+3}, v{V_T+2}")
    A(f"v_bfe_u32 v{V_T+5}, v{V_T+3}, 1, 2")
    A(f"v_mul_u32_u24 v{V_T+3}, 896, v{V_T+3}")
    A(f"v_and_b32 v{V_T+6}, 3, v0")
    A(f"v_lshl_add_u32 v{V_T+3}, v{V_T+6}, 3, v{V_T+3}")
    A(f"v_add_u32 v{V_T+3}, {WO_SLOT[0]*32768}, v{V_T+3}")
    for b in range(4):
        A(f"v_xor_b32 v{V_T+6}, {b}, v{V_T+5}")
        A(f"v_lshl_add_u32 v{V_WOR+b}, v{V_T+6}, 5, v{V_T+3}")
    wo_lane_setup(A)
    A(f"s_mul_i32 s{S_WOOFF}, s{S_HEAD}, {256*896}")
    A(f"s_mul_i32 s{S_WOW}, s{S_WAVE}, {8*896}")
    A(f"s_add_u32 s{S_WOOFF}, s{S_WOOFF}, s{S_WOW}")
    A(f"s_add_u32 s{S_POFF}, s{S_HEAD}, 4")
    A(f"s_mul_i32 s{S_POFF}, s{S_POFF}, {P_SLOT}")
    A(f"s_mul_i32 s{T}, s{S_QB}, {8*14*1024}")
    A(f"s_add_u32 s{S_POFF}, s{S_POFF}, s{T}")
    A(f"s_add_u32 s{S_POFF}, s{S_POFF}, {WS_P}")
    A(f"s_sub_u32 s{S_BL1}, 7, s{S_WAVE}")
    A(f"s_mul_i32 s{T}, s{S_BL1}, {14*1024}")
    A(f"s_add_u32 s{S_POFF1}, s{S_POFF}, s{T}")
    A(f"s_mul_i32 s{T}, s{S_WAVE}, {14*1024}")
    A(f"s_add_u32 s{S_POFF}, s{S_POFF}, s{T}")
    A(f"s_lshl_b32 s{T}, s{S_BL1}, 13")
    A(f"s_add_u32 s{T}, s{T}, {XQ}")
    A(f"v_add_u32 v{V_XQW}, s{T}, v{V_LANE16}")
    A(f"s_lshl_b32 s{S_RFLAG}, s{S_QB}, 8")
    A(f"s_lshl_b32 s{T}, s{S_HEAD}, 2")
    A(f"s_add_u32 s{S_RFLAG}, s{S_RFLAG}, s{T}")
    A(f"s_add_u32 s{S_RFLAG}, s{S_RFLAG}, {F_ROW}")
    A(f"s_mov_b32 s{S_RMASK}, 1")
    A(f"s_mov_b32 s{S_HUGE}, {HUGE}")
    A(f"s_mov_b32 s{S_FLOOR}, {NEG_INF:#x}")
    A(f"s_mov_b32 s{S_FIRST}, 1")
    for r in range(16):
        A(f"v_mov_b32 v{VC+r}, 0")
    for r in (V_CB, V_CB + 1, V_L, V_L + 1, V_LT, V_LT + 1):
        A(f"v_mov_b32 v{r}, 0")
    A(f"v_mov_b32 v{V_RB0}, v{V_LANE16}")
    A(f"v_add_u32 v{V_RB1}, 0x10000, v{V_LANE16}")
    A(f"s_mov_b32 s{S_T2}, 0")
    A.emit_list(c_update(A, S_T2))


def b_main(A, cfg):
    T = S_TMP
    A("s_waitcnt vmcnt(12) lgkmcnt(0)")
    A("s_barrier")
    if not cfg.get("stamp_lp"):
        stamp(A, cfg, 3)
    for i in range(16):
        A(f"ds_read_b128 {ar(AQ+i*4,4)}, v{V_XQR if i < 8 else V_XQW} offset:{(i%8)*1024}")
    A.emit_list(k_reads(V_RB0, 0))
    zero = [Op(f"v_mov_b32 v{VO+r}, 0", "V") for r in range(128)]
    for z in zero[:24]:
        A(z.text)
    A("s_waitcnt lgkmcnt(0)")
    out, left = schedule(qk_mfmas(0), "DF" * 16, v_reads(V_RB0, 16384), [], zero[24:72], {})
    A.emit_list(out)
    A.emit_list(k_reads(V_RB0, 32768))
    A(f"s_mov_b32 s{S_T2}, 1")
    A.emit_list(c_update(A, S_T2))
    A("s_waitcnt vmcnt(0) lgkmcnt(0)")
    A("s_barrier")
    A(f"s_lshl_b32 s{T+4}, s{S_HEAD}, 6")
    A(f"s_lshl_b32 s{T+5}, s{S_QB}, 2")
    A(f"s_add_u32 s{T+4}, s{T+4}, s{T+5}")
    A(f"s_add_u32 s{T+4}, s{T+4}, {F_AQ}")
    signal(A, T + 4)
    signal(A, S_GHEAD, grp=1)
    ch = kv_tile_chain("K", 3) + kv_tile_chain("V", 3)
    ch += [Op(f"s_cmp_lt_u32 s{S_KOFF}, s{S_KLIM}", "S"), Op(f"s_cselect_b32 s{T}, s{S_KOFF}, s{S_HUGE}", "S"),
           Op(f"s_mov_b32 m0, s{S_B0}", "S"), Op(f"s_add_u32 s{S_KOFF}, s{S_KOFF}, 16384", "S")]
    ch += [kv_dma(T, i) for i in range(4)]
    out, left = schedule(qk_mfmas(1), "FM" * 16, [], ch, zero[72:], {}, strict=False)
    A.emit_list(out)
    emit_left(A, left)
    A(f"v_lshlrev_b32 v{V_SIG+1}, 7, v0")
    A(f"buffer_load_dword v{V_SIG}, v{V_SIG+1}, {sr(SRD_B,4)}, s{S_TBOFF} offen")
    A(f"s_call_b64 {sr(S_RET,2)}, LB_RARE0")
    A(f"s_mov_b32 s{S_T2}, 2")
    A(f"s_lshr_b32 s{S_ITEM}, s{S_N}, 1")
    A(f"s_sub_u32 s{S_ITEM}, s{S_ITEM}, 2")
    A(f"s_cmp_ge_u32 s{S_QB}, 8")
    A(f"s_cselect_b32 s{S_LEFT}, 10, s{S_ITEM}")
    A(f"s_cselect_b32 s{S_EV}, 0, 2")
    stamp(A, cfg, 4)
    A(f"s_cmp_eq_u32 s{S_LEFT}, 0")
    A("s_cbranch_scc1 LB_DONE")
    A.label("LB_LOOP")
    b_iter(A, 0, cfg)
    b_iter(A, 1, cfg)
    if cfg.get("bdiag"):
        A("s_memtime s[100:101]")
        A("s_memrealtime s[98:99]")
        A(f"s_lshr_b32 m0, s{S_T2}, 1")
        A("s_waitcnt lgkmcnt(0)")
        A("v_writelane_b32 v28, s100, m0")
        A("v_writelane_b32 v29, s98, m0")
    A(f"s_cmp_lg_u32 s{S_LEFT}, 0")
    A("s_cbranch_scc1 LB_LOOP")
    A(f"s_cmp_eq_u32 s{S_EV}, 2")
    A("s_cbranch_scc1 LB_DONE")
    A(f"s_cmp_eq_u32 s{S_EV}, 1")
    A("s_cbranch_scc1 LB_EV1")
    A(f"s_mov_b32 s{S_EV}, 1")
    A(f"s_mov_b32 s{S_LEFT}, 2")
    poll_issue(A, S_HEAD, F_KV + 4096, 8)
    A("s_branch LB_LOOP")
    A.label("LB_EV1")
    A(f"s_mov_b32 s{S_EV}, 2")
    A(f"s_sub_u32 s{S_LEFT}, s{S_ITEM}, 12")
    poll_test(A)
    A("s_cbranch_scc1 LB_LOOP")
    poll_wait(A, True)
    A("s_branch LB_LOOP")
    A.label("LB_DONE")
    b_iter(A, 0, cfg, "t4")
    A(f"s_and_b32 s{T+1}, s2, 3")
    pi = Asm()
    poll_issue(pi, T + 1, F_AQ, 64)
    pil = [l.strip() for l in pi.lines]
    for l in pil[:-1]:
        A(l)
    b_iter(A, 1, cfg, "t3", last=[Op(pil[-1], "M")] + wo_chain(0, WO_SLOT[0]))
    b_iter(A, 0, cfg, "t2")
    last = []
    for c in range(1, 5):
        last += wo_chain(c, WO_SLOT[c])
    b_iter(A, 1, cfg, "t1", last=last)
    if cfg.get("bdiag"):
        A(f"s_lshl_b32 s{T}, s2, 2")
        A(f"s_add_u32 s{T}, s{T}, s{S_WAVE}")
        A(f"s_lshl_b32 s{T}, s{T}, 9")
        A(f"s_add_u32 s{T}, s{T}, {232 << 20}")
        A(f"v_lshrrev_b32 v27, 2, v{V_LANE16}")
        A(f"buffer_store_dword v28, v27, {sr(SRD_WS,4)}, s{T} offen")
        A(f"buffer_store_dword v29, v27, {sr(SRD_WS,4)}, s{T} offen offset:256")
    stamp(A, cfg, 5)
    b_epilogue(A, cfg)


AS = [64, 96]
AC = 128
AO = 160
AP = [192, 208]
AE = 224
QA_, KA_, VA_ = 0, 16, 48
XB = 114688
V_XW = 2
V_OR = 14


def a_qk(buf, slot):
    out = []
    for qb in range(2):
        d = vr(AS[buf] + qb * 16, 16)
        out.append(f"v_mfma_f32_32x32x16_bf16 {d}, {ar(KA_+slot*8,4)}, {ar(QA_+qb*8,4)}, {vr(AC+qb*16,16)}")
    for qb in range(2):
        d = vr(AS[buf] + qb * 16, 16)
        out.append(f"v_mfma_f32_32x32x16_bf16 {d}, {ar(KA_+slot*8+4,4)}, {ar(QA_+qb*8+4,4)}, {d}")
    return out


def a_pv(pbuf, slot):
    out = []
    for g in range(2):
        for qb in range(2):
            d = vr(AO + qb * 16, 16)
            out.append(f"v_mfma_f32_32x32x16_bf16 {d}, {ar(VA_+slot*8+g*4,4)}, {vr(AP[pbuf]+qb*8+g*4,4)}, {d}")
    return out


A_DELAY = 3


def a_softmax(buf):
    s, p = AS[buf], AP[buf]
    out = []
    pend = []
    for k in range(16):
        pend.append((2 * k + 1 + A_DELAY, f"v_cvt_pk_bf16_f32 v{p+k}, v{AE+((2*k)%16)}, v{AE+((2*k+1)%16)}"))
        if k == 2:
            pend.append((2 * k + 2 + A_DELAY, f"v_or_b32 v{V_OR}, v{p}, v{p+1}"))
        elif k > 2 and k % 2 == 0:
            pend.append((2 * k + 2 + A_DELAY, f"v_or3_b32 v{V_OR}, v{V_OR}, v{p+k-2}, v{p+k-1}"))
    for i in range(32):
        out.append(f"v_exp_f32 v{AE+(i%16)}, v{s+i}")
        if pend and pend[0][0] <= i:
            out.append(pend.pop(0)[1])
    out.extend(t for _, t in pend)
    out.append(f"v_or3_b32 v{V_OR}, v{V_OR}, v{p+14}, v{p+15}")
    out.append(f"v_and_b32 v{V_OR}, s{S_MASK}, v{V_OR}")
    out.append(f"v_cmp_ne_u32 vcc, 0, v{V_OR}")
    return out


def a_loads(kslot, vslot):
    k = [f"buffer_load_dwordx4 {ar(KA_+kslot*8+4*s,4)}, v{V_LANE16}, {sr(SRD_WS,4)}, s{S_KOFF} offen offset:{s*1024} sc1" for s in range(2)]
    k += [f"s_add_u32 s{S_KOFF}, s{S_KOFF}, 2048", f"s_min_u32 s{S_KOFF}, s{S_KOFF}, s{S_KLIM}"]
    v = [f"buffer_load_dwordx4 {ar(VA_+vslot*8+4*s,4)}, v{V_LANE16}, {sr(SRD_WS,4)}, s{S_VOFF} offen offset:{s*1024} sc1" for s in range(2)]
    v += [f"s_add_u32 s{S_VOFF}, s{S_VOFF}, 2048", f"s_min_u32 s{S_VOFF}, s{S_VOFF}, s{S_VLIM}"]
    return k, v


def a_iter(A, u, cfg):
    par = u % 2
    A("s_waitcnt vmcnt(12)")
    sm = a_softmax(par)
    mq, mp = a_qk(1 - par, (u + 1) % 4), a_pv(1 - par, (u - 1) % 4)
    lk, lv = a_loads((u + 1) % 4, (u - 1) % 4)
    n = len(sm)
    ms = mq + mp
    pos = spread(8, -1, n - 8)
    riders = {3: [lk[0]], 4: [lk[1]], 5: [lk[2]], 6: [lk[3]], 7: [lv[0]]}
    sides = []
    for i, (p, m) in enumerate(zip(pos, ms)):
        sides.append((p, [m] + riders.get(i, [])))
    sides.append((n - 4, [lv[1]]))
    sides.append((n - 2, [lv[2]]))
    sides.append((n - 1, [lv[3]]))
    body = interleave(sm, sides)
    if cfg.get("a_noload"):
        body = [b for b in body if not b.startswith("buffer_load")]
    if cfg.get("a_nosc1"):
        body = [b.replace(" sc1", "") for b in body]
    if cfg.get("a_nomfma"):
        body = [b for b in body if not b.startswith("v_mfma")]
    A.emit_list(body)
    A(rare_check(A, par, "LA_RARE"))


def a_rare(A, sb):
    A.label(f"LA_RARE{sb}")
    A("s_nop 7")
    A("s_nop 7")
    so = 1 - sb
    for qb in range(2):
        d, f, t = V_T + qb, V_T + 2 + qb, V_T + 4
        s = AS[sb] + qb * 16
        A(f"v_max3_f32 v{d}, v{s}, v{s+1}, v{s+2}")
        for i in range(3, 15, 2):
            A(f"v_max3_f32 v{d}, v{d}, v{s+i}, v{s+i+1}")
        A(f"v_max_f32 v{d}, v{d}, v{s+15}")
        A(f"v_mov_b32 v{t}, v{d}")
        A("s_nop 1")
        A(f"v_permlane32_swap_b32 v{t}, v{d}")
        A("s_nop 1")
        A(f"v_max_f32 v{d}, v{d}, v{t}")
        A(f"v_add_f32 v{d}, {f32bits(BIAS):#x}, v{d}")
        A(f"v_max_f32 v{d}, s{S_FLOOR}, v{d}")
        A(f"v_max_f32 v{f}, 0, v{d}")
        A(f"v_exp_f32 v{f}, -v{f}")
        for r in range(16):
            A(f"v_sub_f32 v{s+r}, v{s+r}, v{d}")
            A(f"v_sub_f32 v{AS[so]+qb*16+r}, v{AS[so]+qb*16+r}, v{d}")
            A(f"v_sub_f32 v{AC+qb*16+r}, v{AC+qb*16+r}, v{d}")
            A(f"v_mul_f32 v{AO+qb*16+r}, v{AO+qb*16+r}, v{f}")
    A(f"s_mov_b32 s{S_FLOOR}, 0")
    lskip = A.newlabel("LAS")
    A(f"s_cmp_eq_u32 s{S_FIRST}, 1")
    A(f"s_mov_b32 s{S_FIRST}, 0")
    A(f"s_cbranch_scc1 {lskip}")
    for o in a_softmax(sb):
        A(o)
    A.label(lskip)
    A("s_nop 1")
    A(f"s_setpc_b64 {sr(S_RET,2)}")


def a_counts(cfg):
    nf, nh = cfg.get("nf", 10), cfg.get("nh", 4)
    nq = 16 - nf - nh
    return nf, nh, nq, nf + 2 * nh + 4 * nq


def a_item(A, cfg):
    T = S_TMP
    stamp(A, cfg, 0)
    A(f"s_and_b32 s{T+1}, s2, 3")
    lq = A.newlabel("LAQ")
    A(f"s_cmp_eq_u32 s{S_AQOK}, 1")
    A(f"s_cbranch_scc1 {lq}")
    poll_issue(A, T + 1, F_AQ, 64)
    poll_wait(A)
    A(f"s_mov_b32 s{S_AQOK}, 1")
    A.label(lq)
    NF, NH, NQ, NA = a_counts(cfg)
    SP = S_N
    A(f"s_cmp_ge_u32 s{S_ITEM}, {NF}")
    A(f"s_cselect_b32 s{SP}, 1, 0")
    A(f"s_cselect_b32 s{T+2}, {NF}, 0")
    A(f"s_cselect_b32 s{T+3}, {NF}, 0")
    A(f"s_cmp_ge_u32 s{S_ITEM}, {NF + 2*NH}")
    A(f"s_cselect_b32 s{SP}, 2, s{SP}")
    A(f"s_cselect_b32 s{T+2}, {NF + 2*NH}, s{T+2}")
    A(f"s_cselect_b32 s{T+3}, {NF + NH}, s{T+3}")
    A(f"s_sub_u32 s{T+2}, s{S_ITEM}, s{T+2}")
    A(f"s_lshl_b32 s{T+5}, 1, s{SP}")
    A(f"s_sub_u32 s{T+5}, s{T+5}, 1")
    A(f"s_and_b32 s{T+6}, s{T+2}, s{T+5}")
    A(f"s_lshr_b32 s{T+2}, s{T+2}, s{SP}")
    A(f"s_add_u32 s{T+2}, s{T+2}, s{T+3}")
    A(f"s_sub_u32 s{T+4}, 2, s{SP}")
    A(f"s_lshl_b32 s{T+3}, s{T+6}, s{T+4}")
    A(f"s_lshr_b32 s{T+4}, s{S_WAVE}, s{SP}")
    A(f"s_add_u32 s{T+3}, s{T+3}, s{T+4}")
    A(f"s_and_b32 s{T+4}, s{S_WAVE}, s{T+5}")
    A(f"s_sub_u32 s{T+5}, 17, s{SP}")
    A(f"s_lshl_b32 s{T+4}, s{T+4}, s{T+5}")
    A(f"s_lshr_b32 s{S_LEFT}, 16, s{SP}")
    A(f"s_lshr_b32 s{T+5}, {64*2048}, s{SP}")
    A(f"s_sub_u32 s{T+5}, s{T+5}, 2048")
    A(f"s_cmp_ge_u32 s{SP}, 1")
    A(f"s_cselect_b32 s{S_KAP}, 1.0, 0")
    A(f"s_cselect_b32 s{S_EV}, 1024, 0")
    A(f"s_cselect_b32 s{S_RMASK}, 5, 15")
    A(f"s_cmp_ge_u32 s{SP}, 2")
    A(f"s_cselect_b32 s{S_T2}, 1.0, 0")
    A(f"s_cselect_b32 s{S_TW}, 2048, 0")
    A(f"s_cselect_b32 s{S_RMASK}, 1, s{S_RMASK}")
    A(f"s_bfe_u32 s{T}, s2, 0x10002")
    A(f"s_lshl_b32 s{T}, s{T}, 4")
    A(f"s_add_u32 s{T+2}, s{T+2}, s{T}")
    A(f"s_lshl_b32 s{T}, s{T+1}, 2")
    A(f"s_add_u32 s{T+3}, s{T+3}, s{T}")
    A(f"s_mul_i32 s{S_WOOFF}, s{T+3}, {28*896}")
    A(f"s_lshl_b32 s{T+3}, s{T+3}, 17")
    A(f"s_add_u32 s{S_KOFF}, s{T+3}, s{T+4}")
    A(f"s_add_u32 s{S_VOFF}, s{S_KOFF}, {WS_VA}")
    A(f"s_add_u32 s{S_KOFF}, s{S_KOFF}, {WS_KA}")
    A(f"s_add_u32 s{S_KLIM}, s{S_KOFF}, s{T+5}")
    A(f"s_add_u32 s{S_VLIM}, s{S_VOFF}, s{T+5}")
    A(f"s_lshl_b32 s{T+4}, s{T+2}, 12")
    A(f"s_add_u32 s{T+4}, s{T+4}, s{T+3}")
    A(f"s_add_u32 s{T+4}, s{T+4}, {WS_QA}")
    for i in range(4):
        A(f"buffer_load_dwordx4 {ar(QA_+4*i,4)}, v{V_LANE16}, {sr(SRD_WS,4)}, s{T+4} offen offset:{i*1024} sc1")
    lk, _ = a_loads(0, 0)
    A.emit_list(lk)
    for t in (-4, -3, -2):
        lk, lv = a_loads((t + 5) % 4, (t + 3) % 4)
        A.emit_list(lk)
        if t + 3 >= 0:
            A.emit_list(lv)
    set_srd(A, SRD_B, P_WOA, 448 * 448 * 2)
    A(f"s_lshr_b32 s{S_RFLAG}, s{T+2}, 1")
    A(f"s_lshl_b32 s{S_RFLAG}, s{S_RFLAG}, 8")
    A(f"s_and_b32 s{T+3}, s{T+2}, 1")
    A(f"s_lshl_b32 s{T+3}, s{T+3}, 2")
    A(f"s_add_u32 s{T+3}, s{T+3}, s{T+1}")
    A(f"s_lshl_b32 s{T}, s{T+6}, 3")
    A(f"s_add_u32 s{T+3}, s{T+3}, s{T}")
    A(f"s_lshl_b32 s{T+3}, s{T+3}, 2")
    A(f"s_add_u32 s{S_RFLAG}, s{S_RFLAG}, s{T+3}")
    A(f"s_add_u32 s{S_RFLAG}, s{S_RFLAG}, {F_ROW + 64}")
    A(f"s_lshl_b32 s{T}, s{T+6}, 2")
    A(f"s_add_u32 s{T}, s{T}, 16")
    A(f"s_cmp_eq_u32 s{T+6}, 0")
    A(f"s_cselect_b32 s{T}, 0, s{T}")
    A(f"s_add_u32 s{T}, s{T}, s{T+1}")
    A(f"s_mul_i32 s{S_POFF}, s{T}, {P_SLOT}")
    A(f"s_lshl_b32 s{T+3}, s{T+2}, 2")
    A(f"s_add_u32 s{T+3}, s{T+3}, s{S_WAVE}")
    A(f"s_mul_i32 s{T+3}, s{T+3}, {14*1024}")
    A(f"s_add_u32 s{S_POFF}, s{S_POFF}, s{T+3}")
    A(f"s_add_u32 s{S_POFF}, s{S_POFF}, {WS_P}")
    A(f"s_mul_i32 s{S_WOW}, s{S_WAVE}, {32*896}")
    A(f"s_mov_b32 s{S_MASK}, 0x40004000")
    A(f"s_mov_b32 s{S_FLOOR}, {NEG_INF:#x}")
    A(f"s_mov_b32 s{S_FIRST}, 1")
    for r in range(32):
        A(f"v_mov_b32 v{AC+r}, 0")
        A(f"v_mov_b32 v{AO+r}, 0")
        A(f"v_mov_b32 v{AS[1]+r}, 0")
    for r in range(16):
        A(f"v_mov_b32 v{AP[1]+r}, 0")
    for r in range(8):
        A(f"v_accvgpr_write_b32 a{VA_+3*8+r}, 0")
    A(f"v_bfe_u32 v{V_T}, v0, 3, 1")
    A(f"v_lshlrev_b32 v{V_T}, 10, v{V_T}")
    A(f"v_lshrrev_b32 v{V_T+1}, 5, v0")
    A(f"v_lshl_add_u32 v{V_T}, v{V_T+1}, 8, v{V_T}")
    A(f"v_bfe_u32 v{V_T+1}, v0, 4, 1")
    A(f"v_lshl_add_u32 v{V_T}, v{V_T+1}, 7, v{V_T}")
    A(f"v_and_b32 v{V_T+1}, 7, v0")
    A(f"v_lshl_add_u32 v{V_T}, v{V_T+1}, 4, v{V_T}")
    A(f"s_lshl_b32 s{T+5}, s{S_WAVE}, 12")
    A(f"s_add_u32 s{T+5}, s{T+5}, {XB}")
    A(f"v_add_u32 v{V_XW}, s{T+5}, v{V_T}")
    A(f"v_bfe_u32 v{V_T}, v0, 2, 3")
    A(f"v_bfe_u32 v{V_T+2}, v{V_T}, 1, 2")
    A(f"v_lshrrev_b32 v{V_T+1}, 5, v0")
    A(f"v_lshl_add_u32 v{V_T}, v{V_T+1}, 4, v{V_T}")
    A(f"v_mul_u32_u24 v{V_T}, 896, v{V_T}")
    A(f"v_and_b32 v{V_T+1}, 3, v0")
    A(f"v_lshl_add_u32 v{V_T}, v{V_T+1}, 3, v{V_T}")
    for b in range(4):
        A(f"v_xor_b32 v{V_T+1}, {b}, v{V_T+2}")
        A(f"v_lshl_add_u32 v{V_WOR+b}, v{V_T+1}, 5, v{V_T}")
    A("s_waitcnt vmcnt(10)")
    A("s_barrier")
    signal(A, S_PFLAG, mask_sgpr=S_PMASK)
    stamp(A, cfg, 1)
    A.emit_list(a_qk(0, 0))
    lk, lv = a_loads(0, 2)
    A.emit_list(lk)
    A.emit_list(lv)
    A(f"s_mov_b32 m0, s{S_WOW}")
    A(f"s_add_u32 s{S_WOW}, s{S_WOW}, {8*896}")
    for i in range(7):
        if i == 4:
            A("s_add_u32 m0, m0, 4096")
            A("s_nop 0")
        A(f"buffer_load_dwordx4 v{V_WOD+i}, {sr(SRD_B,4)}, s{S_WOOFF} offen offset:{(i%4)*1024} lds")
    A(f"s_add_u32 s{S_WOOFF}, s{S_WOOFF}, {8*896}")
    A(f"s_call_b64 {sr(S_RET,2)}, LA_RARE0")
    stamp(A, cfg, 2)
    A.label("LA_LOOP")
    for u in range(4):
        a_iter(A, u, cfg)
    A(f"s_sub_u32 s{S_LEFT}, s{S_LEFT}, 1")
    A(f"s_cmp_gt_u32 s{S_LEFT}, 3")
    A("s_cbranch_scc1 LA_LOOP")
    A(f"s_cmp_eq_u32 s{S_LEFT}, 0")
    A("s_cbranch_scc1 LA_FIN")
    A(f"s_mov_b32 m0, s{S_WOW}")
    A(f"s_add_u32 s{S_WOW}, s{S_WOW}, {8*896}")
    for i in range(7):
        if i == 4:
            A("s_add_u32 m0, m0, 4096")
            A("s_nop 0")
        A(f"buffer_load_dwordx4 v{V_WOD+i}, {sr(SRD_B,4)}, s{S_WOOFF} offen offset:{(i%4)*1024} lds")
    A(f"s_add_u32 s{S_WOOFF}, s{S_WOOFF}, {8*896}")
    A("s_branch LA_LOOP")
    A.label("LA_FIN")
    A("s_waitcnt vmcnt(12)")
    A.emit_list(a_pv(1, 3))
    stamp(A, cfg, 3)
    A(f"v_cmp_gt_u32 vcc, 32, v0")
    A("s_nop 7")
    A("s_nop 7")
    X = 24
    for qb in range(2):
        o = AO + qb * 16
        A(f"v_mov_b32 v{V_T}, v{o+12}")
        A(f"v_mov_b32 v{X+2*qb+1}, v{o+12}")
        A(f"v_mov_b32 v{X+2*qb}, v{AC+qb*16}")
        A("s_nop 0")
        A(f"v_permlane32_swap_b32 v{V_T}, v{X+2*qb+1}")
    A(f"s_lshl_b32 s{T+5}, s{S_WAVE}, 10")
    A(f"s_add_u32 s{T+5}, s{T+5}, {XB+16384}")
    A(f"v_add_u32 v{V_T}, s{T+5}, v{V_LANE16}")
    A(f"ds_write_b128 v{V_T}, {vr(X,4)}")
    A(f"v_xor_b32 v{V_T+1}, s{S_EV}, v{V_T}")
    A(f"v_xor_b32 v{V_T+2}, s{S_TW}, v{V_T}")
    A(f"v_xor_b32 v{V_T+3}, s{S_TW}, v{V_T+1}")
    A("s_waitcnt lgkmcnt(0)")
    A("s_barrier")
    PR = [100, 104, 108]
    for i in range(3):
        A(f"ds_read_b128 {vr(PR[i],4)}, v{V_T+1+i}")
    A("s_waitcnt lgkmcnt(0)")
    for qb in range(2):
        o = AO + qb * 16
        c1, l1 = X + 2 * qb, X + 2 * qb + 1
        a, b, inv, invh = V_T, V_T + 1, V_T + 2, V_T + 3
        A(f"v_min_f32 v{a}, v{c1}, v{PR[0]+2*qb}")
        A(f"v_min3_f32 v{a}, v{a}, v{PR[1]+2*qb}, v{PR[2]+2*qb}")
        for i in range(3):
            A(f"v_sub_f32 v{PR[i]+2*qb}, v{a}, v{PR[i]+2*qb}")
            A(f"v_exp_f32 v{PR[i]+2*qb}, v{PR[i]+2*qb}")
            A(f"v_mul_f32 v{PR[i]+2*qb+1}, s{S_KAP if i == 0 else S_T2}, v{PR[i]+2*qb+1}")
        A(f"v_sub_f32 v{a}, v{a}, v{c1}")
        A(f"v_exp_f32 v{a}, v{a}")
        A("s_nop 0")
        A(f"v_mul_f32 v{l1}, v{l1}, v{a}")
        for i in range(3):
            A(f"v_fma_f32 v{l1}, v{PR[i]+2*qb}, v{PR[i]+2*qb+1}, v{l1}")
        A(f"v_rcp_f32 v{inv}, v{l1}")
        A("s_nop 0")
        A(f"v_mul_f32 v{inv}, v{inv}, v{a}")
        A(f"v_cndmask_b32 v{invh}, 0, v{inv}, vcc")
        for r in range(16):
            A(f"v_mul_f32 v{o+r}, v{o+r}, v{inv if r < 12 else invh}")
        for g in range(2):
            c = AS[0] + (qb * 2 + g) * 4
            for i in range(4):
                A(f"v_cvt_pk_bf16_f32 v{c+i}, v{o+8*g+2*i}, v{o+8*g+2*i+1}")
            A(f"ds_write_b128 v{V_XW}, {vr(c,4)} offset:{qb*2048+g*512}")
    A("s_waitcnt vmcnt(0) lgkmcnt(0)")
    A("s_barrier")
    A(f"s_lshl_b32 s{T+5}, s{S_WAVE}, 10")
    A(f"s_add_u32 s{T+5}, s{T+5}, {XB}")
    A(f"v_add_u32 v{V_T}, s{T+5}, v{V_LANE16}")
    VB = 96
    for w in range(4):
        A(f"ds_read_b128 {vr(VB+4*w,4)}, v{V_T} offset:{w*4096}")

    def reads(w, half, fset):
        out = []
        for i in range(14):
            b = 14 * half + i
            f = VF + (fset * 14 + i) * 4
            for e in range(2):
                out.append(f"ds_read_b64_tr_b16 {vr(f+2*e,2)}, v{V_WOR+(b&3)} offset:{(b>>2)*128+e*8*896+(w&1)*32*896}")
        return out

    def mf(w, half, fset):
        out = []
        for i in range(14):
            b = 14 * half + i
            f = VF + (fset * 14 + i) * 4
            c = "0" if w == 0 else ar(b * 4, 4)
            out.append(f"v_mfma_f32_16x16x32_bf16 {ar(b*4,4)}, {vr(f,4)}, {vr(VB+4*w,4)}, {c}")
        return out

    seq = [(w, h) for w in range(4) for h in range(2)]
    A.emit_list(reads(0, 0, 0))
    for k, (w, h) in enumerate(seq):
        if k + 1 < len(seq):
            w2, h2 = seq[k + 1]
            if (w2, h2) == (2, 0):
                for b in range(4):
                    A(f"v_add_u32 v{V_WOR+b}, {2*32*896}, v{V_WOR+b}")
            rd = reads(w2, h2, (k + 1) % 2)
            A.emit_list(rd[:14])
            A("s_waitcnt lgkmcnt(14)")
            A.emit_list(interleave(mf(w, h, k % 2), [(i, [r]) for i, r in enumerate(rd[14:])]))
        else:
            A("s_waitcnt lgkmcnt(0)")
            A.emit_list(mf(w, h, k % 2))
    store_partials(A, 1, cfg)


def r_item(A, cfg):
    T = S_TMP
    NF, NH, NQ, NA = a_counts(cfg)
    stamp(A, cfg, 0)
    A(f"s_sub_u32 s{T}, s{S_ITEM}, {NA}")
    A(f"s_lshl_b32 s{T}, s{T}, 3")
    A(f"s_and_b32 s{T+1}, s2, 7")
    A(f"s_add_u32 s{T}, s{T}, s{T+1}")
    RC = cfg.get("rc", 1)
    per = 28 // RC
    A(f"s_mul_i32 s{T+1}, s{T}, {2341*RC}")
    A(f"s_lshr_b32 s{T+1}, s{T+1}, 16")
    A(f"s_mul_i32 s{T+2}, s{T+1}, {per}")
    A(f"s_sub_u32 s{T+2}, s{T}, s{T+2}")
    A(f"s_lshr_b32 s{T+3}, s{T+1}, 1")
    A(f"s_and_b32 s{T+1}, s{T+1}, 1")
    A(f"s_lshl_b32 s{T+1}, s{T+1}, 3")
    A(f"s_add_u32 s{T+1}, s{T+1}, s{T+3}")
    poll_issue(A, T + 1, F_ROW, 48)
    A(f"s_mul_i32 s{T+3}, s{T+2}, 37")
    A(f"s_lshr_b32 s{T+3}, s{T+3}, 8")
    A(f"s_mul_i32 s{T+4}, s{T+3}, 7")
    A(f"s_sub_u32 s{T+2}, s{T+2}, s{T+4}")
    A(f"s_lshl_b32 s{T+2}, s{T+2}, 1")
    A(f"s_lshl_b32 s{T+1}, s{T+1}, 3")
    if RC == 1:
        A(f"s_and_b32 s{T+4}, s{S_WAVE}, 1")
        A(f"s_add_u32 s{T+2}, s{T+2}, s{T+4}")
        A(f"s_lshl_b32 s{T+3}, s{T+3}, 1")
        A(f"s_add_u32 s{T+1}, s{T+1}, s{T+3}")
        A(f"s_lshr_b32 s{T+3}, s{S_WAVE}, 1")
        A(f"s_add_u32 s{T+1}, s{T+1}, s{T+3}")
    else:
        A(f"s_lshl_b32 s{T+3}, s{T+3}, 2")
        A(f"s_add_u32 s{T+1}, s{T+1}, s{T+3}")
        A(f"s_add_u32 s{T+1}, s{T+1}, s{S_WAVE}")
    A(f"s_mul_i32 s{S_KOFF}, s{T+1}, {14*1024}")
    A(f"s_lshl_b32 s{T+3}, s{T+2}, 10")
    A(f"s_add_u32 s{S_KOFF}, s{S_KOFF}, s{T+3}")
    A(f"s_add_u32 s{S_KOFF}, s{S_KOFF}, {WS_P}")
    A(f"s_lshl_b32 s{S_VOFF}, s{T+1}, 6")
    A(f"s_add_u32 s{S_VOFF}, s{S_VOFF}, {WS_G}")
    A(f"s_mul_i32 s{S_KLIM}, s{T+1}, {16*896}")
    A(f"s_lshl_b32 s{T+3}, s{T+2}, 6")
    A(f"s_add_u32 s{S_KLIM}, s{S_KLIM}, s{T+3}")
    A(f"s_bfe_u32 s{T+3}, s{T+1}, 0x40002")
    set_srd(A, SRD_B, P_OUT, 2048 * 448 * 2)
    A(f"v_and_b32 v{V_T}, 15, v0")
    A(f"v_lshrrev_b32 v{V_T+1}, 4, v0")
    A(f"v_lshlrev_b32 v{V_T+2}, 2, v{V_T}")
    A(f"v_mul_u32_u24 v{V_T+3}, 896, v{V_T}")
    A(f"v_lshl_add_u32 v{V_T+3}, v{V_T+1}, 3, v{V_T+3}")
    A(f"s_mov_b32 s{S_SC}, 0x00003f80")
    A(f"s_mov_b32 s{S_SC+1}, 0x3f800000")
    PB = 96
    NS = 32 if NQ else (24 if NH else 20)
    DONE, NEW, MSK = S_N, S_B0 - 1, S_RET
    A(f"s_bfe_u32 s{T+4}, s{T+1}, 0x10002")
    A(f"s_lshl_b32 s{T+4}, s{T+4}, 2")
    A(f"s_mov_b64 {sr(DONE,2)}, 0")
    A(f"s_mov_b32 s{T+5}, 0x0f0f0f00")
    A(f"s_cmp_ge_u32 s{T+3}, {NF}")
    A(f"s_cselect_b32 s{T+5}, 0x0f0f0000, s{T+5}")
    A(f"s_cmp_ge_u32 s{T+3}, {NF + NH}")
    A(f"s_cselect_b32 s{DONE+1}, 0, s{T+5}")
    A(f"s_mov_b32 s{S_SPIN}, {SPIN_MAX}")
    lloop, lfin = A.newlabel("LRL"), A.newlabel("LRF")
    A.label(lloop)
    A("s_waitcnt vmcnt(0)")
    A(f"v_cmp_eq_u32 vcc, 1, v{V_POLL}")
    A("s_nop 3")
    A(f"s_and_b32 s{MSK}, vcc_lo, 0xffff")
    A(f"s_lshr_b64 {sr(NEW,2)}, vcc, 16")
    A(f"s_lshr_b32 s{NEW}, s{NEW}, s{T+4}")
    A(f"s_and_b32 s{MSK+1}, s{NEW}, 0x0f0f0f0f")
    lskipld, ldo = A.newlabel("LRK"), A.newlabel("LRD")
    A(f"s_or_b64 {sr(NEW,2)}, {sr(DONE,2)}, {sr(MSK,2)}")
    A(f"s_cmp_eq_u32 s{NEW}, 0xffff")
    A(f"s_cselect_b32 s{T+5}, s{NEW+1}, 0")
    A(f"s_cmp_eq_u32 s{T+5}, 0x0f0f0f0f")
    A(f"s_cbranch_scc1 {ldo}")
    A(f"s_and_b32 s{T+5}, s{S_SPIN}, {cfg.get('r_every', 65535)}")
    A(f"s_cbranch_scc1 {lskipld}")
    A.label(ldo)
    A(f"s_andn2_b64 {sr(NEW,2)}, {sr(MSK,2)}, {sr(DONE,2)}")
    A(f"s_or_b64 {sr(DONE,2)}, {sr(DONE,2)}, {sr(MSK,2)}")
    for sl in range(NS):
        if 4 <= sl < 20:
            reg, bit = NEW, sl - 4
        else:
            hp = 0 if sl < 4 else (sl - 16) // 4
            reg, bit = NEW + 1, hp * 8 + (sl % 4)
        ln = A.newlabel("LRS")
        A(f"s_bitcmp1_b32 s{reg}, {bit}")
        A(f"s_cbranch_scc0 {ln}")
        A(f"s_add_u32 s{T+5}, s{S_KOFF}, {sl*P_SLOT}")
        A(f"buffer_load_dwordx4 {vr(PB+sl*4,4)}, v{V_LANE16}, {sr(SRD_WS,4)}, s{T+5} offen sc1")
        if RC == 2:
            A(f"buffer_load_dwordx4 {ar(sl*4,4)}, v{V_LANE16}, {sr(SRD_WS,4)}, s{T+5} offen offset:1024 sc1")
        A.label(ln)
    A(f"s_cmp_eq_u32 s{DONE}, 0xffff")
    A(f"s_cselect_b32 s{T+5}, s{DONE+1}, 0")
    A(f"s_cmp_eq_u32 s{T+5}, 0x0f0f0f0f")
    A(f"s_cbranch_scc1 {lfin}")
    A.label(lskipld)
    A(f"s_sub_u32 s{S_SPIN}, s{S_SPIN}, 1")
    A(f"s_cmp_eq_u32 s{S_SPIN}, 0")
    A(f"s_cbranch_scc1 {lfin}")
    A(f"s_sleep {cfg.get('r_sleep', 4)}")
    A(f"buffer_load_dword v{V_POLL}, v{V_POLL+1}, {sr(SRD_WS,4)}, s{S_PADDR} offen sc1")
    A(f"s_branch {lloop}")
    A.label(lfin)
    stamp(A, cfg, 1)
    A(f"buffer_load_dword v{V_T+4}, v{V_T+2}, {sr(SRD_WS,4)}, s{S_VOFF} offen sc1")
    if cfg.get("r_pop", 1):
        pop_issue(A)
    A("s_waitcnt vmcnt(0)")
    g, g1, t = V_T + 4, V_T + 5, V_T + 6
    A(f"v_sub_f32 v{g1}, 1.0, v{g}")
    A(f"v_cvt_pk_bf16_f32 v{g1}, v{g1}, v{g1}")
    A(f"v_lshlrev_b32 v{g1}, 16, v{g1}")
    for c in range(RC):
        aa, ab = 64, 72
        lsum = A.newlabel("LRU")
        for sl in range(NS):
            first = sl in (0, 4)
            if sl in (20, 24):
                A(f"s_cmp_lt_u32 s{T+3}, {NF if sl == 20 else NF + NH}")
                A(f"s_cbranch_scc1 {lsum}")
            acc_ = ab if 4 <= sl < 20 else aa
            if c == 1:
                for i in range(4):
                    A(f"v_accvgpr_read_b32 v{PB+sl*4+i}, a{sl*4+i}")
            for i in range(4):
                r = PB + sl * 4 + i
                A(f"v_dot2_f32_bf16 v{acc_+2*i}, v{r}, s{S_SC}, {'0' if first else 'v%d' % (acc_+2*i)}")
                A(f"v_dot2_f32_bf16 v{acc_+2*i+1}, v{r}, s{S_SC+1}, {'0' if first else 'v%d' % (acc_+2*i+1)}")
        A.label(lsum)
        A("s_nop 3")
        o = 48 + 4 * c
        for i in range(4):
            for acc_, gg in ((aa, g), (ab, g1)):
                a = acc_ + 2 * i
                A(f"v_cvt_pk_bf16_f32 v{t}, v{a}, v{a+1}")
                A(f"v_lshlrev_b32 v{a}, 16, v{t}")
                A(f"v_and_b32 v{a+1}, 0xffff0000, v{t}")
                A(f"v_mul_f32 v{a}, v{gg}, v{a}")
                A(f"v_mul_f32 v{a+1}, v{gg}, v{a+1}")
                A(f"v_cvt_pk_bf16_f32 v{t}, v{a}, v{a+1}")
                A(f"v_lshlrev_b32 v{a}, 16, v{t}")
                A(f"v_and_b32 v{a+1}, 0xffff0000, v{t}")
            A(f"v_add_f32 v{aa+2*i}, v{aa+2*i}, v{ab+2*i}")
            A(f"v_add_f32 v{aa+2*i+1}, v{aa+2*i+1}, v{ab+2*i+1}")
            A(f"v_cvt_pk_bf16_f32 v{o+i}, v{aa+2*i}, v{aa+2*i+1}")
        A(f"buffer_store_dwordx2 {vr(o,2)}, v{V_T+3}, {sr(SRD_B,4)}, s{S_KLIM} offen offset:{c*64}")
        A(f"buffer_store_dwordx2 {vr(o+2,2)}, v{V_T+3}, {sr(SRD_B,4)}, s{S_KLIM} offen offset:{c*64+32}")


def launch_line(cfg=None):
    return f"; @launch kernel=mega_kernel grid=(256,1,1) block=(256,1,1) lds={LDS_TOTAL}"


def gen_mega(A, name="mega_kernel", cfg=None):
    cfg = cfg or {}
    global KVFL, A_DELAY
    A_DELAY = cfg.get("a_delay", 3)
    KVFL = cfg.get("kvfl", "sc1")
    T = S_TMP
    G = V_G
    A.raw(kernel_header(name))
    A(f"s_load_dwordx16 {sr(4,16)}, s[0:1], 0")
    A(f"s_load_dwordx8 {sr(20,8)}, s[0:1], 64")
    A(f"s_load_dwordx2 {sr(P_WS,2)}, s[0:1], 96")
    A(f"s_load_dwordx2 {sr(P_WOA,2)}, s[0:1], 16")
    if cfg.get("diag"):
        for i in range(14):
            A(f"s_mov_b32 s{S_STAMP+i}, 0")
    stamp(A, cfg, 0)
    A("s_cmp_ge_u32 s2, 256")
    A("s_cbranch_scc1 LM_END")
    if cfg.get("warm0", 1):
        lw0 = A.newlabel("LW0")
        A(f"s_cmp_ge_u32 s2, {8*cfg.get('warm0', 1)}")
        A(f"s_cbranch_scc1 {lw0}")
        A(f"s_getpc_b64 {sr(SRD_WS,2)}")
        A(f"s_mov_b32 s{SRD_WS+2}, LP_START-{name}")
        A(f"s_mov_b32 s{SRD_WS+3}, 0x20000")
        A(f"v_lshlrev_b32 v{G+8}, {cfg.get('warm_sh', 7)}, v0")
        A(f"s_lshr_b32 s{T}, s2, 3")
        A(f"s_lshl_b32 s{T}, s{T}, {8 + cfg.get('warm_sh', 7)}")
        A(f"buffer_load_dword v{G+9}, v{G+8}, {sr(SRD_WS,4)}, s{T} offen")
        A.label(lw0)
    A(f"v_lshrrev_b32 v{G}, 6, v0")
    A("v_and_b32 v0, 63, v0")
    A(f"v_readfirstlane_b32 s{S_WAVE}, v{G}")
    A(f"v_lshlrev_b32 v{V_LANE16}, 4, v0")
    A(f"s_and_b32 s{T}, s2, 7")
    A(f"s_bfe_u32 s{T+1}, s2, 0x10005")
    A(f"s_lshl_b32 s{T+1}, s{T+1}, 3")
    A(f"s_add_u32 s{T}, s{T}, s{T+1}")
    A(f"s_lshr_b32 s{T+1}, s2, 7")
    A(f"s_lshl_b32 s{T+1}, s{T+1}, 4")
    A(f"s_add_u32 s{T}, s{T}, s{T+1}")
    A(f"s_bfe_u32 s{S_GRP}, s2, 0x10006")
    A(f"s_bfe_u32 s{T+1}, s2, 0x20003")
    A(f"s_lshl_b32 s{T+2}, s{S_GRP}, 2")
    A(f"s_add_u32 s{T+1}, s{T+1}, s{T+2}")
    A(f"s_lshr_b32 s{T+2}, s{S_WAVE}, 1")
    A(f"s_and_b32 s{T+3}, s{S_WAVE}, 1")
    A(f"s_and_b32 s{S_GHEAD}, s{T}, 15")
    A(f"s_lshr_b32 s{S_TYPE}, s{T}, 4")
    A(f"s_lshl_b32 s{T+5}, s{T+2}, 4")
    A(f"s_add_u32 s{T+5}, s{T+5}, s{T+3}")
    A(f"s_lshl_b32 s{S_XWAVE}, s{T+5}, 10")
    A(f"s_add_u32 s{S_XWAVE}, s{S_XWAVE}, {LDS_X0}")
    A(f"s_mov_b32 s{S_XWR}, s{S_XWAVE}")
    A(f"s_lshl_b32 s{T+5}, s{T+5}, 3")
    A(f"s_lshl_b32 s{T+6}, s{T+1}, 8")
    A(f"s_add_u32 s{T+6}, s{T+6}, s{T+5}")
    A(f"s_lshl_b32 s{S_XOFF}, s{T+6}, 11")
    A(f"s_mov_b32 s{S_XSTA}, {16*2048}")
    A(f"s_mov_b32 s{S_XSTB}, {16*2048}")
    A(f"s_mov_b32 s{S_XWRAP}, {(128-112*2048) & 0xffffffff}")
    A(f"s_lshl_b32 s{T+7}, s{T+2}, 2")
    A(f"s_add_u32 s{T+7}, s{T+7}, s{T+3}")
    A(f"s_lshl_b32 s{S_WWR}, s{T+7}, 10")
    A(f"s_lshl_b32 s{S_WOFF}, s{T+7}, 14")
    A(f"s_lshl_b32 s{T+6}, s{S_GHEAD}, 9")
    A(f"s_add_u32 s{S_WOFF}, s{S_WOFF}, s{T+6}")
    A(f"v_lshrrev_b32 v{G}, 4, v0")
    A(f"s_lshl_b32 s{T+6}, s{T+3}, 2")
    A(f"v_add_u32 v{G+6}, s{T+6}, v{G}")
    A(f"v_and_b32 v{G+1}, 7, v0")
    A(f"v_xor_b32 v{G}, v{G+6}, v{G+1}")
    A(f"v_lshlrev_b32 v{G}, 4, v{G}")
    A(f"v_lshrrev_b32 v{G+1}, 3, v0")
    A(f"v_lshl_add_u32 v{V_DX}, v{G+1}, 11, v{G}")
    A(f"v_mul_u32_u24 v{G+2}, 896, v{G+1}")
    A(f"v_add_u32 v{V_DX2}, v{G+2}, v{G}")
    A(f"v_lshrrev_b32 v{G}, 5, v0")
    A(f"s_lshl_b32 s{T+6}, s{T+3}, 1")
    A(f"s_lshl_b32 s{T+5}, s{T+2}, 2")
    A(f"s_add_u32 s{T+6}, s{T+6}, s{T+5}")
    A(f"v_add_u32 v{G+1}, s{T+6}, v{G}")
    A(f"v_bfe_u32 v{G+2}, v0, 1, 4")
    A(f"v_xor_b32 v{G+2}, v{G+2}, v{G+1}")
    A(f"v_and_b32 v{G+3}, 1, v0")
    A(f"v_lshl_add_u32 v{G+2}, v{G+2}, 1, v{G+3}")
    A(f"v_lshlrev_b32 v{G+3}, 4, v{G+2}")
    A(f"v_lshl_add_u32 v{V_DW}, v{G}, 13, v{G+3}")
    A("s_waitcnt lgkmcnt(0)")
    set_srd(A, SRD_A, P_CKV, 2048 * 1024 * 2)
    A(f"s_cmp_eq_u32 s{S_TYPE}, 0")
    A(f"s_cselect_b32 s{SRD_B}, s{P_WUK}, s{P_WUV}")
    A(f"s_cselect_b32 s{SRD_B+1}, s{P_WUK+1}, s{P_WUV+1}")
    A(f"s_mov_b32 s{SRD_B+2}, {1024*4096*2}")
    A(f"s_mov_b32 s{SRD_B+3}, 0x20000")
    emit_chain(A, dma_x())
    emit_chain(A, dma_w())
    A(f"s_and_b32 s{S_HEAD}, s2, 15")
    A(f"s_lshr_b32 s{T}, s2, 4")
    A(f"s_sub_u32 s{S_QB}, 15, s{T}")
    A(f"s_lshl_b32 s{T+4}, s{S_QB}, 7")
    A(f"s_lshl_b32 s{T+5}, s{S_HEAD}, 3")
    A(f"s_add_u32 s{T+4}, s{T+4}, s{T+5}")
    A(f"s_lshl_b32 s{T+5}, s{S_WAVE}, 1")
    A(f"s_add_u32 s{S_PHASE}, s{T+4}, s{T+5}")
    A(f"s_mul_i32 s{T+4}, s{S_PHASE}, 896")
    A(f"v_and_b32 v{V_CV}, 31, v0")
    A(f"v_lshlrev_b32 v{V_CV+1}, 5, v{V_CV}")
    A(f"v_mov_b32 v{V_CV+3}, 0x40000000")
    A(f"v_cmp_gt_u32 vcc, 28, v{V_CV}")
    A(f"v_lshrrev_b32 v{V_CV+2}, 5, v0")
    A("s_nop 0")
    A(f"v_cndmask_b32 v{V_CV+1}, v{V_CV+3}, v{V_CV+1}, vcc")
    A(f"v_mul_u32_u24 v{V_CV+2}, 896, v{V_CV+2}")
    A(f"v_add_u32 v{V_CV+2}, v{V_CV+2}, v{V_CV+1}")
    set_srd(A, SRD_WS, P_X, 2048 * 448 * 2)
    set_srd(A, SRD_DBG, P_GATE, 448 * 2)
    A(f"buffer_load_dwordx4 {vr(192,4)}, v{V_CV+2}, {sr(SRD_WS,4)}, s{T+4} offen")
    A(f"buffer_load_dwordx4 {vr(196,4)}, v{V_CV+2}, {sr(SRD_WS,4)}, s{T+4} offen offset:16")
    A(f"buffer_load_dwordx4 {vr(200,4)}, v{V_CV+1}, {sr(SRD_DBG,4)}, 0 offen")
    A(f"buffer_load_dwordx4 {vr(204,4)}, v{V_CV+1}, {sr(SRD_DBG,4)}, 0 offen offset:16")
    emit_chain(A, dma_x())
    emit_chain(A, dma_w())
    set_srd(A, SRD_WS, P_WS, WS_SIZE)
    set_srd(A, SRD_DBG, P_DBG, 256)
    set_srd(A, SRD_E, P_WS, WS_SIZE)
    A(f"s_cmp_eq_u32 s{S_GRP}, 0")
    A(f"s_cselect_b32 s{SRD_E+2}, s{SRD_E+2}, 0")
    li = A.newlabel("LM")
    A(f"v_lshlrev_b32 v{V_SIG+1}, 2, v0")
    A(f"v_mov_b32 v{V_SIG}, 0")
    A(f"s_cmp_lg_u32 s{S_WAVE}, 0")
    A(f"s_cbranch_scc1 {li}")
    A(f"s_lshl_b32 s{T+6}, s2, 6")
    A(f"s_add_u32 s{T+6}, s{T+6}, {WS_F}")
    A("s_mov_b64 exec, 0xffff")
    A(f"buffer_store_dword v{V_SIG}, v{V_SIG+1}, {sr(SRD_WS,4)}, s{T+6} offen sc1")
    A("s_mov_b64 exec, -1")
    A.label(li)
    A(f"s_lshl_b32 s{S_OB}, s{S_GHEAD}, 20")
    A(f"s_lshl_b32 s{T+6}, s{T+1}, 17")
    A(f"s_add_u32 s{S_OB}, s{S_OB}, s{T+6}")
    A(f"s_lshl_b32 s{T+6}, s{T+2}, 16")
    A(f"s_add_u32 s{S_OB}, s{S_OB}, s{T+6}")
    A(f"s_add_u32 s{T+6}, s{S_TYPE}, 12")
    A(f"s_lshl_b32 s{T+6}, s{T+3}, s{T+6}")
    A(f"s_add_u32 s{S_OB}, s{S_OB}, s{T+6}")
    A(f"s_lshl_b32 s{T+6}, s{S_TYPE}, 24")
    A(f"s_add_u32 s{S_OB}, s{S_OB}, s{T+6}")
    A(f"s_mov_b32 s{T+6}, 8192")
    A(f"s_cmp_eq_u32 s{S_TYPE}, 0")
    A(f"s_cselect_b32 s{S_OSTA}, s{T+6}, 4096")
    A(f"s_cselect_b32 s{S_OSTB}, s{T+6}, 12288")
    A(f"s_lshl_b32 s{S_GHEAD}, s{S_GHEAD}, 8")
    A(f"s_lshl_b32 s{T+6}, s{S_GRP}, 12")
    A(f"s_add_u32 s{S_GHEAD}, s{S_GHEAD}, s{T+6}")
    A(f"s_lshl_b32 s{T+6}, s{S_TYPE}, 4")
    A(f"s_add_u32 s{S_GHEAD}, s{S_GHEAD}, s{T+6}")
    A(f"s_and_b32 s{T+6}, s{T+1}, 3")
    A(f"s_lshl_b32 s{T+6}, s{T+6}, 2")
    A(f"s_add_u32 s{S_GHEAD}, s{S_GHEAD}, s{T+6}")
    A(f"s_add_u32 s{S_GHEAD}, s{S_GHEAD}, {F_KV}")
    A(f"s_and_b32 s{S_HEAD}, s2, 15")
    A(f"s_lshr_b32 s{T}, s2, 4")
    A(f"s_sub_u32 s{S_QB}, 15, s{T}")
    A(f"s_lshl_b32 s{S_WOFF2}, s{T+7}, 14")
    A(f"s_lshl_b32 s{T+6}, s{S_HEAD}, 9")
    A(f"s_add_u32 s{S_WOFF2}, s{S_WOFF2}, s{T+6}")
    A(f"s_lshl_b32 s{T+5}, s{S_QB}, 7")
    A(f"s_lshl_b32 s{T+6}, s{T+3}, 3")
    A(f"s_add_u32 s{T+5}, s{T+5}, s{T+6}")
    A(f"s_mul_i32 s{T+5}, s{T+5}, 896")
    A(f"s_mul_i32 s{T+6}, s{T+3}, {8*2688}")
    A(f"s_mul_i32 s{T+4}, s{S_HEAD}, 56")
    A(f"s_add_u32 s{T+6}, s{T+6}, s{T+4}")
    A(f"s_cmp_eq_u32 s{T+2}, 0")
    A(f"s_cselect_b32 s{S_XOFF2}, s{T+5}, s{T+6}")
    A(f"s_cselect_b32 s{S_X2LO}, s{P_X}, s{P_WQKV}")
    A(f"s_cselect_b32 s{S_X2HI}, s{P_X+1}, s{P_WQKV+1}")
    A(f"s_mov_b32 s{T+5}, {2048*448*2}")
    A(f"s_cselect_b32 s{S_X2N}, s{T+5}, {448*1344*2}")
    A(f"s_mov_b32 s{T+5}, {16*896}")
    A(f"s_cselect_b32 s{S_XSTA2}, s{T+5}, {4*2688}")
    A(f"s_cselect_b32 s{S_XSTB2}, s{T+5}, {12*2688}")
    A(f"s_mov_b32 s{T+5}, {(128-112*896) & 0xffffffff}")
    A(f"s_cselect_b32 s{S_XWRAP2}, s{T+5}, {12*2688}")
    lskip = A.newlabel("LM")
    A(f"s_cbranch_scc1 {lskip}")
    A(f"v_bfe_u32 v{G}, v0, 1, 3")
    A(f"v_xor_b32 v{G}, v{G}, v{G+6}")
    A(f"v_and_b32 v{G+1}, 1, v0")
    A(f"v_lshl_add_u32 v{G}, v{G}, 1, v{G+1}")
    A(f"v_lshrrev_b32 v{G+1}, 2, v{G}")
    A(f"v_and_b32 v{G}, 3, v{G}")
    A(f"v_lshlrev_b32 v{G}, 4, v{G}")
    A(f"v_mul_u32_u24 v{G+2}, 896, v{G+1}")
    A(f"v_add_u32 v{G}, v{G}, v{G+2}")
    A(f"v_lshrrev_b32 v{G+2}, 4, v0")
    A(f"v_mul_u32_u24 v{G+2}, 2688, v{G+2}")
    A(f"v_add_u32 v{G}, v{G}, v{G+2}")
    A(f"v_mov_b32 v{G+2}, 0x40000000")
    A(f"v_cmp_gt_u32 vcc, 3, v{G+1}")
    A("s_nop 1")
    A(f"v_cndmask_b32 v{V_DX2}, v{G+2}, v{G}, vcc")
    A.label(lskip)
    A(f"s_lshl_b32 s{S_OBQK}, s{S_HEAD}, 17")
    A(f"s_lshl_b32 s{T+5}, s{S_QB}, 13")
    A(f"s_add_u32 s{S_OBQK}, s{S_OBQK}, s{T+5}")
    A(f"s_lshl_b32 s{T+5}, s{T+2}, 12")
    A(f"s_add_u32 s{S_OBQK}, s{S_OBQK}, s{T+5}")
    A(f"s_lshl_b32 s{T+5}, s{T+3}, 8")
    A(f"s_add_u32 s{S_OBV}, s{S_OBQK}, s{T+5}")
    A(f"s_add_u32 s{S_OBV}, s{S_OBV}, {WS_VA}")
    A(f"s_lshl_b32 s{T+5}, s{T+3}, 21")
    A(f"s_add_u32 s{S_OBQK}, s{S_OBQK}, s{T+5}")
    A(f"s_add_u32 s{S_OBQK}, s{S_OBQK}, {WS_QA}")
    A(f"s_cmp_eq_u32 s{T+3}, 0")
    A(f"s_cselect_b32 s{S_SCA}, {f32bits(SCALE_A):#x}, 1.0")
    A(f"v_and_b32 v{G}, 15, v0")
    A(f"v_lshrrev_b32 v{G+1}, 4, v0")
    A(f"v_lshrrev_b32 v{G+2}, 1, v{G}")
    A(f"v_xor_b32 v{G+2}, v{G+2}, v{G+1}")
    A(f"v_lshlrev_b32 v{G+2}, 4, v{G+2}")
    A(f"v_lshl_add_u32 v{G+2}, v{G}, 7, v{G+2}")
    A(f"s_lshl_b32 s{T+5}, s{T+2}, 14")
    A(f"v_add_u32 v{V_XL0}, s{T+5}, v{G+2}")
    A(f"v_xor_b32 v{V_XL1}, 64, v{V_XL0}")
    A(f"s_lshl_b32 s{T+5}, s{T+2}, 13")
    A(f"v_add_u32 v{V_PXL}, s{T+5}, v{G+2}")
    A(f"v_xor_b32 v{V_PXL+1}, 64, v{V_PXL}")
    A(f"v_add_u32 v{V_XR0}, {LDS_X0}, v{V_XL0}")
    A(f"v_add_u32 v{V_XR1}, {LDS_X0}, v{V_XL1}")
    A(f"s_mov_b32 s{S_XRD}, {LDS_X0+32768}")
    A(f"v_bfe_u32 v{G+2}, v0, 2, 2")
    A(f"v_lshl_add_u32 v{G+3}, v{G+1}, 3, v{G+2}")
    A(f"v_lshlrev_b32 v{G+3}, 9, v{G+3}")
    A(f"v_bfe_u32 v{G+4}, v0, 2, 3")
    A(f"v_lshl_add_u32 v{G+3}, v{G+4}, 5, v{G+3}")
    A(f"v_and_b32 v{G+5}, 3, v0")
    A(f"v_lshl_add_u32 v{G+3}, v{G+5}, 3, v{G+3}")
    A(f"s_lshl_b32 s{T+5}, s{T+3}, 8")
    A(f"v_add_u32 v{V_WR}, s{T+5}, v{G+3}")
    for b in range(1, 8):
        A(f"v_xor_b32 v{V_WR+b}, {b*32}, v{V_WR}")
    A(f"v_lshrrev_b32 v{G+3}, 5, v0")
    A(f"v_lshl_add_u32 v{G+3}, v{G+3}, 4, v{G+4}")
    A(f"v_lshlrev_b32 v{G+3}, 8, v{G+3}")
    A(f"v_lshl_add_u32 v{G+3}, v{G+4}, 5, v{G+3}")
    A(f"v_lshl_add_u32 v{G+3}, v{G+5}, 3, v{G+3}")
    A(f"v_add_u32 v{G+3}, 16384, v{G+3}")
    A(f"s_lshl_b32 s{T+5}, s{T+3}, 6")
    A(f"v_xor_b32 v{V_PWL}, s{T+5}, v{G+3}")
    A(f"v_xor_b32 v{V_PWL+1}, 32, v{V_PWL}")
    A(f"s_lshl_b32 s{T+5}, s{T+3}, 5")
    A(f"s_add_u32 s{T+5}, s{T+5}, 128")
    A(f"v_xor_b32 v{V_PWL+2}, s{T+5}, v{G+3}")
    A(f"v_lshlrev_b32 v{G+2}, 9, v{G+1}")
    A(f"v_bfe_u32 v{G+3}, v0, 3, 1")
    A(f"v_lshl_add_u32 v{G+4}, v{G+3}, 8, v{G+2}")
    A(f"v_and_b32 v{G+3}, 7, v0")
    A(f"v_lshl_add_u32 v{V_OA}, v{G+3}, 4, v{G+4}")
    A(f"v_lshl_add_u32 v{V_OAV}, v{G}, 4, v{G+2}")
    A(f"v_mov_b32 v{V_SCHI}, s{S_SCA}")
    A(f"v_cmp_gt_u32 vcc, 3, v{G+1}")
    A("s_nop 1")
    A(f"v_cndmask_b32 v{V_SCHI}, 0, v{V_SCHI}, vcc")
    A(f"s_lshl_b32 s{T+5}, s{T+3}, 4")
    A(f"v_add_u32 v{G+2}, s{T+5}, v{G}")
    A(f"v_cmp_gt_u32 vcc, 28, v{G+2}")
    A("s_nop 1")
    A(f"v_cndmask_b32 v{V_MULHI}, 0, 1.0, vcc")
    A(f"v_cmp_eq_u32 vcc, 28, v{G+2}")
    A("s_nop 1")
    A(f"v_cndmask_b32 v{V_ADDHI}, 0, 1.0, vcc")
    A(f"s_lshl_b32 s{T+6}, s{T+2}, 15")
    A(f"s_lshl_b32 s{T+5}, s{T+3}, 12")
    A(f"s_add_u32 s{T+6}, s{T+6}, s{T+5}")
    A(f"s_add_u32 s{T+6}, s{T+6}, {XQ}")
    A(f"v_add_u32 v{V_XQW}, s{T+6}, v{V_LANE16}")
    A(f"s_lshl_b32 s{T+6}, s{S_WAVE}, 13")
    A(f"s_add_u32 s{T+6}, s{T+6}, {XQ}")
    A(f"v_add_u32 v{V_XQR}, s{T+6}, v{V_LANE16}")
    A("s_waitcnt vmcnt(16)")
    A(f"s_mov_b32 s{S_W12}, 0")
    A(f"s_lshl_b32 s{S_W4}, s{S_PHASE}, 2")
    A(f"s_add_u32 s{S_W4}, s{S_W4}, {WS_G}")
    A(f"s_mov_b32 s{S_LEFT}, 14")
    A(f"s_mov_b32 s{S_PHASE}, 0")
    A(f"s_mov_b32 s{SRD_WS+2}, 0")
    A(f"s_mov_b32 s{SRD_DBG+2}, 0")
    A(f"s_lshl_b32 s{S_TOFF}, s2, 2")
    A(f"s_add_u32 s{S_TOFF}, s{S_TOFF}, s{S_WAVE}")
    A(f"s_lshl_b32 s{S_TBOFF}, s{S_TOFF}, 13")
    A(f"s_mov_b64 {sr(S_TA,2)}, {sr(P_WQ,2)}")
    A(f"s_mov_b32 s{S_TASZ}, {448*4096*2}")
    A(f"s_mov_b32 s{S_TAOFF}, s{S_TBOFF}")
    for first_u, ptr, size in ((448, P_X, 2048*448*2), (672, P_WQKV, 448*1344*2), (819, P_WOA, 448*448*2)):
        A(f"s_sub_u32 s{T}, s{S_TBOFF}, {first_u*8192}")
        A(f"s_cmp_ge_u32 s{S_TOFF}, {first_u}")
        A(f"s_cselect_b64 {sr(S_TA,2)}, {sr(ptr,2)}, {sr(S_TA,2)}")
        A(f"s_cselect_b32 s{S_TASZ}, {size}, s{S_TASZ}")
        A(f"s_cselect_b32 s{S_TAOFF}, s{T}, s{S_TAOFF}")
    na = cfg.get("tna", 10)
    for n, dst, t0 in ((na, S_TAT, 2),):
        A(f"s_mul_i32 s{T}, s{S_TOFF}, {(65536 + n - 1)//n}")
        A(f"s_lshr_b32 s{T}, s{T}, 16")
        A(f"s_mul_i32 s{T}, s{T}, {n}")
        A(f"s_sub_u32 s{dst}, s{S_TOFF}, s{T}")
        A(f"s_add_u32 s{dst}, s{dst}, {t0}")
    A(f"s_lshr_b32 s{S_TOFF2}, s2, 3")
    A(f"s_lshl_b32 s{S_TOFF2}, s{S_TOFF2}, 2")
    A(f"s_add_u32 s{S_TOFF2}, s{S_TOFF2}, s{S_WAVE}")
    A(f"s_lshl_b32 s{S_TOFF2}, s{S_TOFF2}, {6 + cfg.get('tsh', 7)}")
    A(f"s_getpc_b64 {sr(S_PC,2)}")
    A.label("LM_PC")
    A(f"s_bfe_u32 s{S_CSTEP}, s2, 0x30004")
    A(f"s_add_u32 s{S_CSTEP}, s{S_CSTEP}, 2")
    A(f"s_cmp_eq_u32 s{S_WAVE}, 0")
    A(f"s_cselect_b32 s{S_CSTEP}, s{S_CSTEP}, 99")
    A(f"s_and_b32 s{T}, s2, 15")
    A(f"s_lshl_b32 s{T}, s{T}, 4")
    A(f"v_lshlrev_b32 v{V_CRT+1}, 12, v0")
    A(f"v_add_u32 v{V_CRT+1}, s{T}, v{V_CRT+1}")
    A(f"v_mov_b32 v{V_CRT}, 1")
    A(f"v_and_b32 v{V_SIG+1}, 15, v0")
    A(f"v_lshlrev_b32 v{V_SIG+1}, 4, v{V_SIG+1}")
    A(f"v_lshlrev_b32 v{V_TCH}, {cfg.get('tsh', 7)}, v0")
    if cfg.get("thalf"):
        A(f"v_lshlrev_b32 v{V_TCH}, 7, v0")
        A(f"v_mov_b32 v{V_TCH+1}, 0x40000000")
        A(f"v_cmp_gt_u32 vcc, 32, v0")
        A("s_nop 1")
        A(f"v_cndmask_b32 v{V_TCH}, v{V_TCH+1}, v{V_TCH}, vcc")
    A("s_barrier")
    A.emit_list(g_reads(0, 0))
    A("s_waitcnt lgkmcnt(0)")
    A(f"s_cmp_eq_u32 s{S_TYPE}, 1")
    A("s_cbranch_scc1 LG_VT")
    n_early = cfg.get("n_early", 16)
    for typ in ("KQ", "V"):
        if typ == "V":
            A.label("LG_VT")
        g_step(A, typ, True, cfg)
        A.label(f"LG_LOOP_{typ}")
        g_step(A, typ, False, cfg)
        A(f"s_cbranch_scc1 LG_LOOP_{typ}")
        A(f"s_cmp_eq_u32 s{S_PHASE}, 16")
        A(f"s_cbranch_scc1 LG_EPI_{typ}")
        A(f"s_mov_b32 s{S_LEFT}, 2")
        A(f"s_cmp_eq_u32 s{S_WAVE}, 0")
        A(f"s_cselect_b32 s{SRD_DBG+2}, 256, 0")
        A(f"buffer_load_dword v{V_SIG}, v{V_SIG+1}, {sr(SRD_DBG,4)}, 0 offen sc1")
        A(f"s_mov_b32 s{SRD_DBG+2}, 0")
        A(f"s_mov_b32 s{SRD_A}, s{S_X2LO}")
        A(f"s_mov_b32 s{SRD_A+1}, s{S_X2HI}")
        A(f"s_mov_b32 s{SRD_A+2}, s{S_X2N}")
        A(f"s_mov_b32 s{S_XOFF}, s{S_XOFF2}")
        A(f"s_mov_b32 s{S_XSTA}, s{S_XSTA2}")
        A(f"s_mov_b32 s{S_XSTB}, s{S_XSTB2}")
        A(f"s_mov_b32 s{S_XWRAP}, s{S_XWRAP2}")
        A(f"v_mov_b32 v{V_DX}, v{V_DX2}")
        A(f"s_mov_b32 s{SRD_B}, s{P_WQ}")
        A(f"s_mov_b32 s{SRD_B+1}, s{P_WQ+1}")
        A(f"s_mov_b32 s{SRD_B+2}, {448*4096*2}")
        A(f"s_mov_b32 s{S_WOFF}, s{S_WOFF2}")
        A(f"s_branch LG_LOOP_{typ}")
        A.label(f"LG_EPI_{typ}")
        stamp(A, cfg, 1)
        set_srd(A, SRD_WS, P_WS, WS_SIZE)
        A(f"s_mov_b32 s{SRD_DBG+2}, 256")
        lok, llp = A.newlabel("LM"), A.newlabel("LM")
        A(f"v_cmp_le_u32 vcc, 16, v{V_SIG}")
        A(f"s_cmp_lg_u32 s{S_WAVE}, 0")
        A(f"s_cbranch_scc1 {lok}")
        A(f"s_mov_b32 s{T+1}, {SPIN_MAX}")
        A.label(llp)
        A("s_nop 3")
        A("s_cmp_eq_u64 vcc, -1")
        A(f"s_cbranch_scc1 {lok}")
        A(f"s_sub_u32 s{T+1}, s{T+1}, 1")
        A(f"s_cmp_eq_u32 s{T+1}, 0")
        A(f"s_cbranch_scc1 {lok}")
        A("s_sleep 32")
        A(f"buffer_load_dword v{V_SIG}, v{V_SIG+1}, {sr(SRD_DBG,4)}, 0 offen sc1")
        A("s_waitcnt vmcnt(0)")
        A(f"v_cmp_le_u32 vcc, 16, v{V_SIG}")
        A(f"s_branch {llp}")
        A.label(lok)
        if cfg.get("gdiag"):
            A(f"s_lshl_b32 s{T}, s2, 2")
            A(f"s_add_u32 s{T}, s{T}, s{S_WAVE}")
            A(f"s_lshl_b32 s{T}, s{T}, 9")
            A(f"s_add_u32 s{T}, s{T}, {232 << 20}")
            A(f"v_lshrrev_b32 v242, 2, v{V_LANE16}")
            A(f"buffer_store_dword v240, v242, {sr(SRD_WS,4)}, s{T} offen")
            A(f"buffer_store_dword v241, v242, {sr(SRD_WS,4)}, s{T} offen offset:256")
        A(f"s_mov_b32 s{S_XOFF2}, s{S_OB}")
        A.emit_list(p_addr(16))
        A.emit_list(p_reads(0, 0))
        g_cvt(A, typ, n_early)
        if typ == "KQ":
            A("s_branch LP_START")
    A.label("LP_START")
    if cfg.get("stamp_lp"):
        stamp(A, cfg, 3)
    A("s_waitcnt lgkmcnt(0)")
    rem = list(range(n_early, 32))
    per = cfg.get("st_per", [4, 4, 4, 4])
    k = 0
    for T_ in range(16, 23):
        st = []
        for h in range(2):
            n = per[k] if k < len(per) else 0
            k += 1
            st.append(rem[:n])
            rem = rem[n:]
        p_step(A, T_, st[0], st[1], cfg)
    assert not rem, rem
    stamp(A, cfg, 2)
    b_setup_kv(A)
    def kv_first():
        for w, s_ in (("K", 0), ("V", 0), ("K", 1), ("V", 1), ("K", 2), ("V", 2)):
            emit_chain(A, kv_tile_chain(w, s_))
    A("s_waitcnt vmcnt(0)")
    poll_test(A)
    A(f"s_cselect_b32 s{S_EV}, 1, 0")
    A("s_cbranch_scc0 LP_NOTYET")
    kv_first()
    A.label("LP_NOTYET")
    A(f"s_cmp_eq_u32 s{S_GRP}, 0")
    A("s_cbranch_scc1 LP_NOLATE")
    A(f"s_mov_b32 s{S_OB}, s{S_XOFF2}")
    for c in range(32):
        for o_ in kv_store(c, SRD_WS):
            A(o_.text)
    A("s_nop 1")
    A.label("LP_NOLATE")
    p_epilogue_a(A)
    p_epilogue_q(A)
    b_setup_rest(A)
    A(f"s_cmp_eq_u32 s{S_EV}, 1")
    A("s_cbranch_scc1 LP_HAVE")
    poll_wait(A, True)
    kv_first()
    A.label("LP_HAVE")
    b_main(A, cfg)
    stamp_out(A, cfg, 7, 200 << 20, 2)
    A.label("LQ_NEXT")
    lp = A.newlabel("LQ")
    A(f"s_cmp_eq_u32 s{S_POPPED}, 1")
    A(f"s_cbranch_scc1 {lp}")
    pop_issue(A)
    A("s_waitcnt vmcnt(0)")
    A.label(lp)
    A(f"s_mov_b32 s{S_POPPED}, 0")
    lw = A.newlabel("LQ")
    A(f"s_cmp_lg_u32 s{S_WAVE}, 0")
    A(f"s_cbranch_scc1 {lw}")
    A(f"s_waitcnt vmcnt({0 if cfg.get('diag') else 14})")
    A(f"v_mov_b32 v{V_POLL+1}, {LDS_TOTAL-16}")
    A("s_mov_b64 exec, 1")
    A(f"ds_write_b32 v{V_POLL+1}, v{V_POP}")
    A("s_mov_b64 exec, -1")
    A.label(lw)
    A("s_waitcnt lgkmcnt(0)")
    A("s_barrier")
    A(f"v_mov_b32 v{V_POLL+1}, {LDS_TOTAL-16}")
    A(f"ds_read_b32 v{V_POLL}, v{V_POLL+1}")
    A(f"s_mov_b32 s{S_PFLAG}, s{S_RFLAG}")
    A(f"s_mov_b32 s{S_PMASK}, s{S_RMASK}")
    A("s_waitcnt lgkmcnt(0)")
    A(f"v_readfirstlane_b32 s{S_ITEM}, v{V_POLL}")
    A("s_nop 3")
    A(f"s_cmp_lt_u32 s{S_ITEM}, {a_counts(cfg)[3]}")
    A("s_cbranch_scc1 LQ_AITEM")
    ls = A.newlabel("LQ")
    A(f"s_cmp_eq_u32 s{S_PFLAG}, 0")
    A(f"s_cbranch_scc1 {ls}")
    A("s_waitcnt vmcnt(0)")
    A.label(ls)
    A("s_barrier")
    ls = A.newlabel("LQ")
    A(f"s_cmp_eq_u32 s{S_PFLAG}, 0")
    A(f"s_cbranch_scc1 {ls}")
    signal(A, S_PFLAG, mask_sgpr=S_PMASK)
    A.label(ls)
    NA = a_counts(cfg)[3]
    A(f"s_cmp_ge_u32 s{S_ITEM}, {NA + 56 // cfg.get('rc', 1)}")
    A("s_cbranch_scc1 LM_FIN")
    A("s_branch LQ_RED")
    A.label("LQ_AITEM")
    a_item(A, cfg)
    if cfg.get("diag"):
        A(f"s_and_b32 s{T+2}, s2, 7")
        A(f"s_lshl_b32 s{T+3}, s{S_ITEM}, 3")
        A(f"s_add_u32 s{T+2}, s{T+2}, s{T+3}")
        stamp_out(A, cfg, 5, 210 << 20, T + 2)
    A("s_branch LQ_NEXT")
    A.label("LQ_RED")
    A(f"s_mov_b32 s{S_RFLAG}, 0")
    r_item(A, cfg)
    if cfg.get("diag"):
        A(f"s_and_b32 s{T+2}, s2, 7")
        A(f"s_sub_u32 s{T+3}, s{S_ITEM}, {NA}")
        A(f"s_lshl_b32 s{T+3}, s{T+3}, 3")
        A(f"s_add_u32 s{T+2}, s{T+2}, s{T+3}")
        stamp_out(A, cfg, 3, 220 << 20, T + 2)
    A("s_branch LQ_NEXT")
    flush_ool(A)
    b_rare(A, 0)
    b_rare(A, 1)
    a_rare(A, 0)
    a_rare(A, 1)
    A.label("LM_FIN")
    stamp_out(A, cfg, 1, 230 << 20, 2)
    A.label("LM_END")
    A("s_endpgm")
    return kernel_desc(name, 512, 102, 256)
```

```python
import math
from asmlib import *

WS_K = 0
WS_V = 16 << 20
WS_QA = 48 << 20
WS_KA = 50 << 20
WS_VA = 52 << 20
WS_P = 64 << 20
WS_SIZE = 256 << 20
P_SLOT = 128 * 14 * 1024
LOG2E = math.log2(math.e)
SCALE_B = LOG2E / 16.0
SCALE_A = LOG2E / math.sqrt(28.0)
LDS_TOTAL = 163840
LDS_X0 = 65536
BIAS = 32.0
NEG_INF = 0xff800000
HUGE = WS_SIZE
SPIN_MAX = 1 << 16

C_QUEUE = 1
WS_F = 240 << 20
F_KV, F_AQ, F_ROW = WS_F, WS_F + 8192, WS_F + 12288
WS_G = 241 << 20

P_X, P_WQKV, P_WOA, P_CKV, P_WQ, P_WUK, P_WUV = 4, 6, 30, 12, 14, 16, 18
P_WOB, P_GATE, P_OUT, P_DBG, P_WS = 20, 22, 24, 26, 28
SRD_A, SRD_B, SRD_WS, SRD_DBG = 32, 36, 40, 44
S_WAVE, S_TYPE, S_HEAD, S_QB = 48, 49, 50, 51
S_XOFF, S_WOFF, S_XSTA, S_XSTB, S_XWRAP, S_W4, S_W12 = 52, 53, 54, 55, 56, 57, 58
S_XRD, S_XWR, S_WWR, S_XWAVE, S_LEFT, S_PHASE = 59, 60, 61, 62, 63, 64
S_OB, S_OSTA, S_OSTB = 65, 66, 67
S_XOFF2, S_WOFF2, S_XSTA2, S_XSTB2, S_XWRAP2, S_X2LO, S_X2HI, S_X2N = 68, 69, 70, 71, 72, 73, 74, 75
S_OBQK, S_OBV, S_SCA, S_GHEAD = 76, 77, 78, 79
S_N, S_T2, S_TW, S_KOFF, S_VOFF, S_KLIM, S_VLIM, S_B0 = 52, 53, 54, 55, 56, 57, 58, 59
S_RET = 60
S_FLOOR, S_FIRST = 62, 64
S_WOOFF, S_POFF, S_MASK, S_HUGE, S_WOW = 65, 66, 67, 68, 69
S_SC = 70
S_BL1 = 67
S_POFF1 = 71
S_ITEM = 72
S_SPIN = 73
S_EV = 74
S_PADDR = 75
S_RMASK = 77
S_AQOK = 79
S_PFLAG, S_PMASK = 12, 13
S_POPPED = 49
S_KAP = 78
S_RFLAG = 76
S_TMP = 80
S_STAMP = 88
SRD_E = 8
S_TOFF = 87
S_PC = 84
S_TOFF2 = 86
S_TA, S_TASZ, S_TAOFF, S_TAT, S_TBOFF, S_TBT = 12, 16, 17, 18, 19, 22
S_CSTEP = 83
V_CRT = 42
V_TCH = 40
S_GRP = 3

V_LANE16 = 1
V_XL0, V_XL1, V_XR0, V_XR1 = 2, 3, 4, 5
V_WR = 6
V_DX, V_DW, V_DX2 = 14, 15, 16
V_OA, V_OAV, V_SCHI, V_MULHI, V_ADDHI = 17, 18, 19, 20, 21
V_PXL = 22
V_PWL = 24
V_PWR = 27
V_XQW, V_XQR = 30, 31
V_G = 32
V_CV = 48
FX = [64, 128]
FW = [96, 160]
V_PK = 128
V_DKV = 2
V_RB1, V_RB0 = 3, 4
V_CB = 6
V_L = 8
V_DM = 10
V_LT = 14
V_T = 16
V_WOD = 32
V_WOR = 40
V_POLL = 44
V_SIG = 46
V_POP = 5
VP = [48, 56]
VS = [64, 80]
VC = 96
VE = 112
VO = 128
AQ, AK, AV = 0, 64, 128
XQ = 98304

OOL = []


def flush_ool(A):
    for b in OOL:
        A.emit_list(b)
    OOL.clear()


def emit_chain(A, c):
    prev = ""
    for o in c:
        if o.kind == "M" and prev.split(",")[0].endswith(" m0"):
            A("s_nop 0")
        A(o.text)
        prev = o.text


def emit_left(A, left):
    for l in left:
        A(l)
        if l.split(",")[0].endswith(" m0") or l.startswith("v_exp"):
            A("s_nop 0")


def spread(n_items, start, end):
    if n_items == 1:
        return [start]
    return [start + (i * (end - start)) // (n_items - 1) for i in range(n_items)]


def set_srd(A, srd, ptr, size):
    A(f"s_mov_b32 s{srd}, s{ptr}")
    A(f"s_mov_b32 s{srd+1}, s{ptr+1}")
    A(f"s_mov_b32 s{srd+2}, {size}")
    A(f"s_mov_b32 s{srd+3}, 0x20000")


def stamp(A, cfg, i):
    if cfg.get("diag"):
        A(f"s_memrealtime {sr(S_STAMP+2*i,2)}")


def stamp_out(A, cfg, n, wsoff, idx_sgpr):
    if cfg.get("diag"):
        A("s_waitcnt vmcnt(0) lgkmcnt(0)")
        A(f"s_memrealtime {sr(S_STAMP+2*(n-1),2)}")
        A("s_waitcnt lgkmcnt(0)")
        A(f"s_lshl_b32 s{S_TMP}, s{idx_sgpr}, 8")
        A(f"s_lshl_b32 s{S_TMP+1}, s{S_WAVE}, 6")
        A(f"s_add_u32 s{S_TMP}, s{S_TMP}, s{S_TMP+1}")
        A(f"s_add_u32 s{S_TMP}, s{S_TMP}, {wsoff}")
        A(f"v_mov_b32 v{V_T+1}, 0")
        for i in range(n):
            A(f"v_mov_b32 v{V_T}, s{S_STAMP+2*i}")
            A(f"buffer_store_dword v{V_T}, v{V_T+1}, {sr(SRD_WS,4)}, s{S_TMP} offen offset:{4*i}")
            A("s_nop 1")


def signal(A, off_sgpr, grp=None, mask_sgpr=None):
    l = A.newlabel("LSG")
    A(f"s_cmp_lg_u32 s{S_WAVE}, 0")
    A(f"s_cbranch_scc1 {l}")
    if grp is not None:
        A(f"s_cmp_lg_u32 s{S_GRP}, {grp}")
        A(f"s_cbranch_scc1 {l}")
    A(f"v_mov_b32 v{V_SIG}, 1")
    A(f"v_lshlrev_b32 v{V_SIG+1}, 5, v0")
    A("s_mov_b64 exec, 1")
    if mask_sgpr is not None:
        A(f"s_mov_b32 exec_lo, s{mask_sgpr}")
    A(f"buffer_store_dword v{V_SIG}, v{V_SIG+1}, {sr(SRD_WS,4)}, s{off_sgpr} offen sc1")
    A("s_mov_b64 exec, -1")
    A.label(l)


def pop_issue(A):
    l = A.newlabel("LPO")
    A(f"s_mov_b32 s{S_POPPED}, 1")
    A(f"s_cmp_lg_u32 s{S_WAVE}, 0")
    A(f"s_cbranch_scc1 {l}")
    A(f"s_and_b32 s{S_TMP+7}, s2, 7")
    A(f"s_lshl_b32 s{S_TMP+7}, s{S_TMP+7}, 5")
    A(f"v_mov_b32 v{V_POP}, 1")
    A(f"v_mov_b32 v{V_SIG+1}, 0")
    A("s_mov_b64 exec, 1")
    A(f"buffer_atomic_add v{V_POP}, v{V_SIG+1}, {sr(SRD_DBG,4)}, s{S_TMP+7} offen offset:{C_QUEUE*4} sc0")
    A("s_mov_b64 exec, -1")
    A.label(l)


def poll_issue(A, idx_sgpr, base, nwords):
    A(f"s_lshl_b32 s{S_PADDR}, s{idx_sgpr}, 8")
    A(f"s_add_u32 s{S_PADDR}, s{S_PADDR}, {base}")
    A(f"v_min_u32 v{V_POLL+1}, {nwords-1}, v0")
    A(f"v_lshlrev_b32 v{V_POLL+1}, 2, v{V_POLL+1}")
    A(f"buffer_load_dword v{V_POLL}, v{V_POLL+1}, {sr(SRD_WS,4)}, s{S_PADDR} offen sc1")


def poll_test(A):
    A(f"v_cmp_eq_u32 vcc, 1, v{V_POLL}")
    A("s_nop 3")
    A("s_cmp_eq_u64 vcc, -1")


def poll_wait(A, reissue_first=False):
    lok, lloop = A.newlabel("LPK"), A.newlabel("LPL")
    A(f"s_mov_b32 s{S_SPIN}, {SPIN_MAX}")
    if reissue_first:
        A(f"buffer_load_dword v{V_POLL}, v{V_POLL+1}, {sr(SRD_WS,4)}, s{S_PADDR} offen sc1")
    A.label(lloop)
    A("s_waitcnt vmcnt(0)")
    poll_test(A)
    A(f"s_cbranch_scc1 {lok}")
    A(f"s_sub_u32 s{S_SPIN}, s{S_SPIN}, 1")
    A(f"s_cmp_eq_u32 s{S_SPIN}, 0")
    A(f"s_cbranch_scc1 {lok}")
    A("s_sleep 8")
    A(f"buffer_load_dword v{V_POLL}, v{V_POLL+1}, {sr(SRD_WS,4)}, s{S_PADDR} offen sc1")
    A(f"s_branch {lloop}")
    A.label(lok)


def acc(nb, tb):
    return (nb * 8 + tb) * 4


def g_mfmas(typ, s, first):
    out = []
    for nb in range(8):
        for tb in range(8):
            a = acc(nb, tb)
            w, x = vr(FW[s] + 4 * nb, 4), vr(FX[s] + 4 * tb, 4)
            c = "0" if first else ar(a, 4)
            out.append(f"v_mfma_f32_16x16x32_bf16 {ar(a,4)}, {w}, {x}, {c}" if typ == "KQ"
                       else f"v_mfma_f32_16x16x32_bf16 {ar(a,4)}, {x}, {w}, {c}")
    return out


def g_reads(s, hh):
    vx = V_XR0 if hh == 0 else V_XR1
    out = [f"ds_read_b128 {vr(FX[s]+4*i,4)}, v{vx} offset:{i*2048}" for i in range(8)]
    for i in range(8):
        out.append(f"ds_read_b64_tr_b16 {vr(FW[s]+4*i,2)}, v{V_WR+i} offset:{hh*16384}")
        out.append(f"ds_read_b64_tr_b16 {vr(FW[s]+4*i+2,2)}, v{V_WR+i} offset:{hh*16384+2048}")
    return out


def dma_x():
    c = [Op(f"s_mov_b32 m0, s{S_XWR}", "S")]
    for i in range(8):
        c.append(Op(f"buffer_load_dwordx4 v{V_DX}, {sr(SRD_A,4)}, s{S_XOFF} offen lds", "M"))
        if i < 7:
            c.append(Op("s_add_u32 m0, m0, 2048", "S"))
            c.append(Op(f"s_add_u32 s{S_XOFF}, s{S_XOFF}, s{S_XSTA if i % 2 == 0 else S_XSTB}", "S"))
        else:
            c.append(Op(f"s_add_u32 s{S_XOFF}, s{S_XOFF}, s{S_XWRAP}", "S"))
            c.append(Op(f"s_add_u32 s{S_XWR}, s{S_XWR}, 32768", "S"))
            c.append(Op(f"s_cmp_ge_u32 s{S_XWR}, {LDS_TOTAL}", "S"))
            c.append(Op(f"s_cselect_b32 s{S_XWR}, s{S_XWAVE}, s{S_XWR}", "S"))
    return c


def dma_w():
    c = [Op(f"s_mov_b32 m0, s{S_WWR}", "S")]
    for i in range(8):
        c.append(Op(f"buffer_load_dwordx4 v{V_DW}, {sr(SRD_B,4)}, s{S_WOFF} offen lds", "M"))
        if i % 2 == 0:
            c.append(Op("s_add_u32 m0, m0, 2048", "S"))
            c.append(Op(f"s_add_u32 s{S_WOFF}, s{S_WOFF}, {4*8192}", "S"))
        else:
            if i < 7:
                c.append(Op("s_add_u32 m0, m0, 6144", "S"))
            c.append(Op(f"s_add_u32 s{S_WOFF}, s{S_WOFF}, {12*8192}", "S"))
        if i == 7:
            c.append(Op(f"s_xor_b32 s{S_WWR}, s{S_WWR}, 32768", "S"))
    return c


HT = "DFDMDFDF" * 6 + "FMFFFFFM" + "FFFFFFFX"


def gate_ops():
    c = V_CV
    par, prevs = [], []
    acc_prev = Op(f"v_mov_b32 v{c+8}, 0", "V")
    par.append(acc_prev)
    for i in range(8):
        x, g = 192 + i, 200 + i
        t = 208 + 4 * i
        a = Op(f"v_lshlrev_b32 v{t}, 16, v{x}", "V")
        b = Op(f"v_and_b32 v{t+1}, 0xffff0000, v{x}", "V")
        d = Op(f"v_lshlrev_b32 v{t+2}, 16, v{g}", "V")
        e = Op(f"v_and_b32 v{t+3}, 0xffff0000, v{g}", "V")
        m0 = Op(f"v_mul_f32 v{t}, v{t}, v{t+2}", "V", [a, d])
        m1 = Op(f"v_mul_f32 v{t+1}, v{t+1}, v{t+3}", "V", [b, e])
        cv = Op(f"v_cvt_pk_bf16_f32 v{t}, v{t}, v{t+1}", "V", [m0, m1])
        lo = Op(f"v_lshlrev_b32 v{t+1}, 16, v{t}", "V", [cv])
        hi = Op(f"v_and_b32 v{t+2}, 0xffff0000, v{t}", "V", [cv])
        s0 = Op(f"v_add_f32 v{c+8}, v{c+8}, v{t+1}", "V", [lo, acc_prev])
        s1 = Op(f"v_add_f32 v{c+8}, v{c+8}, v{t+2}", "V", [hi, s0])
        acc_prev = s1
        par += [a, b, d, e, m0, m1, cv, lo, hi, s0, s1]
    v, w = c + 8, c + 9
    tail = []
    for r in (8, 4, 2, 1):
        tail += ["s_nop 0", f"v_add_f32_dpp v{v}, v{v}, v{v} row_ror:{r} row_mask:0xf bank_mask:0xf"]
    tail += [f"v_mov_b32 v{w}, v{v}", "s_nop 0", f"v_permlane16_swap_b32 v{w}, v{v}", "s_nop 0", f"v_add_f32 v{v}, v{v}, v{w}",
             f"v_cvt_pk_bf16_f32 v{v}, v{v}, v{v}", f"v_lshlrev_b32 v{v}, 16, v{v}", f"v_mul_f32 v{v}, {f32bits(-LOG2E):#x}, v{v}",
             f"v_exp_f32 v{v}, v{v}", f"v_add_f32 v{v}, 1.0, v{v}", f"v_rcp_f32 v{v}, v{v}", f"v_cvt_pk_bf16_f32 v{v}, v{v}, v{v}",
             f"v_lshlrev_b32 v{v}, 16, v{v}", f"v_lshrrev_b32 v{w}, 5, v0", f"v_lshlrev_b32 v{w}, 2, v{w}"]
    tl, prev = [], None
    for t in tail:
        o = Op(t, "V", [prev] if prev else [])
        tl.append(o)
        prev = o
    return par, tl


def g_step(A, typ, first, cfg):
    lastD = max(i for i, c in enumerate(HT) if c == "D")
    va = [Op(f"v_add_u32 v{V_XR0}, s{S_XRD}, v{V_XL0}", "V", min_gap=lastD + 1),
          Op(f"v_add_u32 v{V_XR1}, s{S_XRD}, v{V_XL1}", "V", min_gap=lastD + 1)]
    va += [Op(f"v_xor_b32 v{V_WR+i}, 0x8000, v{V_WR+i}", "V", min_gap=lastD + 1) for i in range(8)]
    gp, gt = gate_ops() if first else ([], [])
    va = va + gp[:58]
    tch = [Op(f"buffer_load_dword v{V_TCH+1}, v{V_TCH}, {sr(SRD_WS,4)}, s{S_TOFF} offen {cfg.get('tfl','')}", "M"),
           Op(f"buffer_atomic_add v{V_CRT}, v{V_CRT+1}, {sr(SRD_DBG,4)}, 0 offen", "M")]
    ht1 = HT[:59] + "MFM" + HT[62:]
    out, _ = schedule(g_mfmas(typ, 0, first), ht1, g_reads(1, 1), dma_x() + tch, va,
                      {63: ["s_waitcnt vmcnt(10) lgkmcnt(0)", "s_barrier"]}, salu_first=True)
    A.emit_list(out)
    ch = [Op(f"s_add_u32 s{S_XRD}, s{S_XRD}, 32768", "S"), Op(f"s_cmp_ge_u32 s{S_XRD}, {LDS_TOTAL}", "S"),
          Op(f"s_cselect_b32 s{S_XRD}, {LDS_X0}, s{S_XRD}", "S")]
    groups = [[Op(f"s_add_u32 s{S_PHASE}, s{S_PHASE}, 1", "S"), Op(f"s_mov_b32 s{SRD_WS+2}, 0", "S")]]
    for when, base, size, off in ((f"s{S_TAT}", S_TA, f"s{S_TASZ}", S_TAOFF),
                                  (cfg.get("warm_at", 13), S_PC, "LM_END-LM_PC", S_TOFF2)):
        groups.append([Op(f"s_cmp_eq_u32 s{S_PHASE}, {when}", "S"),
                       Op(f"s_cselect_b64 {sr(SRD_WS,2)}, {sr(base,2)}, {sr(SRD_WS,2)}", "S"),
                       Op(f"s_cselect_b32 s{SRD_WS+2}, {size}, s{SRD_WS+2}", "S"),
                       Op(f"s_cselect_b32 s{S_TOFF}, s{off}, s{S_TOFF}", "S")])
    groups.append([Op(f"s_cmp_eq_u32 s{S_PHASE}, s{S_CSTEP}", "S"), Op(f"s_cselect_b32 s{SRD_DBG+2}, 256, 0", "S")])
    if first:
        groups = groups[:1]
    merged = []
    for o in dma_w():
        merged.append(o)
        if o.kind == "M" and groups:
            merged += groups.pop(0)
    assert not groups
    ch = ch + merged + [Op(f"s_sub_u32 s{S_LEFT}, s{S_LEFT}, 1", "S"), Op(f"s_cmp_lg_u32 s{S_LEFT}, 0", "S")]
    for o in gp[:58]:
        o.gap = -1
    if gt:
        gt[0].deps = [gp[-1]]
    out, _ = schedule(g_mfmas(typ, 1, False), HT, g_reads(0, 0), ch, gp[58:] + gt, {63: ["s_waitcnt lgkmcnt(0)"]}, salu_first=True)
    A.emit_list(out)
    if cfg.get("gdiag"):
        A("s_memtime s[100:101]")
        A("s_memrealtime s[98:99]")
        A(f"s_mov_b32 m0, s{S_W12}")
        A("s_waitcnt lgkmcnt(0)")
        A("v_writelane_b32 v240, s100, m0")
        A("v_writelane_b32 v241, s98, m0")
        A(f"s_addk_i32 s{S_W12}, 1")
        A(f"s_cmp_lg_u32 s{S_LEFT}, 0")
    if first:
        A(f"s_mov_b32 s{SRD_WS+2}, {WS_SIZE}")
        A("s_mov_b32 exec_lo, 1")
        A("s_mov_b32 exec_hi, 1")
        A(f"buffer_store_dword v{V_CV+8}, v{V_CV+9}, {sr(SRD_WS,4)}, s{S_W4} offen sc1")
        A("s_mov_b64 exec, -1")
        A(f"s_mov_b32 s{SRD_WS+2}, 0")


KVFL = "sc1"


def kv_store(c, srd=None):
    srd = SRD_E if srd is None else srd
    ops = []
    if c and c % 4 == 0:
        ops.append(Op(f"s_add_u32 s{S_OB}, s{S_OB}, s{S_OSTA if (c // 4) % 2 == 1 else S_OSTB}", "S"))
    ops.append(Op(f"buffer_store_dwordx4 {vr(V_PK+4*c,4)}, v{V_LANE16}, {sr(srd,4)}, s{S_OB} offen offset:{(c%4)*1024} {KVFL}", "M"))
    return ops


def g_cvt(A, typ, n_early):
    for c in range(32):
        hi, lo = c // 4, c % 4
        if typ == "KQ":
            o, p = hi, lo
            regs = [acc(2 * p, o) + r for r in range(4)] + [acc(2 * p + 1, o) + r for r in range(4)]
        else:
            p, o = hi >> 1, (hi & 1) * 4 + lo
            regs = [acc(o, 2 * p) + r for r in range(4)] + [acc(o, 2 * p + 1) + r for r in range(4)]
        t = V_CV + (c % 2) * 8
        for i, r in enumerate(regs):
            A(f"v_accvgpr_read_b32 v{t+i}, a{r}")
        for i in range(4):
            A(f"v_cvt_pk_bf16_f32 v{V_PK+4*c+i}, v{t+2*i}, v{t+2*i+1}")
        if n_early == 32:
            for o_ in kv_store(c):
                A(o_.text)
        else:
            k0, k1 = (c * n_early) // 32, ((c + 1) * n_early) // 32
            for k in range(k0, k1):
                for o_ in kv_store(k):
                    A(o_.text)


PF = [("v", 64), ("a", 176)]


def pfr(s, off, n):
    k, b = PF[s]
    return vr(b + off, n, k)


def p_mfmas(s, first):
    out = []
    for db in range(8):
        for tb in range(4):
            a = ar((db * 4 + tb) * 4, 4)
            out.append(f"v_mfma_f32_16x16x32_bf16 {a}, {pfr(s,16+4*db,4)}, {pfr(s,4*tb,4)}, {'0' if first else a}")
    for u in range(3):
        for tb in range(4):
            a = ar(128 + (u * 4 + tb) * 4, 4)
            w, x = pfr(s, 48 + 4 * u, 4), pfr(s, 4 * tb, 4)
            out.append(f"v_mfma_f32_16x16x32_bf16 {a}, {w}, {x}, {'0' if first else a}" if u < 2
                       else f"v_mfma_f32_16x16x32_bf16 {a}, {x}, {w}, {'0' if first else a}")
    return out


def p_reads(s, hh):
    out = [f"ds_read_b128 {pfr(s,4*tb,4)}, v{V_XR0+hh} offset:{tb*2048}" for tb in range(4)]
    for b in range(8):
        for e in range(2):
            out.append(f"ds_read_b64_tr_b16 {pfr(s,16+4*b+2*e,2)}, v{V_WR+b} offset:{hh*16384+e*2048}")
    for u in range(3):
        for e in range(2):
            out.append(f"ds_read_b64_tr_b16 {pfr(s,48+4*u+2*e,2)}, v{V_PWR+u} offset:{hh*8192+e*2048}")
    return out


def p_addr(T):
    base = LDS_X0 + (T % 3) * 32768
    return ([f"v_add_u32 v{V_XR0+h}, {base}, v{V_PXL+h}" for h in range(2)] +
            [f"v_add_u32 v{V_PWR+u}, {base}, v{V_PWL+u}" for u in range(3)])


def merge_chain(dmas, stores):
    out = []
    k = 0
    stores = list(stores)
    for o in dmas:
        out.append(o)
        if o.kind == "M":
            k += 1
            if k % 2 == 0 and stores:
                out += stores.pop(0)
    for s in stores:
        out += s
    return out


PT = "DDM" * 13 + "FFFFX"


def p_step(A, T, st1, st2, cfg):
    lastD = max(i for i, c in enumerate(PT) if c == "D")
    last = T == 22
    ch = merge_chain(dma_x() if T + 2 <= 22 else [], [kv_store(c) for c in st1])
    n_young = sum(1 for o in ch if o.kind == "M")
    va = []
    if not last:
        va = [Op(t, "V", min_gap=lastD + 1) for t in p_addr(T + 1)]
        va += [Op(f"v_xor_b32 v{V_WR+i}, 0x8000, v{V_WR+i}", "V", min_gap=lastD + 1) for i in range(8)]
    out, left = schedule(p_mfmas(0, T == 16), PT, p_reads(1, 1), ch, va, {}, strict=False)
    A.emit_list(out)
    emit_left(A, left)
    A(f"s_waitcnt vmcnt({n_young}) lgkmcnt(0)")
    A("s_barrier")
    if T == cfg.get("sig_at", 18):
        assert not st1 and not st2
        signal(A, S_GHEAD, grp=0)
    if last:
        poll_issue(A, S_HEAD, F_KV, 8)
    ch = merge_chain(dma_w() if T + 2 <= 22 else [], [kv_store(c) for c in st2])
    out, left = schedule(p_mfmas(1, False), PT, [] if last else p_reads(0, 0), ch, [], {}, strict=False)
    A.emit_list(out)
    emit_left(A, left)
    A("s_waitcnt lgkmcnt(0)")


def p_epilogue_a(A):
    gi = 0
    for tb in range(4):
        t = 64 + gi * 12
        gi += 1
        lo, hi = 128 + tb * 4, 128 + (4 + tb) * 4
        for r in range(4):
            A(f"v_accvgpr_read_b32 v{t+r}, a{lo+r}")
            A(f"v_accvgpr_read_b32 v{t+4+r}, a{hi+r}")
        for r in range(4):
            A(f"v_mul_f32 v{t+r}, s{S_SCA}, v{t+r}")
            A(f"v_mul_f32 v{t+4+r}, v{V_SCHI}, v{t+4+r}")
        for i in range(4):
            A(f"v_cvt_pk_bf16_f32 v{t+8+i}, v{t+2*i}, v{t+2*i+1}")
        A(f"buffer_store_dwordx4 {vr(t+8,4)}, v{V_OA}, {sr(SRD_WS,4)}, s{S_OBQK} offen offset:{(tb>>1)*2048+(tb&1)*128} sc1")
    for p in range(2):
        t = 128 + p * 12
        lo, hi = 128 + (8 + 2 * p) * 4, 128 + (8 + 2 * p + 1) * 4
        for r in range(4):
            A(f"v_accvgpr_read_b32 v{t+r}, a{lo+r}")
            A(f"v_accvgpr_read_b32 v{t+4+r}, a{hi+r}")
        for r in range(8):
            A(f"v_fma_f32 v{t+r}, v{t+r}, v{V_MULHI}, v{V_ADDHI}")
        for i in range(4):
            A(f"v_cvt_pk_bf16_f32 v{t+8+i}, v{t+2*i}, v{t+2*i+1}")
        A(f"buffer_store_dwordx4 {vr(t+8,4)}, v{V_OAV}, {sr(SRD_WS,4)}, s{S_OBV} offen offset:{p*2048} sc1")


def p_epilogue_q(A):
    gi = 0
    for tb in range(4):
        for p in range(4):
            t = 160 + (gi % 8) * 12
            gi += 1
            lo, hi = ((2 * p) * 4 + tb) * 4, ((2 * p + 1) * 4 + tb) * 4
            for r in range(4):
                A(f"v_accvgpr_read_b32 v{t+r}, a{lo+r}")
                A(f"v_accvgpr_read_b32 v{t+4+r}, a{hi+r}")
            for r in range(0, 8, 2):
                A(f"v_pk_mul_f32 {vr(t+r,2)}, {vr(t+r,2)}, {sr(S_SC,2)}")
            for i in range(4):
                A(f"v_cvt_pk_bf16_f32 v{t+8+i}, v{t+2*i}, v{t+2*i+1}")
            A(f"ds_write_b128 v{V_XQW}, {vr(t+8,4)} offset:{tb*8192+p*1024}")


def s_reg(buf, kb, qb):
    return VS[buf] + (kb * 2 + qb) * 4


def c_reg(kb, qb):
    return VC + (kb * 2 + qb) * 4


def o_reg(db, qb):
    return VO + (db * 2 + qb) * 4


def qk_mfmas(buf, qs=(0, 1)):
    out = []
    for dg in range(8):
        for kb in range(2):
            for qb in qs:
                d = vr(s_reg(buf, kb, qb), 4)
                c = vr(c_reg(kb, qb), 4) if dg == 0 else d
                out.append(f"v_mfma_f32_16x16x32_bf16 {d}, {ar(AK+(kb*8+dg)*4,4)}, {ar(AQ+(qb*8+dg)*4,4)}, {c}")
    return out


def pv_mfmas(pbuf, qs=(0, 1)):
    out = []
    for db in range(16):
        for qb in qs:
            d = vr(o_reg(db, qb), 4)
            out.append(f"v_mfma_f32_16x16x32_bf16 {d}, {ar(AV+db*4,4)}, {vr(VP[pbuf]+qb*4,4)}, {d}")
    return out


def k_reads(vbase, off):
    return [f"ds_read_b128 {ar(AK+(kb*8+dg)*4,4)}, v{vbase} offset:{off+(kb*8+dg)*1024}"
            for dg in range(8) for kb in range(2)]


def v_reads(vbase, off):
    return [f"ds_read_b128 {ar(AV+db*4,4)}, v{vbase} offset:{off+db*1024}" for db in range(16)]


def softmax_oplist(buf, pbuf, with_l=(0, 1), qs=(0, 1)):
    ops = []
    ladd = {qb: Op(f"v_add_f32 v{V_L+qb}, v{V_L+qb}, v{V_LT+qb}", "V") for qb in with_l}
    ops += list(ladd.values())
    lastsum = []
    for qb in qs:
        prev = None
        for kb in range(2):
            s = s_reg(buf, kb, qb)
            e = VE + (kb * 2 + qb) * 4
            ex = [Op(f"v_exp_f32 v{e+r}, v{s+r}", "E") for r in range(4)]
            ops += ex
            ops.append(Op(f"v_cvt_pk_bf16_f32 v{VP[pbuf]+qb*4+kb*2}, v{e}, v{e+1}", "V", [ex[0], ex[1]]))
            ops.append(Op(f"v_cvt_pk_bf16_f32 v{VP[pbuf]+qb*4+kb*2+1}, v{e+2}, v{e+3}", "V", [ex[2], ex[3]]))
            if kb == 0:
                prev = Op(f"v_add_f32 v{V_LT+qb}, v{e}, v{e+1}", "V", [ex[0], ex[1]] + ([ladd[qb]] if qb in ladd else []))
                ops.append(prev)
                rest = [2, 3]
            else:
                rest = [0, 1, 2, 3]
            for r in rest:
                prev = Op(f"v_add_f32 v{V_LT+qb}, v{V_LT+qb}, v{e+r}", "V", [ex[r], prev])
                ops.append(prev)
        lastsum.append(prev)
    if len(qs) == 2:
        mx = Op(f"v_max_f32 v{V_T+8}, v{V_LT}, v{V_LT+1}", "V", lastsum)
        ops.append(mx)
        ops.append(Op(f"v_cmp_ngt_f32 vcc, 2.0, v{V_T+8}", "V", [mx]))
    else:
        ops.append(Op(f"v_cmp_ngt_f32 vcc, 2.0, v{V_LT+qs[0]}", "V", lastsum))
    return ops


def softmax_linear(buf, pbuf):
    ops = softmax_oplist(buf, pbuf, with_l=())
    return [o.text for o in ops if o.kind == "E"] + ["s_nop 0"] + [o.text for o in ops if o.kind == "V"]


def kv_dma(soff, i):
    return Op(f"buffer_load_dwordx4 v{V_DKV}, {sr(SRD_WS,4)}, s{soff} offen offset:{i*1024} sc1 lds", "M")


def dma_chain(kdst, vdst, vmin):
    c = [Op(f"s_cmp_lt_u32 s{S_KOFF}, s{S_KLIM}", "S"), Op(f"s_cselect_b32 s{S_TMP}, s{S_KOFF}, s{S_HUGE}", "S"),
         Op(kdst, "S"), Op(f"s_add_u32 s{S_KOFF}, s{S_KOFF}, 16384", "S")]
    c += [kv_dma(S_TMP, i) for i in range(4)]
    c += [Op(f"s_cmp_lt_u32 s{S_VOFF}, s{S_VLIM}", "S", min_gap=vmin),
          Op(f"s_cselect_b32 s{S_TMP+1}, s{S_VOFF}, s{S_HUGE}", "S"),
          Op(vdst, "S"), Op(f"s_add_u32 s{S_VOFF}, s{S_VOFF}, 16384", "S")]
    c += [kv_dma(S_TMP + 1, i) for i in range(4)]
    return c


def kv_tile_chain(which, stage):
    off = S_KOFF if which == "K" else S_VOFF
    c = [Op(f"s_add_u32 m0, s{S_B0}, {stage*32768 + (0 if which == 'K' else 16384)}", "S")]
    c += [kv_dma(off, i) for i in range(4)]
    c.append(Op(f"s_add_u32 s{off}, s{off}, 16384", "S"))
    return c


def c_mask_ops(slot, kexpr):
    b = S_WAVE if slot == 0 else S_BL1
    sal, val = [], []
    for kb in range(2):
        sa, sm_ = S_TMP + 4 + 2 * kb, S_TMP + 5 + 2 * kb
        sal += [f"s_cmp_gt_u32 {kexpr(kb)}, s{b}", f"s_cselect_b32 s{sa}, {NEG_INF:#x}, 0",
                f"s_cmp_eq_u32 {kexpr(kb)}, s{b}", f"s_cselect_b32 s{sm_}, -1, 0"]
        t = V_T + 9 + kb
        val.append(f"v_add_f32 v{t}, s{sa}, v{V_CB+slot}")
        for r in range(4):
            val.append(f"v_and_b32 v{c_reg(kb,slot)+r}, s{sm_}, v{V_DM+r}")
        for r in range(4):
            val.append(f"v_add_f32 v{c_reg(kb,slot)+r}, v{c_reg(kb,slot)+r}, v{t}")
    return sal, val


def c_update(A, tile_sgpr):
    lool, lback = A.newlabel("LC"), A.newlabel("LC")
    T = S_TMP + 2
    o = [f"{lool}:", f"s_sub_u32 s{T}, s{tile_sgpr}, s{S_TW}", f"s_lshl_b32 s{T}, s{T}, 1", f"s_add_u32 s{T+1}, s{T}, 1"]
    sal, val = c_mask_ops(0, lambda kb: f"s{T+kb}")
    o += sal + val + [f"s_branch {lback}"]
    OOL.append(o)
    return [f"s_cmp_ge_u32 s{tile_sgpr}, s{S_TW}", f"s_cbranch_scc1 {lool}\n{lback}:"]


def rare_check(A, sb, pref="LB_RARE", half=False):
    lool, lback = A.newlabel("LR"), A.newlabel("LR")
    pre = []
    if half:
        pre = [f"v_mov_b32 v{s_reg(sb,kb,0)+r}, {NEG_INF:#x}" for kb in range(2) for r in range(4)]
    OOL.append([f"{lool}:"] + pre + [f"s_call_b64 {sr(S_RET,2)}, {pref}{sb}", f"s_branch {lback}"])
    return f"s_cbranch_vccnz {lool}\n{lback}:"


PH = "DDE" * 8 + "MEMEMEMX"


def b_iter(A, par, cfg, mode="full", last=None):
    pb_cur, pb_nxt = par, 1 - par
    sb_sm, sb_qk = 1 - par, par
    both, one = (0, 1), (1,)
    pv_q = both if mode in ("full", "t4", "t3") else one
    sm_q = {"full": both, "t4": both, "t3": one, "t2": one, "t1": ()}[mode]
    l_q = pv_q
    qk_q = {"full": both, "t4": one, "t3": one}.get(mode, ())
    if mode in ("t4", "t3"):
        A.emit_list(c_mask_ops(1, lambda kb: str((4 if mode == "t4" else 6) + kb))[0])
    A({"full": "s_waitcnt vmcnt(16) lgkmcnt(0)", "t4": "s_waitcnt vmcnt(16) lgkmcnt(0)", "t3": "s_waitcnt vmcnt(8) lgkmcnt(0)",
       "t2": "s_waitcnt vmcnt(8) lgkmcnt(0)", "t1": "s_waitcnt lgkmcnt(0)"}[mode])
    A("s_barrier")
    if sm_q:
        sm = softmax_oplist(sb_sm, pb_nxt, l_q, sm_q)
        for o in sm:
            if o.kind == "E":
                o.min_gap = 2
    else:
        sm = [Op(f"v_add_f32 v{V_L+qb}, v{V_L+qb}, v{V_LT+qb}", "V") for qb in l_q]
    vrd = v_reads(V_RB0 if par == 0 else V_RB1, 49152 if par == 0 else 16384)
    flip = [Op(f"v_xor_b32 v{V_RB0}, 0x10000, v{V_RB0}", "V"), Op(f"v_xor_b32 v{V_RB1}, 0x10000, v{V_RB1}", "V")]
    if qk_q:
        m = pv_mfmas(pb_cur) + qk_mfmas(sb_qk, qk_q)
        ds = k_reads(V_RB1, 0 if par == 0 else 32768) + vrd
        if mode == "full":
            cu = c_update(A, S_T2)
            chain = [Op(cu[0], "S"), Op(cu[1], "S"), Op(f"s_add_u32 s{S_T2}, s{S_T2}, 1", "S")]
        else:
            k0 = 4 if mode == "t4" else 6
            sal, val = c_mask_ops(1, lambda kb: str(k0 + kb))
            chain = []
            cops = []
            for kb in range(2):
                v = val[9 * kb:9 * kb + 9]
                t = Op(v[0], "V", min_gap=1)
                ands = [Op(x, "V", min_gap=1) for x in v[1:5]]
                adds = [Op(x, "V", [t, a]) for x, a in zip(v[5:9], ands)]
                cops += [t] + ands + adds
            sm = cops + sm
        if mode == "full":
            if par == 0:
                chain += dma_chain(f"s_add_u32 m0, s{S_B0}, 32768", f"s_add_u32 m0, s{S_B0}, 16384", 31)
            else:
                chain += dma_chain(f"s_xor_b32 m0, s{S_B0}, 65536", f"s_add_u32 m0, s{S_B0}, 49152", 31)
                for f in flip:
                    f.min_gap = 56
                sm += flip
                chain[-4:-4] = [Op(f"s_xor_b32 s{S_B0}, s{S_B0}, 65536", "S"), Op(f"s_sub_u32 s{S_LEFT}, s{S_LEFT}, 1", "S")]
            fixed = {31: ["s_waitcnt lgkmcnt(0)"], 63: [rare_check(A, sb_sm)]}
            out, left = schedule(m, PH + PH, ds, chain, sm, fixed)
            A.emit_list(out)
            return
        tmpl = "DDF" * 2 + "DDE" * 6 + "EEEEEEEX" + "D" * 16
        if mode == "t3" and last:
            tmpl = "DDF" * 2 + "DDE" * 6 + "EEMMMMMX" + "D" * 16
            chain += last
        out, left = schedule(m, tmpl, ds, chain, sm, {31: ["s_waitcnt lgkmcnt(0)"]}, strict=False)
        assert all(o.gap is not None and o.gap < 30 for o in cops), [o.gap for o in cops]
        A.emit_list(out)
        A("s_nop 0")
        emit_left(A, left)
        if par == 1:
            A.emit_list([f.text for f in flip])
        A(rare_check(A, sb_sm, half=(len(sm_q) == 1)))
        return
    m = pv_mfmas(pb_cur, one)
    if mode == "t2":
        out, left = schedule(m, "EEEEEEEE" + "EEDDDDDD", vrd, [], sm, {}, strict=False)
        A.emit_list(out)
        A("s_nop 0")
        emit_left(A, left)
        A(rare_check(A, sb_sm, half=True))
    else:
        out, left = schedule(m, "E" + "M" * 15, [], last, sm, {}, strict=False)
        A.emit_list(out)
        emit_left(A, left)


def xquad(A, op, v, t):
    A(f"v_mov_b32 v{t}, v{v}")
    A("s_nop 1")
    A(f"v_permlane32_swap_b32 v{t}, v{v}")
    A("s_nop 1")
    A(f"{op} v{v}, v{v}, v{t}")
    A(f"v_mov_b32 v{t}, v{v}")
    A("s_nop 1")
    A(f"v_permlane16_swap_b32 v{t}, v{v}")
    A("s_nop 1")
    A(f"{op} v{v}, v{v}, v{t}")


def b_rare(A, sb):
    A.label(f"LB_RARE{sb}")
    A("s_nop 7")
    A("s_nop 7")
    so = 1 - sb
    for qb in range(2):
        d = V_T + qb
        a, b = s_reg(sb, 0, qb), s_reg(sb, 1, qb)
        A(f"v_max3_f32 v{d}, v{a}, v{a+1}, v{a+2}")
        A(f"v_max3_f32 v{d}, v{d}, v{a+3}, v{b}")
        A(f"v_max3_f32 v{d}, v{d}, v{b+1}, v{b+2}")
        A(f"v_max_f32 v{d}, v{d}, v{b+3}")
        xquad(A, "v_max_f32", d, V_T + 4)
        A(f"v_add_f32 v{d}, {f32bits(BIAS):#x}, v{d}")
        A(f"v_max_f32 v{d}, s{S_FLOOR}, v{d}")
        A(f"v_max_f32 v{V_T+2+qb}, 0, v{d}")
        A(f"v_exp_f32 v{V_T+2+qb}, -v{V_T+2+qb}")
        for kb in range(2):
            for r in range(4):
                A(f"v_sub_f32 v{s_reg(sb,kb,qb)+r}, v{s_reg(sb,kb,qb)+r}, v{d}")
                A(f"v_sub_f32 v{s_reg(so,kb,qb)+r}, v{s_reg(so,kb,qb)+r}, v{d}")
                A(f"v_sub_f32 v{c_reg(kb,qb)+r}, v{c_reg(kb,qb)+r}, v{d}")
        A(f"v_sub_f32 v{V_CB+qb}, v{V_CB+qb}, v{d}")
        A(f"v_mul_f32 v{V_L+qb}, v{V_L+qb}, v{V_T+2+qb}")
    lskip = A.newlabel("LRS")
    A(f"s_cmp_eq_u32 s{S_FIRST}, 1")
    A(f"s_cbranch_scc1 {lskip}")
    for db in range(16):
        for qb in range(2):
            for r in range(4):
                A(f"v_mul_f32 v{o_reg(db,qb)+r}, v{o_reg(db,qb)+r}, v{V_T+2+qb}")
    A.label(lskip)
    A(f"s_mov_b32 s{S_FIRST}, 0")
    A(f"s_mov_b32 s{S_FLOOR}, 0")
    for o in softmax_linear(sb, sb):
        A(o)
    A("s_nop 1")
    A(f"s_setpc_b64 {sr(S_RET,2)}")


WO_SLOT = [4, 0, 1, 2, 3, 4, 0, 1]
VF = 128
VCTX = 64


def wo_chain(chunk, slot):
    c = [Op(f"s_add_u32 s{S_TMP+2}, s{S_WOOFF}, {chunk*32*896}", "S"), Op(f"s_add_u32 m0, s{S_WOW}, {slot*32768}", "S")]
    for i in range(7):
        if i == 4:
            c.append(Op("s_add_u32 m0, m0, 4096", "S"))
        c.append(Op(f"buffer_load_dwordx4 v{V_WOD+i}, {sr(SRD_B,4)}, s{S_TMP+2} offen offset:{(i%4)*1024} lds", "M"))
    return c


def wo_reads(half, fset):
    out = []
    for i in range(14):
        b = 14 * half + i
        f = VF + (fset * 14 + i) * 4
        for e in range(2):
            out.append(f"ds_read_b64_tr_b16 {vr(f+2*e,2)}, v{V_WOR+(b&3)} offset:{(b>>2)*128+e*16*896}")
    return out


def wo_mfmas(half, fset, dg):
    out = []
    for i in range(14):
        b = 14 * half + i
        f = VF + (fset * 14 + i) * 4
        for qb in range(2):
            a = (b * 2 + qb) * 4
            c = "0" if dg == 0 else ar(a, 4)
            out.append(f"v_mfma_f32_16x16x32_bf16 {ar(a,4)}, {vr(f,4)}, {vr(VCTX+(dg*2+qb)*4,4)}, {c}")
    return out


def b_epilogue(A, cfg):
    A("s_nop 7")
    for qb in range(2):
        xquad(A, "v_add_f32", V_L + qb, V_T + 4)
        A(f"v_rcp_f32 v{V_T+2*qb}, v{V_L+qb}")
        A("s_nop 0")
        A(f"v_mov_b32 v{V_T+2*qb+1}, v{V_T+2*qb}")
    for dg in range(8):
        for qb in range(2):
            for a in range(2):
                o = o_reg(2 * dg + a, qb)
                A(f"v_pk_mul_f32 {vr(o,2)}, {vr(o,2)}, {vr(V_T+2*qb,2)}")
                A(f"v_pk_mul_f32 {vr(o+2,2)}, {vr(o+2,2)}, {vr(V_T+2*qb,2)}")
            for a in range(2):
                o = o_reg(2 * dg + a, qb)
                c = VCTX + (dg * 2 + qb) * 4 + 2 * a
                A(f"v_cvt_pk_bf16_f32 v{c}, v{o}, v{o+1}")
                A(f"v_cvt_pk_bf16_f32 v{c+1}, v{o+2}, v{o+3}")
    A("s_waitcnt vmcnt(28)")
    A("s_barrier")
    A.emit_list(wo_reads(0, 0))
    poll_test(A)
    A(f"s_cselect_b32 s{S_AQOK}, 1, 0")
    W = {6: ["s_waitcnt lgkmcnt(14)"], 13: ["s_waitcnt lgkmcnt(14)"], 20: ["s_waitcnt lgkmcnt(14)"]}
    A("s_waitcnt lgkmcnt(0)")
    seq = [(c, h) for c in range(4) for h in range(2)] + [(c, 0) for c in range(4, 8)] + [(c, 1) for c in range(4, 8)]
    early = partial_ops(2, range(7))
    cur = 0
    seen = {0}
    for k, (dg, h) in enumerate(seq):
        nxt = seq[k + 1] if k + 1 < len(seq) else None
        if nxt:
            if nxt[0] != cur:
                delta = (WO_SLOT[nxt[0]] - WO_SLOT[cur]) * 32768
                for i in range(4):
                    A(f"v_add_u32 v{V_WOR+i}, {delta & 0xffffffff:#x}, v{V_WOR+i}")
                cur = nxt[0]
            if nxt[0] not in seen:
                seen.add(nxt[0])
                c = nxt[0]
                issued = min(7, 4 + (c - 1))
                A(f"s_waitcnt vmcnt({7*(issued-c)}) lgkmcnt({0 if c <= 3 else 14})")
                A("s_barrier")
                if c <= 3:
                    emit_chain(A, wo_chain(c + 4, WO_SLOT[c + 4]))
            elif k:
                A("s_waitcnt lgkmcnt(14)")
        if k == 12:
            pop_issue(A)
            for o in early:
                o.min_gap = 3
        va = [o for o in early if o.gap is None] if k >= 12 else []
        m = wo_mfmas(h, k % 2, dg)
        if nxt:
            out, _ = schedule(m, "D" * 28, wo_reads(nxt[1], (k + 1) % 2), [], va, W, strict=False)
        else:
            A("s_waitcnt lgkmcnt(14)")
            out, left = schedule(m, "F" * 28, [], [], va, {11: ["s_waitcnt lgkmcnt(0)"]}, strict=False)
        A.emit_list(out)
        for o in early:
            o.min_gap = 0
            if o.gap is not None:
                o.gap = -1
    A.emit_list(left)
    A("s_nop 7")
    for o in partial_ops(2, range(7, 14), base=128, ngrp=8):
        A(o.text)


def partial_ops(nqb, pairs, base=64, ngrp=2):
    ops = []
    gi = 0
    last_use = {}
    for qb in range(nqb):
        first = True
        for p in pairs:
            t = base + (gi % ngrp) * 12
            prev = last_use.get(gi % ngrp, [])
            regs = [((2 * p) * nqb + qb) * 4 + r for r in range(4)] + [((2 * p + 1) * nqb + qb) * 4 + r for r in range(4)]
            rd = [Op(f"v_accvgpr_read_b32 v{t+i}, a{r}", "V", prev[:4]) for i, r in enumerate(regs)]
            cv = [Op(f"v_cvt_pk_bf16_f32 v{t+8+i}, v{t+2*i}, v{t+2*i+1}", "V", [rd[2*i], rd[2*i+1]] + prev[4:]) for i in range(4)]
            off = p * 1024
            txt = ""
            if first or off % 4096 == 0:
                txt = f"s_add_u32 s{S_TMP}, s{S_POFF if qb == 0 else S_POFF1}, {off - off % 4096}\n"
            first = False
            st = Op(txt + f"buffer_store_dwordx4 {vr(t+8,4)}, v{V_LANE16}, {sr(SRD_WS,4)}, s{S_TMP} offen offset:{off%4096} sc1", "V",
                    cv + ([ops[-1]] if ops else []))
            ops += rd + cv + [st]
            last_use[gi % ngrp] = cv + [st]
            gi += 1
    return ops


def store_partials(A, nqb, cfg):
    fl = "sc1"
    pop_issue(A)
    A("s_nop 7")
    gi = 0
    for qb in range(nqb):
        for p in range(14):
            t = 128 + (gi % 8) * 12
            gi += 1
            regs = [((2 * p) * nqb + qb) * 4 + r for r in range(4)] + [((2 * p + 1) * nqb + qb) * 4 + r for r in range(4)]
            for i, r in enumerate(regs):
                A(f"v_accvgpr_read_b32 v{t+i}, a{r}")
            for i in range(4):
                A(f"v_cvt_pk_bf16_f32 v{t+8+i}, v{t+2*i}, v{t+2*i+1}")
            off = p * 1024
            if off % 4096 == 0:
                A(f"s_add_u32 s{S_TMP}, s{S_POFF if qb == 0 else S_POFF1}, {off}")
            A(f"buffer_store_dwordx4 {vr(t+8,4)}, v{V_LANE16}, {sr(SRD_WS,4)}, s{S_TMP} offen offset:{off%4096} {fl}")


def wo_lane_setup(A):
    T = V_T
    for i in range(7):
        A(f"v_add_u32 v{T}, {64*i}, v0")
        A(f"v_mul_u32_u24 v{T+1}, 1171, v{T}")
        A(f"v_lshrrev_b32 v{T+1}, 16, v{T+1}")
        A(f"v_mul_u32_u24 v{T+2}, 56, v{T+1}")
        A(f"v_sub_u32 v{T+2}, v{T}, v{T+2}")
        A(f"v_bfe_u32 v{T+3}, v{T+1}, 1, 2")
        A(f"v_lshlrev_b32 v{T+3}, 1, v{T+3}")
        A(f"v_xor_b32 v{T+2}, v{T+2}, v{T+3}")
        A(f"v_mul_u32_u24 v{T+1}, 896, v{T+1}")
        A(f"v_lshl_add_u32 v{T+1}, v{T+2}, 4, v{T+1}")
        A(f"v_subrev_u32 v{V_WOD+i}, {(i%4)*1024}, v{T+1}")


def b_setup_kv(A):
    T = S_TMP
    A(f"s_lshl_b32 s{S_TW}, s{S_QB}, 2")
    A(f"s_add_u32 s{S_N}, s{S_TW}, 4")
    A(f"s_lshl_b32 s{S_KOFF}, s{S_HEAD}, 20")
    A(f"s_add_u32 s{S_VOFF}, s{S_KOFF}, {WS_V}")
    A(f"s_lshl_b32 s{T}, s{S_N}, 14")
    A(f"s_add_u32 s{S_KLIM}, s{S_KOFF}, s{T}")
    A(f"s_add_u32 s{S_VLIM}, s{S_VOFF}, s{T}")
    A(f"s_lshl_b32 s{S_B0}, s{S_WAVE}, 12")
    A(f"v_add_u32 v{V_DKV}, s{S_B0}, v{V_LANE16}")
    A(f"s_mov_b32 s{S_SC}, {f32bits(SCALE_B):#x}")
    A(f"s_mov_b32 s{S_SC+1}, {f32bits(SCALE_B):#x}")


def b_setup_rest(A):
    T = S_TMP
    set_srd(A, SRD_B, P_WOB, 4096 * 448 * 2)
    A(f"v_and_b32 v{V_T}, 15, v0")
    A(f"v_lshrrev_b32 v{V_T+1}, 4, v0")
    A(f"v_lshlrev_b32 v{V_T+2}, 2, v{V_T+1}")
    A(f"v_mov_b32 v{V_T+4}, {NEG_INF:#x}")
    for r in range(4):
        A(f"v_add_u32 v{V_T+3}, {r}, v{V_T+2}")
        A(f"v_cmp_gt_u32 vcc, v{V_T+3}, v{V_T}")
        A("s_nop 1")
        A(f"v_cndmask_b32 v{V_DM+r}, 0, v{V_T+4}, vcc")
    A(f"v_bfe_u32 v{V_T+3}, v0, 2, 2")
    A(f"v_add_u32 v{V_T+3}, v{V_T+3}, v{V_T+2}")
    A(f"v_bfe_u32 v{V_T+5}, v{V_T+3}, 1, 2")
    A(f"v_mul_u32_u24 v{V_T+3}, 896, v{V_T+3}")
    A(f"v_and_b32 v{V_T+6}, 3, v0")
    A(f"v_lshl_add_u32 v{V_T+3}, v{V_T+6}, 3, v{V_T+3}")
    A(f"v_add_u32 v{V_T+3}, {WO_SLOT[0]*32768}, v{V_T+3}")
    for b in range(4):
        A(f"v_xor_b32 v{V_T+6}, {b}, v{V_T+5}")
        A(f"v_lshl_add_u32 v{V_WOR+b}, v{V_T+6}, 5, v{V_T+3}")
    wo_lane_setup(A)
    A(f"s_mul_i32 s{S_WOOFF}, s{S_HEAD}, {256*896}")
    A(f"s_mul_i32 s{S_WOW}, s{S_WAVE}, {8*896}")
    A(f"s_add_u32 s{S_WOOFF}, s{S_WOOFF}, s{S_WOW}")
    A(f"s_add_u32 s{S_POFF}, s{S_HEAD}, 4")
    A(f"s_mul_i32 s{S_POFF}, s{S_POFF}, {P_SLOT}")
    A(f"s_mul_i32 s{T}, s{S_QB}, {8*14*1024}")
    A(f"s_add_u32 s{S_POFF}, s{S_POFF}, s{T}")
    A(f"s_add_u32 s{S_POFF}, s{S_POFF}, {WS_P}")
    A(f"s_sub_u32 s{S_BL1}, 7, s{S_WAVE}")
    A(f"s_mul_i32 s{T}, s{S_BL1}, {14*1024}")
    A(f"s_add_u32 s{S_POFF1}, s{S_POFF}, s{T}")
    A(f"s_mul_i32 s{T}, s{S_WAVE}, {14*1024}")
    A(f"s_add_u32 s{S_POFF}, s{S_POFF}, s{T}")
    A(f"s_lshl_b32 s{T}, s{S_BL1}, 13")
    A(f"s_add_u32 s{T}, s{T}, {XQ}")
    A(f"v_add_u32 v{V_XQW}, s{T}, v{V_LANE16}")
    A(f"s_lshl_b32 s{S_RFLAG}, s{S_QB}, 8")
    A(f"s_lshl_b32 s{T}, s{S_HEAD}, 2")
    A(f"s_add_u32 s{S_RFLAG}, s{S_RFLAG}, s{T}")
    A(f"s_add_u32 s{S_RFLAG}, s{S_RFLAG}, {F_ROW}")
    A(f"s_mov_b32 s{S_RMASK}, 1")
    A(f"s_mov_b32 s{S_HUGE}, {HUGE}")
    A(f"s_mov_b32 s{S_FLOOR}, {NEG_INF:#x}")
    A(f"s_mov_b32 s{S_FIRST}, 1")
    for r in range(16):
        A(f"v_mov_b32 v{VC+r}, 0")
    for r in (V_CB, V_CB + 1, V_L, V_L + 1, V_LT, V_LT + 1):
        A(f"v_mov_b32 v{r}, 0")
    A(f"v_mov_b32 v{V_RB0}, v{V_LANE16}")
    A(f"v_add_u32 v{V_RB1}, 0x10000, v{V_LANE16}")
    A(f"s_mov_b32 s{S_T2}, 0")
    A.emit_list(c_update(A, S_T2))


def b_main(A, cfg):
    T = S_TMP
    A("s_waitcnt vmcnt(12) lgkmcnt(0)")
    A("s_barrier")
    if not cfg.get("stamp_lp"):
        stamp(A, cfg, 3)
    for i in range(16):
        A(f"ds_read_b128 {ar(AQ+i*4,4)}, v{V_XQR if i < 8 else V_XQW} offset:{(i%8)*1024}")
    A.emit_list(k_reads(V_RB0, 0))
    zero = [Op(f"v_mov_b32 v{VO+r}, 0", "V") for r in range(128)]
    for z in zero[:24]:
        A(z.text)
    A("s_waitcnt lgkmcnt(0)")
    out, left = schedule(qk_mfmas(0), "DF" * 16, v_reads(V_RB0, 16384), [], zero[24:72], {})
    A.emit_list(out)
    A.emit_list(k_reads(V_RB0, 32768))
    A(f"s_mov_b32 s{S_T2}, 1")
    A.emit_list(c_update(A, S_T2))
    A("s_waitcnt vmcnt(0) lgkmcnt(0)")
    A("s_barrier")
    A(f"s_lshl_b32 s{T+4}, s{S_HEAD}, 6")
    A(f"s_lshl_b32 s{T+5}, s{S_QB}, 2")
    A(f"s_add_u32 s{T+4}, s{T+4}, s{T+5}")
    A(f"s_add_u32 s{T+4}, s{T+4}, {F_AQ}")
    signal(A, T + 4)
    signal(A, S_GHEAD, grp=1)
    ch = kv_tile_chain("K", 3) + kv_tile_chain("V", 3)
    ch += [Op(f"s_cmp_lt_u32 s{S_KOFF}, s{S_KLIM}", "S"), Op(f"s_cselect_b32 s{T}, s{S_KOFF}, s{S_HUGE}", "S"),
           Op(f"s_mov_b32 m0, s{S_B0}", "S"), Op(f"s_add_u32 s{S_KOFF}, s{S_KOFF}, 16384", "S")]
    ch += [kv_dma(T, i) for i in range(4)]
    out, left = schedule(qk_mfmas(1), "FM" * 16, [], ch, zero[72:], {}, strict=False)
    A.emit_list(out)
    emit_left(A, left)
    A(f"v_lshlrev_b32 v{V_SIG+1}, 7, v0")
    A(f"buffer_load_dword v{V_SIG}, v{V_SIG+1}, {sr(SRD_B,4)}, s{S_TBOFF} offen")
    A(f"s_call_b64 {sr(S_RET,2)}, LB_RARE0")
    A(f"s_mov_b32 s{S_T2}, 2")
    A(f"s_lshr_b32 s{S_ITEM}, s{S_N}, 1")
    A(f"s_sub_u32 s{S_ITEM}, s{S_ITEM}, 2")
    A(f"s_cmp_ge_u32 s{S_QB}, 8")
    A(f"s_cselect_b32 s{S_LEFT}, 10, s{S_ITEM}")
    A(f"s_cselect_b32 s{S_EV}, 0, 2")
    stamp(A, cfg, 4)
    A(f"s_cmp_eq_u32 s{S_LEFT}, 0")
    A("s_cbranch_scc1 LB_DONE")
    A.label("LB_LOOP")
    b_iter(A, 0, cfg)
    b_iter(A, 1, cfg)
    if cfg.get("bdiag"):
        A("s_memtime s[100:101]")
        A("s_memrealtime s[98:99]")
        A(f"s_lshr_b32 m0, s{S_T2}, 1")
        A("s_waitcnt lgkmcnt(0)")
        A("v_writelane_b32 v28, s100, m0")
        A("v_writelane_b32 v29, s98, m0")
    A(f"s_cmp_lg_u32 s{S_LEFT}, 0")
    A("s_cbranch_scc1 LB_LOOP")
    A(f"s_cmp_eq_u32 s{S_EV}, 2")
    A("s_cbranch_scc1 LB_DONE")
    A(f"s_cmp_eq_u32 s{S_EV}, 1")
    A("s_cbranch_scc1 LB_EV1")
    A(f"s_mov_b32 s{S_EV}, 1")
    A(f"s_mov_b32 s{S_LEFT}, 2")
    poll_issue(A, S_HEAD, F_KV + 4096, 8)
    A("s_branch LB_LOOP")
    A.label("LB_EV1")
    A(f"s_mov_b32 s{S_EV}, 2")
    A(f"s_sub_u32 s{S_LEFT}, s{S_ITEM}, 12")
    poll_test(A)
    A("s_cbranch_scc1 LB_LOOP")
    poll_wait(A, True)
    A("s_branch LB_LOOP")
    A.label("LB_DONE")
    b_iter(A, 0, cfg, "t4")
    A(f"s_and_b32 s{T+1}, s2, 3")
    pi = Asm()
    poll_issue(pi, T + 1, F_AQ, 64)
    pil = [l.strip() for l in pi.lines]
    for l in pil[:-1]:
        A(l)
    b_iter(A, 1, cfg, "t3", last=[Op(pil[-1], "M")] + wo_chain(0, WO_SLOT[0]))
    b_iter(A, 0, cfg, "t2")
    last = []
    for c in range(1, 5):
        last += wo_chain(c, WO_SLOT[c])
    b_iter(A, 1, cfg, "t1", last=last)
    if cfg.get("bdiag"):
        A(f"s_lshl_b32 s{T}, s2, 2")
        A(f"s_add_u32 s{T}, s{T}, s{S_WAVE}")
        A(f"s_lshl_b32 s{T}, s{T}, 9")
        A(f"s_add_u32 s{T}, s{T}, {232 << 20}")
        A(f"v_lshrrev_b32 v27, 2, v{V_LANE16}")
        A(f"buffer_store_dword v28, v27, {sr(SRD_WS,4)}, s{T} offen")
        A(f"buffer_store_dword v29, v27, {sr(SRD_WS,4)}, s{T} offen offset:256")
    stamp(A, cfg, 5)
    b_epilogue(A, cfg)


AS = [64, 96]
AC = 128
AO = 160
AP = [192, 208]
AE = 224
QA_, KA_, VA_ = 0, 16, 48
XB = 114688
V_XW = 2
V_OR = 14


def a_qk(buf, slot):
    out = []
    for qb in range(2):
        d = vr(AS[buf] + qb * 16, 16)
        out.append(f"v_mfma_f32_32x32x16_bf16 {d}, {ar(KA_+slot*8,4)}, {ar(QA_+qb*8,4)}, {vr(AC+qb*16,16)}")
    for qb in range(2):
        d = vr(AS[buf] + qb * 16, 16)
        out.append(f"v_mfma_f32_32x32x16_bf16 {d}, {ar(KA_+slot*8+4,4)}, {ar(QA_+qb*8+4,4)}, {d}")
    return out


def a_pv(pbuf, slot):
    out = []
    for g in range(2):
        for qb in range(2):
            d = vr(AO + qb * 16, 16)
            out.append(f"v_mfma_f32_32x32x16_bf16 {d}, {ar(VA_+slot*8+g*4,4)}, {vr(AP[pbuf]+qb*8+g*4,4)}, {d}")
    return out


A_DELAY = 3


def a_softmax(buf):
    s, p = AS[buf], AP[buf]
    out = []
    pend = []
    for k in range(16):
        pend.append((2 * k + 1 + A_DELAY, f"v_cvt_pk_bf16_f32 v{p+k}, v{AE+((2*k)%16)}, v{AE+((2*k+1)%16)}"))
        if k == 2:
            pend.append((2 * k + 2 + A_DELAY, f"v_or_b32 v{V_OR}, v{p}, v{p+1}"))
        elif k > 2 and k % 2 == 0:
            pend.append((2 * k + 2 + A_DELAY, f"v_or3_b32 v{V_OR}, v{V_OR}, v{p+k-2}, v{p+k-1}"))
    for i in range(32):
        out.append(f"v_exp_f32 v{AE+(i%16)}, v{s+i}")
        if pend and pend[0][0] <= i:
            out.append(pend.pop(0)[1])
    out.extend(t for _, t in pend)
    out.append(f"v_or3_b32 v{V_OR}, v{V_OR}, v{p+14}, v{p+15}")
    out.append(f"v_and_b32 v{V_OR}, s{S_MASK}, v{V_OR}")
    out.append(f"v_cmp_ne_u32 vcc, 0, v{V_OR}")
    return out


def a_loads(kslot, vslot):
    k = [f"buffer_load_dwordx4 {ar(KA_+kslot*8+4*s,4)}, v{V_LANE16}, {sr(SRD_WS,4)}, s{S_KOFF} offen offset:{s*1024} sc1" for s in range(2)]
    k += [f"s_add_u32 s{S_KOFF}, s{S_KOFF}, 2048", f"s_min_u32 s{S_KOFF}, s{S_KOFF}, s{S_KLIM}"]
    v = [f"buffer_load_dwordx4 {ar(VA_+vslot*8+4*s,4)}, v{V_LANE16}, {sr(SRD_WS,4)}, s{S_VOFF} offen offset:{s*1024} sc1" for s in range(2)]
    v += [f"s_add_u32 s{S_VOFF}, s{S_VOFF}, 2048", f"s_min_u32 s{S_VOFF}, s{S_VOFF}, s{S_VLIM}"]
    return k, v


def a_iter(A, u, cfg):
    par = u % 2
    A("s_waitcnt vmcnt(12)")
    sm = a_softmax(par)
    mq, mp = a_qk(1 - par, (u + 1) % 4), a_pv(1 - par, (u - 1) % 4)
    lk, lv = a_loads((u + 1) % 4, (u - 1) % 4)
    n = len(sm)
    ms = mq + mp
    pos = spread(8, -1, n - 8)
    riders = {3: [lk[0]], 4: [lk[1]], 5: [lk[2]], 6: [lk[3]], 7: [lv[0]]}
    sides = []
    for i, (p, m) in enumerate(zip(pos, ms)):
        sides.append((p, [m] + riders.get(i, [])))
    sides.append((n - 4, [lv[1]]))
    sides.append((n - 2, [lv[2]]))
    sides.append((n - 1, [lv[3]]))
    body = interleave(sm, sides)
    if cfg.get("a_noload"):
        body = [b for b in body if not b.startswith("buffer_load")]
    if cfg.get("a_nosc1"):
        body = [b.replace(" sc1", "") for b in body]
    if cfg.get("a_nomfma"):
        body = [b for b in body if not b.startswith("v_mfma")]
    A.emit_list(body)
    A(rare_check(A, par, "LA_RARE"))


def a_softmax_fast(buf):
    s, p = AS[buf], AP[buf]
    out = []
    pend = [(2 * k + 1 + A_DELAY, f"v_cvt_pk_bf16_f32 v{p+k}, v{AE+((2*k)%16)}, v{AE+((2*k+1)%16)}") for k in range(16)]
    for i in range(32):
        out.append(f"v_exp_f32_e64 v{AE+(i%16)}, v{s+i} clamp")
        if pend and pend[0][0] <= i:
            out.append(pend.pop(0)[1])
    out.extend(t for _, t in pend)
    return out


def a_iter_fast(A, u, cfg):
    par = u % 2
    sm = a_softmax_fast(par)
    mq, mp = a_qk(1 - par, (u + 1) % 4), a_pv(1 - par, (u - 1) % 4)
    lk, lv = a_loads((u + 1) % 4, (u - 1) % 4)
    n = len(sm)
    ms = mp + mq
    pos = spread(8, 0, n - 9)
    riders = {0: lk[2], 1: lk[3], 2: lv[0], 3: lv[1], 4: lv[2], 5: lv[3], 6: lk[0], 7: lk[1]}
    sides = [(pos[0], ["s_waitcnt vmcnt(12)"])]
    for i, (p, m) in enumerate(zip(pos, ms)):
        sides.append((p, [m, riders[i]]))
    A.emit_list(interleave(sm, sides))


def a_rare(A, sb):
    A.label(f"LA_RARE{sb}")
    A("s_nop 7")
    A("s_nop 7")
    so = 1 - sb
    for qb in range(2):
        d, f, t = V_T + qb, V_T + 2 + qb, V_T + 4
        s = AS[sb] + qb * 16
        A(f"v_max3_f32 v{d}, v{s}, v{s+1}, v{s+2}")
        for i in range(3, 15, 2):
            A(f"v_max3_f32 v{d}, v{d}, v{s+i}, v{s+i+1}")
        A(f"v_max_f32 v{d}, v{d}, v{s+15}")
        A(f"v_mov_b32 v{t}, v{d}")
        A("s_nop 1")
        A(f"v_permlane32_swap_b32 v{t}, v{d}")
        A("s_nop 1")
        A(f"v_max_f32 v{d}, v{d}, v{t}")
        A(f"v_add_f32 v{d}, {f32bits(BIAS):#x}, v{d}")
        A(f"v_max_f32 v{d}, s{S_FLOOR}, v{d}")
        A(f"v_max_f32 v{f}, 0, v{d}")
        A(f"v_exp_f32 v{f}, -v{f}")
        for r in range(16):
            A(f"v_sub_f32 v{s+r}, v{s+r}, v{d}")
            A(f"v_sub_f32 v{AS[so]+qb*16+r}, v{AS[so]+qb*16+r}, v{d}")
            A(f"v_sub_f32 v{AC+qb*16+r}, v{AC+qb*16+r}, v{d}")
            A(f"v_mul_f32 v{AO+qb*16+r}, v{AO+qb*16+r}, v{f}")
    A(f"s_mov_b32 s{S_FLOOR}, 0")
    lskip = A.newlabel("LAS")
    A(f"s_cmp_eq_u32 s{S_FIRST}, 1")
    A(f"s_mov_b32 s{S_FIRST}, 0")
    A(f"s_cbranch_scc1 {lskip}")
    for o in a_softmax(sb):
        A(o)
    A.label(lskip)
    A("s_nop 1")
    A(f"s_setpc_b64 {sr(S_RET,2)}")


def a_counts(cfg):
    nf, nh = cfg.get("nf", 10), cfg.get("nh", 4)
    nq = 16 - nf - nh
    return nf, nh, nq, nf + 2 * nh + 4 * nq


def a_item(A, cfg):
    T = S_TMP
    stamp(A, cfg, 0)
    A(f"s_and_b32 s{T+1}, s2, 3")
    lq = A.newlabel("LAQ")
    A(f"s_cmp_eq_u32 s{S_AQOK}, 1")
    A(f"s_cbranch_scc1 {lq}")
    poll_issue(A, T + 1, F_AQ, 64)
    poll_wait(A)
    A(f"s_mov_b32 s{S_AQOK}, 1")
    A.label(lq)
    NF, NH, NQ, NA = a_counts(cfg)
    SP = S_N
    A(f"s_cmp_ge_u32 s{S_ITEM}, {NF}")
    A(f"s_cselect_b32 s{SP}, 1, 0")
    A(f"s_cselect_b32 s{T+2}, {NF}, 0")
    A(f"s_cselect_b32 s{T+3}, {NF}, 0")
    A(f"s_cmp_ge_u32 s{S_ITEM}, {NF + 2*NH}")
    A(f"s_cselect_b32 s{SP}, 2, s{SP}")
    A(f"s_cselect_b32 s{T+2}, {NF + 2*NH}, s{T+2}")
    A(f"s_cselect_b32 s{T+3}, {NF + NH}, s{T+3}")
    A(f"s_sub_u32 s{T+2}, s{S_ITEM}, s{T+2}")
    A(f"s_lshl_b32 s{T+5}, 1, s{SP}")
    A(f"s_sub_u32 s{T+5}, s{T+5}, 1")
    A(f"s_and_b32 s{T+6}, s{T+2}, s{T+5}")
    A(f"s_lshr_b32 s{T+2}, s{T+2}, s{SP}")
    A(f"s_add_u32 s{T+2}, s{T+2}, s{T+3}")
    A(f"s_sub_u32 s{T+4}, 2, s{SP}")
    A(f"s_lshl_b32 s{T+3}, s{T+6}, s{T+4}")
    A(f"s_lshr_b32 s{T+4}, s{S_WAVE}, s{SP}")
    A(f"s_add_u32 s{T+3}, s{T+3}, s{T+4}")
    A(f"s_and_b32 s{T+4}, s{S_WAVE}, s{T+5}")
    A(f"s_sub_u32 s{T+5}, 17, s{SP}")
    A(f"s_lshl_b32 s{T+4}, s{T+4}, s{T+5}")
    A(f"s_lshr_b32 s{S_LEFT}, 16, s{SP}")
    A(f"s_lshr_b32 s{T+5}, {64*2048}, s{SP}")
    A(f"s_sub_u32 s{T+5}, s{T+5}, 2048")
    A(f"s_cmp_ge_u32 s{SP}, 1")
    A(f"s_cselect_b32 s{S_KAP}, 1.0, 0")
    A(f"s_cselect_b32 s{S_EV}, 1024, 0")
    A(f"s_cselect_b32 s{S_RMASK}, 5, 15")
    A(f"s_cmp_ge_u32 s{SP}, 2")
    A(f"s_cselect_b32 s{S_T2}, 1.0, 0")
    A(f"s_cselect_b32 s{S_TW}, 2048, 0")
    A(f"s_cselect_b32 s{S_RMASK}, 1, s{S_RMASK}")
    A(f"s_bfe_u32 s{T}, s2, 0x10002")
    A(f"s_lshl_b32 s{T}, s{T}, 4")
    A(f"s_add_u32 s{T+2}, s{T+2}, s{T}")
    A(f"s_lshl_b32 s{T}, s{T+1}, 2")
    A(f"s_add_u32 s{T+3}, s{T+3}, s{T}")
    A(f"s_mul_i32 s{S_WOOFF}, s{T+3}, {28*896}")
    A(f"s_lshl_b32 s{T+3}, s{T+3}, 17")
    A(f"s_add_u32 s{S_KOFF}, s{T+3}, s{T+4}")
    A(f"s_add_u32 s{S_VOFF}, s{S_KOFF}, {WS_VA}")
    A(f"s_add_u32 s{S_KOFF}, s{S_KOFF}, {WS_KA}")
    A(f"s_add_u32 s{S_KLIM}, s{S_KOFF}, s{T+5}")
    A(f"s_add_u32 s{S_VLIM}, s{S_VOFF}, s{T+5}")
    A(f"s_lshl_b32 s{T+4}, s{T+2}, 12")
    A(f"s_add_u32 s{T+4}, s{T+4}, s{T+3}")
    A(f"s_add_u32 s{T+4}, s{T+4}, {WS_QA}")
    for i in range(4):
        A(f"buffer_load_dwordx4 {ar(QA_+4*i,4)}, v{V_LANE16}, {sr(SRD_WS,4)}, s{T+4} offen offset:{i*1024} sc1")
    lk, _ = a_loads(0, 0)
    A.emit_list(lk)
    for t in (-4, -3, -2):
        lk, lv = a_loads((t + 5) % 4, (t + 3) % 4)
        A.emit_list(lk)
        if t + 3 >= 0:
            A.emit_list(lv)
    set_srd(A, SRD_B, P_WOA, 448 * 448 * 2)
    A(f"s_lshr_b32 s{S_RFLAG}, s{T+2}, 1")
    A(f"s_lshl_b32 s{S_RFLAG}, s{S_RFLAG}, 8")
    A(f"s_and_b32 s{T+3}, s{T+2}, 1")
    A(f"s_lshl_b32 s{T+3}, s{T+3}, 2")
    A(f"s_add_u32 s{T+3}, s{T+3}, s{T+1}")
    A(f"s_lshl_b32 s{T}, s{T+6}, 3")
    A(f"s_add_u32 s{T+3}, s{T+3}, s{T}")
    A(f"s_lshl_b32 s{T+3}, s{T+3}, 2")
    A(f"s_add_u32 s{S_RFLAG}, s{S_RFLAG}, s{T+3}")
    A(f"s_add_u32 s{S_RFLAG}, s{S_RFLAG}, {F_ROW + 64}")
    A(f"s_lshl_b32 s{T}, s{T+6}, 2")
    A(f"s_add_u32 s{T}, s{T}, 16")
    A(f"s_cmp_eq_u32 s{T+6}, 0")
    A(f"s_cselect_b32 s{T}, 0, s{T}")
    A(f"s_add_u32 s{T}, s{T}, s{T+1}")
    A(f"s_mul_i32 s{S_POFF}, s{T}, {P_SLOT}")
    A(f"s_lshl_b32 s{T+3}, s{T+2}, 2")
    A(f"s_add_u32 s{T+3}, s{T+3}, s{S_WAVE}")
    A(f"s_mul_i32 s{T+3}, s{T+3}, {14*1024}")
    A(f"s_add_u32 s{S_POFF}, s{S_POFF}, s{T+3}")
    A(f"s_add_u32 s{S_POFF}, s{S_POFF}, {WS_P}")
    A(f"s_mul_i32 s{S_WOW}, s{S_WAVE}, {32*896}")
    A(f"s_mov_b32 s{S_MASK}, 0x40004000")
    A(f"s_mov_b32 s{S_FLOOR}, {NEG_INF:#x}")
    A(f"s_mov_b32 s{S_FIRST}, 1")
    for r in range(32):
        A(f"v_mov_b32 v{AC+r}, 0")
        A(f"v_mov_b32 v{AO+r}, 0")
        A(f"v_mov_b32 v{AS[1]+r}, 0")
    for r in range(16):
        A(f"v_mov_b32 v{AP[1]+r}, 0")
    for r in range(8):
        A(f"v_accvgpr_write_b32 a{VA_+3*8+r}, 0")
    A(f"v_bfe_u32 v{V_T}, v0, 3, 1")
    A(f"v_lshlrev_b32 v{V_T}, 10, v{V_T}")
    A(f"v_lshrrev_b32 v{V_T+1}, 5, v0")
    A(f"v_lshl_add_u32 v{V_T}, v{V_T+1}, 8, v{V_T}")
    A(f"v_bfe_u32 v{V_T+1}, v0, 4, 1")
    A(f"v_lshl_add_u32 v{V_T}, v{V_T+1}, 7, v{V_T}")
    A(f"v_and_b32 v{V_T+1}, 7, v0")
    A(f"v_lshl_add_u32 v{V_T}, v{V_T+1}, 4, v{V_T}")
    A(f"s_lshl_b32 s{T+5}, s{S_WAVE}, 12")
    A(f"s_add_u32 s{T+5}, s{T+5}, {XB}")
    A(f"v_add_u32 v{V_XW}, s{T+5}, v{V_T}")
    A(f"v_bfe_u32 v{V_T}, v0, 2, 3")
    A(f"v_bfe_u32 v{V_T+2}, v{V_T}, 1, 2")
    A(f"v_lshrrev_b32 v{V_T+1}, 5, v0")
    A(f"v_lshl_add_u32 v{V_T}, v{V_T+1}, 4, v{V_T}")
    A(f"v_mul_u32_u24 v{V_T}, 896, v{V_T}")
    A(f"v_and_b32 v{V_T+1}, 3, v0")
    A(f"v_lshl_add_u32 v{V_T}, v{V_T+1}, 3, v{V_T}")
    for b in range(4):
        A(f"v_xor_b32 v{V_T+1}, {b}, v{V_T+2}")
        A(f"v_lshl_add_u32 v{V_WOR+b}, v{V_T+1}, 5, v{V_T}")
    A("s_waitcnt vmcnt(10)")
    A("s_barrier")
    signal(A, S_PFLAG, mask_sgpr=S_PMASK)
    stamp(A, cfg, 1)
    A.emit_list(a_qk(0, 0))
    lk, lv = a_loads(0, 2)
    A.emit_list(lv)
    A.emit_list(lk[:2])
    A(f"s_mov_b32 m0, s{S_WOW}")
    A(f"s_add_u32 s{S_WOW}, s{S_WOW}, {8*896}")
    for i in range(7):
        if i == 4:
            A("s_add_u32 m0, m0, 4096")
            A("s_nop 0")
        A(f"buffer_load_dwordx4 v{V_WOD+i}, {sr(SRD_B,4)}, s{S_WOOFF} offen offset:{(i%4)*1024} lds")
    A(f"s_add_u32 s{S_WOOFF}, s{S_WOOFF}, {8*896}")
    A(f"s_call_b64 {sr(S_RET,2)}, LA_RARE0")
    stamp(A, cfg, 2)
    A.label("LA_FLOOP")
    for u in range(4):
        a_iter_fast(A, u, cfg)
    A(f"s_sub_u32 s{S_LEFT}, s{S_LEFT}, 1")
    A(f"s_cmp_gt_u32 s{S_LEFT}, 3")
    A("s_cbranch_scc1 LA_FLOOP")
    A(f"s_cmp_eq_u32 s{S_LEFT}, 0")
    A("s_cbranch_scc1 LA_FFIN")
    A(f"s_mov_b32 m0, s{S_WOW}")
    A(f"s_add_u32 s{S_WOW}, s{S_WOW}, {8*896}")
    for i in range(7):
        if i == 4:
            A("s_add_u32 m0, m0, 4096")
            A("s_nop 0")
        A(f"buffer_load_dwordx4 v{V_WOD+i}, {sr(SRD_B,4)}, s{S_WOOFF} offen offset:{(i%4)*1024} lds")
    A(f"s_add_u32 s{S_WOOFF}, s{S_WOOFF}, {8*896}")
    A("s_branch LA_FLOOP")
    A.label("LA_FFIN")
    A("s_waitcnt vmcnt(12)")
    A.emit_list(a_pv(1, 3))
    A("s_nop 7")
    A("s_nop 7")
    A(f"v_max_f32 v{V_T}, v{AO+12}, v{AO+28}")
    A(f"v_cmp_ngt_f32 vcc, 0.5, v{V_T}")
    A("s_nop 3")
    A("s_cmp_lg_u32 vcc_hi, 0")
    A("s_cbranch_scc1 LA_REDO")
    A.label("LA_EPI")
    stamp(A, cfg, 3)
    A(f"v_cmp_gt_u32 vcc, 32, v0")
    A("s_nop 7")
    A("s_nop 7")
    X = 24
    for qb in range(2):
        o = AO + qb * 16
        A(f"v_mov_b32 v{V_T}, v{o+12}")
        A(f"v_mov_b32 v{X+2*qb+1}, v{o+12}")
        A(f"v_mov_b32 v{X+2*qb}, v{AC+qb*16}")
        A("s_nop 0")
        A(f"v_permlane32_swap_b32 v{V_T}, v{X+2*qb+1}")
    A(f"s_lshl_b32 s{T+5}, s{S_WAVE}, 10")
    A(f"s_add_u32 s{T+5}, s{T+5}, {XB+16384}")
    A(f"v_add_u32 v{V_T}, s{T+5}, v{V_LANE16}")
    A(f"ds_write_b128 v{V_T}, {vr(X,4)}")
    A(f"v_xor_b32 v{V_T+1}, s{S_EV}, v{V_T}")
    A(f"v_xor_b32 v{V_T+2}, s{S_TW}, v{V_T}")
    A(f"v_xor_b32 v{V_T+3}, s{S_TW}, v{V_T+1}")
    A("s_waitcnt lgkmcnt(0)")
    A("s_barrier")
    PR = [100, 104, 108]
    for i in range(3):
        A(f"ds_read_b128 {vr(PR[i],4)}, v{V_T+1+i}")
    A("s_waitcnt lgkmcnt(0)")
    for qb in range(2):
        o = AO + qb * 16
        c1, l1 = X + 2 * qb, X + 2 * qb + 1
        a, b, inv, invh = V_T, V_T + 1, V_T + 2, V_T + 3
        A(f"v_min_f32 v{a}, v{c1}, v{PR[0]+2*qb}")
        A(f"v_min3_f32 v{a}, v{a}, v{PR[1]+2*qb}, v{PR[2]+2*qb}")
        for i in range(3):
            A(f"v_sub_f32 v{PR[i]+2*qb}, v{a}, v{PR[i]+2*qb}")
            A(f"v_exp_f32 v{PR[i]+2*qb}, v{PR[i]+2*qb}")
            A(f"v_mul_f32 v{PR[i]+2*qb+1}, s{S_KAP if i == 0 else S_T2}, v{PR[i]+2*qb+1}")
        A(f"v_sub_f32 v{a}, v{a}, v{c1}")
        A(f"v_exp_f32 v{a}, v{a}")
        A("s_nop 0")
        A(f"v_mul_f32 v{l1}, v{l1}, v{a}")
        for i in range(3):
            A(f"v_fma_f32 v{l1}, v{PR[i]+2*qb}, v{PR[i]+2*qb+1}, v{l1}")
        A(f"v_rcp_f32 v{inv}, v{l1}")
        A("s_nop 0")
        A(f"v_mul_f32 v{inv}, v{inv}, v{a}")
        A(f"v_cndmask_b32 v{invh}, 0, v{inv}, vcc")
        for r in range(16):
            A(f"v_mul_f32 v{o+r}, v{o+r}, v{inv if r < 12 else invh}")
        for g in range(2):
            c = AS[0] + (qb * 2 + g) * 4
            for i in range(4):
                A(f"v_cvt_pk_bf16_f32 v{c+i}, v{o+8*g+2*i}, v{o+8*g+2*i+1}")
            A(f"ds_write_b128 v{V_XW}, {vr(c,4)} offset:{qb*2048+g*512}")
    A("s_waitcnt vmcnt(0) lgkmcnt(0)")
    A("s_barrier")
    A(f"s_lshl_b32 s{T+5}, s{S_WAVE}, 10")
    A(f"s_add_u32 s{T+5}, s{T+5}, {XB}")
    A(f"v_add_u32 v{V_T}, s{T+5}, v{V_LANE16}")
    VB = 96
    for w in range(4):
        A(f"ds_read_b128 {vr(VB+4*w,4)}, v{V_T} offset:{w*4096}")

    def reads(w, half, fset):
        out = []
        for i in range(14):
            b = 14 * half + i
            f = VF + (fset * 14 + i) * 4
            for e in range(2):
                out.append(f"ds_read_b64_tr_b16 {vr(f+2*e,2)}, v{V_WOR+(b&3)} offset:{(b>>2)*128+e*8*896+(w&1)*32*896}")
        return out

    def mf(w, half, fset):
        out = []
        for i in range(14):
            b = 14 * half + i
            f = VF + (fset * 14 + i) * 4
            c = "0" if w == 0 else ar(b * 4, 4)
            out.append(f"v_mfma_f32_16x16x32_bf16 {ar(b*4,4)}, {vr(f,4)}, {vr(VB+4*w,4)}, {c}")
        return out

    seq = [(w, h) for w in range(4) for h in range(2)]
    A.emit_list(reads(0, 0, 0))
    for k, (w, h) in enumerate(seq):
        if k + 1 < len(seq):
            w2, h2 = seq[k + 1]
            if (w2, h2) == (2, 0):
                for b in range(4):
                    A(f"v_add_u32 v{V_WOR+b}, {2*32*896}, v{V_WOR+b}")
            rd = reads(w2, h2, (k + 1) % 2)
            A.emit_list(rd[:14])
            A("s_waitcnt lgkmcnt(14)")
            A.emit_list(interleave(mf(w, h, k % 2), [(i, [r]) for i, r in enumerate(rd[14:])]))
        else:
            A("s_waitcnt lgkmcnt(0)")
            A.emit_list(mf(w, h, k % 2))
    store_partials(A, 1, cfg)


def a_redo(A, cfg):
    T = S_TMP
    A.label("LA_REDO")
    A("s_waitcnt vmcnt(0)")
    A(f"s_lshr_b32 s{S_LEFT}, 16, s{S_N}")
    A(f"s_lshr_b32 s{T+5}, {64*2048}, s{S_N}")
    A(f"s_sub_u32 s{T+5}, s{T+5}, 2048")
    A(f"s_sub_u32 s{S_KOFF}, s{S_KLIM}, s{T+5}")
    A(f"s_sub_u32 s{S_VOFF}, s{S_VLIM}, s{T+5}")
    lk, _ = a_loads(0, 0)
    A.emit_list(lk)
    for t in (-4, -3, -2):
        lk, lv = a_loads((t + 5) % 4, (t + 3) % 4)
        A.emit_list(lk)
        if t + 3 >= 0:
            A.emit_list(lv)
    A(f"s_mov_b32 s{S_FLOOR}, {NEG_INF:#x}")
    A(f"s_mov_b32 s{S_FIRST}, 1")
    for r in range(32):
        A(f"v_mov_b32 v{AC+r}, 0")
        A(f"v_mov_b32 v{AO+r}, 0")
        A(f"v_mov_b32 v{AS[1]+r}, 0")
    for r in range(16):
        A(f"v_mov_b32 v{AP[1]+r}, 0")
    for r in range(8):
        A(f"v_accvgpr_write_b32 a{VA_+3*8+r}, 0")
    A("s_waitcnt vmcnt(10)")
    A.emit_list(a_qk(0, 0))
    lk, lv = a_loads(0, 2)
    A.emit_list(lk)
    A.emit_list(lv)
    A(f"s_call_b64 {sr(S_RET,2)}, LA_RARE0")
    A.label("LA_LOOP")
    for u in range(4):
        a_iter(A, u, cfg)
    A(f"s_sub_u32 s{S_LEFT}, s{S_LEFT}, 1")
    A(f"s_cmp_lg_u32 s{S_LEFT}, 0")
    A("s_cbranch_scc1 LA_LOOP")
    A("s_waitcnt vmcnt(12)")
    A.emit_list(a_pv(1, 3))
    A("s_branch LA_EPI")


def r_block(A, ev, R, blk, tmp, cfg):
    RC = cfg.get("rc", 1)
    A(f"s_lshl_b32 s{R}, s{ev}, 3")
    A(f"s_and_b32 s{blk}, s2, 7")
    A(f"s_add_u32 s{R}, s{R}, s{blk}")
    A(f"s_mul_i32 s{blk}, s{R}, {2341*RC}")
    A(f"s_lshr_b32 s{blk}, s{blk}, 16")
    A(f"s_lshr_b32 s{tmp}, s{blk}, 1")
    A(f"s_and_b32 s{blk}, s{blk}, 1")
    A(f"s_lshl_b32 s{blk}, s{blk}, 3")
    A(f"s_add_u32 s{blk}, s{blk}, s{tmp}")


def r_item(A, cfg):
    T = S_TMP
    NF, NH, NQ, NA = a_counts(cfg)
    stamp(A, cfg, 0)
    A(f"s_lshl_b32 s{T}, s{S_EV}, 3")
    A(f"s_and_b32 s{T+1}, s2, 7")
    A(f"s_add_u32 s{T}, s{T}, s{T+1}")
    RC = cfg.get("rc", 1)
    per = 28 // RC
    A(f"s_mul_i32 s{T+1}, s{T}, {2341*RC}")
    A(f"s_lshr_b32 s{T+1}, s{T+1}, 16")
    A(f"s_mul_i32 s{T+2}, s{T+1}, {per}")
    A(f"s_sub_u32 s{T+2}, s{T}, s{T+2}")
    A(f"s_lshr_b32 s{T+3}, s{T+1}, 1")
    A(f"s_and_b32 s{T+1}, s{T+1}, 1")
    A(f"s_lshl_b32 s{T+1}, s{T+1}, 3")
    A(f"s_add_u32 s{T+1}, s{T+1}, s{T+3}")
    lpre, lgo = A.newlabel("LRP"), A.newlabel("LRP")
    A(f"s_cmp_eq_u32 s{S_FIRST}, 1")
    A(f"s_cbranch_scc1 {lpre}")
    poll_issue(A, T + 1, F_ROW, 48)
    A(f"s_branch {lgo}")
    A.label(lpre)
    A(f"s_mov_b32 s{S_PADDR}, s{S_FLOOR}")
    A(f"v_mov_b32 v{V_POLL}, v{V_SIG}")
    A.label(lgo)
    A(f"s_mul_i32 s{T+3}, s{T+2}, 37")
    A(f"s_lshr_b32 s{T+3}, s{T+3}, 8")
    A(f"s_mul_i32 s{T+4}, s{T+3}, 7")
    A(f"s_sub_u32 s{T+2}, s{T+2}, s{T+4}")
    A(f"s_lshl_b32 s{T+2}, s{T+2}, 1")
    A(f"s_lshl_b32 s{T+1}, s{T+1}, 3")
    if RC == 1:
        A(f"s_and_b32 s{T+4}, s{S_WAVE}, 1")
        A(f"s_add_u32 s{T+2}, s{T+2}, s{T+4}")
        A(f"s_lshl_b32 s{T+3}, s{T+3}, 1")
        A(f"s_add_u32 s{T+1}, s{T+1}, s{T+3}")
        A(f"s_lshr_b32 s{T+3}, s{S_WAVE}, 1")
        A(f"s_add_u32 s{T+1}, s{T+1}, s{T+3}")
    else:
        A(f"s_lshl_b32 s{T+3}, s{T+3}, 2")
        A(f"s_add_u32 s{T+1}, s{T+1}, s{T+3}")
        A(f"s_add_u32 s{T+1}, s{T+1}, s{S_WAVE}")
    A(f"s_mul_i32 s{S_KOFF}, s{T+1}, {14*1024}")
    A(f"s_lshl_b32 s{T+3}, s{T+2}, 10")
    A(f"s_add_u32 s{S_KOFF}, s{S_KOFF}, s{T+3}")
    A(f"s_add_u32 s{S_KOFF}, s{S_KOFF}, {WS_P}")
    A(f"s_lshl_b32 s{S_VOFF}, s{T+1}, 6")
    A(f"s_add_u32 s{S_VOFF}, s{S_VOFF}, {WS_G}")
    A(f"s_mul_i32 s{S_KLIM}, s{T+1}, {16*896}")
    A(f"s_lshl_b32 s{T+3}, s{T+2}, 6")
    A(f"s_add_u32 s{S_KLIM}, s{S_KLIM}, s{T+3}")
    A(f"s_bfe_u32 s{T+3}, s{T+1}, 0x40002")
    set_srd(A, SRD_B, P_OUT, 2048 * 448 * 2)
    A(f"v_and_b32 v{V_T}, 15, v0")
    A(f"v_lshrrev_b32 v{V_T+1}, 4, v0")
    A(f"v_lshlrev_b32 v{V_T+2}, 2, v{V_T}")
    A(f"v_mul_u32_u24 v{V_T+3}, 896, v{V_T}")
    A(f"v_lshl_add_u32 v{V_T+3}, v{V_T+1}, 3, v{V_T+3}")
    A(f"s_mov_b32 s{S_SC}, 0x00003f80")
    A(f"s_mov_b32 s{S_SC+1}, 0x3f800000")
    PB = 96
    NS = 32 if NQ else (24 if NH else 20)
    DONE, NEW, MSK = S_N, S_B0 - 1, S_RET
    A(f"s_bfe_u32 s{T+4}, s{T+1}, 0x10002")
    A(f"s_lshl_b32 s{T+4}, s{T+4}, 2")
    A(f"s_mov_b64 {sr(DONE,2)}, 0")
    A(f"s_mov_b32 s{T+5}, 0x0f0f0f00")
    A(f"s_cmp_ge_u32 s{T+3}, {NF}")
    A(f"s_cselect_b32 s{T+5}, 0x0f0f0000, s{T+5}")
    A(f"s_cmp_ge_u32 s{T+3}, {NF + NH}")
    A(f"s_cselect_b32 s{DONE+1}, 0, s{T+5}")
    A(f"s_mov_b32 s{S_SPIN}, {SPIN_MAX}")
    lloop, lfin, laft = A.newlabel("LRL"), A.newlabel("LRF"), A.newlabel("LRA")
    A(f"s_cmp_eq_u32 s{S_FIRST}, 1")
    A(f"s_cbranch_scc1 {laft}")
    A.label(lloop)
    A("s_waitcnt vmcnt(0)")
    A.label(laft)
    A(f"v_cmp_eq_u32 vcc, 1, v{V_POLL}")
    A("s_nop 3")
    A(f"s_and_b32 s{MSK}, vcc_lo, 0xffff")
    A(f"s_lshr_b64 {sr(NEW,2)}, vcc, 16")
    A(f"s_lshr_b32 s{NEW}, s{NEW}, s{T+4}")
    A(f"s_and_b32 s{MSK+1}, s{NEW}, 0x0f0f0f0f")
    lskipld, ldo = A.newlabel("LRK"), A.newlabel("LRD")
    A(f"s_or_b64 {sr(NEW,2)}, {sr(DONE,2)}, {sr(MSK,2)}")
    A(f"s_cmp_eq_u32 s{NEW}, 0xffff")
    A(f"s_cselect_b32 s{T+5}, s{NEW+1}, 0")
    A(f"s_cmp_eq_u32 s{T+5}, 0x0f0f0f0f")
    A(f"s_cbranch_scc1 {ldo}")
    A(f"s_and_b32 s{T+5}, s{S_SPIN}, {cfg.get('r_every', 65535)}")
    A(f"s_cbranch_scc1 {lskipld}")
    A.label(ldo)
    A(f"s_andn2_b64 {sr(NEW,2)}, {sr(MSK,2)}, {sr(DONE,2)}")
    A(f"s_or_b64 {sr(DONE,2)}, {sr(DONE,2)}, {sr(MSK,2)}")
    for sl in range(NS):
        if 4 <= sl < 20:
            reg, bit = NEW, sl - 4
        else:
            hp = 0 if sl < 4 else (sl - 16) // 4
            reg, bit = NEW + 1, hp * 8 + (sl % 4)
        ln = A.newlabel("LRS")
        A(f"s_bitcmp1_b32 s{reg}, {bit}")
        A(f"s_cbranch_scc0 {ln}")
        A(f"s_add_u32 s{T+5}, s{S_KOFF}, {sl*P_SLOT}")
        A(f"buffer_load_dwordx4 {vr(PB+sl*4,4)}, v{V_LANE16}, {sr(SRD_WS,4)}, s{T+5} offen sc1")
        if RC == 2:
            A(f"buffer_load_dwordx4 {ar(sl*4,4)}, v{V_LANE16}, {sr(SRD_WS,4)}, s{T+5} offen offset:1024 sc1")
        A.label(ln)
    A(f"s_cmp_eq_u32 s{DONE}, 0xffff")
    A(f"s_cselect_b32 s{T+5}, s{DONE+1}, 0")
    A(f"s_cmp_eq_u32 s{T+5}, 0x0f0f0f0f")
    A(f"s_cbranch_scc1 {lfin}")
    A.label(lskipld)
    A(f"s_sub_u32 s{S_SPIN}, s{S_SPIN}, 1")
    A(f"s_cmp_eq_u32 s{S_SPIN}, 0")
    A(f"s_cbranch_scc1 {lfin}")
    A(f"s_sleep {cfg.get('r_sleep', 6)}")
    A(f"buffer_load_dword v{V_POLL}, v{V_POLL+1}, {sr(SRD_WS,4)}, s{S_PADDR} offen sc1")
    A(f"s_branch {lloop}")
    A.label(lfin)
    stamp(A, cfg, 1)
    A(f"buffer_load_dword v{V_T+4}, v{V_T+2}, {sr(SRD_WS,4)}, s{S_VOFF} offen sc1")
    n3 = cfg.get("rn3", 16)
    A(f"s_cmp_lt_u32 s{S_EV}, {n3}")
    A(f"s_cselect_b32 s{T}, {n3}, {56 - 2*n3}")
    A(f"s_add_u32 s{S_LEFT}, s{S_EV}, s{T}")
    A(f"s_min_u32 s{T+4}, s{S_LEFT}, 55")
    r_block(A, T + 4, T, T + 1, T + 2, cfg)
    A(f"s_lshl_b32 s{S_FLOOR}, s{T+1}, 8")
    A(f"s_add_u32 s{S_FLOOR}, s{S_FLOOR}, {F_ROW}")
    A(f"buffer_load_dword v{V_SIG}, v{V_POLL+1}, {sr(SRD_WS,4)}, s{S_FLOOR} offen sc1")
    A(f"s_mov_b32 s{S_FIRST}, 1")
    A("s_waitcnt vmcnt(0)")
    g, g1, t = V_T + 4, V_T + 5, V_T + 6
    A(f"v_sub_f32 v{g1}, 1.0, v{g}")
    A(f"v_cvt_pk_bf16_f32 v{g1}, v{g1}, v{g1}")
    A(f"v_lshlrev_b32 v{g1}, 16, v{g1}")
    for c in range(RC):
        aa, ab = 64, 72
        lsum = A.newlabel("LRU")
        for sl in range(NS):
            first = sl in (0, 4)
            if sl in (20, 24):
                A(f"s_cmp_lt_u32 s{T+3}, {NF if sl == 20 else NF + NH}")
                A(f"s_cbranch_scc1 {lsum}")
            acc_ = ab if 4 <= sl < 20 else aa
            if c == 1:
                for i in range(4):
                    A(f"v_accvgpr_read_b32 v{PB+sl*4+i}, a{sl*4+i}")
            for i in range(4):
                r = PB + sl * 4 + i
                A(f"v_dot2_f32_bf16 v{acc_+2*i}, v{r}, s{S_SC}, {'0' if first else 'v%d' % (acc_+2*i)}")
                A(f"v_dot2_f32_bf16 v{acc_+2*i+1}, v{r}, s{S_SC+1}, {'0' if first else 'v%d' % (acc_+2*i+1)}")
        A.label(lsum)
        A("s_nop 3")
        o = 48 + 4 * c
        for i in range(4):
            for acc_, gg in ((aa, g), (ab, g1)):
                a = acc_ + 2 * i
                A(f"v_cvt_pk_bf16_f32 v{t}, v{a}, v{a+1}")
                A(f"v_lshlrev_b32 v{a}, 16, v{t}")
                A(f"v_and_b32 v{a+1}, 0xffff0000, v{t}")
                A(f"v_mul_f32 v{a}, v{gg}, v{a}")
                A(f"v_mul_f32 v{a+1}, v{gg}, v{a+1}")
                A(f"v_cvt_pk_bf16_f32 v{t}, v{a}, v{a+1}")
                A(f"v_lshlrev_b32 v{a}, 16, v{t}")
                A(f"v_and_b32 v{a+1}, 0xffff0000, v{t}")
            A(f"v_add_f32 v{aa+2*i}, v{aa+2*i}, v{ab+2*i}")
            A(f"v_add_f32 v{aa+2*i+1}, v{aa+2*i+1}, v{ab+2*i+1}")
            A(f"v_cvt_pk_bf16_f32 v{o+i}, v{aa+2*i}, v{aa+2*i+1}")
        A(f"buffer_store_dwordx2 {vr(o,2)}, v{V_T+3}, {sr(SRD_B,4)}, s{S_KLIM} offen offset:{c*64}")
        A(f"buffer_store_dwordx2 {vr(o+2,2)}, v{V_T+3}, {sr(SRD_B,4)}, s{S_KLIM} offen offset:{c*64+32}")


def launch_line(cfg=None):
    return f"; @launch kernel=mega_kernel grid=(256,1,1) block=(256,1,1) lds={LDS_TOTAL}"


def gen_mega(A, name="mega_kernel", cfg=None):
    cfg = cfg or {}
    global KVFL, A_DELAY
    A_DELAY = cfg.get("a_delay", 3)
    KVFL = cfg.get("kvfl", "sc1")
    T = S_TMP
    G = V_G
    A.raw(kernel_header(name))
    A(f"s_load_dwordx16 {sr(4,16)}, s[0:1], 0")
    A(f"s_load_dwordx8 {sr(20,8)}, s[0:1], 64")
    A(f"s_load_dwordx2 {sr(P_WS,2)}, s[0:1], 96")
    A(f"s_load_dwordx2 {sr(P_WOA,2)}, s[0:1], 16")
    if cfg.get("diag"):
        for i in range(14):
            A(f"s_mov_b32 s{S_STAMP+i}, 0")
    stamp(A, cfg, 0)
    A("s_cmp_ge_u32 s2, 256")
    A("s_cbranch_scc1 LM_END")
    if cfg.get("warm0", 1):
        lw0 = A.newlabel("LW0")
        A(f"s_cmp_ge_u32 s2, {8*cfg.get('warm0', 1)}")
        A(f"s_cbranch_scc1 {lw0}")
        A(f"s_getpc_b64 {sr(SRD_WS,2)}")
        A(f"s_mov_b32 s{SRD_WS+2}, LP_START-{name}")
        A(f"s_mov_b32 s{SRD_WS+3}, 0x20000")
        A(f"v_lshlrev_b32 v{G+8}, {cfg.get('warm_sh', 7)}, v0")
        A(f"s_lshr_b32 s{T}, s2, 3")
        A(f"s_lshl_b32 s{T}, s{T}, {8 + cfg.get('warm_sh', 7)}")
        A(f"buffer_load_dword v{G+9}, v{G+8}, {sr(SRD_WS,4)}, s{T} offen")
        A.label(lw0)
    A(f"v_lshrrev_b32 v{G}, 6, v0")
    A("v_and_b32 v0, 63, v0")
    A(f"v_readfirstlane_b32 s{S_WAVE}, v{G}")
    A(f"v_lshlrev_b32 v{V_LANE16}, 4, v0")
    A(f"s_and_b32 s{T}, s2, 7")
    A(f"s_bfe_u32 s{T+1}, s2, 0x10005")
    A(f"s_lshl_b32 s{T+1}, s{T+1}, 3")
    A(f"s_add_u32 s{T}, s{T}, s{T+1}")
    A(f"s_lshr_b32 s{T+1}, s2, 7")
    A(f"s_lshl_b32 s{T+1}, s{T+1}, 4")
    A(f"s_add_u32 s{T}, s{T}, s{T+1}")
    A(f"s_bfe_u32 s{S_GRP}, s2, 0x10006")
    A(f"s_bfe_u32 s{T+1}, s2, 0x20003")
    A(f"s_lshl_b32 s{T+2}, s{S_GRP}, 2")
    A(f"s_add_u32 s{T+1}, s{T+1}, s{T+2}")
    A(f"s_lshr_b32 s{T+2}, s{S_WAVE}, 1")
    A(f"s_and_b32 s{T+3}, s{S_WAVE}, 1")
    A(f"s_and_b32 s{S_GHEAD}, s{T}, 15")
    A(f"s_lshr_b32 s{S_TYPE}, s{T}, 4")
    A(f"s_lshl_b32 s{T+5}, s{T+2}, 4")
    A(f"s_add_u32 s{T+5}, s{T+5}, s{T+3}")
    A(f"s_lshl_b32 s{S_XWAVE}, s{T+5}, 10")
    A(f"s_add_u32 s{S_XWAVE}, s{S_XWAVE}, {LDS_X0}")
    A(f"s_mov_b32 s{S_XWR}, s{S_XWAVE}")
    A(f"s_lshl_b32 s{T+5}, s{T+5}, 3")
    A(f"s_lshl_b32 s{T+6}, s{T+1}, 8")
    A(f"s_add_u32 s{T+6}, s{T+6}, s{T+5}")
    A(f"s_lshl_b32 s{S_XOFF}, s{T+6}, 11")
    A(f"s_mov_b32 s{S_XSTA}, {16*2048}")
    A(f"s_mov_b32 s{S_XSTB}, {16*2048}")
    A(f"s_mov_b32 s{S_XWRAP}, {(128-112*2048) & 0xffffffff}")
    A(f"s_lshl_b32 s{T+7}, s{T+2}, 2")
    A(f"s_add_u32 s{T+7}, s{T+7}, s{T+3}")
    A(f"s_lshl_b32 s{S_WWR}, s{T+7}, 10")
    A(f"s_lshl_b32 s{S_WOFF}, s{T+7}, 14")
    A(f"s_lshl_b32 s{T+6}, s{S_GHEAD}, 9")
    A(f"s_add_u32 s{S_WOFF}, s{S_WOFF}, s{T+6}")
    A(f"v_lshrrev_b32 v{G}, 4, v0")
    A(f"s_lshl_b32 s{T+6}, s{T+3}, 2")
    A(f"v_add_u32 v{G+6}, s{T+6}, v{G}")
    A(f"v_and_b32 v{G+1}, 7, v0")
    A(f"v_xor_b32 v{G}, v{G+6}, v{G+1}")
    A(f"v_lshlrev_b32 v{G}, 4, v{G}")
    A(f"v_lshrrev_b32 v{G+1}, 3, v0")
    A(f"v_lshl_add_u32 v{V_DX}, v{G+1}, 11, v{G}")
    A(f"v_mul_u32_u24 v{G+2}, 896, v{G+1}")
    A(f"v_add_u32 v{V_DX2}, v{G+2}, v{G}")
    A(f"v_lshrrev_b32 v{G}, 5, v0")
    A(f"s_lshl_b32 s{T+6}, s{T+3}, 1")
    A(f"s_lshl_b32 s{T+5}, s{T+2}, 2")
    A(f"s_add_u32 s{T+6}, s{T+6}, s{T+5}")
    A(f"v_add_u32 v{G+1}, s{T+6}, v{G}")
    A(f"v_bfe_u32 v{G+2}, v0, 1, 4")
    A(f"v_xor_b32 v{G+2}, v{G+2}, v{G+1}")
    A(f"v_and_b32 v{G+3}, 1, v0")
    A(f"v_lshl_add_u32 v{G+2}, v{G+2}, 1, v{G+3}")
    A(f"v_lshlrev_b32 v{G+3}, 4, v{G+2}")
    A(f"v_lshl_add_u32 v{V_DW}, v{G}, 13, v{G+3}")
    A("s_waitcnt lgkmcnt(0)")
    set_srd(A, SRD_A, P_CKV, 2048 * 1024 * 2)
    A(f"s_cmp_eq_u32 s{S_TYPE}, 0")
    A(f"s_cselect_b32 s{SRD_B}, s{P_WUK}, s{P_WUV}")
    A(f"s_cselect_b32 s{SRD_B+1}, s{P_WUK+1}, s{P_WUV+1}")
    A(f"s_mov_b32 s{SRD_B+2}, {1024*4096*2}")
    A(f"s_mov_b32 s{SRD_B+3}, 0x20000")
    emit_chain(A, dma_x())
    emit_chain(A, dma_w())
    A(f"s_and_b32 s{S_HEAD}, s2, 15")
    A(f"s_lshr_b32 s{T}, s2, 4")
    A(f"s_sub_u32 s{S_QB}, 15, s{T}")
    A(f"s_lshl_b32 s{T+4}, s{S_QB}, 7")
    A(f"s_lshl_b32 s{T+5}, s{S_HEAD}, 3")
    A(f"s_add_u32 s{T+4}, s{T+4}, s{T+5}")
    A(f"s_lshl_b32 s{T+5}, s{S_WAVE}, 1")
    A(f"s_add_u32 s{S_PHASE}, s{T+4}, s{T+5}")
    A(f"s_mul_i32 s{T+4}, s{S_PHASE}, 896")
    A(f"v_and_b32 v{V_CV}, 31, v0")
    A(f"v_lshlrev_b32 v{V_CV+1}, 5, v{V_CV}")
    A(f"v_mov_b32 v{V_CV+3}, 0x40000000")
    A(f"v_cmp_gt_u32 vcc, 28, v{V_CV}")
    A(f"v_lshrrev_b32 v{V_CV+2}, 5, v0")
    A("s_nop 0")
    A(f"v_cndmask_b32 v{V_CV+1}, v{V_CV+3}, v{V_CV+1}, vcc")
    A(f"v_mul_u32_u24 v{V_CV+2}, 896, v{V_CV+2}")
    A(f"v_add_u32 v{V_CV+2}, v{V_CV+2}, v{V_CV+1}")
    set_srd(A, SRD_WS, P_X, 2048 * 448 * 2)
    set_srd(A, SRD_DBG, P_GATE, 448 * 2)
    A(f"buffer_load_dwordx4 {vr(192,4)}, v{V_CV+2}, {sr(SRD_WS,4)}, s{T+4} offen")
    A(f"buffer_load_dwordx4 {vr(196,4)}, v{V_CV+2}, {sr(SRD_WS,4)}, s{T+4} offen offset:16")
    A(f"buffer_load_dwordx4 {vr(200,4)}, v{V_CV+1}, {sr(SRD_DBG,4)}, 0 offen")
    A(f"buffer_load_dwordx4 {vr(204,4)}, v{V_CV+1}, {sr(SRD_DBG,4)}, 0 offen offset:16")
    emit_chain(A, dma_x())
    emit_chain(A, dma_w())
    set_srd(A, SRD_WS, P_WS, WS_SIZE)
    set_srd(A, SRD_DBG, P_DBG, 256)
    set_srd(A, SRD_E, P_WS, WS_SIZE)
    A(f"s_cmp_eq_u32 s{S_GRP}, 0")
    A(f"s_cselect_b32 s{SRD_E+2}, s{SRD_E+2}, 0")
    li = A.newlabel("LM")
    A(f"v_lshlrev_b32 v{V_SIG+1}, 2, v0")
    A(f"v_mov_b32 v{V_SIG}, 0")
    A(f"s_cmp_lg_u32 s{S_WAVE}, 0")
    A(f"s_cbranch_scc1 {li}")
    A(f"s_lshl_b32 s{T+6}, s2, 6")
    A(f"s_add_u32 s{T+6}, s{T+6}, {WS_F}")
    A("s_mov_b64 exec, 0xffff")
    A(f"buffer_store_dword v{V_SIG}, v{V_SIG+1}, {sr(SRD_WS,4)}, s{T+6} offen sc1")
    A("s_mov_b64 exec, -1")
    A.label(li)
    A(f"s_lshl_b32 s{S_OB}, s{S_GHEAD}, 20")
    A(f"s_lshl_b32 s{T+6}, s{T+1}, 17")
    A(f"s_add_u32 s{S_OB}, s{S_OB}, s{T+6}")
    A(f"s_lshl_b32 s{T+6}, s{T+2}, 16")
    A(f"s_add_u32 s{S_OB}, s{S_OB}, s{T+6}")
    A(f"s_add_u32 s{T+6}, s{S_TYPE}, 12")
    A(f"s_lshl_b32 s{T+6}, s{T+3}, s{T+6}")
    A(f"s_add_u32 s{S_OB}, s{S_OB}, s{T+6}")
    A(f"s_lshl_b32 s{T+6}, s{S_TYPE}, 24")
    A(f"s_add_u32 s{S_OB}, s{S_OB}, s{T+6}")
    A(f"s_mov_b32 s{T+6}, 8192")
    A(f"s_cmp_eq_u32 s{S_TYPE}, 0")
    A(f"s_cselect_b32 s{S_OSTA}, s{T+6}, 4096")
    A(f"s_cselect_b32 s{S_OSTB}, s{T+6}, 12288")
    A(f"s_lshl_b32 s{S_GHEAD}, s{S_GHEAD}, 8")
    A(f"s_lshl_b32 s{T+6}, s{S_GRP}, 12")
    A(f"s_add_u32 s{S_GHEAD}, s{S_GHEAD}, s{T+6}")
    A(f"s_lshl_b32 s{T+6}, s{S_TYPE}, 4")
    A(f"s_add_u32 s{S_GHEAD}, s{S_GHEAD}, s{T+6}")
    A(f"s_and_b32 s{T+6}, s{T+1}, 3")
    A(f"s_lshl_b32 s{T+6}, s{T+6}, 2")
    A(f"s_add_u32 s{S_GHEAD}, s{S_GHEAD}, s{T+6}")
    A(f"s_add_u32 s{S_GHEAD}, s{S_GHEAD}, {F_KV}")
    A(f"s_and_b32 s{S_HEAD}, s2, 15")
    A(f"s_lshr_b32 s{T}, s2, 4")
    A(f"s_sub_u32 s{S_QB}, 15, s{T}")
    A(f"s_lshl_b32 s{S_WOFF2}, s{T+7}, 14")
    A(f"s_lshl_b32 s{T+6}, s{S_HEAD}, 9")
    A(f"s_add_u32 s{S_WOFF2}, s{S_WOFF2}, s{T+6}")
    A(f"s_lshl_b32 s{T+5}, s{S_QB}, 7")
    A(f"s_lshl_b32 s{T+6}, s{T+3}, 3")
    A(f"s_add_u32 s{T+5}, s{T+5}, s{T+6}")
    A(f"s_mul_i32 s{T+5}, s{T+5}, 896")
    A(f"s_mul_i32 s{T+6}, s{T+3}, {8*2688}")
    A(f"s_mul_i32 s{T+4}, s{S_HEAD}, 56")
    A(f"s_add_u32 s{T+6}, s{T+6}, s{T+4}")
    A(f"s_cmp_eq_u32 s{T+2}, 0")
    A(f"s_cselect_b32 s{S_XOFF2}, s{T+5}, s{T+6}")
    A(f"s_cselect_b32 s{S_X2LO}, s{P_X}, s{P_WQKV}")
    A(f"s_cselect_b32 s{S_X2HI}, s{P_X+1}, s{P_WQKV+1}")
    A(f"s_mov_b32 s{T+5}, {2048*448*2}")
    A(f"s_cselect_b32 s{S_X2N}, s{T+5}, {448*1344*2}")
    A(f"s_mov_b32 s{T+5}, {16*896}")
    A(f"s_cselect_b32 s{S_XSTA2}, s{T+5}, {4*2688}")
    A(f"s_cselect_b32 s{S_XSTB2}, s{T+5}, {12*2688}")
    A(f"s_mov_b32 s{T+5}, {(128-112*896) & 0xffffffff}")
    A(f"s_cselect_b32 s{S_XWRAP2}, s{T+5}, {12*2688}")
    lskip = A.newlabel("LM")
    A(f"s_cbranch_scc1 {lskip}")
    A(f"v_bfe_u32 v{G}, v0, 1, 3")
    A(f"v_xor_b32 v{G}, v{G}, v{G+6}")
    A(f"v_and_b32 v{G+1}, 1, v0")
    A(f"v_lshl_add_u32 v{G}, v{G}, 1, v{G+1}")
    A(f"v_lshrrev_b32 v{G+1}, 2, v{G}")
    A(f"v_and_b32 v{G}, 3, v{G}")
    A(f"v_lshlrev_b32 v{G}, 4, v{G}")
    A(f"v_mul_u32_u24 v{G+2}, 896, v{G+1}")
    A(f"v_add_u32 v{G}, v{G}, v{G+2}")
    A(f"v_lshrrev_b32 v{G+2}, 4, v0")
    A(f"v_mul_u32_u24 v{G+2}, 2688, v{G+2}")
    A(f"v_add_u32 v{G}, v{G}, v{G+2}")
    A(f"v_mov_b32 v{G+2}, 0x40000000")
    A(f"v_cmp_gt_u32 vcc, 3, v{G+1}")
    A("s_nop 1")
    A(f"v_cndmask_b32 v{V_DX2}, v{G+2}, v{G}, vcc")
    A.label(lskip)
    A(f"s_lshl_b32 s{S_OBQK}, s{S_HEAD}, 17")
    A(f"s_lshl_b32 s{T+5}, s{S_QB}, 13")
    A(f"s_add_u32 s{S_OBQK}, s{S_OBQK}, s{T+5}")
    A(f"s_lshl_b32 s{T+5}, s{T+2}, 12")
    A(f"s_add_u32 s{S_OBQK}, s{S_OBQK}, s{T+5}")
    A(f"s_lshl_b32 s{T+5}, s{T+3}, 8")
    A(f"s_add_u32 s{S_OBV}, s{S_OBQK}, s{T+5}")
    A(f"s_add_u32 s{S_OBV}, s{S_OBV}, {WS_VA}")
    A(f"s_lshl_b32 s{T+5}, s{T+3}, 21")
    A(f"s_add_u32 s{S_OBQK}, s{S_OBQK}, s{T+5}")
    A(f"s_add_u32 s{S_OBQK}, s{S_OBQK}, {WS_QA}")
    A(f"s_cmp_eq_u32 s{T+3}, 0")
    A(f"s_cselect_b32 s{S_SCA}, {f32bits(SCALE_A):#x}, 1.0")
    A(f"v_and_b32 v{G}, 15, v0")
    A(f"v_lshrrev_b32 v{G+1}, 4, v0")
    A(f"v_lshrrev_b32 v{G+2}, 1, v{G}")
    A(f"v_xor_b32 v{G+2}, v{G+2}, v{G+1}")
    A(f"v_lshlrev_b32 v{G+2}, 4, v{G+2}")
    A(f"v_lshl_add_u32 v{G+2}, v{G}, 7, v{G+2}")
    A(f"s_lshl_b32 s{T+5}, s{T+2}, 14")
    A(f"v_add_u32 v{V_XL0}, s{T+5}, v{G+2}")
    A(f"v_xor_b32 v{V_XL1}, 64, v{V_XL0}")
    A(f"s_lshl_b32 s{T+5}, s{T+2}, 13")
    A(f"v_add_u32 v{V_PXL}, s{T+5}, v{G+2}")
    A(f"v_xor_b32 v{V_PXL+1}, 64, v{V_PXL}")
    A(f"v_add_u32 v{V_XR0}, {LDS_X0}, v{V_XL0}")
    A(f"v_add_u32 v{V_XR1}, {LDS_X0}, v{V_XL1}")
    A(f"s_mov_b32 s{S_XRD}, {LDS_X0+32768}")
    A(f"v_bfe_u32 v{G+2}, v0, 2, 2")
    A(f"v_lshl_add_u32 v{G+3}, v{G+1}, 3, v{G+2}")
    A(f"v_lshlrev_b32 v{G+3}, 9, v{G+3}")
    A(f"v_bfe_u32 v{G+4}, v0, 2, 3")
    A(f"v_lshl_add_u32 v{G+3}, v{G+4}, 5, v{G+3}")
    A(f"v_and_b32 v{G+5}, 3, v0")
    A(f"v_lshl_add_u32 v{G+3}, v{G+5}, 3, v{G+3}")
    A(f"s_lshl_b32 s{T+5}, s{T+3}, 8")
    A(f"v_add_u32 v{V_WR}, s{T+5}, v{G+3}")
    for b in range(1, 8):
        A(f"v_xor_b32 v{V_WR+b}, {b*32}, v{V_WR}")
    A(f"v_lshrrev_b32 v{G+3}, 5, v0")
    A(f"v_lshl_add_u32 v{G+3}, v{G+3}, 4, v{G+4}")
    A(f"v_lshlrev_b32 v{G+3}, 8, v{G+3}")
    A(f"v_lshl_add_u32 v{G+3}, v{G+4}, 5, v{G+3}")
    A(f"v_lshl_add_u32 v{G+3}, v{G+5}, 3, v{G+3}")
    A(f"v_add_u32 v{G+3}, 16384, v{G+3}")
    A(f"s_lshl_b32 s{T+5}, s{T+3}, 6")
    A(f"v_xor_b32 v{V_PWL}, s{T+5}, v{G+3}")
    A(f"v_xor_b32 v{V_PWL+1}, 32, v{V_PWL}")
    A(f"s_lshl_b32 s{T+5}, s{T+3}, 5")
    A(f"s_add_u32 s{T+5}, s{T+5}, 128")
    A(f"v_xor_b32 v{V_PWL+2}, s{T+5}, v{G+3}")
    A(f"v_lshlrev_b32 v{G+2}, 9, v{G+1}")
    A(f"v_bfe_u32 v{G+3}, v0, 3, 1")
    A(f"v_lshl_add_u32 v{G+4}, v{G+3}, 8, v{G+2}")
    A(f"v_and_b32 v{G+3}, 7, v0")
    A(f"v_lshl_add_u32 v{V_OA}, v{G+3}, 4, v{G+4}")
    A(f"v_lshl_add_u32 v{V_OAV}, v{G}, 4, v{G+2}")
    A(f"v_mov_b32 v{V_SCHI}, s{S_SCA}")
    A(f"v_cmp_gt_u32 vcc, 3, v{G+1}")
    A("s_nop 1")
    A(f"v_cndmask_b32 v{V_SCHI}, 0, v{V_SCHI}, vcc")
    A(f"s_lshl_b32 s{T+5}, s{T+3}, 4")
    A(f"v_add_u32 v{G+2}, s{T+5}, v{G}")
    A(f"v_cmp_gt_u32 vcc, 28, v{G+2}")
    A("s_nop 1")
    A(f"v_cndmask_b32 v{V_MULHI}, 0, 1.0, vcc")
    A(f"v_cmp_eq_u32 vcc, 28, v{G+2}")
    A("s_nop 1")
    A(f"v_cndmask_b32 v{V_ADDHI}, 0, 1.0, vcc")
    A(f"s_lshl_b32 s{T+6}, s{T+2}, 15")
    A(f"s_lshl_b32 s{T+5}, s{T+3}, 12")
    A(f"s_add_u32 s{T+6}, s{T+6}, s{T+5}")
    A(f"s_add_u32 s{T+6}, s{T+6}, {XQ}")
    A(f"v_add_u32 v{V_XQW}, s{T+6}, v{V_LANE16}")
    A(f"s_lshl_b32 s{T+6}, s{S_WAVE}, 13")
    A(f"s_add_u32 s{T+6}, s{T+6}, {XQ}")
    A(f"v_add_u32 v{V_XQR}, s{T+6}, v{V_LANE16}")
    A("s_waitcnt vmcnt(16)")
    A(f"s_mov_b32 s{S_W12}, 0")
    A(f"s_lshl_b32 s{S_W4}, s{S_PHASE}, 2")
    A(f"s_add_u32 s{S_W4}, s{S_W4}, {WS_G}")
    A(f"s_mov_b32 s{S_LEFT}, 14")
    A(f"s_mov_b32 s{S_PHASE}, 0")
    A(f"s_mov_b32 s{SRD_WS+2}, 0")
    A(f"s_mov_b32 s{SRD_DBG+2}, 0")
    A(f"s_lshl_b32 s{S_TOFF}, s2, 2")
    A(f"s_add_u32 s{S_TOFF}, s{S_TOFF}, s{S_WAVE}")
    A(f"s_lshl_b32 s{S_TBOFF}, s{S_TOFF}, 13")
    A(f"s_mov_b64 {sr(S_TA,2)}, {sr(P_WQ,2)}")
    A(f"s_mov_b32 s{S_TASZ}, {448*4096*2}")
    A(f"s_mov_b32 s{S_TAOFF}, s{S_TBOFF}")
    for first_u, ptr, size in ((448, P_X, 2048*448*2), (672, P_WQKV, 448*1344*2), (819, P_WOA, 448*448*2)):
        A(f"s_sub_u32 s{T}, s{S_TBOFF}, {first_u*8192}")
        A(f"s_cmp_ge_u32 s{S_TOFF}, {first_u}")
        A(f"s_cselect_b64 {sr(S_TA,2)}, {sr(ptr,2)}, {sr(S_TA,2)}")
        A(f"s_cselect_b32 s{S_TASZ}, {size}, s{S_TASZ}")
        A(f"s_cselect_b32 s{S_TAOFF}, s{T}, s{S_TAOFF}")
    na = cfg.get("tna", 10)
    for n, dst, t0 in ((na, S_TAT, 2),):
        A(f"s_mul_i32 s{T}, s{S_TOFF}, {(65536 + n - 1)//n}")
        A(f"s_lshr_b32 s{T}, s{T}, 16")
        A(f"s_mul_i32 s{T}, s{T}, {n}")
        A(f"s_sub_u32 s{dst}, s{S_TOFF}, s{T}")
        A(f"s_add_u32 s{dst}, s{dst}, {t0}")
    A(f"s_lshr_b32 s{S_TOFF2}, s2, 3")
    A(f"s_lshl_b32 s{S_TOFF2}, s{S_TOFF2}, 2")
    A(f"s_add_u32 s{S_TOFF2}, s{S_TOFF2}, s{S_WAVE}")
    A(f"s_lshl_b32 s{S_TOFF2}, s{S_TOFF2}, {6 + cfg.get('tsh', 7)}")
    A(f"s_getpc_b64 {sr(S_PC,2)}")
    A.label("LM_PC")
    A(f"s_bfe_u32 s{S_CSTEP}, s2, 0x30004")
    A(f"s_add_u32 s{S_CSTEP}, s{S_CSTEP}, 2")
    A(f"s_cmp_eq_u32 s{S_WAVE}, 0")
    A(f"s_cselect_b32 s{S_CSTEP}, s{S_CSTEP}, 99")
    A(f"s_and_b32 s{T}, s2, 15")
    A(f"s_lshl_b32 s{T}, s{T}, 4")
    A(f"v_lshlrev_b32 v{V_CRT+1}, 12, v0")
    A(f"v_add_u32 v{V_CRT+1}, s{T}, v{V_CRT+1}")
    A(f"v_mov_b32 v{V_CRT}, 1")
    A(f"v_and_b32 v{V_SIG+1}, 15, v0")
    A(f"v_lshlrev_b32 v{V_SIG+1}, 4, v{V_SIG+1}")
    A(f"v_lshlrev_b32 v{V_TCH}, {cfg.get('tsh', 7)}, v0")
    if cfg.get("thalf"):
        A(f"v_lshlrev_b32 v{V_TCH}, 7, v0")
        A(f"v_mov_b32 v{V_TCH+1}, 0x40000000")
        A(f"v_cmp_gt_u32 vcc, 32, v0")
        A("s_nop 1")
        A(f"v_cndmask_b32 v{V_TCH}, v{V_TCH+1}, v{V_TCH}, vcc")
    A("s_barrier")
    A.emit_list(g_reads(0, 0))
    A("s_waitcnt lgkmcnt(0)")
    A(f"s_cmp_eq_u32 s{S_TYPE}, 1")
    A("s_cbranch_scc1 LG_VT")
    n_early = cfg.get("n_early", 16)
    for typ in ("KQ", "V"):
        if typ == "V":
            A.label("LG_VT")
        g_step(A, typ, True, cfg)
        A.label(f"LG_LOOP_{typ}")
        g_step(A, typ, False, cfg)
        A(f"s_cbranch_scc1 LG_LOOP_{typ}")
        A(f"s_cmp_eq_u32 s{S_PHASE}, 16")
        A(f"s_cbranch_scc1 LG_EPI_{typ}")
        A(f"s_mov_b32 s{S_LEFT}, 2")
        A(f"s_cmp_eq_u32 s{S_WAVE}, 0")
        A(f"s_cselect_b32 s{SRD_DBG+2}, 256, 0")
        A(f"buffer_load_dword v{V_SIG}, v{V_SIG+1}, {sr(SRD_DBG,4)}, 0 offen sc1")
        A(f"s_mov_b32 s{SRD_DBG+2}, 0")
        A(f"s_mov_b32 s{SRD_A}, s{S_X2LO}")
        A(f"s_mov_b32 s{SRD_A+1}, s{S_X2HI}")
        A(f"s_mov_b32 s{SRD_A+2}, s{S_X2N}")
        A(f"s_mov_b32 s{S_XOFF}, s{S_XOFF2}")
        A(f"s_mov_b32 s{S_XSTA}, s{S_XSTA2}")
        A(f"s_mov_b32 s{S_XSTB}, s{S_XSTB2}")
        A(f"s_mov_b32 s{S_XWRAP}, s{S_XWRAP2}")
        A(f"v_mov_b32 v{V_DX}, v{V_DX2}")
        A(f"s_mov_b32 s{SRD_B}, s{P_WQ}")
        A(f"s_mov_b32 s{SRD_B+1}, s{P_WQ+1}")
        A(f"s_mov_b32 s{SRD_B+2}, {448*4096*2}")
        A(f"s_mov_b32 s{S_WOFF}, s{S_WOFF2}")
        A(f"s_branch LG_LOOP_{typ}")
        A.label(f"LG_EPI_{typ}")
        stamp(A, cfg, 1)
        set_srd(A, SRD_WS, P_WS, WS_SIZE)
        A(f"s_mov_b32 s{SRD_DBG+2}, 256")
        lok, llp = A.newlabel("LM"), A.newlabel("LM")
        A(f"v_cmp_le_u32 vcc, 16, v{V_SIG}")
        A(f"s_cmp_lg_u32 s{S_WAVE}, 0")
        A(f"s_cbranch_scc1 {lok}")
        A(f"s_mov_b32 s{T+1}, {SPIN_MAX}")
        A.label(llp)
        A("s_nop 3")
        A("s_cmp_eq_u64 vcc, -1")
        A(f"s_cbranch_scc1 {lok}")
        A(f"s_sub_u32 s{T+1}, s{T+1}, 1")
        A(f"s_cmp_eq_u32 s{T+1}, 0")
        A(f"s_cbranch_scc1 {lok}")
        A("s_sleep 32")
        A(f"buffer_load_dword v{V_SIG}, v{V_SIG+1}, {sr(SRD_DBG,4)}, 0 offen sc1")
        A("s_waitcnt vmcnt(0)")
        A(f"v_cmp_le_u32 vcc, 16, v{V_SIG}")
        A(f"s_branch {llp}")
        A.label(lok)
        if cfg.get("gdiag"):
            A(f"s_lshl_b32 s{T}, s2, 2")
            A(f"s_add_u32 s{T}, s{T}, s{S_WAVE}")
            A(f"s_lshl_b32 s{T}, s{T}, 9")
            A(f"s_add_u32 s{T}, s{T}, {232 << 20}")
            A(f"v_lshrrev_b32 v242, 2, v{V_LANE16}")
            A(f"buffer_store_dword v240, v242, {sr(SRD_WS,4)}, s{T} offen")
            A(f"buffer_store_dword v241, v242, {sr(SRD_WS,4)}, s{T} offen offset:256")
        A(f"s_mov_b32 s{S_XOFF2}, s{S_OB}")
        A.emit_list(p_addr(16))
        A.emit_list(p_reads(0, 0))
        g_cvt(A, typ, n_early)
        if typ == "KQ":
            A("s_branch LP_START")
    A.label("LP_START")
    if cfg.get("stamp_lp"):
        stamp(A, cfg, 3)
    A("s_waitcnt lgkmcnt(0)")
    rem = list(range(n_early, 32))
    per = cfg.get("st_per", [4, 4, 4, 4])
    k = 0
    for T_ in range(16, 23):
        st = []
        for h in range(2):
            n = per[k] if k < len(per) else 0
            k += 1
            st.append(rem[:n])
            rem = rem[n:]
        p_step(A, T_, st[0], st[1], cfg)
    assert not rem, rem
    stamp(A, cfg, 2)
    b_setup_kv(A)
    def kv_first():
        for w, s_ in (("K", 0), ("V", 0), ("K", 1), ("V", 1), ("K", 2), ("V", 2)):
            emit_chain(A, kv_tile_chain(w, s_))
    A("s_waitcnt vmcnt(0)")
    poll_test(A)
    A(f"s_cselect_b32 s{S_EV}, 1, 0")
    A("s_cbranch_scc0 LP_NOTYET")
    kv_first()
    A.label("LP_NOTYET")
    A(f"s_cmp_eq_u32 s{S_GRP}, 0")
    A("s_cbranch_scc1 LP_NOLATE")
    A(f"s_mov_b32 s{S_OB}, s{S_XOFF2}")
    for c in range(32):
        for o_ in kv_store(c, SRD_WS):
            A(o_.text)
    A("s_nop 1")
    A.label("LP_NOLATE")
    p_epilogue_a(A)
    p_epilogue_q(A)
    b_setup_rest(A)
    A(f"s_cmp_eq_u32 s{S_EV}, 1")
    A("s_cbranch_scc1 LP_HAVE")
    poll_wait(A, True)
    kv_first()
    A.label("LP_HAVE")
    b_main(A, cfg)
    stamp_out(A, cfg, 7, 200 << 20, 2)
    A.label("LQ_NEXT")
    lp = A.newlabel("LQ")
    A(f"s_cmp_eq_u32 s{S_POPPED}, 1")
    A(f"s_cbranch_scc1 {lp}")
    pop_issue(A)
    A("s_waitcnt vmcnt(0)")
    A.label(lp)
    A(f"s_mov_b32 s{S_POPPED}, 0")
    lw = A.newlabel("LQ")
    A(f"s_cmp_lg_u32 s{S_WAVE}, 0")
    A(f"s_cbranch_scc1 {lw}")
    A(f"s_waitcnt vmcnt({0 if cfg.get('diag') else 14})")
    A(f"v_mov_b32 v{V_POLL+1}, {LDS_TOTAL-16}")
    A("s_mov_b64 exec, 1")
    A(f"ds_write_b32 v{V_POLL+1}, v{V_POP}")
    A("s_mov_b64 exec, -1")
    A.label(lw)
    A("s_waitcnt lgkmcnt(0)")
    A("s_barrier")
    A(f"v_mov_b32 v{V_POLL+1}, {LDS_TOTAL-16}")
    A(f"ds_read_b32 v{V_POLL}, v{V_POLL+1}")
    A(f"s_mov_b32 s{S_PFLAG}, s{S_RFLAG}")
    A(f"s_mov_b32 s{S_PMASK}, s{S_RMASK}")
    A("s_waitcnt lgkmcnt(0)")
    A(f"v_readfirstlane_b32 s{S_ITEM}, v{V_POLL}")
    A("s_nop 3")
    A(f"s_cmp_lt_u32 s{S_ITEM}, {a_counts(cfg)[3]}")
    A("s_cbranch_scc1 LQ_AITEM")
    ls = A.newlabel("LQ")
    A(f"s_cmp_eq_u32 s{S_PFLAG}, 0")
    A(f"s_cbranch_scc1 {ls}")
    A("s_waitcnt vmcnt(0)")
    A.label(ls)
    A("s_barrier")
    ls = A.newlabel("LQ")
    A(f"s_cmp_eq_u32 s{S_PFLAG}, 0")
    A(f"s_cbranch_scc1 {ls}")
    signal(A, S_PFLAG, mask_sgpr=S_PMASK)
    A.label(ls)
    NA = a_counts(cfg)[3]
    A("s_branch LQ_RED")
    A.label("LQ_AITEM")
    a_item(A, cfg)
    if cfg.get("diag"):
        A(f"s_and_b32 s{T+2}, s2, 7")
        A(f"s_lshl_b32 s{T+3}, s{S_ITEM}, 3")
        A(f"s_add_u32 s{T+2}, s{T+2}, s{T+3}")
        stamp_out(A, cfg, 5, 210 << 20, T + 2)
    A("s_branch LQ_NEXT")
    A.label("LQ_RED")
    n3 = cfg.get("rn3", 16)
    n1 = 56 - 3 * n3
    A(f"s_sub_u32 s{S_ITEM}, s{S_ITEM}, {NA}")
    A(f"s_cmp_ge_u32 s{S_ITEM}, {n3 + n1}")
    A("s_cbranch_scc1 LM_FIN")
    A(f"s_add_u32 s{S_EV}, s{S_ITEM}, {n3}")
    A(f"s_cmp_lt_u32 s{S_ITEM}, {n3}")
    A(f"s_cselect_b32 s{S_EV}, s{S_ITEM}, s{S_EV}")
    A(f"s_mov_b32 s{S_FIRST}, 0")
    A.label("LQ_RLOOP")
    r_item(A, cfg)
    if cfg.get("diag"):
        A(f"s_and_b32 s{T+2}, s2, 7")
        A(f"s_lshl_b32 s{T+3}, s{S_EV}, 3")
        A(f"s_add_u32 s{T+2}, s{T+2}, s{T+3}")
        stamp_out(A, cfg, 3, 220 << 20, T + 2)
    A(f"s_cmp_ge_u32 s{S_EV}, {2*n3}")
    A("s_cbranch_scc1 LM_FIN")
    A(f"s_mov_b32 s{S_EV}, s{S_LEFT}")
    A("s_branch LQ_RLOOP")
    a_redo(A, cfg)
    flush_ool(A)
    b_rare(A, 0)
    b_rare(A, 1)
    a_rare(A, 0)
    a_rare(A, 1)
    A.label("LM_FIN")
    stamp_out(A, cfg, 1, 230 << 20, 2)
    A.label("LM_END")
    A("s_endpgm")
    return kernel_desc(name, 512, 102, 256)
```

```python
import math
from asmlib import *

WS_K = 0
WS_V = 16 << 20
WS_QA = 48 << 20
WS_KA = 50 << 20
WS_VA = 52 << 20
WS_P = 64 << 20
WS_SIZE = 256 << 20
P_SLOT = 128 * 14 * 1024
LOG2E = math.log2(math.e)
SCALE_B = LOG2E / 16.0
SCALE_A = LOG2E / math.sqrt(28.0)
LDS_TOTAL = 163840
LDS_X0 = 65536
BIAS = 32.0
NEG_INF = 0xff800000
HUGE = WS_SIZE
SPIN_MAX = 1 << 16

C_QUEUE = 1
WS_F = 240 << 20
F_KV, F_AQ, F_ROW = WS_F, WS_F + 8192, WS_F + 12288
WS_G = 241 << 20

P_X, P_WQKV, P_WOA, P_CKV, P_WQ, P_WUK, P_WUV = 4, 6, 30, 12, 14, 16, 18
P_WOB, P_GATE, P_OUT, P_DBG, P_WS = 20, 22, 24, 26, 28
SRD_A, SRD_B, SRD_WS, SRD_DBG = 32, 36, 40, 44
S_WAVE, S_TYPE, S_HEAD, S_QB = 48, 49, 50, 51
S_XOFF, S_WOFF, S_XSTA, S_XSTB, S_XWRAP, S_W4, S_W12 = 52, 53, 54, 55, 56, 57, 58
S_XRD, S_XWR, S_WWR, S_XWAVE, S_LEFT, S_PHASE = 59, 60, 61, 62, 63, 64
S_OB, S_OSTA, S_OSTB = 65, 66, 67
S_XOFF2, S_WOFF2, S_XSTA2, S_XSTB2, S_XWRAP2, S_X2LO, S_X2HI, S_X2N = 68, 69, 70, 71, 72, 73, 74, 75
S_OBQK, S_OBV, S_SCA, S_GHEAD = 76, 77, 78, 79
S_N, S_T2, S_TW, S_KOFF, S_VOFF, S_KLIM, S_VLIM, S_B0 = 52, 53, 54, 55, 56, 57, 58, 59
S_RET = 60
S_FLOOR, S_FIRST = 62, 64
S_WOOFF, S_POFF, S_MASK, S_HUGE, S_WOW = 65, 66, 67, 68, 69
S_SC = 70
S_BL1 = 67
S_POFF1 = 71
S_ITEM = 72
S_SPIN = 73
S_EV = 74
S_PADDR = 75
S_RMASK = 77
S_AQOK = 79
S_PFLAG, S_PMASK = 12, 13
S_POPPED = 49
S_KAP = 78
S_RFLAG = 76
S_TMP = 80
S_STAMP = 88
SRD_E = 8
S_TOFF = 87
S_PC = 84
S_TOFF2 = 86
S_TA, S_TASZ, S_TAOFF, S_TAT, S_TBOFF, S_TBT = 12, 16, 17, 18, 19, 22
S_CSTEP = 83
V_CRT = 42
V_TCH = 40
S_GRP = 3

V_LANE16 = 1
V_XL0, V_XL1, V_XR0, V_XR1 = 2, 3, 4, 5
V_WR = 6
V_DX, V_DW, V_DX2 = 14, 15, 16
V_OA, V_OAV, V_SCHI, V_MULHI, V_ADDHI = 17, 18, 19, 20, 21
V_PXL = 22
V_PWL = 24
V_PWR = 27
V_XQW, V_XQR = 30, 31
V_G = 32
V_CV = 48
FX = [64, 128]
FW = [96, 160]
V_PK = 128
V_DKV = 2
V_RB1, V_RB0 = 3, 4
V_CB = 6
V_L = 8
V_DM = 10
V_LT = 14
V_T = 16
V_WOD = 32
V_WOR = 40
V_POLL = 44
V_SIG = 46
V_POP = 5
VP = [48, 56]
VS = [64, 80]
VC = 96
VE = 112
VO = 128
AQ, AK, AV = 0, 64, 128
XQ = 98304

OOL = []


def flush_ool(A):
    for b in OOL:
        A.emit_list(b)
    OOL.clear()


def emit_chain(A, c):
    prev = ""
    for o in c:
        if o.kind == "M" and prev.split(",")[0].endswith(" m0"):
            A("s_nop 0")
        A(o.text)
        prev = o.text


def emit_left(A, left):
    for l in left:
        A(l)
        if l.split(",")[0].endswith(" m0") or l.startswith("v_exp"):
            A("s_nop 0")


def spread(n_items, start, end):
    if n_items == 1:
        return [start]
    return [start + (i * (end - start)) // (n_items - 1) for i in range(n_items)]


def set_srd(A, srd, ptr, size):
    A(f"s_mov_b32 s{srd}, s{ptr}")
    A(f"s_mov_b32 s{srd+1}, s{ptr+1}")
    A(f"s_mov_b32 s{srd+2}, {size}")
    A(f"s_mov_b32 s{srd+3}, 0x20000")


def stamp(A, cfg, i):
    if cfg.get("diag") or cfg.get("hdiag"):
        A(f"s_memrealtime {sr(S_STAMP+2*i,2)}")


def hstamp_out(A, cfg, items):
    if not cfg.get("hdiag"):
        return
    l = A.newlabel("LHD")
    A(f"s_memrealtime {sr(S_STAMP+12,2)}")
    A("s_waitcnt lgkmcnt(0)")
    A(f"s_cmp_lg_u32 s{S_WAVE}, 0")
    A(f"s_cbranch_scc1 {l}")
    A(f"v_mov_b32 v{V_T+1}, 0")
    A("s_mov_b64 exec, 1")
    for k, (st, word, neg) in enumerate(items):
        A(f"v_mov_b32 v{V_T+2+k}, s{S_STAMP+2*st}")
        if neg:
            A(f"v_sub_u32 v{V_T+2+k}, 0, v{V_T+2+k}")
        A(f"buffer_atomic_umax v{V_T+2+k}, v{V_T+1}, {sr(SRD_DBG,4)}, 0 offen offset:{word*4}")
    A("s_mov_b64 exec, -1")
    A.label(l)


def stamp_out(A, cfg, n, wsoff, idx_sgpr):
    if cfg.get("diag"):
        A("s_waitcnt vmcnt(0) lgkmcnt(0)")
        A(f"s_memrealtime {sr(S_STAMP+2*(n-1),2)}")
        A("s_waitcnt lgkmcnt(0)")
        A(f"s_lshl_b32 s{S_TMP}, s{idx_sgpr}, 8")
        A(f"s_lshl_b32 s{S_TMP+1}, s{S_WAVE}, 6")
        A(f"s_add_u32 s{S_TMP}, s{S_TMP}, s{S_TMP+1}")
        A(f"s_add_u32 s{S_TMP}, s{S_TMP}, {wsoff}")
        A(f"v_mov_b32 v{V_T+1}, 0")
        for i in range(n):
            A(f"v_mov_b32 v{V_T}, s{S_STAMP+2*i}")
            A(f"buffer_store_dword v{V_T}, v{V_T+1}, {sr(SRD_WS,4)}, s{S_TMP} offen offset:{4*i}")
            A("s_nop 1")


def signal(A, off_sgpr, grp=None, mask_sgpr=None):
    l = A.newlabel("LSG")
    A(f"s_cmp_lg_u32 s{S_WAVE}, 0")
    A(f"s_cbranch_scc1 {l}")
    if grp is not None:
        A(f"s_cmp_lg_u32 s{S_GRP}, {grp}")
        A(f"s_cbranch_scc1 {l}")
    A(f"v_mov_b32 v{V_SIG}, 1")
    A(f"v_lshlrev_b32 v{V_SIG+1}, 5, v0")
    A("s_mov_b64 exec, 1")
    if mask_sgpr is not None:
        A(f"s_mov_b32 exec_lo, s{mask_sgpr}")
    A(f"buffer_store_dword v{V_SIG}, v{V_SIG+1}, {sr(SRD_WS,4)}, s{off_sgpr} offen sc1")
    A("s_mov_b64 exec, -1")
    A.label(l)


def pop_issue(A):
    l = A.newlabel("LPO")
    A(f"s_mov_b32 s{S_POPPED}, 1")
    A(f"s_cmp_lg_u32 s{S_WAVE}, 0")
    A(f"s_cbranch_scc1 {l}")
    A(f"s_and_b32 s{S_TMP+7}, s2, 7")
    A(f"s_lshl_b32 s{S_TMP+7}, s{S_TMP+7}, 5")
    A(f"v_mov_b32 v{V_POP}, 1")
    A(f"v_mov_b32 v{V_SIG+1}, 0")
    A("s_mov_b64 exec, 1")
    A(f"buffer_atomic_add v{V_POP}, v{V_SIG+1}, {sr(SRD_DBG,4)}, s{S_TMP+7} offen offset:{C_QUEUE*4} sc0")
    A("s_mov_b64 exec, -1")
    A.label(l)


def poll_issue(A, idx_sgpr, base, nwords):
    A(f"s_lshl_b32 s{S_PADDR}, s{idx_sgpr}, 8")
    A(f"s_add_u32 s{S_PADDR}, s{S_PADDR}, {base}")
    A(f"v_min_u32 v{V_POLL+1}, {nwords-1}, v0")
    A(f"v_lshlrev_b32 v{V_POLL+1}, 2, v{V_POLL+1}")
    A(f"buffer_load_dword v{V_POLL}, v{V_POLL+1}, {sr(SRD_WS,4)}, s{S_PADDR} offen sc1")


def poll_test(A):
    A(f"v_cmp_eq_u32 vcc, 1, v{V_POLL}")
    A("s_nop 3")
    A("s_cmp_eq_u64 vcc, -1")


def poll_wait(A, reissue_first=False):
    lok, lloop = A.newlabel("LPK"), A.newlabel("LPL")
    A(f"s_mov_b32 s{S_SPIN}, {SPIN_MAX}")
    if reissue_first:
        A(f"buffer_load_dword v{V_POLL}, v{V_POLL+1}, {sr(SRD_WS,4)}, s{S_PADDR} offen sc1")
    A.label(lloop)
    A("s_waitcnt vmcnt(0)")
    poll_test(A)
    A(f"s_cbranch_scc1 {lok}")
    A(f"s_sub_u32 s{S_SPIN}, s{S_SPIN}, 1")
    A(f"s_cmp_eq_u32 s{S_SPIN}, 0")
    A(f"s_cbranch_scc1 {lok}")
    A("s_sleep 8")
    A(f"buffer_load_dword v{V_POLL}, v{V_POLL+1}, {sr(SRD_WS,4)}, s{S_PADDR} offen sc1")
    A(f"s_branch {lloop}")
    A.label(lok)


def acc(nb, tb):
    return (nb * 8 + tb) * 4


def g_mfmas(typ, s, first):
    out = []
    for nb in range(8):
        for tb in range(8):
            a = acc(nb, tb)
            w, x = vr(FW[s] + 4 * nb, 4), vr(FX[s] + 4 * tb, 4)
            c = "0" if first else ar(a, 4)
            out.append(f"v_mfma_f32_16x16x32_bf16 {ar(a,4)}, {w}, {x}, {c}" if typ == "KQ"
                       else f"v_mfma_f32_16x16x32_bf16 {ar(a,4)}, {x}, {w}, {c}")
    return out


def g_reads(s, hh):
    vx = V_XR0 if hh == 0 else V_XR1
    out = [f"ds_read_b128 {vr(FX[s]+4*i,4)}, v{vx} offset:{i*2048}" for i in range(8)]
    for i in range(8):
        out.append(f"ds_read_b64_tr_b16 {vr(FW[s]+4*i,2)}, v{V_WR+i} offset:{hh*16384}")
        out.append(f"ds_read_b64_tr_b16 {vr(FW[s]+4*i+2,2)}, v{V_WR+i} offset:{hh*16384+2048}")
    return out


def dma_x():
    c = [Op(f"s_mov_b32 m0, s{S_XWR}", "S")]
    for i in range(8):
        c.append(Op(f"buffer_load_dwordx4 v{V_DX}, {sr(SRD_A,4)}, s{S_XOFF} offen lds", "M"))
        if i < 7:
            c.append(Op("s_add_u32 m0, m0, 2048", "S"))
            c.append(Op(f"s_add_u32 s{S_XOFF}, s{S_XOFF}, s{S_XSTA if i % 2 == 0 else S_XSTB}", "S"))
        else:
            c.append(Op(f"s_add_u32 s{S_XOFF}, s{S_XOFF}, s{S_XWRAP}", "S"))
            c.append(Op(f"s_add_u32 s{S_XWR}, s{S_XWR}, 32768", "S"))
            c.append(Op(f"s_cmp_ge_u32 s{S_XWR}, {LDS_TOTAL}", "S"))
            c.append(Op(f"s_cselect_b32 s{S_XWR}, s{S_XWAVE}, s{S_XWR}", "S"))
    return c


def dma_w():
    c = [Op(f"s_mov_b32 m0, s{S_WWR}", "S")]
    for i in range(8):
        c.append(Op(f"buffer_load_dwordx4 v{V_DW}, {sr(SRD_B,4)}, s{S_WOFF} offen lds", "M"))
        if i % 2 == 0:
            c.append(Op("s_add_u32 m0, m0, 2048", "S"))
            c.append(Op(f"s_add_u32 s{S_WOFF}, s{S_WOFF}, {4*8192}", "S"))
        else:
            if i < 7:
                c.append(Op("s_add_u32 m0, m0, 6144", "S"))
            c.append(Op(f"s_add_u32 s{S_WOFF}, s{S_WOFF}, {12*8192}", "S"))
        if i == 7:
            c.append(Op(f"s_xor_b32 s{S_WWR}, s{S_WWR}, 32768", "S"))
    return c


HT = "DFDMDFDF" * 6 + "FMFFFFFM" + "FFFFFFFX"


def gate_ops():
    c = V_CV
    par, prevs = [], []
    acc_prev = Op(f"v_mov_b32 v{c+8}, 0", "V")
    par.append(acc_prev)
    for i in range(8):
        x, g = 192 + i, 200 + i
        t = 208 + 4 * i
        a = Op(f"v_lshlrev_b32 v{t}, 16, v{x}", "V")
        b = Op(f"v_and_b32 v{t+1}, 0xffff0000, v{x}", "V")
        d = Op(f"v_lshlrev_b32 v{t+2}, 16, v{g}", "V")
        e = Op(f"v_and_b32 v{t+3}, 0xffff0000, v{g}", "V")
        m0 = Op(f"v_mul_f32 v{t}, v{t}, v{t+2}", "V", [a, d])
        m1 = Op(f"v_mul_f32 v{t+1}, v{t+1}, v{t+3}", "V", [b, e])
        cv = Op(f"v_cvt_pk_bf16_f32 v{t}, v{t}, v{t+1}", "V", [m0, m1])
        lo = Op(f"v_lshlrev_b32 v{t+1}, 16, v{t}", "V", [cv])
        hi = Op(f"v_and_b32 v{t+2}, 0xffff0000, v{t}", "V", [cv])
        s0 = Op(f"v_add_f32 v{c+8}, v{c+8}, v{t+1}", "V", [lo, acc_prev])
        s1 = Op(f"v_add_f32 v{c+8}, v{c+8}, v{t+2}", "V", [hi, s0])
        acc_prev = s1
        par += [a, b, d, e, m0, m1, cv, lo, hi, s0, s1]
    v, w = c + 8, c + 9
    tail = []
    for r in (8, 4, 2, 1):
        tail += ["s_nop 0", f"v_add_f32_dpp v{v}, v{v}, v{v} row_ror:{r} row_mask:0xf bank_mask:0xf"]
    tail += [f"v_mov_b32 v{w}, v{v}", "s_nop 0", f"v_permlane16_swap_b32 v{w}, v{v}", "s_nop 0", f"v_add_f32 v{v}, v{v}, v{w}",
             f"v_cvt_pk_bf16_f32 v{v}, v{v}, v{v}", f"v_lshlrev_b32 v{v}, 16, v{v}", f"v_mul_f32 v{v}, {f32bits(-LOG2E):#x}, v{v}",
             f"v_exp_f32 v{v}, v{v}", f"v_add_f32 v{v}, 1.0, v{v}", f"v_rcp_f32 v{v}, v{v}", f"v_cvt_pk_bf16_f32 v{v}, v{v}, v{v}",
             f"v_lshlrev_b32 v{v}, 16, v{v}", f"v_lshrrev_b32 v{w}, 5, v0", f"v_lshlrev_b32 v{w}, 2, v{w}"]
    tl, prev = [], None
    for t in tail:
        o = Op(t, "V", [prev] if prev else [])
        tl.append(o)
        prev = o
    return par, tl


def g_step(A, typ, first, cfg):
    lastD = max(i for i, c in enumerate(HT) if c == "D")
    va = [Op(f"v_add_u32 v{V_XR0}, s{S_XRD}, v{V_XL0}", "V", min_gap=lastD + 1),
          Op(f"v_add_u32 v{V_XR1}, s{S_XRD}, v{V_XL1}", "V", min_gap=lastD + 1)]
    va += [Op(f"v_xor_b32 v{V_WR+i}, 0x8000, v{V_WR+i}", "V", min_gap=lastD + 1) for i in range(8)]
    gp, gt = gate_ops() if first else ([], [])
    va = va + gp[:58]
    tch = [Op(f"buffer_load_dword v{V_TCH+1}, v{V_TCH}, {sr(SRD_WS,4)}, s{S_TOFF} offen {cfg.get('tfl','')}", "M"),
           Op(f"buffer_atomic_add v{V_CRT}, v{V_CRT+1}, {sr(SRD_DBG,4)}, 0 offen", "M")]
    ht1 = HT[:59] + "MFM" + HT[62:]
    out, _ = schedule(g_mfmas(typ, 0, first), ht1, g_reads(1, 1), dma_x() + tch, va,
                      {63: ["s_waitcnt vmcnt(10) lgkmcnt(0)", "s_barrier"]}, salu_first=True)
    A.emit_list(out)
    ch = [Op(f"s_add_u32 s{S_XRD}, s{S_XRD}, 32768", "S"), Op(f"s_cmp_ge_u32 s{S_XRD}, {LDS_TOTAL}", "S"),
          Op(f"s_cselect_b32 s{S_XRD}, {LDS_X0}, s{S_XRD}", "S")]
    groups = [[Op(f"s_add_u32 s{S_PHASE}, s{S_PHASE}, 1", "S"), Op(f"s_mov_b32 s{SRD_WS+2}, 0", "S")]]
    for when, base, size, off in ((f"s{S_TAT}", S_TA, f"s{S_TASZ}", S_TAOFF),
                                  (cfg.get("warm_at", 13), S_PC, "LM_END-LM_PC", S_TOFF2)):
        groups.append([Op(f"s_cmp_eq_u32 s{S_PHASE}, {when}", "S"),
                       Op(f"s_cselect_b64 {sr(SRD_WS,2)}, {sr(base,2)}, {sr(SRD_WS,2)}", "S"),
                       Op(f"s_cselect_b32 s{SRD_WS+2}, {size}, s{SRD_WS+2}", "S"),
                       Op(f"s_cselect_b32 s{S_TOFF}, s{off}, s{S_TOFF}", "S")])
    groups.append([Op(f"s_cmp_eq_u32 s{S_PHASE}, s{S_CSTEP}", "S"), Op(f"s_cselect_b32 s{SRD_DBG+2}, 256, 0", "S")])
    if first:
        groups = groups[:1]
    merged = []
    for o in dma_w():
        merged.append(o)
        if o.kind == "M" and groups:
            merged += groups.pop(0)
    assert not groups
    ch = ch + merged + [Op(f"s_sub_u32 s{S_LEFT}, s{S_LEFT}, 1", "S"), Op(f"s_cmp_lg_u32 s{S_LEFT}, 0", "S")]
    for o in gp[:58]:
        o.gap = -1
    if gt:
        gt[0].deps = [gp[-1]]
    out, _ = schedule(g_mfmas(typ, 1, False), HT, g_reads(0, 0), ch, gp[58:] + gt, {63: ["s_waitcnt lgkmcnt(0)"]}, salu_first=True)
    A.emit_list(out)
    if cfg.get("gdiag"):
        A("s_memtime s[100:101]")
        A("s_memrealtime s[98:99]")
        A(f"s_mov_b32 m0, s{S_W12}")
        A("s_waitcnt lgkmcnt(0)")
        A("v_writelane_b32 v240, s100, m0")
        A("v_writelane_b32 v241, s98, m0")
        A(f"s_addk_i32 s{S_W12}, 1")
        A(f"s_cmp_lg_u32 s{S_LEFT}, 0")
    if first:
        A(f"s_mov_b32 s{SRD_WS+2}, {WS_SIZE}")
        A("s_mov_b32 exec_lo, 1")
        A("s_mov_b32 exec_hi, 1")
        A(f"buffer_store_dword v{V_CV+8}, v{V_CV+9}, {sr(SRD_WS,4)}, s{S_W4} offen sc1")
        A("s_mov_b64 exec, -1")
        A(f"s_mov_b32 s{SRD_WS+2}, 0")


KVFL = "sc1"


def kv_store(c, srd=None):
    srd = SRD_E if srd is None else srd
    ops = []
    if c and c % 4 == 0:
        ops.append(Op(f"s_add_u32 s{S_OB}, s{S_OB}, s{S_OSTA if (c // 4) % 2 == 1 else S_OSTB}", "S"))
    ops.append(Op(f"buffer_store_dwordx4 {vr(V_PK+4*c,4)}, v{V_LANE16}, {sr(srd,4)}, s{S_OB} offen offset:{(c%4)*1024} {KVFL}", "M"))
    return ops


def g_cvt(A, typ, n_early):
    for c in range(32):
        hi, lo = c // 4, c % 4
        if typ == "KQ":
            o, p = hi, lo
            regs = [acc(2 * p, o) + r for r in range(4)] + [acc(2 * p + 1, o) + r for r in range(4)]
        else:
            p, o = hi >> 1, (hi & 1) * 4 + lo
            regs = [acc(o, 2 * p) + r for r in range(4)] + [acc(o, 2 * p + 1) + r for r in range(4)]
        t = V_CV + (c % 2) * 8
        for i, r in enumerate(regs):
            A(f"v_accvgpr_read_b32 v{t+i}, a{r}")
        for i in range(4):
            A(f"v_cvt_pk_bf16_f32 v{V_PK+4*c+i}, v{t+2*i}, v{t+2*i+1}")
        if n_early == 32:
            for o_ in kv_store(c):
                A(o_.text)
        else:
            k0, k1 = (c * n_early) // 32, ((c + 1) * n_early) // 32
            for k in range(k0, k1):
                for o_ in kv_store(k):
                    A(o_.text)


PF = [("v", 64), ("a", 176)]


def pfr(s, off, n):
    k, b = PF[s]
    return vr(b + off, n, k)


def p_mfmas(s, first):
    out = []
    for db in range(8):
        for tb in range(4):
            a = ar((db * 4 + tb) * 4, 4)
            out.append(f"v_mfma_f32_16x16x32_bf16 {a}, {pfr(s,16+4*db,4)}, {pfr(s,4*tb,4)}, {'0' if first else a}")
    for u in range(3):
        for tb in range(4):
            a = ar(128 + (u * 4 + tb) * 4, 4)
            w, x = pfr(s, 48 + 4 * u, 4), pfr(s, 4 * tb, 4)
            out.append(f"v_mfma_f32_16x16x32_bf16 {a}, {w}, {x}, {'0' if first else a}" if u < 2
                       else f"v_mfma_f32_16x16x32_bf16 {a}, {x}, {w}, {'0' if first else a}")
    return out


def p_reads(s, hh):
    out = [f"ds_read_b128 {pfr(s,4*tb,4)}, v{V_XR0+hh} offset:{tb*2048}" for tb in range(4)]
    for b in range(8):
        for e in range(2):
            out.append(f"ds_read_b64_tr_b16 {pfr(s,16+4*b+2*e,2)}, v{V_WR+b} offset:{hh*16384+e*2048}")
    for u in range(3):
        for e in range(2):
            out.append(f"ds_read_b64_tr_b16 {pfr(s,48+4*u+2*e,2)}, v{V_PWR+u} offset:{hh*8192+e*2048}")
    return out


def p_addr(T):
    base = LDS_X0 + (T % 3) * 32768
    return ([f"v_add_u32 v{V_XR0+h}, {base}, v{V_PXL+h}" for h in range(2)] +
            [f"v_add_u32 v{V_PWR+u}, {base}, v{V_PWL+u}" for u in range(3)])


def merge_chain(dmas, stores):
    out = []
    k = 0
    stores = list(stores)
    for o in dmas:
        out.append(o)
        if o.kind == "M":
            k += 1
            if k % 2 == 0 and stores:
                out += stores.pop(0)
    for s in stores:
        out += s
    return out


PT = "DDM" * 13 + "FFFFX"


def p_step(A, T, st1, st2, cfg):
    lastD = max(i for i, c in enumerate(PT) if c == "D")
    last = T == 22
    ch = merge_chain(dma_x() if T + 2 <= 22 else [], [kv_store(c) for c in st1])
    n_young = sum(1 for o in ch if o.kind == "M")
    va = []
    if not last:
        va = [Op(t, "V", min_gap=lastD + 1) for t in p_addr(T + 1)]
        va += [Op(f"v_xor_b32 v{V_WR+i}, 0x8000, v{V_WR+i}", "V", min_gap=lastD + 1) for i in range(8)]
    out, left = schedule(p_mfmas(0, T == 16), PT, p_reads(1, 1), ch, va, {}, strict=False)
    A.emit_list(out)
    emit_left(A, left)
    A(f"s_waitcnt vmcnt({n_young}) lgkmcnt(0)")
    A("s_barrier")
    if T == cfg.get("sig_at", 18):
        assert not st1 and not st2
        signal(A, S_GHEAD, grp=0)
    if last:
        poll_issue(A, S_HEAD, F_KV, 8)
    ch = merge_chain(dma_w() if T + 2 <= 22 else [], [kv_store(c) for c in st2])
    out, left = schedule(p_mfmas(1, False), PT, [] if last else p_reads(0, 0), ch, [], {}, strict=False)
    A.emit_list(out)
    emit_left(A, left)
    A("s_waitcnt lgkmcnt(0)")


def p_epilogue_a(A):
    gi = 0
    for tb in range(4):
        t = 64 + gi * 12
        gi += 1
        lo, hi = 128 + tb * 4, 128 + (4 + tb) * 4
        for r in range(4):
            A(f"v_accvgpr_read_b32 v{t+r}, a{lo+r}")
            A(f"v_accvgpr_read_b32 v{t+4+r}, a{hi+r}")
        for r in range(4):
            A(f"v_mul_f32 v{t+r}, s{S_SCA}, v{t+r}")
            A(f"v_mul_f32 v{t+4+r}, v{V_SCHI}, v{t+4+r}")
        for i in range(4):
            A(f"v_cvt_pk_bf16_f32 v{t+8+i}, v{t+2*i}, v{t+2*i+1}")
        A(f"buffer_store_dwordx4 {vr(t+8,4)}, v{V_OA}, {sr(SRD_WS,4)}, s{S_OBQK} offen offset:{(tb>>1)*2048+(tb&1)*128} sc1")
    for p in range(2):
        t = 128 + p * 12
        lo, hi = 128 + (8 + 2 * p) * 4, 128 + (8 + 2 * p + 1) * 4
        for r in range(4):
            A(f"v_accvgpr_read_b32 v{t+r}, a{lo+r}")
            A(f"v_accvgpr_read_b32 v{t+4+r}, a{hi+r}")
        for r in range(8):
            A(f"v_fma_f32 v{t+r}, v{t+r}, v{V_MULHI}, v{V_ADDHI}")
        for i in range(4):
            A(f"v_cvt_pk_bf16_f32 v{t+8+i}, v{t+2*i}, v{t+2*i+1}")
        A(f"buffer_store_dwordx4 {vr(t+8,4)}, v{V_OAV}, {sr(SRD_WS,4)}, s{S_OBV} offen offset:{p*2048} sc1")


def p_epilogue_q(A):
    gi = 0
    for tb in range(4):
        for p in range(4):
            t = 160 + (gi % 8) * 12
            gi += 1
            lo, hi = ((2 * p) * 4 + tb) * 4, ((2 * p + 1) * 4 + tb) * 4
            for r in range(4):
                A(f"v_accvgpr_read_b32 v{t+r}, a{lo+r}")
                A(f"v_accvgpr_read_b32 v{t+4+r}, a{hi+r}")
            for r in range(0, 8, 2):
                A(f"v_pk_mul_f32 {vr(t+r,2)}, {vr(t+r,2)}, {sr(S_SC,2)}")
            for i in range(4):
                A(f"v_cvt_pk_bf16_f32 v{t+8+i}, v{t+2*i}, v{t+2*i+1}")
            A(f"ds_write_b128 v{V_XQW}, {vr(t+8,4)} offset:{tb*8192+p*1024}")


def s_reg(buf, kb, qb):
    return VS[buf] + (kb * 2 + qb) * 4


def c_reg(kb, qb):
    return VC + (kb * 2 + qb) * 4


def o_reg(db, qb):
    return VO + (db * 2 + qb) * 4


def qk_mfmas(buf, qs=(0, 1)):
    out = []
    for dg in range(8):
        for kb in range(2):
            for qb in qs:
                d = vr(s_reg(buf, kb, qb), 4)
                c = vr(c_reg(kb, qb), 4) if dg == 0 else d
                out.append(f"v_mfma_f32_16x16x32_bf16 {d}, {ar(AK+(kb*8+dg)*4,4)}, {ar(AQ+(qb*8+dg)*4,4)}, {c}")
    return out


def pv_mfmas(pbuf, qs=(0, 1)):
    out = []
    for db in range(16):
        for qb in qs:
            d = vr(o_reg(db, qb), 4)
            out.append(f"v_mfma_f32_16x16x32_bf16 {d}, {ar(AV+db*4,4)}, {vr(VP[pbuf]+qb*4,4)}, {d}")
    return out


def k_reads(vbase, off):
    return [f"ds_read_b128 {ar(AK+(kb*8+dg)*4,4)}, v{vbase} offset:{off+(kb*8+dg)*1024}"
            for dg in range(8) for kb in range(2)]


def v_reads(vbase, off):
    return [f"ds_read_b128 {ar(AV+db*4,4)}, v{vbase} offset:{off+db*1024}" for db in range(16)]


def softmax_oplist(buf, pbuf, with_l=(0, 1), qs=(0, 1)):
    ops = []
    ladd = {qb: Op(f"v_add_f32 v{V_L+qb}, v{V_L+qb}, v{V_LT+qb}", "V") for qb in with_l}
    ops += list(ladd.values())
    lastsum = []
    for qb in qs:
        prev = None
        for kb in range(2):
            s = s_reg(buf, kb, qb)
            e = VE + (kb * 2 + qb) * 4
            ex = [Op(f"v_exp_f32 v{e+r}, v{s+r}", "E") for r in range(4)]
            ops += ex
            ops.append(Op(f"v_cvt_pk_bf16_f32 v{VP[pbuf]+qb*4+kb*2}, v{e}, v{e+1}", "V", [ex[0], ex[1]]))
            ops.append(Op(f"v_cvt_pk_bf16_f32 v{VP[pbuf]+qb*4+kb*2+1}, v{e+2}, v{e+3}", "V", [ex[2], ex[3]]))
            if kb == 0:
                prev = Op(f"v_add_f32 v{V_LT+qb}, v{e}, v{e+1}", "V", [ex[0], ex[1]] + ([ladd[qb]] if qb in ladd else []))
                ops.append(prev)
                rest = [2, 3]
            else:
                rest = [0, 1, 2, 3]
            for r in rest:
                prev = Op(f"v_add_f32 v{V_LT+qb}, v{V_LT+qb}, v{e+r}", "V", [ex[r], prev])
                ops.append(prev)
        lastsum.append(prev)
    if len(qs) == 2:
        mx = Op(f"v_max_f32 v{V_T+8}, v{V_LT}, v{V_LT+1}", "V", lastsum)
        ops.append(mx)
        ops.append(Op(f"v_cmp_ngt_f32 vcc, 2.0, v{V_T+8}", "V", [mx]))
    else:
        ops.append(Op(f"v_cmp_ngt_f32 vcc, 2.0, v{V_LT+qs[0]}", "V", lastsum))
    return ops


def softmax_linear(buf, pbuf):
    ops = softmax_oplist(buf, pbuf, with_l=())
    return [o.text for o in ops if o.kind == "E"] + ["s_nop 0"] + [o.text for o in ops if o.kind == "V"]


def kv_dma(soff, i):
    return Op(f"buffer_load_dwordx4 v{V_DKV}, {sr(SRD_WS,4)}, s{soff} offen offset:{i*1024} sc1 lds", "M")


def dma_chain(kdst, vdst, vmin):
    c = [Op(f"s_cmp_lt_u32 s{S_KOFF}, s{S_KLIM}", "S"), Op(f"s_cselect_b32 s{S_TMP}, s{S_KOFF}, s{S_HUGE}", "S"),
         Op(kdst, "S"), Op(f"s_add_u32 s{S_KOFF}, s{S_KOFF}, 16384", "S")]
    c += [kv_dma(S_TMP, i) for i in range(4)]
    c += [Op(f"s_cmp_lt_u32 s{S_VOFF}, s{S_VLIM}", "S", min_gap=vmin),
          Op(f"s_cselect_b32 s{S_TMP+1}, s{S_VOFF}, s{S_HUGE}", "S"),
          Op(vdst, "S"), Op(f"s_add_u32 s{S_VOFF}, s{S_VOFF}, 16384", "S")]
    c += [kv_dma(S_TMP + 1, i) for i in range(4)]
    return c


def kv_tile_chain(which, stage):
    off = S_KOFF if which == "K" else S_VOFF
    c = [Op(f"s_add_u32 m0, s{S_B0}, {stage*32768 + (0 if which == 'K' else 16384)}", "S")]
    c += [kv_dma(off, i) for i in range(4)]
    c.append(Op(f"s_add_u32 s{off}, s{off}, 16384", "S"))
    return c


def c_mask_ops(slot, kexpr):
    b = S_WAVE if slot == 0 else S_BL1
    sal, val = [], []
    for kb in range(2):
        sa, sm_ = S_TMP + 4 + 2 * kb, S_TMP + 5 + 2 * kb
        sal += [f"s_cmp_gt_u32 {kexpr(kb)}, s{b}", f"s_cselect_b32 s{sa}, {NEG_INF:#x}, 0",
                f"s_cmp_eq_u32 {kexpr(kb)}, s{b}", f"s_cselect_b32 s{sm_}, -1, 0"]
        t = V_T + 9 + kb
        val.append(f"v_add_f32 v{t}, s{sa}, v{V_CB+slot}")
        for r in range(4):
            val.append(f"v_and_b32 v{c_reg(kb,slot)+r}, s{sm_}, v{V_DM+r}")
        for r in range(4):
            val.append(f"v_add_f32 v{c_reg(kb,slot)+r}, v{c_reg(kb,slot)+r}, v{t}")
    return sal, val


def c_update(A, tile_sgpr):
    lool, lback = A.newlabel("LC"), A.newlabel("LC")
    T = S_TMP + 2
    o = [f"{lool}:", f"s_sub_u32 s{T}, s{tile_sgpr}, s{S_TW}", f"s_lshl_b32 s{T}, s{T}, 1", f"s_add_u32 s{T+1}, s{T}, 1"]
    sal, val = c_mask_ops(0, lambda kb: f"s{T+kb}")
    o += sal + val + [f"s_branch {lback}"]
    OOL.append(o)
    return [f"s_cmp_ge_u32 s{tile_sgpr}, s{S_TW}", f"s_cbranch_scc1 {lool}\n{lback}:"]


def rare_check(A, sb, pref="LB_RARE", half=False):
    lool, lback = A.newlabel("LR"), A.newlabel("LR")
    pre = []
    if half:
        pre = [f"v_mov_b32 v{s_reg(sb,kb,0)+r}, {NEG_INF:#x}" for kb in range(2) for r in range(4)]
    OOL.append([f"{lool}:"] + pre + [f"s_call_b64 {sr(S_RET,2)}, {pref}{sb}", f"s_branch {lback}"])
    return f"s_cbranch_vccnz {lool}\n{lback}:"


PH = "DDE" * 8 + "MEMEMEMX"


def b_iter(A, par, cfg, mode="full", last=None):
    pb_cur, pb_nxt = par, 1 - par
    sb_sm, sb_qk = 1 - par, par
    both, one = (0, 1), (1,)
    pv_q = both if mode in ("full", "t4", "t3") else one
    sm_q = {"full": both, "t4": both, "t3": one, "t2": one, "t1": ()}[mode]
    l_q = pv_q
    qk_q = {"full": both, "t4": one, "t3": one}.get(mode, ())
    if mode in ("t4", "t3"):
        A.emit_list(c_mask_ops(1, lambda kb: str((4 if mode == "t4" else 6) + kb))[0])
    A({"full": "s_waitcnt vmcnt(16) lgkmcnt(0)", "t4": "s_waitcnt vmcnt(16) lgkmcnt(0)", "t3": "s_waitcnt vmcnt(8) lgkmcnt(0)",
       "t2": "s_waitcnt vmcnt(8) lgkmcnt(0)", "t1": "s_waitcnt lgkmcnt(0)"}[mode])
    A("s_barrier")
    if sm_q:
        sm = softmax_oplist(sb_sm, pb_nxt, l_q, sm_q)
        for o in sm:
            if o.kind == "E":
                o.min_gap = 2
    else:
        sm = [Op(f"v_add_f32 v{V_L+qb}, v{V_L+qb}, v{V_LT+qb}", "V") for qb in l_q]
    vrd = v_reads(V_RB0 if par == 0 else V_RB1, 49152 if par == 0 else 16384)
    flip = [Op(f"v_xor_b32 v{V_RB0}, 0x10000, v{V_RB0}", "V"), Op(f"v_xor_b32 v{V_RB1}, 0x10000, v{V_RB1}", "V")]
    if qk_q:
        m = pv_mfmas(pb_cur) + qk_mfmas(sb_qk, qk_q)
        ds = k_reads(V_RB1, 0 if par == 0 else 32768) + vrd
        if mode == "full":
            cu = c_update(A, S_T2)
            chain = [Op(cu[0], "S"), Op(cu[1], "S"), Op(f"s_add_u32 s{S_T2}, s{S_T2}, 1", "S")]
        else:
            k0 = 4 if mode == "t4" else 6
            sal, val = c_mask_ops(1, lambda kb: str(k0 + kb))
            chain = []
            cops = []
            for kb in range(2):
                v = val[9 * kb:9 * kb + 9]
                t = Op(v[0], "V", min_gap=1)
                ands = [Op(x, "V", min_gap=1) for x in v[1:5]]
                adds = [Op(x, "V", [t, a]) for x, a in zip(v[5:9], ands)]
                cops += [t] + ands + adds
            sm = cops + sm
        if mode == "full":
            if par == 0:
                chain += dma_chain(f"s_add_u32 m0, s{S_B0}, 32768", f"s_add_u32 m0, s{S_B0}, 16384", 31)
            else:
                chain += dma_chain(f"s_xor_b32 m0, s{S_B0}, 65536", f"s_add_u32 m0, s{S_B0}, 49152", 31)
                for f in flip:
                    f.min_gap = 56
                sm += flip
                chain[-4:-4] = [Op(f"s_xor_b32 s{S_B0}, s{S_B0}, 65536", "S"), Op(f"s_sub_u32 s{S_LEFT}, s{S_LEFT}, 1", "S")]
            fixed = {31: ["s_waitcnt lgkmcnt(0)"], 63: [rare_check(A, sb_sm)]}
            out, left = schedule(m, PH + PH, ds, chain, sm, fixed)
            A.emit_list(out)
            return
        tmpl = "DDF" * 2 + "DDE" * 6 + "EEEEEEEX" + "D" * 16
        if mode == "t3" and last:
            tmpl = "DDF" * 2 + "DDE" * 6 + "EEMMMMMX" + "D" * 16
            chain += last
        out, left = schedule(m, tmpl, ds, chain, sm, {31: ["s_waitcnt lgkmcnt(0)"]}, strict=False)
        assert all(o.gap is not None and o.gap < 30 for o in cops), [o.gap for o in cops]
        A.emit_list(out)
        A("s_nop 0")
        emit_left(A, left)
        if par == 1:
            A.emit_list([f.text for f in flip])
        A(rare_check(A, sb_sm, half=(len(sm_q) == 1)))
        return
    m = pv_mfmas(pb_cur, one)
    if mode == "t2":
        out, left = schedule(m, "EEEEEEEE" + "EEDDDDDD", vrd, [], sm, {}, strict=False)
        A.emit_list(out)
        A("s_nop 0")
        emit_left(A, left)
        A(rare_check(A, sb_sm, half=True))
    else:
        out, left = schedule(m, "E" + "M" * 15, [], last, sm, {}, strict=False)
        A.emit_list(out)
        emit_left(A, left)


def xquad(A, op, v, t):
    A(f"v_mov_b32 v{t}, v{v}")
    A("s_nop 1")
    A(f"v_permlane32_swap_b32 v{t}, v{v}")
    A("s_nop 1")
    A(f"{op} v{v}, v{v}, v{t}")
    A(f"v_mov_b32 v{t}, v{v}")
    A("s_nop 1")
    A(f"v_permlane16_swap_b32 v{t}, v{v}")
    A("s_nop 1")
    A(f"{op} v{v}, v{v}, v{t}")


def b_rare(A, sb):
    A.label(f"LB_RARE{sb}")
    A("s_nop 7")
    A("s_nop 7")
    so = 1 - sb
    for qb in range(2):
        d = V_T + qb
        a, b = s_reg(sb, 0, qb), s_reg(sb, 1, qb)
        A(f"v_max3_f32 v{d}, v{a}, v{a+1}, v{a+2}")
        A(f"v_max3_f32 v{d}, v{d}, v{a+3}, v{b}")
        A(f"v_max3_f32 v{d}, v{d}, v{b+1}, v{b+2}")
        A(f"v_max_f32 v{d}, v{d}, v{b+3}")
        xquad(A, "v_max_f32", d, V_T + 4)
        A(f"v_add_f32 v{d}, {f32bits(BIAS):#x}, v{d}")
        A(f"v_max_f32 v{d}, s{S_FLOOR}, v{d}")
        A(f"v_max_f32 v{V_T+2+qb}, 0, v{d}")
        A(f"v_exp_f32 v{V_T+2+qb}, -v{V_T+2+qb}")
        for kb in range(2):
            for r in range(4):
                A(f"v_sub_f32 v{s_reg(sb,kb,qb)+r}, v{s_reg(sb,kb,qb)+r}, v{d}")
                A(f"v_sub_f32 v{s_reg(so,kb,qb)+r}, v{s_reg(so,kb,qb)+r}, v{d}")
                A(f"v_sub_f32 v{c_reg(kb,qb)+r}, v{c_reg(kb,qb)+r}, v{d}")
        A(f"v_sub_f32 v{V_CB+qb}, v{V_CB+qb}, v{d}")
        A(f"v_mul_f32 v{V_L+qb}, v{V_L+qb}, v{V_T+2+qb}")
    lskip = A.newlabel("LRS")
    A(f"s_cmp_eq_u32 s{S_FIRST}, 1")
    A(f"s_cbranch_scc1 {lskip}")
    for db in range(16):
        for qb in range(2):
            for r in range(4):
                A(f"v_mul_f32 v{o_reg(db,qb)+r}, v{o_reg(db,qb)+r}, v{V_T+2+qb}")
    A.label(lskip)
    A(f"s_mov_b32 s{S_FIRST}, 0")
    A(f"s_mov_b32 s{S_FLOOR}, 0")
    for o in softmax_linear(sb, sb):
        A(o)
    A("s_nop 1")
    A(f"s_setpc_b64 {sr(S_RET,2)}")


WO_SLOT = [4, 0, 1, 2, 3, 4, 0, 1]
VF = 128
VCTX = 64


def wo_chain(chunk, slot):
    c = [Op(f"s_add_u32 s{S_TMP+2}, s{S_WOOFF}, {chunk*32*896}", "S"), Op(f"s_add_u32 m0, s{S_WOW}, {slot*32768}", "S")]
    for i in range(7):
        if i == 4:
            c.append(Op("s_add_u32 m0, m0, 4096", "S"))
        c.append(Op(f"buffer_load_dwordx4 v{V_WOD+i}, {sr(SRD_B,4)}, s{S_TMP+2} offen offset:{(i%4)*1024} lds", "M"))
    return c


def wo_reads(half, fset):
    out = []
    for i in range(14):
        b = 14 * half + i
        f = VF + (fset * 14 + i) * 4
        for e in range(2):
            out.append(f"ds_read_b64_tr_b16 {vr(f+2*e,2)}, v{V_WOR+(b&3)} offset:{(b>>2)*128+e*16*896}")
    return out


def wo_mfmas(half, fset, dg):
    out = []
    for i in range(14):
        b = 14 * half + i
        f = VF + (fset * 14 + i) * 4
        for qb in range(2):
            a = (b * 2 + qb) * 4
            c = "0" if dg == 0 else ar(a, 4)
            out.append(f"v_mfma_f32_16x16x32_bf16 {ar(a,4)}, {vr(f,4)}, {vr(VCTX+(dg*2+qb)*4,4)}, {c}")
    return out


def b_epilogue(A, cfg):
    A("s_nop 7")
    for qb in range(2):
        xquad(A, "v_add_f32", V_L + qb, V_T + 4)
        A(f"v_rcp_f32 v{V_T+2*qb}, v{V_L+qb}")
        A("s_nop 0")
        A(f"v_mov_b32 v{V_T+2*qb+1}, v{V_T+2*qb}")
    for dg in range(8):
        for qb in range(2):
            for a in range(2):
                o = o_reg(2 * dg + a, qb)
                A(f"v_pk_mul_f32 {vr(o,2)}, {vr(o,2)}, {vr(V_T+2*qb,2)}")
                A(f"v_pk_mul_f32 {vr(o+2,2)}, {vr(o+2,2)}, {vr(V_T+2*qb,2)}")
            for a in range(2):
                o = o_reg(2 * dg + a, qb)
                c = VCTX + (dg * 2 + qb) * 4 + 2 * a
                A(f"v_cvt_pk_bf16_f32 v{c}, v{o}, v{o+1}")
                A(f"v_cvt_pk_bf16_f32 v{c+1}, v{o+2}, v{o+3}")
    A("s_waitcnt vmcnt(28)")
    A("s_barrier")
    A.emit_list(wo_reads(0, 0))
    poll_test(A)
    A(f"s_cselect_b32 s{S_AQOK}, 1, 0")
    W = {6: ["s_waitcnt lgkmcnt(14)"], 13: ["s_waitcnt lgkmcnt(14)"], 20: ["s_waitcnt lgkmcnt(14)"]}
    A("s_waitcnt lgkmcnt(0)")
    seq = [(c, h) for c in range(4) for h in range(2)] + [(c, 0) for c in range(4, 8)] + [(c, 1) for c in range(4, 8)]
    early = partial_ops(2, range(7))
    cur = 0
    seen = {0}
    for k, (dg, h) in enumerate(seq):
        nxt = seq[k + 1] if k + 1 < len(seq) else None
        if nxt:
            if nxt[0] != cur:
                delta = (WO_SLOT[nxt[0]] - WO_SLOT[cur]) * 32768
                for i in range(4):
                    A(f"v_add_u32 v{V_WOR+i}, {delta & 0xffffffff:#x}, v{V_WOR+i}")
                cur = nxt[0]
            if nxt[0] not in seen:
                seen.add(nxt[0])
                c = nxt[0]
                issued = min(7, 4 + (c - 1))
                A(f"s_waitcnt vmcnt({7*(issued-c)}) lgkmcnt({0 if c <= 3 else 14})")
                A("s_barrier")
                if c <= 3:
                    emit_chain(A, wo_chain(c + 4, WO_SLOT[c + 4]))
            elif k:
                A("s_waitcnt lgkmcnt(14)")
        if k == 12:
            pop_issue(A)
            for o in early:
                o.min_gap = 3
        va = [o for o in early if o.gap is None] if k >= 12 else []
        m = wo_mfmas(h, k % 2, dg)
        if nxt:
            out, _ = schedule(m, "D" * 28, wo_reads(nxt[1], (k + 1) % 2), [], va, W, strict=False)
        else:
            A("s_waitcnt lgkmcnt(14)")
            out, left = schedule(m, "F" * 28, [], [], va, {11: ["s_waitcnt lgkmcnt(0)"]}, strict=False)
        A.emit_list(out)
        for o in early:
            o.min_gap = 0
            if o.gap is not None:
                o.gap = -1
    A.emit_list(left)
    A("s_nop 7")
    for o in partial_ops(2, range(7, 14), base=128, ngrp=8):
        A(o.text)


def partial_ops(nqb, pairs, base=64, ngrp=2):
    ops = []
    gi = 0
    last_use = {}
    for qb in range(nqb):
        first = True
        for p in pairs:
            t = base + (gi % ngrp) * 12
            prev = last_use.get(gi % ngrp, [])
            regs = [((2 * p) * nqb + qb) * 4 + r for r in range(4)] + [((2 * p + 1) * nqb + qb) * 4 + r for r in range(4)]
            rd = [Op(f"v_accvgpr_read_b32 v{t+i}, a{r}", "V", prev[:4]) for i, r in enumerate(regs)]
            cv = [Op(f"v_cvt_pk_bf16_f32 v{t+8+i}, v{t+2*i}, v{t+2*i+1}", "V", [rd[2*i], rd[2*i+1]] + prev[4:]) for i in range(4)]
            off = p * 1024
            txt = ""
            if first or off % 4096 == 0:
                txt = f"s_add_u32 s{S_TMP}, s{S_POFF if qb == 0 else S_POFF1}, {off - off % 4096}\n"
            first = False
            st = Op(txt + f"buffer_store_dwordx4 {vr(t+8,4)}, v{V_LANE16}, {sr(SRD_WS,4)}, s{S_TMP} offen offset:{off%4096} sc1", "V",
                    cv + ([ops[-1]] if ops else []))
            ops += rd + cv + [st]
            last_use[gi % ngrp] = cv + [st]
            gi += 1
    return ops


def store_partials(A, nqb, cfg):
    fl = "sc1"
    pop_issue(A)
    A("s_nop 7")
    gi = 0
    for qb in range(nqb):
        for p in range(14):
            t = 128 + (gi % 8) * 12
            gi += 1
            regs = [((2 * p) * nqb + qb) * 4 + r for r in range(4)] + [((2 * p + 1) * nqb + qb) * 4 + r for r in range(4)]
            for i, r in enumerate(regs):
                A(f"v_accvgpr_read_b32 v{t+i}, a{r}")
            for i in range(4):
                A(f"v_cvt_pk_bf16_f32 v{t+8+i}, v{t+2*i}, v{t+2*i+1}")
            off = p * 1024
            if off % 4096 == 0:
                A(f"s_add_u32 s{S_TMP}, s{S_POFF if qb == 0 else S_POFF1}, {off}")
            A(f"buffer_store_dwordx4 {vr(t+8,4)}, v{V_LANE16}, {sr(SRD_WS,4)}, s{S_TMP} offen offset:{off%4096} {fl}")


def wo_lane_setup(A):
    T = V_T
    for i in range(7):
        A(f"v_add_u32 v{T}, {64*i}, v0")
        A(f"v_mul_u32_u24 v{T+1}, 1171, v{T}")
        A(f"v_lshrrev_b32 v{T+1}, 16, v{T+1}")
        A(f"v_mul_u32_u24 v{T+2}, 56, v{T+1}")
        A(f"v_sub_u32 v{T+2}, v{T}, v{T+2}")
        A(f"v_bfe_u32 v{T+3}, v{T+1}, 1, 2")
        A(f"v_lshlrev_b32 v{T+3}, 1, v{T+3}")
        A(f"v_xor_b32 v{T+2}, v{T+2}, v{T+3}")
        A(f"v_mul_u32_u24 v{T+1}, 896, v{T+1}")
        A(f"v_lshl_add_u32 v{T+1}, v{T+2}, 4, v{T+1}")
        A(f"v_subrev_u32 v{V_WOD+i}, {(i%4)*1024}, v{T+1}")


def b_setup_kv(A):
    T = S_TMP
    A(f"s_lshl_b32 s{S_TW}, s{S_QB}, 2")
    A(f"s_add_u32 s{S_N}, s{S_TW}, 4")
    A(f"s_lshl_b32 s{S_KOFF}, s{S_HEAD}, 20")
    A(f"s_add_u32 s{S_VOFF}, s{S_KOFF}, {WS_V}")
    A(f"s_lshl_b32 s{T}, s{S_N}, 14")
    A(f"s_add_u32 s{S_KLIM}, s{S_KOFF}, s{T}")
    A(f"s_add_u32 s{S_VLIM}, s{S_VOFF}, s{T}")
    A(f"s_lshl_b32 s{S_B0}, s{S_WAVE}, 12")
    A(f"v_add_u32 v{V_DKV}, s{S_B0}, v{V_LANE16}")
    A(f"s_mov_b32 s{S_SC}, {f32bits(SCALE_B):#x}")
    A(f"s_mov_b32 s{S_SC+1}, {f32bits(SCALE_B):#x}")


def b_setup_rest(A):
    T = S_TMP
    set_srd(A, SRD_B, P_WOB, 4096 * 448 * 2)
    A(f"v_and_b32 v{V_T}, 15, v0")
    A(f"v_lshrrev_b32 v{V_T+1}, 4, v0")
    A(f"v_lshlrev_b32 v{V_T+2}, 2, v{V_T+1}")
    A(f"v_mov_b32 v{V_T+4}, {NEG_INF:#x}")
    for r in range(4):
        A(f"v_add_u32 v{V_T+3}, {r}, v{V_T+2}")
        A(f"v_cmp_gt_u32 vcc, v{V_T+3}, v{V_T}")
        A("s_nop 1")
        A(f"v_cndmask_b32 v{V_DM+r}, 0, v{V_T+4}, vcc")
    A(f"v_bfe_u32 v{V_T+3}, v0, 2, 2")
    A(f"v_add_u32 v{V_T+3}, v{V_T+3}, v{V_T+2}")
    A(f"v_bfe_u32 v{V_T+5}, v{V_T+3}, 1, 2")
    A(f"v_mul_u32_u24 v{V_T+3}, 896, v{V_T+3}")
    A(f"v_and_b32 v{V_T+6}, 3, v0")
    A(f"v_lshl_add_u32 v{V_T+3}, v{V_T+6}, 3, v{V_T+3}")
    A(f"v_add_u32 v{V_T+3}, {WO_SLOT[0]*32768}, v{V_T+3}")
    for b in range(4):
        A(f"v_xor_b32 v{V_T+6}, {b}, v{V_T+5}")
        A(f"v_lshl_add_u32 v{V_WOR+b}, v{V_T+6}, 5, v{V_T+3}")
    wo_lane_setup(A)
    A(f"s_mul_i32 s{S_WOOFF}, s{S_HEAD}, {256*896}")
    A(f"s_mul_i32 s{S_WOW}, s{S_WAVE}, {8*896}")
    A(f"s_add_u32 s{S_WOOFF}, s{S_WOOFF}, s{S_WOW}")
    A(f"s_add_u32 s{S_POFF}, s{S_HEAD}, 4")
    A(f"s_mul_i32 s{S_POFF}, s{S_POFF}, {P_SLOT}")
    A(f"s_mul_i32 s{T}, s{S_QB}, {8*14*1024}")
    A(f"s_add_u32 s{S_POFF}, s{S_POFF}, s{T}")
    A(f"s_add_u32 s{S_POFF}, s{S_POFF}, {WS_P}")
    A(f"s_sub_u32 s{S_BL1}, 7, s{S_WAVE}")
    A(f"s_mul_i32 s{T}, s{S_BL1}, {14*1024}")
    A(f"s_add_u32 s{S_POFF1}, s{S_POFF}, s{T}")
    A(f"s_mul_i32 s{T}, s{S_WAVE}, {14*1024}")
    A(f"s_add_u32 s{S_POFF}, s{S_POFF}, s{T}")
    A(f"s_lshl_b32 s{T}, s{S_BL1}, 13")
    A(f"s_add_u32 s{T}, s{T}, {XQ}")
    A(f"v_add_u32 v{V_XQW}, s{T}, v{V_LANE16}")
    A(f"s_lshl_b32 s{S_RFLAG}, s{S_QB}, 8")
    A(f"s_lshl_b32 s{T}, s{S_HEAD}, 2")
    A(f"s_add_u32 s{S_RFLAG}, s{S_RFLAG}, s{T}")
    A(f"s_add_u32 s{S_RFLAG}, s{S_RFLAG}, {F_ROW}")
    A(f"s_mov_b32 s{S_RMASK}, 1")
    A(f"s_mov_b32 s{S_HUGE}, {HUGE}")
    A(f"s_mov_b32 s{S_FLOOR}, {NEG_INF:#x}")
    A(f"s_mov_b32 s{S_FIRST}, 1")
    for r in range(16):
        A(f"v_mov_b32 v{VC+r}, 0")
    for r in (V_CB, V_CB + 1, V_L, V_L + 1, V_LT, V_LT + 1):
        A(f"v_mov_b32 v{r}, 0")
    A(f"v_mov_b32 v{V_RB0}, v{V_LANE16}")
    A(f"v_add_u32 v{V_RB1}, 0x10000, v{V_LANE16}")
    A(f"s_mov_b32 s{S_T2}, 0")
    A.emit_list(c_update(A, S_T2))


def b_main(A, cfg):
    T = S_TMP
    A("s_waitcnt vmcnt(12) lgkmcnt(0)")
    A("s_barrier")
    if not cfg.get("stamp_lp"):
        stamp(A, cfg, 3)
    for i in range(16):
        A(f"ds_read_b128 {ar(AQ+i*4,4)}, v{V_XQR if i < 8 else V_XQW} offset:{(i%8)*1024}")
    A.emit_list(k_reads(V_RB0, 0))
    zero = [Op(f"v_mov_b32 v{VO+r}, 0", "V") for r in range(128)]
    for z in zero[:24]:
        A(z.text)
    A("s_waitcnt lgkmcnt(0)")
    out, left = schedule(qk_mfmas(0), "DF" * 16, v_reads(V_RB0, 16384), [], zero[24:72], {})
    A.emit_list(out)
    A.emit_list(k_reads(V_RB0, 32768))
    A(f"s_mov_b32 s{S_T2}, 1")
    A.emit_list(c_update(A, S_T2))
    A("s_waitcnt vmcnt(0) lgkmcnt(0)")
    A("s_barrier")
    A(f"s_lshl_b32 s{T+4}, s{S_HEAD}, 6")
    A(f"s_lshl_b32 s{T+5}, s{S_QB}, 2")
    A(f"s_add_u32 s{T+4}, s{T+4}, s{T+5}")
    A(f"s_add_u32 s{T+4}, s{T+4}, {F_AQ}")
    signal(A, T + 4)
    signal(A, S_GHEAD, grp=1)
    ch = kv_tile_chain("K", 3) + kv_tile_chain("V", 3)
    ch += [Op(f"s_cmp_lt_u32 s{S_KOFF}, s{S_KLIM}", "S"), Op(f"s_cselect_b32 s{T}, s{S_KOFF}, s{S_HUGE}", "S"),
           Op(f"s_mov_b32 m0, s{S_B0}", "S"), Op(f"s_add_u32 s{S_KOFF}, s{S_KOFF}, 16384", "S")]
    ch += [kv_dma(T, i) for i in range(4)]
    out, left = schedule(qk_mfmas(1), "FM" * 16, [], ch, zero[72:], {}, strict=False)
    A.emit_list(out)
    emit_left(A, left)
    A(f"v_lshlrev_b32 v{V_SIG+1}, 7, v0")
    A(f"buffer_load_dword v{V_SIG}, v{V_SIG+1}, {sr(SRD_B,4)}, s{S_TBOFF} offen")
    A(f"s_call_b64 {sr(S_RET,2)}, LB_RARE0")
    A(f"s_mov_b32 s{S_T2}, 2")
    A(f"s_lshr_b32 s{S_ITEM}, s{S_N}, 1")
    A(f"s_sub_u32 s{S_ITEM}, s{S_ITEM}, 2")
    A(f"s_cmp_ge_u32 s{S_QB}, 8")
    A(f"s_cselect_b32 s{S_LEFT}, 10, s{S_ITEM}")
    A(f"s_cselect_b32 s{S_EV}, 0, 2")
    stamp(A, cfg, 4)
    A(f"s_cmp_eq_u32 s{S_LEFT}, 0")
    A("s_cbranch_scc1 LB_DONE")
    A.label("LB_LOOP")
    b_iter(A, 0, cfg)
    b_iter(A, 1, cfg)
    if cfg.get("bdiag"):
        A("s_memtime s[100:101]")
        A("s_memrealtime s[98:99]")
        A(f"s_lshr_b32 m0, s{S_T2}, 1")
        A("s_waitcnt lgkmcnt(0)")
        A("v_writelane_b32 v28, s100, m0")
        A("v_writelane_b32 v29, s98, m0")
    A(f"s_cmp_lg_u32 s{S_LEFT}, 0")
    A("s_cbranch_scc1 LB_LOOP")
    A(f"s_cmp_eq_u32 s{S_EV}, 2")
    A("s_cbranch_scc1 LB_DONE")
    A(f"s_cmp_eq_u32 s{S_EV}, 1")
    A("s_cbranch_scc1 LB_EV1")
    A(f"s_mov_b32 s{S_EV}, 1")
    A(f"s_mov_b32 s{S_LEFT}, 2")
    poll_issue(A, S_HEAD, F_KV + 4096, 8)
    A("s_branch LB_LOOP")
    A.label("LB_EV1")
    A(f"s_mov_b32 s{S_EV}, 2")
    A(f"s_sub_u32 s{S_LEFT}, s{S_ITEM}, 12")
    poll_test(A)
    A("s_cbranch_scc1 LB_LOOP")
    poll_wait(A, True)
    A("s_branch LB_LOOP")
    A.label("LB_DONE")
    b_iter(A, 0, cfg, "t4")
    A(f"s_and_b32 s{T+1}, s2, 3")
    pi = Asm()
    poll_issue(pi, T + 1, F_AQ, 64)
    pil = [l.strip() for l in pi.lines]
    for l in pil[:-1]:
        A(l)
    b_iter(A, 1, cfg, "t3", last=[Op(pil[-1], "M")] + wo_chain(0, WO_SLOT[0]))
    b_iter(A, 0, cfg, "t2")
    last = []
    for c in range(1, 5):
        last += wo_chain(c, WO_SLOT[c])
    b_iter(A, 1, cfg, "t1", last=last)
    if cfg.get("bdiag"):
        A(f"s_lshl_b32 s{T}, s2, 2")
        A(f"s_add_u32 s{T}, s{T}, s{S_WAVE}")
        A(f"s_lshl_b32 s{T}, s{T}, 9")
        A(f"s_add_u32 s{T}, s{T}, {232 << 20}")
        A(f"v_lshrrev_b32 v27, 2, v{V_LANE16}")
        A(f"buffer_store_dword v28, v27, {sr(SRD_WS,4)}, s{T} offen")
        A(f"buffer_store_dword v29, v27, {sr(SRD_WS,4)}, s{T} offen offset:256")
    stamp(A, cfg, 5)
    b_epilogue(A, cfg)


AS = [64, 96]
AC = 128
AO = 160
AP = [192, 208]
AE = 224
QA_, KA_, VA_ = 0, 16, 48
XB = 114688
V_XW = 2
V_OR = 14


def a_qk(buf, slot):
    out = []
    for qb in range(2):
        d = vr(AS[buf] + qb * 16, 16)
        out.append(f"v_mfma_f32_32x32x16_bf16 {d}, {ar(KA_+slot*8,4)}, {ar(QA_+qb*8,4)}, {vr(AC+qb*16,16)}")
    for qb in range(2):
        d = vr(AS[buf] + qb * 16, 16)
        out.append(f"v_mfma_f32_32x32x16_bf16 {d}, {ar(KA_+slot*8+4,4)}, {ar(QA_+qb*8+4,4)}, {d}")
    return out


def a_pv(pbuf, slot):
    out = []
    for g in range(2):
        for qb in range(2):
            d = vr(AO + qb * 16, 16)
            out.append(f"v_mfma_f32_32x32x16_bf16 {d}, {ar(VA_+slot*8+g*4,4)}, {vr(AP[pbuf]+qb*8+g*4,4)}, {d}")
    return out


A_DELAY = 3


def a_softmax(buf):
    s, p = AS[buf], AP[buf]
    out = []
    pend = []
    for k in range(16):
        pend.append((2 * k + 1 + A_DELAY, f"v_cvt_pk_bf16_f32 v{p+k}, v{AE+((2*k)%16)}, v{AE+((2*k+1)%16)}"))
        if k == 2:
            pend.append((2 * k + 2 + A_DELAY, f"v_or_b32 v{V_OR}, v{p}, v{p+1}"))
        elif k > 2 and k % 2 == 0:
            pend.append((2 * k + 2 + A_DELAY, f"v_or3_b32 v{V_OR}, v{V_OR}, v{p+k-2}, v{p+k-1}"))
    for i in range(32):
        out.append(f"v_exp_f32 v{AE+(i%16)}, v{s+i}")
        if pend and pend[0][0] <= i:
            out.append(pend.pop(0)[1])
    out.extend(t for _, t in pend)
    out.append(f"v_or3_b32 v{V_OR}, v{V_OR}, v{p+14}, v{p+15}")
    out.append(f"v_and_b32 v{V_OR}, s{S_MASK}, v{V_OR}")
    out.append(f"v_cmp_ne_u32 vcc, 0, v{V_OR}")
    return out


def a_loads(kslot, vslot):
    k = [f"buffer_load_dwordx4 {ar(KA_+kslot*8+4*s,4)}, v{V_LANE16}, {sr(SRD_WS,4)}, s{S_KOFF} offen offset:{s*1024} sc1" for s in range(2)]
    k += [f"s_add_u32 s{S_KOFF}, s{S_KOFF}, 2048", f"s_min_u32 s{S_KOFF}, s{S_KOFF}, s{S_KLIM}"]
    v = [f"buffer_load_dwordx4 {ar(VA_+vslot*8+4*s,4)}, v{V_LANE16}, {sr(SRD_WS,4)}, s{S_VOFF} offen offset:{s*1024} sc1" for s in range(2)]
    v += [f"s_add_u32 s{S_VOFF}, s{S_VOFF}, 2048", f"s_min_u32 s{S_VOFF}, s{S_VOFF}, s{S_VLIM}"]
    return k, v


def a_iter(A, u, cfg):
    par = u % 2
    A("s_waitcnt vmcnt(12)")
    sm = a_softmax(par)
    mq, mp = a_qk(1 - par, (u + 1) % 4), a_pv(1 - par, (u - 1) % 4)
    lk, lv = a_loads((u + 1) % 4, (u - 1) % 4)
    n = len(sm)
    ms = mq + mp
    pos = spread(8, -1, n - 8)
    riders = {3: [lk[0]], 4: [lk[1]], 5: [lk[2]], 6: [lk[3]], 7: [lv[0]]}
    sides = []
    for i, (p, m) in enumerate(zip(pos, ms)):
        sides.append((p, [m] + riders.get(i, [])))
    sides.append((n - 4, [lv[1]]))
    sides.append((n - 2, [lv[2]]))
    sides.append((n - 1, [lv[3]]))
    body = interleave(sm, sides)
    if cfg.get("a_noload"):
        body = [b for b in body if not b.startswith("buffer_load")]
    if cfg.get("a_nosc1"):
        body = [b.replace(" sc1", "") for b in body]
    if cfg.get("a_nomfma"):
        body = [b for b in body if not b.startswith("v_mfma")]
    A.emit_list(body)
    A(rare_check(A, par, "LA_RARE"))


def a_softmax_fast(buf):
    s, p = AS[buf], AP[buf]
    out = []
    pend = [(2 * k + 1 + A_DELAY, f"v_cvt_pk_bf16_f32 v{p+k}, v{AE+((2*k)%16)}, v{AE+((2*k+1)%16)}") for k in range(16)]
    for i in range(32):
        out.append(f"v_exp_f32_e64 v{AE+(i%16)}, v{s+i} clamp")
        if pend and pend[0][0] <= i:
            out.append(pend.pop(0)[1])
    out.extend(t for _, t in pend)
    return out


def a_iter_fast(A, u, cfg):
    par = u % 2
    sm = a_softmax_fast(par)
    mq, mp = a_qk(1 - par, (u + 1) % 4), a_pv(1 - par, (u - 1) % 4)
    lk, lv = a_loads((u + 1) % 4, (u - 1) % 4)
    n = len(sm)
    ms = mp + mq
    pos = spread(8, 0, n - 9)
    riders = {0: lk[2], 1: lk[3], 2: lv[0], 3: lv[1], 4: lv[2], 5: lv[3], 6: lk[0], 7: lk[1]}
    sides = [(pos[0], ["s_waitcnt vmcnt(12)"])]
    for i, (p, m) in enumerate(zip(pos, ms)):
        sides.append((p, [m, riders[i]]))
    A.emit_list(interleave(sm, sides))


def a_rare(A, sb):
    A.label(f"LA_RARE{sb}")
    A("s_nop 7")
    A("s_nop 7")
    so = 1 - sb
    for qb in range(2):
        d, f, t = V_T + qb, V_T + 2 + qb, V_T + 4
        s = AS[sb] + qb * 16
        A(f"v_max3_f32 v{d}, v{s}, v{s+1}, v{s+2}")
        for i in range(3, 15, 2):
            A(f"v_max3_f32 v{d}, v{d}, v{s+i}, v{s+i+1}")
        A(f"v_max_f32 v{d}, v{d}, v{s+15}")
        A(f"v_mov_b32 v{t}, v{d}")
        A("s_nop 1")
        A(f"v_permlane32_swap_b32 v{t}, v{d}")
        A("s_nop 1")
        A(f"v_max_f32 v{d}, v{d}, v{t}")
        A(f"v_add_f32 v{d}, {f32bits(BIAS):#x}, v{d}")
        A(f"v_max_f32 v{d}, s{S_FLOOR}, v{d}")
        A(f"v_max_f32 v{f}, 0, v{d}")
        A(f"v_exp_f32 v{f}, -v{f}")
        for r in range(16):
            A(f"v_sub_f32 v{s+r}, v{s+r}, v{d}")
            A(f"v_sub_f32 v{AS[so]+qb*16+r}, v{AS[so]+qb*16+r}, v{d}")
            A(f"v_sub_f32 v{AC+qb*16+r}, v{AC+qb*16+r}, v{d}")
            A(f"v_mul_f32 v{AO+qb*16+r}, v{AO+qb*16+r}, v{f}")
    A(f"s_mov_b32 s{S_FLOOR}, 0")
    lskip = A.newlabel("LAS")
    A(f"s_cmp_eq_u32 s{S_FIRST}, 1")
    A(f"s_mov_b32 s{S_FIRST}, 0")
    A(f"s_cbranch_scc1 {lskip}")
    for o in a_softmax(sb):
        A(o)
    A.label(lskip)
    A("s_nop 1")
    A(f"s_setpc_b64 {sr(S_RET,2)}")


def a_counts(cfg):
    nf, nh = cfg.get("nf", 10), cfg.get("nh", 4)
    nq = 16 - nf - nh
    return nf, nh, nq, nf + 2 * nh + 4 * nq


def a_item(A, cfg):
    T = S_TMP
    stamp(A, cfg, 0)
    A(f"s_and_b32 s{T+1}, s2, 3")
    lq = A.newlabel("LAQ")
    A(f"s_cmp_eq_u32 s{S_AQOK}, 1")
    A(f"s_cbranch_scc1 {lq}")
    poll_issue(A, T + 1, F_AQ, 64)
    poll_wait(A)
    A(f"s_mov_b32 s{S_AQOK}, 1")
    A.label(lq)
    NF, NH, NQ, NA = a_counts(cfg)
    SP = S_N
    A(f"s_cmp_ge_u32 s{S_ITEM}, {NF}")
    A(f"s_cselect_b32 s{SP}, 1, 0")
    A(f"s_cselect_b32 s{T+2}, {NF}, 0")
    A(f"s_cselect_b32 s{T+3}, {NF}, 0")
    A(f"s_cmp_ge_u32 s{S_ITEM}, {NF + 2*NH}")
    A(f"s_cselect_b32 s{SP}, 2, s{SP}")
    A(f"s_cselect_b32 s{T+2}, {NF + 2*NH}, s{T+2}")
    A(f"s_cselect_b32 s{T+3}, {NF + NH}, s{T+3}")
    A(f"s_sub_u32 s{T+2}, s{S_ITEM}, s{T+2}")
    A(f"s_lshl_b32 s{T+5}, 1, s{SP}")
    A(f"s_sub_u32 s{T+5}, s{T+5}, 1")
    A(f"s_and_b32 s{T+6}, s{T+2}, s{T+5}")
    A(f"s_lshr_b32 s{T+2}, s{T+2}, s{SP}")
    A(f"s_add_u32 s{T+2}, s{T+2}, s{T+3}")
    A(f"s_sub_u32 s{T+4}, 2, s{SP}")
    A(f"s_lshl_b32 s{T+3}, s{T+6}, s{T+4}")
    A(f"s_lshr_b32 s{T+4}, s{S_WAVE}, s{SP}")
    A(f"s_add_u32 s{T+3}, s{T+3}, s{T+4}")
    A(f"s_and_b32 s{T+4}, s{S_WAVE}, s{T+5}")
    A(f"s_sub_u32 s{T+5}, 17, s{SP}")
    A(f"s_lshl_b32 s{T+4}, s{T+4}, s{T+5}")
    A(f"s_lshr_b32 s{S_LEFT}, 16, s{SP}")
    A(f"s_lshr_b32 s{T+5}, {64*2048}, s{SP}")
    A(f"s_sub_u32 s{T+5}, s{T+5}, 2048")
    A(f"s_cmp_ge_u32 s{SP}, 1")
    A(f"s_cselect_b32 s{S_KAP}, 1.0, 0")
    A(f"s_cselect_b32 s{S_EV}, 1024, 0")
    A(f"s_cselect_b32 s{S_RMASK}, 5, 15")
    A(f"s_cmp_ge_u32 s{SP}, 2")
    A(f"s_cselect_b32 s{S_T2}, 1.0, 0")
    A(f"s_cselect_b32 s{S_TW}, 2048, 0")
    A(f"s_cselect_b32 s{S_RMASK}, 1, s{S_RMASK}")
    A(f"s_bfe_u32 s{T}, s2, 0x10002")
    A(f"s_lshl_b32 s{T}, s{T}, 4")
    A(f"s_add_u32 s{T+2}, s{T+2}, s{T}")
    A(f"s_lshl_b32 s{T}, s{T+1}, 2")
    A(f"s_add_u32 s{T+3}, s{T+3}, s{T}")
    A(f"s_mul_i32 s{S_WOOFF}, s{T+3}, {28*896}")
    A(f"s_lshl_b32 s{T+3}, s{T+3}, 17")
    A(f"s_add_u32 s{S_KOFF}, s{T+3}, s{T+4}")
    A(f"s_add_u32 s{S_VOFF}, s{S_KOFF}, {WS_VA}")
    A(f"s_add_u32 s{S_KOFF}, s{S_KOFF}, {WS_KA}")
    A(f"s_add_u32 s{S_KLIM}, s{S_KOFF}, s{T+5}")
    A(f"s_add_u32 s{S_VLIM}, s{S_VOFF}, s{T+5}")
    A(f"s_lshl_b32 s{T+4}, s{T+2}, 12")
    A(f"s_add_u32 s{T+4}, s{T+4}, s{T+3}")
    A(f"s_add_u32 s{T+4}, s{T+4}, {WS_QA}")
    for i in range(4):
        A(f"buffer_load_dwordx4 {ar(QA_+4*i,4)}, v{V_LANE16}, {sr(SRD_WS,4)}, s{T+4} offen offset:{i*1024} sc1")
    lk, _ = a_loads(0, 0)
    A.emit_list(lk)
    for t in (-4, -3, -2):
        lk, lv = a_loads((t + 5) % 4, (t + 3) % 4)
        A.emit_list(lk)
        if t + 3 >= 0:
            A.emit_list(lv)
    set_srd(A, SRD_B, P_WOA, 448 * 448 * 2)
    A(f"s_lshr_b32 s{S_RFLAG}, s{T+2}, 1")
    A(f"s_lshl_b32 s{S_RFLAG}, s{S_RFLAG}, 8")
    A(f"s_and_b32 s{T+3}, s{T+2}, 1")
    A(f"s_lshl_b32 s{T+3}, s{T+3}, 2")
    A(f"s_add_u32 s{T+3}, s{T+3}, s{T+1}")
    A(f"s_lshl_b32 s{T}, s{T+6}, 3")
    A(f"s_add_u32 s{T+3}, s{T+3}, s{T}")
    A(f"s_lshl_b32 s{T+3}, s{T+3}, 2")
    A(f"s_add_u32 s{S_RFLAG}, s{S_RFLAG}, s{T+3}")
    A(f"s_add_u32 s{S_RFLAG}, s{S_RFLAG}, {F_ROW + 64}")
    A(f"s_lshl_b32 s{T}, s{T+6}, 2")
    A(f"s_add_u32 s{T}, s{T}, 16")
    A(f"s_cmp_eq_u32 s{T+6}, 0")
    A(f"s_cselect_b32 s{T}, 0, s{T}")
    A(f"s_add_u32 s{T}, s{T}, s{T+1}")
    A(f"s_mul_i32 s{S_POFF}, s{T}, {P_SLOT}")
    A(f"s_lshl_b32 s{T+3}, s{T+2}, 2")
    A(f"s_add_u32 s{T+3}, s{T+3}, s{S_WAVE}")
    A(f"s_mul_i32 s{T+3}, s{T+3}, {14*1024}")
    A(f"s_add_u32 s{S_POFF}, s{S_POFF}, s{T+3}")
    A(f"s_add_u32 s{S_POFF}, s{S_POFF}, {WS_P}")
    A(f"s_mul_i32 s{S_WOW}, s{S_WAVE}, {32*896}")
    A(f"s_mov_b32 s{S_MASK}, 0x40004000")
    A(f"s_mov_b32 s{S_FLOOR}, {NEG_INF:#x}")
    A(f"s_mov_b32 s{S_FIRST}, 1")
    for r in range(32):
        A(f"v_mov_b32 v{AC+r}, 0")
        A(f"v_mov_b32 v{AO+r}, 0")
        A(f"v_mov_b32 v{AS[1]+r}, 0")
    for r in range(16):
        A(f"v_mov_b32 v{AP[1]+r}, 0")
    for r in range(8):
        A(f"v_accvgpr_write_b32 a{VA_+3*8+r}, 0")
    A(f"v_bfe_u32 v{V_T}, v0, 3, 1")
    A(f"v_lshlrev_b32 v{V_T}, 10, v{V_T}")
    A(f"v_lshrrev_b32 v{V_T+1}, 5, v0")
    A(f"v_lshl_add_u32 v{V_T}, v{V_T+1}, 8, v{V_T}")
    A(f"v_bfe_u32 v{V_T+1}, v0, 4, 1")
    A(f"v_lshl_add_u32 v{V_T}, v{V_T+1}, 7, v{V_T}")
    A(f"v_and_b32 v{V_T+1}, 7, v0")
    A(f"v_lshl_add_u32 v{V_T}, v{V_T+1}, 4, v{V_T}")
    A(f"s_lshl_b32 s{T+5}, s{S_WAVE}, 12")
    A(f"s_add_u32 s{T+5}, s{T+5}, {XB}")
    A(f"v_add_u32 v{V_XW}, s{T+5}, v{V_T}")
    A(f"v_bfe_u32 v{V_T}, v0, 2, 3")
    A(f"v_bfe_u32 v{V_T+2}, v{V_T}, 1, 2")
    A(f"v_lshrrev_b32 v{V_T+1}, 5, v0")
    A(f"v_lshl_add_u32 v{V_T}, v{V_T+1}, 4, v{V_T}")
    A(f"v_mul_u32_u24 v{V_T}, 896, v{V_T}")
    A(f"v_and_b32 v{V_T+1}, 3, v0")
    A(f"v_lshl_add_u32 v{V_T}, v{V_T+1}, 3, v{V_T}")
    for b in range(4):
        A(f"v_xor_b32 v{V_T+1}, {b}, v{V_T+2}")
        A(f"v_lshl_add_u32 v{V_WOR+b}, v{V_T+1}, 5, v{V_T}")
    A("s_waitcnt vmcnt(10)")
    A("s_barrier")
    signal(A, S_PFLAG, mask_sgpr=S_PMASK)
    stamp(A, cfg, 1)
    A.emit_list(a_qk(0, 0))
    lk, lv = a_loads(0, 2)
    A.emit_list(lv)
    A.emit_list(lk[:2])
    A(f"s_mov_b32 m0, s{S_WOW}")
    A(f"s_add_u32 s{S_WOW}, s{S_WOW}, {8*896}")
    for i in range(7):
        if i == 4:
            A("s_add_u32 m0, m0, 4096")
            A("s_nop 0")
        A(f"buffer_load_dwordx4 v{V_WOD+i}, {sr(SRD_B,4)}, s{S_WOOFF} offen offset:{(i%4)*1024} lds")
    A(f"s_add_u32 s{S_WOOFF}, s{S_WOOFF}, {8*896}")
    A(f"s_call_b64 {sr(S_RET,2)}, LA_RARE0")
    stamp(A, cfg, 2)
    A.label("LA_FLOOP")
    for u in range(4):
        a_iter_fast(A, u, cfg)
    A(f"s_sub_u32 s{S_LEFT}, s{S_LEFT}, 1")
    A(f"s_cmp_gt_u32 s{S_LEFT}, 3")
    A("s_cbranch_scc1 LA_FLOOP")
    A(f"s_cmp_eq_u32 s{S_LEFT}, 0")
    A("s_cbranch_scc1 LA_FFIN")
    A(f"s_mov_b32 m0, s{S_WOW}")
    A(f"s_add_u32 s{S_WOW}, s{S_WOW}, {8*896}")
    for i in range(7):
        if i == 4:
            A("s_add_u32 m0, m0, 4096")
            A("s_nop 0")
        A(f"buffer_load_dwordx4 v{V_WOD+i}, {sr(SRD_B,4)}, s{S_WOOFF} offen offset:{(i%4)*1024} lds")
    A(f"s_add_u32 s{S_WOOFF}, s{S_WOOFF}, {8*896}")
    A("s_branch LA_FLOOP")
    A.label("LA_FFIN")
    A("s_waitcnt vmcnt(12)")
    A.emit_list(a_pv(1, 3))
    A("s_nop 7")
    A("s_nop 7")
    A(f"v_max_f32 v{V_T}, v{AO+12}, v{AO+28}")
    A(f"v_cmp_ngt_f32 vcc, 0.5, v{V_T}")
    A("s_nop 3")
    A("s_cmp_lg_u32 vcc_hi, 0")
    A("s_cbranch_scc1 LA_REDO")
    A.label("LA_EPI")
    stamp(A, cfg, 3)
    A(f"v_cmp_gt_u32 vcc, 32, v0")
    A("s_nop 7")
    A("s_nop 7")
    X = 24
    for qb in range(2):
        o = AO + qb * 16
        A(f"v_mov_b32 v{V_T}, v{o+12}")
        A(f"v_mov_b32 v{X+2*qb+1}, v{o+12}")
        A(f"v_mov_b32 v{X+2*qb}, v{AC+qb*16}")
        A("s_nop 0")
        A(f"v_permlane32_swap_b32 v{V_T}, v{X+2*qb+1}")
    A(f"s_lshl_b32 s{T+5}, s{S_WAVE}, 10")
    A(f"s_add_u32 s{T+5}, s{T+5}, {XB+16384}")
    A(f"v_add_u32 v{V_T}, s{T+5}, v{V_LANE16}")
    A(f"ds_write_b128 v{V_T}, {vr(X,4)}")
    A(f"v_xor_b32 v{V_T+1}, s{S_EV}, v{V_T}")
    A(f"v_xor_b32 v{V_T+2}, s{S_TW}, v{V_T}")
    A(f"v_xor_b32 v{V_T+3}, s{S_TW}, v{V_T+1}")
    A("s_waitcnt lgkmcnt(0)")
    A("s_barrier")
    PR = [100, 104, 108]
    for i in range(3):
        A(f"ds_read_b128 {vr(PR[i],4)}, v{V_T+1+i}")
    A("s_waitcnt lgkmcnt(0)")
    for qb in range(2):
        o = AO + qb * 16
        c1, l1 = X + 2 * qb, X + 2 * qb + 1
        a, b, inv, invh = V_T, V_T + 1, V_T + 2, V_T + 3
        A(f"v_min_f32 v{a}, v{c1}, v{PR[0]+2*qb}")
        A(f"v_min3_f32 v{a}, v{a}, v{PR[1]+2*qb}, v{PR[2]+2*qb}")
        for i in range(3):
            A(f"v_sub_f32 v{PR[i]+2*qb}, v{a}, v{PR[i]+2*qb}")
            A(f"v_exp_f32 v{PR[i]+2*qb}, v{PR[i]+2*qb}")
            A(f"v_mul_f32 v{PR[i]+2*qb+1}, s{S_KAP if i == 0 else S_T2}, v{PR[i]+2*qb+1}")
        A(f"v_sub_f32 v{a}, v{a}, v{c1}")
        A(f"v_exp_f32 v{a}, v{a}")
        A("s_nop 0")
        A(f"v_mul_f32 v{l1}, v{l1}, v{a}")
        for i in range(3):
            A(f"v_fma_f32 v{l1}, v{PR[i]+2*qb}, v{PR[i]+2*qb+1}, v{l1}")
        A(f"v_rcp_f32 v{inv}, v{l1}")
        A("s_nop 0")
        A(f"v_mul_f32 v{inv}, v{inv}, v{a}")
        A(f"v_cndmask_b32 v{invh}, 0, v{inv}, vcc")
        for r in range(16):
            A(f"v_mul_f32 v{o+r}, v{o+r}, v{inv if r < 12 else invh}")
        for g in range(2):
            c = AS[0] + (qb * 2 + g) * 4
            for i in range(4):
                A(f"v_cvt_pk_bf16_f32 v{c+i}, v{o+8*g+2*i}, v{o+8*g+2*i+1}")
            A(f"ds_write_b128 v{V_XW}, {vr(c,4)} offset:{qb*2048+g*512}")
    A("s_waitcnt vmcnt(0) lgkmcnt(0)")
    A("s_barrier")
    A(f"s_lshl_b32 s{T+5}, s{S_WAVE}, 10")
    A(f"s_add_u32 s{T+5}, s{T+5}, {XB}")
    A(f"v_add_u32 v{V_T}, s{T+5}, v{V_LANE16}")
    VB = 96
    for w in range(4):
        A(f"ds_read_b128 {vr(VB+4*w,4)}, v{V_T} offset:{w*4096}")

    def reads(w, half, fset):
        out = []
        for i in range(14):
            b = 14 * half + i
            f = VF + (fset * 14 + i) * 4
            for e in range(2):
                out.append(f"ds_read_b64_tr_b16 {vr(f+2*e,2)}, v{V_WOR+(b&3)} offset:{(b>>2)*128+e*8*896+(w&1)*32*896}")
        return out

    def mf(w, half, fset):
        out = []
        for i in range(14):
            b = 14 * half + i
            f = VF + (fset * 14 + i) * 4
            c = "0" if w == 0 else ar(b * 4, 4)
            out.append(f"v_mfma_f32_16x16x32_bf16 {ar(b*4,4)}, {vr(f,4)}, {vr(VB+4*w,4)}, {c}")
        return out

    seq = [(w, h) for w in range(4) for h in range(2)]
    A.emit_list(reads(0, 0, 0))
    for k, (w, h) in enumerate(seq):
        if k + 1 < len(seq):
            w2, h2 = seq[k + 1]
            if (w2, h2) == (2, 0):
                for b in range(4):
                    A(f"v_add_u32 v{V_WOR+b}, {2*32*896}, v{V_WOR+b}")
            rd = reads(w2, h2, (k + 1) % 2)
            A.emit_list(rd[:14])
            A("s_waitcnt lgkmcnt(14)")
            A.emit_list(interleave(mf(w, h, k % 2), [(i, [r]) for i, r in enumerate(rd[14:])]))
        else:
            A("s_waitcnt lgkmcnt(0)")
            A.emit_list(mf(w, h, k % 2))
    store_partials(A, 1, cfg)


def a_redo(A, cfg):
    T = S_TMP
    A.label("LA_REDO")
    A("s_waitcnt vmcnt(0)")
    A(f"s_lshr_b32 s{S_LEFT}, 16, s{S_N}")
    A(f"s_lshr_b32 s{T+5}, {64*2048}, s{S_N}")
    A(f"s_sub_u32 s{T+5}, s{T+5}, 2048")
    A(f"s_sub_u32 s{S_KOFF}, s{S_KLIM}, s{T+5}")
    A(f"s_sub_u32 s{S_VOFF}, s{S_VLIM}, s{T+5}")
    lk, _ = a_loads(0, 0)
    A.emit_list(lk)
    for t in (-4, -3, -2):
        lk, lv = a_loads((t + 5) % 4, (t + 3) % 4)
        A.emit_list(lk)
        if t + 3 >= 0:
            A.emit_list(lv)
    A(f"s_mov_b32 s{S_FLOOR}, {NEG_INF:#x}")
    A(f"s_mov_b32 s{S_FIRST}, 1")
    for r in range(32):
        A(f"v_mov_b32 v{AC+r}, 0")
        A(f"v_mov_b32 v{AO+r}, 0")
        A(f"v_mov_b32 v{AS[1]+r}, 0")
    for r in range(16):
        A(f"v_mov_b32 v{AP[1]+r}, 0")
    for r in range(8):
        A(f"v_accvgpr_write_b32 a{VA_+3*8+r}, 0")
    A("s_waitcnt vmcnt(10)")
    A.emit_list(a_qk(0, 0))
    lk, lv = a_loads(0, 2)
    A.emit_list(lk)
    A.emit_list(lv)
    A(f"s_call_b64 {sr(S_RET,2)}, LA_RARE0")
    A.label("LA_LOOP")
    for u in range(4):
        a_iter(A, u, cfg)
    A(f"s_sub_u32 s{S_LEFT}, s{S_LEFT}, 1")
    A(f"s_cmp_lg_u32 s{S_LEFT}, 0")
    A("s_cbranch_scc1 LA_LOOP")
    A("s_waitcnt vmcnt(12)")
    A.emit_list(a_pv(1, 3))
    A("s_branch LA_EPI")


def r_block(A, ev, R, blk, tmp, cfg):
    RC = cfg.get("rc", 1)
    A(f"s_lshl_b32 s{R}, s{ev}, 3")
    A(f"s_and_b32 s{blk}, s2, 7")
    A(f"s_add_u32 s{R}, s{R}, s{blk}")
    A(f"s_mul_i32 s{blk}, s{R}, {2341*RC}")
    A(f"s_lshr_b32 s{blk}, s{blk}, 16")
    A(f"s_lshr_b32 s{tmp}, s{blk}, 1")
    A(f"s_and_b32 s{blk}, s{blk}, 1")
    A(f"s_lshl_b32 s{blk}, s{blk}, 3")
    A(f"s_add_u32 s{blk}, s{blk}, s{tmp}")


def r_item(A, cfg):
    T = S_TMP
    NF, NH, NQ, NA = a_counts(cfg)
    stamp(A, cfg, 0)
    A(f"s_lshl_b32 s{T}, s{S_EV}, 3")
    A(f"s_and_b32 s{T+1}, s2, 7")
    A(f"s_add_u32 s{T}, s{T}, s{T+1}")
    RC = cfg.get("rc", 1)
    per = 28 // RC
    A(f"s_mul_i32 s{T+1}, s{T}, {2341*RC}")
    A(f"s_lshr_b32 s{T+1}, s{T+1}, 16")
    A(f"s_mul_i32 s{T+2}, s{T+1}, {per}")
    A(f"s_sub_u32 s{T+2}, s{T}, s{T+2}")
    A(f"s_lshr_b32 s{T+3}, s{T+1}, 1")
    A(f"s_and_b32 s{T+1}, s{T+1}, 1")
    A(f"s_lshl_b32 s{T+1}, s{T+1}, 3")
    A(f"s_add_u32 s{T+1}, s{T+1}, s{T+3}")
    lpre, lgo = A.newlabel("LRP"), A.newlabel("LRP")
    A(f"s_cmp_eq_u32 s{S_FIRST}, 1")
    A(f"s_cbranch_scc1 {lpre}")
    poll_issue(A, T + 1, F_ROW, 48)
    A(f"s_branch {lgo}")
    A.label(lpre)
    A(f"s_mov_b32 s{S_PADDR}, s{S_FLOOR}")
    A(f"v_mov_b32 v{V_POLL}, v{V_SIG}")
    A.label(lgo)
    A(f"s_mul_i32 s{T+3}, s{T+2}, 37")
    A(f"s_lshr_b32 s{T+3}, s{T+3}, 8")
    A(f"s_mul_i32 s{T+4}, s{T+3}, 7")
    A(f"s_sub_u32 s{T+2}, s{T+2}, s{T+4}")
    A(f"s_lshl_b32 s{T+2}, s{T+2}, 1")
    A(f"s_lshl_b32 s{T+1}, s{T+1}, 3")
    if RC == 1:
        A(f"s_and_b32 s{T+4}, s{S_WAVE}, 1")
        A(f"s_add_u32 s{T+2}, s{T+2}, s{T+4}")
        A(f"s_lshl_b32 s{T+3}, s{T+3}, 1")
        A(f"s_add_u32 s{T+1}, s{T+1}, s{T+3}")
        A(f"s_lshr_b32 s{T+3}, s{S_WAVE}, 1")
        A(f"s_add_u32 s{T+1}, s{T+1}, s{T+3}")
    else:
        A(f"s_lshl_b32 s{T+3}, s{T+3}, 2")
        A(f"s_add_u32 s{T+1}, s{T+1}, s{T+3}")
        A(f"s_add_u32 s{T+1}, s{T+1}, s{S_WAVE}")
    A(f"s_mul_i32 s{S_KOFF}, s{T+1}, {14*1024}")
    A(f"s_lshl_b32 s{T+3}, s{T+2}, 10")
    A(f"s_add_u32 s{S_KOFF}, s{S_KOFF}, s{T+3}")
    A(f"s_add_u32 s{S_KOFF}, s{S_KOFF}, {WS_P}")
    A(f"s_lshl_b32 s{S_VOFF}, s{T+1}, 6")
    A(f"s_add_u32 s{S_VOFF}, s{S_VOFF}, {WS_G}")
    A(f"s_mul_i32 s{S_KLIM}, s{T+1}, {16*896}")
    A(f"s_lshl_b32 s{T+3}, s{T+2}, 6")
    A(f"s_add_u32 s{S_KLIM}, s{S_KLIM}, s{T+3}")
    A(f"s_bfe_u32 s{T+3}, s{T+1}, 0x40002")
    set_srd(A, SRD_B, P_OUT, 2048 * 448 * 2)
    A(f"v_and_b32 v{V_T}, 15, v0")
    A(f"v_lshrrev_b32 v{V_T+1}, 4, v0")
    A(f"v_lshlrev_b32 v{V_T+2}, 2, v{V_T}")
    A(f"v_mul_u32_u24 v{V_T+3}, 896, v{V_T}")
    A(f"v_lshl_add_u32 v{V_T+3}, v{V_T+1}, 3, v{V_T+3}")
    A(f"s_mov_b32 s{S_SC}, 0x00003f80")
    A(f"s_mov_b32 s{S_SC+1}, 0x3f800000")
    PB = 96
    NS = 32 if NQ else (24 if NH else 20)
    DONE, NEW, MSK = S_N, S_B0 - 1, S_RET
    A(f"s_bfe_u32 s{T+4}, s{T+1}, 0x10002")
    A(f"s_lshl_b32 s{T+4}, s{T+4}, 2")
    A(f"s_mov_b64 {sr(DONE,2)}, 0")
    A(f"s_mov_b32 s{T+5}, 0x0f0f0f00")
    A(f"s_cmp_ge_u32 s{T+3}, {NF}")
    A(f"s_cselect_b32 s{T+5}, 0x0f0f0000, s{T+5}")
    A(f"s_cmp_ge_u32 s{T+3}, {NF + NH}")
    A(f"s_cselect_b32 s{DONE+1}, 0, s{T+5}")
    A(f"s_mov_b32 s{S_SPIN}, {SPIN_MAX}")
    lloop, lfin, laft = A.newlabel("LRL"), A.newlabel("LRF"), A.newlabel("LRA")
    A(f"s_cmp_eq_u32 s{S_FIRST}, 1")
    A(f"s_cbranch_scc1 {laft}")
    A.label(lloop)
    A("s_waitcnt vmcnt(0)")
    A.label(laft)
    A(f"v_cmp_eq_u32 vcc, 1, v{V_POLL}")
    A("s_nop 3")
    A(f"s_and_b32 s{MSK}, vcc_lo, 0xffff")
    A(f"s_lshr_b64 {sr(NEW,2)}, vcc, 16")
    A(f"s_lshr_b32 s{NEW}, s{NEW}, s{T+4}")
    A(f"s_and_b32 s{MSK+1}, s{NEW}, 0x0f0f0f0f")
    lskipld, ldo = A.newlabel("LRK"), A.newlabel("LRD")
    A(f"s_or_b64 {sr(NEW,2)}, {sr(DONE,2)}, {sr(MSK,2)}")
    A(f"s_cmp_eq_u32 s{NEW}, 0xffff")
    A(f"s_cselect_b32 s{T+5}, s{NEW+1}, 0")
    A(f"s_cmp_eq_u32 s{T+5}, 0x0f0f0f0f")
    A(f"s_cbranch_scc1 {ldo}")
    A(f"s_and_b32 s{T+5}, s{S_SPIN}, {cfg.get('r_every', 65535)}")
    A(f"s_cbranch_scc1 {lskipld}")
    A.label(ldo)
    A(f"s_andn2_b64 {sr(NEW,2)}, {sr(MSK,2)}, {sr(DONE,2)}")
    A(f"s_or_b64 {sr(DONE,2)}, {sr(DONE,2)}, {sr(MSK,2)}")
    for sl in range(NS):
        if 4 <= sl < 20:
            reg, bit = NEW, sl - 4
        else:
            hp = 0 if sl < 4 else (sl - 16) // 4
            reg, bit = NEW + 1, hp * 8 + (sl % 4)
        ln = A.newlabel("LRS")
        A(f"s_bitcmp1_b32 s{reg}, {bit}")
        A(f"s_cbranch_scc0 {ln}")
        A(f"s_add_u32 s{T+5}, s{S_KOFF}, {sl*P_SLOT}")
        A(f"buffer_load_dwordx4 {vr(PB+sl*4,4)}, v{V_LANE16}, {sr(SRD_WS,4)}, s{T+5} offen sc1")
        if RC == 2:
            A(f"buffer_load_dwordx4 {ar(sl*4,4)}, v{V_LANE16}, {sr(SRD_WS,4)}, s{T+5} offen offset:1024 sc1")
        A.label(ln)
    A(f"s_cmp_eq_u32 s{DONE}, 0xffff")
    A(f"s_cselect_b32 s{T+5}, s{DONE+1}, 0")
    A(f"s_cmp_eq_u32 s{T+5}, 0x0f0f0f0f")
    A(f"s_cbranch_scc1 {lfin}")
    A.label(lskipld)
    A(f"s_sub_u32 s{S_SPIN}, s{S_SPIN}, 1")
    A(f"s_cmp_eq_u32 s{S_SPIN}, 0")
    A(f"s_cbranch_scc1 {lfin}")
    A(f"s_sleep {cfg.get('r_sleep', 6)}")
    A(f"buffer_load_dword v{V_POLL}, v{V_POLL+1}, {sr(SRD_WS,4)}, s{S_PADDR} offen sc1")
    A(f"s_branch {lloop}")
    A.label(lfin)
    stamp(A, cfg, 1)
    A(f"buffer_load_dword v{V_T+4}, v{V_T+2}, {sr(SRD_WS,4)}, s{S_VOFF} offen sc1")
    n3 = cfg.get("rn3", 16)
    A(f"s_cmp_lt_u32 s{S_EV}, {n3}")
    A(f"s_cselect_b32 s{T}, {n3}, {56 - 2*n3}")
    A(f"s_add_u32 s{S_LEFT}, s{S_EV}, s{T}")
    A(f"s_min_u32 s{T+4}, s{S_LEFT}, 55")
    r_block(A, T + 4, T, T + 1, T + 2, cfg)
    A(f"s_lshl_b32 s{S_FLOOR}, s{T+1}, 8")
    A(f"s_add_u32 s{S_FLOOR}, s{S_FLOOR}, {F_ROW}")
    A(f"buffer_load_dword v{V_SIG}, v{V_POLL+1}, {sr(SRD_WS,4)}, s{S_FLOOR} offen sc1")
    A(f"s_mov_b32 s{S_FIRST}, 1")
    A("s_waitcnt vmcnt(0)")
    g, g1, t = V_T + 4, V_T + 5, V_T + 6
    A(f"v_sub_f32 v{g1}, 1.0, v{g}")
    A(f"v_cvt_pk_bf16_f32 v{g1}, v{g1}, v{g1}")
    A(f"v_lshlrev_b32 v{g1}, 16, v{g1}")
    for c in range(RC):
        aa, ab = 64, 72
        lsum = A.newlabel("LRU")
        for sl in range(NS):
            first = sl in (0, 4)
            if sl in (20, 24):
                A(f"s_cmp_lt_u32 s{T+3}, {NF if sl == 20 else NF + NH}")
                A(f"s_cbranch_scc1 {lsum}")
            acc_ = ab if 4 <= sl < 20 else aa
            if c == 1:
                for i in range(4):
                    A(f"v_accvgpr_read_b32 v{PB+sl*4+i}, a{sl*4+i}")
            for i in range(4):
                r = PB + sl * 4 + i
                A(f"v_dot2_f32_bf16 v{acc_+2*i}, v{r}, s{S_SC}, {'0' if first else 'v%d' % (acc_+2*i)}")
                A(f"v_dot2_f32_bf16 v{acc_+2*i+1}, v{r}, s{S_SC+1}, {'0' if first else 'v%d' % (acc_+2*i+1)}")
        A.label(lsum)
        A("s_nop 3")
        o = 48 + 4 * c
        for i in range(4):
            for acc_, gg in ((aa, g), (ab, g1)):
                a = acc_ + 2 * i
                A(f"v_cvt_pk_bf16_f32 v{t}, v{a}, v{a+1}")
                A(f"v_lshlrev_b32 v{a}, 16, v{t}")
                A(f"v_and_b32 v{a+1}, 0xffff0000, v{t}")
                A(f"v_mul_f32 v{a}, v{gg}, v{a}")
                A(f"v_mul_f32 v{a+1}, v{gg}, v{a+1}")
                A(f"v_cvt_pk_bf16_f32 v{t}, v{a}, v{a+1}")
                A(f"v_lshlrev_b32 v{a}, 16, v{t}")
                A(f"v_and_b32 v{a+1}, 0xffff0000, v{t}")
            A(f"v_add_f32 v{aa+2*i}, v{aa+2*i}, v{ab+2*i}")
            A(f"v_add_f32 v{aa+2*i+1}, v{aa+2*i+1}, v{ab+2*i+1}")
            A(f"v_cvt_pk_bf16_f32 v{o+i}, v{aa+2*i}, v{aa+2*i+1}")
        A(f"buffer_store_dwordx2 {vr(o,2)}, v{V_T+3}, {sr(SRD_B,4)}, s{S_KLIM} offen offset:{c*64}")
        A(f"buffer_store_dwordx2 {vr(o+2,2)}, v{V_T+3}, {sr(SRD_B,4)}, s{S_KLIM} offen offset:{c*64+32}")


def launch_line(cfg=None):
    return f"; @launch kernel=mega_kernel grid=(256,1,1) block=(256,1,1) lds={LDS_TOTAL}"


def gen_mega(A, name="mega_kernel", cfg=None):
    cfg = cfg or {}
    global KVFL, A_DELAY
    A_DELAY = cfg.get("a_delay", 3)
    KVFL = cfg.get("kvfl", "sc1")
    T = S_TMP
    G = V_G
    A.raw(kernel_header(name))
    A(f"s_load_dwordx16 {sr(4,16)}, s[0:1], 0")
    A(f"s_load_dwordx8 {sr(20,8)}, s[0:1], 64")
    A(f"s_load_dwordx2 {sr(P_WS,2)}, s[0:1], 96")
    A(f"s_load_dwordx2 {sr(P_WOA,2)}, s[0:1], 16")
    if cfg.get("diag"):
        for i in range(14):
            A(f"s_mov_b32 s{S_STAMP+i}, 0")
    stamp(A, cfg, 0)
    A("s_cmp_ge_u32 s2, 256")
    A("s_cbranch_scc1 LM_END")
    if cfg.get("warm0", 1):
        lw0 = A.newlabel("LW0")
        A(f"s_cmp_ge_u32 s2, {8*cfg.get('warm0', 1)}")
        A(f"s_cbranch_scc1 {lw0}")
        A(f"s_getpc_b64 {sr(SRD_WS,2)}")
        A(f"s_mov_b32 s{SRD_WS+2}, LP_START-{name}")
        A(f"s_mov_b32 s{SRD_WS+3}, 0x20000")
        A(f"v_lshlrev_b32 v{G+8}, {cfg.get('warm_sh', 7)}, v0")
        A(f"s_lshr_b32 s{T}, s2, 3")
        A(f"s_lshl_b32 s{T}, s{T}, {8 + cfg.get('warm_sh', 7)}")
        A(f"buffer_load_dword v{G+9}, v{G+8}, {sr(SRD_WS,4)}, s{T} offen")
        A.label(lw0)
    A(f"v_lshrrev_b32 v{G}, 6, v0")
    A("v_and_b32 v0, 63, v0")
    A(f"v_readfirstlane_b32 s{S_WAVE}, v{G}")
    A(f"v_lshlrev_b32 v{V_LANE16}, 4, v0")
    A(f"s_and_b32 s{T}, s2, 7")
    A(f"s_bfe_u32 s{T+1}, s2, 0x10005")
    A(f"s_lshl_b32 s{T+1}, s{T+1}, 3")
    A(f"s_add_u32 s{T}, s{T}, s{T+1}")
    A(f"s_lshr_b32 s{T+1}, s2, 7")
    A(f"s_lshl_b32 s{T+1}, s{T+1}, 4")
    A(f"s_add_u32 s{T}, s{T}, s{T+1}")
    A(f"s_bfe_u32 s{S_GRP}, s2, 0x10006")
    A(f"s_bfe_u32 s{T+1}, s2, 0x20003")
    A(f"s_lshl_b32 s{T+2}, s{S_GRP}, 2")
    A(f"s_add_u32 s{T+1}, s{T+1}, s{T+2}")
    A(f"s_lshr_b32 s{T+2}, s{S_WAVE}, 1")
    A(f"s_and_b32 s{T+3}, s{S_WAVE}, 1")
    A(f"s_and_b32 s{S_GHEAD}, s{T}, 15")
    A(f"s_lshr_b32 s{S_TYPE}, s{T}, 4")
    A(f"s_lshl_b32 s{T+5}, s{T+2}, 4")
    A(f"s_add_u32 s{T+5}, s{T+5}, s{T+3}")
    A(f"s_lshl_b32 s{S_XWAVE}, s{T+5}, 10")
    A(f"s_add_u32 s{S_XWAVE}, s{S_XWAVE}, {LDS_X0}")
    A(f"s_mov_b32 s{S_XWR}, s{S_XWAVE}")
    A(f"s_lshl_b32 s{T+5}, s{T+5}, 3")
    A(f"s_lshl_b32 s{T+6}, s{T+1}, 8")
    A(f"s_add_u32 s{T+6}, s{T+6}, s{T+5}")
    A(f"s_lshl_b32 s{S_XOFF}, s{T+6}, 11")
    A(f"s_mov_b32 s{S_XSTA}, {16*2048}")
    A(f"s_mov_b32 s{S_XSTB}, {16*2048}")
    A(f"s_mov_b32 s{S_XWRAP}, {(128-112*2048) & 0xffffffff}")
    A(f"s_lshl_b32 s{T+7}, s{T+2}, 2")
    A(f"s_add_u32 s{T+7}, s{T+7}, s{T+3}")
    A(f"s_lshl_b32 s{S_WWR}, s{T+7}, 10")
    A(f"s_lshl_b32 s{S_WOFF}, s{T+7}, 14")
    A(f"s_lshl_b32 s{T+6}, s{S_GHEAD}, 9")
    A(f"s_add_u32 s{S_WOFF}, s{S_WOFF}, s{T+6}")
    A(f"v_lshrrev_b32 v{G}, 4, v0")
    A(f"s_lshl_b32 s{T+6}, s{T+3}, 2")
    A(f"v_add_u32 v{G+6}, s{T+6}, v{G}")
    A(f"v_and_b32 v{G+1}, 7, v0")
    A(f"v_xor_b32 v{G}, v{G+6}, v{G+1}")
    A(f"v_lshlrev_b32 v{G}, 4, v{G}")
    A(f"v_lshrrev_b32 v{G+1}, 3, v0")
    A(f"v_lshl_add_u32 v{V_DX}, v{G+1}, 11, v{G}")
    A(f"v_mul_u32_u24 v{G+2}, 896, v{G+1}")
    A(f"v_add_u32 v{V_DX2}, v{G+2}, v{G}")
    A(f"v_lshrrev_b32 v{G}, 5, v0")
    A(f"s_lshl_b32 s{T+6}, s{T+3}, 1")
    A(f"s_lshl_b32 s{T+5}, s{T+2}, 2")
    A(f"s_add_u32 s{T+6}, s{T+6}, s{T+5}")
    A(f"v_add_u32 v{G+1}, s{T+6}, v{G}")
    A(f"v_bfe_u32 v{G+2}, v0, 1, 4")
    A(f"v_xor_b32 v{G+2}, v{G+2}, v{G+1}")
    A(f"v_and_b32 v{G+3}, 1, v0")
    A(f"v_lshl_add_u32 v{G+2}, v{G+2}, 1, v{G+3}")
    A(f"v_lshlrev_b32 v{G+3}, 4, v{G+2}")
    A(f"v_lshl_add_u32 v{V_DW}, v{G}, 13, v{G+3}")
    A("s_waitcnt lgkmcnt(0)")
    set_srd(A, SRD_A, P_CKV, 2048 * 1024 * 2)
    A(f"s_cmp_eq_u32 s{S_TYPE}, 0")
    A(f"s_cselect_b32 s{SRD_B}, s{P_WUK}, s{P_WUV}")
    A(f"s_cselect_b32 s{SRD_B+1}, s{P_WUK+1}, s{P_WUV+1}")
    A(f"s_mov_b32 s{SRD_B+2}, {1024*4096*2}")
    A(f"s_mov_b32 s{SRD_B+3}, 0x20000")
    emit_chain(A, dma_x())
    emit_chain(A, dma_w())
    A(f"s_and_b32 s{S_HEAD}, s2, 15")
    A(f"s_lshr_b32 s{T}, s2, 4")
    A(f"s_sub_u32 s{S_QB}, 15, s{T}")
    A(f"s_lshl_b32 s{T+4}, s{S_QB}, 7")
    A(f"s_lshl_b32 s{T+5}, s{S_HEAD}, 3")
    A(f"s_add_u32 s{T+4}, s{T+4}, s{T+5}")
    A(f"s_lshl_b32 s{T+5}, s{S_WAVE}, 1")
    A(f"s_add_u32 s{S_PHASE}, s{T+4}, s{T+5}")
    A(f"s_mul_i32 s{T+4}, s{S_PHASE}, 896")
    A(f"v_and_b32 v{V_CV}, 31, v0")
    A(f"v_lshlrev_b32 v{V_CV+1}, 5, v{V_CV}")
    A(f"v_mov_b32 v{V_CV+3}, 0x40000000")
    A(f"v_cmp_gt_u32 vcc, 28, v{V_CV}")
    A(f"v_lshrrev_b32 v{V_CV+2}, 5, v0")
    A("s_nop 0")
    A(f"v_cndmask_b32 v{V_CV+1}, v{V_CV+3}, v{V_CV+1}, vcc")
    A(f"v_mul_u32_u24 v{V_CV+2}, 896, v{V_CV+2}")
    A(f"v_add_u32 v{V_CV+2}, v{V_CV+2}, v{V_CV+1}")
    set_srd(A, SRD_WS, P_X, 2048 * 448 * 2)
    set_srd(A, SRD_DBG, P_GATE, 448 * 2)
    A(f"buffer_load_dwordx4 {vr(192,4)}, v{V_CV+2}, {sr(SRD_WS,4)}, s{T+4} offen")
    A(f"buffer_load_dwordx4 {vr(196,4)}, v{V_CV+2}, {sr(SRD_WS,4)}, s{T+4} offen offset:16")
    A(f"buffer_load_dwordx4 {vr(200,4)}, v{V_CV+1}, {sr(SRD_DBG,4)}, 0 offen")
    A(f"buffer_load_dwordx4 {vr(204,4)}, v{V_CV+1}, {sr(SRD_DBG,4)}, 0 offen offset:16")
    emit_chain(A, dma_x())
    emit_chain(A, dma_w())
    set_srd(A, SRD_WS, P_WS, WS_SIZE)
    set_srd(A, SRD_DBG, P_DBG, 256)
    set_srd(A, SRD_E, P_WS, WS_SIZE)
    A(f"s_cmp_eq_u32 s{S_GRP}, 0")
    A(f"s_cselect_b32 s{SRD_E+2}, s{SRD_E+2}, 0")
    li = A.newlabel("LM")
    A(f"v_lshlrev_b32 v{V_SIG+1}, 2, v0")
    A(f"v_mov_b32 v{V_SIG}, 0")
    A(f"s_cmp_lg_u32 s{S_WAVE}, 0")
    A(f"s_cbranch_scc1 {li}")
    A(f"s_lshl_b32 s{T+6}, s2, 6")
    A(f"s_add_u32 s{T+6}, s{T+6}, {WS_F}")
    A("s_mov_b64 exec, 0xffff")
    A(f"buffer_store_dword v{V_SIG}, v{V_SIG+1}, {sr(SRD_WS,4)}, s{T+6} offen sc1")
    A("s_mov_b64 exec, -1")
    A.label(li)
    A(f"s_lshl_b32 s{S_OB}, s{S_GHEAD}, 20")
    A(f"s_lshl_b32 s{T+6}, s{T+1}, 17")
    A(f"s_add_u32 s{S_OB}, s{S_OB}, s{T+6}")
    A(f"s_lshl_b32 s{T+6}, s{T+2}, 16")
    A(f"s_add_u32 s{S_OB}, s{S_OB}, s{T+6}")
    A(f"s_add_u32 s{T+6}, s{S_TYPE}, 12")
    A(f"s_lshl_b32 s{T+6}, s{T+3}, s{T+6}")
    A(f"s_add_u32 s{S_OB}, s{S_OB}, s{T+6}")
    A(f"s_lshl_b32 s{T+6}, s{S_TYPE}, 24")
    A(f"s_add_u32 s{S_OB}, s{S_OB}, s{T+6}")
    A(f"s_mov_b32 s{T+6}, 8192")
    A(f"s_cmp_eq_u32 s{S_TYPE}, 0")
    A(f"s_cselect_b32 s{S_OSTA}, s{T+6}, 4096")
    A(f"s_cselect_b32 s{S_OSTB}, s{T+6}, 12288")
    A(f"s_lshl_b32 s{S_GHEAD}, s{S_GHEAD}, 8")
    A(f"s_lshl_b32 s{T+6}, s{S_GRP}, 12")
    A(f"s_add_u32 s{S_GHEAD}, s{S_GHEAD}, s{T+6}")
    A(f"s_lshl_b32 s{T+6}, s{S_TYPE}, 4")
    A(f"s_add_u32 s{S_GHEAD}, s{S_GHEAD}, s{T+6}")
    A(f"s_and_b32 s{T+6}, s{T+1}, 3")
    A(f"s_lshl_b32 s{T+6}, s{T+6}, 2")
    A(f"s_add_u32 s{S_GHEAD}, s{S_GHEAD}, s{T+6}")
    A(f"s_add_u32 s{S_GHEAD}, s{S_GHEAD}, {F_KV}")
    A(f"s_and_b32 s{S_HEAD}, s2, 15")
    A(f"s_lshr_b32 s{T}, s2, 4")
    A(f"s_sub_u32 s{S_QB}, 15, s{T}")
    A(f"s_lshl_b32 s{S_WOFF2}, s{T+7}, 14")
    A(f"s_lshl_b32 s{T+6}, s{S_HEAD}, 9")
    A(f"s_add_u32 s{S_WOFF2}, s{S_WOFF2}, s{T+6}")
    A(f"s_lshl_b32 s{T+5}, s{S_QB}, 7")
    A(f"s_lshl_b32 s{T+6}, s{T+3}, 3")
    A(f"s_add_u32 s{T+5}, s{T+5}, s{T+6}")
    A(f"s_mul_i32 s{T+5}, s{T+5}, 896")
    A(f"s_mul_i32 s{T+6}, s{T+3}, {8*2688}")
    A(f"s_mul_i32 s{T+4}, s{S_HEAD}, 56")
    A(f"s_add_u32 s{T+6}, s{T+6}, s{T+4}")
    A(f"s_cmp_eq_u32 s{T+2}, 0")
    A(f"s_cselect_b32 s{S_XOFF2}, s{T+5}, s{T+6}")
    A(f"s_cselect_b32 s{S_X2LO}, s{P_X}, s{P_WQKV}")
    A(f"s_cselect_b32 s{S_X2HI}, s{P_X+1}, s{P_WQKV+1}")
    A(f"s_mov_b32 s{T+5}, {2048*448*2}")
    A(f"s_cselect_b32 s{S_X2N}, s{T+5}, {448*1344*2}")
    A(f"s_mov_b32 s{T+5}, {16*896}")
    A(f"s_cselect_b32 s{S_XSTA2}, s{T+5}, {4*2688}")
    A(f"s_cselect_b32 s{S_XSTB2}, s{T+5}, {12*2688}")
    A(f"s_mov_b32 s{T+5}, {(128-112*896) & 0xffffffff}")
    A(f"s_cselect_b32 s{S_XWRAP2}, s{T+5}, {12*2688}")
    lskip = A.newlabel("LM")
    A(f"s_cbranch_scc1 {lskip}")
    A(f"v_bfe_u32 v{G}, v0, 1, 3")
    A(f"v_xor_b32 v{G}, v{G}, v{G+6}")
    A(f"v_and_b32 v{G+1}, 1, v0")
    A(f"v_lshl_add_u32 v{G}, v{G}, 1, v{G+1}")
    A(f"v_lshrrev_b32 v{G+1}, 2, v{G}")
    A(f"v_and_b32 v{G}, 3, v{G}")
    A(f"v_lshlrev_b32 v{G}, 4, v{G}")
    A(f"v_mul_u32_u24 v{G+2}, 896, v{G+1}")
    A(f"v_add_u32 v{G}, v{G}, v{G+2}")
    A(f"v_lshrrev_b32 v{G+2}, 4, v0")
    A(f"v_mul_u32_u24 v{G+2}, 2688, v{G+2}")
    A(f"v_add_u32 v{G}, v{G}, v{G+2}")
    A(f"v_mov_b32 v{G+2}, 0x40000000")
    A(f"v_cmp_gt_u32 vcc, 3, v{G+1}")
    A("s_nop 1")
    A(f"v_cndmask_b32 v{V_DX2}, v{G+2}, v{G}, vcc")
    A.label(lskip)
    A(f"s_lshl_b32 s{S_OBQK}, s{S_HEAD}, 17")
    A(f"s_lshl_b32 s{T+5}, s{S_QB}, 13")
    A(f"s_add_u32 s{S_OBQK}, s{S_OBQK}, s{T+5}")
    A(f"s_lshl_b32 s{T+5}, s{T+2}, 12")
    A(f"s_add_u32 s{S_OBQK}, s{S_OBQK}, s{T+5}")
    A(f"s_lshl_b32 s{T+5}, s{T+3}, 8")
    A(f"s_add_u32 s{S_OBV}, s{S_OBQK}, s{T+5}")
    A(f"s_add_u32 s{S_OBV}, s{S_OBV}, {WS_VA}")
    A(f"s_lshl_b32 s{T+5}, s{T+3}, 21")
    A(f"s_add_u32 s{S_OBQK}, s{S_OBQK}, s{T+5}")
    A(f"s_add_u32 s{S_OBQK}, s{S_OBQK}, {WS_QA}")
    A(f"s_cmp_eq_u32 s{T+3}, 0")
    A(f"s_cselect_b32 s{S_SCA}, {f32bits(SCALE_A):#x}, 1.0")
    A(f"v_and_b32 v{G}, 15, v0")
    A(f"v_lshrrev_b32 v{G+1}, 4, v0")
    A(f"v_lshrrev_b32 v{G+2}, 1, v{G}")
    A(f"v_xor_b32 v{G+2}, v{G+2}, v{G+1}")
    A(f"v_lshlrev_b32 v{G+2}, 4, v{G+2}")
    A(f"v_lshl_add_u32 v{G+2}, v{G}, 7, v{G+2}")
    A(f"s_lshl_b32 s{T+5}, s{T+2}, 14")
    A(f"v_add_u32 v{V_XL0}, s{T+5}, v{G+2}")
    A(f"v_xor_b32 v{V_XL1}, 64, v{V_XL0}")
    A(f"s_lshl_b32 s{T+5}, s{T+2}, 13")
    A(f"v_add_u32 v{V_PXL}, s{T+5}, v{G+2}")
    A(f"v_xor_b32 v{V_PXL+1}, 64, v{V_PXL}")
    A(f"v_add_u32 v{V_XR0}, {LDS_X0}, v{V_XL0}")
    A(f"v_add_u32 v{V_XR1}, {LDS_X0}, v{V_XL1}")
    A(f"s_mov_b32 s{S_XRD}, {LDS_X0+32768}")
    A(f"v_bfe_u32 v{G+2}, v0, 2, 2")
    A(f"v_lshl_add_u32 v{G+3}, v{G+1}, 3, v{G+2}")
    A(f"v_lshlrev_b32 v{G+3}, 9, v{G+3}")
    A(f"v_bfe_u32 v{G+4}, v0, 2, 3")
    A(f"v_lshl_add_u32 v{G+3}, v{G+4}, 5, v{G+3}")
    A(f"v_and_b32 v{G+5}, 3, v0")
    A(f"v_lshl_add_u32 v{G+3}, v{G+5}, 3, v{G+3}")
    A(f"s_lshl_b32 s{T+5}, s{T+3}, 8")
    A(f"v_add_u32 v{V_WR}, s{T+5}, v{G+3}")
    for b in range(1, 8):
        A(f"v_xor_b32 v{V_WR+b}, {b*32}, v{V_WR}")
    A(f"v_lshrrev_b32 v{G+3}, 5, v0")
    A(f"v_lshl_add_u32 v{G+3}, v{G+3}, 4, v{G+4}")
    A(f"v_lshlrev_b32 v{G+3}, 8, v{G+3}")
    A(f"v_lshl_add_u32 v{G+3}, v{G+4}, 5, v{G+3}")
    A(f"v_lshl_add_u32 v{G+3}, v{G+5}, 3, v{G+3}")
    A(f"v_add_u32 v{G+3}, 16384, v{G+3}")
    A(f"s_lshl_b32 s{T+5}, s{T+3}, 6")
    A(f"v_xor_b32 v{V_PWL}, s{T+5}, v{G+3}")
    A(f"v_xor_b32 v{V_PWL+1}, 32, v{V_PWL}")
    A(f"s_lshl_b32 s{T+5}, s{T+3}, 5")
    A(f"s_add_u32 s{T+5}, s{T+5}, 128")
    A(f"v_xor_b32 v{V_PWL+2}, s{T+5}, v{G+3}")
    A(f"v_lshlrev_b32 v{G+2}, 9, v{G+1}")
    A(f"v_bfe_u32 v{G+3}, v0, 3, 1")
    A(f"v_lshl_add_u32 v{G+4}, v{G+3}, 8, v{G+2}")
    A(f"v_and_b32 v{G+3}, 7, v0")
    A(f"v_lshl_add_u32 v{V_OA}, v{G+3}, 4, v{G+4}")
    A(f"v_lshl_add_u32 v{V_OAV}, v{G}, 4, v{G+2}")
    A(f"v_mov_b32 v{V_SCHI}, s{S_SCA}")
    A(f"v_cmp_gt_u32 vcc, 3, v{G+1}")
    A("s_nop 1")
    A(f"v_cndmask_b32 v{V_SCHI}, 0, v{V_SCHI}, vcc")
    A(f"s_lshl_b32 s{T+5}, s{T+3}, 4")
    A(f"v_add_u32 v{G+2}, s{T+5}, v{G}")
    A(f"v_cmp_gt_u32 vcc, 28, v{G+2}")
    A("s_nop 1")
    A(f"v_cndmask_b32 v{V_MULHI}, 0, 1.0, vcc")
    A(f"v_cmp_eq_u32 vcc, 28, v{G+2}")
    A("s_nop 1")
    A(f"v_cndmask_b32 v{V_ADDHI}, 0, 1.0, vcc")
    A(f"s_lshl_b32 s{T+6}, s{T+2}, 15")
    A(f"s_lshl_b32 s{T+5}, s{T+3}, 12")
    A(f"s_add_u32 s{T+6}, s{T+6}, s{T+5}")
    A(f"s_add_u32 s{T+6}, s{T+6}, {XQ}")
    A(f"v_add_u32 v{V_XQW}, s{T+6}, v{V_LANE16}")
    A(f"s_lshl_b32 s{T+6}, s{S_WAVE}, 13")
    A(f"s_add_u32 s{T+6}, s{T+6}, {XQ}")
    A(f"v_add_u32 v{V_XQR}, s{T+6}, v{V_LANE16}")
    A("s_waitcnt vmcnt(16)")
    A(f"s_mov_b32 s{S_W12}, 0")
    A(f"s_lshl_b32 s{S_W4}, s{S_PHASE}, 2")
    A(f"s_add_u32 s{S_W4}, s{S_W4}, {WS_G}")
    A(f"s_mov_b32 s{S_LEFT}, 14")
    A(f"s_mov_b32 s{S_PHASE}, 0")
    A(f"s_mov_b32 s{SRD_WS+2}, 0")
    A(f"s_mov_b32 s{SRD_DBG+2}, 0")
    A(f"s_lshl_b32 s{S_TOFF}, s2, 2")
    A(f"s_add_u32 s{S_TOFF}, s{S_TOFF}, s{S_WAVE}")
    A(f"s_lshl_b32 s{S_TBOFF}, s{S_TOFF}, 13")
    A(f"s_mov_b64 {sr(S_TA,2)}, {sr(P_WQ,2)}")
    A(f"s_mov_b32 s{S_TASZ}, {448*4096*2}")
    A(f"s_mov_b32 s{S_TAOFF}, s{S_TBOFF}")
    for first_u, ptr, size in ((448, P_X, 2048*448*2), (672, P_WQKV, 448*1344*2), (819, P_WOA, 448*448*2)):
        A(f"s_sub_u32 s{T}, s{S_TBOFF}, {first_u*8192}")
        A(f"s_cmp_ge_u32 s{S_TOFF}, {first_u}")
        A(f"s_cselect_b64 {sr(S_TA,2)}, {sr(ptr,2)}, {sr(S_TA,2)}")
        A(f"s_cselect_b32 s{S_TASZ}, {size}, s{S_TASZ}")
        A(f"s_cselect_b32 s{S_TAOFF}, s{T}, s{S_TAOFF}")
    na = cfg.get("tna", 10)
    for n, dst, t0 in ((na, S_TAT, 2),):
        A(f"s_mul_i32 s{T}, s{S_TOFF}, {(65536 + n - 1)//n}")
        A(f"s_lshr_b32 s{T}, s{T}, 16")
        A(f"s_mul_i32 s{T}, s{T}, {n}")
        A(f"s_sub_u32 s{dst}, s{S_TOFF}, s{T}")
        A(f"s_add_u32 s{dst}, s{dst}, {t0}")
    A(f"s_lshr_b32 s{S_TOFF2}, s2, 3")
    A(f"s_lshl_b32 s{S_TOFF2}, s{S_TOFF2}, 2")
    A(f"s_add_u32 s{S_TOFF2}, s{S_TOFF2}, s{S_WAVE}")
    A(f"s_lshl_b32 s{S_TOFF2}, s{S_TOFF2}, {6 + cfg.get('tsh', 7)}")
    A(f"s_getpc_b64 {sr(S_PC,2)}")
    A.label("LM_PC")
    A(f"s_bfe_u32 s{S_CSTEP}, s2, 0x30004")
    A(f"s_add_u32 s{S_CSTEP}, s{S_CSTEP}, 2")
    A(f"s_cmp_eq_u32 s{S_WAVE}, 0")
    A(f"s_cselect_b32 s{S_CSTEP}, s{S_CSTEP}, 99")
    A(f"s_and_b32 s{T}, s2, 15")
    A(f"s_lshl_b32 s{T}, s{T}, 4")
    A(f"v_lshlrev_b32 v{V_CRT+1}, 12, v0")
    A(f"v_add_u32 v{V_CRT+1}, s{T}, v{V_CRT+1}")
    A(f"v_mov_b32 v{V_CRT}, 1")
    A(f"v_and_b32 v{V_SIG+1}, 15, v0")
    A(f"v_lshlrev_b32 v{V_SIG+1}, 4, v{V_SIG+1}")
    A(f"v_lshlrev_b32 v{V_TCH}, {cfg.get('tsh', 7)}, v0")
    if cfg.get("thalf"):
        A(f"v_lshlrev_b32 v{V_TCH}, 7, v0")
        A(f"v_mov_b32 v{V_TCH+1}, 0x40000000")
        A(f"v_cmp_gt_u32 vcc, 32, v0")
        A("s_nop 1")
        A(f"v_cndmask_b32 v{V_TCH}, v{V_TCH+1}, v{V_TCH}, vcc")
    A("s_barrier")
    A.emit_list(g_reads(0, 0))
    A("s_waitcnt lgkmcnt(0)")
    A(f"s_cmp_eq_u32 s{S_TYPE}, 1")
    A("s_cbranch_scc1 LG_VT")
    n_early = cfg.get("n_early", 16)
    for typ in ("KQ", "V"):
        if typ == "V":
            A.label("LG_VT")
        g_step(A, typ, True, cfg)
        A.label(f"LG_LOOP_{typ}")
        g_step(A, typ, False, cfg)
        A(f"s_cbranch_scc1 LG_LOOP_{typ}")
        A(f"s_cmp_eq_u32 s{S_PHASE}, 16")
        A(f"s_cbranch_scc1 LG_EPI_{typ}")
        A(f"s_mov_b32 s{S_LEFT}, 2")
        A(f"s_cmp_eq_u32 s{S_WAVE}, 0")
        A(f"s_cselect_b32 s{SRD_DBG+2}, 256, 0")
        A(f"buffer_load_dword v{V_SIG}, v{V_SIG+1}, {sr(SRD_DBG,4)}, 0 offen sc1")
        A(f"s_mov_b32 s{SRD_DBG+2}, 0")
        A(f"s_mov_b32 s{SRD_A}, s{S_X2LO}")
        A(f"s_mov_b32 s{SRD_A+1}, s{S_X2HI}")
        A(f"s_mov_b32 s{SRD_A+2}, s{S_X2N}")
        A(f"s_mov_b32 s{S_XOFF}, s{S_XOFF2}")
        A(f"s_mov_b32 s{S_XSTA}, s{S_XSTA2}")
        A(f"s_mov_b32 s{S_XSTB}, s{S_XSTB2}")
        A(f"s_mov_b32 s{S_XWRAP}, s{S_XWRAP2}")
        A(f"v_mov_b32 v{V_DX}, v{V_DX2}")
        A(f"s_mov_b32 s{SRD_B}, s{P_WQ}")
        A(f"s_mov_b32 s{SRD_B+1}, s{P_WQ+1}")
        A(f"s_mov_b32 s{SRD_B+2}, {448*4096*2}")
        A(f"s_mov_b32 s{S_WOFF}, s{S_WOFF2}")
        A(f"s_branch LG_LOOP_{typ}")
        A.label(f"LG_EPI_{typ}")
        stamp(A, cfg, 1)
        set_srd(A, SRD_WS, P_WS, WS_SIZE)
        A(f"s_mov_b32 s{SRD_DBG+2}, 256")
        lok, llp = A.newlabel("LM"), A.newlabel("LM")
        A(f"v_cmp_le_u32 vcc, 16, v{V_SIG}")
        A(f"s_cmp_lg_u32 s{S_WAVE}, 0")
        A(f"s_cbranch_scc1 {lok}")
        A(f"s_mov_b32 s{T+1}, {SPIN_MAX}")
        A.label(llp)
        A("s_nop 3")
        A("s_cmp_eq_u64 vcc, -1")
        A(f"s_cbranch_scc1 {lok}")
        A(f"s_sub_u32 s{T+1}, s{T+1}, 1")
        A(f"s_cmp_eq_u32 s{T+1}, 0")
        A(f"s_cbranch_scc1 {lok}")
        A("s_sleep 32")
        A(f"buffer_load_dword v{V_SIG}, v{V_SIG+1}, {sr(SRD_DBG,4)}, 0 offen sc1")
        A("s_waitcnt vmcnt(0)")
        A(f"v_cmp_le_u32 vcc, 16, v{V_SIG}")
        A(f"s_branch {llp}")
        A.label(lok)
        if cfg.get("gdiag"):
            A(f"s_lshl_b32 s{T}, s2, 2")
            A(f"s_add_u32 s{T}, s{T}, s{S_WAVE}")
            A(f"s_lshl_b32 s{T}, s{T}, 9")
            A(f"s_add_u32 s{T}, s{T}, {232 << 20}")
            A(f"v_lshrrev_b32 v242, 2, v{V_LANE16}")
            A(f"buffer_store_dword v240, v242, {sr(SRD_WS,4)}, s{T} offen")
            A(f"buffer_store_dword v241, v242, {sr(SRD_WS,4)}, s{T} offen offset:256")
        A(f"s_mov_b32 s{S_XOFF2}, s{S_OB}")
        A.emit_list(p_addr(16))
        A.emit_list(p_reads(0, 0))
        g_cvt(A, typ, n_early)
        if typ == "KQ":
            A("s_branch LP_START")
    A.label("LP_START")
    if cfg.get("stamp_lp"):
        stamp(A, cfg, 3)
    A("s_waitcnt lgkmcnt(0)")
    rem = list(range(n_early, 32))
    per = cfg.get("st_per", [4, 4, 4, 4])
    k = 0
    for T_ in range(16, 23):
        st = []
        for h in range(2):
            n = per[k] if k < len(per) else 0
            k += 1
            st.append(rem[:n])
            rem = rem[n:]
        p_step(A, T_, st[0], st[1], cfg)
    assert not rem, rem
    stamp(A, cfg, 2)
    b_setup_kv(A)
    def kv_first():
        for w, s_ in (("K", 0), ("V", 0), ("K", 1), ("V", 1), ("K", 2), ("V", 2)):
            emit_chain(A, kv_tile_chain(w, s_))
    A("s_waitcnt vmcnt(0)")
    poll_test(A)
    A(f"s_cselect_b32 s{S_EV}, 1, 0")
    A("s_cbranch_scc0 LP_NOTYET")
    kv_first()
    A.label("LP_NOTYET")
    A(f"s_cmp_eq_u32 s{S_GRP}, 0")
    A("s_cbranch_scc1 LP_NOLATE")
    A(f"s_mov_b32 s{S_OB}, s{S_XOFF2}")
    for c in range(32):
        for o_ in kv_store(c, SRD_WS):
            A(o_.text)
    A("s_nop 1")
    A.label("LP_NOLATE")
    p_epilogue_a(A)
    p_epilogue_q(A)
    b_setup_rest(A)
    A(f"s_cmp_eq_u32 s{S_EV}, 1")
    A("s_cbranch_scc1 LP_HAVE")
    poll_wait(A, True)
    kv_first()
    A.label("LP_HAVE")
    b_main(A, cfg)
    stamp_out(A, cfg, 7, 200 << 20, 2)
    hstamp_out(A, cfg, [(0, 2, True), (1, 3, False), (2, 5, False), (4, 6, False), (6, 7, False)])
    A.label("LQ_NEXT")
    lp = A.newlabel("LQ")
    A(f"s_cmp_eq_u32 s{S_POPPED}, 1")
    A(f"s_cbranch_scc1 {lp}")
    pop_issue(A)
    A("s_waitcnt vmcnt(0)")
    A.label(lp)
    A(f"s_mov_b32 s{S_POPPED}, 0")
    lw = A.newlabel("LQ")
    A(f"s_cmp_lg_u32 s{S_WAVE}, 0")
    A(f"s_cbranch_scc1 {lw}")
    A(f"s_waitcnt vmcnt({0 if cfg.get('diag') else 14})")
    A(f"v_mov_b32 v{V_POLL+1}, {LDS_TOTAL-16}")
    A("s_mov_b64 exec, 1")
    A(f"ds_write_b32 v{V_POLL+1}, v{V_POP}")
    A("s_mov_b64 exec, -1")
    A.label(lw)
    A("s_waitcnt lgkmcnt(0)")
    A("s_barrier")
    A(f"v_mov_b32 v{V_POLL+1}, {LDS_TOTAL-16}")
    A(f"ds_read_b32 v{V_POLL}, v{V_POLL+1}")
    A(f"s_mov_b32 s{S_PFLAG}, s{S_RFLAG}")
    A(f"s_mov_b32 s{S_PMASK}, s{S_RMASK}")
    A("s_waitcnt lgkmcnt(0)")
    A(f"v_readfirstlane_b32 s{S_ITEM}, v{V_POLL}")
    A("s_nop 3")
    A(f"s_cmp_lt_u32 s{S_ITEM}, {a_counts(cfg)[3]}")
    A("s_cbranch_scc1 LQ_AITEM")
    ls = A.newlabel("LQ")
    A(f"s_cmp_eq_u32 s{S_PFLAG}, 0")
    A(f"s_cbranch_scc1 {ls}")
    A("s_waitcnt vmcnt(0)")
    A.label(ls)
    A("s_barrier")
    ls = A.newlabel("LQ")
    A(f"s_cmp_eq_u32 s{S_PFLAG}, 0")
    A(f"s_cbranch_scc1 {ls}")
    signal(A, S_PFLAG, mask_sgpr=S_PMASK)
    A.label(ls)
    NA = a_counts(cfg)[3]
    A("s_branch LQ_RED")
    A.label("LQ_AITEM")
    a_item(A, cfg)
    hstamp_out(A, cfg, [(6, 10, False)])
    if cfg.get("diag"):
        A(f"s_and_b32 s{T+2}, s2, 7")
        A(f"s_lshl_b32 s{T+3}, s{S_ITEM}, 3")
        A(f"s_add_u32 s{T+2}, s{T+2}, s{T+3}")
        stamp_out(A, cfg, 5, 210 << 20, T + 2)
    A("s_branch LQ_NEXT")
    A.label("LQ_RED")
    n3 = cfg.get("rn3", 16)
    n1 = 56 - 3 * n3
    A(f"s_sub_u32 s{S_ITEM}, s{S_ITEM}, {NA}")
    A(f"s_cmp_ge_u32 s{S_ITEM}, {n3 + n1}")
    A("s_cbranch_scc1 LM_FIN")
    A(f"s_add_u32 s{S_EV}, s{S_ITEM}, {n3}")
    A(f"s_cmp_lt_u32 s{S_ITEM}, {n3}")
    A(f"s_cselect_b32 s{S_EV}, s{S_ITEM}, s{S_EV}")
    A(f"s_mov_b32 s{S_FIRST}, 0")
    A.label("LQ_RLOOP")
    r_item(A, cfg)
    if cfg.get("diag"):
        A(f"s_and_b32 s{T+2}, s2, 7")
        A(f"s_lshl_b32 s{T+3}, s{S_EV}, 3")
        A(f"s_add_u32 s{T+2}, s{T+2}, s{T+3}")
        stamp_out(A, cfg, 3, 220 << 20, T + 2)
    A(f"s_cmp_ge_u32 s{S_EV}, {2*n3}")
    A("s_cbranch_scc1 LM_FIN")
    A(f"s_mov_b32 s{S_EV}, s{S_LEFT}")
    A("s_branch LQ_RLOOP")
    a_redo(A, cfg)
    flush_ool(A)
    b_rare(A, 0)
    b_rare(A, 1)
    a_rare(A, 0)
    a_rare(A, 1)
    A.label("LM_FIN")
    stamp_out(A, cfg, 1, 230 << 20, 2)
    hstamp_out(A, cfg, [(6, 11, False)])
    A.label("LM_END")
    A("s_endpgm")
    return kernel_desc(name, 512, 102, 256)
```

```python
import math
from asmlib import *

WS_K = 0
WS_V = 16 << 20
WS_QA = 48 << 20
WS_KA = 50 << 20
WS_VA = 52 << 20
WS_P = 64 << 20
WS_SIZE = 256 << 20
P_SLOT = 128 * 14 * 1024
LOG2E = math.log2(math.e)
SCALE_B = LOG2E / 16.0
SCALE_A = LOG2E / math.sqrt(28.0)
LDS_TOTAL = 163840
LDS_X0 = 65536
BIAS = 32.0
NEG_INF = 0xff800000
HUGE = WS_SIZE
SPIN_MAX = 1 << 16

C_QUEUE = 1
WS_F = 240 << 20
F_KV, F_AQ, F_ROW = WS_F, WS_F + 8192, WS_F + 12288
WS_G = 241 << 20

P_X, P_WQKV, P_WOA, P_CKV, P_WQ, P_WUK, P_WUV = 4, 6, 30, 12, 14, 16, 18
P_WOB, P_GATE, P_OUT, P_DBG, P_WS = 20, 22, 24, 26, 28
SRD_A, SRD_B, SRD_WS, SRD_DBG = 32, 36, 40, 44
S_WAVE, S_TYPE, S_HEAD, S_QB = 48, 49, 50, 51
S_XOFF, S_WOFF, S_XSTA, S_XSTB, S_XWRAP, S_W4, S_W12 = 52, 53, 54, 55, 56, 57, 58
S_XRD, S_XWR, S_WWR, S_XWAVE, S_LEFT, S_PHASE = 59, 60, 61, 62, 63, 64
S_OB, S_OSTA, S_OSTB = 65, 66, 67
S_XOFF2, S_WOFF2, S_XSTA2, S_XSTB2, S_XWRAP2, S_X2LO, S_X2HI, S_X2N = 68, 69, 70, 71, 72, 73, 74, 75
S_OBQK, S_OBV, S_SCA, S_GHEAD = 76, 77, 78, 79
S_N, S_T2, S_TW, S_KOFF, S_VOFF, S_KLIM, S_VLIM, S_B0 = 52, 53, 54, 55, 56, 57, 58, 59
S_RET = 60
S_FLOOR, S_FIRST = 62, 64
S_WOOFF, S_POFF, S_MASK, S_HUGE, S_WOW = 65, 66, 67, 68, 69
S_SC = 70
S_BL1 = 67
S_POFF1 = 71
S_ITEM = 72
S_SPIN = 73
S_EV = 74
S_PADDR = 75
S_RMASK = 77
S_AQOK = 79
S_PFLAG, S_PMASK = 12, 13
S_POPPED = 49
S_KAP = 78
S_RFLAG = 76
S_TMP = 80
S_STAMP = 88
SRD_E = 8
S_TOFF = 87
S_PC = 84
S_TOFF2 = 86
S_TA, S_TASZ, S_TAOFF, S_TAT, S_TBOFF, S_TBT = 12, 16, 17, 18, 19, 22
S_CSTEP = 83
V_CRT = 42
V_TCH = 40
S_GRP = 3

V_LANE16 = 1
V_XL0, V_XL1, V_XR0, V_XR1 = 2, 3, 4, 5
V_WR = 6
V_DX, V_DW, V_DX2 = 14, 15, 16
V_OA, V_OAV, V_SCHI, V_MULHI, V_ADDHI = 17, 18, 19, 20, 21
V_PXL = 22
V_PWL = 24
V_PWR = 27
V_XQW, V_XQR = 30, 31
V_G = 32
V_CV = 48
FX = [64, 128]
FW = [96, 160]
V_PK = 128
V_DKV = 2
V_RB1, V_RB0 = 3, 4
V_CB = 6
V_L = 8
V_DM = 10
V_LT = 14
V_T = 16
V_WOD = 32
V_WOR = 40
V_POLL = 44
V_SIG = 46
V_POP = 5
VP = [48, 56]
VS = [64, 80]
VC = 96
VE = 112
VO = 128
AQ, AK, AV = 0, 64, 128
XQ = 98304

OOL = []


def flush_ool(A):
    for b in OOL:
        A.emit_list(b)
    OOL.clear()


def emit_chain(A, c):
    prev = ""
    for o in c:
        if o.kind == "M" and prev.split(",")[0].endswith(" m0"):
            A("s_nop 0")
        A(o.text)
        prev = o.text


def emit_left(A, left):
    for l in left:
        A(l)
        if l.split(",")[0].endswith(" m0") or l.startswith("v_exp"):
            A("s_nop 0")


def spread(n_items, start, end):
    if n_items == 1:
        return [start]
    return [start + (i * (end - start)) // (n_items - 1) for i in range(n_items)]


def set_srd(A, srd, ptr, size):
    A(f"s_mov_b32 s{srd}, s{ptr}")
    A(f"s_mov_b32 s{srd+1}, s{ptr+1}")
    A(f"s_mov_b32 s{srd+2}, {size}")
    A(f"s_mov_b32 s{srd+3}, 0x20000")


def stamp(A, cfg, i):
    if cfg.get("diag") or cfg.get("hdiag"):
        A(f"s_memrealtime {sr(S_STAMP+2*i,2)}")


def hstamp_out(A, cfg, items):
    if not cfg.get("hdiag"):
        return
    l = A.newlabel("LHD")
    A(f"s_memrealtime {sr(S_STAMP+12,2)}")
    A("s_waitcnt lgkmcnt(0)")
    A(f"s_cmp_lg_u32 s{S_WAVE}, 0")
    A(f"s_cbranch_scc1 {l}")
    A(f"v_mov_b32 v{V_T+1}, 0")
    A("s_mov_b64 exec, 1")
    for k, (st, word, neg) in enumerate(items):
        A(f"v_mov_b32 v{V_T+2+k}, s{S_STAMP+2*st}")
        if neg:
            A(f"v_sub_u32 v{V_T+2+k}, 0, v{V_T+2+k}")
        A(f"buffer_atomic_umax v{V_T+2+k}, v{V_T+1}, {sr(SRD_DBG,4)}, 0 offen offset:{word*4}")
    A("s_mov_b64 exec, -1")
    A.label(l)


def stamp_out(A, cfg, n, wsoff, idx_sgpr):
    if cfg.get("diag"):
        A("s_waitcnt vmcnt(0) lgkmcnt(0)")
        A(f"s_memrealtime {sr(S_STAMP+2*(n-1),2)}")
        A("s_waitcnt lgkmcnt(0)")
        A(f"s_lshl_b32 s{S_TMP}, s{idx_sgpr}, 8")
        A(f"s_lshl_b32 s{S_TMP+1}, s{S_WAVE}, 6")
        A(f"s_add_u32 s{S_TMP}, s{S_TMP}, s{S_TMP+1}")
        A(f"s_add_u32 s{S_TMP}, s{S_TMP}, {wsoff}")
        A(f"v_mov_b32 v{V_T+1}, 0")
        for i in range(n):
            A(f"v_mov_b32 v{V_T}, s{S_STAMP+2*i}")
            A(f"buffer_store_dword v{V_T}, v{V_T+1}, {sr(SRD_WS,4)}, s{S_TMP} offen offset:{4*i}")
            A("s_nop 1")


def signal(A, off_sgpr, grp=None, mask_sgpr=None):
    l = A.newlabel("LSG")
    A(f"s_cmp_lg_u32 s{S_WAVE}, 0")
    A(f"s_cbranch_scc1 {l}")
    if grp is not None:
        A(f"s_cmp_lg_u32 s{S_GRP}, {grp}")
        A(f"s_cbranch_scc1 {l}")
    A(f"v_mov_b32 v{V_SIG}, 1")
    A(f"v_lshlrev_b32 v{V_SIG+1}, 5, v0")
    A("s_mov_b64 exec, 1")
    if mask_sgpr is not None:
        A(f"s_mov_b32 exec_lo, s{mask_sgpr}")
    A(f"buffer_store_dword v{V_SIG}, v{V_SIG+1}, {sr(SRD_WS,4)}, s{off_sgpr} offen sc1")
    A("s_mov_b64 exec, -1")
    A.label(l)


def pop_issue(A):
    l = A.newlabel("LPO")
    A(f"s_mov_b32 s{S_POPPED}, 1")
    A(f"s_cmp_lg_u32 s{S_WAVE}, 0")
    A(f"s_cbranch_scc1 {l}")
    A(f"s_and_b32 s{S_TMP+7}, s2, 7")
    A(f"s_lshl_b32 s{S_TMP+7}, s{S_TMP+7}, 5")
    A(f"v_mov_b32 v{V_POP}, 1")
    A(f"v_mov_b32 v{V_SIG+1}, 0")
    A("s_mov_b64 exec, 1")
    A(f"buffer_atomic_add v{V_POP}, v{V_SIG+1}, {sr(SRD_DBG,4)}, s{S_TMP+7} offen offset:{C_QUEUE*4} sc0")
    A("s_mov_b64 exec, -1")
    A.label(l)


def poll_issue(A, idx_sgpr, base, nwords):
    A(f"s_lshl_b32 s{S_PADDR}, s{idx_sgpr}, 8")
    A(f"s_add_u32 s{S_PADDR}, s{S_PADDR}, {base}")
    A(f"v_min_u32 v{V_POLL+1}, {nwords-1}, v0")
    A(f"v_lshlrev_b32 v{V_POLL+1}, 2, v{V_POLL+1}")
    A(f"buffer_load_dword v{V_POLL}, v{V_POLL+1}, {sr(SRD_WS,4)}, s{S_PADDR} offen sc1")


def poll_test(A):
    A(f"v_cmp_eq_u32 vcc, 1, v{V_POLL}")
    A("s_nop 3")
    A("s_cmp_eq_u64 vcc, -1")


def poll_wait(A, reissue_first=False):
    lok, lloop = A.newlabel("LPK"), A.newlabel("LPL")
    A(f"s_mov_b32 s{S_SPIN}, {SPIN_MAX}")
    if reissue_first:
        A(f"buffer_load_dword v{V_POLL}, v{V_POLL+1}, {sr(SRD_WS,4)}, s{S_PADDR} offen sc1")
    A.label(lloop)
    A("s_waitcnt vmcnt(0)")
    poll_test(A)
    A(f"s_cbranch_scc1 {lok}")
    A(f"s_sub_u32 s{S_SPIN}, s{S_SPIN}, 1")
    A(f"s_cmp_eq_u32 s{S_SPIN}, 0")
    A(f"s_cbranch_scc1 {lok}")
    A("s_sleep 8")
    A(f"buffer_load_dword v{V_POLL}, v{V_POLL+1}, {sr(SRD_WS,4)}, s{S_PADDR} offen sc1")
    A(f"s_branch {lloop}")
    A.label(lok)


def acc(nb, tb):
    return (nb * 8 + tb) * 4


def g_mfmas(typ, s, first):
    out = []
    for nb in range(8):
        for tb in range(8):
            a = acc(nb, tb)
            w, x = vr(FW[s] + 4 * nb, 4), vr(FX[s] + 4 * tb, 4)
            c = "0" if first else ar(a, 4)
            out.append(f"v_mfma_f32_16x16x32_bf16 {ar(a,4)}, {w}, {x}, {c}" if typ == "KQ"
                       else f"v_mfma_f32_16x16x32_bf16 {ar(a,4)}, {x}, {w}, {c}")
    return out


def g_reads(s, hh):
    vx = V_XR0 if hh == 0 else V_XR1
    out = [f"ds_read_b128 {vr(FX[s]+4*i,4)}, v{vx} offset:{i*2048}" for i in range(8)]
    for i in range(8):
        out.append(f"ds_read_b64_tr_b16 {vr(FW[s]+4*i,2)}, v{V_WR+i} offset:{hh*16384}")
        out.append(f"ds_read_b64_tr_b16 {vr(FW[s]+4*i+2,2)}, v{V_WR+i} offset:{hh*16384+2048}")
    return out


def dma_x():
    c = [Op(f"s_mov_b32 m0, s{S_XWR}", "S")]
    for i in range(8):
        c.append(Op(f"buffer_load_dwordx4 v{V_DX}, {sr(SRD_A,4)}, s{S_XOFF} offen lds", "M"))
        if i < 7:
            c.append(Op("s_add_u32 m0, m0, 2048", "S"))
            c.append(Op(f"s_add_u32 s{S_XOFF}, s{S_XOFF}, s{S_XSTA if i % 2 == 0 else S_XSTB}", "S"))
        else:
            c.append(Op(f"s_add_u32 s{S_XOFF}, s{S_XOFF}, s{S_XWRAP}", "S"))
            c.append(Op(f"s_add_u32 s{S_XWR}, s{S_XWR}, 32768", "S"))
            c.append(Op(f"s_cmp_ge_u32 s{S_XWR}, {LDS_TOTAL}", "S"))
            c.append(Op(f"s_cselect_b32 s{S_XWR}, s{S_XWAVE}, s{S_XWR}", "S"))
    return c


def dma_w():
    c = [Op(f"s_mov_b32 m0, s{S_WWR}", "S")]
    for i in range(8):
        c.append(Op(f"buffer_load_dwordx4 v{V_DW}, {sr(SRD_B,4)}, s{S_WOFF} offen lds", "M"))
        if i % 2 == 0:
            c.append(Op("s_add_u32 m0, m0, 2048", "S"))
            c.append(Op(f"s_add_u32 s{S_WOFF}, s{S_WOFF}, {4*8192}", "S"))
        else:
            if i < 7:
                c.append(Op("s_add_u32 m0, m0, 6144", "S"))
            c.append(Op(f"s_add_u32 s{S_WOFF}, s{S_WOFF}, {12*8192}", "S"))
        if i == 7:
            c.append(Op(f"s_xor_b32 s{S_WWR}, s{S_WWR}, 32768", "S"))
    return c


HT = "DFDMDFDF" * 6 + "FMFFFFFM" + "FFFFFFFX"


def gate_ops():
    c = V_CV
    par, prevs = [], []
    acc_prev = Op(f"v_mov_b32 v{c+8}, 0", "V")
    par.append(acc_prev)
    for i in range(8):
        x, g = 192 + i, 200 + i
        t = 208 + 4 * i
        a = Op(f"v_lshlrev_b32 v{t}, 16, v{x}", "V")
        b = Op(f"v_and_b32 v{t+1}, 0xffff0000, v{x}", "V")
        d = Op(f"v_lshlrev_b32 v{t+2}, 16, v{g}", "V")
        e = Op(f"v_and_b32 v{t+3}, 0xffff0000, v{g}", "V")
        m0 = Op(f"v_mul_f32 v{t}, v{t}, v{t+2}", "V", [a, d])
        m1 = Op(f"v_mul_f32 v{t+1}, v{t+1}, v{t+3}", "V", [b, e])
        cv = Op(f"v_cvt_pk_bf16_f32 v{t}, v{t}, v{t+1}", "V", [m0, m1])
        lo = Op(f"v_lshlrev_b32 v{t+1}, 16, v{t}", "V", [cv])
        hi = Op(f"v_and_b32 v{t+2}, 0xffff0000, v{t}", "V", [cv])
        s0 = Op(f"v_add_f32 v{c+8}, v{c+8}, v{t+1}", "V", [lo, acc_prev])
        s1 = Op(f"v_add_f32 v{c+8}, v{c+8}, v{t+2}", "V", [hi, s0])
        acc_prev = s1
        par += [a, b, d, e, m0, m1, cv, lo, hi, s0, s1]
    v, w = c + 8, c + 9
    tail = []
    for r in (8, 4, 2, 1):
        tail += ["s_nop 0", f"v_add_f32_dpp v{v}, v{v}, v{v} row_ror:{r} row_mask:0xf bank_mask:0xf"]
    tail += [f"v_mov_b32 v{w}, v{v}", "s_nop 0", f"v_permlane16_swap_b32 v{w}, v{v}", "s_nop 0", f"v_add_f32 v{v}, v{v}, v{w}",
             f"v_cvt_pk_bf16_f32 v{v}, v{v}, v{v}", f"v_lshlrev_b32 v{v}, 16, v{v}", f"v_mul_f32 v{v}, {f32bits(-LOG2E):#x}, v{v}",
             f"v_exp_f32 v{v}, v{v}", f"v_add_f32 v{v}, 1.0, v{v}", f"v_rcp_f32 v{v}, v{v}", f"v_cvt_pk_bf16_f32 v{v}, v{v}, v{v}",
             f"v_lshlrev_b32 v{v}, 16, v{v}", f"v_lshrrev_b32 v{w}, 5, v0", f"v_lshlrev_b32 v{w}, 2, v{w}"]
    tl, prev = [], None
    for t in tail:
        o = Op(t, "V", [prev] if prev else [])
        tl.append(o)
        prev = o
    return par, tl


def g_step(A, typ, first, cfg):
    lastD = max(i for i, c in enumerate(HT) if c == "D")
    va = [Op(f"v_add_u32 v{V_XR0}, s{S_XRD}, v{V_XL0}", "V", min_gap=lastD + 1),
          Op(f"v_add_u32 v{V_XR1}, s{S_XRD}, v{V_XL1}", "V", min_gap=lastD + 1)]
    va += [Op(f"v_xor_b32 v{V_WR+i}, 0x8000, v{V_WR+i}", "V", min_gap=lastD + 1) for i in range(8)]
    gp, gt = gate_ops() if first else ([], [])
    va = va + gp[:58]
    tch = [Op(f"buffer_load_dword v{V_TCH+1}, v{V_TCH}, {sr(SRD_WS,4)}, s{S_TOFF} offen {cfg.get('tfl','')}", "M"),
           Op(f"buffer_atomic_add v{V_CRT}, v{V_CRT+1}, {sr(SRD_DBG,4)}, 0 offen", "M")]
    ht1 = HT[:59] + "MFM" + HT[62:]
    out, _ = schedule(g_mfmas(typ, 0, first), ht1, g_reads(1, 1), dma_x() + tch, va,
                      {63: ["s_waitcnt vmcnt(10) lgkmcnt(0)", "s_barrier"]}, salu_first=True)
    A.emit_list(out)
    ch = [Op(f"s_add_u32 s{S_XRD}, s{S_XRD}, 32768", "S"), Op(f"s_cmp_ge_u32 s{S_XRD}, {LDS_TOTAL}", "S"),
          Op(f"s_cselect_b32 s{S_XRD}, {LDS_X0}, s{S_XRD}", "S")]
    groups = [[Op(f"s_add_u32 s{S_PHASE}, s{S_PHASE}, 1", "S"), Op(f"s_mov_b32 s{SRD_WS+2}, 0", "S")]]
    for when, base, size, off in ((f"s{S_TAT}", S_TA, f"s{S_TASZ}", S_TAOFF),
                                  (cfg.get("warm_at", 13), S_PC, "LM_END-LM_PC", S_TOFF2)):
        groups.append([Op(f"s_cmp_eq_u32 s{S_PHASE}, {when}", "S"),
                       Op(f"s_cselect_b64 {sr(SRD_WS,2)}, {sr(base,2)}, {sr(SRD_WS,2)}", "S"),
                       Op(f"s_cselect_b32 s{SRD_WS+2}, {size}, s{SRD_WS+2}", "S"),
                       Op(f"s_cselect_b32 s{S_TOFF}, s{off}, s{S_TOFF}", "S")])
    groups.append([Op(f"s_cmp_eq_u32 s{S_PHASE}, s{S_CSTEP}", "S"), Op(f"s_cselect_b32 s{SRD_DBG+2}, 256, 0", "S")])
    if first:
        groups = groups[:1]
    merged = []
    for o in dma_w():
        merged.append(o)
        if o.kind == "M" and groups:
            merged += groups.pop(0)
    assert not groups
    ch = ch + merged + [Op(f"s_sub_u32 s{S_LEFT}, s{S_LEFT}, 1", "S"), Op(f"s_cmp_lg_u32 s{S_LEFT}, 0", "S")]
    for o in gp[:58]:
        o.gap = -1
    if gt:
        gt[0].deps = [gp[-1]]
    out, _ = schedule(g_mfmas(typ, 1, False), HT, g_reads(0, 0), ch, gp[58:] + gt, {63: ["s_waitcnt lgkmcnt(0)"]}, salu_first=True)
    A.emit_list(out)
    if cfg.get("gdiag"):
        A("s_memtime s[100:101]")
        A("s_memrealtime s[98:99]")
        A(f"s_mov_b32 m0, s{S_W12}")
        A("s_waitcnt lgkmcnt(0)")
        A("v_writelane_b32 v240, s100, m0")
        A("v_writelane_b32 v241, s98, m0")
        A(f"s_addk_i32 s{S_W12}, 1")
        A(f"s_cmp_lg_u32 s{S_LEFT}, 0")
    if first:
        A(f"s_mov_b32 s{SRD_WS+2}, {WS_SIZE}")
        A("s_mov_b32 exec_lo, 1")
        A("s_mov_b32 exec_hi, 1")
        A(f"buffer_store_dword v{V_CV+8}, v{V_CV+9}, {sr(SRD_WS,4)}, s{S_W4} offen sc1")
        A("s_mov_b64 exec, -1")
        A(f"s_mov_b32 s{SRD_WS+2}, 0")


KVFL = "sc1"


def kv_store(c, srd=None):
    srd = SRD_E if srd is None else srd
    ops = []
    if c and c % 4 == 0:
        ops.append(Op(f"s_add_u32 s{S_OB}, s{S_OB}, s{S_OSTA if (c // 4) % 2 == 1 else S_OSTB}", "S"))
    ops.append(Op(f"buffer_store_dwordx4 {vr(V_PK+4*c,4)}, v{V_LANE16}, {sr(srd,4)}, s{S_OB} offen offset:{(c%4)*1024} {KVFL}", "M"))
    return ops


def g_cvt(A, typ, n_early):
    for c in range(32):
        hi, lo = c // 4, c % 4
        if typ == "KQ":
            o, p = hi, lo
            regs = [acc(2 * p, o) + r for r in range(4)] + [acc(2 * p + 1, o) + r for r in range(4)]
        else:
            p, o = hi >> 1, (hi & 1) * 4 + lo
            regs = [acc(o, 2 * p) + r for r in range(4)] + [acc(o, 2 * p + 1) + r for r in range(4)]
        t = V_CV + (c % 2) * 8
        for i, r in enumerate(regs):
            A(f"v_accvgpr_read_b32 v{t+i}, a{r}")
        for i in range(4):
            A(f"v_cvt_pk_bf16_f32 v{V_PK+4*c+i}, v{t+2*i}, v{t+2*i+1}")
        if n_early == 32:
            for o_ in kv_store(c):
                A(o_.text)
        else:
            k0, k1 = (c * n_early) // 32, ((c + 1) * n_early) // 32
            for k in range(k0, k1):
                for o_ in kv_store(k):
                    A(o_.text)


PF = [("v", 64), ("a", 176)]


def pfr(s, off, n):
    k, b = PF[s]
    return vr(b + off, n, k)


def p_mfmas(s, first):
    out = []
    for db in range(8):
        for tb in range(4):
            a = ar((db * 4 + tb) * 4, 4)
            out.append(f"v_mfma_f32_16x16x32_bf16 {a}, {pfr(s,16+4*db,4)}, {pfr(s,4*tb,4)}, {'0' if first else a}")
    for u in range(3):
        for tb in range(4):
            a = ar(128 + (u * 4 + tb) * 4, 4)
            w, x = pfr(s, 48 + 4 * u, 4), pfr(s, 4 * tb, 4)
            out.append(f"v_mfma_f32_16x16x32_bf16 {a}, {w}, {x}, {'0' if first else a}" if u < 2
                       else f"v_mfma_f32_16x16x32_bf16 {a}, {x}, {w}, {'0' if first else a}")
    return out


def p_reads(s, hh):
    out = [f"ds_read_b128 {pfr(s,4*tb,4)}, v{V_XR0+hh} offset:{tb*2048}" for tb in range(4)]
    for b in range(8):
        for e in range(2):
            out.append(f"ds_read_b64_tr_b16 {pfr(s,16+4*b+2*e,2)}, v{V_WR+b} offset:{hh*16384+e*2048}")
    for u in range(3):
        for e in range(2):
            out.append(f"ds_read_b64_tr_b16 {pfr(s,48+4*u+2*e,2)}, v{V_PWR+u} offset:{hh*8192+e*2048}")
    return out


def p_addr(T):
    base = LDS_X0 + (T % 3) * 32768
    return ([f"v_add_u32 v{V_XR0+h}, {base}, v{V_PXL+h}" for h in range(2)] +
            [f"v_add_u32 v{V_PWR+u}, {base}, v{V_PWL+u}" for u in range(3)])


def merge_chain(dmas, stores):
    out = []
    k = 0
    stores = list(stores)
    for o in dmas:
        out.append(o)
        if o.kind == "M":
            k += 1
            if k % 2 == 0 and stores:
                out += stores.pop(0)
    for s in stores:
        out += s
    return out


PT = "DDM" * 13 + "FFFFX"


def p_step(A, T, st1, st2, cfg):
    lastD = max(i for i, c in enumerate(PT) if c == "D")
    last = T == 22
    ch = merge_chain(dma_x() if T + 2 <= 22 else [], [kv_store(c) for c in st1])
    n_young = sum(1 for o in ch if o.kind == "M")
    va = []
    if not last:
        va = [Op(t, "V", min_gap=lastD + 1) for t in p_addr(T + 1)]
        va += [Op(f"v_xor_b32 v{V_WR+i}, 0x8000, v{V_WR+i}", "V", min_gap=lastD + 1) for i in range(8)]
    out, left = schedule(p_mfmas(0, T == 16), PT, p_reads(1, 1), ch, va, {}, strict=False)
    A.emit_list(out)
    emit_left(A, left)
    A(f"s_waitcnt vmcnt({n_young}) lgkmcnt(0)")
    A("s_barrier")
    if T == cfg.get("sig_at", 18):
        assert not st1 and not st2
        signal(A, S_GHEAD, grp=0)
    if last:
        poll_issue(A, S_HEAD, F_KV, 8)
    ch = merge_chain(dma_w() if T + 2 <= 22 else [], [kv_store(c) for c in st2])
    out, left = schedule(p_mfmas(1, False), PT, [] if last else p_reads(0, 0), ch, [], {}, strict=False)
    A.emit_list(out)
    emit_left(A, left)
    A("s_waitcnt lgkmcnt(0)")


def p_epilogue_a(A):
    gi = 0
    for tb in range(4):
        t = 64 + gi * 12
        gi += 1
        lo, hi = 128 + tb * 4, 128 + (4 + tb) * 4
        for r in range(4):
            A(f"v_accvgpr_read_b32 v{t+r}, a{lo+r}")
            A(f"v_accvgpr_read_b32 v{t+4+r}, a{hi+r}")
        for r in range(4):
            A(f"v_mul_f32 v{t+r}, s{S_SCA}, v{t+r}")
            A(f"v_mul_f32 v{t+4+r}, v{V_SCHI}, v{t+4+r}")
        for i in range(4):
            A(f"v_cvt_pk_bf16_f32 v{t+8+i}, v{t+2*i}, v{t+2*i+1}")
        A(f"buffer_store_dwordx4 {vr(t+8,4)}, v{V_OA}, {sr(SRD_WS,4)}, s{S_OBQK} offen offset:{(tb>>1)*2048+(tb&1)*128} sc1")
    for p in range(2):
        t = 128 + p * 12
        lo, hi = 128 + (8 + 2 * p) * 4, 128 + (8 + 2 * p + 1) * 4
        for r in range(4):
            A(f"v_accvgpr_read_b32 v{t+r}, a{lo+r}")
            A(f"v_accvgpr_read_b32 v{t+4+r}, a{hi+r}")
        for r in range(8):
            A(f"v_fma_f32 v{t+r}, v{t+r}, v{V_MULHI}, v{V_ADDHI}")
        for i in range(4):
            A(f"v_cvt_pk_bf16_f32 v{t+8+i}, v{t+2*i}, v{t+2*i+1}")
        A(f"buffer_store_dwordx4 {vr(t+8,4)}, v{V_OAV}, {sr(SRD_WS,4)}, s{S_OBV} offen offset:{p*2048} sc1")


def p_epilogue_q(A):
    gi = 0
    for tb in range(4):
        for p in range(4):
            t = 160 + (gi % 8) * 12
            gi += 1
            lo, hi = ((2 * p) * 4 + tb) * 4, ((2 * p + 1) * 4 + tb) * 4
            for r in range(4):
                A(f"v_accvgpr_read_b32 v{t+r}, a{lo+r}")
                A(f"v_accvgpr_read_b32 v{t+4+r}, a{hi+r}")
            for r in range(0, 8, 2):
                A(f"v_pk_mul_f32 {vr(t+r,2)}, {vr(t+r,2)}, {sr(S_SC,2)}")
            for i in range(4):
                A(f"v_cvt_pk_bf16_f32 v{t+8+i}, v{t+2*i}, v{t+2*i+1}")
            A(f"ds_write_b128 v{V_XQW}, {vr(t+8,4)} offset:{tb*8192+p*1024}")


def s_reg(buf, kb, qb):
    return VS[buf] + (kb * 2 + qb) * 4


def c_reg(kb, qb):
    return VC + (kb * 2 + qb) * 4


def o_reg(db, qb):
    return VO + (db * 2 + qb) * 4


def qk_mfmas(buf, qs=(0, 1)):
    out = []
    for dg in range(8):
        for kb in range(2):
            for qb in qs:
                d = vr(s_reg(buf, kb, qb), 4)
                c = vr(c_reg(kb, qb), 4) if dg == 0 else d
                out.append(f"v_mfma_f32_16x16x32_bf16 {d}, {ar(AK+(kb*8+dg)*4,4)}, {ar(AQ+(qb*8+dg)*4,4)}, {c}")
    return out


def pv_mfmas(pbuf, qs=(0, 1)):
    out = []
    for db in range(16):
        for qb in qs:
            d = vr(o_reg(db, qb), 4)
            out.append(f"v_mfma_f32_16x16x32_bf16 {d}, {ar(AV+db*4,4)}, {vr(VP[pbuf]+qb*4,4)}, {d}")
    return out


def k_reads(vbase, off):
    return [f"ds_read_b128 {ar(AK+(kb*8+dg)*4,4)}, v{vbase} offset:{off+(kb*8+dg)*1024}"
            for dg in range(8) for kb in range(2)]


def v_reads(vbase, off):
    return [f"ds_read_b128 {ar(AV+db*4,4)}, v{vbase} offset:{off+db*1024}" for db in range(16)]


def softmax_oplist(buf, pbuf, with_l=(0, 1), qs=(0, 1)):
    ops = []
    ladd = {qb: Op(f"v_add_f32 v{V_L+qb}, v{V_L+qb}, v{V_LT+qb}", "V") for qb in with_l}
    ops += list(ladd.values())
    lastsum = []
    for qb in qs:
        prev = None
        for kb in range(2):
            s = s_reg(buf, kb, qb)
            e = VE + (kb * 2 + qb) * 4
            ex = [Op(f"v_exp_f32 v{e+r}, v{s+r}", "E") for r in range(4)]
            ops += ex
            ops.append(Op(f"v_cvt_pk_bf16_f32 v{VP[pbuf]+qb*4+kb*2}, v{e}, v{e+1}", "V", [ex[0], ex[1]]))
            ops.append(Op(f"v_cvt_pk_bf16_f32 v{VP[pbuf]+qb*4+kb*2+1}, v{e+2}, v{e+3}", "V", [ex[2], ex[3]]))
            if kb == 0:
                prev = Op(f"v_add_f32 v{V_LT+qb}, v{e}, v{e+1}", "V", [ex[0], ex[1]] + ([ladd[qb]] if qb in ladd else []))
                ops.append(prev)
                rest = [2, 3]
            else:
                rest = [0, 1, 2, 3]
            for r in rest:
                prev = Op(f"v_add_f32 v{V_LT+qb}, v{V_LT+qb}, v{e+r}", "V", [ex[r], prev])
                ops.append(prev)
        lastsum.append(prev)
    if len(qs) == 2:
        mx = Op(f"v_max_f32 v{V_T+8}, v{V_LT}, v{V_LT+1}", "V", lastsum)
        ops.append(mx)
        ops.append(Op(f"v_cmp_ngt_f32 vcc, 2.0, v{V_T+8}", "V", [mx]))
    else:
        ops.append(Op(f"v_cmp_ngt_f32 vcc, 2.0, v{V_LT+qs[0]}", "V", lastsum))
    return ops


def softmax_linear(buf, pbuf):
    ops = softmax_oplist(buf, pbuf, with_l=())
    return [o.text for o in ops if o.kind == "E"] + ["s_nop 0"] + [o.text for o in ops if o.kind == "V"]


def kv_dma(soff, i):
    return Op(f"buffer_load_dwordx4 v{V_DKV}, {sr(SRD_WS,4)}, s{soff} offen offset:{i*1024} sc1 lds", "M")


def dma_chain(kdst, vdst, vmin):
    c = [Op(f"s_cmp_lt_u32 s{S_KOFF}, s{S_KLIM}", "S"), Op(f"s_cselect_b32 s{S_TMP}, s{S_KOFF}, s{S_HUGE}", "S"),
         Op(kdst, "S"), Op(f"s_add_u32 s{S_KOFF}, s{S_KOFF}, 16384", "S")]
    c += [kv_dma(S_TMP, i) for i in range(4)]
    c += [Op(f"s_cmp_lt_u32 s{S_VOFF}, s{S_VLIM}", "S", min_gap=vmin),
          Op(f"s_cselect_b32 s{S_TMP+1}, s{S_VOFF}, s{S_HUGE}", "S"),
          Op(vdst, "S"), Op(f"s_add_u32 s{S_VOFF}, s{S_VOFF}, 16384", "S")]
    c += [kv_dma(S_TMP + 1, i) for i in range(4)]
    return c


def kv_tile_chain(which, stage):
    off = S_KOFF if which == "K" else S_VOFF
    c = [Op(f"s_add_u32 m0, s{S_B0}, {stage*32768 + (0 if which == 'K' else 16384)}", "S")]
    c += [kv_dma(off, i) for i in range(4)]
    c.append(Op(f"s_add_u32 s{off}, s{off}, 16384", "S"))
    return c


def c_mask_ops(slot, kexpr):
    b = S_WAVE if slot == 0 else S_BL1
    sal, val = [], []
    for kb in range(2):
        sa, sm_ = S_TMP + 4 + 2 * kb, S_TMP + 5 + 2 * kb
        sal += [f"s_cmp_gt_u32 {kexpr(kb)}, s{b}", f"s_cselect_b32 s{sa}, {NEG_INF:#x}, 0",
                f"s_cmp_eq_u32 {kexpr(kb)}, s{b}", f"s_cselect_b32 s{sm_}, -1, 0"]
        t = V_T + 9 + kb
        val.append(f"v_add_f32 v{t}, s{sa}, v{V_CB+slot}")
        for r in range(4):
            val.append(f"v_and_b32 v{c_reg(kb,slot)+r}, s{sm_}, v{V_DM+r}")
        for r in range(4):
            val.append(f"v_add_f32 v{c_reg(kb,slot)+r}, v{c_reg(kb,slot)+r}, v{t}")
    return sal, val


def c_update(A, tile_sgpr):
    lool, lback = A.newlabel("LC"), A.newlabel("LC")
    T = S_TMP + 2
    o = [f"{lool}:", f"s_sub_u32 s{T}, s{tile_sgpr}, s{S_TW}", f"s_lshl_b32 s{T}, s{T}, 1", f"s_add_u32 s{T+1}, s{T}, 1"]
    sal, val = c_mask_ops(0, lambda kb: f"s{T+kb}")
    o += sal + val + [f"s_branch {lback}"]
    OOL.append(o)
    return [f"s_cmp_ge_u32 s{tile_sgpr}, s{S_TW}", f"s_cbranch_scc1 {lool}\n{lback}:"]


def rare_check(A, sb, pref="LB_RARE", half=False):
    lool, lback = A.newlabel("LR"), A.newlabel("LR")
    pre = []
    if half:
        pre = [f"v_mov_b32 v{s_reg(sb,kb,0)+r}, {NEG_INF:#x}" for kb in range(2) for r in range(4)]
    OOL.append([f"{lool}:"] + pre + [f"s_call_b64 {sr(S_RET,2)}, {pref}{sb}", f"s_branch {lback}"])
    return f"s_cbranch_vccnz {lool}\n{lback}:"


PH = "DDE" * 8 + "MEMEMEMX"


def b_iter(A, par, cfg, mode="full", last=None):
    pb_cur, pb_nxt = par, 1 - par
    sb_sm, sb_qk = 1 - par, par
    both, one = (0, 1), (1,)
    pv_q = both if mode in ("full", "t4", "t3") else one
    sm_q = {"full": both, "t4": both, "t3": one, "t2": one, "t1": ()}[mode]
    l_q = pv_q
    qk_q = {"full": both, "t4": one, "t3": one}.get(mode, ())
    if mode in ("t4", "t3"):
        A.emit_list(c_mask_ops(1, lambda kb: str((4 if mode == "t4" else 6) + kb))[0])
    A({"full": "s_waitcnt vmcnt(16) lgkmcnt(0)", "t4": "s_waitcnt vmcnt(16) lgkmcnt(0)", "t3": "s_waitcnt vmcnt(8) lgkmcnt(0)",
       "t2": "s_waitcnt vmcnt(8) lgkmcnt(0)", "t1": "s_waitcnt lgkmcnt(0)"}[mode])
    A("s_barrier")
    if sm_q:
        sm = softmax_oplist(sb_sm, pb_nxt, l_q, sm_q)
        for o in sm:
            if o.kind == "E":
                o.min_gap = 2
    else:
        sm = [Op(f"v_add_f32 v{V_L+qb}, v{V_L+qb}, v{V_LT+qb}", "V") for qb in l_q]
    vrd = v_reads(V_RB0 if par == 0 else V_RB1, 49152 if par == 0 else 16384)
    flip = [Op(f"v_xor_b32 v{V_RB0}, 0x10000, v{V_RB0}", "V"), Op(f"v_xor_b32 v{V_RB1}, 0x10000, v{V_RB1}", "V")]
    if qk_q:
        m = pv_mfmas(pb_cur) + qk_mfmas(sb_qk, qk_q)
        ds = k_reads(V_RB1, 0 if par == 0 else 32768) + vrd
        if mode == "full":
            cu = c_update(A, S_T2)
            chain = [Op(cu[0], "S"), Op(cu[1], "S"), Op(f"s_add_u32 s{S_T2}, s{S_T2}, 1", "S")]
        else:
            k0 = 4 if mode == "t4" else 6
            sal, val = c_mask_ops(1, lambda kb: str(k0 + kb))
            chain = []
            cops = []
            for kb in range(2):
                v = val[9 * kb:9 * kb + 9]
                t = Op(v[0], "V", min_gap=1)
                ands = [Op(x, "V", min_gap=1) for x in v[1:5]]
                adds = [Op(x, "V", [t, a]) for x, a in zip(v[5:9], ands)]
                cops += [t] + ands + adds
            sm = cops + sm
        if mode == "full":
            if par == 0:
                chain += dma_chain(f"s_add_u32 m0, s{S_B0}, 32768", f"s_add_u32 m0, s{S_B0}, 16384", 31)
            else:
                chain += dma_chain(f"s_xor_b32 m0, s{S_B0}, 65536", f"s_add_u32 m0, s{S_B0}, 49152", 31)
                for f in flip:
                    f.min_gap = 56
                sm += flip
                chain[-4:-4] = [Op(f"s_xor_b32 s{S_B0}, s{S_B0}, 65536", "S"), Op(f"s_sub_u32 s{S_LEFT}, s{S_LEFT}, 1", "S")]
            fixed = {31: ["s_waitcnt lgkmcnt(0)"], 63: [rare_check(A, sb_sm)]}
            out, left = schedule(m, PH + PH, ds, chain, sm, fixed)
            A.emit_list(out)
            return
        tmpl = "DDF" * 2 + "DDE" * 6 + "EEEEEEEX" + "D" * 16
        if mode == "t3" and last:
            tmpl = "DDF" * 2 + "DDE" * 6 + "EEMMMMMX" + "D" * 16
            chain += last
        out, left = schedule(m, tmpl, ds, chain, sm, {31: ["s_waitcnt lgkmcnt(0)"]}, strict=False)
        assert all(o.gap is not None and o.gap < 30 for o in cops), [o.gap for o in cops]
        A.emit_list(out)
        A("s_nop 0")
        emit_left(A, left)
        if par == 1:
            A.emit_list([f.text for f in flip])
        A(rare_check(A, sb_sm, half=(len(sm_q) == 1)))
        return
    m = pv_mfmas(pb_cur, one)
    if mode == "t2":
        out, left = schedule(m, "EEEEEEEE" + "EEDDDDDD", vrd, [], sm, {}, strict=False)
        A.emit_list(out)
        A("s_nop 0")
        emit_left(A, left)
        A(rare_check(A, sb_sm, half=True))
    else:
        out, left = schedule(m, "E" + "M" * 15, [], last, sm, {}, strict=False)
        A.emit_list(out)
        emit_left(A, left)


def xquad(A, op, v, t):
    A(f"v_mov_b32 v{t}, v{v}")
    A("s_nop 1")
    A(f"v_permlane32_swap_b32 v{t}, v{v}")
    A("s_nop 1")
    A(f"{op} v{v}, v{v}, v{t}")
    A(f"v_mov_b32 v{t}, v{v}")
    A("s_nop 1")
    A(f"v_permlane16_swap_b32 v{t}, v{v}")
    A("s_nop 1")
    A(f"{op} v{v}, v{v}, v{t}")


def b_rare(A, sb):
    A.label(f"LB_RARE{sb}")
    A("s_nop 7")
    A("s_nop 7")
    so = 1 - sb
    for qb in range(2):
        d = V_T + qb
        a, b = s_reg(sb, 0, qb), s_reg(sb, 1, qb)
        A(f"v_max3_f32 v{d}, v{a}, v{a+1}, v{a+2}")
        A(f"v_max3_f32 v{d}, v{d}, v{a+3}, v{b}")
        A(f"v_max3_f32 v{d}, v{d}, v{b+1}, v{b+2}")
        A(f"v_max_f32 v{d}, v{d}, v{b+3}")
        xquad(A, "v_max_f32", d, V_T + 4)
        A(f"v_add_f32 v{d}, {f32bits(BIAS):#x}, v{d}")
        A(f"v_max_f32 v{d}, s{S_FLOOR}, v{d}")
        A(f"v_max_f32 v{V_T+2+qb}, 0, v{d}")
        A(f"v_exp_f32 v{V_T+2+qb}, -v{V_T+2+qb}")
        for kb in range(2):
            for r in range(4):
                A(f"v_sub_f32 v{s_reg(sb,kb,qb)+r}, v{s_reg(sb,kb,qb)+r}, v{d}")
                A(f"v_sub_f32 v{s_reg(so,kb,qb)+r}, v{s_reg(so,kb,qb)+r}, v{d}")
                A(f"v_sub_f32 v{c_reg(kb,qb)+r}, v{c_reg(kb,qb)+r}, v{d}")
        A(f"v_sub_f32 v{V_CB+qb}, v{V_CB+qb}, v{d}")
        A(f"v_mul_f32 v{V_L+qb}, v{V_L+qb}, v{V_T+2+qb}")
    lskip = A.newlabel("LRS")
    A(f"s_cmp_eq_u32 s{S_FIRST}, 1")
    A(f"s_cbranch_scc1 {lskip}")
    for db in range(16):
        for qb in range(2):
            for r in range(4):
                A(f"v_mul_f32 v{o_reg(db,qb)+r}, v{o_reg(db,qb)+r}, v{V_T+2+qb}")
    A.label(lskip)
    A(f"s_mov_b32 s{S_FIRST}, 0")
    A(f"s_mov_b32 s{S_FLOOR}, 0")
    for o in softmax_linear(sb, sb):
        A(o)
    A("s_nop 1")
    A(f"s_setpc_b64 {sr(S_RET,2)}")


WO_SLOT = [4, 0, 1, 2, 3, 4, 0, 1]
VF = 128
VCTX = 64


def wo_chain(chunk, slot):
    c = [Op(f"s_add_u32 s{S_TMP+2}, s{S_WOOFF}, {chunk*32*896}", "S"), Op(f"s_add_u32 m0, s{S_WOW}, {slot*32768}", "S")]
    for i in range(7):
        if i == 4:
            c.append(Op("s_add_u32 m0, m0, 4096", "S"))
        c.append(Op(f"buffer_load_dwordx4 v{V_WOD+i}, {sr(SRD_B,4)}, s{S_TMP+2} offen offset:{(i%4)*1024} lds", "M"))
    return c


def wo_reads(half, fset):
    out = []
    for i in range(14):
        b = 14 * half + i
        f = VF + (fset * 14 + i) * 4
        for e in range(2):
            out.append(f"ds_read_b64_tr_b16 {vr(f+2*e,2)}, v{V_WOR+(b&3)} offset:{(b>>2)*128+e*16*896}")
    return out


def wo_mfmas(half, fset, dg):
    out = []
    for i in range(14):
        b = 14 * half + i
        f = VF + (fset * 14 + i) * 4
        for qb in range(2):
            a = (b * 2 + qb) * 4
            c = "0" if dg == 0 else ar(a, 4)
            out.append(f"v_mfma_f32_16x16x32_bf16 {ar(a,4)}, {vr(f,4)}, {vr(VCTX+(dg*2+qb)*4,4)}, {c}")
    return out


def b_epilogue(A, cfg):
    A("s_nop 7")
    for qb in range(2):
        xquad(A, "v_add_f32", V_L + qb, V_T + 4)
        A(f"v_rcp_f32 v{V_T+2*qb}, v{V_L+qb}")
        A("s_nop 0")
        A(f"v_mov_b32 v{V_T+2*qb+1}, v{V_T+2*qb}")
    for dg in range(8):
        for qb in range(2):
            for a in range(2):
                o = o_reg(2 * dg + a, qb)
                A(f"v_pk_mul_f32 {vr(o,2)}, {vr(o,2)}, {vr(V_T+2*qb,2)}")
                A(f"v_pk_mul_f32 {vr(o+2,2)}, {vr(o+2,2)}, {vr(V_T+2*qb,2)}")
            for a in range(2):
                o = o_reg(2 * dg + a, qb)
                c = VCTX + (dg * 2 + qb) * 4 + 2 * a
                A(f"v_cvt_pk_bf16_f32 v{c}, v{o}, v{o+1}")
                A(f"v_cvt_pk_bf16_f32 v{c+1}, v{o+2}, v{o+3}")
    A("s_waitcnt vmcnt(28)")
    A("s_barrier")
    A.emit_list(wo_reads(0, 0))
    poll_test(A)
    A(f"s_cselect_b32 s{S_AQOK}, 1, 0")
    W = {6: ["s_waitcnt lgkmcnt(14)"], 13: ["s_waitcnt lgkmcnt(14)"], 20: ["s_waitcnt lgkmcnt(14)"]}
    A("s_waitcnt lgkmcnt(0)")
    seq = [(c, h) for c in range(4) for h in range(2)] + [(c, 0) for c in range(4, 8)] + [(c, 1) for c in range(4, 8)]
    early = partial_ops(2, range(7))
    cur = 0
    seen = {0}
    for k, (dg, h) in enumerate(seq):
        nxt = seq[k + 1] if k + 1 < len(seq) else None
        if nxt:
            if nxt[0] != cur:
                delta = (WO_SLOT[nxt[0]] - WO_SLOT[cur]) * 32768
                for i in range(4):
                    A(f"v_add_u32 v{V_WOR+i}, {delta & 0xffffffff:#x}, v{V_WOR+i}")
                cur = nxt[0]
            if nxt[0] not in seen:
                seen.add(nxt[0])
                c = nxt[0]
                issued = min(7, 4 + (c - 1))
                A(f"s_waitcnt vmcnt({7*(issued-c)}) lgkmcnt({0 if c <= 3 else 14})")
                A("s_barrier")
                if c <= 3:
                    emit_chain(A, wo_chain(c + 4, WO_SLOT[c + 4]))
            elif k:
                A("s_waitcnt lgkmcnt(14)")
        if k == 12:
            pop_issue(A)
            for o in early:
                o.min_gap = 3
        va = [o for o in early if o.gap is None] if k >= 12 else []
        m = wo_mfmas(h, k % 2, dg)
        if nxt:
            out, _ = schedule(m, "D" * 28, wo_reads(nxt[1], (k + 1) % 2), [], va, W, strict=False)
        else:
            A("s_waitcnt lgkmcnt(14)")
            out, left = schedule(m, "F" * 28, [], [], va, {11: ["s_waitcnt lgkmcnt(0)"]}, strict=False)
        A.emit_list(out)
        for o in early:
            o.min_gap = 0
            if o.gap is not None:
                o.gap = -1
    A.emit_list(left)
    A("s_nop 7")
    for o in partial_ops(2, range(7, 14), base=128, ngrp=8):
        A(o.text)


def partial_ops(nqb, pairs, base=64, ngrp=2):
    ops = []
    gi = 0
    last_use = {}
    for qb in range(nqb):
        first = True
        for p in pairs:
            t = base + (gi % ngrp) * 12
            prev = last_use.get(gi % ngrp, [])
            regs = [((2 * p) * nqb + qb) * 4 + r for r in range(4)] + [((2 * p + 1) * nqb + qb) * 4 + r for r in range(4)]
            rd = [Op(f"v_accvgpr_read_b32 v{t+i}, a{r}", "V", prev[:4]) for i, r in enumerate(regs)]
            cv = [Op(f"v_cvt_pk_bf16_f32 v{t+8+i}, v{t+2*i}, v{t+2*i+1}", "V", [rd[2*i], rd[2*i+1]] + prev[4:]) for i in range(4)]
            off = p * 1024
            txt = ""
            if first or off % 4096 == 0:
                txt = f"s_add_u32 s{S_TMP}, s{S_POFF if qb == 0 else S_POFF1}, {off - off % 4096}\n"
            first = False
            st = Op(txt + f"buffer_store_dwordx4 {vr(t+8,4)}, v{V_LANE16}, {sr(SRD_WS,4)}, s{S_TMP} offen offset:{off%4096} sc1", "V",
                    cv + ([ops[-1]] if ops else []))
            ops += rd + cv + [st]
            last_use[gi % ngrp] = cv + [st]
            gi += 1
    return ops


def store_partials(A, nqb, cfg):
    fl = "sc1"
    pop_issue(A)
    A("s_nop 7")
    gi = 0
    for qb in range(nqb):
        for p in range(14):
            t = 128 + (gi % 8) * 12
            gi += 1
            regs = [((2 * p) * nqb + qb) * 4 + r for r in range(4)] + [((2 * p + 1) * nqb + qb) * 4 + r for r in range(4)]
            for i, r in enumerate(regs):
                A(f"v_accvgpr_read_b32 v{t+i}, a{r}")
            for i in range(4):
                A(f"v_cvt_pk_bf16_f32 v{t+8+i}, v{t+2*i}, v{t+2*i+1}")
            off = p * 1024
            if off % 4096 == 0:
                A(f"s_add_u32 s{S_TMP}, s{S_POFF if qb == 0 else S_POFF1}, {off}")
            A(f"buffer_store_dwordx4 {vr(t+8,4)}, v{V_LANE16}, {sr(SRD_WS,4)}, s{S_TMP} offen offset:{off%4096} {fl}")


def wo_lane_setup(A):
    T = V_T
    for i in range(7):
        A(f"v_add_u32 v{T}, {64*i}, v0")
        A(f"v_mul_u32_u24 v{T+1}, 1171, v{T}")
        A(f"v_lshrrev_b32 v{T+1}, 16, v{T+1}")
        A(f"v_mul_u32_u24 v{T+2}, 56, v{T+1}")
        A(f"v_sub_u32 v{T+2}, v{T}, v{T+2}")
        A(f"v_bfe_u32 v{T+3}, v{T+1}, 1, 2")
        A(f"v_lshlrev_b32 v{T+3}, 1, v{T+3}")
        A(f"v_xor_b32 v{T+2}, v{T+2}, v{T+3}")
        A(f"v_mul_u32_u24 v{T+1}, 896, v{T+1}")
        A(f"v_lshl_add_u32 v{T+1}, v{T+2}, 4, v{T+1}")
        A(f"v_subrev_u32 v{V_WOD+i}, {(i%4)*1024}, v{T+1}")


def b_setup_kv(A):
    T = S_TMP
    A(f"s_lshl_b32 s{S_TW}, s{S_QB}, 2")
    A(f"s_add_u32 s{S_N}, s{S_TW}, 4")
    A(f"s_lshl_b32 s{S_KOFF}, s{S_HEAD}, 20")
    A(f"s_add_u32 s{S_VOFF}, s{S_KOFF}, {WS_V}")
    A(f"s_lshl_b32 s{T}, s{S_N}, 14")
    A(f"s_add_u32 s{S_KLIM}, s{S_KOFF}, s{T}")
    A(f"s_add_u32 s{S_VLIM}, s{S_VOFF}, s{T}")
    A(f"s_lshl_b32 s{S_B0}, s{S_WAVE}, 12")
    A(f"v_add_u32 v{V_DKV}, s{S_B0}, v{V_LANE16}")
    A(f"s_mov_b32 s{S_SC}, {f32bits(SCALE_B):#x}")
    A(f"s_mov_b32 s{S_SC+1}, {f32bits(SCALE_B):#x}")


def b_setup_rest(A):
    T = S_TMP
    set_srd(A, SRD_B, P_WOB, 4096 * 448 * 2)
    A(f"v_and_b32 v{V_T}, 15, v0")
    A(f"v_lshrrev_b32 v{V_T+1}, 4, v0")
    A(f"v_lshlrev_b32 v{V_T+2}, 2, v{V_T+1}")
    A(f"v_mov_b32 v{V_T+4}, {NEG_INF:#x}")
    for r in range(4):
        A(f"v_add_u32 v{V_T+3}, {r}, v{V_T+2}")
        A(f"v_cmp_gt_u32 vcc, v{V_T+3}, v{V_T}")
        A("s_nop 1")
        A(f"v_cndmask_b32 v{V_DM+r}, 0, v{V_T+4}, vcc")
    A(f"v_bfe_u32 v{V_T+3}, v0, 2, 2")
    A(f"v_add_u32 v{V_T+3}, v{V_T+3}, v{V_T+2}")
    A(f"v_bfe_u32 v{V_T+5}, v{V_T+3}, 1, 2")
    A(f"v_mul_u32_u24 v{V_T+3}, 896, v{V_T+3}")
    A(f"v_and_b32 v{V_T+6}, 3, v0")
    A(f"v_lshl_add_u32 v{V_T+3}, v{V_T+6}, 3, v{V_T+3}")
    A(f"v_add_u32 v{V_T+3}, {WO_SLOT[0]*32768}, v{V_T+3}")
    for b in range(4):
        A(f"v_xor_b32 v{V_T+6}, {b}, v{V_T+5}")
        A(f"v_lshl_add_u32 v{V_WOR+b}, v{V_T+6}, 5, v{V_T+3}")
    wo_lane_setup(A)
    A(f"s_mul_i32 s{S_WOOFF}, s{S_HEAD}, {256*896}")
    A(f"s_mul_i32 s{S_WOW}, s{S_WAVE}, {8*896}")
    A(f"s_add_u32 s{S_WOOFF}, s{S_WOOFF}, s{S_WOW}")
    A(f"s_add_u32 s{S_POFF}, s{S_HEAD}, 4")
    A(f"s_mul_i32 s{S_POFF}, s{S_POFF}, {P_SLOT}")
    A(f"s_mul_i32 s{T}, s{S_QB}, {8*14*1024}")
    A(f"s_add_u32 s{S_POFF}, s{S_POFF}, s{T}")
    A(f"s_add_u32 s{S_POFF}, s{S_POFF}, {WS_P}")
    A(f"s_sub_u32 s{S_BL1}, 7, s{S_WAVE}")
    A(f"s_mul_i32 s{T}, s{S_BL1}, {14*1024}")
    A(f"s_add_u32 s{S_POFF1}, s{S_POFF}, s{T}")
    A(f"s_mul_i32 s{T}, s{S_WAVE}, {14*1024}")
    A(f"s_add_u32 s{S_POFF}, s{S_POFF}, s{T}")
    A(f"s_lshl_b32 s{T}, s{S_BL1}, 13")
    A(f"s_add_u32 s{T}, s{T}, {XQ}")
    A(f"v_add_u32 v{V_XQW}, s{T}, v{V_LANE16}")
    A(f"s_lshl_b32 s{S_RFLAG}, s{S_QB}, 8")
    A(f"s_lshl_b32 s{T}, s{S_HEAD}, 2")
    A(f"s_add_u32 s{S_RFLAG}, s{S_RFLAG}, s{T}")
    A(f"s_add_u32 s{S_RFLAG}, s{S_RFLAG}, {F_ROW}")
    A(f"s_mov_b32 s{S_RMASK}, 1")
    A(f"s_mov_b32 s{S_HUGE}, {HUGE}")
    A(f"s_mov_b32 s{S_FLOOR}, {NEG_INF:#x}")
    A(f"s_mov_b32 s{S_FIRST}, 1")
    for r in range(16):
        A(f"v_mov_b32 v{VC+r}, 0")
    for r in (V_CB, V_CB + 1, V_L, V_L + 1, V_LT, V_LT + 1):
        A(f"v_mov_b32 v{r}, 0")
    A(f"v_mov_b32 v{V_RB0}, v{V_LANE16}")
    A(f"v_add_u32 v{V_RB1}, 0x10000, v{V_LANE16}")
    A(f"s_mov_b32 s{S_T2}, 0")
    A.emit_list(c_update(A, S_T2))


def b_main(A, cfg):
    T = S_TMP
    A("s_waitcnt vmcnt(12) lgkmcnt(0)")
    A("s_barrier")
    if not cfg.get("stamp_lp"):
        stamp(A, cfg, 3)
    for i in range(16):
        A(f"ds_read_b128 {ar(AQ+i*4,4)}, v{V_XQR if i < 8 else V_XQW} offset:{(i%8)*1024}")
    A.emit_list(k_reads(V_RB0, 0))
    zero = [Op(f"v_mov_b32 v{VO+r}, 0", "V") for r in range(128)]
    for z in zero[:24]:
        A(z.text)
    A("s_waitcnt lgkmcnt(0)")
    out, left = schedule(qk_mfmas(0), "DF" * 16, v_reads(V_RB0, 16384), [], zero[24:72], {})
    A.emit_list(out)
    A.emit_list(k_reads(V_RB0, 32768))
    A(f"s_mov_b32 s{S_T2}, 1")
    A.emit_list(c_update(A, S_T2))
    A("s_waitcnt vmcnt(0) lgkmcnt(0)")
    A("s_barrier")
    A(f"s_lshl_b32 s{T+4}, s{S_HEAD}, 6")
    A(f"s_lshl_b32 s{T+5}, s{S_QB}, 2")
    A(f"s_add_u32 s{T+4}, s{T+4}, s{T+5}")
    A(f"s_add_u32 s{T+4}, s{T+4}, {F_AQ}")
    signal(A, T + 4)
    signal(A, S_GHEAD, grp=1)
    ch = kv_tile_chain("K", 3) + kv_tile_chain("V", 3)
    ch += [Op(f"s_cmp_lt_u32 s{S_KOFF}, s{S_KLIM}", "S"), Op(f"s_cselect_b32 s{T}, s{S_KOFF}, s{S_HUGE}", "S"),
           Op(f"s_mov_b32 m0, s{S_B0}", "S"), Op(f"s_add_u32 s{S_KOFF}, s{S_KOFF}, 16384", "S")]
    ch += [kv_dma(T, i) for i in range(4)]
    out, left = schedule(qk_mfmas(1), "FM" * 16, [], ch, zero[72:], {}, strict=False)
    A.emit_list(out)
    emit_left(A, left)
    A(f"v_lshlrev_b32 v{V_SIG+1}, 7, v0")
    A(f"buffer_load_dword v{V_SIG}, v{V_SIG+1}, {sr(SRD_B,4)}, s{S_TBOFF} offen")
    A(f"s_call_b64 {sr(S_RET,2)}, LB_RARE0")
    A(f"s_mov_b32 s{S_T2}, 2")
    A(f"s_lshr_b32 s{S_ITEM}, s{S_N}, 1")
    A(f"s_sub_u32 s{S_ITEM}, s{S_ITEM}, 2")
    A(f"s_cmp_ge_u32 s{S_QB}, 8")
    A(f"s_cselect_b32 s{S_LEFT}, 10, s{S_ITEM}")
    A(f"s_cselect_b32 s{S_EV}, 0, 2")
    stamp(A, cfg, 4)
    A(f"s_cmp_eq_u32 s{S_LEFT}, 0")
    A("s_cbranch_scc1 LB_DONE")
    A.label("LB_LOOP")
    b_iter(A, 0, cfg)
    b_iter(A, 1, cfg)
    if cfg.get("bdiag"):
        A("s_memtime s[100:101]")
        A("s_memrealtime s[98:99]")
        A(f"s_lshr_b32 m0, s{S_T2}, 1")
        A("s_waitcnt lgkmcnt(0)")
        A("v_writelane_b32 v28, s100, m0")
        A("v_writelane_b32 v29, s98, m0")
    A(f"s_cmp_lg_u32 s{S_LEFT}, 0")
    A("s_cbranch_scc1 LB_LOOP")
    A(f"s_cmp_eq_u32 s{S_EV}, 2")
    A("s_cbranch_scc1 LB_DONE")
    A(f"s_cmp_eq_u32 s{S_EV}, 1")
    A("s_cbranch_scc1 LB_EV1")
    A(f"s_mov_b32 s{S_EV}, 1")
    A(f"s_mov_b32 s{S_LEFT}, 2")
    poll_issue(A, S_HEAD, F_KV + 4096, 8)
    A("s_branch LB_LOOP")
    A.label("LB_EV1")
    A(f"s_mov_b32 s{S_EV}, 2")
    A(f"s_sub_u32 s{S_LEFT}, s{S_ITEM}, 12")
    poll_test(A)
    A("s_cbranch_scc1 LB_LOOP")
    poll_wait(A, True)
    A("s_branch LB_LOOP")
    A.label("LB_DONE")
    b_iter(A, 0, cfg, "t4")
    A(f"s_and_b32 s{T+1}, s2, 3")
    pi = Asm()
    poll_issue(pi, T + 1, F_AQ, 64)
    pil = [l.strip() for l in pi.lines]
    for l in pil[:-1]:
        A(l)
    b_iter(A, 1, cfg, "t3", last=[Op(pil[-1], "M")] + wo_chain(0, WO_SLOT[0]))
    b_iter(A, 0, cfg, "t2")
    last = []
    for c in range(1, 5):
        last += wo_chain(c, WO_SLOT[c])
    b_iter(A, 1, cfg, "t1", last=last)
    if cfg.get("bdiag"):
        A(f"s_lshl_b32 s{T}, s2, 2")
        A(f"s_add_u32 s{T}, s{T}, s{S_WAVE}")
        A(f"s_lshl_b32 s{T}, s{T}, 9")
        A(f"s_add_u32 s{T}, s{T}, {232 << 20}")
        A(f"v_lshrrev_b32 v27, 2, v{V_LANE16}")
        A(f"buffer_store_dword v28, v27, {sr(SRD_WS,4)}, s{T} offen")
        A(f"buffer_store_dword v29, v27, {sr(SRD_WS,4)}, s{T} offen offset:256")
    stamp(A, cfg, 5)
    b_epilogue(A, cfg)


AS = [64, 96]
AC = 128
AO = 160
AP = [192, 208]
AE = 224
QA_, KA_, VA_ = 0, 16, 48
XB = 114688
V_XW = 2
V_OR = 14


def a_qk(buf, slot):
    out = []
    for qb in range(2):
        d = vr(AS[buf] + qb * 16, 16)
        out.append(f"v_mfma_f32_32x32x16_bf16 {d}, {ar(KA_+slot*8,4)}, {ar(QA_+qb*8,4)}, {vr(AC+qb*16,16)}")
    for qb in range(2):
        d = vr(AS[buf] + qb * 16, 16)
        out.append(f"v_mfma_f32_32x32x16_bf16 {d}, {ar(KA_+slot*8+4,4)}, {ar(QA_+qb*8+4,4)}, {d}")
    return out


def a_pv(pbuf, slot):
    out = []
    for g in range(2):
        for qb in range(2):
            d = vr(AO + qb * 16, 16)
            out.append(f"v_mfma_f32_32x32x16_bf16 {d}, {ar(VA_+slot*8+g*4,4)}, {vr(AP[pbuf]+qb*8+g*4,4)}, {d}")
    return out


A_DELAY = 3


def a_softmax(buf):
    s, p = AS[buf], AP[buf]
    out = []
    pend = []
    for k in range(16):
        pend.append((2 * k + 1 + A_DELAY, f"v_cvt_pk_bf16_f32 v{p+k}, v{AE+((2*k)%16)}, v{AE+((2*k+1)%16)}"))
        if k == 2:
            pend.append((2 * k + 2 + A_DELAY, f"v_or_b32 v{V_OR}, v{p}, v{p+1}"))
        elif k > 2 and k % 2 == 0:
            pend.append((2 * k + 2 + A_DELAY, f"v_or3_b32 v{V_OR}, v{V_OR}, v{p+k-2}, v{p+k-1}"))
    for i in range(32):
        out.append(f"v_exp_f32 v{AE+(i%16)}, v{s+i}")
        if pend and pend[0][0] <= i:
            out.append(pend.pop(0)[1])
    out.extend(t for _, t in pend)
    out.append(f"v_or3_b32 v{V_OR}, v{V_OR}, v{p+14}, v{p+15}")
    out.append(f"v_and_b32 v{V_OR}, s{S_MASK}, v{V_OR}")
    out.append(f"v_cmp_ne_u32 vcc, 0, v{V_OR}")
    return out


def a_loads(kslot, vslot):
    k = [f"buffer_load_dwordx4 {ar(KA_+kslot*8+4*s,4)}, v{V_LANE16}, {sr(SRD_WS,4)}, s{S_KOFF} offen offset:{s*1024} sc1" for s in range(2)]
    k += [f"s_add_u32 s{S_KOFF}, s{S_KOFF}, 2048", f"s_min_u32 s{S_KOFF}, s{S_KOFF}, s{S_KLIM}"]
    v = [f"buffer_load_dwordx4 {ar(VA_+vslot*8+4*s,4)}, v{V_LANE16}, {sr(SRD_WS,4)}, s{S_VOFF} offen offset:{s*1024} sc1" for s in range(2)]
    v += [f"s_add_u32 s{S_VOFF}, s{S_VOFF}, 2048", f"s_min_u32 s{S_VOFF}, s{S_VOFF}, s{S_VLIM}"]
    return k, v


def a_iter(A, u, cfg):
    par = u % 2
    A("s_waitcnt vmcnt(12)")
    sm = a_softmax(par)
    mq, mp = a_qk(1 - par, (u + 1) % 4), a_pv(1 - par, (u - 1) % 4)
    lk, lv = a_loads((u + 1) % 4, (u - 1) % 4)
    n = len(sm)
    ms = mq + mp
    pos = spread(8, -1, n - 8)
    riders = {3: [lk[0]], 4: [lk[1]], 5: [lk[2]], 6: [lk[3]], 7: [lv[0]]}
    sides = []
    for i, (p, m) in enumerate(zip(pos, ms)):
        sides.append((p, [m] + riders.get(i, [])))
    sides.append((n - 4, [lv[1]]))
    sides.append((n - 2, [lv[2]]))
    sides.append((n - 1, [lv[3]]))
    body = interleave(sm, sides)
    if cfg.get("a_noload"):
        body = [b for b in body if not b.startswith("buffer_load")]
    if cfg.get("a_nosc1"):
        body = [b.replace(" sc1", "") for b in body]
    if cfg.get("a_nomfma"):
        body = [b for b in body if not b.startswith("v_mfma")]
    A.emit_list(body)
    A(rare_check(A, par, "LA_RARE"))


def a_softmax_fast(buf):
    s, p = AS[buf], AP[buf]
    out = []
    pend = [(2 * k + 1 + A_DELAY, f"v_cvt_pk_bf16_f32 v{p+k}, v{AE+((2*k)%16)}, v{AE+((2*k+1)%16)}") for k in range(16)]
    for i in range(32):
        out.append(f"v_exp_f32_e64 v{AE+(i%16)}, v{s+i} clamp")
        if pend and pend[0][0] <= i:
            out.append(pend.pop(0)[1])
    out.extend(t for _, t in pend)
    return out


def a_iter_fast(A, u, cfg):
    par = u % 2
    sm = a_softmax_fast(par)
    mq, mp = a_qk(1 - par, (u + 1) % 4), a_pv(1 - par, (u - 1) % 4)
    lk, lv = a_loads((u + 1) % 4, (u - 1) % 4)
    n = len(sm)
    ms = mp + mq
    pos = spread(8, 0, n - 9)
    riders = {0: lk[2], 1: lk[3], 2: lv[0], 3: lv[1], 4: lv[2], 5: lv[3], 6: lk[0], 7: lk[1]}
    sides = [(pos[0], ["s_waitcnt vmcnt(12)"])]
    for i, (p, m) in enumerate(zip(pos, ms)):
        sides.append((p, [m, riders[i]]))
    A.emit_list(interleave(sm, sides))


def a_rare(A, sb):
    A.label(f"LA_RARE{sb}")
    A("s_nop 7")
    A("s_nop 7")
    so = 1 - sb
    for qb in range(2):
        d, f, t = V_T + qb, V_T + 2 + qb, V_T + 4
        s = AS[sb] + qb * 16
        A(f"v_max3_f32 v{d}, v{s}, v{s+1}, v{s+2}")
        for i in range(3, 15, 2):
            A(f"v_max3_f32 v{d}, v{d}, v{s+i}, v{s+i+1}")
        A(f"v_max_f32 v{d}, v{d}, v{s+15}")
        A(f"v_mov_b32 v{t}, v{d}")
        A("s_nop 1")
        A(f"v_permlane32_swap_b32 v{t}, v{d}")
        A("s_nop 1")
        A(f"v_max_f32 v{d}, v{d}, v{t}")
        A(f"v_add_f32 v{d}, {f32bits(BIAS):#x}, v{d}")
        A(f"v_max_f32 v{d}, s{S_FLOOR}, v{d}")
        A(f"v_max_f32 v{f}, 0, v{d}")
        A(f"v_exp_f32 v{f}, -v{f}")
        for r in range(16):
            A(f"v_sub_f32 v{s+r}, v{s+r}, v{d}")
            A(f"v_sub_f32 v{AS[so]+qb*16+r}, v{AS[so]+qb*16+r}, v{d}")
            A(f"v_sub_f32 v{AC+qb*16+r}, v{AC+qb*16+r}, v{d}")
            A(f"v_mul_f32 v{AO+qb*16+r}, v{AO+qb*16+r}, v{f}")
    A(f"s_mov_b32 s{S_FLOOR}, 0")
    lskip = A.newlabel("LAS")
    A(f"s_cmp_eq_u32 s{S_FIRST}, 1")
    A(f"s_mov_b32 s{S_FIRST}, 0")
    A(f"s_cbranch_scc1 {lskip}")
    for o in a_softmax(sb):
        A(o)
    A.label(lskip)
    A("s_nop 1")
    A(f"s_setpc_b64 {sr(S_RET,2)}")


def a_counts(cfg):
    nf, nh = cfg.get("nf", 10), cfg.get("nh", 4)
    nq = 16 - nf - nh
    return nf, nh, nq, nf + 2 * nh + 4 * nq


def a_item(A, cfg):
    T = S_TMP
    stamp(A, cfg, 0)
    A(f"s_and_b32 s{T+1}, s2, 3")
    lq = A.newlabel("LAQ")
    A(f"s_cmp_eq_u32 s{S_AQOK}, 1")
    A(f"s_cbranch_scc1 {lq}")
    poll_issue(A, T + 1, F_AQ, 64)
    poll_wait(A)
    A(f"s_mov_b32 s{S_AQOK}, 1")
    A.label(lq)
    NF, NH, NQ, NA = a_counts(cfg)
    SP = S_N
    A(f"s_cmp_ge_u32 s{S_ITEM}, {NF}")
    A(f"s_cselect_b32 s{SP}, 1, 0")
    A(f"s_cselect_b32 s{T+2}, {NF}, 0")
    A(f"s_cselect_b32 s{T+3}, {NF}, 0")
    A(f"s_cmp_ge_u32 s{S_ITEM}, {NF + 2*NH}")
    A(f"s_cselect_b32 s{SP}, 2, s{SP}")
    A(f"s_cselect_b32 s{T+2}, {NF + 2*NH}, s{T+2}")
    A(f"s_cselect_b32 s{T+3}, {NF + NH}, s{T+3}")
    A(f"s_sub_u32 s{T+2}, s{S_ITEM}, s{T+2}")
    A(f"s_lshl_b32 s{T+5}, 1, s{SP}")
    A(f"s_sub_u32 s{T+5}, s{T+5}, 1")
    A(f"s_and_b32 s{T+6}, s{T+2}, s{T+5}")
    A(f"s_lshr_b32 s{T+2}, s{T+2}, s{SP}")
    A(f"s_add_u32 s{T+2}, s{T+2}, s{T+3}")
    A(f"s_sub_u32 s{T+4}, 2, s{SP}")
    A(f"s_lshl_b32 s{T+3}, s{T+6}, s{T+4}")
    A(f"s_lshr_b32 s{T+4}, s{S_WAVE}, s{SP}")
    A(f"s_add_u32 s{T+3}, s{T+3}, s{T+4}")
    A(f"s_and_b32 s{T+4}, s{S_WAVE}, s{T+5}")
    A(f"s_sub_u32 s{T+5}, 17, s{SP}")
    A(f"s_lshl_b32 s{T+4}, s{T+4}, s{T+5}")
    A(f"s_lshr_b32 s{S_LEFT}, 16, s{SP}")
    A(f"s_lshr_b32 s{T+5}, {64*2048}, s{SP}")
    A(f"s_sub_u32 s{T+5}, s{T+5}, 2048")
    A(f"s_cmp_ge_u32 s{SP}, 1")
    A(f"s_cselect_b32 s{S_KAP}, 1.0, 0")
    A(f"s_cselect_b32 s{S_EV}, 1024, 0")
    A(f"s_cselect_b32 s{S_RMASK}, 5, 15")
    A(f"s_cmp_ge_u32 s{SP}, 2")
    A(f"s_cselect_b32 s{S_T2}, 1.0, 0")
    A(f"s_cselect_b32 s{S_TW}, 2048, 0")
    A(f"s_cselect_b32 s{S_RMASK}, 1, s{S_RMASK}")
    A(f"s_bfe_u32 s{T}, s2, 0x10002")
    A(f"s_lshl_b32 s{T}, s{T}, 4")
    A(f"s_add_u32 s{T+2}, s{T+2}, s{T}")
    A(f"s_lshl_b32 s{T}, s{T+1}, 2")
    A(f"s_add_u32 s{T+3}, s{T+3}, s{T}")
    A(f"s_mul_i32 s{S_WOOFF}, s{T+3}, {28*896}")
    A(f"s_lshl_b32 s{T+3}, s{T+3}, 17")
    A(f"s_add_u32 s{S_KOFF}, s{T+3}, s{T+4}")
    A(f"s_add_u32 s{S_VOFF}, s{S_KOFF}, {WS_VA}")
    A(f"s_add_u32 s{S_KOFF}, s{S_KOFF}, {WS_KA}")
    A(f"s_add_u32 s{S_KLIM}, s{S_KOFF}, s{T+5}")
    A(f"s_add_u32 s{S_VLIM}, s{S_VOFF}, s{T+5}")
    A(f"s_lshl_b32 s{T+4}, s{T+2}, 12")
    A(f"s_add_u32 s{T+4}, s{T+4}, s{T+3}")
    A(f"s_add_u32 s{T+4}, s{T+4}, {WS_QA}")
    for i in range(4):
        A(f"buffer_load_dwordx4 {ar(QA_+4*i,4)}, v{V_LANE16}, {sr(SRD_WS,4)}, s{T+4} offen offset:{i*1024} sc1")
    lk, _ = a_loads(0, 0)
    A.emit_list(lk)
    for t in (-4, -3, -2):
        lk, lv = a_loads((t + 5) % 4, (t + 3) % 4)
        A.emit_list(lk)
        if t + 3 >= 0:
            A.emit_list(lv)
    set_srd(A, SRD_B, P_WOA, 448 * 448 * 2)
    A(f"s_lshr_b32 s{S_RFLAG}, s{T+2}, 1")
    A(f"s_lshl_b32 s{S_RFLAG}, s{S_RFLAG}, 8")
    A(f"s_and_b32 s{T+3}, s{T+2}, 1")
    A(f"s_lshl_b32 s{T+3}, s{T+3}, 2")
    A(f"s_add_u32 s{T+3}, s{T+3}, s{T+1}")
    A(f"s_lshl_b32 s{T}, s{T+6}, 3")
    A(f"s_add_u32 s{T+3}, s{T+3}, s{T}")
    A(f"s_lshl_b32 s{T+3}, s{T+3}, 2")
    A(f"s_add_u32 s{S_RFLAG}, s{S_RFLAG}, s{T+3}")
    A(f"s_add_u32 s{S_RFLAG}, s{S_RFLAG}, {F_ROW + 64}")
    A(f"s_lshl_b32 s{T}, s{T+6}, 2")
    A(f"s_add_u32 s{T}, s{T}, 16")
    A(f"s_cmp_eq_u32 s{T+6}, 0")
    A(f"s_cselect_b32 s{T}, 0, s{T}")
    A(f"s_add_u32 s{T}, s{T}, s{T+1}")
    A(f"s_mul_i32 s{S_POFF}, s{T}, {P_SLOT}")
    A(f"s_lshl_b32 s{T+3}, s{T+2}, 2")
    A(f"s_add_u32 s{T+3}, s{T+3}, s{S_WAVE}")
    A(f"s_mul_i32 s{T+3}, s{T+3}, {14*1024}")
    A(f"s_add_u32 s{S_POFF}, s{S_POFF}, s{T+3}")
    A(f"s_add_u32 s{S_POFF}, s{S_POFF}, {WS_P}")
    A(f"s_mul_i32 s{S_WOW}, s{S_WAVE}, {32*896}")
    A(f"s_mov_b32 s{S_MASK}, 0x40004000")
    A(f"s_mov_b32 s{S_FLOOR}, {NEG_INF:#x}")
    A(f"s_mov_b32 s{S_FIRST}, 1")
    for r in range(32):
        A(f"v_mov_b32 v{AC+r}, 0")
        A(f"v_mov_b32 v{AO+r}, 0")
        A(f"v_mov_b32 v{AS[1]+r}, 0")
    for r in range(16):
        A(f"v_mov_b32 v{AP[1]+r}, 0")
    for r in range(8):
        A(f"v_accvgpr_write_b32 a{VA_+3*8+r}, 0")
    A(f"v_bfe_u32 v{V_T}, v0, 3, 1")
    A(f"v_lshlrev_b32 v{V_T}, 10, v{V_T}")
    A(f"v_lshrrev_b32 v{V_T+1}, 5, v0")
    A(f"v_lshl_add_u32 v{V_T}, v{V_T+1}, 8, v{V_T}")
    A(f"v_bfe_u32 v{V_T+1}, v0, 4, 1")
    A(f"v_lshl_add_u32 v{V_T}, v{V_T+1}, 7, v{V_T}")
    A(f"v_and_b32 v{V_T+1}, 7, v0")
    A(f"v_lshl_add_u32 v{V_T}, v{V_T+1}, 4, v{V_T}")
    A(f"s_lshl_b32 s{T+5}, s{S_WAVE}, 12")
    A(f"s_add_u32 s{T+5}, s{T+5}, {XB}")
    A(f"v_add_u32 v{V_XW}, s{T+5}, v{V_T}")
    A(f"v_bfe_u32 v{V_T}, v0, 2, 3")
    A(f"v_bfe_u32 v{V_T+2}, v{V_T}, 1, 2")
    A(f"v_lshrrev_b32 v{V_T+1}, 5, v0")
    A(f"v_lshl_add_u32 v{V_T}, v{V_T+1}, 4, v{V_T}")
    A(f"v_mul_u32_u24 v{V_T}, 896, v{V_T}")
    A(f"v_and_b32 v{V_T+1}, 3, v0")
    A(f"v_lshl_add_u32 v{V_T}, v{V_T+1}, 3, v{V_T}")
    for b in range(4):
        A(f"v_xor_b32 v{V_T+1}, {b}, v{V_T+2}")
        A(f"v_lshl_add_u32 v{V_WOR+b}, v{V_T+1}, 5, v{V_T}")
    A("s_waitcnt vmcnt(10)")
    A("s_barrier")
    signal(A, S_PFLAG, mask_sgpr=S_PMASK)
    stamp(A, cfg, 1)
    A.emit_list(a_qk(0, 0))
    lk, lv = a_loads(0, 2)
    A.emit_list(lv)
    A.emit_list(lk[:2])
    A(f"s_mov_b32 m0, s{S_WOW}")
    A(f"s_add_u32 s{S_WOW}, s{S_WOW}, {8*896}")
    for i in range(7):
        if i == 4:
            A("s_add_u32 m0, m0, 4096")
            A("s_nop 0")
        A(f"buffer_load_dwordx4 v{V_WOD+i}, {sr(SRD_B,4)}, s{S_WOOFF} offen offset:{(i%4)*1024} lds")
    A(f"s_add_u32 s{S_WOOFF}, s{S_WOOFF}, {8*896}")
    A(f"s_call_b64 {sr(S_RET,2)}, LA_RARE0")
    stamp(A, cfg, 2)
    A.label("LA_FLOOP")
    for u in range(4):
        a_iter_fast(A, u, cfg)
    A(f"s_sub_u32 s{S_LEFT}, s{S_LEFT}, 1")
    A(f"s_cmp_gt_u32 s{S_LEFT}, 3")
    A("s_cbranch_scc1 LA_FLOOP")
    A(f"s_cmp_eq_u32 s{S_LEFT}, 0")
    A("s_cbranch_scc1 LA_FFIN")
    A(f"s_mov_b32 m0, s{S_WOW}")
    A(f"s_add_u32 s{S_WOW}, s{S_WOW}, {8*896}")
    for i in range(7):
        if i == 4:
            A("s_add_u32 m0, m0, 4096")
            A("s_nop 0")
        A(f"buffer_load_dwordx4 v{V_WOD+i}, {sr(SRD_B,4)}, s{S_WOOFF} offen offset:{(i%4)*1024} lds")
    A(f"s_add_u32 s{S_WOOFF}, s{S_WOOFF}, {8*896}")
    A("s_branch LA_FLOOP")
    A.label("LA_FFIN")
    A("s_waitcnt vmcnt(12)")
    A.emit_list(a_pv(1, 3))
    A("s_nop 7")
    A("s_nop 7")
    A(f"v_max_f32 v{V_T}, v{AO+12}, v{AO+28}")
    A(f"v_cmp_ngt_f32 vcc, 0.5, v{V_T}")
    A("s_nop 3")
    A("s_cmp_lg_u32 vcc_hi, 0")
    A("s_cbranch_scc1 LA_REDO")
    A.label("LA_EPI")
    stamp(A, cfg, 3)
    A(f"v_cmp_gt_u32 vcc, 32, v0")
    A("s_nop 7")
    A("s_nop 7")
    X = 24
    for qb in range(2):
        o = AO + qb * 16
        A(f"v_mov_b32 v{V_T}, v{o+12}")
        A(f"v_mov_b32 v{X+2*qb+1}, v{o+12}")
        A(f"v_mov_b32 v{X+2*qb}, v{AC+qb*16}")
        A("s_nop 0")
        A(f"v_permlane32_swap_b32 v{V_T}, v{X+2*qb+1}")
    A(f"s_lshl_b32 s{T+5}, s{S_WAVE}, 10")
    A(f"s_add_u32 s{T+5}, s{T+5}, {XB+16384}")
    A(f"v_add_u32 v{V_T}, s{T+5}, v{V_LANE16}")
    A(f"ds_write_b128 v{V_T}, {vr(X,4)}")
    A(f"v_xor_b32 v{V_T+1}, s{S_EV}, v{V_T}")
    A(f"v_xor_b32 v{V_T+2}, s{S_TW}, v{V_T}")
    A(f"v_xor_b32 v{V_T+3}, s{S_TW}, v{V_T+1}")
    A("s_waitcnt lgkmcnt(0)")
    A("s_barrier")
    PR = [100, 104, 108]
    for i in range(3):
        A(f"ds_read_b128 {vr(PR[i],4)}, v{V_T+1+i}")
    A("s_waitcnt lgkmcnt(0)")
    for qb in range(2):
        o = AO + qb * 16
        c1, l1 = X + 2 * qb, X + 2 * qb + 1
        a, b, inv, invh = V_T, V_T + 1, V_T + 2, V_T + 3
        A(f"v_min_f32 v{a}, v{c1}, v{PR[0]+2*qb}")
        A(f"v_min3_f32 v{a}, v{a}, v{PR[1]+2*qb}, v{PR[2]+2*qb}")
        for i in range(3):
            A(f"v_sub_f32 v{PR[i]+2*qb}, v{a}, v{PR[i]+2*qb}")
            A(f"v_exp_f32 v{PR[i]+2*qb}, v{PR[i]+2*qb}")
            A(f"v_mul_f32 v{PR[i]+2*qb+1}, s{S_KAP if i == 0 else S_T2}, v{PR[i]+2*qb+1}")
        A(f"v_sub_f32 v{a}, v{a}, v{c1}")
        A(f"v_exp_f32 v{a}, v{a}")
        A("s_nop 0")
        A(f"v_mul_f32 v{l1}, v{l1}, v{a}")
        for i in range(3):
            A(f"v_fma_f32 v{l1}, v{PR[i]+2*qb}, v{PR[i]+2*qb+1}, v{l1}")
        A(f"v_rcp_f32 v{inv}, v{l1}")
        A("s_nop 0")
        A(f"v_mul_f32 v{inv}, v{inv}, v{a}")
        A(f"v_cndmask_b32 v{invh}, 0, v{inv}, vcc")
        for r in range(16):
            A(f"v_mul_f32 v{o+r}, v{o+r}, v{inv if r < 12 else invh}")
        for g in range(2):
            c = AS[0] + (qb * 2 + g) * 4
            for i in range(4):
                A(f"v_cvt_pk_bf16_f32 v{c+i}, v{o+8*g+2*i}, v{o+8*g+2*i+1}")
            A(f"ds_write_b128 v{V_XW}, {vr(c,4)} offset:{qb*2048+g*512}")
    A("s_waitcnt vmcnt(0) lgkmcnt(0)")
    A("s_barrier")
    A(f"s_lshl_b32 s{T+5}, s{S_WAVE}, 10")
    A(f"s_add_u32 s{T+5}, s{T+5}, {XB}")
    A(f"v_add_u32 v{V_T}, s{T+5}, v{V_LANE16}")
    VB = 96
    for w in range(4):
        A(f"ds_read_b128 {vr(VB+4*w,4)}, v{V_T} offset:{w*4096}")

    def reads(w, half, fset):
        out = []
        for i in range(14):
            b = 14 * half + i
            f = VF + (fset * 14 + i) * 4
            for e in range(2):
                out.append(f"ds_read_b64_tr_b16 {vr(f+2*e,2)}, v{V_WOR+(b&3)} offset:{(b>>2)*128+e*8*896+(w&1)*32*896}")
        return out

    def mf(w, half, fset):
        out = []
        for i in range(14):
            b = 14 * half + i
            f = VF + (fset * 14 + i) * 4
            c = "0" if w == 0 else ar(b * 4, 4)
            out.append(f"v_mfma_f32_16x16x32_bf16 {ar(b*4,4)}, {vr(f,4)}, {vr(VB+4*w,4)}, {c}")
        return out

    seq = [(w, h) for w in range(4) for h in range(2)]
    A.emit_list(reads(0, 0, 0))
    for k, (w, h) in enumerate(seq):
        if k + 1 < len(seq):
            w2, h2 = seq[k + 1]
            if (w2, h2) == (2, 0):
                for b in range(4):
                    A(f"v_add_u32 v{V_WOR+b}, {2*32*896}, v{V_WOR+b}")
            rd = reads(w2, h2, (k + 1) % 2)
            A.emit_list(rd[:14])
            A("s_waitcnt lgkmcnt(14)")
            A.emit_list(interleave(mf(w, h, k % 2), [(i, [r]) for i, r in enumerate(rd[14:])]))
        else:
            A("s_waitcnt lgkmcnt(0)")
            A.emit_list(mf(w, h, k % 2))
    store_partials(A, 1, cfg)


def a_redo(A, cfg):
    T = S_TMP
    A.label("LA_REDO")
    A("s_waitcnt vmcnt(0)")
    A(f"s_lshr_b32 s{S_LEFT}, 16, s{S_N}")
    A(f"s_lshr_b32 s{T+5}, {64*2048}, s{S_N}")
    A(f"s_sub_u32 s{T+5}, s{T+5}, 2048")
    A(f"s_sub_u32 s{S_KOFF}, s{S_KLIM}, s{T+5}")
    A(f"s_sub_u32 s{S_VOFF}, s{S_VLIM}, s{T+5}")
    lk, _ = a_loads(0, 0)
    A.emit_list(lk)
    for t in (-4, -3, -2):
        lk, lv = a_loads((t + 5) % 4, (t + 3) % 4)
        A.emit_list(lk)
        if t + 3 >= 0:
            A.emit_list(lv)
    A(f"s_mov_b32 s{S_FLOOR}, {NEG_INF:#x}")
    A(f"s_mov_b32 s{S_FIRST}, 1")
    for r in range(32):
        A(f"v_mov_b32 v{AC+r}, 0")
        A(f"v_mov_b32 v{AO+r}, 0")
        A(f"v_mov_b32 v{AS[1]+r}, 0")
    for r in range(16):
        A(f"v_mov_b32 v{AP[1]+r}, 0")
    for r in range(8):
        A(f"v_accvgpr_write_b32 a{VA_+3*8+r}, 0")
    A("s_waitcnt vmcnt(10)")
    A.emit_list(a_qk(0, 0))
    lk, lv = a_loads(0, 2)
    A.emit_list(lk)
    A.emit_list(lv)
    A(f"s_call_b64 {sr(S_RET,2)}, LA_RARE0")
    A.label("LA_LOOP")
    for u in range(4):
        a_iter(A, u, cfg)
    A(f"s_sub_u32 s{S_LEFT}, s{S_LEFT}, 1")
    A(f"s_cmp_lg_u32 s{S_LEFT}, 0")
    A("s_cbranch_scc1 LA_LOOP")
    A("s_waitcnt vmcnt(12)")
    A.emit_list(a_pv(1, 3))
    A("s_branch LA_EPI")


def r_block(A, ev, R, blk, tmp, cfg):
    RC = cfg.get("rc", 1)
    A(f"s_lshl_b32 s{R}, s{ev}, 3")
    A(f"s_and_b32 s{blk}, s2, 7")
    A(f"s_add_u32 s{R}, s{R}, s{blk}")
    A(f"s_mul_i32 s{blk}, s{R}, {2341*RC}")
    A(f"s_lshr_b32 s{blk}, s{blk}, 16")
    A(f"s_lshr_b32 s{tmp}, s{blk}, 1")
    A(f"s_and_b32 s{blk}, s{blk}, 1")
    A(f"s_lshl_b32 s{blk}, s{blk}, 3")
    A(f"s_add_u32 s{blk}, s{blk}, s{tmp}")


def r_item(A, cfg):
    T = S_TMP
    NF, NH, NQ, NA = a_counts(cfg)
    stamp(A, cfg, 0)
    A(f"s_lshl_b32 s{T}, s{S_EV}, 3")
    A(f"s_and_b32 s{T+1}, s2, 7")
    A(f"s_add_u32 s{T}, s{T}, s{T+1}")
    RC = cfg.get("rc", 1)
    per = 28 // RC
    A(f"s_mul_i32 s{T+1}, s{T}, {2341*RC}")
    A(f"s_lshr_b32 s{T+1}, s{T+1}, 16")
    A(f"s_mul_i32 s{T+2}, s{T+1}, {per}")
    A(f"s_sub_u32 s{T+2}, s{T}, s{T+2}")
    A(f"s_lshr_b32 s{T+3}, s{T+1}, 1")
    A(f"s_and_b32 s{T+1}, s{T+1}, 1")
    A(f"s_lshl_b32 s{T+1}, s{T+1}, 3")
    A(f"s_add_u32 s{T+1}, s{T+1}, s{T+3}")
    lpre, lgo = A.newlabel("LRP"), A.newlabel("LRP")
    A(f"s_cmp_eq_u32 s{S_FIRST}, 1")
    A(f"s_cbranch_scc1 {lpre}")
    poll_issue(A, T + 1, F_ROW, 48)
    A(f"s_branch {lgo}")
    A.label(lpre)
    A(f"s_mov_b32 s{S_PADDR}, s{S_FLOOR}")
    A(f"v_mov_b32 v{V_POLL}, v{V_SIG}")
    A.label(lgo)
    A(f"s_mul_i32 s{T+3}, s{T+2}, 37")
    A(f"s_lshr_b32 s{T+3}, s{T+3}, 8")
    A(f"s_mul_i32 s{T+4}, s{T+3}, 7")
    A(f"s_sub_u32 s{T+2}, s{T+2}, s{T+4}")
    A(f"s_lshl_b32 s{T+2}, s{T+2}, 1")
    A(f"s_lshl_b32 s{T+1}, s{T+1}, 3")
    if RC == 1:
        A(f"s_and_b32 s{T+4}, s{S_WAVE}, 1")
        A(f"s_add_u32 s{T+2}, s{T+2}, s{T+4}")
        A(f"s_lshl_b32 s{T+3}, s{T+3}, 1")
        A(f"s_add_u32 s{T+1}, s{T+1}, s{T+3}")
        A(f"s_lshr_b32 s{T+3}, s{S_WAVE}, 1")
        A(f"s_add_u32 s{T+1}, s{T+1}, s{T+3}")
    else:
        A(f"s_lshl_b32 s{T+3}, s{T+3}, 2")
        A(f"s_add_u32 s{T+1}, s{T+1}, s{T+3}")
        A(f"s_add_u32 s{T+1}, s{T+1}, s{S_WAVE}")
    A(f"s_mul_i32 s{S_KOFF}, s{T+1}, {14*1024}")
    A(f"s_lshl_b32 s{T+3}, s{T+2}, 10")
    A(f"s_add_u32 s{S_KOFF}, s{S_KOFF}, s{T+3}")
    A(f"s_add_u32 s{S_KOFF}, s{S_KOFF}, {WS_P}")
    A(f"s_lshl_b32 s{S_VOFF}, s{T+1}, 6")
    A(f"s_add_u32 s{S_VOFF}, s{S_VOFF}, {WS_G}")
    A(f"s_mul_i32 s{S_KLIM}, s{T+1}, {16*896}")
    A(f"s_lshl_b32 s{T+3}, s{T+2}, 6")
    A(f"s_add_u32 s{S_KLIM}, s{S_KLIM}, s{T+3}")
    A(f"s_bfe_u32 s{T+3}, s{T+1}, 0x40002")
    set_srd(A, SRD_B, P_OUT, 2048 * 448 * 2)
    A(f"v_and_b32 v{V_T}, 15, v0")
    A(f"v_lshrrev_b32 v{V_T+1}, 4, v0")
    A(f"v_lshlrev_b32 v{V_T+2}, 2, v{V_T}")
    A(f"v_mul_u32_u24 v{V_T+3}, 896, v{V_T}")
    A(f"v_lshl_add_u32 v{V_T+3}, v{V_T+1}, 3, v{V_T+3}")
    A(f"s_mov_b32 s{S_SC}, 0x00003f80")
    A(f"s_mov_b32 s{S_SC+1}, 0x3f800000")
    PB = 96
    NS = 32 if NQ else (24 if NH else 20)
    DONE, NEW, MSK = S_N, S_B0 - 1, S_RET
    A(f"s_bfe_u32 s{T+4}, s{T+1}, 0x10002")
    A(f"s_lshl_b32 s{T+4}, s{T+4}, 2")
    A(f"s_mov_b64 {sr(DONE,2)}, 0")
    A(f"s_mov_b32 s{T+5}, 0x0f0f0f00")
    A(f"s_cmp_ge_u32 s{T+3}, {NF}")
    A(f"s_cselect_b32 s{T+5}, 0x0f0f0000, s{T+5}")
    A(f"s_cmp_ge_u32 s{T+3}, {NF + NH}")
    A(f"s_cselect_b32 s{DONE+1}, 0, s{T+5}")
    A(f"s_mov_b32 s{S_SPIN}, {SPIN_MAX}")
    lloop, lfin, laft = A.newlabel("LRL"), A.newlabel("LRF"), A.newlabel("LRA")
    A(f"s_cmp_eq_u32 s{S_FIRST}, 1")
    A(f"s_cbranch_scc1 {laft}")
    A.label(lloop)
    A("s_waitcnt vmcnt(0)")
    A.label(laft)
    A(f"v_cmp_eq_u32 vcc, 1, v{V_POLL}")
    A("s_nop 3")
    A(f"s_and_b32 s{MSK}, vcc_lo, 0xffff")
    A(f"s_lshr_b64 {sr(NEW,2)}, vcc, 16")
    A(f"s_lshr_b32 s{NEW}, s{NEW}, s{T+4}")
    A(f"s_and_b32 s{MSK+1}, s{NEW}, 0x0f0f0f0f")
    lskipld, ldo = A.newlabel("LRK"), A.newlabel("LRD")
    A(f"s_or_b64 {sr(NEW,2)}, {sr(DONE,2)}, {sr(MSK,2)}")
    A(f"s_cmp_eq_u32 s{NEW}, 0xffff")
    A(f"s_cselect_b32 s{T+5}, s{NEW+1}, 0")
    A(f"s_cmp_eq_u32 s{T+5}, 0x0f0f0f0f")
    A(f"s_cbranch_scc1 {ldo}")
    A(f"s_and_b32 s{T+5}, s{S_SPIN}, {cfg.get('r_every', 65535)}")
    A(f"s_cbranch_scc1 {lskipld}")
    A.label(ldo)
    A(f"s_andn2_b64 {sr(NEW,2)}, {sr(MSK,2)}, {sr(DONE,2)}")
    A(f"s_or_b64 {sr(DONE,2)}, {sr(DONE,2)}, {sr(MSK,2)}")
    for sl in range(NS):
        if 4 <= sl < 20:
            reg, bit = NEW, sl - 4
        else:
            hp = 0 if sl < 4 else (sl - 16) // 4
            reg, bit = NEW + 1, hp * 8 + (sl % 4)
        ln = A.newlabel("LRS")
        A(f"s_bitcmp1_b32 s{reg}, {bit}")
        A(f"s_cbranch_scc0 {ln}")
        A(f"s_add_u32 s{T+5}, s{S_KOFF}, {sl*P_SLOT}")
        A(f"buffer_load_dwordx4 {vr(PB+sl*4,4)}, v{V_LANE16}, {sr(SRD_WS,4)}, s{T+5} offen sc1")
        if RC == 2:
            A(f"buffer_load_dwordx4 {ar(sl*4,4)}, v{V_LANE16}, {sr(SRD_WS,4)}, s{T+5} offen offset:1024 sc1")
        A.label(ln)
    A(f"s_cmp_eq_u32 s{DONE}, 0xffff")
    A(f"s_cselect_b32 s{T+5}, s{DONE+1}, 0")
    A(f"s_cmp_eq_u32 s{T+5}, 0x0f0f0f0f")
    A(f"s_cbranch_scc1 {lfin}")
    A.label(lskipld)
    A(f"s_sub_u32 s{S_SPIN}, s{S_SPIN}, 1")
    A(f"s_cmp_eq_u32 s{S_SPIN}, 0")
    A(f"s_cbranch_scc1 {lfin}")
    A(f"s_sleep {cfg.get('r_sleep', 6)}")
    A(f"buffer_load_dword v{V_POLL}, v{V_POLL+1}, {sr(SRD_WS,4)}, s{S_PADDR} offen sc1")
    A(f"s_branch {lloop}")
    A.label(lfin)
    stamp(A, cfg, 1)
    A(f"buffer_load_dword v{V_T+4}, v{V_T+2}, {sr(SRD_WS,4)}, s{S_VOFF} offen sc1")
    if cfg.get("rdyn"):
        pop_issue(A)
    else:
        n3 = cfg.get("rn3", 16)
        A(f"s_cmp_lt_u32 s{S_EV}, {n3}")
        A(f"s_cselect_b32 s{T}, {n3}, {56 - 2*n3}")
        A(f"s_add_u32 s{S_LEFT}, s{S_EV}, s{T}")
        A(f"s_min_u32 s{T+4}, s{S_LEFT}, 55")
        r_block(A, T + 4, T, T + 1, T + 2, cfg)
        A(f"s_lshl_b32 s{S_FLOOR}, s{T+1}, 8")
        A(f"s_add_u32 s{S_FLOOR}, s{S_FLOOR}, {F_ROW}")
        A(f"buffer_load_dword v{V_SIG}, v{V_POLL+1}, {sr(SRD_WS,4)}, s{S_FLOOR} offen sc1")
        A(f"s_mov_b32 s{S_FIRST}, 1")
    A("s_waitcnt vmcnt(0)")
    g, g1, t = V_T + 4, V_T + 5, V_T + 6
    A(f"v_sub_f32 v{g1}, 1.0, v{g}")
    A(f"v_cvt_pk_bf16_f32 v{g1}, v{g1}, v{g1}")
    A(f"v_lshlrev_b32 v{g1}, 16, v{g1}")
    for c in range(RC):
        aa, ab = 64, 72
        lsum = A.newlabel("LRU")
        for sl in range(NS):
            first = sl in (0, 4)
            if sl in (20, 24):
                A(f"s_cmp_lt_u32 s{T+3}, {NF if sl == 20 else NF + NH}")
                A(f"s_cbranch_scc1 {lsum}")
            acc_ = ab if 4 <= sl < 20 else aa
            if c == 1:
                for i in range(4):
                    A(f"v_accvgpr_read_b32 v{PB+sl*4+i}, a{sl*4+i}")
            for i in range(4):
                r = PB + sl * 4 + i
                A(f"v_dot2_f32_bf16 v{acc_+2*i}, v{r}, s{S_SC}, {'0' if first else 'v%d' % (acc_+2*i)}")
                A(f"v_dot2_f32_bf16 v{acc_+2*i+1}, v{r}, s{S_SC+1}, {'0' if first else 'v%d' % (acc_+2*i+1)}")
        A.label(lsum)
        A("s_nop 3")
        o = 48 + 4 * c
        for i in range(4):
            for acc_, gg in ((aa, g), (ab, g1)):
                a = acc_ + 2 * i
                A(f"v_cvt_pk_bf16_f32 v{t}, v{a}, v{a+1}")
                A(f"v_lshlrev_b32 v{a}, 16, v{t}")
                A(f"v_and_b32 v{a+1}, 0xffff0000, v{t}")
                A(f"v_mul_f32 v{a}, v{gg}, v{a}")
                A(f"v_mul_f32 v{a+1}, v{gg}, v{a+1}")
                A(f"v_cvt_pk_bf16_f32 v{t}, v{a}, v{a+1}")
                A(f"v_lshlrev_b32 v{a}, 16, v{t}")
                A(f"v_and_b32 v{a+1}, 0xffff0000, v{t}")
            A(f"v_add_f32 v{aa+2*i}, v{aa+2*i}, v{ab+2*i}")
            A(f"v_add_f32 v{aa+2*i+1}, v{aa+2*i+1}, v{ab+2*i+1}")
            A(f"v_cvt_pk_bf16_f32 v{o+i}, v{aa+2*i}, v{aa+2*i+1}")
        A(f"buffer_store_dwordx2 {vr(o,2)}, v{V_T+3}, {sr(SRD_B,4)}, s{S_KLIM} offen offset:{c*64}")
        A(f"buffer_store_dwordx2 {vr(o+2,2)}, v{V_T+3}, {sr(SRD_B,4)}, s{S_KLIM} offen offset:{c*64+32}")


def launch_line(cfg=None):
    return f"; @launch kernel=mega_kernel grid=(256,1,1) block=(256,1,1) lds={LDS_TOTAL}"


def gen_mega(A, name="mega_kernel", cfg=None):
    cfg = cfg or {}
    global KVFL, A_DELAY
    A_DELAY = cfg.get("a_delay", 3)
    KVFL = cfg.get("kvfl", "sc1")
    T = S_TMP
    G = V_G
    A.raw(kernel_header(name))
    A(f"s_load_dwordx16 {sr(4,16)}, s[0:1], 0")
    A(f"s_load_dwordx8 {sr(20,8)}, s[0:1], 64")
    A(f"s_load_dwordx2 {sr(P_WS,2)}, s[0:1], 96")
    A(f"s_load_dwordx2 {sr(P_WOA,2)}, s[0:1], 16")
    if cfg.get("diag"):
        for i in range(14):
            A(f"s_mov_b32 s{S_STAMP+i}, 0")
    stamp(A, cfg, 0)
    A("s_cmp_ge_u32 s2, 256")
    A("s_cbranch_scc1 LM_END")
    if cfg.get("warm0", 1):
        lw0 = A.newlabel("LW0")
        A(f"s_cmp_ge_u32 s2, {8*cfg.get('warm0', 1)}")
        A(f"s_cbranch_scc1 {lw0}")
        A(f"s_getpc_b64 {sr(SRD_WS,2)}")
        A(f"s_mov_b32 s{SRD_WS+2}, LP_START-{name}")
        A(f"s_mov_b32 s{SRD_WS+3}, 0x20000")
        A(f"v_lshlrev_b32 v{G+8}, {cfg.get('warm_sh', 7)}, v0")
        A(f"s_lshr_b32 s{T}, s2, 3")
        A(f"s_lshl_b32 s{T}, s{T}, {8 + cfg.get('warm_sh', 7)}")
        A(f"buffer_load_dword v{G+9}, v{G+8}, {sr(SRD_WS,4)}, s{T} offen")
        A.label(lw0)
    A(f"v_lshrrev_b32 v{G}, 6, v0")
    A("v_and_b32 v0, 63, v0")
    A(f"v_readfirstlane_b32 s{S_WAVE}, v{G}")
    A(f"v_lshlrev_b32 v{V_LANE16}, 4, v0")
    A(f"s_and_b32 s{T}, s2, 7")
    A(f"s_bfe_u32 s{T+1}, s2, 0x10005")
    A(f"s_lshl_b32 s{T+1}, s{T+1}, 3")
    A(f"s_add_u32 s{T}, s{T}, s{T+1}")
    A(f"s_lshr_b32 s{T+1}, s2, 7")
    A(f"s_lshl_b32 s{T+1}, s{T+1}, 4")
    A(f"s_add_u32 s{T}, s{T}, s{T+1}")
    A(f"s_bfe_u32 s{S_GRP}, s2, 0x10006")
    A(f"s_bfe_u32 s{T+1}, s2, 0x20003")
    A(f"s_lshl_b32 s{T+2}, s{S_GRP}, 2")
    A(f"s_add_u32 s{T+1}, s{T+1}, s{T+2}")
    A(f"s_lshr_b32 s{T+2}, s{S_WAVE}, 1")
    A(f"s_and_b32 s{T+3}, s{S_WAVE}, 1")
    A(f"s_and_b32 s{S_GHEAD}, s{T}, 15")
    A(f"s_lshr_b32 s{S_TYPE}, s{T}, 4")
    A(f"s_lshl_b32 s{T+5}, s{T+2}, 4")
    A(f"s_add_u32 s{T+5}, s{T+5}, s{T+3}")
    A(f"s_lshl_b32 s{S_XWAVE}, s{T+5}, 10")
    A(f"s_add_u32 s{S_XWAVE}, s{S_XWAVE}, {LDS_X0}")
    A(f"s_mov_b32 s{S_XWR}, s{S_XWAVE}")
    A(f"s_lshl_b32 s{T+5}, s{T+5}, 3")
    A(f"s_lshl_b32 s{T+6}, s{T+1}, 8")
    A(f"s_add_u32 s{T+6}, s{T+6}, s{T+5}")
    A(f"s_lshl_b32 s{S_XOFF}, s{T+6}, 11")
    A(f"s_mov_b32 s{S_XSTA}, {16*2048}")
    A(f"s_mov_b32 s{S_XSTB}, {16*2048}")
    A(f"s_mov_b32 s{S_XWRAP}, {(128-112*2048) & 0xffffffff}")
    A(f"s_lshl_b32 s{T+7}, s{T+2}, 2")
    A(f"s_add_u32 s{T+7}, s{T+7}, s{T+3}")
    A(f"s_lshl_b32 s{S_WWR}, s{T+7}, 10")
    A(f"s_lshl_b32 s{S_WOFF}, s{T+7}, 14")
    A(f"s_lshl_b32 s{T+6}, s{S_GHEAD}, 9")
    A(f"s_add_u32 s{S_WOFF}, s{S_WOFF}, s{T+6}")
    A(f"v_lshrrev_b32 v{G}, 4, v0")
    A(f"s_lshl_b32 s{T+6}, s{T+3}, 2")
    A(f"v_add_u32 v{G+6}, s{T+6}, v{G}")
    A(f"v_and_b32 v{G+1}, 7, v0")
    A(f"v_xor_b32 v{G}, v{G+6}, v{G+1}")
    A(f"v_lshlrev_b32 v{G}, 4, v{G}")
    A(f"v_lshrrev_b32 v{G+1}, 3, v0")
    A(f"v_lshl_add_u32 v{V_DX}, v{G+1}, 11, v{G}")
    A(f"v_mul_u32_u24 v{G+2}, 896, v{G+1}")
    A(f"v_add_u32 v{V_DX2}, v{G+2}, v{G}")
    A(f"v_lshrrev_b32 v{G}, 5, v0")
    A(f"s_lshl_b32 s{T+6}, s{T+3}, 1")
    A(f"s_lshl_b32 s{T+5}, s{T+2}, 2")
    A(f"s_add_u32 s{T+6}, s{T+6}, s{T+5}")
    A(f"v_add_u32 v{G+1}, s{T+6}, v{G}")
    A(f"v_bfe_u32 v{G+2}, v0, 1, 4")
    A(f"v_xor_b32 v{G+2}, v{G+2}, v{G+1}")
    A(f"v_and_b32 v{G+3}, 1, v0")
    A(f"v_lshl_add_u32 v{G+2}, v{G+2}, 1, v{G+3}")
    A(f"v_lshlrev_b32 v{G+3}, 4, v{G+2}")
    A(f"v_lshl_add_u32 v{V_DW}, v{G}, 13, v{G+3}")
    A("s_waitcnt lgkmcnt(0)")
    set_srd(A, SRD_A, P_CKV, 2048 * 1024 * 2)
    A(f"s_cmp_eq_u32 s{S_TYPE}, 0")
    A(f"s_cselect_b32 s{SRD_B}, s{P_WUK}, s{P_WUV}")
    A(f"s_cselect_b32 s{SRD_B+1}, s{P_WUK+1}, s{P_WUV+1}")
    A(f"s_mov_b32 s{SRD_B+2}, {1024*4096*2}")
    A(f"s_mov_b32 s{SRD_B+3}, 0x20000")
    emit_chain(A, dma_x())
    emit_chain(A, dma_w())
    A(f"s_and_b32 s{S_HEAD}, s2, 15")
    A(f"s_lshr_b32 s{T}, s2, 4")
    A(f"s_sub_u32 s{S_QB}, 15, s{T}")
    A(f"s_lshl_b32 s{T+4}, s{S_QB}, 7")
    A(f"s_lshl_b32 s{T+5}, s{S_HEAD}, 3")
    A(f"s_add_u32 s{T+4}, s{T+4}, s{T+5}")
    A(f"s_lshl_b32 s{T+5}, s{S_WAVE}, 1")
    A(f"s_add_u32 s{S_PHASE}, s{T+4}, s{T+5}")
    A(f"s_mul_i32 s{T+4}, s{S_PHASE}, 896")
    A(f"v_and_b32 v{V_CV}, 31, v0")
    A(f"v_lshlrev_b32 v{V_CV+1}, 5, v{V_CV}")
    A(f"v_mov_b32 v{V_CV+3}, 0x40000000")
    A(f"v_cmp_gt_u32 vcc, 28, v{V_CV}")
    A(f"v_lshrrev_b32 v{V_CV+2}, 5, v0")
    A("s_nop 0")
    A(f"v_cndmask_b32 v{V_CV+1}, v{V_CV+3}, v{V_CV+1}, vcc")
    A(f"v_mul_u32_u24 v{V_CV+2}, 896, v{V_CV+2}")
    A(f"v_add_u32 v{V_CV+2}, v{V_CV+2}, v{V_CV+1}")
    set_srd(A, SRD_WS, P_X, 2048 * 448 * 2)
    set_srd(A, SRD_DBG, P_GATE, 448 * 2)
    A(f"buffer_load_dwordx4 {vr(192,4)}, v{V_CV+2}, {sr(SRD_WS,4)}, s{T+4} offen")
    A(f"buffer_load_dwordx4 {vr(196,4)}, v{V_CV+2}, {sr(SRD_WS,4)}, s{T+4} offen offset:16")
    A(f"buffer_load_dwordx4 {vr(200,4)}, v{V_CV+1}, {sr(SRD_DBG,4)}, 0 offen")
    A(f"buffer_load_dwordx4 {vr(204,4)}, v{V_CV+1}, {sr(SRD_DBG,4)}, 0 offen offset:16")
    emit_chain(A, dma_x())
    emit_chain(A, dma_w())
    set_srd(A, SRD_WS, P_WS, WS_SIZE)
    set_srd(A, SRD_DBG, P_DBG, 256)
    set_srd(A, SRD_E, P_WS, WS_SIZE)
    A(f"s_cmp_eq_u32 s{S_GRP}, 0")
    A(f"s_cselect_b32 s{SRD_E+2}, s{SRD_E+2}, 0")
    li = A.newlabel("LM")
    A(f"v_lshlrev_b32 v{V_SIG+1}, 2, v0")
    A(f"v_mov_b32 v{V_SIG}, 0")
    A(f"s_cmp_lg_u32 s{S_WAVE}, 0")
    A(f"s_cbranch_scc1 {li}")
    A(f"s_lshl_b32 s{T+6}, s2, 6")
    A(f"s_add_u32 s{T+6}, s{T+6}, {WS_F}")
    A("s_mov_b64 exec, 0xffff")
    A(f"buffer_store_dword v{V_SIG}, v{V_SIG+1}, {sr(SRD_WS,4)}, s{T+6} offen sc1")
    A("s_mov_b64 exec, -1")
    A.label(li)
    A(f"s_lshl_b32 s{S_OB}, s{S_GHEAD}, 20")
    A(f"s_lshl_b32 s{T+6}, s{T+1}, 17")
    A(f"s_add_u32 s{S_OB}, s{S_OB}, s{T+6}")
    A(f"s_lshl_b32 s{T+6}, s{T+2}, 16")
    A(f"s_add_u32 s{S_OB}, s{S_OB}, s{T+6}")
    A(f"s_add_u32 s{T+6}, s{S_TYPE}, 12")
    A(f"s_lshl_b32 s{T+6}, s{T+3}, s{T+6}")
    A(f"s_add_u32 s{S_OB}, s{S_OB}, s{T+6}")
    A(f"s_lshl_b32 s{T+6}, s{S_TYPE}, 24")
    A(f"s_add_u32 s{S_OB}, s{S_OB}, s{T+6}")
    A(f"s_mov_b32 s{T+6}, 8192")
    A(f"s_cmp_eq_u32 s{S_TYPE}, 0")
    A(f"s_cselect_b32 s{S_OSTA}, s{T+6}, 4096")
    A(f"s_cselect_b32 s{S_OSTB}, s{T+6}, 12288")
    A(f"s_lshl_b32 s{S_GHEAD}, s{S_GHEAD}, 8")
    A(f"s_lshl_b32 s{T+6}, s{S_GRP}, 12")
    A(f"s_add_u32 s{S_GHEAD}, s{S_GHEAD}, s{T+6}")
    A(f"s_lshl_b32 s{T+6}, s{S_TYPE}, 4")
    A(f"s_add_u32 s{S_GHEAD}, s{S_GHEAD}, s{T+6}")
    A(f"s_and_b32 s{T+6}, s{T+1}, 3")
    A(f"s_lshl_b32 s{T+6}, s{T+6}, 2")
    A(f"s_add_u32 s{S_GHEAD}, s{S_GHEAD}, s{T+6}")
    A(f"s_add_u32 s{S_GHEAD}, s{S_GHEAD}, {F_KV}")
    A(f"s_and_b32 s{S_HEAD}, s2, 15")
    A(f"s_lshr_b32 s{T}, s2, 4")
    A(f"s_sub_u32 s{S_QB}, 15, s{T}")
    A(f"s_lshl_b32 s{S_WOFF2}, s{T+7}, 14")
    A(f"s_lshl_b32 s{T+6}, s{S_HEAD}, 9")
    A(f"s_add_u32 s{S_WOFF2}, s{S_WOFF2}, s{T+6}")
    A(f"s_lshl_b32 s{T+5}, s{S_QB}, 7")
    A(f"s_lshl_b32 s{T+6}, s{T+3}, 3")
    A(f"s_add_u32 s{T+5}, s{T+5}, s{T+6}")
    A(f"s_mul_i32 s{T+5}, s{T+5}, 896")
    A(f"s_mul_i32 s{T+6}, s{T+3}, {8*2688}")
    A(f"s_mul_i32 s{T+4}, s{S_HEAD}, 56")
    A(f"s_add_u32 s{T+6}, s{T+6}, s{T+4}")
    A(f"s_cmp_eq_u32 s{T+2}, 0")
    A(f"s_cselect_b32 s{S_XOFF2}, s{T+5}, s{T+6}")
    A(f"s_cselect_b32 s{S_X2LO}, s{P_X}, s{P_WQKV}")
    A(f"s_cselect_b32 s{S_X2HI}, s{P_X+1}, s{P_WQKV+1}")
    A(f"s_mov_b32 s{T+5}, {2048*448*2}")
    A(f"s_cselect_b32 s{S_X2N}, s{T+5}, {448*1344*2}")
    A(f"s_mov_b32 s{T+5}, {16*896}")
    A(f"s_cselect_b32 s{S_XSTA2}, s{T+5}, {4*2688}")
    A(f"s_cselect_b32 s{S_XSTB2}, s{T+5}, {12*2688}")
    A(f"s_mov_b32 s{T+5}, {(128-112*896) & 0xffffffff}")
    A(f"s_cselect_b32 s{S_XWRAP2}, s{T+5}, {12*2688}")
    lskip = A.newlabel("LM")
    A(f"s_cbranch_scc1 {lskip}")
    A(f"v_bfe_u32 v{G}, v0, 1, 3")
    A(f"v_xor_b32 v{G}, v{G}, v{G+6}")
    A(f"v_and_b32 v{G+1}, 1, v0")
    A(f"v_lshl_add_u32 v{G}, v{G}, 1, v{G+1}")
    A(f"v_lshrrev_b32 v{G+1}, 2, v{G}")
    A(f"v_and_b32 v{G}, 3, v{G}")
    A(f"v_lshlrev_b32 v{G}, 4, v{G}")
    A(f"v_mul_u32_u24 v{G+2}, 896, v{G+1}")
    A(f"v_add_u32 v{G}, v{G}, v{G+2}")
    A(f"v_lshrrev_b32 v{G+2}, 4, v0")
    A(f"v_mul_u32_u24 v{G+2}, 2688, v{G+2}")
    A(f"v_add_u32 v{G}, v{G}, v{G+2}")
    A(f"v_mov_b32 v{G+2}, 0x40000000")
    A(f"v_cmp_gt_u32 vcc, 3, v{G+1}")
    A("s_nop 1")
    A(f"v_cndmask_b32 v{V_DX2}, v{G+2}, v{G}, vcc")
    A.label(lskip)
    A(f"s_lshl_b32 s{S_OBQK}, s{S_HEAD}, 17")
    A(f"s_lshl_b32 s{T+5}, s{S_QB}, 13")
    A(f"s_add_u32 s{S_OBQK}, s{S_OBQK}, s{T+5}")
    A(f"s_lshl_b32 s{T+5}, s{T+2}, 12")
    A(f"s_add_u32 s{S_OBQK}, s{S_OBQK}, s{T+5}")
    A(f"s_lshl_b32 s{T+5}, s{T+3}, 8")
    A(f"s_add_u32 s{S_OBV}, s{S_OBQK}, s{T+5}")
    A(f"s_add_u32 s{S_OBV}, s{S_OBV}, {WS_VA}")
    A(f"s_lshl_b32 s{T+5}, s{T+3}, 21")
    A(f"s_add_u32 s{S_OBQK}, s{S_OBQK}, s{T+5}")
    A(f"s_add_u32 s{S_OBQK}, s{S_OBQK}, {WS_QA}")
    A(f"s_cmp_eq_u32 s{T+3}, 0")
    A(f"s_cselect_b32 s{S_SCA}, {f32bits(SCALE_A):#x}, 1.0")
    A(f"v_and_b32 v{G}, 15, v0")
    A(f"v_lshrrev_b32 v{G+1}, 4, v0")
    A(f"v_lshrrev_b32 v{G+2}, 1, v{G}")
    A(f"v_xor_b32 v{G+2}, v{G+2}, v{G+1}")
    A(f"v_lshlrev_b32 v{G+2}, 4, v{G+2}")
    A(f"v_lshl_add_u32 v{G+2}, v{G}, 7, v{G+2}")
    A(f"s_lshl_b32 s{T+5}, s{T+2}, 14")
    A(f"v_add_u32 v{V_XL0}, s{T+5}, v{G+2}")
    A(f"v_xor_b32 v{V_XL1}, 64, v{V_XL0}")
    A(f"s_lshl_b32 s{T+5}, s{T+2}, 13")
    A(f"v_add_u32 v{V_PXL}, s{T+5}, v{G+2}")
    A(f"v_xor_b32 v{V_PXL+1}, 64, v{V_PXL}")
    A(f"v_add_u32 v{V_XR0}, {LDS_X0}, v{V_XL0}")
    A(f"v_add_u32 v{V_XR1}, {LDS_X0}, v{V_XL1}")
    A(f"s_mov_b32 s{S_XRD}, {LDS_X0+32768}")
    A(f"v_bfe_u32 v{G+2}, v0, 2, 2")
    A(f"v_lshl_add_u32 v{G+3}, v{G+1}, 3, v{G+2}")
    A(f"v_lshlrev_b32 v{G+3}, 9, v{G+3}")
    A(f"v_bfe_u32 v{G+4}, v0, 2, 3")
    A(f"v_lshl_add_u32 v{G+3}, v{G+4}, 5, v{G+3}")
    A(f"v_and_b32 v{G+5}, 3, v0")
    A(f"v_lshl_add_u32 v{G+3}, v{G+5}, 3, v{G+3}")
    A(f"s_lshl_b32 s{T+5}, s{T+3}, 8")
    A(f"v_add_u32 v{V_WR}, s{T+5}, v{G+3}")
    for b in range(1, 8):
        A(f"v_xor_b32 v{V_WR+b}, {b*32}, v{V_WR}")
    A(f"v_lshrrev_b32 v{G+3}, 5, v0")
    A(f"v_lshl_add_u32 v{G+3}, v{G+3}, 4, v{G+4}")
    A(f"v_lshlrev_b32 v{G+3}, 8, v{G+3}")
    A(f"v_lshl_add_u32 v{G+3}, v{G+4}, 5, v{G+3}")
    A(f"v_lshl_add_u32 v{G+3}, v{G+5}, 3, v{G+3}")
    A(f"v_add_u32 v{G+3}, 16384, v{G+3}")
    A(f"s_lshl_b32 s{T+5}, s{T+3}, 6")
    A(f"v_xor_b32 v{V_PWL}, s{T+5}, v{G+3}")
    A(f"v_xor_b32 v{V_PWL+1}, 32, v{V_PWL}")
    A(f"s_lshl_b32 s{T+5}, s{T+3}, 5")
    A(f"s_add_u32 s{T+5}, s{T+5}, 128")
    A(f"v_xor_b32 v{V_PWL+2}, s{T+5}, v{G+3}")
    A(f"v_lshlrev_b32 v{G+2}, 9, v{G+1}")
    A(f"v_bfe_u32 v{G+3}, v0, 3, 1")
    A(f"v_lshl_add_u32 v{G+4}, v{G+3}, 8, v{G+2}")
    A(f"v_and_b32 v{G+3}, 7, v0")
    A(f"v_lshl_add_u32 v{V_OA}, v{G+3}, 4, v{G+4}")
    A(f"v_lshl_add_u32 v{V_OAV}, v{G}, 4, v{G+2}")
    A(f"v_mov_b32 v{V_SCHI}, s{S_SCA}")
    A(f"v_cmp_gt_u32 vcc, 3, v{G+1}")
    A("s_nop 1")
    A(f"v_cndmask_b32 v{V_SCHI}, 0, v{V_SCHI}, vcc")
    A(f"s_lshl_b32 s{T+5}, s{T+3}, 4")
    A(f"v_add_u32 v{G+2}, s{T+5}, v{G}")
    A(f"v_cmp_gt_u32 vcc, 28, v{G+2}")
    A("s_nop 1")
    A(f"v_cndmask_b32 v{V_MULHI}, 0, 1.0, vcc")
    A(f"v_cmp_eq_u32 vcc, 28, v{G+2}")
    A("s_nop 1")
    A(f"v_cndmask_b32 v{V_ADDHI}, 0, 1.0, vcc")
    A(f"s_lshl_b32 s{T+6}, s{T+2}, 15")
    A(f"s_lshl_b32 s{T+5}, s{T+3}, 12")
    A(f"s_add_u32 s{T+6}, s{T+6}, s{T+5}")
    A(f"s_add_u32 s{T+6}, s{T+6}, {XQ}")
    A(f"v_add_u32 v{V_XQW}, s{T+6}, v{V_LANE16}")
    A(f"s_lshl_b32 s{T+6}, s{S_WAVE}, 13")
    A(f"s_add_u32 s{T+6}, s{T+6}, {XQ}")
    A(f"v_add_u32 v{V_XQR}, s{T+6}, v{V_LANE16}")
    A("s_waitcnt vmcnt(16)")
    A(f"s_mov_b32 s{S_W12}, 0")
    A(f"s_lshl_b32 s{S_W4}, s{S_PHASE}, 2")
    A(f"s_add_u32 s{S_W4}, s{S_W4}, {WS_G}")
    A(f"s_mov_b32 s{S_LEFT}, 14")
    A(f"s_mov_b32 s{S_PHASE}, 0")
    A(f"s_mov_b32 s{SRD_WS+2}, 0")
    A(f"s_mov_b32 s{SRD_DBG+2}, 0")
    A(f"s_lshl_b32 s{S_TOFF}, s2, 2")
    A(f"s_add_u32 s{S_TOFF}, s{S_TOFF}, s{S_WAVE}")
    A(f"s_lshl_b32 s{S_TBOFF}, s{S_TOFF}, 13")
    A(f"s_mov_b64 {sr(S_TA,2)}, {sr(P_WQ,2)}")
    A(f"s_mov_b32 s{S_TASZ}, {448*4096*2}")
    A(f"s_mov_b32 s{S_TAOFF}, s{S_TBOFF}")
    for first_u, ptr, size in ((448, P_X, 2048*448*2), (672, P_WQKV, 448*1344*2), (819, P_WOA, 448*448*2)):
        A(f"s_sub_u32 s{T}, s{S_TBOFF}, {first_u*8192}")
        A(f"s_cmp_ge_u32 s{S_TOFF}, {first_u}")
        A(f"s_cselect_b64 {sr(S_TA,2)}, {sr(ptr,2)}, {sr(S_TA,2)}")
        A(f"s_cselect_b32 s{S_TASZ}, {size}, s{S_TASZ}")
        A(f"s_cselect_b32 s{S_TAOFF}, s{T}, s{S_TAOFF}")
    na = cfg.get("tna", 10)
    for n, dst, t0 in ((na, S_TAT, 2),):
        A(f"s_mul_i32 s{T}, s{S_TOFF}, {(65536 + n - 1)//n}")
        A(f"s_lshr_b32 s{T}, s{T}, 16")
        A(f"s_mul_i32 s{T}, s{T}, {n}")
        A(f"s_sub_u32 s{dst}, s{S_TOFF}, s{T}")
        A(f"s_add_u32 s{dst}, s{dst}, {t0}")
    A(f"s_lshr_b32 s{S_TOFF2}, s2, 3")
    A(f"s_lshl_b32 s{S_TOFF2}, s{S_TOFF2}, 2")
    A(f"s_add_u32 s{S_TOFF2}, s{S_TOFF2}, s{S_WAVE}")
    A(f"s_lshl_b32 s{S_TOFF2}, s{S_TOFF2}, {6 + cfg.get('tsh', 7)}")
    A(f"s_getpc_b64 {sr(S_PC,2)}")
    A.label("LM_PC")
    A(f"s_bfe_u32 s{S_CSTEP}, s2, 0x30004")
    A(f"s_add_u32 s{S_CSTEP}, s{S_CSTEP}, 2")
    A(f"s_cmp_eq_u32 s{S_WAVE}, 0")
    A(f"s_cselect_b32 s{S_CSTEP}, s{S_CSTEP}, 99")
    A(f"s_and_b32 s{T}, s2, 15")
    A(f"s_lshl_b32 s{T}, s{T}, 4")
    A(f"v_lshlrev_b32 v{V_CRT+1}, 12, v0")
    A(f"v_add_u32 v{V_CRT+1}, s{T}, v{V_CRT+1}")
    A(f"v_mov_b32 v{V_CRT}, 1")
    A(f"v_and_b32 v{V_SIG+1}, 15, v0")
    A(f"v_lshlrev_b32 v{V_SIG+1}, 4, v{V_SIG+1}")
    A(f"v_lshlrev_b32 v{V_TCH}, {cfg.get('tsh', 7)}, v0")
    if cfg.get("thalf"):
        A(f"v_lshlrev_b32 v{V_TCH}, 7, v0")
        A(f"v_mov_b32 v{V_TCH+1}, 0x40000000")
        A(f"v_cmp_gt_u32 vcc, 32, v0")
        A("s_nop 1")
        A(f"v_cndmask_b32 v{V_TCH}, v{V_TCH+1}, v{V_TCH}, vcc")
    A("s_barrier")
    A.emit_list(g_reads(0, 0))
    A("s_waitcnt lgkmcnt(0)")
    A(f"s_cmp_eq_u32 s{S_TYPE}, 1")
    A("s_cbranch_scc1 LG_VT")
    n_early = cfg.get("n_early", 16)
    for typ in ("KQ", "V"):
        if typ == "V":
            A.label("LG_VT")
        g_step(A, typ, True, cfg)
        A.label(f"LG_LOOP_{typ}")
        g_step(A, typ, False, cfg)
        A(f"s_cbranch_scc1 LG_LOOP_{typ}")
        A(f"s_cmp_eq_u32 s{S_PHASE}, 16")
        A(f"s_cbranch_scc1 LG_EPI_{typ}")
        A(f"s_mov_b32 s{S_LEFT}, 2")
        A(f"s_cmp_eq_u32 s{S_WAVE}, 0")
        A(f"s_cselect_b32 s{SRD_DBG+2}, 256, 0")
        A(f"buffer_load_dword v{V_SIG}, v{V_SIG+1}, {sr(SRD_DBG,4)}, 0 offen sc1")
        A(f"s_mov_b32 s{SRD_DBG+2}, 0")
        A(f"s_mov_b32 s{SRD_A}, s{S_X2LO}")
        A(f"s_mov_b32 s{SRD_A+1}, s{S_X2HI}")
        A(f"s_mov_b32 s{SRD_A+2}, s{S_X2N}")
        A(f"s_mov_b32 s{S_XOFF}, s{S_XOFF2}")
        A(f"s_mov_b32 s{S_XSTA}, s{S_XSTA2}")
        A(f"s_mov_b32 s{S_XSTB}, s{S_XSTB2}")
        A(f"s_mov_b32 s{S_XWRAP}, s{S_XWRAP2}")
        A(f"v_mov_b32 v{V_DX}, v{V_DX2}")
        A(f"s_mov_b32 s{SRD_B}, s{P_WQ}")
        A(f"s_mov_b32 s{SRD_B+1}, s{P_WQ+1}")
        A(f"s_mov_b32 s{SRD_B+2}, {448*4096*2}")
        A(f"s_mov_b32 s{S_WOFF}, s{S_WOFF2}")
        A(f"s_branch LG_LOOP_{typ}")
        A.label(f"LG_EPI_{typ}")
        stamp(A, cfg, 1)
        set_srd(A, SRD_WS, P_WS, WS_SIZE)
        A(f"s_mov_b32 s{SRD_DBG+2}, 256")
        lok, llp = A.newlabel("LM"), A.newlabel("LM")
        A(f"v_cmp_le_u32 vcc, 16, v{V_SIG}")
        A(f"s_cmp_lg_u32 s{S_WAVE}, 0")
        A(f"s_cbranch_scc1 {lok}")
        A(f"s_mov_b32 s{T+1}, {SPIN_MAX}")
        A.label(llp)
        A("s_nop 3")
        A("s_cmp_eq_u64 vcc, -1")
        A(f"s_cbranch_scc1 {lok}")
        A(f"s_sub_u32 s{T+1}, s{T+1}, 1")
        A(f"s_cmp_eq_u32 s{T+1}, 0")
        A(f"s_cbranch_scc1 {lok}")
        A("s_sleep 32")
        A(f"buffer_load_dword v{V_SIG}, v{V_SIG+1}, {sr(SRD_DBG,4)}, 0 offen sc1")
        A("s_waitcnt vmcnt(0)")
        A(f"v_cmp_le_u32 vcc, 16, v{V_SIG}")
        A(f"s_branch {llp}")
        A.label(lok)
        if cfg.get("gdiag"):
            A(f"s_lshl_b32 s{T}, s2, 2")
            A(f"s_add_u32 s{T}, s{T}, s{S_WAVE}")
            A(f"s_lshl_b32 s{T}, s{T}, 9")
            A(f"s_add_u32 s{T}, s{T}, {232 << 20}")
            A(f"v_lshrrev_b32 v242, 2, v{V_LANE16}")
            A(f"buffer_store_dword v240, v242, {sr(SRD_WS,4)}, s{T} offen")
            A(f"buffer_store_dword v241, v242, {sr(SRD_WS,4)}, s{T} offen offset:256")
        A(f"s_mov_b32 s{S_XOFF2}, s{S_OB}")
        A.emit_list(p_addr(16))
        A.emit_list(p_reads(0, 0))
        g_cvt(A, typ, n_early)
        if typ == "KQ":
            A("s_branch LP_START")
    A.label("LP_START")
    if cfg.get("stamp_lp"):
        stamp(A, cfg, 3)
    A("s_waitcnt lgkmcnt(0)")
    rem = list(range(n_early, 32))
    per = cfg.get("st_per", [4, 4, 4, 4])
    k = 0
    for T_ in range(16, 23):
        st = []
        for h in range(2):
            n = per[k] if k < len(per) else 0
            k += 1
            st.append(rem[:n])
            rem = rem[n:]
        p_step(A, T_, st[0], st[1], cfg)
    assert not rem, rem
    stamp(A, cfg, 2)
    b_setup_kv(A)
    def kv_first():
        for w, s_ in (("K", 0), ("V", 0), ("K", 1), ("V", 1), ("K", 2), ("V", 2)):
            emit_chain(A, kv_tile_chain(w, s_))
    A("s_waitcnt vmcnt(0)")
    poll_test(A)
    A(f"s_cselect_b32 s{S_EV}, 1, 0")
    A("s_cbranch_scc0 LP_NOTYET")
    kv_first()
    A.label("LP_NOTYET")
    A(f"s_cmp_eq_u32 s{S_GRP}, 0")
    A("s_cbranch_scc1 LP_NOLATE")
    A(f"s_mov_b32 s{S_OB}, s{S_XOFF2}")
    for c in range(32):
        for o_ in kv_store(c, SRD_WS):
            A(o_.text)
    A("s_nop 1")
    A.label("LP_NOLATE")
    p_epilogue_a(A)
    p_epilogue_q(A)
    b_setup_rest(A)
    A(f"s_cmp_eq_u32 s{S_EV}, 1")
    A("s_cbranch_scc1 LP_HAVE")
    poll_wait(A, True)
    kv_first()
    A.label("LP_HAVE")
    b_main(A, cfg)
    stamp_out(A, cfg, 7, 200 << 20, 2)
    hstamp_out(A, cfg, [(0, 2, True), (1, 3, False), (2, 5, False), (4, 6, False), (6, 7, False)])
    A.label("LQ_NEXT")
    lp = A.newlabel("LQ")
    A(f"s_cmp_eq_u32 s{S_POPPED}, 1")
    A(f"s_cbranch_scc1 {lp}")
    pop_issue(A)
    A("s_waitcnt vmcnt(0)")
    A.label(lp)
    A(f"s_mov_b32 s{S_POPPED}, 0")
    lw = A.newlabel("LQ")
    A(f"s_cmp_lg_u32 s{S_WAVE}, 0")
    A(f"s_cbranch_scc1 {lw}")
    A(f"s_waitcnt vmcnt({0 if cfg.get('diag') else 14})")
    A(f"v_mov_b32 v{V_POLL+1}, {LDS_TOTAL-16}")
    A("s_mov_b64 exec, 1")
    A(f"ds_write_b32 v{V_POLL+1}, v{V_POP}")
    A("s_mov_b64 exec, -1")
    A.label(lw)
    A("s_waitcnt lgkmcnt(0)")
    A("s_barrier")
    A(f"v_mov_b32 v{V_POLL+1}, {LDS_TOTAL-16}")
    A(f"ds_read_b32 v{V_POLL}, v{V_POLL+1}")
    A(f"s_mov_b32 s{S_PFLAG}, s{S_RFLAG}")
    A(f"s_mov_b32 s{S_PMASK}, s{S_RMASK}")
    A("s_waitcnt lgkmcnt(0)")
    A(f"v_readfirstlane_b32 s{S_ITEM}, v{V_POLL}")
    A("s_nop 3")
    A(f"s_cmp_lt_u32 s{S_ITEM}, {a_counts(cfg)[3]}")
    A("s_cbranch_scc1 LQ_AITEM")
    ls = A.newlabel("LQ")
    A(f"s_cmp_eq_u32 s{S_PFLAG}, 0")
    A(f"s_cbranch_scc1 {ls}")
    A("s_waitcnt vmcnt(0)")
    A.label(ls)
    A("s_barrier")
    ls = A.newlabel("LQ")
    A(f"s_cmp_eq_u32 s{S_PFLAG}, 0")
    A(f"s_cbranch_scc1 {ls}")
    signal(A, S_PFLAG, mask_sgpr=S_PMASK)
    A.label(ls)
    NA = a_counts(cfg)[3]
    A("s_branch LQ_RED")
    A.label("LQ_AITEM")
    a_item(A, cfg)
    hstamp_out(A, cfg, [(6, 10, False)])
    if cfg.get("diag"):
        A(f"s_and_b32 s{T+2}, s2, 7")
        A(f"s_lshl_b32 s{T+3}, s{S_ITEM}, 3")
        A(f"s_add_u32 s{T+2}, s{T+2}, s{T+3}")
        stamp_out(A, cfg, 5, 210 << 20, T + 2)
    A("s_branch LQ_NEXT")
    A.label("LQ_RED")
    if cfg.get("rdyn"):
        A(f"s_mov_b32 s{S_RFLAG}, 0")
        A(f"s_mov_b32 s{S_FIRST}, 0")
        A(f"s_sub_u32 s{S_EV}, s{S_ITEM}, {NA}")
        A(f"s_cmp_ge_u32 s{S_EV}, 56")
        A("s_cbranch_scc1 LM_FIN")
        A("s_branch LQ_RLOOP")
    n3 = cfg.get("rn3", 16)
    n1 = 56 - 3 * n3
    A(f"s_sub_u32 s{S_ITEM}, s{S_ITEM}, {NA}")
    A(f"s_cmp_ge_u32 s{S_ITEM}, {n3 + n1}")
    A("s_cbranch_scc1 LM_FIN")
    A(f"s_add_u32 s{S_EV}, s{S_ITEM}, {n3}")
    A(f"s_cmp_lt_u32 s{S_ITEM}, {n3}")
    A(f"s_cselect_b32 s{S_EV}, s{S_ITEM}, s{S_EV}")
    A(f"s_mov_b32 s{S_FIRST}, 0")
    A.label("LQ_RLOOP")
    r_item(A, cfg)
    if cfg.get("diag"):
        A(f"s_and_b32 s{T+2}, s2, 7")
        A(f"s_lshl_b32 s{T+3}, s{S_EV}, 3")
        A(f"s_add_u32 s{T+2}, s{T+2}, s{T+3}")
        stamp_out(A, cfg, 3, 220 << 20, T + 2)
    if cfg.get("rdyn"):
        A("s_branch LQ_NEXT")
    A(f"s_cmp_ge_u32 s{S_EV}, {2*n3}")
    A("s_cbranch_scc1 LM_FIN")
    A(f"s_mov_b32 s{S_EV}, s{S_LEFT}")
    A("s_branch LQ_RLOOP")
    a_redo(A, cfg)
    flush_ool(A)
    b_rare(A, 0)
    b_rare(A, 1)
    a_rare(A, 0)
    a_rare(A, 1)
    A.label("LM_FIN")
    stamp_out(A, cfg, 1, 230 << 20, 2)
    hstamp_out(A, cfg, [(6, 11, False)])
    A.label("LM_END")
    A("s_endpgm")
    return kernel_desc(name, 512, 102, 256)
```
